```python
import torch

def _softmax(x, axis=-1):
    return torch.softmax(x, dim=axis)
def _gelu(x):
    return torch.nn.functional.gelu(x, approximate="tanh")
def _silu(x):
    return torch.nn.functional.silu(x)
def _sigmoid(x):
    return torch.sigmoid(x)
def _layernorm(x, axis=-1, eps=1e-5):
    m = x.mean(dim=axis, keepdim=True)
    v = x.var(dim=axis, keepdim=True, unbiased=False)
    return (x - m) / torch.sqrt(v + eps)
def _scatter_add(tgt, idx, src, axis=0):
    return tgt.clone().index_add_(axis, idx, src)
def _segment_sum(src, seg, n):
    out = torch.zeros((n,) + src.shape[1:], dtype=src.dtype)
    return out.index_add_(0, seg, src)
def _pad(x, pw):
    flat = tuple(v for pair in reversed(pw) for v in pair)
    return torch.nn.functional.pad(x, flat)

kernel_name = 'recurrent_scan__linear_attn_block__mixer_channel_mlp__prompt'

def setup_inputs():

    _w = (lambda a: (lambda t: t.to(torch.bfloat16) if t.is_floating_point() else t)(torch.as_tensor(a)))
    def _A_setup():
        B, S, D = 1, 2048, 640
        return {
            "x": _w((lambda *s: torch.randn(*s, dtype=torch.bfloat16) * 0.05)(B, S, D)),
            "wqkv": _w((lambda *s: torch.randn(*s, dtype=torch.bfloat16) * 0.2)(D, 3 * D)),
            "wo": _w((lambda *s: torch.randn(*s, dtype=torch.bfloat16) * 0.2)(D, D)),
        }
    _A_in = _A_setup()

    def _B_setup():
        B, S, D, F = 1, 2048, 640, 1536
        return {
            "x": _w((lambda *s: torch.randn(*s, dtype=torch.bfloat16) * 0.05)(B, S, D)),
            "w1": _w((lambda *s: torch.randn(*s, dtype=torch.bfloat16) * 0.8)(D, F) * (D ** -0.5)),
            "b1": _w((lambda *s: torch.randn(*s, dtype=torch.bfloat16) * 0.8)(F)),
            "w2": _w((lambda *s: torch.randn(*s, dtype=torch.bfloat16) * 0.1)(F, D) * (F ** -0.5)),
            "b2": _w((lambda *s: torch.randn(*s, dtype=torch.bfloat16) * 0.1)(D)),
        }
    _B_in = _B_setup()

    return {
        "A_x": _A_in["x"],
        "A_wqkv": _A_in["wqkv"],
        "A_wo": _A_in["wo"],
        "B_x": _B_in["x"],
        "B_w1": _B_in["w1"],
        "B_b1": _B_in["b1"],
        "B_w2": _B_in["w2"],
        "B_b2": _B_in["b2"],
    }

def reference(A_x, A_wqkv, A_wo, B_x, B_w1, B_b1, B_w2, B_b2):
    def _A_ref(x, wqkv, wo):
        B, S, D = x.shape
        H = 32; Dh = D // H
        qkv = (lambda x, *d: x.permute(*d))((x @ wqkv).reshape(B, S, 3, H, Dh), 2, 0, 3, 1, 4)
        q, k, v = qkv[0], qkv[1], qkv[2]
        phi = lambda t: torch.where(t > 0, t + 1, torch.exp(t)) + 1e-6
        pq, pk = phi(q), phi(k)
        kv = torch.einsum("bhsd,bhse->bhde", pk, v)
        z = torch.einsum("bhsd->bhd", pk)
        num = torch.einsum("bhqd,bhde->bhqe", pq, kv)
        den = torch.einsum("bhqd,bhd->bhq", pq, z)[..., None] + 1e-6
        o = num / den
        return (lambda x, *d: x.permute(*d))(o, 0, 2, 1, 3).reshape(B, S, D) @ wo

    def _B_ref(x, w1, b1, w2, b2):
        y = _layernorm(x, axis=-1)
        h = _gelu(torch.einsum("bsd,df->bsf", y, w1) + b1)
        return torch.einsum("bsf,fd->bsd", h, w2) + b2

    x = A_x
    xn = _layernorm(x, axis=-1)
    s = _A_ref(xn, A_wqkv, A_wo)
    g = _silu(_B_ref(xn, B_w1, B_b1, B_w2, B_b2))
    return x + s * g
```

```python
import re

def v(i, n=1):
    return f"v{i}" if n == 1 else f"v[{i}:{i+n-1}]"
def s(i, n=1):
    return f"s{i}" if n == 1 else f"s[{i}:{i+n-1}]"

_REG = re.compile(r"^(-?)(?:abs\()?\|?([vsa])(?:(\d+)|\[(\d+):(\d+)\])\|?\)?$")
TRANS = ('v_exp_f32', 'v_log_f32', 'v_rcp_f32', 'v_rsq_f32', 'v_sqrt_f32', 'v_sin_f32', 'v_cos_f32', 'v_rcp_iflag_f32')

def regs_of(op):
    op = op.strip()
    if op in ('vcc', 'exec'): return [(op, 0)]
    if op in ('vcc_lo', 'vcc_hi'): return [('vcc', 0)]
    if op in ('exec_lo', 'exec_hi'): return [('exec', 0)]
    if op == 'm0': return [('m0', 0)]
    m = _REG.match(op)
    if not m: return []
    k = m.group(2)
    if m.group(3) is not None: return [(k, int(m.group(3)))]
    return [(k, i) for i in range(int(m.group(4)), int(m.group(5)) + 1)]

class Ins:
    __slots__ = ('text', 'mn', 'kind', 'wr', 'rd', 'srcA', 'srcC', 'passes', 'ws', 'storedata', 'dpp', 'lanesel')
    def __init__(self, text):
        self.text = text
        t = text.split(';')[0].strip()
        parts = t.split(None, 1)
        self.mn = mn = parts[0]
        ops = []
        if len(parts) > 1:
            ops = [o.strip() for o in parts[1].split(',')]
            last = ops[-1].split()
            mods = last[1:]
            ops[-1] = last[0] if last else ''
        else:
            mods = []
        self.wr = []; self.rd = []; self.srcA = []; self.srcC = []; self.passes = 0
        self.storedata = []; self.ws = 1; self.dpp = False; self.lanesel = []
        base = mn.replace('_e32', '').replace('_e64', '')
        if mn.startswith('v_mfma'):
            self.kind = 'mfma'
            self.wr = regs_of(ops[0]); self.srcA = regs_of(ops[1]) + regs_of(ops[2]); self.srcC = regs_of(ops[3])
            self.rd = self.srcA + self.srcC
            self.passes = 8 if '32x32' in mn else 4
        elif mn.startswith('v_'):
            self.kind = 'trans' if base in TRANS else 'valu'
            if '_dpp' in mn or any(m.startswith(('row_', 'quad_perm', 'wave_')) for m in mods): self.dpp = True
            nd = 1
            if base.startswith(('v_add_co', 'v_sub_co', 'v_addc_co', 'v_subb_co', 'v_subrev_co', 'v_div_scale', 'v_mad_u64')): nd = 2
            for o in ops[:nd]: self.wr += regs_of(o)
            for o in ops[nd:]: self.rd += regs_of(o)
            if base.startswith(('v_fmac', 'v_dot2c', 'v_mac', 'v_writelane')) or self.dpp: self.rd += regs_of(ops[0])
            if base.startswith('v_permlane'):
                self.wr += regs_of(ops[1]); self.rd += regs_of(ops[0])
            if base.startswith('v_cmpx'): self.wr.append(('exec', 0))
            if base.startswith(('v_readlane', 'v_writelane')): self.lanesel = regs_of(ops[2])
        elif mn.startswith('ds_'):
            self.kind = 'ds'
            if mn.startswith(('ds_read', 'ds_bpermute', 'ds_permute', 'ds_swizzle')) or '_rtn' in mn:
                self.wr = regs_of(ops[0])
                for o in ops[1:]: self.rd += regs_of(o)
            else:
                for o in ops: self.rd += regs_of(o)
        elif mn.startswith(('buffer_', 'global_')):
            self.kind = 'vmem'
            islds = 'lds' in mods or '_lds_' in mn
            if mn in ('buffer_wbl2', 'buffer_inv'):
                pass
            elif 'load' in mn and not islds:
                self.wr = regs_of(ops[0])
                for o in ops[1:]: self.rd += regs_of(o)
            else:
                for o in ops: self.rd += regs_of(o)
                if islds: self.rd.append(('m0', 0))
                if 'store' in mn and ('x4' in mn or 'x3' in mn):
                    self.storedata = regs_of(ops[0] if mn.startswith('buffer_') else ops[1])
                if 'atomic' in mn and 'sc0' in mods:
                    self.wr = regs_of(ops[0])
        elif mn.startswith('s_'):
            self.kind = 'salu'
            if mn == 's_nop': self.ws = int(ops[0], 0) + 1
            elif mn.startswith(('s_cmp', 's_bitcmp', 's_waitcnt', 's_barrier', 's_branch', 's_cbranch', 's_endpgm', 's_sleep', 's_setprio', 's_setpc')):
                for o in ops: self.rd += regs_of(o)
            else:
                if ops: self.wr = regs_of(ops[0])
                for o in ops[1:]: self.rd += regs_of(o)
                if 'saveexec' in mn: self.wr.append(('exec', 0))
        else:
            raise ValueError('unknown instr ' + text)

def need(p, c):
    n = 0
    pw = set(p.wr); cr = set(c.rd); cw = set(c.wr)
    if p.kind in ('valu', 'trans'):
        vw = {r for r in pw if r[0] in 'va' and len(r[0]) == 1}
        sw = {r for r in pw if r[0] in ('s', 'vcc')}
        if c.kind == 'mfma' and vw & cr: n = max(n, 2)
        if c.kind == 'mfma' and ('exec', 0) in pw: n = max(n, 4)
        if p.kind == 'trans' and c.kind in ('valu', 'mfma') and vw & (cr | cw): n = max(n, 1)
        if c.kind in ('valu', 'trans'):
            b = c.mn
            if b.startswith(('v_readlane', 'v_readfirstlane')) and vw & cr: n = max(n, 1)
            if b.startswith('v_permlane') and vw & cr: n = max(n, 2)
            if c.dpp and vw & cr: n = max(n, 2)
            if c.dpp and ('exec', 0) in pw: n = max(n, 5)
            if sw & cr: n = max(n, 2)
            if sw & set(c.lanesel): n = max(n, 4)
            if ('exec', 0) in pw and b.startswith(('v_readlane', 'v_readfirstlane', 'v_writelane', 'v_permlane')): n = max(n, 4)
        if c.kind == 'vmem' and sw & cr: n = max(n, 5)
        if c.kind == 'salu' and sw & cr: n = max(n, 2)
    elif p.kind == 'mfma':
        big = {4: 8, 8: 12}[p.passes]
        if c.kind == 'mfma':
            if pw & set(c.srcA): n = max(n, big)
            if pw & set(c.srcC):
                if not (p.wr == c.srcC and p.mn == c.mn): n = max(n, {4: 6, 8: 10}[p.passes])
            elif pw & cw: n = max(n, big)
        elif c.kind in ('valu', 'trans', 'ds', 'vmem'):
            if pw & (cr | cw): n = max(n, big)
            if c.kind in ('valu', 'trans') and set(p.srcC) & cw: n = max(n, {4: 3, 8: 7}[p.passes])
    elif p.kind == 'vmem':
        if p.storedata and set(p.storedata) & cw and c.kind != 'salu': n = max(n, 2)
    elif p.kind == 'salu':
        if ('m0', 0) in pw and c.kind in ('vmem',) and ('m0', 0) in cr: n = max(n, 1)
    return n

class Asm:
    def __init__(self):
        self.lines = []
        self.nbar = 0
    def __call__(self, text):
        for l in text.split('\n'):
            l = l.strip()
            if not l: continue
            if l.startswith(';') or l.startswith('.'):
                self.lines.append(('raw', l))
            elif l.endswith(':'):
                self.lines.append(('label', l))
            else:
                self.lines.append(('ins', l))
                if l.split()[0] == 's_barrier': self.nbar += 1
    def label(self, name): self.lines.append(('label', name + ':'))
    def finish(self):
        out = []; hist = []
        for kind, t in self.lines:
            if kind != 'ins':
                out.append((kind, t, None)); continue
            c = Ins(t)
            dist = 0; pad = 0
            for p in reversed(hist):
                if dist >= 12: break
                nn = need(p, c)
                if nn > dist: pad = max(pad, nn - dist)
                dist += p.ws
            if pad:
                nop = Ins(f's_nop {pad-1}')
                out.append(('ins', nop.text, nop)); hist.append(nop)
            out.append((kind, t, c)); hist.append(c)
            if c.mn in ('s_branch', 's_endpgm', 's_setpc_b64'): hist = []
            hist = hist[-14:]
        labels = {t[:-1]: i for i, (k, t, _) in enumerate(out) if k == 'label'}
        for i, (k, t, c) in enumerate(out):
            if k == 'ins' and c.mn.startswith(('s_branch', 's_cbranch')):
                tgt = t.split()[1]
                if tgt not in labels: raise ValueError('no label ' + tgt)
                before = [x[2] for x in out[max(0, i-16):i+1] if x[0] == 'ins']
                after = [x[2] for x in out[labels[tgt]:labels[tgt]+20] if x[0] == 'ins']
                for ai, cc in enumerate(after):
                    dist = sum(x.ws for x in after[:ai])
                    for p in reversed(before):
                        if dist >= 12: break
                        if need(p, cc) > dist:
                            raise ValueError(f'hazard across branch {t}: {p.text} -> {cc.text}')
                        dist += p.ws
                        if p.mn in ('s_branch', 's_endpgm') and p is not c: break
                    if cc.mn in ('s_branch', 's_endpgm'): break
        txt = []
        for k, t, _ in out:
            txt.append(t if k in ('label',) else ('    ' + t if k == 'ins' else t))
        return '\n'.join(txt) + '\n'
```

```python
import sys, math
from asmlib import *

NAME = 'recurrent_scan__linear_attn_block__mixer_channel_mlp__prompt_kernel'

class Cfg:
    n1 = 6
    diag = False
    ko = 10
    rot1 = (1, 3, 0)
    rot2 = (3, 0, 0)
    stop = None

SLOT = 45056
SCR = 3 * SLOT
LDS_TOTAL = 163840
ST = SLOT + 40960
ST_CS = ST + 2048
B1L = SCR + 28160
KVT = SCR
OEX = SCR + 8192
XT = SCR
B2L = SCR + 10240
RING = [SLOT, SLOT + 20480, 2 * SLOT, 2 * SLOT + 20480, 0, 20480]
EXB = RING[5]
WS_FH = 4096; WS_FK = 6144; WS_FO = 7168; WS_FP = 9216
WS_TS = 0x10000
WS_KP = 0x80000; KP_STRIDE = 6784
WS_P2 = 0x200000; WS_O2 = 0x500000; WS_H2 = 0x800000
WS_SIZE = 0xE00000
OOB = 0x40000000
P_X, P_W, P_WO, P_W1, P_B1, P_W2, P_B2, P_OUT, P_DBG, P_WS = 4, 6, 8, 12, 14, 16, 18, 20, 22, 24
R_X, R_W, R_W1, R_MID, R_WS, R_PK, R_OUT, R_BI = 28, 32, 36, 40, 44, 48, 52, 56
S_WID, S_RB, S_HG, S_TY, S_TT, S_N, S_XCD, S_IDX, S_R, S_C = 60, 61, 62, 63, 64, 65, 66, 67, 68, 69
S_T0, S_T1, S_T2, S_T3 = 70, 71, 72, 73
S_KC, S_OA, S_OW, S_OM, S_OH = 74, 75, 76, 77, 78
S_NONCE, S_CNT, S_U, S_DELTA, S_IT = 79, 80, 81, 82, 83
S_MASK = 84
S_DEST = 86
S_TS = 98
S_L = S_R

LOG2E = 1.4426950408889634
def f2u(x):
    import struct
    return struct.unpack('<I', struct.pack('<f', x))[0]
def lit(x): return hex(f2u(x))

def srd(a, r, p, size):
    a(f"s_mov_b32 {s(r)}, {s(p)}")
    a(f"s_and_b32 {s(r+1)}, {s(p+1)}, 0xffff")
    a(f"s_mov_b32 {s(r+2)}, {hex(size)}")
    a(f"s_mov_b32 {s(r+3)}, 0x20000")

def interleave(a, main, fill, last_frac=0.7, first=0):
    n = len(main); m = len(fill); k = 0
    lim = max(1, int(n * last_frac))
    while k < min(first, m): a(fill[k]); k += 1
    for i, x in enumerate(main):
        a(x)
        tgt = first + math.ceil((m - first) * min(i + 1, lim) / lim) if m > first else m
        while k < tgt: a(fill[k]); k += 1
    while k < m: a(fill[k]); k += 1

class Gen:
    def __init__(self, cfg):
        self.cfg = cfg
        self.a = Asm()
        self.uid = 0
    def lab(self, p):
        self.uid += 1; return f"L{p}_{self.uid}"

    def stamp(self, i):
        if not self.cfg.diag: return
        a = self.a
        a(f"s_memtime {s(S_TS,2)}")
        a("s_waitcnt lgkmcnt(0)")
        a(f"v_writelane_b32 v70, {s(S_TS)}, {i}")

    def entry(self):
        a = self.a; cfg = self.cfg
        a(f"s_cmp_ge_u32 s2, 256")
        a(f"s_cbranch_scc1 Lend")
        a(f"s_load_dwordx16 s[4:19], s[0:1], 0")
        a(f"s_load_dwordx4 s[20:23], s[0:1], 64")
        a(f"s_load_dwordx2 s[24:25], s[0:1], 80")
        a(f"v_lshrrev_b32 v2, 6, v0")
        a(f"v_and_b32 v1, 63, v0")
        a(f"v_readfirstlane_b32 {s(S_WID)}, v2")
        a(f"s_and_b32 {s(S_XCD)}, s2, 7")
        a(f"s_lshr_b32 {s(S_IDX)}, s2, 3")
        a(f"s_lshr_b32 {s(S_T0)}, {s(S_XCD)}, 1")
        a(f"s_lshl_b32 {s(S_T0)}, {s(S_T0)}, 2")
        a(f"s_and_b32 {s(S_T1)}, {s(S_IDX)}, 3")
        a(f"s_add_u32 {s(S_RB)}, {s(S_T0)}, {s(S_T1)}")
        a(f"s_lshl_b32 {s(S_T0)}, {s(S_T0)}, 1")
        a(f"s_and_b32 {s(S_T1)}, {s(S_IDX)}, 7")
        a(f"s_add_u32 {s(S_TT)}, {s(S_T0)}, {s(S_T1)}")
        a(f"s_and_b32 {s(S_T0)}, {s(S_XCD)}, 1")
        a(f"s_lshl_b32 {s(S_T0)}, {s(S_T0)}, 2")
        a(f"s_lshr_b32 {s(S_T1)}, {s(S_IDX)}, 3")
        a(f"s_add_u32 {s(S_HG)}, {s(S_T0)}, {s(S_T1)}")
        a(f"s_mov_b32 {s(S_N)}, {s(S_HG)}")
        a(f"s_bfe_u32 {s(S_TY)}, {s(S_IDX)}, 0x10002")
        a(f"s_cmp_ge_u32 {s(S_WID)}, 8")
        a(f"s_cbranch_scc1 Lloader")

    def poll_issue(self, vdst, voff, n=1):
        self.a(f"buffer_load_dword{'x2' if n == 2 else ''} {v(vdst, n)}, {v(voff)}, {s(R_WS,4)}, 0 offen sc1")
    def poll_check(self, vdst, voff, nlanes, n=1):
        a = self.a
        L = self.lab('poll'); Ld = self.lab('polld')
        mask = (1 << nlanes) - 1
        a(f"s_mov_b32 {s(S_CNT)}, 0")
        a.label(L)
        a(f"v_cmp_ne_u32 vcc, {s(S_NONCE)}, {v(vdst)}")
        if n == 2:
            a(f"v_cmp_ne_u32 {s(S_MASK,2)}, {s(S_NONCE)}, {v(vdst+1)}")
            a(f"s_or_b64 vcc, vcc, {s(S_MASK,2)}")
        if nlanes < 32:
            a(f"s_and_b32 {s(S_T0)}, vcc_lo, {hex(mask)}")
        else:
            a(f"s_and_b32 {s(S_T0)}, vcc_hi, {hex(mask >> 32)}")
            a(f"s_or_b32 {s(S_T0)}, {s(S_T0)}, vcc_lo")
        a(f"s_cbranch_scc0 {Ld}")
        a(f"s_add_u32 {s(S_CNT)}, {s(S_CNT)}, 1")
        a(f"s_cmp_gt_u32 {s(S_CNT)}, 0x40000")
        a(f"s_cbranch_scc1 {Ld}")
        self.poll_issue(vdst, voff, n)
        a("s_waitcnt vmcnt(0)")
        a(f"s_branch {L}")
        a.label(Ld)
    def only_l0(self):
        L = self.lab('l0')
        self.a(f"s_cmp_lg_u32 {s(S_L)}, 0")
        self.a(f"s_cbranch_scc1 {L}")
        return L
    def flag_store(self, voff):
        self.a(f"buffer_store_dword v41, {v(voff)}, {s(R_WS,4)}, 0 offen sc1")

    def loader(self):
        a = self.a; cfg = self.cfg
        VO = 10
        a.label('Lloader')
        nb0 = a.nbar
        a(f"s_sub_u32 {s(S_L)}, {s(S_WID)}, 8")
        if cfg.diag:
            a("v_mov_b32 v70, 0")
            a(f"s_memrealtime {s(S_TS,2)}")
            a("s_waitcnt lgkmcnt(0)")
            a(f"v_writelane_b32 v70, {s(S_TS)}, 0")
            self.stamp(1)
        ra, rb_, rc = cfg.rot1
        a(f"s_lshr_b32 {s(S_T0)}, {s(S_IDX)}, 2")
        a(f"s_mul_i32 {s(S_KC)}, {s(S_T0)}, {ra}")
        a(f"s_and_b32 {s(S_T0)}, {s(S_IDX)}, 3")
        a(f"s_mul_i32 {s(S_T0)}, {s(S_T0)}, {rb_}")
        a(f"s_add_u32 {s(S_KC)}, {s(S_KC)}, {s(S_T0)}")
        if rc:
            a(f"s_mul_i32 {s(S_T0)}, {s(S_XCD)}, {rc}")
            a(f"s_add_u32 {s(S_KC)}, {s(S_KC)}, {s(S_T0)}")
        a(f"s_mul_i32 {s(S_T0)}, {s(S_KC)}, 6554")
        a(f"s_lshr_b32 {s(S_T0)}, {s(S_T0)}, 16")
        a(f"s_mul_i32 {s(S_T0)}, {s(S_T0)}, 10")
        a(f"s_sub_u32 {s(S_KC)}, {s(S_KC)}, {s(S_T0)}")
        a(f"v_lshrrev_b32 v2, 3, v1")
        a(f"v_lshrrev_b32 v3, 4, v1")
        a(f"v_and_b32 v4, 7, v1")
        a(f"v_xor_b32 v5, v4, v3")
        a(f"s_lshl_b32 {s(S_T0)}, {s(S_RB)}, 2")
        a(f"s_add_u32 {s(S_T0)}, {s(S_T0)}, {s(S_L)}")
        a(f"s_mul_i32 {s(S_T0)}, {s(S_T0)}, {32*1280}")
        a(f"v_mul_u32_u24 v6, 1280, v2")
        a(f"v_lshl_add_u32 v6, v5, 4, v6")
        a(f"v_add_u32 {v(VO)}, {s(S_T0)}, v6")
        a(f"v_xor_b32 v7, 64, {v(VO)}")
        a(f"v_add_u32 {v(VO+1)}, 10240, v7")
        a(f"v_add_u32 {v(VO+2)}, 20480, {v(VO)}")
        a(f"v_add_u32 {v(VO+3)}, 30720, v7")
        a(f"s_lshl_b32 {s(S_DEST)}, {s(S_L)}, 12")
        for n in range(1, 4): a(f"s_add_u32 {s(S_DEST+n)}, {s(S_DEST)}, {1024*n}")
        a(f"s_lshl_b32 {s(S_OA)}, {s(S_KC)}, 7")
        a("s_waitcnt lgkmcnt(0)")
        srd(a, R_X, P_X, 2048 * 1280)
        srds = [R_X]*4 + [R_W]*3 + [R_MID]*2 + [R_W1]*2
        soffs = [S_OA]*4 + [S_OW]*3 + [S_OM]*2 + [S_OH]*2
        def dma(k, n):
            a(f"s_add_u32 m0, {s(S_DEST+n)}, {(k % 3) * SLOT}")
            a(f"buffer_load_dwordx4 {v(VO+n)}, {s(srds[n],4)}, {s(soffs[n])} offen lds")
        for n in range(4): dma(0, n)
        srd(a, R_W, P_W, 640 * 3840)
        srd(a, R_W1, P_W1, 640 * 3072)
        srd(a, R_WS, P_WS, WS_SIZE)
        def wrow(dst, i, valid_check):
            a(f"v_add_u32 v6, {s(S_T1)}, v1")
            if i: a(f"v_add_u32 v6, {64*i}, v6")
            a(f"v_mul_u32_u24 v7, 6554, v6")
            a(f"v_lshrrev_b32 v7, 16, v7")
            a(f"v_mad_i32_i24 v8, v7, -10, v6")
            a(f"v_lshrrev_b32 v9, 1, v7")
            a(f"v_xor_b32 v9, v9, v7")
            a(f"v_and_b32 v9, 4, v9")
            a(f"v_mul_u32_u24 v9, 3, v9")
            a(f"v_xor_b32 v7, v7, v9")
            a(f"v_mul_u32_u24 v7, 3840, v7")
            a(f"v_lshl_add_u32 v7, v8, 4, v7")
            a(f"v_add_u32 {v(dst)}, {s(S_T2)}, v7")
            if valid_check:
                a(f"v_cmp_gt_u32 vcc, 640, v6")
                a(f"v_mov_b32 v9, {hex(OOB)}")
                a(f"v_cndmask_b32 {v(dst)}, v9, {v(dst)}, vcc")
        a(f"s_mul_i32 {s(S_OW)}, {s(S_KC)}, {64*3840}")
        a(f"s_mul_i32 {s(S_OH)}, {s(S_KC)}, {64*3072}")
        a(f"s_mul_i32 {s(S_T3)}, {s(S_HG)}, 384")
        a(f"s_cmp_lg_u32 {s(S_TY)}, 0")
        a(f"s_cbranch_scc1 Lld_setq")
        for i in range(4): a(f"s_mov_b32 {s(R_MID+i)}, {s(R_W+i)}" if i < 3 else f"s_mov_b32 {s(R_MID+3)}, 0x20000")
        a(f"s_and_b32 {s(S_T1)}, {s(S_L)}, 1")
        a(f"s_mul_i32 {s(S_T1)}, {s(S_T1)}, 320")
        a(f"s_lshr_b32 {s(S_T2)}, {s(S_L)}, 1")
        a(f"s_mul_i32 {s(S_T2)}, {s(S_T2)}, 1280")
        a(f"s_mul_i32 {s(S_T0)}, {s(S_HG)}, 160")
        a(f"s_add_u32 {s(S_T2)}, {s(S_T2)}, {s(S_T0)}")
        a(f"s_add_u32 {s(S_T2)}, {s(S_T2)}, 1280")
        a(f"s_mul_i32 {s(S_T0)}, {s(S_L)}, 5120")
        for i in range(5):
            a(f"s_add_u32 {s(S_DEST+4+i)}, {s(S_T0)}, {16384 + 1024*i}")
            wrow(VO + 4 + i, i, False)
        a(f"v_lshrrev_b32 v6, 1, v4")
        a(f"v_xor_b32 v6, v6, v3")
        a(f"v_and_b32 v7, 1, v4")
        a(f"v_lshl_add_u32 v6, v6, 1, v7")
        a(f"v_and_b32 v7, 4, v2")
        a(f"v_add_u32 v7, v7, v2")
        a(f"v_mul_u32_u24 v7, 3072, v7")
        a(f"v_lshl_add_u32 v6, v6, 4, v7")
        a(f"s_mul_i32 {s(S_T0)}, {s(S_L)}, {16*3072}")
        a(f"s_add_u32 {s(S_T0)}, {s(S_T0)}, {s(S_T3)}")
        a(f"v_add_u32 {v(VO+9)}, {s(S_T0)}, v6")
        a(f"v_add_u32 {v(VO+10)}, {4*3072}, {v(VO+9)}")
        a(f"s_lshl_b32 {s(S_T0)}, {s(S_L)}, 11")
        a(f"s_add_u32 {s(S_DEST+9)}, {s(S_T0)}, 36864")
        a(f"s_add_u32 {s(S_DEST+10)}, {s(S_T0)}, {36864+1024}")
        a(f"s_mov_b32 {s(S_OM)}, {s(S_OW)}")
        a(f"s_add_u32 {s(S_U)}, {s(S_HG)}, 128")
        a(f"s_cmp_eq_u32 {s(S_RB)}, 0")
        a(f"s_cselect_b32 {s(S_U)}, {s(S_U)}, 255")
        a(f"s_branch Lld_setdone")
        a.label('Lld_setq')
        for i in range(4): a(f"s_mov_b32 {s(R_MID+i)}, {s(R_W1+i)}" if i < 3 else f"s_mov_b32 {s(R_MID+3)}, 0x20000")
        a(f"s_mul_i32 {s(S_T1)}, {s(S_L)}, 192")
        a(f"s_mul_i32 {s(S_T2)}, {s(S_HG)}, 160")
        a(f"s_mul_i32 {s(S_T0)}, {s(S_L)}, 3072")
        for i in range(3):
            a(f"s_add_u32 {s(S_DEST+4+i)}, {s(S_T0)}, {16384 + 1024*i}")
            if i:
                a(f"s_cmp_eq_u32 {s(S_L)}, 3")
                a(f"s_cselect_b32 {s(S_DEST+4+i)}, {43008 + 1024*(i-1)}, {s(S_DEST+4+i)}")
            wrow(VO + 4 + i, i, i > 0)
        a(f"v_and_b32 v8, 15, v1")
        a(f"v_lshrrev_b32 v6, 1, v8")
        a(f"v_xor_b32 v6, v6, v3")
        a(f"v_and_b32 v7, 1, v8")
        a(f"v_lshl_add_u32 v6, v6, 1, v7")
        a(f"v_mul_u32_u24 v7, 3072, v3")
        a(f"v_lshl_add_u32 v6, v6, 4, v7")
        a(f"v_xor_b32 v7, 128, v6")
        a(f"s_mul_i32 {s(S_T0)}, {s(S_L)}, {16*3072}")
        a(f"s_add_u32 {s(S_T0)}, {s(S_T0)}, {s(S_T3)}")
        a(f"s_add_u32 {s(S_T0)}, {s(S_T0)}, 128")
        a(f"v_add_u32 {v(VO+7)}, {s(S_T0)}, v6")
        a(f"v_add_u32 v7, {s(S_T0)}, v7")
        a(f"v_add_u32 {v(VO+8)}, {8*3072}, v7")
        a(f"v_add_u32 {v(VO+9)}, {4*3072}, {v(VO+7)}")
        a(f"v_add_u32 {v(VO+10)}, {12*3072}, v7")
        a(f"s_lshl_b32 {s(S_T0)}, {s(S_L)}, 12")
        for i in range(4): a(f"s_add_u32 {s(S_DEST+7+i)}, {s(S_T0)}, {26624 + 1024*i}")
        a(f"s_mov_b32 {s(S_OM)}, {s(S_OH)}")
        a(f"s_add_u32 {s(S_T3)}, {s(S_T3)}, 128")
        a(f"s_lshl_b32 {s(S_U)}, {s(S_HG)}, 4")
        a(f"s_add_u32 {s(S_U)}, {s(S_U)}, {s(S_RB)}")
        a.label('Lld_setdone')
        for n in range(4, 11): dma(0, n)
        def advance():
            a(f"s_add_u32 {s(S_KC)}, {s(S_KC)}, 1")
            a(f"s_cmp_eq_u32 {s(S_KC)}, 10")
            a(f"s_cselect_b32 {s(S_KC)}, 0, {s(S_KC)}")
            a(f"s_lshl_b32 {s(S_OA)}, {s(S_KC)}, 7")
            a(f"s_mul_i32 {s(S_OW)}, {s(S_KC)}, {64*3840}")
            a(f"s_mul_i32 {s(S_OH)}, {s(S_KC)}, {64*3072}")
            a(f"s_cmp_lg_u32 {s(S_TY)}, 0")
            a(f"s_cselect_b32 {s(S_OM)}, {s(S_OH)}, {s(S_OW)}")
        n1 = cfg.n1
        V_P2 = 22
        V_FL = 23
        V_PK = 30
        def p2_setup():
            a(f"s_mul_i32 {s(S_T0)}, {s(S_N)}, {68*5120}")
            a(f"s_and_b32 {s(S_T1)}, {s(S_L)}, 1")
            a(f"s_mul_i32 {s(S_T1)}, {s(S_T1)}, 5120")
            a(f"s_add_u32 {s(S_T0)}, {s(S_T0)}, {s(S_T1)}")
            a(f"s_add_u32 {s(S_T0)}, {s(S_T0)}, {WS_P2}")
            a(f"v_lshl_add_u32 {v(V_P2)}, v1, 4, {s(S_T0)}")
            a(f"s_mul_i32 {s(S_DEST)}, {s(S_L)}, 5120")
            a(f"s_lshr_b32 {s(S_T1)}, {s(S_L)}, 1")
            a(f"s_mul_i32 {s(S_OM)}, {s(S_T1)}, {24*5120}")
            a(f"s_mul_i32 {s(S_OH)}, {s(S_T1)}, {10*5120}")
            a(f"s_add_u32 {s(S_OH)}, {s(S_OH)}, {48*5120}")
            self.rot2(S_KC)
        def p2_chunk(i):
            if i < 12:
                a(f"s_mul_i32 {s(S_OA)}, {s(S_KC)}, 10240")
                a(f"s_add_u32 {s(S_OA)}, {s(S_OA)}, {s(S_OM)}")
                a(f"s_add_u32 {s(S_KC)}, {s(S_KC)}, 1")
                a(f"s_cmp_eq_u32 {s(S_KC)}, 12")
                a(f"s_cselect_b32 {s(S_KC)}, 0, {s(S_KC)}")
            else:
                a(f"s_add_u32 {s(S_OA)}, {s(S_OH)}, {(i-12)*10240}")
            a(f"s_add_u32 m0, {s(S_DEST)}, {RING[i % 6]}")
            for j in range(4):
                a(f"buffer_load_dwordx4 {v(V_P2)}, {s(R_WS,4)}, {s(S_OA)} offen offset:{1024*j} sc1 lds")
            a(f"s_add_u32 m0, {s(S_DEST)}, {RING[i % 6] + 4096}")
            a(f"s_add_u32 {s(S_OA)}, {s(S_OA)}, 4096")
            a(f"buffer_load_dwordx4 {v(V_P2)}, {s(R_WS,4)}, {s(S_OA)} offen sc1 lds")
        for k in range(10):
            extra = 0
            if k + 1 < 10:
                advance()
                for n in range(n1): dma(k + 1, n)
                wait = n1
            else:
                wait = 10
            if k == 0:
                pass
            a(f"s_waitcnt vmcnt({wait})")
            if k == 3:
                L = self.only_l0()
                a(f"v_readfirstlane_b32 {s(S_NONCE)}, v40")
                Lp = self.lab('np'); Lq = self.lab('nq')
                a(f"s_mov_b32 {s(S_CNT)}, 0")
                a.label(Lp)
                a(f"s_cmp_lg_u32 {s(S_NONCE)}, 0")
                a(f"s_cbranch_scc1 {Lq}")
                a(f"s_add_u32 {s(S_CNT)}, {s(S_CNT)}, 1")
                a(f"s_cmp_gt_u32 {s(S_CNT)}, 0x40000")
                a(f"s_cbranch_scc1 {Lq}")
                a(f"global_load_dword v40, v42, {s(P_DBG,2)} sc1")
                a("s_waitcnt vmcnt(0)")
                a(f"v_readfirstlane_b32 {s(S_NONCE)}, v40")
                a("s_nop 1")
                a(f"s_branch {Lp}")
                a.label(Lq)
                a(f"v_mov_b32 v41, {s(S_NONCE)}")
                a.label(L)
            if k == 8:
                L = self.only_l0()
                self.poll_check(44, V_FL + 4, 34, 2)
                a.label(L)
            a("s_barrier")
            self.stamp(2 + k)
            if k + 1 < 10:
                for n in range(n1, 11): dma(k + 1, n)
            if k == 0:
                srd(a, R_BI, P_B1, 3072)
                a(f"v_lshl_add_u32 v6, v1, 2, {s(S_T3)}")
                a(f"s_mov_b32 m0, {B1L}")
                L = self.lab('b1')
                a(f"s_cmp_lg_u32 {s(S_L)}, 1")
                a(f"s_cbranch_scc1 {L}")
                a(f"buffer_load_dword v6, {s(R_BI,4)}, 0 offen lds")
                a.label(L)
                a("v_mov_b32 v42, 0")
                a("v_mov_b32 v40, 0")
                L = self.lab('nc')
                a(f"s_or_b32 {s(S_T0)}, {s(S_L)}, s2")
                a(f"s_cbranch_scc1 {L}")
                a(f"s_load_dword {s(S_T0)}, {s(P_WS,2)}, 0")
                a("s_waitcnt lgkmcnt(0)")
                a(f"s_mul_i32 {s(S_T0)}, {s(S_T0)}, 0x9E3779B1")
                a(f"s_add_u32 {s(S_T0)}, {s(S_T0)}, 0x7F4A7C15")
                a(f"s_cmp_eq_u32 {s(S_T0)}, 0")
                a(f"s_cselect_b32 {s(S_T0)}, 1, {s(S_T0)}")
                a(f"v_mov_b32 v43, {s(S_T0)}")
                a(f"global_store_dword v42, v43, {s(P_DBG,2)} sc1")
                a(f"global_store_dword v42, v43, {s(P_WS,2)} sc1")
                a.label(L)
                a(f"v_mov_b32 v6, {hex(OOB)}")
                a(f"v_cmp_eq_u32 vcc, 0, v1")
                a(f"s_lshl_b32 {s(S_T0)}, {s(S_RB)}, 7")
                a(f"s_lshl_b32 {s(S_T1)}, {s(S_HG)}, 3")
                a(f"s_lshl_b32 {s(S_T2)}, {s(S_TY)}, 2")
                a(f"s_add_u32 {s(S_T1)}, {s(S_T1)}, {s(S_T2)}")
                a(f"s_add_u32 {s(S_T1)}, {s(S_T1)}, {s(S_T0)}")
                a(f"s_add_u32 {s(S_T1)}, {s(S_T1)}, {WS_FH}")
                a(f"v_mov_b32 v7, {s(S_T1)}")
                a(f"v_cndmask_b32 {v(V_FL)}, v6, v7, vcc")
                a(f"s_lshl_b32 {s(S_T1)}, {s(S_HG)}, 2")
                a(f"s_add_u32 {s(S_T0)}, {s(S_T0)}, {s(S_T1)}")
                a(f"s_add_u32 {s(S_T0)}, {s(S_T0)}, {WS_FO}")
                a(f"s_lshl_b32 {s(S_T1)}, {s(S_HG)}, 7")
                a(f"s_lshl_b32 {s(S_T2)}, {s(S_RB)}, 2")
                a(f"s_add_u32 {s(S_T2)}, {s(S_T2)}, {s(S_T1)}")
                a(f"s_add_u32 {s(S_T2)}, {s(S_T2)}, {WS_FK}")
                a(f"s_cmp_lg_u32 {s(S_TY)}, 0")
                a(f"s_cselect_b32 {s(S_T0)}, {s(S_T0)}, {s(S_T2)}")
                a(f"v_mov_b32 v7, {s(S_T0)}")
                a(f"v_cndmask_b32 {v(V_FL+1)}, v6, v7, vcc")
                a(f"s_and_b32 {s(S_T0)}, {s(S_U)}, 1")
                a(f"s_lshl_b32 {s(S_T0)}, {s(S_T0)}, 9")
                a(f"s_lshr_b32 {s(S_T2)}, {s(S_U)}, 1")
                a(f"s_lshl_b32 {s(S_T2)}, {s(S_T2)}, 2")
                a(f"s_add_u32 {s(S_T0)}, {s(S_T0)}, {s(S_T2)}")
                a(f"s_add_u32 {s(S_T0)}, {s(S_T0)}, {WS_FP}")
                a(f"v_mov_b32 v7, {s(S_T0)}")
                a(f"v_cndmask_b32 {v(V_FL+2)}, v6, v7, vcc")
                a(f"s_add_u32 {s(S_T1)}, {s(S_T1)}, {WS_FK}")
                a(f"v_lshl_add_u32 {v(V_FL+3)}, v1, 2, {s(S_T1)}")
                a(f"s_lshr_b32 {s(S_T1)}, {s(S_N)}, 2")
                a(f"s_lshl_b32 {s(S_T1)}, {s(S_T1)}, 9")
                a(f"s_add_u32 {s(S_T1)}, {s(S_T1)}, {WS_FP}")
                a(f"v_lshl_add_u32 {v(V_FL+4)}, v1, 3, {s(S_T1)}")
                a(f"s_lshr_b32 {s(S_T1)}, {s(S_TT)}, 1")
                a(f"s_lshl_b32 {s(S_T1)}, {s(S_T1)}, 7")
                a(f"s_add_u32 {s(S_T1)}, {s(S_T1)}, {WS_FH}")
                a(f"v_lshl_add_u32 {v(V_FL+5)}, v1, 2, {s(S_T1)}")
                a(f"v_add_u32 {v(V_FL+6)}, {WS_FO - WS_FH}, {v(V_FL+5)}")
            if k == 1:
                L = self.lab('pk1')
                a(f"s_cmp_gt_u32 {s(S_U)}, 135")
                a(f"s_cbranch_scc1 {L}")
                a(f"s_lshr_b32 {s(S_T0)}, {s(S_U)}, 1")
                a(f"s_cmp_lt_u32 {s(S_T0)}, 48")
                a(f"s_cselect_b32 {s(R_PK)}, {s(P_W2)}, {s(P_WO)}")
                a(f"s_cselect_b32 {s(R_PK+1)}, {s(P_W2+1)}, {s(P_WO+1)}")
                a(f"s_cselect_b32 {s(R_PK+2)}, {hex(1536*1280)}, {s(R_X+2)}")
                a(f"s_and_b32 {s(R_PK+1)}, {s(R_PK+1)}, 0xffff")
                a(f"s_mov_b32 {s(R_PK+3)}, 0x20000")
                a(f"s_cmp_lt_u32 {s(S_T0)}, 48")
                a(f"s_cselect_b32 {s(R_PK+2)}, {s(R_PK+2)}, {hex(640*1280)}")
                Lm = self.lab('pkm'); Ld = self.lab('pkd')
                a(f"s_cbranch_scc1 {Lm}")
                a(f"s_sub_u32 {s(S_T0)}, {s(S_T0)}, 48")
                a(f"s_mul_i32 {s(S_T1)}, {s(S_T0)}, 52")
                a(f"s_lshr_b32 {s(S_T1)}, {s(S_T1)}, 8")
                a(f"s_mul_i32 {s(S_T2)}, {s(S_T1)}, 5")
                a(f"s_sub_u32 {s(S_T0)}, {s(S_T0)}, {s(S_T2)}")
                a(f"s_mul_i32 {s(S_T1)}, {s(S_T1)}, 160")
                a(f"s_lshl_b32 {s(S_T2)}, {s(S_T0)}, 5")
                a(f"s_cmp_ge_u32 {s(S_T0)}, 2")
                a(f"s_cselect_b32 {s(S_CNT)}, 16, 0")
                a(f"s_add_u32 {s(S_T2)}, {s(S_T2)}, {s(S_CNT)}")
                a(f"s_cmp_eq_u32 {s(S_T0)}, 4")
                a(f"s_cselect_b32 {s(S_T2)}, 64, {s(S_T2)}")
                a(f"s_cselect_b32 {s(S_CNT)}, 64, 0")
                a(f"s_add_u32 {s(S_T1)}, {s(S_T1)}, {s(S_T2)}")
                a(f"s_branch {Ld}")
                a.label(Lm)
                a(f"s_lshl_b32 {s(S_T1)}, {s(S_T0)}, 5")
                a(f"s_mov_b32 {s(S_CNT)}, 0")
                a.label(Ld)
                a(f"s_cmp_ge_u32 {s(S_L)}, 2")
                a(f"s_cselect_b32 {s(S_CNT)}, {s(S_CNT)}, 0")
                a(f"s_add_u32 {s(S_T1)}, {s(S_T1)}, {s(S_CNT)}")
                a(f"s_lshl_b32 {s(S_T2)}, {s(S_L)}, 3")
                a(f"s_add_u32 {s(S_T1)}, {s(S_T1)}, {s(S_T2)}")
                a(f"s_mul_i32 {s(S_T1)}, {s(S_T1)}, 1280")
                a(f"s_and_b32 {s(S_T2)}, {s(S_U)}, 1")
                a(f"s_mul_i32 {s(S_T2)}, {s(S_T2)}, 640")
                a(f"s_add_u32 {s(S_T1)}, {s(S_T1)}, {s(S_T2)}")
                a(f"s_mul_i32 {s(S_T2)}, {s(S_L)}, 5120")
                for i in range(5):
                    a(f"v_add_u32 v6, {64*i}, v1")
                    a(f"v_mul_u32_u24 v7, 1639, v6")
                    a(f"v_lshrrev_b32 v7, 16, v7")
                    a(f"v_mul_u32_u24 v7, 640, v7")
                    a(f"v_lshl_add_u32 v6, v6, 4, v7")
                    a(f"s_add_u32 m0, {s(S_T2)}, {SCR + 1024*i}")
                    a(f"buffer_load_dwordx4 v6, {s(R_PK,4)}, {s(S_T1)} offen lds")
                a.label(L)
            if k == 2:
                L = self.only_l0()
                a(f"global_load_dword v40, v42, {s(P_DBG,2)} sc1")
                a.label(L)
            if k == 3:
                L = self.lab('pk2')
                a(f"s_cmp_gt_u32 {s(S_U)}, 135")
                a(f"s_cbranch_scc1 {L}")
                a(f"v_lshrrev_b32 v6, 2, v1")
                a(f"v_mul_u32_u24 v6, 640, v6")
                a(f"v_and_b32 v7, 3, v1")
                a(f"v_lshl_add_u32 v6, v7, 3, v6")
                a(f"s_mul_i32 {s(S_T0)}, {s(S_L)}, 160")
                a(f"s_add_u32 {s(S_T0)}, {s(S_T0)}, {SCR}")
                a(f"v_add_u32 v6, {s(S_T0)}, v6")
                for c in range(5):
                    a(f"ds_read_b64_tr_b16 {v(44+4*c,2)}, v6 offset:{32*c}")
                    a(f"ds_read_b64_tr_b16 {v(46+4*c,2)}, v6 offset:{32*c + 16*640}")
                a(f"s_and_b32 {s(S_T0)}, {s(S_U)}, 1")
                a(f"s_lshl_b32 {s(S_T0)}, {s(S_T0)}, 2")
                a(f"s_add_u32 {s(S_T0)}, {s(S_T0)}, {s(S_L)}")
                a(f"s_mul_i32 {s(S_T0)}, {s(S_T0)}, 68")
                a(f"s_lshr_b32 {s(S_T1)}, {s(S_U)}, 1")
                a(f"s_add_u32 {s(S_T0)}, {s(S_T0)}, {s(S_T1)}")
                a(f"s_mul_i32 {s(S_T0)}, {s(S_T0)}, 5120")
                a(f"s_add_u32 {s(S_T0)}, {s(S_T0)}, {WS_P2}")
                a(f"v_lshlrev_b32 v7, 4, v1")
                a(f"v_add_u32 v8, 4096, v7")
                a("s_waitcnt lgkmcnt(0)")
                for c in range(4):
                    a(f"buffer_store_dwordx4 {v(44+4*c,4)}, v7, {s(R_WS,4)}, {s(S_T0)} offen offset:{1024*c} sc1")
                a(f"buffer_store_dwordx4 {v(60,4)}, v8, {s(R_WS,4)}, {s(S_T0)} offen sc1")
                a.label(L)
            if k == 4:
                L = self.lab('pk3')
                a(f"s_cmp_gt_u32 {s(S_U)}, 135")
                a(f"s_cbranch_scc1 {L}")
                L2 = self.only_l0()
                self.flag_store(V_FL + 2)
                a.label(L2)
                a.label(L)
            if k == 7:
                L = self.only_l0()
                self.poll_issue(44, V_FL + 4, 2)
                a.label(L)
            if k == 8:
                p2_setup()
                p2_chunk(0); p2_chunk(1)
            if k == 9:
                p2_chunk(2); p2_chunk(3)
        a("s_barrier")
        self.stamp(12)
        p2_chunk(4); p2_chunk(5)
        a("s_barrier")
        self.stamp(13)
        a(f"s_cmp_lg_u32 {s(S_TY)}, 0")
        a(f"s_cbranch_scc1 Lld_eq")
        nb1 = a.nbar
        a("s_barrier")
        self.stamp(14)
        a("s_barrier")
        L = self.only_l0(); self.flag_store(V_FL + 1); a.label(L)
        self.stamp(15)
        a("s_barrier")
        L = self.only_l0(); self.flag_store(V_FL); a.label(L)
        self.stamp(16)
        a("s_branch Lld_p2")
        self.nb_ld_kv = a.nbar - nb0
        nb2 = a.nbar
        a.label('Lld_eq')
        a("s_barrier")
        L = self.only_l0()
        self.flag_store(V_FL)
        self.stamp(14)
        self.poll_issue(44, V_FL + 3); a("s_waitcnt vmcnt(0)")
        self.poll_check(44, V_FL + 3, 16)
        a.label(L)
        a("s_barrier")
        self.stamp(15)
        a("s_barrier")
        self.stamp(16)
        a("s_barrier")
        self.stamp(17)
        a("s_barrier")
        L = self.only_l0(); self.flag_store(V_FL + 1); a.label(L)
        self.stamp(18)
        self.nb_ld_q = (nb1 - nb0) + (a.nbar - nb2)
        a.label('Lld_p2')
        nb3 = a.nbar
        L = self.only_l0()
        self.poll_issue(44, V_FL + 5); a("s_waitcnt vmcnt(0)")
        self.poll_check(44, V_FL + 5, 16)
        a.label(L)
        a("s_barrier")
        self.stamp(19)
        srd(a, R_BI, P_B2, 1280)
        a(f"s_mul_i32 {s(S_T0)}, {s(S_TT)}, {64*1280}")
        a(f"s_mul_i32 {s(S_T1)}, {s(S_N)}, 160")
        a(f"s_add_u32 {s(S_T0)}, {s(S_T0)}, {s(S_T1)}")
        a(f"s_mul_i32 {s(S_T2)}, {s(S_L)}, 192")
        a(f"s_mul_i32 {s(S_T3)}, {s(S_L)}, 3072")
        for i in range(3):
            a(f"v_add_u32 v6, {s(S_T2)}, v1")
            if i: a(f"v_add_u32 v6, {64*i}, v6")
            a(f"v_mul_u32_u24 v7, 6554, v6")
            a(f"v_lshrrev_b32 v7, 16, v7")
            a(f"v_mul_u32_u24 v7, {1280-160}, v7")
            a(f"v_lshl_add_u32 v7, v6, 4, v7")
            if i:
                L = self.lab('xt')
                a(f"s_cmp_eq_u32 {s(S_L)}, 3")
                a(f"s_cbranch_scc1 {L}")
            a(f"s_add_u32 m0, {s(S_T3)}, {XT + 1024*i}")
            a(f"buffer_load_dwordx4 v7, {s(R_X,4)}, {s(S_T0)} offen lds")
            if i: a.label(L)
        L = self.lab('b2')
        a(f"s_cmp_lg_u32 {s(S_L)}, 3")
        a(f"s_cbranch_scc1 {L}")
        a(f"v_lshlrev_b32 v6, 2, v1")
        a(f"s_mov_b32 m0, {B2L}")
        a(f"buffer_load_dword v6, {s(R_BI,4)}, {s(S_T1)} offen lds")
        a.label(L)
        for i in range(17):
            issued = min(16, max(5, i + 4))
            a(f"s_waitcnt vmcnt({5 * (issued - i)})")
            if i == cfg.ko:
                L = self.only_l0()
                self.poll_check(44, V_FL + 6, 8)
                a.label(L)
            a("s_barrier")
            self.stamp(20 + i)
            if i >= 1 and i + 5 <= 16: p2_chunk(i + 5)
            if i == cfg.ko - 1:
                L = self.only_l0()
                self.poll_issue(44, V_FL + 6); a("s_waitcnt vmcnt(0)")
                a.label(L)
        a("s_barrier")
        self.stamp(37)
        a("s_barrier")
        self.stamp(38)
        self.nb_ld_p2 = a.nbar - nb3
        self.final_store(True)

    def rot2(self, dst):
        a = self.a; ra, rb_, rc = self.cfg.rot2
        a(f"s_lshr_b32 {s(S_T1)}, {s(S_IDX)}, 3")
        a(f"s_mul_i32 {s(dst)}, {s(S_T1)}, {ra}")
        a(f"s_and_b32 {s(S_T1)}, {s(S_IDX)}, 7")
        a(f"s_mul_i32 {s(S_T1)}, {s(S_T1)}, {rb_}")
        a(f"s_lshr_b32 {s(S_T1)}, {s(S_T1)}, 1")
        a(f"s_add_u32 {s(dst)}, {s(dst)}, {s(S_T1)}")
        a(f"s_mul_i32 {s(S_T1)}, {s(dst)}, 5462")
        a(f"s_lshr_b32 {s(S_T1)}, {s(S_T1)}, 16")
        a(f"s_mul_i32 {s(S_T1)}, {s(S_T1)}, 12")
        a(f"s_sub_u32 {s(dst)}, {s(dst)}, {s(S_T1)}")

    def final_store(self, is_loader):
        a = self.a
        if is_loader:
            a(f"s_cmp_ge_u32 {s(S_WID)}, 10")
            a(f"s_cbranch_scc1 Lfin")
            a.label('Lfinal_store')
            srd(a, R_OUT, P_OUT, 2048 * 1280)
            a(f"v_lshlrev_b32 v2, 4, v0")
            a(f"v_add_u32 v3, {XT}, v2")
            a(f"ds_read_b128 v[4:7], v3")
            a(f"v_mul_u32_u24 v8, 6554, v0")
            a(f"v_lshrrev_b32 v8, 16, v8")
            a(f"v_mul_u32_u24 v8, {1280-160}, v8")
            a(f"v_add_u32 v8, v8, v2")
            a(f"s_mul_i32 {s(S_T0)}, {s(S_TT)}, {64*1280}")
            a(f"s_mul_i32 {s(S_T1)}, {s(S_N)}, 160")
            a(f"s_add_u32 {s(S_T0)}, {s(S_T0)}, {s(S_T1)}")
            a("s_waitcnt lgkmcnt(0)")
            a(f"buffer_store_dwordx4 v[4:7], v8, {s(R_OUT,4)}, {s(S_T0)} offen")
            a.label('Lfin')
            if self.cfg.diag:
                L = self.lab('dg')
                a(f"s_cmp_lg_u32 {s(S_WID)}, 8")
                a(f"s_cbranch_scc1 {L}")
                a("s_waitcnt vmcnt(0)")
                self.stamp(39)
                a(f"s_memrealtime {s(S_TS,2)}")
                a("s_waitcnt lgkmcnt(0)")
                a(f"v_writelane_b32 v70, {s(S_TS)}, 63")
                a(f"s_lshl_b32 {s(S_T0)}, s2, 8")
                a(f"s_add_u32 {s(S_T0)}, {s(S_T0)}, {WS_TS}")
                a(f"v_lshlrev_b32 v2, 2, v1")
                a(f"buffer_store_dword v70, v2, {s(R_WS,4)}, {s(S_T0)} offen")
                a.label(L)
            a.label('Lend')
            a("s_endpgm")
        else:
            a("s_branch Lfinal_store")

    ACC = 12; RS = 68; SQ = 72; CSA = 76; CSB = 80; ONES = 84
    XA = 88; XB = 96; YA = 124; YB = 132
    VA = 2
    VK = 6; VX = 7
    def acc(self, t, i): return self.ACC + (2 * t + i) * 4
    def tiles(self, ty):
        if ty == 0:
            return [(6, 0, 160, 'N'), (6, 32, 160, 'N'), (7, 0, 160, 'N'), (6, 10256, 160, 'N'), (6, 10288, 160, 'N'),
                    (8, 0, 128, 'T'), (9, 0, 128, 'T')]
        return [(6, 0, 160, 'T'), (6, 32, 160, 'T'), (6, 64, 160, 'T'), (7, 0, 256, 'T'), (8, 0, 256, 'T'), (9, 0, 256, 'T'), (10, 0, 256, 'T')]

    def compute_setup(self):
        a = self.a
        self.nb_c0 = a.nbar
        T = 88
        a(f"s_and_b32 {s(S_R)}, {s(S_WID)}, 3")
        a(f"s_lshr_b32 {s(S_C)}, {s(S_WID)}, 2")
        a(f"v_and_b32 {v(T)}, 15, v1")
        a(f"v_lshrrev_b32 {v(T+1)}, 4, v1")
        a(f"v_lshrrev_b32 {v(T+2)}, 1, {v(T)}")
        a(f"v_xor_b32 {v(T+2)}, {v(T+2)}, {v(T+1)}")
        a(f"v_lshlrev_b32 {v(T+2)}, 4, {v(T+2)}")
        a(f"v_lshl_add_u32 {v(T+2)}, {v(T)}, 7, {v(T+2)}")
        a(f"s_lshl_b32 {s(S_T0)}, {s(S_R)}, 12")
        a(f"s_lshl_b32 {s(S_T1)}, {s(S_C)}, 11")
        a(f"s_add_u32 {s(S_T0)}, {s(S_T0)}, {s(S_T1)}")
        a(f"v_add_u32 v2, {s(S_T0)}, {v(T+2)}")
        a(f"v_xor_b32 v3, 64, v2")
        a(f"v_xor_b32 v4, 2048, v2")
        a(f"v_xor_b32 v5, 64, v4")
        a(f"v_bfe_u32 {v(T+3)}, v1, 2, 3")
        a(f"v_lshrrev_b32 {v(T+4)}, 5, v1")
        a(f"v_lshl_add_u32 {v(T+4)}, {v(T+4)}, 4, {v(T+3)}")
        a(f"v_and_b32 {v(T+5)}, 3, v1")
        a(f"v_lshlrev_b32 {v(T+6)}, 3, {v(T+5)}")
        a(f"v_mul_u32_u24 v6, 160, {v(T+4)}")
        a(f"s_mul_i32 {s(S_T0)}, {s(S_C)}, 80")
        a(f"s_add_u32 {s(S_T0)}, {s(S_T0)}, 16384")
        a(f"v_add3_u32 v6, v6, {v(T+6)}, {s(S_T0)}")
        for i in range(self.ACC, self.ONES): a(f"v_mov_b32 {v(i)}, 0")
        for i in range(4): a(f"v_mov_b32 {v(self.ONES+i)}, 0x3f803f80")
        a(f"s_mov_b32 {s(S_IT)}, 0")
        a("s_waitcnt lgkmcnt(0)")
        srd(a, R_WS, P_WS, WS_SIZE)
        a(f"s_cmp_lg_u32 {s(S_TY)}, 0")
        a(f"s_cbranch_scc1 Lc_q")
        a(f"v_cmp_gt_u32 vcc, 2, {v(T+5)}")
        a(f"v_mov_b32 {v(T+7)}, 10224")
        a(f"v_cndmask_b32 {v(T+7)}, {v(T+7)}, 64, vcc")
        a(f"v_add_u32 v7, v6, {v(T+7)}")
        a(f"v_lshrrev_b32 {v(T+7)}, 1, {v(T+3)}")
        a(f"v_lshl_add_u32 {v(T+8)}, {v(T+4)}, 7, {v(T+6)}")
        a(f"v_add_u32 {v(T+8)}, 36864, {v(T+8)}")
        a(f"s_lshl_b32 {s(S_T0)}, {s(S_C)}, 1")
        a(f"v_xor_b32 {v(T+7)}, {s(S_T0)}, {v(T+7)}")
        a(f"v_lshl_add_u32 v8, {v(T+7)}, 5, {v(T+8)}")
        a(f"v_xor_b32 {v(T+7)}, 1, {v(T+7)}")
        a(f"v_lshl_add_u32 v9, {v(T+7)}, 5, {v(T+8)}")
        self.loop_dispatch(0)
        a.label('Lc_q')
        a(f"v_lshl_add_u32 {v(T+8)}, {v(T+4)}, 8, {v(T+6)}")
        a(f"v_add_u32 {v(T+8)}, 26624, {v(T+8)}")
        a(f"s_lshl_b32 {s(S_T0)}, {s(S_C)}, 2")
        a(f"v_xor_b32 {v(T+7)}, {s(S_T0)}, {v(T+3)}")
        for i in range(4):
            a(f"v_xor_b32 {v(T+9)}, {i}, {v(T+7)}")
            a(f"v_lshl_add_u32 {v(7+i)}, {v(T+9)}, 5, {v(T+8)}")
        self.loop_dispatch(1)

    def loop_dispatch(self, ty):
        a = self.a
        for r in range(1, 4):
            a(f"s_cmp_eq_u32 {s(S_R)}, {r}")
            a(f"s_cbranch_scc1 Lp1_{ty}_{r}")
        a(f"s_branch Lp1_{ty}_0")

    def p1_reads(self, ty, st, A, B):
        out = [f"ds_read_b128 {v(A,4)}, {v(self.VA+st)}", f"ds_read_b128 {v(A+4,4)}, {v(self.VA+2+st)}"]
        for t, (ad, ex, pitch, o) in enumerate(self.tiles(ty)):
            for u in range(2):
                out.append(f"ds_read_b64_tr_b16 {v(B+4*t+2*u,2)}, {v(ad)} offset:{(32*st+8*u)*pitch+ex}")
        return out
    def p1_mfmas(self, ty, r, A, B):
        M = "v_mfma_f32_16x16x32_bf16"
        out = []
        for t, (ad, ex, pitch, o) in enumerate(self.tiles(ty)):
            for i in range(2):
                d = v(self.acc(t, i), 4); x = v(A + 4*i, 4); w = v(B + 4*t, 4)
                out.append(f"{M} {d}, {x}, {w}, {d}" if o == 'N' else f"{M} {d}, {w}, {x}, {d}")
        on = v(self.ONES, 4); x0 = v(A, 4)
        ex = [f"{M} {v(self.RS,4)}, {on}, {x0}, {v(self.RS,4)}", f"{M} {v(self.SQ,4)}, {x0}, {x0}, {v(self.SQ,4)}",
              f"{M} {v(self.CSA,4)}, {on}, {v(B+4*r,4)}, {v(self.CSA,4)}"]
        if r < 3: ex.append(f"{M} {v(self.CSB,4)}, {on}, {v(B+4*(r+4),4)}, {v(self.CSB,4)}")
        return out + ex

    def p1_loop(self, ty, r):
        a = self.a
        nad = 8 if ty == 0 else 9
        nb = a.nbar
        a.label(f"Lp1_{ty}_{r}")
        a("s_barrier")
        for x in self.p1_reads(ty, 0, self.XA, self.XB): a(x)
        a(f"s_branch Lp1m_{ty}_{r}")
        a.label(f"Lp1h_{ty}_{r}")
        a("s_barrier")
        interleave(a, self.p1_mfmas(ty, r, self.YA, self.YB), self.p1_reads(ty, 0, self.XA, self.XB), 0.7, 2)
        a.label(f"Lp1m_{ty}_{r}")
        a("s_waitcnt lgkmcnt(0)")
        upd = [f"v_add_u32 {v(self.VA+i)}, {s(S_DELTA)}, {v(self.VA+i)}" for i in range(nad)]
        rd = self.p1_reads(ty, 1, self.YA, self.YB)
        a(f"s_add_u32 {s(S_IT)}, {s(S_IT)}, 1")
        a(f"s_mul_i32 {s(S_T0)}, {s(S_IT)}, 11")
        a(f"s_lshr_b32 {s(S_T0)}, {s(S_T0)}, 5")
        a(f"s_mul_i32 {s(S_T0)}, {s(S_T0)}, 3")
        a(f"s_cmp_eq_u32 {s(S_T0)}, {s(S_IT)}")
        a(f"s_mov_b32 {s(S_DELTA)}, {SLOT}")
        a(f"s_cselect_b32 {s(S_DELTA)}, {hex(-2*SLOT & 0xffffffff)}, {s(S_DELTA)}")
        interleave(a, self.p1_mfmas(ty, r, self.XA, self.XB), rd + upd, 0.85, 2)
        a(f"s_cmp_lt_u32 {s(S_IT)}, 10")
        a("s_waitcnt lgkmcnt(0)")
        a(f"s_cbranch_scc1 Lp1h_{ty}_{r}")
        a("s_barrier")
        for x in self.p1_mfmas(ty, r, self.YA, self.YB): a(x)
        a(f"s_branch Lep_{ty}")
        self.nb_loop = 11
        a.nbar = nb

    def stats(self, ty):
        a = self.a
        T = 88
        RS, SQ = self.RS, self.SQ
        a(f"v_and_b32 {v(T)}, 15, v1")
        a(f"v_lshrrev_b32 {v(T+1)}, 4, v1")
        a(f"v_and_b32 {v(T+2)}, 3, v1")
        a(f"s_lshl_b32 {s(S_T0)}, {s(S_R)}, 7")
        a(f"s_lshl_b32 {s(S_T1)}, {s(S_C)}, 6")
        a(f"s_add_u32 {s(S_T0)}, {s(S_T0)}, {s(S_T1)}")
        a(f"s_add_u32 {s(S_T0)}, {s(S_T0)}, {ST}")
        a(f"v_lshl_add_u32 {v(T+3)}, {v(T)}, 2, {s(S_T0)}")
        a(f"s_mul_i32 {s(S_T1)}, {s(S_C)}, 448")
        a(f"s_lshl_b32 {s(S_T2)}, {s(S_R)}, 6")
        a(f"s_add_u32 {s(S_T2)}, {s(S_T2)}, {s(S_T1)}")
        a(f"s_add_u32 {s(S_T2)}, {s(S_T2)}, {ST_CS}")
        a(f"v_lshl_add_u32 {v(T+4)}, {v(T)}, 2, {s(S_T2)}")
        a(f"ds_write_b32 {v(T+4)}, {v(self.CSA)}")
        L = self.lab('cs')
        a(f"s_cmp_eq_u32 {s(S_R)}, 3")
        a(f"s_cbranch_scc1 {L}")
        a(f"ds_write_b32 {v(T+4)}, {v(self.CSB)} offset:256")
        a.label(L)
        a(f"v_cmp_eq_u32 vcc, 1, {v(T+2)}")
        a(f"v_cndmask_b32 {v(T+5)}, {v(SQ)}, {v(SQ+1)}, vcc")
        a(f"v_cmp_eq_u32 vcc, 2, {v(T+2)}")
        a(f"v_cndmask_b32 {v(T+5)}, {v(T+5)}, {v(SQ+2)}, vcc")
        a(f"v_cmp_eq_u32 vcc, 3, {v(T+2)}")
        a(f"v_cndmask_b32 {v(T+5)}, {v(T+5)}, {v(SQ+3)}, vcc")
        a(f"v_mul_f32 {v(T+6)}, {lit(1/640)}, {v(RS)}")
        a(f"v_mul_f32 {v(T+7)}, {v(T+6)}, {v(T+6)}")
        a(f"v_mov_b32 {v(T+8)}, {lit(1/640)}")
        a(f"v_fma_f32 {v(T+5)}, {v(T+5)}, {v(T+8)}, -{v(T+7)}")
        a(f"v_max_f32 {v(T+5)}, 0, {v(T+5)}")
        a(f"v_add_f32 {v(T+7)}, {lit(1e-5)}, {v(T+5)}")
        a(f"v_rsq_f32 {v(T+8)}, {v(T+7)}")
        a(f"v_mul_f32 {v(T+9)}, {v(T+8)}, {v(T+8)}")
        a(f"v_fmaak_f32 {v(T+9)}, {v(T+9)}, {v(T+5)}, {lit(1e-5)}")
        a(f"v_rsq_f32 {v(T+9)}, {v(T+9)}")
        a(f"v_mul_f32 {v(T+10)}, {v(T+8)}, {v(T+9)}")
        a(f"v_mul_f32_e64 {v(T+11)}, -{v(T+6)}, {v(T+8)}")
        a(f"v_mul_f32_e64 {v(T+12)}, -{v(T+6)}, {v(T+10)}")
        m = sum(1 << l for l in range(64) if ((l & 15) >> 2) == (l >> 4))
        a(f"s_mov_b32 exec_lo, {hex(m & 0xffffffff)}")
        a(f"s_mov_b32 exec_hi, {hex(m >> 32)}")
        a(f"ds_write_b32 {v(T+3)}, {v(T+8)}")
        a(f"ds_write_b32 {v(T+3)}, {v(T+11)} offset:512")
        a(f"ds_write_b32 {v(T+3)}, {v(T+10)} offset:1024")
        a(f"ds_write_b32 {v(T+3)}, {v(T+12)} offset:1536")
        a("s_mov_b64 exec, -1")
        a("s_waitcnt lgkmcnt(0)")
        a("s_barrier")

    def gelu_tiles(self, tl, tau0_s, TMP):
        a = self.a
        c1 = -2 * math.sqrt(2 / math.pi) * LOG2E; c2 = c1 * 0.044715
        AB = 92
        CB = 96
        a(f"v_xor_b32 v100, 64, v91")
        a(f"ds_read_b32 {v(AB)}, v91 offset:1024")
        a(f"ds_read_b32 {v(AB+1)}, v91 offset:1536")
        a(f"ds_read_b32 {v(AB+2)}, v100 offset:1024")
        a(f"ds_read_b32 {v(AB+3)}, v100 offset:1536")
        a(f"s_mul_i32 {s(S_T0)}, {s(S_C)}, 448")
        a(f"s_add_u32 {s(S_T0)}, {s(S_T0)}, {ST_CS}")
        a(f"v_lshl_add_u32 v101, v89, 4, {s(S_T0)}")
        a(f"s_mul_i32 {s(S_T0)}, {s(S_C)}, {32*len(tl)}")
        a(f"s_add_u32 {s(S_T0)}, {s(S_T0)}, {B1L}")
        a(f"v_lshl_add_u32 v102, v89, 3, {s(S_T0)}")
        CS = 104; BR = 120
        for j, t in enumerate(tl):
            a(f"ds_read_b128 {v(CS+4*j,4)}, v101 offset:{64*t}")
            a(f"ds_read_b64 {v(BR+2*j,2)}, v102 offset:{32*j}")
        a(f"s_mov_b32 {s(S_T1)}, {lit(c2)}")
        a(f"s_mov_b32 {s(S_T2)}, 0xffff0000")
        a(f"v_mov_b32 v103, {lit(c1)}")
        a("s_waitcnt lgkmcnt(0)")
        W = 128
        for j, t in enumerate(tl):
            B = W
            a(f"v_lshlrev_b32 {v(B)}, 16, {v(BR+2*j)}")
            a(f"v_and_b32 {v(B+1)}, {s(S_T2)}, {v(BR+2*j)}")
            a(f"v_lshlrev_b32 {v(B+2)}, 16, {v(BR+2*j+1)}")
            a(f"v_and_b32 {v(B+3)}, {s(S_T2)}, {v(BR+2*j+1)}")
            for i in range(2):
                ac = self.acc(t, i); X = W + 4; U = W + 8
                for r in range(4): a(f"v_fma_f32 {v(X+r)}, {v(AB+2*i+1)}, {v(CS+4*j+r)}, {v(B+r)}")
                for r in range(4): a(f"v_fma_f32 {v(ac+r)}, {v(AB+2*i)}, {v(ac+r)}, {v(X+r)}")
                for r in range(4): a(f"v_mul_f32 {v(X+r)}, {v(ac+r)}, {v(ac+r)}")
                for r in range(4): a(f"v_fma_f32 {v(X+r)}, {v(X+r)}, {s(S_T1)}, v103")
                for r in range(4): a(f"v_mul_f32 {v(X+r)}, {v(X+r)}, {v(ac+r)}")
                for r in range(4): a(f"v_exp_f32 {v(X+r)}, {v(X+r)}")
                for r in range(4): a(f"v_add_f32 {v(X+r)}, 1.0, {v(X+r)}")
                for r in range(4): a(f"v_rcp_f32 {v(X+r)}, {v(X+r)}")
                for r in range(4): a(f"v_mul_f32 {v(X+r)}, {v(X+r)}, {v(ac+r)}")
                d = TMP + (j >> 1) * 8 + i * 4 + (j & 1) * 2
                a(f"v_cvt_pk_bf16_f32 {v(d)}, {v(X)}, {v(X+1)}")
                a(f"v_cvt_pk_bf16_f32 {v(d+1)}, {v(X+2)}, {v(X+3)}")

    def h_stores(self, npair, ks0_imm, ks_c_mul, TMP):
        a = self.a
        a(f"s_lshl_b32 {s(S_T0)}, {s(S_RB)}, 3")
        a(f"s_lshl_b32 {s(S_T1)}, {s(S_R)}, 1")
        a(f"s_add_u32 {s(S_T0)}, {s(S_T0)}, {s(S_T1)}")
        a(f"s_add_u32 {s(S_T0)}, {s(S_T0)}, {s(S_C)}")
        a(f"s_xor_b32 {s(S_T1)}, {s(S_T0)}, 1")
        a(f"s_mul_i32 {s(S_T2)}, {s(S_HG)}, 6")
        a(f"s_mul_i32 {s(S_T3)}, {s(S_C)}, {ks_c_mul}")
        a(f"s_add_u32 {s(S_T2)}, {s(S_T2)}, {s(S_T3)}")
        a(f"s_add_u32 {s(S_T2)}, {s(S_T2)}, {ks0_imm + WS_H2 // 1024}")
        for k in (S_T0, S_T1):
            a(f"s_mul_i32 {s(k)}, {s(k)}, 48")
            a(f"s_add_u32 {s(k)}, {s(k)}, {s(S_T2)}")
            a(f"s_lshl_b32 {s(k)}, {s(k)}, 10")
        a(f"v_lshlrev_b32 v100, 4, v1")
        for p in range(npair):
            for i in range(2):
                a(f"buffer_store_dwordx4 {v(TMP+p*8+i*4,4)}, v100, {s(R_WS,4)}, {s(S_T0+i)} offen offset:{1024*p} sc1")

    def phi4(self, ac, X):
        a = self.a
        for r in range(4): a(f"v_mul_f32 {v(X+r)}, {lit(LOG2E)}, {v(ac+r)}")
        for r in range(4): a(f"v_exp_f32 {v(X+r)}, {v(X+r)} clamp")
        for r in range(4): a(f"v_max_f32 {v(X+4+r)}, 0, {v(ac+r)}")
        for r in range(4): a(f"v_add_f32 {v(X+r)}, {v(X+r)}, {v(X+4+r)}")
        for r in range(4): a(f"v_add_f32 {v(X+r)}, {lit(1e-6)}, {v(X+r)}")

    def epi_kv(self):
        a = self.a
        a.label('Lep_0')
        nb = a.nbar
        self.stats(0)
        a(f"s_lshl_b32 {s(S_T0)}, {s(S_R)}, 7")
        a(f"s_lshl_b32 {s(S_T1)}, {s(S_C)}, 6")
        a(f"s_add_u32 {s(S_T0)}, {s(S_T0)}, {s(S_T1)}")
        a(f"s_add_u32 {s(S_T0)}, {s(S_T0)}, {ST}")
        a(f"v_lshl_add_u32 v92, v89, 4, {s(S_T0)}")
        a(f"v_xor_b32 v93, 64, v92")
        AB = 96
        a(f"ds_read_b128 {v(AB,4)}, v92")
        a(f"ds_read_b128 {v(AB+4,4)}, v92 offset:512")
        a(f"ds_read_b128 {v(AB+8,4)}, v93")
        a(f"ds_read_b128 {v(AB+12,4)}, v93 offset:512")
        a(f"s_mul_i32 {s(S_T0)}, {s(S_C)}, 448")
        a(f"s_add_u32 {s(S_T0)}, {s(S_T0)}, {ST_CS}")
        a(f"v_lshl_add_u32 v94, v88, 2, {s(S_T0)}")
        CS = 112
        for t in range(5): a(f"ds_read_b32 {v(CS+t)}, v94 offset:{64*t}")
        a("s_waitcnt lgkmcnt(0)")
        FR = 120
        X = 144
        for t in range(5):
            for i in range(2):
                ac = self.acc(t, i)
                for r in range(4): a(f"v_mul_f32 {v(X+r)}, {v(AB+8*i+4+r)}, {v(CS+t)}")
                for r in range(4): a(f"v_fma_f32 {v(ac+r)}, {v(AB+8*i+r)}, {v(ac+r)}, {v(X+r)}")
                if t < 3:
                    self.phi4(ac, X)
                    a(f"v_cvt_pk_bf16_f32 {v(FR+4*t+2*i)}, {v(X)}, {v(X+1)}")
                    a(f"v_cvt_pk_bf16_f32 {v(FR+4*t+2*i+1)}, {v(X+2)}, {v(X+3)}")
                if t >= 2:
                    a(f"v_cvt_pk_bf16_f32 {v(FR+4*(t+1)+2*i)}, {v(ac)}, {v(ac+1)}")
                    a(f"v_cvt_pk_bf16_f32 {v(FR+4*(t+1)+2*i+1)}, {v(ac+2)}, {v(ac+3)}")
        a(f"v_cmp_gt_u32 vcc, 8, v88")
        for r in range(4): a(f"v_cndmask_b32 {v(FR+12+r)}, {v(FR+12+r)}, {v(self.ONES)}, vcc")
        pairs = [(0, 0), (0, 1), (1, 0), (1, 1), (1, 2), (2, 0), (2, 1), (2, 2)]
        KVD = 12
        a(f"s_mul_i32 {s(S_T0)}, {s(S_R)}, 6720")
        a(f"s_mul_i32 {s(S_T1)}, {s(S_C)}, 3360")
        a(f"s_add_u32 {s(S_T0)}, {s(S_T0)}, {s(S_T1)}")
        a(f"s_add_u32 {s(S_T0)}, {s(S_T0)}, {SCR}")
        a(f"v_mul_u32_u24 v92, 336, v89")
        a(f"v_add_u32 v92, {s(S_T0)}, v92")
        for j, (td, te) in enumerate(pairs):
            a(f"v_mfma_f32_16x16x32_bf16 {v(KVD+4*j,4)}, {v(FR+4*td,4)}, {v(FR+12+4*te,4)}, 0")
        a(f"v_lshl_add_u32 v93, v88, 4, v92")
        a(f"v_add_u32 v96, {-128 & 0xffffffff}, v93")
        a(f"v_add_u32 v97, {(4*336 - 128 - 320) & 0xffffffff}, v93")
        a(f"v_add_u32 v98, {4*336 - 128}, v93")
        a(f"v_cmp_eq_u32 vcc, 0, v89")
        a(f"v_cndmask_b32 v97, v97, v98, vcc")
        a(f"v_add_u32 v98, {8*336 - 128 - 320}, v93")
        a(f"v_cmp_eq_u32 vcc, 0, v88")
        for td in range(3):
            a(f"v_add_u32 v95, {4*td*336 + 320}, v92")
            a(f"v_cndmask_b32 {v(99+td)}, {v(96+td)}, v95, vcc")
        def valid(td, te, l):
            col = l & 15; g = l >> 4; dqg = 4 * td + g
            if dqg > 9: return False
            hh = dqg // 5
            if te == 0:
                if col == 0: return True
                if col < 8: return False
            eg = col - 8 + 16 * te
            return eg // 20 == hh
        tot = 0
        for j, (td, te) in enumerate(pairs):
            m = sum(1 << l for l in range(64) if valid(td, te, l)); tot += bin(m).count('1')
            a(f"s_mov_b32 exec_lo, {hex(m & 0xffffffff)}")
            a(f"s_mov_b32 exec_hi, {hex(m >> 32)}")
            a(f"ds_write_b128 {v(99+td if te == 0 else 96+td)}, {v(KVD+4*j,4)} offset:{256*te}")
        assert tot == 210
        a("s_mov_b64 exec, -1")
        a(f"v_lshlrev_b32 v92, 4, v0")
        a(f"v_add_u32 v93, {SCR}, v92")
        a("s_waitcnt lgkmcnt(0)")
        a("s_barrier")
        for r in range(4): a(f"ds_read_b128 {v(12+4*r,4)}, v93 offset:{6720*r}")
        a(f"v_mov_b32 v94, {hex(OOB)}")
        a(f"v_cmp_gt_u32 vcc, 420, v0")
        a(f"v_cndmask_b32 v92, v94, v92, vcc")
        a(f"s_lshl_b32 {s(S_T0)}, {s(S_HG)}, 4")
        a(f"s_add_u32 {s(S_T0)}, {s(S_T0)}, {s(S_RB)}")
        a(f"s_mul_i32 {s(S_T0)}, {s(S_T0)}, {KP_STRIDE}")
        a(f"s_add_u32 {s(S_T0)}, {s(S_T0)}, {WS_KP}")
        a("s_waitcnt lgkmcnt(0)")
        for k in range(4):
            a(f"v_add_f32 {v(12+k)}, {v(12+k)}, {v(16+k)}")
            a(f"v_add_f32 {v(20+k)}, {v(20+k)}, {v(24+k)}")
        for k in range(4): a(f"v_add_f32 {v(12+k)}, {v(12+k)}, {v(20+k)}")
        a(f"buffer_store_dwordx4 v[12:15], v92, {s(R_WS,4)}, {s(S_T0)} offen sc1")
        self.gelu_tiles([5, 6], None, 144)
        a("s_waitcnt vmcnt(0)")
        a("s_barrier")
        self.h_stores(1, 0, 1, 144)
        a("s_waitcnt vmcnt(0)")
        a("s_barrier")
        self.nb_c_kv = self.nb_loop + a.nbar - nb
        a.nbar = nb
        a("s_branch Lp2")

    def epi_q(self):
        a = self.a
        a.label('Lep_1')
        nb = a.nbar
        self.stats(1)
        a(f"v_lshlrev_b32 v92, 4, v0")
        a(f"v_add_u32 v92, {KVT}, v92")
        for k in range(4): a(f"v_mov_b32 {v(96+k)}, 0")
        a(f"ds_write_b128 v92, v[96:99]")
        self.gelu_tiles([3, 4, 5, 6], None, 144)
        self.h_stores(2, 2, 2, 144)
        a(f"v_xor_b32 v100, 64, v91")
        a(f"ds_read_b32 v92, v91")
        a(f"ds_read_b32 v93, v91 offset:512")
        a(f"ds_read_b32 v94, v100")
        a(f"ds_read_b32 v95, v100 offset:512")
        for t in range(3): a(f"ds_read_b128 {v(104+4*t,4)}, v101 offset:{64*t}")
        a("s_waitcnt lgkmcnt(0)")
        PQ = 116
        X = 128
        for t in range(3):
            for i in range(2):
                ac = self.acc(t, i)
                for r in range(4): a(f"v_mul_f32 {v(X+r)}, {v(93+2*i)}, {v(104+4*t+r)}")
                for r in range(4): a(f"v_fma_f32 {v(ac+r)}, {v(92+2*i)}, {v(ac+r)}, {v(X+r)}")
                self.phi4(ac, X)
                d = PQ + 4*i + 2*t if t < 2 else PQ + 8 + 2*i
                a(f"v_cvt_pk_bf16_f32 {v(d)}, {v(X)}, {v(X+1)}")
                a(f"v_cvt_pk_bf16_f32 {v(d+1)}, {v(X+2)}, {v(X+3)}")
        a(f"v_cmp_le_u32 vcc, 210, v0")
        a(f"v_cndmask_b32 v92, 0, 1, vcc")
        a(f"v_mov_b32 v94, -210")
        a(f"v_mad_i32_i24 v93, v92, v94, v0")
        a(f"v_mul_u32_u24 v94, 3121, v93")
        a(f"v_lshrrev_b32 v94, 16, v94")
        a(f"v_mov_b32 v96, -21")
        a(f"v_mad_i32_i24 v95, v94, v96, v93")
        a(f"v_cmp_le_u32 vcc, 5, v94")
        a(f"v_cndmask_b32 v96, 0, 1, vcc")
        a(f"v_lshlrev_b32 v97, 1, v96")
        a(f"v_subrev_u32 v98, 16, v95")
        a(f"v_lshlrev_b32 v98, 2, v98")
        a(f"v_mad_u32_u24 v98, v96, 3, v98")
        a(f"v_add_u32 v99, 1, v96")
        a(f"v_cmp_eq_u32 {s(S_MASK,2)}, 20, v95")
        a(f"v_cndmask_b32 v98, v98, v99, {s(S_MASK,2)}")
        a(f"v_cmp_gt_u32 vcc, 16, v95")
        a(f"v_cndmask_b32 v98, v98, v95, vcc")
        a(f"v_cndmask_b32 v97, 1, v97, vcc")
        a(f"v_and_b32 v99, 3, v94")
        a(f"v_lshl_add_u32 v98, v99, 4, v98")
        a(f"v_lshlrev_b32 v99, 10, v97")
        a(f"v_lshl_add_u32 v99, v98, 4, v99")
        a(f"v_and_b32 v102, 4, v94")
        a(f"v_lshl_add_u32 v99, v102, 1, v99")
        a(f"v_lshrrev_b32 v102, 1, v97")
        a(f"v_lshlrev_b32 v102, 9, v102")
        a(f"v_lshl_add_u32 v102, v98, 3, v102")
        a(f"v_add_u32 v102, 3072, v102")
        a(f"v_cmp_le_u32 vcc, 8, v94")
        a(f"v_cndmask_b32 v99, v99, v102, vcc")
        a(f"v_cndmask_b32 v103, 64, 32, vcc")
        a(f"v_lshl_add_u32 v99, v92, 12, v99")
        a(f"v_add_u32 v99, {KVT}, v99")
        a(f"v_lshlrev_b32 v92, 4, v0")
        a(f"v_mov_b32 v94, {hex(OOB)}")
        a(f"v_cmp_gt_u32 vcc, 420, v0")
        a(f"v_cndmask_b32 v92, v94, v92, vcc")
        a(f"s_and_b64 {s(S_MASK,2)}, {s(S_MASK,2)}, vcc")
        a(f"s_mov_b64 {s(S_DEST,2)}, vcc")
        a(f"s_mul_i32 {s(S_T0)}, {s(S_HG)}, {16*KP_STRIDE}")
        a(f"s_add_u32 {s(S_T0)}, {s(S_T0)}, {WS_KP}")
        a("s_waitcnt vmcnt(0) lgkmcnt(0)")
        a("s_barrier")
        a("s_barrier")
        for k in range(16):
            a(f"buffer_load_dwordx4 {v(12+4*k,4)}, v92, {s(R_WS,4)}, {s(S_T0)} offen sc1")
            if k < 15: a(f"s_add_u32 {s(S_T0)}, {s(S_T0)}, {KP_STRIDE}")
        for k in range(1, 16):
            a(f"s_waitcnt vmcnt({15-k})")
            for r in range(4): a(f"v_add_f32 {v(12+r)}, {v(12+r)}, {v(12+4*k+r)}")
        a(f"v_cvt_pk_bf16_f32 v12, v12, v13")
        a(f"v_cvt_pk_bf16_f32 v13, v14, v15")
        Lz = self.lab('kz')
        a(f"s_mov_b64 exec, {s(S_DEST,2)}")
        a(f"s_cbranch_execz {Lz}")
        a(f"ds_write_b64 v99, v[12:13]")
        a(f"s_mov_b64 exec, {s(S_MASK,2)}")
        a(f"s_cbranch_execz {Lz}")
        for k in range(3):
            a(f"v_add_u32 v99, v99, v103")
            a(f"ds_write_b64 v99, v[12:13]")
        a.label(Lz)
        a("s_mov_b64 exec, -1")
        a(f"s_lshl_b32 {s(S_T0)}, {s(S_C)}, 12")
        a(f"s_add_u32 {s(S_T0)}, {s(S_T0)}, {KVT}")
        a(f"v_lshl_add_u32 v92, v1, 4, {s(S_T0)}")
        a(f"v_lshl_add_u32 v93, v1, 3, {s(S_T0)}")
        a("s_waitcnt lgkmcnt(0)")
        a("s_barrier")
        F = 12
        for k in range(3): a(f"ds_read_b128 {v(F+4*k,4)}, v92 offset:{1024*k}")
        a(f"ds_read_b64 {v(F+12,2)}, v93 offset:3072")
        a(f"ds_read_b64 {v(F+14,2)}, v93 offset:3584")
        a(f"s_lshl_b32 {s(S_T0)}, {s(S_R)}, 5")
        a(f"s_lshl_b32 {s(S_T1)}, {s(S_C)}, 4")
        a(f"s_add_u32 {s(S_T0)}, {s(S_T0)}, {s(S_T1)}")
        a(f"v_add_u32 v94, {s(S_T0)}, v88")
        a(f"v_xor_b32 v95, 16, v94")
        a(f"s_mul_i32 {s(S_T1)}, {s(S_C)}, 80")
        a(f"s_add_u32 {s(S_T1)}, {s(S_T1)}, {OEX}")
        for i in range(2):
            a(f"v_mul_u32_u24 {v(94+i)}, 160, {v(94+i)}")
            a(f"v_add_u32 {v(94+i)}, {s(S_T1)}, {v(94+i)}")
            a(f"v_lshl_add_u32 {v(96+i)}, v89, 1, {v(94+i)}")
            a(f"v_lshl_add_u32 {v(94+i)}, v89, 3, {v(94+i)}")
        a("s_waitcnt lgkmcnt(0)")
        U = 32
        for i in range(2):
            for k in range(3):
                a(f"v_mfma_f32_16x16x32_bf16 {v(U+12*i+4*k,4)}, {v(F+4*k,4)}, {v(PQ+4*i,4)}, 0")
        for i in range(2):
            for k in (1, 2):
                a(f"v_mfma_f32_16x16x16_bf16 {v(U+12*i+4*k,4)}, {v(F+12+2*(k-1),2)}, {v(PQ+8+2*i,2)}, {v(U+12*i+4*k,4)}")
        for i in range(2):
            u = U + 12 * i
            a(f"v_add_f32 {v(u+5)}, {lit(1e-6)}, {v(u+5)}")
            a(f"v_add_f32 {v(u+6)}, {lit(1e-6)}, {v(u+6)}")
            a(f"v_rcp_f32 {v(u+5)}, {v(u+5)}")
            a(f"v_rcp_f32 {v(u+6)}, {v(u+6)}")
            for r in range(4): a(f"v_mul_f32 {v(u+r)}, {v(u+r)}, {v(u+5)}")
            for r in range(4): a(f"v_mul_f32 {v(u+8+r)}, {v(u+8+r)}, {v(u+6)}")
            a(f"v_mul_f32 {v(u+4)}, {v(u+4)}, {v(u+5)}")
            a(f"v_mul_f32 {v(u+7)}, {v(u+7)}, {v(u+6)}")
            a(f"v_cvt_pk_bf16_f32 {v(u)}, {v(u)}, {v(u+1)}")
            a(f"v_cvt_pk_bf16_f32 {v(u+1)}, {v(u+2)}, {v(u+3)}")
            a(f"v_cvt_pk_bf16_f32 {v(u+8)}, {v(u+8)}, {v(u+9)}")
            a(f"v_cvt_pk_bf16_f32 {v(u+9)}, {v(u+10)}, {v(u+11)}")
            a(f"v_cvt_pk_bf16_f32 {v(u+4)}, {v(u+4)}, {v(u+7)}")
            a(f"ds_write_b64 {v(94+i)}, {v(u,2)}")
            a(f"ds_write_b64 {v(94+i)}, {v(u+8,2)} offset:40")
            a(f"ds_write_b16 {v(96+i)}, {v(u+4)} offset:32")
            a(f"ds_write_b16_d16_hi {v(96+i)}, {v(u+4)} offset:72")
        a(f"s_lshl_b32 {s(S_T0)}, {s(S_WID)}, 4")
        a(f"v_add_u32 v92, {s(S_T0)}, v88")
        a(f"v_mul_u32_u24 v92, 160, v92")
        a(f"v_lshl_add_u32 v92, v89, 3, v92")
        a(f"v_add_u32 v92, {OEX}, v92")
        a(f"s_lshl_b32 {s(S_T0)}, {s(S_RB)}, 3")
        a(f"s_add_u32 {s(S_T0)}, {s(S_T0)}, {s(S_WID)}")
        a(f"s_lshl_b32 {s(S_T0)}, {s(S_T0)}, 3")
        a(f"s_add_u32 {s(S_T0)}, {s(S_T0)}, {s(S_HG)}")
        a(f"s_mul_i32 {s(S_T0)}, {s(S_T0)}, 2560")
        a(f"s_add_u32 {s(S_T0)}, {s(S_T0)}, {WS_O2}")
        a(f"v_lshlrev_b32 v93, 4, v1")
        a(f"v_lshlrev_b32 v94, 3, v1")
        a("s_waitcnt lgkmcnt(0)")
        a("s_barrier")
        for k in range(5): a(f"ds_read_b64 {v(12+2*k,2)}, v92 offset:{32*k}")
        a("s_waitcnt lgkmcnt(0)")
        a(f"buffer_store_dwordx4 v[12:15], v93, {s(R_WS,4)}, {s(S_T0)} offen sc1")
        a(f"buffer_store_dwordx4 v[16:19], v93, {s(R_WS,4)}, {s(S_T0)} offen offset:1024 sc1")
        a(f"buffer_store_dwordx2 v[20:21], v94, {s(R_WS,4)}, {s(S_T0)} offen offset:2048 sc1")
        a("s_waitcnt vmcnt(0)")
        a("s_barrier")
        self.nb_c_q = self.nb_loop + a.nbar - nb
        a.nbar = nb

    def phase2(self):
        a = self.a
        a.label('Lp2')
        a(f"s_cmp_lg_u32 {s(S_C)}, 0")
        a(f"s_cbranch_scc1 Lp2_1")
        for kap in range(2): self.phase2k(kap)

    def phase2k(self, kap):
        a = self.a; cfg = self.cfg
        nb = a.nbar
        a.label(f"Lp2_{kap}")
        AM = 12; AS = 32; XB = 52; YB = 72; AR = 92; OR = 124
        VL16 = 2; VL8 = 3; VB = 4
        M = "v_mfma_f32_16x16x32_bf16"
        a(f"v_lshlrev_b32 {v(VL16)}, 4, v1")
        a(f"v_lshlrev_b32 {v(VL8)}, 3, v1")
        a(f"v_add_u32 v4, {kap*10240}, {v(VL16)}")
        a(f"v_add_u32 v5, {SLOT + kap*10240}, {v(VL16)}")
        a(f"v_add_u32 v6, {2*SLOT + kap*10240}, {v(VL16)}")
        for i in range(12, 52): a(f"v_mov_b32 {v(i)}, 0")
        a(f"s_lshl_b32 {s(S_T0)}, {s(S_TT)}, 2")
        a(f"s_add_u32 {s(S_T0)}, {s(S_T0)}, {s(S_R)}")
        a(f"s_mul_i32 {s(S_OH)}, {s(S_T0)}, {48*1024}")
        a(f"s_add_u32 {s(S_OH)}, {s(S_OH)}, {WS_H2 + kap*24*1024}")
        a(f"s_mul_i32 {s(S_OM)}, {s(S_T0)}, {8*2560}")
        a(f"s_add_u32 {s(S_OM)}, {s(S_OM)}, {WS_O2 + kap*4*2560}")
        self.rot2(S_KC)
        q = []
        def hload(j):
            if j % 2 == 0:
                a(f"s_lshl_b32 {s(S_OA)}, {s(S_KC)}, 11")
                a(f"s_add_u32 {s(S_OA)}, {s(S_OA)}, {s(S_OH)}")
                a(f"s_add_u32 {s(S_KC)}, {s(S_KC)}, 1")
                a(f"s_cmp_eq_u32 {s(S_KC)}, 12")
                a(f"s_cselect_b32 {s(S_KC)}, 0, {s(S_KC)}")
            a(f"buffer_load_dwordx4 {v(AR+4*(j%8),4)}, {v(VL16)}, {s(R_WS,4)}, {s(S_OA)} offen offset:{1024*(j%2)} sc1")
            q.append(('A', j))
        def oloads():
            for P in range(2):
                for hh in range(2):
                    a(f"s_add_u32 {s(S_T0+hh)}, {s(S_OM)}, {(2*P+hh)*2560}")
                for i5 in range(4):
                    a(f"buffer_load_dwordx4 {v(OR+4*(5*P+i5),4)}, {v(VL16)}, {s(R_WS,4)}, {s(S_T0+(i5>>1))} offen offset:{1024*(i5&1)} sc1")
                    q.append(('A', 24 + 5*P + i5))
                for hh in range(2):
                    a(f"buffer_load_dwordx2 {v(OR+4*(5*P+4)+2*hh,2)}, {v(VL8)}, {s(R_WS,4)}, {s(S_T0+hh)} offen offset:2048 sc1")
                    q.append(('A', 24 + 5*P + 4))
        def waitA(j):
            idx = [k for k, t in enumerate(q) if t == ('A', j)]
            if not idx: return
            n = len(q) - 1 - idx[-1]
            a(f"s_waitcnt vmcnt({n})")
            del q[:idx[-1] + 1]
        def areg(j): return AR + 4 * (j % 8) if j < 24 else OR + 4 * (j - 24)
        def reads(j, B):
            i = j // 2; base = RING[i % 6]; vb = VB + base // SLOT; off = base % SLOT + (j & 1) * 5120
            return [f"ds_read_b128 {v(B+4*c,4)}, {v(vb)} offset:{off + 1024*c}" for c in range(5)]
        def mfmas(j, B):
            ac = AM if j < 24 else AS
            return [f"{M} {v(ac+4*c,4)}, {v(B+4*c,4)}, {v(areg(j),4)}, {v(ac+4*c,4)}" for c in range(5)]
        own = [0, 1, 2] if kap == 0 else [3, 4]
        give = [c for c in range(5) if c not in own]
        a("s_barrier")
        for j in range(8): hload(j)
        a(f"s_mul_i32 {s(S_T0)}, {s(S_R)}, 5120")
        a(f"s_add_u32 {s(S_T0)}, {s(S_T0)}, {EXB}")
        a(f"v_add_u32 v7, {s(S_T0)}, {v(VL16)}")
        a(f"v_and_b32 v8, 15, v1")
        a(f"v_lshrrev_b32 v9, 4, v1")
        a(f"s_lshl_b32 {s(S_T0)}, {s(S_R)}, 4")
        a(f"v_add_u32 v8, {s(S_T0)}, v8")
        a(f"v_mul_u32_u24 v8, 160, v8")
        a(f"v_lshl_add_u32 v8, v9, 3, v8")
        a(f"v_add_u32 v8, {XT}, v8")
        a(f"v_lshlrev_b32 v9, 3, v9")
        a(f"v_add_u32 v9, {B2L}, v9")
        G = AR
        for i in range(17):
            j0 = 2 * i
            a("s_barrier")
            if i == cfg.ko: oloads()
            rd = reads(j0, XB)
            if i > 0:
                waitA(j0 - 1)
                interleave(a, mfmas(j0 - 1, YB), rd, 0.6, 2)
                if j0 - 1 + 8 < 24: hload(j0 - 1 + 8)
            else:
                for x in rd: a(x)
            if i == 12:
                for c in give: a(f"ds_write_b128 v7, {v(AM+4*c,4)} offset:{1024*c}")
            if i == 13:
                for k, c in enumerate(own):
                    a(f"ds_read_b128 {v(G+4*k,4)}, v7 offset:{1024*c}")
                    a(f"ds_read_b64 {v(G+12+2*k,2)}, v9 offset:{32*c}")
            waitA(j0)
            a("s_waitcnt lgkmcnt(0)")
            interleave(a, mfmas(j0, XB), reads(j0 + 1, YB), 0.6, 2)
            if j0 + 8 < 24: hload(j0 + 8)
            if i == 13:
                a(f"s_mov_b32 {s(S_T2)}, 0xffff0000")
                for k, c in enumerate(own):
                    g = G + 4 * k; b = G + 12 + 2 * k; X = G + 20
                    a(f"v_lshlrev_b32 {v(X)}, 16, {v(b)}")
                    a(f"v_and_b32 {v(X+1)}, {s(S_T2)}, {v(b)}")
                    a(f"v_lshlrev_b32 {v(X+2)}, 16, {v(b+1)}")
                    a(f"v_and_b32 {v(X+3)}, {s(S_T2)}, {v(b+1)}")
                    for r in range(4): a(f"v_add_f32 {v(g+r)}, {v(g+r)}, {v(AM+4*c+r)}")
                    for r in range(4): a(f"v_add_f32 {v(g+r)}, {v(g+r)}, {v(X+r)}")
                    for r in range(4): a(f"v_mul_f32 {v(X+r)}, {lit(-LOG2E)}, {v(g+r)}")
                    for r in range(4): a(f"v_exp_f32 {v(X+r)}, {v(X+r)}")
                    for r in range(4): a(f"v_add_f32 {v(X+r)}, 1.0, {v(X+r)}")
                    for r in range(4): a(f"v_rcp_f32 {v(X+r)}, {v(X+r)}")
                    for r in range(4): a(f"v_mul_f32 {v(g+r)}, {v(g+r)}, {v(X+r)}")
            if i == 14:
                for k, c in enumerate(own): a(f"ds_read_b64 {v(G+12+2*k,2)}, v8 offset:{32*c}")
            a("s_waitcnt lgkmcnt(0)")
        waitA(33)
        for x in mfmas(33, YB): a(x)
        for c in give: a(f"ds_write_b128 v7, {v(AS+4*c,4)} offset:{1024*c}")
        X = AM
        for k, c in enumerate(own):
            b = G + 12 + 2 * k
            a(f"v_lshlrev_b32 {v(X+4*k)}, 16, {v(b)}")
            a(f"v_and_b32 {v(X+4*k+1)}, {s(S_T2)}, {v(b)}")
            a(f"v_lshlrev_b32 {v(X+4*k+2)}, 16, {v(b+1)}")
            a(f"v_and_b32 {v(X+4*k+3)}, {s(S_T2)}, {v(b+1)}")
        a("s_waitcnt lgkmcnt(0)")
        a("s_barrier")
        for k, c in enumerate(own): a(f"ds_read_b128 {v(XB+4*k,4)}, v7 offset:{1024*c}")
        a("s_waitcnt lgkmcnt(0)")
        for k, c in enumerate(own):
            for r in range(4): a(f"v_add_f32 {v(XB+4*k+r)}, {v(XB+4*k+r)}, {v(AS+4*c+r)}")
            for r in range(4): a(f"v_fma_f32 {v(X+4*k+r)}, {v(XB+4*k+r)}, {v(G+4*k+r)}, {v(X+4*k+r)}")
            a(f"v_cvt_pk_bf16_f32 {v(X+4*k)}, {v(X+4*k)}, {v(X+4*k+1)}")
            a(f"v_cvt_pk_bf16_f32 {v(X+4*k+1)}, {v(X+4*k+2)}, {v(X+4*k+3)}")
            a(f"ds_write_b64 v8, {v(X+4*k,2)} offset:{32*c}")
        a("s_waitcnt lgkmcnt(0)")
        a("s_barrier")
        self.nb_c_p2 = a.nbar - nb
        a.nbar = nb
        self.final_store(False)

    def build(self):
        a = self.a
        self.entry()
        self.compute_setup()
        for ty in range(2):
            for r in range(4): self.p1_loop(ty, r)
        self.epi_kv()
        self.epi_q()
        self.phase2()
        self.loader()
        assert self.nb_ld_kv == self.nb_c_kv, (self.nb_ld_kv, self.nb_c_kv)
        assert self.nb_ld_q == self.nb_c_q, (self.nb_ld_q, self.nb_c_q)
        assert self.nb_ld_p2 == self.nb_c_p2, (self.nb_ld_p2, self.nb_c_p2)
        body = a.finish()
        head = open('recurrent_scan__linear_attn_block__mixer_channel_mlp__prompt.s.ref').read().split('; Override launch')[0]
        txt = head + f"; @launch grid=(256,1,1) block=(768,1,1) lds={LDS_TOTAL}\n"
        txt += f'.amdgcn_target "amdgcn-amd-amdhsa--gfx950"\n.text\n.globl {NAME}\n.p2align 8\n.type {NAME},@function\n{NAME}:\n'
        txt += body
        txt += f""".section .rodata,"a"
.p2align 6
.amdhsa_kernel {NAME}
  .amdhsa_next_free_vgpr 168
  .amdhsa_next_free_sgpr 102
  .amdhsa_accum_offset 168
  .amdhsa_group_segment_fixed_size 0
  .amdhsa_kernarg_size 88
  .amdhsa_user_sgpr_count 2
  .amdhsa_user_sgpr_kernarg_segment_ptr 1
  .amdhsa_system_sgpr_workgroup_id_x 1
.end_amdhsa_kernel
"""
        return txt

def make(**kw):
    cfg = Cfg()
    for k, x in kw.items(): setattr(cfg, k, x)
    return Gen(cfg).build()

if __name__ == '__main__':
    out = sys.argv[1] if len(sys.argv) > 1 else 'recurrent_scan__linear_attn_block__mixer_channel_mlp__prompt.s'
    kw = {}
    for x in sys.argv[2:]:
        k, val = x.split('='); kw[k] = eval(val)
    open(out, 'w').write(make(**kw))
```

```python
import sys, math, struct
from asmlib import *

NAME = 'recurrent_scan__linear_attn_block__mixer_channel_mlp__prompt_kernel'

class Cfg:
    n1 = 6
    diag = False
    ko = 10
    rot2 = (3, 0)
    prio = 0

SLOT = 45056
SCR = 3 * SLOT
LDS_TOTAL = 163840
ST = SLOT + 40960
ST_CS = ST + 2048
B1L = SCR + 28160
KVT = SCR
OEX = SCR + 8192
XT = SCR
B2L = SCR + 10240
RING = [SLOT, SLOT + 20480, 2 * SLOT, 2 * SLOT + 20480, 0, 20480]
EXB = RING[5]
WS_FH = 4096; WS_FK = 6144; WS_FO = 7168; WS_FP = 9216; WS_FS = 10240
WS_TS = 0x10000
WS_RP = 0x20000; WS_CP = 0x48000
WS_KP = 0x80000; KP_STRIDE = 6784
WS_P2 = 0x200000; WS_O2 = 0x500000; WS_H2 = 0x800000
WS_TS2 = 0xE00000
WS_SIZE = 0xF00000
OOB = 0x40000000
P_X, P_W, P_WO, P_W1, P_B1, P_W2, P_B2, P_OUT, P_DBG, P_WS = 4, 6, 8, 12, 14, 16, 18, 20, 22, 24
S_S0, S_COL = 26, 27
R_X, R_W, R_W1, R_MID, R_WS, R_PK, R_OUT, R_BI = 28, 32, 36, 40, 44, 48, 52, 56
S_WID, S_RB, S_HG, S_TY, S_TT, S_N, S_XCD, S_IDX, S_R, S_C = 60, 61, 62, 63, 64, 65, 66, 67, 68, 69
S_T0, S_T1, S_T2, S_T3 = 70, 71, 72, 73
S_KC, S_OA, S_OW, S_OM, S_OH = 74, 75, 76, 77, 78
S_NONCE, S_CNT, S_U, S_DELTA, S_IT = 79, 80, 81, 82, 83
S_MASK = 84
S_DEST = 86
S_PIDX = 97
S_TS = 98
S_PKO, S_PKS = 100, 101
S_L = S_R
S_K0, S_K1 = 100, 101
VDIAG = 11

LOG2E = 1.4426950408889634
def f2u(x): return struct.unpack('<I', struct.pack('<f', x))[0]
def lit(x): return hex(f2u(x))

def srd(a, r, p, size):
    a(f"s_mov_b32 {s(r)}, {s(p)}")
    a(f"s_and_b32 {s(r+1)}, {s(p+1)}, 0xffff")
    a(f"s_mov_b32 {s(r+2)}, {hex(size)}")
    a(f"s_mov_b32 {s(r+3)}, 0x20000")

def interleave(a, main, fill, last_frac=0.7, first=0):
    n = len(main); m = len(fill); k = 0
    lim = max(1, int(n * last_frac))
    while k < min(first, m): a(fill[k]); k += 1
    for i, x in enumerate(main):
        a(x)
        tgt = first + math.ceil((m - first) * min(i + 1, lim) / lim) if m > first else m
        while k < tgt: a(fill[k]); k += 1
    while k < m: a(fill[k]); k += 1

def pk(op, d, *src):
    ops = []; lo = []; hi = []
    for x in src:
        if isinstance(x, int): assert x % 2 == 0; ops.append(v(x, 2)); lo.append(0); hi.append(1)
        elif isinstance(x, str): ops.append(x); lo.append(0); hi.append(0)
        elif x[0] == 'b': assert x[1] % 2 == 0; ops.append(v(x[1], 2)); lo.append(0); hi.append(0)
        elif x[0] == 's': assert x[1] % 2 == 0; ops.append(s(x[1], 2)); lo.append(0); hi.append(0)
    assert d % 2 == 0
    return f"v_pk_{op}_f32 {v(d,2)}, {', '.join(ops)} op_sel:[{','.join(map(str,lo))}] op_sel_hi:[{','.join(map(str,hi))}]"

def exec_mask(a, m):
    a(f"s_mov_b32 exec_lo, {hex(m & 0xffffffff)}")
    a(f"s_mov_b32 exec_hi, {hex(m >> 32)}")
DIAGMASK = sum(1 << l for l in range(64) if ((l & 15) >> 2) == (l >> 4))

class Gen:
    def __init__(self, cfg):
        self.cfg = cfg
        self.a = Asm()
        self.uid = 0
    def lab(self, p):
        self.uid += 1; return f"L{p}_{self.uid}"

    def stamp(self, i):
        if not self.cfg.diag: return
        a = self.a
        a("s_waitcnt lgkmcnt(0)")
        a(f"s_mov_b32 m0, {s(S_PIDX)}")
        a("s_nop 0")
        a(f"v_writelane_b32 {v(VDIAG)}, {s(S_TS)}, m0")
        a(f"s_memtime {s(S_TS,2)}")
        a(f"s_mov_b32 {s(S_PIDX)}, {i}")

    def entry(self):
        a = self.a; cfg = self.cfg
        a(f"s_cmp_ge_u32 s2, 256")
        a(f"s_cbranch_scc1 Lend")
        a(f"s_load_dwordx16 s[4:19], s[0:1], 0")
        a(f"s_load_dwordx4 s[20:23], s[0:1], 64")
        a(f"s_load_dwordx2 s[24:25], s[0:1], 80")
        if cfg.diag:
            a(f"s_memrealtime {s(S_TS,2)}")
            a(f"s_mov_b32 {s(S_PIDX)}, 0")
            a(f"v_mov_b32 {v(VDIAG)}, 0")
        a(f"v_lshrrev_b32 v2, 6, v0")
        a(f"v_and_b32 v1, 63, v0")
        a(f"v_readfirstlane_b32 {s(S_WID)}, v2")
        a(f"s_and_b32 {s(S_XCD)}, s2, 7")
        a(f"s_lshr_b32 {s(S_IDX)}, s2, 3")
        a(f"s_lshr_b32 {s(S_T0)}, {s(S_XCD)}, 1")
        a(f"s_lshl_b32 {s(S_T0)}, {s(S_T0)}, 2")
        a(f"s_and_b32 {s(S_T1)}, {s(S_IDX)}, 3")
        a(f"s_add_u32 {s(S_RB)}, {s(S_T0)}, {s(S_T1)}")
        a(f"s_lshl_b32 {s(S_T0)}, {s(S_T0)}, 1")
        a(f"s_and_b32 {s(S_T1)}, {s(S_IDX)}, 7")
        a(f"s_add_u32 {s(S_TT)}, {s(S_T0)}, {s(S_T1)}")
        a(f"s_and_b32 {s(S_T0)}, {s(S_XCD)}, 1")
        a(f"s_lshl_b32 {s(S_T0)}, {s(S_T0)}, 2")
        a(f"s_lshr_b32 {s(S_T1)}, {s(S_IDX)}, 3")
        a(f"s_add_u32 {s(S_HG)}, {s(S_T0)}, {s(S_T1)}")
        a(f"s_mov_b32 {s(S_N)}, {s(S_HG)}")
        a(f"s_bfe_u32 {s(S_TY)}, {s(S_IDX)}, 0x10002")
        a(f"s_lshl_b32 {s(S_COL)}, {s(S_HG)}, 1")
        a(f"s_add_u32 {s(S_COL)}, {s(S_COL)}, {s(S_TY)}")
        a(f"s_mul_i32 {s(S_S0)}, {s(S_RB)}, 3")
        a(f"s_add_u32 {s(S_S0)}, {s(S_S0)}, {s(S_COL)}")
        a(f"s_mul_i32 {s(S_T0)}, {s(S_S0)}, 6554")
        a(f"s_lshr_b32 {s(S_T0)}, {s(S_T0)}, 16")
        a(f"s_mul_i32 {s(S_T0)}, {s(S_T0)}, 10")
        a(f"s_sub_u32 {s(S_S0)}, {s(S_S0)}, {s(S_T0)}")
        a(f"s_cmp_ge_u32 {s(S_WID)}, 4")
        a(f"s_cbranch_scc1 Lcompute")

    def calc_u(self):
        a = self.a
        a(f"s_add_u32 {s(S_U)}, {s(S_HG)}, 128")
        a(f"s_cmp_eq_u32 {s(S_RB)}, 0")
        a(f"s_cselect_b32 {s(S_U)}, {s(S_U)}, 255")
        a(f"s_lshl_b32 {s(S_T0)}, {s(S_HG)}, 4")
        a(f"s_add_u32 {s(S_T0)}, {s(S_T0)}, {s(S_RB)}")
        a(f"s_cmp_lg_u32 {s(S_TY)}, 0")
        a(f"s_cselect_b32 {s(S_U)}, {s(S_T0)}, {s(S_U)}")

    def poll_issue(self, vdst, voff, n=1):
        self.a(f"buffer_load_dword{'x2' if n == 2 else ''} {v(vdst, n)}, {v(voff)}, {s(R_WS,4)}, 0 offen sc1")
    def poll_check(self, vdst, voff, nlanes, n=1):
        a = self.a
        L = self.lab('poll'); Ld = self.lab('polld')
        mask = (1 << nlanes) - 1
        a(f"s_mov_b32 {s(S_CNT)}, 0")
        a.label(L)
        a(f"v_cmp_ne_u32 vcc, {s(S_NONCE)}, {v(vdst)}")
        if n == 2:
            a(f"v_cmp_ne_u32 {s(S_MASK,2)}, {s(S_NONCE)}, {v(vdst+1)}")
            a(f"s_or_b64 vcc, vcc, {s(S_MASK,2)}")
        if nlanes < 32:
            a(f"s_and_b32 {s(S_T0)}, vcc_lo, {hex(mask)}")
        else:
            a(f"s_and_b32 {s(S_T0)}, vcc_hi, {hex(mask >> 32)}")
            a(f"s_or_b32 {s(S_T0)}, {s(S_T0)}, vcc_lo")
        a(f"s_cbranch_scc0 {Ld}")
        a(f"s_add_u32 {s(S_CNT)}, {s(S_CNT)}, 1")
        a(f"s_cmp_gt_u32 {s(S_CNT)}, 0x40000")
        a(f"s_cbranch_scc1 {Ld}")
        self.poll_issue(vdst, voff, n)
        a("s_waitcnt vmcnt(0)")
        a(f"s_branch {L}")
        a.label(Ld)
    def poll(self, vdst, voff, nlanes, n=1):
        self.poll_issue(vdst, voff, n); self.a("s_waitcnt vmcnt(0)"); self.poll_check(vdst, voff, nlanes, n)
    def only_l(self, l=0):
        L = self.lab('l0')
        self.a(f"s_cmp_lg_u32 {s(S_L)}, {l}")
        self.a(f"s_cbranch_scc1 {L}")
        return L
    def flag_store(self, voff):
        self.a(f"buffer_store_dword v41, {v(voff)}, {s(R_WS,4)}, 0 offen sc1")

    def loader(self):
        a = self.a; cfg = self.cfg
        VO = 12
        V_P2 = 23
        V_FH, V_F2, V_FP, V_FS, V_QK, V_QP, V_QH, V_QO, V_QS = 24, 25, 26, 27, 28, 29, 30, 31, 32
        V_PK = 33
        nb0 = a.nbar
        a(f"s_mov_b32 {s(S_L)}, {s(S_WID)}")
        a(f"s_mov_b32 {s(S_KC)}, {s(S_S0)}")
        if cfg.prio: a(f"s_setprio {cfg.prio}")
        a(f"v_lshrrev_b32 v2, 3, v1")
        a(f"v_lshrrev_b32 v3, 4, v1")
        a(f"v_and_b32 v4, 7, v1")
        a(f"v_xor_b32 v5, v4, v3")
        a(f"s_lshl_b32 {s(S_T0)}, {s(S_RB)}, 2")
        a(f"s_add_u32 {s(S_T0)}, {s(S_T0)}, {s(S_L)}")
        a(f"s_mul_i32 {s(S_T0)}, {s(S_T0)}, {32*1280}")
        a(f"v_mul_u32_u24 v6, 1280, v2")
        a(f"v_lshl_add_u32 v6, v5, 4, v6")
        a(f"v_add_u32 {v(VO)}, {s(S_T0)}, v6")
        a(f"v_xor_b32 v7, 64, {v(VO)}")
        a(f"v_add_u32 {v(VO+1)}, 10240, v7")
        a(f"v_add_u32 {v(VO+2)}, 20480, {v(VO)}")
        a(f"v_add_u32 {v(VO+3)}, 30720, v7")
        a(f"s_lshl_b32 {s(S_DEST)}, {s(S_L)}, 12")
        for n in range(1, 4): a(f"s_add_u32 {s(S_DEST+n)}, {s(S_DEST)}, {1024*n}")
        a(f"s_lshl_b32 {s(S_OA)}, {s(S_KC)}, 7")
        a("s_waitcnt lgkmcnt(0)")
        self.stamp(1)
        srd(a, R_X, P_X, 2048 * 1280)
        srds = [R_X]*4 + [R_W]*3 + [R_MID]*2 + [R_W1]*2
        soffs = [S_OA]*4 + [S_OW]*3 + [S_OM]*2 + [S_OH]*2
        def dma(k, n):
            a(f"s_add_u32 m0, {s(S_DEST+n)}, {(k % 3) * SLOT}")
            a(f"buffer_load_dwordx4 {v(VO+n)}, {s(srds[n],4)}, {s(soffs[n])} offen lds")
        for n in range(4): dma(0, n)
        srd(a, R_W, P_W, 640 * 3840)
        srd(a, R_W1, P_W1, 640 * 3072)
        def wrow(dst, i, valid_check):
            a(f"v_add_u32 v6, {s(S_T1)}, v1")
            if i: a(f"v_add_u32 v6, {64*i}, v6")
            a(f"v_mul_u32_u24 v7, 6554, v6")
            a(f"v_lshrrev_b32 v7, 16, v7")
            a(f"v_mad_i32_i24 v8, v7, -10, v6")
            a(f"v_lshrrev_b32 v9, 1, v7")
            a(f"v_xor_b32 v9, v9, v7")
            a(f"v_and_b32 v9, 4, v9")
            a(f"v_mul_u32_u24 v9, 3, v9")
            a(f"v_xor_b32 v7, v7, v9")
            a(f"v_mul_u32_u24 v7, 3840, v7")
            a(f"v_lshl_add_u32 v7, v8, 4, v7")
            a(f"v_add_u32 {v(dst)}, {s(S_T2)}, v7")
            if valid_check:
                a(f"v_cmp_gt_u32 vcc, 640, v6")
                a(f"v_mov_b32 v9, {hex(OOB)}")
                a(f"v_cndmask_b32 {v(dst)}, v9, {v(dst)}, vcc")
        a(f"s_mul_i32 {s(S_OW)}, {s(S_KC)}, {64*3840}")
        a(f"s_mul_i32 {s(S_OH)}, {s(S_KC)}, {64*3072}")
        a(f"s_mul_i32 {s(S_T3)}, {s(S_HG)}, 384")
        a(f"s_cmp_lg_u32 {s(S_TY)}, 0")
        a(f"s_cbranch_scc1 Lld_setq")
        for i in range(3): a(f"s_mov_b32 {s(R_MID+i)}, {s(R_W+i)}")
        a(f"s_mov_b32 {s(R_MID+3)}, 0x20000")
        a(f"s_mov_b32 {s(S_OM)}, {s(S_OW)}")
        a(f"v_lshrrev_b32 v6, 1, v4")
        a(f"v_xor_b32 v6, v6, v3")
        a(f"v_and_b32 v7, 1, v4")
        a(f"v_lshl_add_u32 v6, v6, 1, v7")
        a(f"v_and_b32 v7, 4, v2")
        a(f"v_add_u32 v7, v7, v2")
        a(f"v_mul_u32_u24 v7, 3072, v7")
        a(f"v_lshl_add_u32 v6, v6, 4, v7")
        a(f"s_mul_i32 {s(S_T0)}, {s(S_L)}, {16*3072}")
        a(f"s_add_u32 {s(S_T0)}, {s(S_T0)}, {s(S_T3)}")
        a(f"v_add_u32 {v(VO+9)}, {s(S_T0)}, v6")
        a(f"v_add_u32 {v(VO+10)}, {4*3072}, {v(VO+9)}")
        a(f"s_lshl_b32 {s(S_T0)}, {s(S_L)}, 11")
        a(f"s_add_u32 {s(S_DEST+9)}, {s(S_T0)}, 36864")
        a(f"s_add_u32 {s(S_DEST+10)}, {s(S_T0)}, {36864+1024}")
        dma(0, 9); dma(0, 10)
        a(f"s_and_b32 {s(S_T1)}, {s(S_L)}, 1")
        a(f"s_mul_i32 {s(S_T1)}, {s(S_T1)}, 320")
        a(f"s_lshr_b32 {s(S_T2)}, {s(S_L)}, 1")
        a(f"s_mul_i32 {s(S_T2)}, {s(S_T2)}, 1280")
        a(f"s_mul_i32 {s(S_T0)}, {s(S_HG)}, 160")
        a(f"s_add_u32 {s(S_T2)}, {s(S_T2)}, {s(S_T0)}")
        a(f"s_add_u32 {s(S_T2)}, {s(S_T2)}, 1280")
        a(f"s_mul_i32 {s(S_T0)}, {s(S_L)}, 5120")
        for i in range(5):
            a(f"s_add_u32 {s(S_DEST+4+i)}, {s(S_T0)}, {16384 + 1024*i}")
            wrow(VO + 4 + i, i, False)
            dma(0, 4 + i)
        a(f"s_branch Lld_setdone")
        a.label('Lld_setq')
        for i in range(3): a(f"s_mov_b32 {s(R_MID+i)}, {s(R_W1+i)}")
        a(f"s_mov_b32 {s(R_MID+3)}, 0x20000")
        a(f"s_mov_b32 {s(S_OM)}, {s(S_OH)}")
        a(f"s_add_u32 {s(S_T3)}, {s(S_T3)}, 128")
        a(f"v_and_b32 v8, 15, v1")
        a(f"v_lshrrev_b32 v6, 1, v8")
        a(f"v_xor_b32 v6, v6, v3")
        a(f"v_and_b32 v7, 1, v8")
        a(f"v_lshl_add_u32 v6, v6, 1, v7")
        a(f"v_mul_u32_u24 v7, 3072, v3")
        a(f"v_lshl_add_u32 v6, v6, 4, v7")
        a(f"v_xor_b32 v7, 128, v6")
        a(f"s_mul_i32 {s(S_T0)}, {s(S_L)}, {16*3072}")
        a(f"s_add_u32 {s(S_T0)}, {s(S_T0)}, {s(S_T3)}")
        a(f"v_add_u32 {v(VO+7)}, {s(S_T0)}, v6")
        a(f"v_add_u32 v7, {s(S_T0)}, v7")
        a(f"v_add_u32 {v(VO+8)}, {8*3072}, v7")
        a(f"v_add_u32 {v(VO+9)}, {4*3072}, {v(VO+7)}")
        a(f"v_add_u32 {v(VO+10)}, {12*3072}, v7")
        a(f"s_lshl_b32 {s(S_T0)}, {s(S_L)}, 12")
        for i in range(4):
            a(f"s_add_u32 {s(S_DEST+7+i)}, {s(S_T0)}, {26624 + 1024*i}")
            dma(0, 7 + i)
        a(f"s_mul_i32 {s(S_T1)}, {s(S_L)}, 192")
        a(f"s_mul_i32 {s(S_T2)}, {s(S_HG)}, 160")
        a(f"s_mul_i32 {s(S_T0)}, {s(S_L)}, 3072")
        for i in range(3):
            a(f"s_add_u32 {s(S_DEST+4+i)}, {s(S_T0)}, {16384 + 1024*i}")
            if i:
                a(f"s_cmp_eq_u32 {s(S_L)}, 3")
                a(f"s_cselect_b32 {s(S_DEST+4+i)}, {43008 + 1024*(i-1)}, {s(S_DEST+4+i)}")
            wrow(VO + 4 + i, i, i > 0)
            dma(0, 4 + i)
        a.label('Lld_setdone')
        self.stamp(40)
        def advance():
            a(f"s_add_u32 {s(S_KC)}, {s(S_KC)}, 1")
            a(f"s_cmp_eq_u32 {s(S_KC)}, 10")
            a(f"s_cselect_b32 {s(S_KC)}, 0, {s(S_KC)}")
            a(f"s_lshl_b32 {s(S_OA)}, {s(S_KC)}, 7")
            a(f"s_mul_i32 {s(S_OW)}, {s(S_KC)}, {64*3840}")
            a(f"s_mul_i32 {s(S_OH)}, {s(S_KC)}, {64*3072}")
            a(f"s_cmp_lg_u32 {s(S_TY)}, 0")
            a(f"s_cselect_b32 {s(S_OM)}, {s(S_OH)}, {s(S_OW)}")
        n1 = cfg.n1

        def idle_setup():
            srd(a, R_WS, P_WS, WS_SIZE)
            self.calc_u()
            a("v_mov_b32 v42, 0")
            a("v_mov_b32 v40, 0")
            L = self.lab('nc')
            a(f"s_or_b32 {s(S_T0)}, {s(S_L)}, s2")
            a(f"s_cbranch_scc1 {L}")
            a(f"s_load_dword {s(S_T0)}, {s(P_WS,2)}, 0")
            a("s_waitcnt lgkmcnt(0)")
            a(f"s_mul_i32 {s(S_T0)}, {s(S_T0)}, 0x9E3779B1")
            a(f"s_add_u32 {s(S_T0)}, {s(S_T0)}, 0x7F4A7C15")
            a(f"s_cmp_eq_u32 {s(S_T0)}, 0")
            a(f"s_cselect_b32 {s(S_T0)}, 1, {s(S_T0)}")
            a(f"v_mov_b32 v43, {s(S_T0)}")
            a(f"global_store_dword v42, v43, {s(P_DBG,2)} sc1")
            a(f"global_store_dword v42, v43, {s(P_WS,2)} sc1")
            a.label(L)
            a(f"v_add_u32 v0, 512, v0")
            a(f"v_lshlrev_b32 v39, 4, v1")
            a(f"v_lshl_add_u32 v10, v1, 2, {s(S_T3)}")
            srd(a, R_BI, P_B1, 3072)
            a(f"v_mov_b32 v6, {hex(OOB)}")
            a(f"v_cmp_eq_u32 vcc, 0, v1")
            a(f"s_lshl_b32 {s(S_T0)}, {s(S_RB)}, 7")
            a(f"s_lshl_b32 {s(S_T1)}, {s(S_COL)}, 2")
            a(f"s_add_u32 {s(S_T1)}, {s(S_T1)}, {s(S_T0)}")
            a(f"s_add_u32 {s(S_T1)}, {s(S_T1)}, {WS_FH}")
            a(f"v_mov_b32 v7, {s(S_T1)}")
            a(f"v_cndmask_b32 {v(V_FH)}, v6, v7, vcc")
            a(f"s_lshl_b32 {s(S_T1)}, {s(S_HG)}, 2")
            a(f"s_add_u32 {s(S_T3)}, {s(S_T0)}, {s(S_T1)}")
            a(f"s_add_u32 {s(S_T3)}, {s(S_T3)}, {WS_FO}")
            a(f"s_lshl_b32 {s(S_T1)}, {s(S_HG)}, 7")
            a(f"s_lshl_b32 {s(S_T2)}, {s(S_RB)}, 2")
            a(f"s_add_u32 {s(S_T2)}, {s(S_T2)}, {s(S_T1)}")
            a(f"s_add_u32 {s(S_T2)}, {s(S_T2)}, {WS_FK}")
            a(f"s_cmp_lg_u32 {s(S_TY)}, 0")
            a(f"s_cselect_b32 {s(S_T3)}, {s(S_T3)}, {s(S_T2)}")
            a(f"v_mov_b32 v7, {s(S_T3)}")
            a(f"v_cndmask_b32 {v(V_F2)}, v6, v7, vcc")
            a(f"s_add_u32 {s(S_T1)}, {s(S_T1)}, {WS_FK}")
            a(f"v_lshl_add_u32 {v(V_QK)}, v1, 2, {s(S_T1)}")
            a(f"s_and_b32 {s(S_T1)}, {s(S_U)}, 1")
            a(f"s_lshl_b32 {s(S_T1)}, {s(S_T1)}, 9")
            a(f"s_lshr_b32 {s(S_T2)}, {s(S_U)}, 1")
            a(f"s_lshl_b32 {s(S_T2)}, {s(S_T2)}, 2")
            a(f"s_add_u32 {s(S_T1)}, {s(S_T1)}, {s(S_T2)}")
            a(f"s_add_u32 {s(S_T1)}, {s(S_T1)}, {WS_FP}")
            a(f"v_mov_b32 v7, {s(S_T1)}")
            a(f"v_cndmask_b32 {v(V_FP)}, v6, v7, vcc")
            a(f"s_add_u32 {s(S_T0)}, {s(S_T0)}, {WS_FS}")
            a(f"s_lshl_b32 {s(S_T1)}, {s(S_COL)}, 7")
            a(f"s_add_u32 {s(S_T1)}, {s(S_T1)}, {WS_FS + 2048}")
            a(f"s_lshl_b32 {s(S_T2)}, {s(S_S0)}, 2")
            a(f"s_add_u32 {s(S_T3)}, {s(S_T0)}, {s(S_T2)}")
            a(f"s_cmp_lt_u32 {s(S_COL)}, 10")
            a(f"s_cselect_b32 {s(S_T3)}, {s(S_T3)}, {hex(OOB)}")
            a(f"v_mov_b32 v7, {s(S_T3)}")
            a(f"v_cndmask_b32 {v(V_FS)}, v6, v7, vcc")
            a(f"s_add_u32 {s(S_T3)}, {s(S_T1)}, {s(S_T2)}")
            a(f"s_cmp_lt_u32 {s(S_RB)}, 10")
            a(f"s_cselect_b32 {s(S_T3)}, {s(S_T3)}, {hex(OOB)}")
            a(f"v_writelane_b32 {v(V_FS)}, {s(S_T3)}, 1")
            a(f"s_sub_u32 {s(S_T1)}, {s(S_T1)}, 40")
            a(f"v_lshl_add_u32 v7, v1, 2, {s(S_T0)}")
            a(f"v_lshl_add_u32 v8, v1, 2, {s(S_T1)}")
            a(f"v_cmp_gt_u32 vcc, 10, v1")
            a(f"v_cndmask_b32 {v(V_QS)}, v8, v7, vcc")
            a(f"s_lshr_b32 {s(S_T1)}, {s(S_N)}, 2")
            a(f"s_lshl_b32 {s(S_T1)}, {s(S_T1)}, 9")
            a(f"s_add_u32 {s(S_T1)}, {s(S_T1)}, {WS_FP}")
            a(f"v_lshl_add_u32 {v(V_QP)}, v1, 3, {s(S_T1)}")
            a(f"s_lshr_b32 {s(S_T1)}, {s(S_TT)}, 1")
            a(f"s_lshl_b32 {s(S_T1)}, {s(S_T1)}, 7")
            a(f"s_add_u32 {s(S_T1)}, {s(S_T1)}, {WS_FH}")
            a(f"v_lshl_add_u32 {v(V_QH)}, v1, 2, {s(S_T1)}")
            a(f"v_add_u32 {v(V_QO)}, {WS_FO - WS_FH}, {v(V_QH)}")
            L = self.lab('pks')
            a(f"s_cmp_gt_u32 {s(S_U)}, 135")
            a(f"s_cselect_b32 {s(S_T0)}, 0, {s(S_U)}")
            a(f"s_lshr_b32 {s(S_T0)}, {s(S_T0)}, 1")
            a(f"s_cmp_lt_u32 {s(S_T0)}, 48")
            a(f"s_cselect_b32 {s(R_PK)}, {s(P_W2)}, {s(P_WO)}")
            a(f"s_cselect_b32 {s(R_PK+1)}, {s(P_W2+1)}, {s(P_WO+1)}")
            a(f"s_mov_b32 {s(R_PK+2)}, {hex(640*1280)}")
            a(f"s_cselect_b32 {s(R_PK+2)}, {hex(1536*1280)}, {s(R_PK+2)}")
            a(f"s_mov_b32 {s(R_PK+3)}, 0x20000")
            Lm = self.lab('pkm'); Ld = self.lab('pkd')
            a(f"s_cbranch_scc1 {Lm}")
            a(f"s_sub_u32 {s(S_T3)}, {s(S_T0)}, 48")
            a(f"s_mul_i32 {s(S_T1)}, {s(S_T3)}, 52")
            a(f"s_lshr_b32 {s(S_T1)}, {s(S_T1)}, 8")
            a(f"s_mul_i32 {s(S_T2)}, {s(S_T1)}, 5")
            a(f"s_sub_u32 {s(S_T3)}, {s(S_T3)}, {s(S_T2)}")
            a(f"s_mul_i32 {s(S_T1)}, {s(S_T1)}, 160")
            a(f"s_lshl_b32 {s(S_T2)}, {s(S_T3)}, 5")
            a(f"s_cmp_ge_u32 {s(S_T3)}, 2")
            a(f"s_cselect_b32 {s(S_CNT)}, 16, 0")
            a(f"s_add_u32 {s(S_T2)}, {s(S_T2)}, {s(S_CNT)}")
            a(f"s_cmp_eq_u32 {s(S_T3)}, 4")
            a(f"s_cselect_b32 {s(S_T2)}, 64, {s(S_T2)}")
            a(f"s_cselect_b32 {s(S_CNT)}, 64, 0")
            a(f"s_add_u32 {s(S_T1)}, {s(S_T1)}, {s(S_T2)}")
            a(f"s_branch {Ld}")
            a.label(Lm)
            a(f"s_lshl_b32 {s(S_T1)}, {s(S_T0)}, 5")
            a(f"s_mov_b32 {s(S_CNT)}, 0")
            a.label(Ld)
            a(f"s_and_b32 {s(R_PK+1)}, {s(R_PK+1)}, 0xffff")
            a(f"s_cmp_ge_u32 {s(S_L)}, 2")
            a(f"s_cselect_b32 {s(S_CNT)}, {s(S_CNT)}, 0")
            a(f"s_add_u32 {s(S_T1)}, {s(S_T1)}, {s(S_CNT)}")
            a(f"s_lshl_b32 {s(S_T2)}, {s(S_L)}, 3")
            a(f"s_add_u32 {s(S_T1)}, {s(S_T1)}, {s(S_T2)}")
            a(f"s_mul_i32 {s(S_T1)}, {s(S_T1)}, 1280")
            a(f"s_and_b32 {s(S_T2)}, {s(S_U)}, 1")
            a(f"s_mul_i32 {s(S_T3)}, {s(S_T2)}, 640")
            a(f"s_add_u32 {s(S_PKO)}, {s(S_T1)}, {s(S_T3)}")
            for i in range(5):
                a(f"v_add_u32 v6, {64*i}, v1")
                a(f"v_mul_u32_u24 v7, 1639, v6")
                a(f"v_lshrrev_b32 v7, 16, v7")
                a(f"v_mul_u32_u24 v7, 640, v7")
                a(f"v_lshl_add_u32 {v(V_PK+i)}, v6, 4, v7")
            a(f"v_and_b32 v6, 15, v1")
            a(f"s_lshl_b32 {s(S_T0)}, {s(S_L)}, 5")
            a(f"v_add_u32 v6, {s(S_T0)}, v6")
            a(f"v_mul_u32_u24 v6, 160, v6")
            a(f"v_lshl_add_u32 v6, v3, 3, v6")
            a(f"v_add_u32 v38, {OEX}, v6")
            a(f"s_lshl_b32 {s(S_T0)}, {s(S_RB)}, 3")
            a(f"s_lshl_b32 {s(S_T1)}, {s(S_L)}, 1")
            a(f"s_add_u32 {s(S_T0)}, {s(S_T0)}, {s(S_T1)}")
            a(f"s_lshl_b32 {s(S_T0)}, {s(S_T0)}, 3")
            a(f"s_add_u32 {s(S_T0)}, {s(S_T0)}, {s(S_HG)}")
            a(f"s_mul_i32 {s(S_T0)}, {s(S_T0)}, 2560")
            a(f"s_add_u32 {s(S_PKS)}, {s(S_T0)}, {WS_O2}")
        def if_pack():
            L = self.lab('pk')
            a(f"s_cmp_gt_u32 {s(S_U)}, 135")
            a(f"s_cbranch_scc1 {L}")
            return L
        def p2_setup():
            a(f"s_mul_i32 {s(S_T0)}, {s(S_N)}, {68*5120}")
            a(f"s_and_b32 {s(S_T1)}, {s(S_L)}, 1")
            a(f"s_mul_i32 {s(S_T1)}, {s(S_T1)}, 5120")
            a(f"s_add_u32 {s(S_T0)}, {s(S_T0)}, {s(S_T1)}")
            a(f"s_add_u32 {s(S_T0)}, {s(S_T0)}, {WS_P2}")
            a(f"v_add_u32 {v(V_P2)}, {s(S_T0)}, v39")
            a(f"s_mul_i32 {s(S_DEST)}, {s(S_L)}, 5120")
            a(f"s_lshr_b32 {s(S_T1)}, {s(S_L)}, 1")
            a(f"s_mul_i32 {s(S_OM)}, {s(S_T1)}, {24*5120}")
            a(f"s_mul_i32 {s(S_OH)}, {s(S_T1)}, {10*5120}")
            a(f"s_add_u32 {s(S_OH)}, {s(S_OH)}, {48*5120}")
            self.rot2(S_KC)
        def p2_chunk(i):
            if i < 12:
                a(f"s_mul_i32 {s(S_OA)}, {s(S_KC)}, 10240")
                a(f"s_add_u32 {s(S_OA)}, {s(S_OA)}, {s(S_OM)}")
                a(f"s_add_u32 {s(S_KC)}, {s(S_KC)}, 1")
                a(f"s_cmp_eq_u32 {s(S_KC)}, 12")
                a(f"s_cselect_b32 {s(S_KC)}, 0, {s(S_KC)}")
            else:
                a(f"s_add_u32 {s(S_OA)}, {s(S_OH)}, {(i-12)*10240}")
            a(f"s_add_u32 m0, {s(S_DEST)}, {RING[i % 6]}")
            for j in range(4):
                a(f"buffer_load_dwordx4 {v(V_P2)}, {s(R_WS,4)}, {s(S_OA)} offen offset:{1024*j} sc1 lds")
            a(f"s_add_u32 m0, {s(S_DEST)}, {RING[i % 6] + 4096}")
            a(f"s_add_u32 {s(S_OA)}, {s(S_OA)}, 4096")
            a(f"buffer_load_dwordx4 {v(V_P2)}, {s(R_WS,4)}, {s(S_OA)} offen sc1 lds")
        for k in range(10):
            if k + 1 < 10:
                advance()
                for n in range(n1): dma(k + 1, n)
                wait = n1
            else:
                wait = 10
            if k == 0:
                self.stamp(41); idle_setup(); self.stamp(42)
            a(f"s_waitcnt vmcnt({wait})")
            if k == 3:
                L = self.only_l(0)
                a(f"v_readfirstlane_b32 {s(S_NONCE)}, v40")
                Lp = self.lab('np'); Lq = self.lab('nq')
                a(f"s_mov_b32 {s(S_CNT)}, 0")
                a.label(Lp)
                a(f"s_cmp_lg_u32 {s(S_NONCE)}, 0")
                a(f"s_cbranch_scc1 {Lq}")
                a(f"s_add_u32 {s(S_CNT)}, {s(S_CNT)}, 1")
                a(f"s_cmp_gt_u32 {s(S_CNT)}, 0x40000")
                a(f"s_cbranch_scc1 {Lq}")
                a(f"global_load_dword v40, v42, {s(P_DBG,2)} sc1")
                a("s_waitcnt vmcnt(0)")
                a(f"v_readfirstlane_b32 {s(S_NONCE)}, v40")
                a("s_nop 1")
                a(f"s_branch {Lp}")
                a.label(Lq)
                a(f"v_mov_b32 v41, {s(S_NONCE)}")
                a.label(L)
            if k == 7:
                L = self.only_l(0); self.poll_check(64, V_QS, 20); a.label(L)
            if k == 8:
                L = self.only_l(0); self.poll_check(66, V_QP, 34, 2); a.label(L)
            if k == 9: a("s_waitcnt lgkmcnt(0)")
            a("s_barrier")
            self.stamp(2 + k)
            if k == 2:
                L = self.only_l(0)
                a(f"global_load_dword v40, v42, {s(P_DBG,2)} sc1")
                a.label(L)
            if k == 3:
                L = self.only_l(0); self.flag_store(V_FS); a.label(L)
            if k == 5:
                L = if_pack(); L2 = self.only_l(0); self.flag_store(V_FP); a.label(L2); a.label(L)
            if k == 6:
                L = self.only_l(0); self.poll_issue(64, V_QS); a.label(L)
            if k == 7:
                L = self.only_l(0); self.poll_issue(66, V_QP, 2); a.label(L)
            if k == 8:
                a(f"s_lshr_b32 {s(S_T0)}, {s(S_L)}, 1")
                a(f"s_mul_i32 {s(S_T0)}, {s(S_T0)}, 10240")
                a(f"s_and_b32 {s(S_T1)}, {s(S_L)}, 1")
                a(f"s_lshl_b32 {s(S_T1)}, {s(S_T1)}, 9")
                a(f"s_add_u32 {s(S_T0)}, {s(S_T0)}, {s(S_T1)}")
                a(f"s_add_u32 {s(S_T0)}, {s(S_T0)}, {SCR}")
                a(f"v_lshl_add_u32 v6, v1, 3, {s(S_T0)}")
                for ch in range(10): a(f"ds_read_b64 {v(44+2*ch,2)}, v6 offset:{1024*ch}")
            if k + 1 < 10:
                for n in range(n1, 11): dma(k + 1, n)
            if k == 0:
                L = self.only_l(1)
                a(f"s_mov_b32 m0, {B1L}")
                a(f"buffer_load_dword v10, {s(R_BI,4)}, 0 offen lds")
                a.label(L)
            if k == 1:
                L = if_pack()
                a(f"s_mul_i32 {s(S_T2)}, {s(S_L)}, 5120")
                for i in range(5):
                    a(f"s_add_u32 m0, {s(S_T2)}, {SCR + 1024*i}")
                    a(f"buffer_load_dwordx4 {v(V_PK+i)}, {s(R_PK,4)}, {s(S_PKO)} offen lds")
                a.label(L)
            if k == 7:
                a(f"s_cmp_lt_u32 {s(S_L)}, 2")
                a(f"s_cselect_b32 {s(S_T0)}, {s(S_RB)}, {s(S_COL)}")
                a(f"s_mov_b32 {s(S_T1)}, {WS_CP}")
                a(f"s_cselect_b32 {s(S_T1)}, {WS_RP}, {s(S_T1)}")
                a(f"s_mul_i32 {s(S_T0)}, {s(S_T0)}, 10240")
                a(f"s_add_u32 {s(S_T0)}, {s(S_T0)}, {s(S_T1)}")
                a(f"s_and_b32 {s(S_T1)}, {s(S_L)}, 1")
                a(f"s_mul_i32 {s(S_T1)}, {s(S_T1)}, 5120")
                a(f"s_add_u32 {s(S_T0)}, {s(S_T0)}, {s(S_T1)}")
                a(f"s_mul_i32 {s(S_T2)}, {s(S_L)}, 5120")
                a(f"s_add_u32 m0, {s(S_T2)}, {SCR}")
                for j in range(4):
                    a(f"buffer_load_dwordx4 v39, {s(R_WS,4)}, {s(S_T0)} offen offset:{1024*j} sc1 lds")
                a(f"s_add_u32 m0, {s(S_T2)}, {SCR + 4096}")
                a(f"s_add_u32 {s(S_T0)}, {s(S_T0)}, 4096")
                a(f"buffer_load_dwordx4 v39, {s(R_WS,4)}, {s(S_T0)} offen sc1 lds")
            if k == 8:
                a("s_waitcnt lgkmcnt(0)")
                for ch in range(1, 10):
                    a(f"v_add_f32 v44, v44, {v(44+2*ch)}")
                    a(f"v_add_f32 v45, v45, {v(45+2*ch)}")
                a(f"s_and_b32 {s(S_T1)}, {s(S_L)}, 1")
                a(f"s_lshl_b32 {s(S_T1)}, {s(S_T1)}, 6")
                a(f"v_add_u32 v6, {s(S_T1)}, v1")
                Lc = self.lab('stc'); Ld = self.lab('std')
                a(f"s_cmp_ge_u32 {s(S_L)}, 2")
                a(f"s_cbranch_scc1 {Lc}")
                a(f"v_lshlrev_b32 v6, 2, v6")
                a(f"v_add_u32 v6, {ST}, v6")
                a(f"v_mul_f32 v46, {lit(1/640)}, v44")
                a(f"v_mul_f32 v47, v46, v46")
                a(f"v_mov_b32 v48, {lit(1/640)}")
                a(f"v_fma_f32 v45, v45, v48, -v47")
                a(f"v_max_f32 v45, 0, v45")
                a(f"v_add_f32 v47, {lit(1e-5)}, v45")
                a(f"v_rsq_f32 v48, v47")
                a(f"v_mul_f32 v49, v48, v48")
                a(f"v_fmaak_f32 v49, v49, v45, {lit(1e-5)}")
                a(f"v_rsq_f32 v49, v49")
                a(f"v_mul_f32 v50, v48, v49")
                a(f"v_mul_f32_e64 v51, -v46, v48")
                a(f"v_mul_f32_e64 v52, -v46, v50")
                a(f"ds_write_b32 v6, v48")
                a(f"ds_write_b32 v6, v51 offset:512")
                a(f"ds_write_b32 v6, v50 offset:1024")
                a(f"ds_write_b32 v6, v52 offset:1536")
                a(f"s_branch {Ld}")
                a.label(Lc)
                a(f"v_lshlrev_b32 v6, 3, v6")
                a(f"v_add_u32 v6, {ST_CS}, v6")
                a(f"ds_write_b64 v6, v[44:45]")
                a.label(Ld)
                p2_setup()
                p2_chunk(0); p2_chunk(1)
            if k == 9:
                p2_chunk(2); p2_chunk(3)
        a("s_barrier")
        self.stamp(12)
        p2_chunk(4); p2_chunk(5)
        a(f"s_cmp_lg_u32 {s(S_TY)}, 0")
        a(f"s_cbranch_scc1 Lld_eq")
        nb1 = a.nbar
        a("s_barrier")
        self.stamp(14)
        a("s_barrier")
        L = self.only_l(0); self.flag_store(V_F2); a.label(L)
        self.stamp(15)
        a("s_barrier")
        self.stamp(16)
        L = self.only_l(0); self.flag_store(V_FH); self.poll(64, V_QH, 16); a.label(L)
        a("s_barrier")
        self.stamp(19)
        a("s_branch Lld_p2")
        self.nb_ld_kv = a.nbar - nb0
        nb2 = a.nbar
        a.label('Lld_eq')
        a("s_barrier")
        self.stamp(14)
        L = self.only_l(0); self.flag_store(V_FH); self.poll(64, V_QK, 16); a.label(L)
        a("s_barrier")
        self.stamp(15)
        L = self.only_l(0); self.poll(64, V_QH, 16); a.label(L)
        a("s_barrier")
        self.stamp(16)
        a("s_barrier")
        self.stamp(17)
        for t in range(2):
            for k in range(5): a(f"ds_read_b64 {v(44+12*t+2*k,2)}, v38 offset:{2560*t + 32*k}")
        a(f"v_lshlrev_b32 v6, 3, v1")
        a(f"s_add_u32 {s(S_T0)}, {s(S_PKS)}, {8*2560}")
        a("s_waitcnt lgkmcnt(0)")
        for t in range(2):
            so = s(S_PKS) if t == 0 else s(S_T0)
            a(f"buffer_store_dwordx4 {v(44+12*t,4)}, v39, {s(R_WS,4)}, {so} offen sc1")
            a(f"buffer_store_dwordx4 {v(48+12*t,4)}, v39, {s(R_WS,4)}, {so} offen offset:1024 sc1")
            a(f"buffer_store_dwordx2 {v(52+12*t,2)}, v6, {s(R_WS,4)}, {so} offen offset:2048 sc1")
        self.nb_ld_q = (nb1 - nb0) + (a.nbar - nb2)
        a.label('Lld_p2')
        nb3 = a.nbar
        for i in range(17):
            issued = min(16, max(5, i + 4))
            a(f"s_waitcnt vmcnt({5 * (issued - i) if i != 1 else 0})")
            if i == cfg.ko:
                L = self.only_l(0); self.poll_check(64, V_QO, 8); a.label(L)
            a("s_barrier")
            self.stamp(20 + i)
            if i == 1:
                L = self.only_l(0)
                a(f"s_cmp_eq_u32 {s(S_TY)}, 0")
                a(f"s_cbranch_scc1 {L}")
                self.flag_store(V_F2)
                a.label(L)
            if i >= 1 and i + 5 <= 16: p2_chunk(i + 5)
            if i == 1:
                srd(a, R_BI, P_B2, 1280)
                a(f"s_mul_i32 {s(S_T0)}, {s(S_TT)}, {64*1280}")
                a(f"s_mul_i32 {s(S_T1)}, {s(S_N)}, 160")
                a(f"s_add_u32 {s(S_T0)}, {s(S_T0)}, {s(S_T1)}")
                a(f"s_mul_i32 {s(S_T2)}, {s(S_L)}, 192")
                a(f"s_mul_i32 {s(S_T3)}, {s(S_L)}, 3072")
                for j in range(3):
                    a(f"v_add_u32 v6, {s(S_T2)}, v1")
                    if j: a(f"v_add_u32 v6, {64*j}, v6")
                    a(f"v_mul_u32_u24 v7, 6554, v6")
                    a(f"v_lshrrev_b32 v7, 16, v7")
                    a(f"v_mul_u32_u24 v7, {1280-160}, v7")
                    a(f"v_lshl_add_u32 v7, v6, 4, v7")
                    if j:
                        L = self.lab('xt')
                        a(f"s_cmp_eq_u32 {s(S_L)}, 3")
                        a(f"s_cbranch_scc1 {L}")
                    a(f"s_add_u32 m0, {s(S_T3)}, {XT + 1024*j}")
                    a(f"buffer_load_dwordx4 v7, {s(R_X,4)}, {s(S_T0)} offen lds")
                    if j: a.label(L)
                L = self.only_l(3)
                a(f"v_lshlrev_b32 v6, 2, v1")
                a(f"s_mov_b32 m0, {B2L}")
                a(f"buffer_load_dword v6, {s(R_BI,4)}, {s(S_T1)} offen lds")
                a.label(L)
            if i == cfg.ko - 1:
                L = self.only_l(0)
                self.poll_issue(64, V_QO); a("s_waitcnt vmcnt(0)")
                a.label(L)
        a("s_barrier")
        self.stamp(37)
        a("s_barrier")
        self.stamp(38)
        self.nb_ld_p2 = a.nbar - nb3
        a(f"s_cmp_ge_u32 {s(S_WID)}, 2")
        a(f"s_cbranch_scc1 Lfin")
        a("s_branch Lfinal_store")

    def rot2(self, dst):
        a = self.a; ra, rb_ = self.cfg.rot2
        a(f"s_lshr_b32 {s(S_T1)}, {s(S_IDX)}, 3")
        a(f"s_mul_i32 {s(dst)}, {s(S_T1)}, {ra}")
        a(f"s_and_b32 {s(S_T1)}, {s(S_IDX)}, 7")
        a(f"s_mul_i32 {s(S_T1)}, {s(S_T1)}, {rb_}")
        a(f"s_lshr_b32 {s(S_T1)}, {s(S_T1)}, 1")
        a(f"s_add_u32 {s(dst)}, {s(dst)}, {s(S_T1)}")
        a(f"s_mul_i32 {s(S_T1)}, {s(dst)}, 5462")
        a(f"s_lshr_b32 {s(S_T1)}, {s(S_T1)}, 16")
        a(f"s_mul_i32 {s(S_T1)}, {s(S_T1)}, 12")
        a(f"s_sub_u32 {s(dst)}, {s(dst)}, {s(S_T1)}")

    def final_store(self):
        a = self.a
        a.label('Lfinal_store')
        a(f"v_lshlrev_b32 v2, 4, v0")
        a(f"v_add_u32 v3, {XT}, v2")
        a(f"ds_read_b128 v[4:7], v3")
        srd(a, R_OUT, P_OUT, 2048 * 1280)
        a(f"v_mul_u32_u24 v8, 6554, v0")
        a(f"v_lshrrev_b32 v8, 16, v8")
        a(f"v_mul_u32_u24 v8, {1280-160}, v8")
        a(f"v_add_u32 v8, v8, v2")
        a(f"s_mul_i32 {s(S_T0)}, {s(S_TT)}, {64*1280}")
        a(f"s_mul_i32 {s(S_T1)}, {s(S_N)}, 160")
        a(f"s_add_u32 {s(S_T0)}, {s(S_T0)}, {s(S_T1)}")
        a("s_waitcnt lgkmcnt(0)")
        a(f"buffer_store_dwordx4 v[4:7], v8, {s(R_OUT,4)}, {s(S_T0)} offen")
        a.label('Lfin')
        if self.cfg.diag:
            a("s_waitcnt vmcnt(0)")
            self.stamp(39); self.stamp(62)
            a(f"s_memrealtime {s(S_TS,2)}")
            a("s_waitcnt lgkmcnt(0)")
            a(f"v_writelane_b32 {v(VDIAG)}, {s(S_TS)}, 63")
            a(f"s_mul_i32 {s(S_T0)}, s2, 12")
            a(f"s_add_u32 {s(S_T0)}, {s(S_T0)}, {s(S_WID)}")
            a(f"s_lshl_b32 {s(S_T0)}, {s(S_T0)}, 8")
            a(f"s_add_u32 {s(S_T0)}, {s(S_T0)}, {WS_TS2}")
            a(f"v_lshlrev_b32 v2, 2, v1")
            a(f"buffer_store_dword {v(VDIAG)}, v2, {s(R_WS,4)}, {s(S_T0)} offen")
        a.label('Lend')
        a("s_endpgm")

    ACC = 12; ONES = 68; RS = 72; SQ = 76; CSA = 80; CSB = 84
    XA = 88; XB = 96; YA = 124; YB = 132
    VA = 2
    L15 = 164; G = 165; TOK = 167
    def acc(self, t, i): return self.ACC + (2 * t + i) * 4
    def tiles(self, ty):
        if ty == 0:
            return [(6, 0, 160, 'N'), (6, 32, 160, 'N'), (7, 0, 160, 'N'), (6, 10256, 160, 'N'), (6, 10288, 160, 'N'),
                    (8, 0, 128, 'T'), (9, 0, 128, 'T')]
        return [(6, 0, 160, 'T'), (6, 32, 160, 'T'), (6, 64, 160, 'T'), (7, 0, 256, 'T'), (8, 0, 256, 'T'), (9, 0, 256, 'T'), (10, 0, 256, 'T')]

    def compute_setup(self):
        a = self.a
        a.label('Lcompute')
        T = 88
        L15, G, TOK = self.L15, self.G, self.TOK
        a(f"s_sub_u32 {s(S_T0)}, {s(S_WID)}, 4")
        a(f"s_and_b32 {s(S_R)}, {s(S_T0)}, 3")
        a(f"s_lshr_b32 {s(S_C)}, {s(S_T0)}, 2")
        a(f"v_add_u32 v0, {-256 & 0xffffffff}, v0")
        a(f"v_and_b32 {v(L15)}, 15, v1")
        a(f"v_lshrrev_b32 {v(G)}, 4, v1")
        a(f"v_lshrrev_b32 {v(T+2)}, 1, {v(L15)}")
        a(f"v_xor_b32 {v(T+2)}, {v(T+2)}, {v(G)}")
        a(f"v_lshlrev_b32 {v(T+2)}, 4, {v(T+2)}")
        a(f"v_lshl_add_u32 {v(T+2)}, {v(L15)}, 7, {v(T+2)}")
        a(f"s_lshl_b32 {s(S_T0)}, {s(S_R)}, 12")
        a(f"s_lshl_b32 {s(S_T1)}, {s(S_C)}, 11")
        a(f"s_add_u32 {s(S_T0)}, {s(S_T0)}, {s(S_T1)}")
        a(f"v_add_u32 v2, {s(S_T0)}, {v(T+2)}")
        a(f"v_xor_b32 v3, 64, v2")
        a(f"v_xor_b32 v4, 2048, v2")
        a(f"v_xor_b32 v5, 64, v4")
        a(f"s_lshr_b32 {s(S_T0)}, {s(S_T0)}, 5")
        a(f"s_add_u32 {s(S_T0)}, {s(S_T0)}, {ST}")
        a(f"v_lshl_add_u32 {v(TOK)}, {v(L15)}, 2, {s(S_T0)}")
        a(f"v_bfe_u32 {v(T+3)}, v1, 2, 3")
        a(f"v_lshrrev_b32 {v(T+4)}, 5, v1")
        a(f"v_lshl_add_u32 {v(T+4)}, {v(T+4)}, 4, {v(T+3)}")
        a(f"v_and_b32 {v(T+5)}, 3, v1")
        a(f"v_lshlrev_b32 {v(T+6)}, 3, {v(T+5)}")
        a(f"v_mul_u32_u24 v6, 160, {v(T+4)}")
        a(f"s_mul_i32 {s(S_T0)}, {s(S_C)}, 80")
        a(f"s_add_u32 {s(S_T0)}, {s(S_T0)}, 16384")
        a(f"v_add3_u32 v6, v6, {v(T+6)}, {s(S_T0)}")
        for i in range(self.ACC, self.ONES): a(f"v_mov_b32 {v(i)}, 0")
        for i in range(4): a(f"v_mov_b32 {v(self.ONES+i)}, 0x3f803f80")
        a(f"s_mov_b32 {s(S_IT)}, 0")
        self.calc_u()
        a("s_waitcnt lgkmcnt(0)")
        self.stamp(1)
        srd(a, R_WS, P_WS, WS_SIZE)
        a(f"s_cmp_lg_u32 {s(S_TY)}, 0")
        a(f"s_cbranch_scc1 Lc_q")
        a(f"v_cmp_gt_u32 vcc, 2, {v(T+5)}")
        a(f"v_mov_b32 {v(T+7)}, 10224")
        a(f"v_cndmask_b32 {v(T+7)}, {v(T+7)}, 64, vcc")
        a(f"v_add_u32 v7, v6, {v(T+7)}")
        a(f"v_lshrrev_b32 {v(T+7)}, 1, {v(T+3)}")
        a(f"v_lshl_add_u32 {v(T+8)}, {v(T+4)}, 7, {v(T+6)}")
        a(f"v_add_u32 {v(T+8)}, 36864, {v(T+8)}")
        a(f"s_lshl_b32 {s(S_T0)}, {s(S_C)}, 1")
        a(f"v_xor_b32 {v(T+7)}, {s(S_T0)}, {v(T+7)}")
        a(f"v_lshl_add_u32 v8, {v(T+7)}, 5, {v(T+8)}")
        a(f"v_xor_b32 {v(T+7)}, 1, {v(T+7)}")
        a(f"v_lshl_add_u32 v9, {v(T+7)}, 5, {v(T+8)}")
        a(f"s_branch Lp1_0")
        a.label('Lc_q')
        a(f"v_lshl_add_u32 {v(T+8)}, {v(T+4)}, 8, {v(T+6)}")
        a(f"v_add_u32 {v(T+8)}, 26624, {v(T+8)}")
        a(f"s_lshl_b32 {s(S_T0)}, {s(S_C)}, 2")
        a(f"v_xor_b32 {v(T+7)}, {s(S_T0)}, {v(T+3)}")
        for i in range(4):
            a(f"v_xor_b32 {v(T+9)}, {i}, {v(T+7)}")
            a(f"v_lshl_add_u32 {v(7+i)}, {v(T+9)}, 5, {v(T+8)}")
        a(f"s_branch Lp1_1")

    def p1_reads(self, ty, st, A, B):
        out = [f"ds_read_b128 {v(A,4)}, {v(self.VA+st)}", f"ds_read_b128 {v(A+4,4)}, {v(self.VA+2+st)}"]
        for t, (ad, ex, pitch, o) in enumerate(self.tiles(ty)):
            for u in range(2):
                out.append(f"ds_read_b64_tr_b16 {v(B+4*t+2*u,2)}, {v(ad)} offset:{(32*st+8*u)*pitch+ex}")
        return out
    def p1_mfmas(self, ty, A, B):
        M = "v_mfma_f32_16x16x32_bf16"
        out = []
        for t, (ad, ex, pitch, o) in enumerate(self.tiles(ty)):
            for i in range(2):
                d = v(self.acc(t, i), 4); x = v(A + 4*i, 4); w = v(B + 4*t, 4)
                out.append(f"{M} {d}, {x}, {w}, {d}" if o == 'N' else f"{M} {d}, {w}, {x}, {d}")
        return out

    def duty(self, half, A, B):
        a = self.a
        M = "v_mfma_f32_16x16x32_bf16"
        on = v(self.ONES, 4); x0 = v(A, 4)
        def c(r): return v(r, 4) if half else '0'
        a.label(f"Lduty{half}")
        a(f"{M} {v(self.RS,4)}, {on}, {x0}, {c(self.RS)}")
        a(f"{M} {v(self.SQ,4)}, {x0}, {x0}, {c(self.SQ)}")
        Ld = self.lab('dd')
        labs = [self.lab('dr') for _ in range(4)]
        for r in range(1, 4):
            a(f"s_cmp_eq_u32 {s(S_R)}, {r}")
            a(f"s_cbranch_scc1 {labs[r]}")
        for r in range(4):
            a.label(labs[r])
            a(f"{M} {v(self.CSA,4)}, {on}, {v(B+4*r,4)}, {c(self.CSA)}")
            if r < 3:
                a(f"{M} {v(self.CSB,4)}, {on}, {v(B+4*(r+4),4)}, {c(self.CSB)}")
                a(f"s_branch {Ld}")
        a.label(Ld)
        if half:
            T = 160
            SQ = self.SQ
            a(f"v_and_b32 {v(T)}, 3, v1")
            a(f"s_mul_i32 {s(S_T0)}, {s(S_RB)}, 10")
            a(f"s_add_u32 {s(S_T0)}, {s(S_T0)}, {s(S_S0)}")
            a(f"s_lshl_b32 {s(S_T0)}, {s(S_T0)}, 10")
            a(f"s_add_u32 {s(S_T0)}, {s(S_T0)}, {(WS_RP - 2*ST) & 0xffffffff}")
            a(f"v_lshl_add_u32 {v(T+1)}, {v(self.TOK)}, 1, {s(S_T0)}")
            a(f"s_mul_i32 {s(S_T0)}, {s(S_COL)}, 10")
            a(f"s_add_u32 {s(S_T0)}, {s(S_T0)}, {s(S_S0)}")
            a(f"s_lshl_b32 {s(S_T0)}, {s(S_T0)}, 10")
            a(f"s_mul_i32 {s(S_T1)}, {s(S_C)}, 448")
            a(f"s_add_u32 {s(S_T0)}, {s(S_T0)}, {s(S_T1)}")
            a(f"s_lshl_b32 {s(S_T1)}, {s(S_R)}, 6")
            a(f"s_add_u32 {s(S_T0)}, {s(S_T0)}, {s(S_T1)}")
            a(f"s_add_u32 {s(S_T0)}, {s(S_T0)}, {WS_CP}")
            a(f"v_lshl_add_u32 {v(T+2)}, {v(self.L15)}, 2, {s(S_T0)}")
            a(f"v_cmp_eq_u32 vcc, 1, {v(T)}")
            a(f"v_cndmask_b32 {v(self.RS+1)}, {v(SQ)}, {v(SQ+1)}, vcc")
            a(f"v_cmp_eq_u32 vcc, 2, {v(T)}")
            a(f"v_cndmask_b32 {v(self.RS+1)}, {v(self.RS+1)}, {v(SQ+2)}, vcc")
            a(f"v_cmp_eq_u32 vcc, 3, {v(T)}")
            a(f"v_cndmask_b32 {v(self.RS+1)}, {v(self.RS+1)}, {v(SQ+3)}, vcc")
            L = self.lab('dn')
            a(f"s_cmp_ge_u32 {s(S_COL)}, 10")
            a(f"s_cbranch_scc1 {L}")
            exec_mask(a, DIAGMASK)
            a(f"buffer_store_dwordx2 {v(self.RS,2)}, {v(T+1)}, {s(R_WS,4)}, 0 offen sc1")
            a.label(L)
            L = self.lab('dn')
            a(f"s_cmp_ge_u32 {s(S_RB)}, 10")
            a(f"s_cbranch_scc1 {L}")
            exec_mask(a, 0xffff)
            a(f"buffer_store_dword {v(self.CSA)}, {v(T+2)}, {s(R_WS,4)}, 0 offen sc1")
            a(f"s_cmp_eq_u32 {s(S_R)}, 3")
            a(f"s_cbranch_scc1 {L}")
            a(f"buffer_store_dword {v(self.CSB)}, {v(T+2)}, {s(R_WS,4)}, 0 offen offset:256 sc1")
            a.label(L)
            a("s_mov_b64 exec, -1")
        a(f"s_cmp_lg_u32 {s(S_TY)}, 0")
        a(f"s_cbranch_scc1 Lret{half}_1")
        a(f"s_branch Lret{half}_0")

    def pack_blocks(self):
        a = self.a
        PD = 72
        def ret(h):
            a(f"s_cmp_lg_u32 {s(S_TY)}, 0")
            a(f"s_cbranch_scc1 Lret{h}_1")
            a(f"s_branch Lret{h}_0")
        a.label('Lx1')
        a(f"s_cmp_eq_u32 {s(S_IT)}, 1")
        a(f"s_cbranch_scc1 Lduty1")
        L = self.lab('pa')
        a(f"s_cmp_gt_u32 {s(S_U)}, 135")
        a(f"s_cbranch_scc1 {L}")
        a(f"v_lshrrev_b32 v160, 2, v1")
        a(f"v_mul_u32_u24 v160, 640, v160")
        a(f"v_and_b32 v161, 3, v1")
        a(f"v_lshl_add_u32 v160, v161, 3, v160")
        a(f"s_mul_i32 {s(S_T0)}, {s(S_R)}, 160")
        a(f"s_mul_i32 {s(S_T1)}, {s(S_C)}, 96")
        a(f"s_add_u32 {s(S_T0)}, {s(S_T0)}, {s(S_T1)}")
        a(f"s_add_u32 {s(S_T0)}, {s(S_T0)}, {SCR}")
        a(f"v_add_u32 v160, {s(S_T0)}, v160")
        for c in range(3):
            a(f"ds_read_b64_tr_b16 {v(PD+4*c,2)}, v160 offset:{32*c}")
            a(f"ds_read_b64_tr_b16 {v(PD+2+4*c,2)}, v160 offset:{32*c + 16*640}")
        a.label(L)
        ret(1)
        a.label('Lx0')
        a(f"s_cmp_eq_u32 {s(S_IT)}, 1")
        a(f"s_cbranch_scc1 Lduty0")
        L = self.lab('pb'); Lw = self.lab('pw')
        a(f"s_cmp_lg_u32 {s(S_IT)}, 4")
        a(f"s_cbranch_scc1 {Lw}")
        a(f"s_cmp_gt_u32 {s(S_U)}, 135")
        a(f"s_cbranch_scc1 {L}")
        a(f"s_and_b32 {s(S_T0)}, {s(S_U)}, 1")
        a(f"s_lshl_b32 {s(S_T0)}, {s(S_T0)}, 2")
        a(f"s_add_u32 {s(S_T0)}, {s(S_T0)}, {s(S_R)}")
        a(f"s_mul_i32 {s(S_T0)}, {s(S_T0)}, 68")
        a(f"s_lshr_b32 {s(S_T1)}, {s(S_U)}, 1")
        a(f"s_add_u32 {s(S_T0)}, {s(S_T0)}, {s(S_T1)}")
        a(f"s_mul_i32 {s(S_T0)}, {s(S_T0)}, 5120")
        a(f"s_mul_i32 {s(S_T1)}, {s(S_C)}, 3072")
        a(f"s_add_u32 {s(S_T0)}, {s(S_T0)}, {s(S_T1)}")
        a(f"s_add_u32 {s(S_T0)}, {s(S_T0)}, {WS_P2}")
        a(f"v_lshlrev_b32 v160, 4, v1")
        for c in range(3):
            if c == 2:
                a(f"s_cmp_lg_u32 {s(S_C)}, 0")
                a(f"s_cbranch_scc1 {L}")
            a(f"buffer_store_dwordx4 {v(PD+4*c,4)}, v160, {s(R_WS,4)}, {s(S_T0)} offen offset:{1024*c} sc1")
        a.label(L)
        ret(0)
        a.label(Lw)
        a("s_waitcnt vmcnt(0)")
        ret(0)

    def p1_loop(self, ty):
        a = self.a
        nad = 8 if ty == 0 else 9
        nb = a.nbar
        a.label(f"Lp1_{ty}")
        a("s_barrier")
        for x in self.p1_reads(ty, 0, self.XA, self.XB): a(x)
        a(f"s_branch Lret1_{ty}")
        a.label(f"Lp1h_{ty}")
        a("s_barrier")
        interleave(a, self.p1_mfmas(ty, self.YA, self.YB), self.p1_reads(ty, 0, self.XA, self.XB), 0.75, 3)
        a(f"s_bitcmp1_b32 {(1<<1)|(1<<3)}, {s(S_IT)}")
        a(f"s_cbranch_scc1 Lx1")
        a.label(f"Lret1_{ty}")
        upd = [f"v_add_u32 {v(self.VA+i)}, {s(S_DELTA)}, {v(self.VA+i)}" for i in range(nad)]
        rd = self.p1_reads(ty, 1, self.YA, self.YB)
        a(f"s_add_u32 {s(S_IT)}, {s(S_IT)}, 1")
        a(f"s_mul_i32 {s(S_T0)}, {s(S_IT)}, 11")
        a(f"s_lshr_b32 {s(S_T0)}, {s(S_T0)}, 5")
        a(f"s_mul_i32 {s(S_T0)}, {s(S_T0)}, 3")
        a(f"s_cmp_eq_u32 {s(S_T0)}, {s(S_IT)}")
        a(f"s_mov_b32 {s(S_DELTA)}, {SLOT}")
        a(f"s_cselect_b32 {s(S_DELTA)}, {hex(-2*SLOT & 0xffffffff)}, {s(S_DELTA)}")
        a("s_waitcnt lgkmcnt(0)")
        interleave(a, self.p1_mfmas(ty, self.XA, self.XB), rd + upd, 0.9, 3)
        a(f"s_bitcmp1_b32 {(1<<1)|(1<<3)|(1<<4)|(1<<5)}, {s(S_IT)}")
        a(f"s_cbranch_scc1 Lx0")
        a.label(f"Lret0_{ty}")
        a(f"s_cmp_lt_u32 {s(S_IT)}, 10")
        a("s_waitcnt lgkmcnt(0)")
        a(f"s_cbranch_scc1 Lp1h_{ty}")
        a("s_barrier")
        self.nb_loop = 11
        a.nbar = nb

    def gelu_tile(self, t, AB, CS, BR, d0, W):
        a = self.a
        B = W; X = W + 4
        a(f"v_lshlrev_b32 {v(B)}, 16, {v(BR)}")
        a(f"v_and_b32 {v(B+1)}, {s(S_K1)}, {v(BR)}")
        a(f"v_lshlrev_b32 {v(B+2)}, 16, {v(BR+1)}")
        a(f"v_and_b32 {v(B+3)}, {s(S_K1)}, {v(BR+1)}")
        ch = [(i, p) for i in range(2) for p in range(2)]
        ac = lambda i, p: self.acc(t, i) + 2 * p
        x = lambda i, p: X + 4 * i + 2 * p
        for i, p in ch: a(pk('fma', x(i,p), ('b', AB+4*i+2), CS+2*p, B+2*p))
        for i, p in ch: a(pk('fma', ac(i,p), ('b', AB+4*i), ac(i,p), x(i,p)))
        for i, p in ch: a(pk('mul', x(i,p), ac(i,p), ac(i,p)))
        for i, p in ch: a(pk('fma', x(i,p), x(i,p), ('s', S_K0), ('b', 166)))
        for i, p in ch: a(pk('mul', x(i,p), x(i,p), ac(i,p)))
        for k in range(8): a(f"v_exp_f32 {v(X+k)}, {v(X+k)}")
        for i, p in ch: a(pk('add', x(i,p), x(i,p), '1.0'))
        for k in range(8): a(f"v_rcp_f32 {v(X+k)}, {v(X+k)}")
        for i, p in ch: a(pk('mul', x(i,p), x(i,p), ac(i,p)))
        for i, p in ch: a(f"v_cvt_pk_bf16_f32 {v(d0(i)+p)}, {v(x(i,p))}, {v(x(i,p)+1)}")
    def gelu_consts(self):
        a = self.a
        c1 = -2 * math.sqrt(2 / math.pi) * LOG2E; c2 = c1 * 0.044715
        a(f"s_mov_b32 {s(S_K0)}, {lit(c2)}")
        a(f"s_mov_b32 {s(S_K1)}, 0xffff0000")
        a(f"v_mov_b32 v166, {lit(c1)}")

    def phi_tile(self, t, fa, fb, fcs, X, EPS, d0):
        a = self.a
        ch = [(i, p) for i in range(2) for p in range(2)]
        ac = lambda i, p: self.acc(t, i) + 2 * p
        x = lambda i, p: X + 4 * i + 2 * p
        for i, p in ch: a(pk('fma', x(i,p), fb(i,p), fcs(i,p), ('b', EPS)))
        for i, p in ch: a(pk('fma', ac(i,p), fa(i,p), ac(i,p), x(i,p)))
        for i, p in ch: a(pk('mul', x(i,p), ac(i,p), ('s', S_K0)))
        for k in range(8): a(f"v_exp_f32 {v(X+k)}, {v(X+k)} clamp")
        for i in range(2):
            for k in range(4): a(f"v_max_f32 {v(X+8+4*i+k)}, {v(EPS)}, {v(self.acc(t,i)+k)}")
        for i, p in ch: a(pk('add', x(i,p), x(i,p), x(i,p)+8))
        for i, p in ch: a(f"v_cvt_pk_bf16_f32 {v(d0(i)+p)}, {v(x(i,p))}, {v(x(i,p)+1)}")

    def h_addr(self, ks0_imm, ks_c_mul):
        a = self.a
        a(f"s_lshl_b32 {s(S_T0)}, {s(S_RB)}, 3")
        a(f"s_lshl_b32 {s(S_T1)}, {s(S_R)}, 1")
        a(f"s_add_u32 {s(S_T0)}, {s(S_T0)}, {s(S_T1)}")
        a(f"s_add_u32 {s(S_T0)}, {s(S_T0)}, {s(S_C)}")
        a(f"s_xor_b32 {s(S_T1)}, {s(S_T0)}, 1")
        a(f"s_mul_i32 {s(S_T2)}, {s(S_HG)}, 6")
        a(f"s_mul_i32 {s(S_T3)}, {s(S_C)}, {ks_c_mul}")
        a(f"s_add_u32 {s(S_T2)}, {s(S_T2)}, {s(S_T3)}")
        a(f"s_add_u32 {s(S_T2)}, {s(S_T2)}, {ks0_imm + WS_H2 // 1024}")
        for k, d in ((S_T0, S_OW), (S_T1, S_OM)):
            a(f"s_mul_i32 {s(k)}, {s(k)}, 48")
            a(f"s_add_u32 {s(k)}, {s(k)}, {s(S_T2)}")
            a(f"s_lshl_b32 {s(d)}, {s(k)}, 10")
        a(f"v_lshlrev_b32 v2, 4, v1")
    def h_store(self, p, TMP):
        for i in range(2):
            self.a(f"buffer_store_dwordx4 {v(TMP+p*8+i*4,4)}, v2, {s(R_WS,4)}, {s((S_OW, S_OM)[i])} offen offset:{1024*p} sc1")

    def epi_kv(self):
        a = self.a
        nb = a.nbar
        L15, G, TOK = self.L15, self.G, self.TOK
        self.stamp(2)
        a(f"s_lshl_b32 {s(S_T0)}, {s(S_R)}, 7")
        a(f"s_lshl_b32 {s(S_T1)}, {s(S_C)}, 6")
        a(f"s_add_u32 {s(S_T0)}, {s(S_T0)}, {s(S_T1)}")
        a(f"s_add_u32 {s(S_T0)}, {s(S_T0)}, {ST}")
        a(f"v_lshl_add_u32 v2, {v(G)}, 4, {s(S_T0)}")
        a(f"v_xor_b32 v3, 64, v2")
        a(f"s_mul_i32 {s(S_T0)}, {s(S_C)}, 448")
        a(f"s_add_u32 {s(S_T0)}, {s(S_T0)}, {ST_CS}")
        a(f"v_lshl_add_u32 v4, {v(L15)}, 2, {s(S_T0)}")
        a(f"v_lshl_add_u32 v5, {v(G)}, 4, {s(S_T0)}")
        a(f"v_xor_b32 v6, 64, {v(TOK)}")
        a(f"s_lshl_b32 {s(S_T0)}, {s(S_C)}, 6")
        a(f"s_add_u32 {s(S_T0)}, {s(S_T0)}, {B1L}")
        a(f"v_lshl_add_u32 v7, {v(G)}, 3, {s(S_T0)}")
        AB = 88; CS = 104; A2 = 114; CH = 80; BR = 72
        rd = [f"ds_read_b128 {v(AB,4)}, v2", f"ds_read_b128 {v(AB+4,4)}, v2 offset:512",
              f"ds_read_b128 {v(AB+8,4)}, v3", f"ds_read_b128 {v(AB+12,4)}, v3 offset:512"]
        rd += [f"ds_read_b32 {v(CS+2*t)}, v4 offset:{64*t}" for t in range(5)]
        rd += [f"ds_read_b32 {v(A2)}, {v(TOK)} offset:1024", f"ds_read_b32 {v(A2+2)}, {v(TOK)} offset:1536",
               f"ds_read_b32 {v(A2+4)}, v6 offset:1024", f"ds_read_b32 {v(A2+6)}, v6 offset:1536"]
        for j in range(2):
            rd += [f"ds_read_b128 {v(CH+4*j,4)}, v5 offset:{64*(5+j)}", f"ds_read_b64 {v(BR+2*j,2)}, v7 offset:{32*j}"]
        interleave(a, self.p1_mfmas(0, self.YA, self.YB), rd, 0.8, 2)
        EPS = 76
        a(f"v_mov_b32 {v(EPS)}, {lit(1e-6)}")
        a(f"v_mov_b32 {v(EPS+2)}, {lit(-1e-6)}")
        a(f"s_mov_b32 {s(S_K0)}, {lit(LOG2E)}")
        a("s_waitcnt lgkmcnt(0)")
        self.stamp(3)
        FR = 124; X = 148
        fa = lambda i, p: AB + 8*i + 2*p
        fb = lambda i, p: AB + 8*i + 4 + 2*p
        ch = [(i, p) for i in range(2) for p in range(2)]
        for t in (0, 1):
            self.phi_tile(t, fa, fb, lambda i, p: ('b', CS + 2*t), X, EPS, lambda i: FR + 4*t + 2*i)
        self.phi_tile(2, fa, fb, lambda i, p: ('b', CS + 4), X, EPS, lambda i: FR + 8 + 2*i)
        for i, p in ch: a(pk('add', X+4*i+2*p, self.acc(2,i)+2*p, ('b', EPS+2)))
        for i, p in ch: a(f"v_cvt_pk_bf16_f32 {v(FR+12+2*i+p)}, {v(X+4*i+2*p)}, {v(X+4*i+2*p+1)}")
        for t in (3, 4):
            for i, p in ch: a(pk('mul', X+4*i+2*p, fb(i,p), ('b', CS+2*t)))
            for i, p in ch: a(pk('fma', X+4*i+2*p, fa(i,p), self.acc(t,i)+2*p, X+4*i+2*p))
            for i, p in ch: a(f"v_cvt_pk_bf16_f32 {v(FR+4*(t+1)+2*i+p)}, {v(X+4*i+2*p)}, {v(X+4*i+2*p+1)}")
        a(f"v_cmp_gt_u32 vcc, 8, {v(L15)}")
        for r in range(4): a(f"v_cndmask_b32 {v(FR+12+r)}, {v(FR+12+r)}, {v(self.ONES)}, vcc")
        self.stamp(4)
        pairs = [(0, 0), (0, 1), (1, 0), (1, 1), (1, 2), (2, 0), (2, 1), (2, 2)]
        KVD = 12
        a(f"s_mul_i32 {s(S_T0)}, {s(S_R)}, 6720")
        a(f"s_mul_i32 {s(S_T1)}, {s(S_C)}, 3360")
        a(f"s_add_u32 {s(S_T0)}, {s(S_T0)}, {s(S_T1)}")
        a(f"s_add_u32 {s(S_T0)}, {s(S_T0)}, {SCR}")
        for j, (td, te) in enumerate(pairs):
            a(f"v_mfma_f32_16x16x32_bf16 {v(KVD+4*j,4)}, {v(FR+4*td,4)}, {v(FR+12+4*te,4)}, 0")
        a(f"v_mul_u32_u24 v2, 336, {v(G)}")
        a(f"v_add_u32 v2, {s(S_T0)}, v2")
        a(f"v_lshl_add_u32 v3, {v(L15)}, 4, v2")
        a(f"v_add_u32 v4, {-128 & 0xffffffff}, v3")
        a(f"v_add_u32 v5, {(4*336 - 128 - 320) & 0xffffffff}, v3")
        a(f"v_add_u32 v6, {4*336 - 128}, v3")
        a(f"v_cmp_eq_u32 vcc, 0, {v(G)}")
        a(f"v_cndmask_b32 v5, v5, v6, vcc")
        a(f"v_add_u32 v6, {8*336 - 128 - 320}, v3")
        a(f"v_cmp_eq_u32 vcc, 0, {v(L15)}")
        for td in range(3):
            a(f"v_add_u32 v10, {4*td*336 + 320}, v2")
            a(f"v_cndmask_b32 {v(7+td)}, {v(4+td)}, v10, vcc")
        def valid(td, te, l):
            col = l & 15; g = l >> 4; dqg = 4 * td + g
            if dqg > 9: return False
            hh = dqg // 5
            if te == 0:
                if col == 0: return True
                if col < 8: return False
            eg = col - 8 + 16 * te
            return eg // 20 == hh
        tot = 0
        for j, (td, te) in enumerate(pairs):
            m = sum(1 << l for l in range(64) if valid(td, te, l)); tot += bin(m).count('1')
            exec_mask(a, m)
            a(f"ds_write_b128 {v(7+td if te == 0 else 4+td)}, {v(KVD+4*j,4)} offset:{256*te}")
        assert tot == 210
        a("s_mov_b64 exec, -1")
        a(f"v_lshlrev_b32 v3, 4, v0")
        a(f"v_add_u32 v4, {SCR}, v3")
        a(f"v_mov_b32 v5, {hex(OOB)}")
        a(f"v_cmp_gt_u32 vcc, 420, v0")
        a(f"v_cndmask_b32 v3, v5, v3, vcc")
        self.h_addr(0, 1)
        a(f"s_lshl_b32 {s(S_T0)}, {s(S_HG)}, 4")
        a(f"s_add_u32 {s(S_T0)}, {s(S_T0)}, {s(S_RB)}")
        a(f"s_mul_i32 {s(S_T0)}, {s(S_T0)}, {KP_STRIDE}")
        a(f"s_add_u32 {s(S_T0)}, {s(S_T0)}, {WS_KP}")
        self.gelu_consts()
        a("s_waitcnt lgkmcnt(0)")
        self.stamp(5)
        a("s_barrier")
        for r in range(4): a(f"ds_read_b128 {v(12+4*r,4)}, v4 offset:{6720*r}")
        a("s_waitcnt lgkmcnt(0)")
        for p in range(2): a(pk('add', 12+2*p, 12+2*p, 16+2*p))
        for p in range(2): a(pk('add', 20+2*p, 20+2*p, 24+2*p))
        for p in range(2): a(pk('add', 12+2*p, 12+2*p, 20+2*p))
        a(f"buffer_store_dwordx4 v[12:15], v3, {s(R_WS,4)}, {s(S_T0)} offen sc1")
        self.stamp(7)
        TMP = 124
        for j in range(2):
            self.gelu_tile(5 + j, A2, CH + 4*j, BR + 2*j, lambda i: TMP + 4*i + 2*j, 148)
        self.stamp(8)
        a("s_waitcnt vmcnt(0)")
        self.h_store(0, TMP)
        self.stamp(9)
        a("s_barrier")
        self.p2_pre_setup()
        a("s_waitcnt vmcnt(0)")
        self.stamp(11)
        a("s_barrier")
        a("s_barrier")
        self.p2_pre_loads()
        self.nb_c_kv = self.nb_loop + a.nbar - nb
        a.nbar = nb
        a("s_branch Lp2")

    def epi_q(self):
        a = self.a
        nb = a.nbar
        L15, G, TOK = self.L15, self.G, self.TOK
        self.stamp(2)
        a(f"s_mul_i32 {s(S_T0)}, {s(S_C)}, 448")
        a(f"s_add_u32 {s(S_T0)}, {s(S_T0)}, {ST_CS}")
        a(f"v_lshl_add_u32 v5, {v(G)}, 4, {s(S_T0)}")
        a(f"v_xor_b32 v6, 64, {v(TOK)}")
        a(f"s_lshl_b32 {s(S_T0)}, {s(S_C)}, 7")
        a(f"s_add_u32 {s(S_T0)}, {s(S_T0)}, {B1L}")
        a(f"v_lshl_add_u32 v7, {v(G)}, 3, {s(S_T0)}")
        A2 = 68; A1 = 112; BR = 76; CS = 84
        rd = [f"ds_read_b32 {v(A2)}, {v(TOK)} offset:1024", f"ds_read_b32 {v(A2+2)}, {v(TOK)} offset:1536",
              f"ds_read_b32 {v(A2+4)}, v6 offset:1024", f"ds_read_b32 {v(A2+6)}, v6 offset:1536"]
        for j in range(4):
            rd += [f"ds_read_b128 {v(CS+4*(3+j),4)}, v5 offset:{64*(3+j)}", f"ds_read_b64 {v(BR+2*j,2)}, v7 offset:{32*j}"]
        rd += [f"ds_read_b32 {v(A1)}, {v(TOK)}", f"ds_read_b32 {v(A1+2)}, {v(TOK)} offset:512",
               f"ds_read_b32 {v(A1+4)}, v6", f"ds_read_b32 {v(A1+6)}, v6 offset:512"]
        rd += [f"ds_read_b128 {v(CS+4*t,4)}, v5 offset:{64*t}" for t in range(3)]
        mf = self.p1_mfmas(1, self.YA, self.YB)
        mf = mf[6:] + mf[:6]
        interleave(a, mf, rd, 0.8, 2)
        self.h_addr(2, 2)
        self.gelu_consts()
        a(f"v_lshlrev_b32 v3, 4, v0")
        a(f"v_add_u32 v4, {KVT}, v3")
        for k in range(4): a(f"v_mov_b32 {v(120+k)}, 0")
        a("s_waitcnt lgkmcnt(0)")
        a(f"ds_write_b128 v4, v[120:123]")
        self.stamp(3)
        TMP = 124
        a("s_setprio 1")
        for j in range(4):
            self.gelu_tile(3 + j, A2, CS + 4*(3+j), BR + 2*j, lambda i: TMP + (j >> 1)*8 + 4*i + 2*(j & 1), 140)
            if j & 1: self.h_store(j >> 1, TMP)
        a("s_setprio 0")
        self.stamp(5)
        PQ = 152; EPS = 76; X = 112
        a(f"v_mov_b32 {v(EPS)}, {lit(1e-6)}")
        a(f"s_mov_b32 {s(S_K0)}, {lit(LOG2E)}")
        X = 96
        for t in range(3):
            self.phi_tile(t, lambda i, p: ('b', A1+4*i), lambda i, p: ('b', A1+4*i+2), lambda i, p: CS+4*t+2*p, X, EPS,
                          (lambda i: PQ + 4*i + 2*t) if t < 2 else (lambda i: PQ + 8 + 2*i))
        self.stamp(6)
        a(f"v_cmp_le_u32 vcc, 210, v0")
        a(f"v_cndmask_b32 v84, 0, 1, vcc")
        a(f"v_mov_b32 v86, -210")
        a(f"v_mad_i32_i24 v85, v84, v86, v0")
        a(f"v_mul_u32_u24 v86, 3121, v85")
        a(f"v_lshrrev_b32 v86, 16, v86")
        a(f"v_mov_b32 v88, -21")
        a(f"v_mad_i32_i24 v87, v86, v88, v85")
        a(f"v_cmp_le_u32 vcc, 5, v86")
        a(f"v_cndmask_b32 v88, 0, 1, vcc")
        a(f"v_lshlrev_b32 v89, 1, v88")
        a(f"v_subrev_u32 v90, 16, v87")
        a(f"v_lshlrev_b32 v90, 2, v90")
        a(f"v_mad_u32_u24 v90, v88, 3, v90")
        a(f"v_add_u32 v91, 1, v88")
        a(f"v_cmp_eq_u32 {s(S_MASK,2)}, 20, v87")
        a(f"v_cndmask_b32 v90, v90, v91, {s(S_MASK,2)}")
        a(f"v_cmp_gt_u32 vcc, 16, v87")
        a(f"v_cndmask_b32 v90, v90, v87, vcc")
        a(f"v_cndmask_b32 v89, 1, v89, vcc")
        a(f"v_and_b32 v91, 3, v86")
        a(f"v_lshl_add_u32 v90, v91, 4, v90")
        a(f"v_lshlrev_b32 v91, 10, v89")
        a(f"v_lshl_add_u32 v91, v90, 4, v91")
        a(f"v_and_b32 v92, 4, v86")
        a(f"v_lshl_add_u32 v91, v92, 1, v91")
        a(f"v_lshrrev_b32 v92, 1, v89")
        a(f"v_lshlrev_b32 v92, 9, v92")
        a(f"v_lshl_add_u32 v92, v90, 3, v92")
        a(f"v_add_u32 v92, 3072, v92")
        a(f"v_cmp_le_u32 vcc, 8, v86")
        a(f"v_cndmask_b32 v91, v91, v92, vcc")
        a(f"v_cndmask_b32 v149, 64, 32, vcc")
        a(f"v_lshl_add_u32 v91, v84, 12, v91")
        a(f"v_add_u32 v148, {KVT}, v91")
        a(f"v_mov_b32 v86, {hex(OOB)}")
        a(f"v_cmp_gt_u32 vcc, 420, v0")
        a(f"v_cndmask_b32 v150, v86, v3, vcc")
        a(f"s_and_b64 {s(S_MASK,2)}, {s(S_MASK,2)}, vcc")
        a(f"s_mov_b64 {s(S_DEST,2)}, vcc")
        self.p2_pre_setup()
        a(f"s_mul_i32 {s(S_T0)}, {s(S_HG)}, {16*KP_STRIDE}")
        a(f"s_add_u32 {s(S_T0)}, {s(S_T0)}, {WS_KP}")
        self.stamp(7)
        a("s_waitcnt vmcnt(0) lgkmcnt(0)")
        self.stamp(8)
        a("s_barrier")
        a(f"s_lshl_b32 {s(S_T1)}, {s(S_C)}, 12")
        a(f"s_add_u32 {s(S_T1)}, {s(S_T1)}, {KVT}")
        a(f"v_lshl_add_u32 v140, v1, 4, {s(S_T1)}")
        a(f"v_lshl_add_u32 v141, v1, 3, {s(S_T1)}")
        a(f"s_lshl_b32 {s(S_T1)}, {s(S_R)}, 5")
        a(f"s_lshl_b32 {s(S_T2)}, {s(S_C)}, 4")
        a(f"s_add_u32 {s(S_T1)}, {s(S_T1)}, {s(S_T2)}")
        a(f"v_add_u32 v142, {s(S_T1)}, {v(L15)}")
        a(f"v_xor_b32 v143, 16, v142")
        a(f"s_mul_i32 {s(S_T1)}, {s(S_C)}, 80")
        a(f"s_add_u32 {s(S_T1)}, {s(S_T1)}, {OEX}")
        for i in range(2):
            a(f"v_mul_u32_u24 {v(142+i)}, 160, {v(142+i)}")
            a(f"v_add_u32 {v(142+i)}, {s(S_T1)}, {v(142+i)}")
            a(f"v_lshl_add_u32 {v(144+i)}, {v(G)}, 1, {v(142+i)}")
            a(f"v_lshl_add_u32 {v(142+i)}, {v(G)}, 3, {v(142+i)}")
        a("s_barrier")
        self.stamp(9)
        for k in range(16):
            a(f"buffer_load_dwordx4 {v(12+4*k,4)}, v150, {s(R_WS,4)}, {s(S_T0)} offen sc1")
            if k < 15: a(f"s_add_u32 {s(S_T0)}, {s(S_T0)}, {KP_STRIDE}")
        self.stamp(10)
        for k in range(1, 16):
            a(f"s_waitcnt vmcnt({15-k})")
            for p in range(2): a(pk('add', 12+2*p, 12+2*p, 12+4*k+2*p))
        self.stamp(12)
        a(f"v_cvt_pk_bf16_f32 v12, v12, v13")
        a(f"v_cvt_pk_bf16_f32 v13, v14, v15")
        Lz = self.lab('kz')
        a(f"s_mov_b64 exec, {s(S_DEST,2)}")
        a(f"s_cbranch_execz {Lz}")
        a(f"ds_write_b64 v148, v[12:13]")
        a(f"s_mov_b64 exec, {s(S_MASK,2)}")
        a(f"s_cbranch_execz {Lz}")
        for k in range(3):
            a(f"v_add_u32 v148, v148, v149")
            a(f"ds_write_b64 v148, v[12:13]")
        a.label(Lz)
        a("s_mov_b64 exec, -1")
        a("s_waitcnt lgkmcnt(0)")
        a("s_barrier")
        F = 12
        for k in range(3): a(f"ds_read_b128 {v(F+4*k,4)}, v140 offset:{1024*k}")
        a(f"ds_read_b64 {v(F+12,2)}, v141 offset:3072")
        a(f"ds_read_b64 {v(F+14,2)}, v141 offset:3584")
        self.p2_pre_loads()
        a("s_waitcnt lgkmcnt(0)")
        U = 32
        for i in range(2):
            for k in (1, 2, 0):
                a(f"v_mfma_f32_16x16x32_bf16 {v(U+12*i+4*k,4)}, {v(F+4*k,4)}, {v(PQ+4*i,4)}, 0")
        for i in range(2):
            for k in (1, 2):
                a(f"v_mfma_f32_16x16x16_bf16 {v(U+12*i+4*k,4)}, {v(F+12+2*(k-1),2)}, {v(PQ+8+2*i,2)}, {v(U+12*i+4*k,4)}")
        a(f"v_mov_b32 v28, {lit(1e-6)}")
        for i in range(2):
            u = U + 12 * i
            a(f"v_add_f32 {v(u+5)}, v28, {v(u+5)}")
            a(f"v_add_f32 {v(u+6)}, v28, {v(u+6)}")
            a(f"v_rcp_f32 {v(56+2*i)}, {v(u+5)}")
            a(f"v_rcp_f32 {v(u+6)}, {v(u+6)}")
        for i in range(2):
            u = U + 12 * i
            for p in range(2): a(pk('mul', u+2*p, u+2*p, ('b', 56+2*i)))
            for p in range(2): a(pk('mul', u+8+2*p, u+8+2*p, ('b', u+6)))
            a(f"v_mul_f32 {v(u+4)}, {v(u+4)}, {v(56+2*i)}")
            a(f"v_mul_f32 {v(u+7)}, {v(u+7)}, {v(u+6)}")
            a(f"v_cvt_pk_bf16_f32 {v(u)}, {v(u)}, {v(u+1)}")
            a(f"v_cvt_pk_bf16_f32 {v(u+1)}, {v(u+2)}, {v(u+3)}")
            a(f"v_cvt_pk_bf16_f32 {v(u+8)}, {v(u+8)}, {v(u+9)}")
            a(f"v_cvt_pk_bf16_f32 {v(u+9)}, {v(u+10)}, {v(u+11)}")
            a(f"v_cvt_pk_bf16_f32 {v(u+4)}, {v(u+4)}, {v(u+7)}")
            a(f"ds_write_b64 {v(142+i)}, {v(u,2)}")
            a(f"ds_write_b64 {v(142+i)}, {v(u+8,2)} offset:40")
            a(f"ds_write_b16 {v(144+i)}, {v(u+4)} offset:32")
            a(f"ds_write_b16_d16_hi {v(144+i)}, {v(u+4)} offset:72")
        a("s_waitcnt lgkmcnt(0)")
        self.stamp(13)
        a("s_barrier")
        self.nb_c_q = self.nb_loop + a.nbar - nb
        a.nbar = nb

    AM = 12; AS = 32; P2X = 52; P2Y = 72; AR = 92; OR = 124
    def p2_pre_setup(self):
        a = self.a
        a(f"s_lshl_b32 {s(S_T2)}, {s(S_TT)}, 2")
        a(f"s_add_u32 {s(S_T2)}, {s(S_T2)}, {s(S_R)}")
        a(f"s_mul_i32 {s(S_OH)}, {s(S_T2)}, {48*1024}")
        a(f"s_mul_i32 {s(S_T3)}, {s(S_C)}, {24*1024}")
        a(f"s_add_u32 {s(S_OH)}, {s(S_OH)}, {s(S_T3)}")
        a(f"s_add_u32 {s(S_OH)}, {s(S_OH)}, {WS_H2}")
        a(f"s_mul_i32 {s(S_DELTA)}, {s(S_T2)}, {8*2560}")
        a(f"s_mul_i32 {s(S_T3)}, {s(S_C)}, {4*2560}")
        a(f"s_add_u32 {s(S_DELTA)}, {s(S_DELTA)}, {s(S_T3)}")
        a(f"s_add_u32 {s(S_DELTA)}, {s(S_DELTA)}, {WS_O2}")
        self.rot2(S_KC)
    def hload(self, j):
        a = self.a
        if j % 2 == 0:
            a(f"s_lshl_b32 {s(S_OA)}, {s(S_KC)}, 11")
            a(f"s_add_u32 {s(S_OA)}, {s(S_OA)}, {s(S_OH)}")
            a(f"s_add_u32 {s(S_KC)}, {s(S_KC)}, 1")
            a(f"s_cmp_eq_u32 {s(S_KC)}, 12")
            a(f"s_cselect_b32 {s(S_KC)}, 0, {s(S_KC)}")
        a(f"buffer_load_dwordx4 {v(self.AR+4*(j%8),4)}, v2, {s(R_WS,4)}, {s(S_OA)} offen offset:{1024*(j%2)} sc1")
    def p2_pre_loads(self):
        for j in range(8): self.hload(j)
        self.a(f"v_lshlrev_b32 v3, 3, v1")

    def phase2(self):
        a = self.a
        a.label('Lp2')
        a(f"s_cmp_lg_u32 {s(S_C)}, 0")
        a(f"s_cbranch_scc1 Lp2_1")
        for kap in range(2): self.phase2k(kap)

    def phase2k(self, kap):
        a = self.a; cfg = self.cfg
        nb = a.nbar
        a.label(f"Lp2_{kap}")
        AM, AS, XB, YB, AR, OR = self.AM, self.AS, self.P2X, self.P2Y, self.AR, self.OR
        VB = 4
        M = "v_mfma_f32_16x16x32_bf16"
        a(f"v_add_u32 v4, {kap*10240}, v2")
        a(f"v_add_u32 v5, {SLOT + kap*10240}, v2")
        a(f"v_add_u32 v6, {2*SLOT + kap*10240}, v2")
        q = [('A', j) for j in range(8)]
        def hload(j): self.hload(j); q.append(('A', j))
        def oloads():
            for P in range(2):
                for hh in range(2):
                    a(f"s_add_u32 {s(S_T0+hh)}, {s(S_DELTA)}, {(2*P+hh)*2560}")
                for i5 in range(4):
                    a(f"buffer_load_dwordx4 {v(OR+4*(5*P+i5),4)}, v2, {s(R_WS,4)}, {s(S_T0+(i5>>1))} offen offset:{1024*(i5&1)} sc1")
                    q.append(('A', 24 + 5*P + i5))
                for hh in range(2):
                    a(f"buffer_load_dwordx2 {v(OR+4*(5*P+4)+2*hh,2)}, v3, {s(R_WS,4)}, {s(S_T0+hh)} offen offset:2048 sc1")
                    q.append(('A', 24 + 5*P + 4))
        def wait(tag):
            idx = [k for k, t in enumerate(q) if t == tag]
            if not idx: return
            n = sum(1 for t in q[idx[-1]+1:] if t[0] != 'S')
            a(f"s_waitcnt vmcnt({n})")
            del q[:idx[-1] + 1]
        def areg(j): return AR + 4 * (j % 8) if j < 24 else OR + 4 * (j - 24)
        def reads(j, B):
            i = j // 2; base = RING[i % 6]; vb = VB + base // SLOT; off = base % SLOT + (j & 1) * 5120
            return [f"ds_read_b128 {v(B+4*c,4)}, {v(vb)} offset:{off + 1024*c}" for c in range(5)]
        def mfmas(j, B):
            ac = AM if j < 24 else AS
            first = j in (0, 24)
            return [f"{M} {v(ac+4*c,4)}, {v(B+4*c,4)}, {v(areg(j),4)}, {'0' if first else v(ac+4*c,4)}" for c in range(5)]
        own = [0, 1, 2] if kap == 0 else [3, 4]
        give = [c for c in range(5) if c not in own]
        a(f"s_mul_i32 {s(S_T0)}, {s(S_R)}, 5120")
        a(f"s_add_u32 {s(S_T0)}, {s(S_T0)}, {EXB}")
        a(f"v_add_u32 v7, {s(S_T0)}, v2")
        a(f"s_lshl_b32 {s(S_T0)}, {s(S_R)}, 4")
        a(f"v_add_u32 v8, {s(S_T0)}, {v(self.L15)}")
        a(f"v_mul_u32_u24 v8, 160, v8")
        a(f"v_lshl_add_u32 v8, {v(self.G)}, 3, v8")
        a(f"v_add_u32 v8, {XT}, v8")
        a(f"v_lshlrev_b32 v9, 3, {v(self.G)}")
        a(f"v_add_u32 v9, {B2L}, v9")
        a(f"s_mov_b32 {s(S_K1)}, 0xffff0000")
        a(f"s_mov_b32 {s(S_K0)}, {lit(-LOG2E)}")
        G = AR
        for i in range(17):
            j0 = 2 * i
            a("s_barrier")
            self.stamp(20 + i)
            if i == cfg.ko: oloads()
            rd = reads(j0, XB)
            if i > 0:
                wait(('A', j0 - 1))
                interleave(a, mfmas(j0 - 1, YB), rd, 0.6, 2)
                if j0 - 1 + 8 < 24: hload(j0 - 1 + 8)
            else:
                for x in rd: a(x)
            if i == 12:
                for c in give: a(f"ds_write_b128 v7, {v(AM+4*c,4)} offset:{1024*c}")
            if i == 13:
                for k, c in enumerate(own):
                    a(f"ds_read_b128 {v(G+4*k,4)}, v7 offset:{1024*c}")
                    a(f"ds_read_b64 {v(G+12+2*k,2)}, v9 offset:{32*c}")
            wait(('A', j0))
            a("s_waitcnt lgkmcnt(0)")
            interleave(a, mfmas(j0, XB), reads(j0 + 1, YB), 0.6, 2)
            if j0 + 8 < 24: hload(j0 + 8)
            if i == 13:
                X = G + 20
                for k, c in enumerate(own):
                    g = G + 4 * k; b = G + 12 + 2 * k; x = X + 4 * k
                    a(f"v_lshlrev_b32 {v(x)}, 16, {v(b)}")
                    a(f"v_and_b32 {v(x+1)}, {s(S_K1)}, {v(b)}")
                    a(f"v_lshlrev_b32 {v(x+2)}, 16, {v(b+1)}")
                    a(f"v_and_b32 {v(x+3)}, {s(S_K1)}, {v(b+1)}")
                prs = [(k, c, p) for k, c in enumerate(own) for p in range(2)]
                for k, c, p in prs: a(pk('add', G+4*k+2*p, G+4*k+2*p, AM+4*c+2*p))
                for k, c, p in prs: a(pk('add', G+4*k+2*p, G+4*k+2*p, X+4*k+2*p))
                for k, c, p in prs: a(pk('mul', X+4*k+2*p, G+4*k+2*p, ('s', S_K0)))
                for k in range(4*len(own)): a(f"v_exp_f32 {v(X+k)}, {v(X+k)}")
                for k, c, p in prs: a(pk('add', X+4*k+2*p, X+4*k+2*p, '1.0'))
                for k in range(4*len(own)): a(f"v_rcp_f32 {v(X+k)}, {v(X+k)}")
                for k, c, p in prs: a(pk('mul', G+4*k+2*p, G+4*k+2*p, X+4*k+2*p))
            if i == 14:
                for k, c in enumerate(own): a(f"ds_read_b64 {v(G+12+2*k,2)}, v8 offset:{32*c}")
            if i == 15:
                for k, c in enumerate(own):
                    b = G + 12 + 2 * k
                    a(f"v_lshlrev_b32 {v(AM+4*k)}, 16, {v(b)}")
                    a(f"v_and_b32 {v(AM+4*k+1)}, {s(S_K1)}, {v(b)}")
                    a(f"v_lshlrev_b32 {v(AM+4*k+2)}, 16, {v(b+1)}")
                    a(f"v_and_b32 {v(AM+4*k+3)}, {s(S_K1)}, {v(b+1)}")
            a("s_waitcnt lgkmcnt(0)")
        wait(('A', 33))
        mf = mfmas(33, YB)
        for c in give + own: a(mf[c])
        for c in give: a(f"ds_write_b128 v7, {v(AS+4*c,4)} offset:{1024*c}")
        X = AM
        a("s_waitcnt lgkmcnt(0)")
        a("s_barrier")
        for k, c in enumerate(own): a(f"ds_read_b128 {v(XB+4*k,4)}, v7 offset:{1024*c}")
        a("s_waitcnt lgkmcnt(0)")
        prs = [(k, c, p) for k, c in enumerate(own) for p in range(2)]
        for k, c, p in prs: a(pk('add', XB+4*k+2*p, XB+4*k+2*p, AS+4*c+2*p))
        for k, c, p in prs: a(pk('fma', X+4*k+2*p, XB+4*k+2*p, G+4*k+2*p, X+4*k+2*p))
        for k, c, p in prs: a(f"v_cvt_pk_bf16_f32 {v(XB+2*k+p)}, {v(X+4*k+2*p)}, {v(X+4*k+2*p+1)}")
        for k, c in enumerate(own): a(f"ds_write_b64 v8, {v(XB+2*k,2)} offset:{32*c}")
        a("s_waitcnt lgkmcnt(0)")
        a("s_barrier")
        self.nb_c_p2 = a.nbar - nb
        a.nbar = nb
        if kap == 0: a("s_branch Lfinal_store")

    def build(self):
        a = self.a
        self.entry()
        self.loader()
        self.compute_setup()
        self.duty(0, self.XA, self.XB)
        self.duty(1, self.YA, self.YB)
        self.pack_blocks()
        self.p1_loop(0); self.epi_kv()
        self.p1_loop(1); self.epi_q()
        self.phase2()
        self.final_store()
        assert self.nb_ld_kv == self.nb_c_kv, (self.nb_ld_kv, self.nb_c_kv)
        assert self.nb_ld_q == self.nb_c_q, (self.nb_ld_q, self.nb_c_q)
        assert self.nb_ld_p2 == self.nb_c_p2, (self.nb_ld_p2, self.nb_c_p2)
        body = a.finish()
        head = open('recurrent_scan__linear_attn_block__mixer_channel_mlp__prompt.s.ref').read().split('; Override launch')[0]
        txt = head + f"; @launch grid=(256,1,1) block=(768,1,1) lds={LDS_TOTAL}\n"
        txt += f'.amdgcn_target "amdgcn-amd-amdhsa--gfx950"\n.text\n.globl {NAME}\n.p2align 8\n.type {NAME},@function\n{NAME}:\n'
        txt += body
        txt += f""".section .rodata,"a"
.p2align 6
.amdhsa_kernel {NAME}
  .amdhsa_next_free_vgpr 168
  .amdhsa_next_free_sgpr 102
  .amdhsa_accum_offset 168
  .amdhsa_group_segment_fixed_size 0
  .amdhsa_kernarg_size 88
  .amdhsa_user_sgpr_count 2
  .amdhsa_user_sgpr_kernarg_segment_ptr 1
  .amdhsa_system_sgpr_workgroup_id_x 1
.end_amdhsa_kernel
"""
        return txt

def make(**kw):
    cfg = Cfg()
    for k, x in kw.items(): setattr(cfg, k, x)
    return Gen(cfg).build()

if __name__ == '__main__':
    out = sys.argv[1] if len(sys.argv) > 1 else 'recurrent_scan__linear_attn_block__mixer_channel_mlp__prompt.s'
    kw = {}
    for x in sys.argv[2:]:
        k, val = x.split('='); kw[k] = eval(val)
    open(out, 'w').write(make(**kw))
```

```python
import sys, math, struct
from asmlib import *

NAME = 'recurrent_scan__linear_attn_block__mixer_channel_mlp__prompt_kernel'

class Cfg:
    n1 = 6
    diag = False
    ko = 10
    rot2 = (3, 0)
    prio = 0
    dbgt = False

SLOT = 45056
SCR = 3 * SLOT
LDS_TOTAL = 163840
ST = SLOT + 40960
ST_CS = ST + 2048
B1L = SCR + 28160
KVT = SCR
OEX = SCR + 8192
XT = SCR
B2L = SCR + 10240
RING = [SLOT, SLOT + 20480, 2 * SLOT, 2 * SLOT + 20480, 0, 20480]
EXB = RING[5]
WS_FH = 4096; WS_FK = 6144; WS_FO = 7168; WS_FP = 9216; WS_FS = 10240
WS_TS = 0x10000
WS_RP = 0x20000; WS_CP = 0x48000
WS_KP = 0x80000; KP_STRIDE = 6784
WS_P2 = 0x200000; WS_O2 = 0x500000; WS_H2 = 0x800000
WS_TS2 = 0xE00000
WS_SIZE = 0xF00000
OOB = 0x40000000
P_X, P_W, P_WO, P_W1, P_B1, P_W2, P_B2, P_OUT, P_DBG, P_WS = 4, 6, 8, 12, 14, 16, 18, 20, 22, 24
S_S0, S_COL = 26, 27
R_X, R_W, R_W1, R_MID, R_WS, R_PK, R_OUT, R_BI = 28, 32, 36, 40, 44, 48, 52, 56
S_WID, S_RB, S_HG, S_TY, S_TT, S_N, S_XCD, S_IDX, S_R, S_C = 60, 61, 62, 63, 64, 65, 66, 67, 68, 69
S_T0, S_T1, S_T2, S_T3 = 70, 71, 72, 73
S_KC, S_OA, S_OW, S_OM, S_OH = 74, 75, 76, 77, 78
S_NONCE, S_CNT, S_U, S_DELTA, S_IT = 79, 80, 81, 82, 83
S_MASK = 84
S_DEST = 86
S_PIDX = 97
S_TS = 98
S_PKO, S_PKS = 100, 101
S_L = S_R
S_K0, S_K1 = 100, 101
VDIAG = 11

LOG2E = 1.4426950408889634
def f2u(x): return struct.unpack('<I', struct.pack('<f', x))[0]
def lit(x): return hex(f2u(x))

def srd(a, r, p, size):
    a(f"s_mov_b32 {s(r)}, {s(p)}")
    a(f"s_and_b32 {s(r+1)}, {s(p+1)}, 0xffff")
    a(f"s_mov_b32 {s(r+2)}, {hex(size)}")
    a(f"s_mov_b32 {s(r+3)}, 0x20000")

def interleave(a, main, fill, last_frac=0.7, first=0):
    n = len(main); m = len(fill); k = 0
    lim = max(1, int(n * last_frac))
    while k < min(first, m): a(fill[k]); k += 1
    for i, x in enumerate(main):
        a(x)
        tgt = first + math.ceil((m - first) * min(i + 1, lim) / lim) if m > first else m
        while k < tgt: a(fill[k]); k += 1
    while k < m: a(fill[k]); k += 1

def pk(op, d, *src):
    ops = []; lo = []; hi = []
    for x in src:
        if isinstance(x, int): assert x % 2 == 0; ops.append(v(x, 2)); lo.append(0); hi.append(1)
        elif isinstance(x, str): ops.append(x); lo.append(0); hi.append(0)
        elif x[0] == 'b': assert x[1] % 2 == 0; ops.append(v(x[1], 2)); lo.append(0); hi.append(0)
        elif x[0] == 's': assert x[1] % 2 == 0; ops.append(s(x[1], 2)); lo.append(0); hi.append(0)
    assert d % 2 == 0
    return f"v_pk_{op}_f32 {v(d,2)}, {', '.join(ops)} op_sel:[{','.join(map(str,lo))}] op_sel_hi:[{','.join(map(str,hi))}]"

def exec_mask(a, m):
    a(f"s_mov_b32 exec_lo, {hex(m & 0xffffffff)}")
    a(f"s_mov_b32 exec_hi, {hex(m >> 32)}")
DIAGMASK = sum(1 << l for l in range(64) if ((l & 15) >> 2) == (l >> 4))

class Gen:
    def __init__(self, cfg):
        self.cfg = cfg
        self.a = Asm()
        self.uid = 0
    def lab(self, p):
        self.uid += 1; return f"L{p}_{self.uid}"

    def stamp(self, i):
        if not self.cfg.diag: return
        a = self.a
        a("s_waitcnt lgkmcnt(0)")
        a(f"s_mov_b32 m0, {s(S_PIDX)}")
        a("s_nop 0")
        a(f"v_writelane_b32 {v(VDIAG)}, {s(S_TS)}, m0")
        a(f"s_memtime {s(S_TS,2)}")
        a(f"s_mov_b32 {s(S_PIDX)}, {i}")

    def dbgt(self, slot, neg=False):
        if not self.cfg.dbgt: return
        a = self.a
        L = self.lab('dt')
        a(f"s_cmp_lg_u32 {s(S_WID)}, 3")
        a(f"s_cbranch_scc1 {L}")
        a(f"s_memrealtime {s(S_TS,2)}")
        a("s_waitcnt lgkmcnt(0)")
        if neg: a(f"s_not_b32 {s(S_TS)}, {s(S_TS)}")
        a(f"v_mov_b32 v70, {s(S_TS)}")
        a(f"v_mov_b32 v71, {4*slot}")
        a("s_mov_b64 exec, 1")
        a(f"global_atomic_umax v71, v70, {s(P_DBG,2)} sc1")
        a("s_mov_b64 exec, -1")
        a.label(L)

    def entry(self):
        a = self.a; cfg = self.cfg
        a(f"s_cmp_ge_u32 s2, 256")
        a(f"s_cbranch_scc1 Lend")
        a(f"s_load_dwordx16 s[4:19], s[0:1], 0")
        a(f"s_load_dwordx4 s[20:23], s[0:1], 64")
        a(f"s_load_dwordx2 s[24:25], s[0:1], 80")
        if cfg.diag:
            a(f"s_memrealtime {s(S_TS,2)}")
            a(f"s_mov_b32 {s(S_PIDX)}, 0")
            a(f"v_mov_b32 {v(VDIAG)}, 0")
        a(f"v_lshrrev_b32 v2, 6, v0")
        a(f"v_and_b32 v1, 63, v0")
        a(f"v_readfirstlane_b32 {s(S_WID)}, v2")
        a(f"s_and_b32 {s(S_XCD)}, s2, 7")
        a(f"s_lshr_b32 {s(S_IDX)}, s2, 3")
        a(f"s_lshr_b32 {s(S_T0)}, {s(S_XCD)}, 1")
        a(f"s_lshl_b32 {s(S_T0)}, {s(S_T0)}, 2")
        a(f"s_and_b32 {s(S_T1)}, {s(S_IDX)}, 3")
        a(f"s_add_u32 {s(S_RB)}, {s(S_T0)}, {s(S_T1)}")
        a(f"s_lshl_b32 {s(S_T0)}, {s(S_T0)}, 1")
        a(f"s_and_b32 {s(S_T1)}, {s(S_IDX)}, 7")
        a(f"s_add_u32 {s(S_TT)}, {s(S_T0)}, {s(S_T1)}")
        a(f"s_and_b32 {s(S_T0)}, {s(S_XCD)}, 1")
        a(f"s_lshl_b32 {s(S_T0)}, {s(S_T0)}, 2")
        a(f"s_lshr_b32 {s(S_T1)}, {s(S_IDX)}, 3")
        a(f"s_add_u32 {s(S_HG)}, {s(S_T0)}, {s(S_T1)}")
        a(f"s_mov_b32 {s(S_N)}, {s(S_HG)}")
        a(f"s_bfe_u32 {s(S_TY)}, {s(S_IDX)}, 0x10002")
        a(f"s_lshl_b32 {s(S_COL)}, {s(S_HG)}, 1")
        a(f"s_add_u32 {s(S_COL)}, {s(S_COL)}, {s(S_TY)}")
        a(f"s_mul_i32 {s(S_S0)}, {s(S_RB)}, 3")
        a(f"s_add_u32 {s(S_S0)}, {s(S_S0)}, {s(S_COL)}")
        a(f"s_mul_i32 {s(S_T0)}, {s(S_S0)}, 6554")
        a(f"s_lshr_b32 {s(S_T0)}, {s(S_T0)}, 16")
        a(f"s_mul_i32 {s(S_T0)}, {s(S_T0)}, 10")
        a(f"s_sub_u32 {s(S_S0)}, {s(S_S0)}, {s(S_T0)}")
        a(f"s_cmp_ge_u32 {s(S_WID)}, 4")
        a(f"s_cbranch_scc1 Lcompute")

    def calc_u(self):
        a = self.a
        a(f"s_add_u32 {s(S_U)}, {s(S_HG)}, 128")
        a(f"s_cmp_eq_u32 {s(S_RB)}, 0")
        a(f"s_cselect_b32 {s(S_U)}, {s(S_U)}, 255")
        a(f"s_lshl_b32 {s(S_T0)}, {s(S_HG)}, 4")
        a(f"s_add_u32 {s(S_T0)}, {s(S_T0)}, {s(S_RB)}")
        a(f"s_cmp_lg_u32 {s(S_TY)}, 0")
        a(f"s_cselect_b32 {s(S_U)}, {s(S_T0)}, {s(S_U)}")

    def poll_issue(self, vdst, voff, n=1):
        self.a(f"buffer_load_dword{'x2' if n == 2 else ''} {v(vdst, n)}, {v(voff)}, {s(R_WS,4)}, 0 offen sc1")
    def poll_check(self, vdst, voff, nlanes, n=1):
        a = self.a
        L = self.lab('poll'); Ld = self.lab('polld')
        mask = (1 << nlanes) - 1
        a(f"s_mov_b32 {s(S_CNT)}, 0")
        a.label(L)
        a(f"v_cmp_ne_u32 vcc, {s(S_NONCE)}, {v(vdst)}")
        if n == 2:
            a(f"v_cmp_ne_u32 {s(S_MASK,2)}, {s(S_NONCE)}, {v(vdst+1)}")
            a(f"s_or_b64 vcc, vcc, {s(S_MASK,2)}")
        if nlanes < 32:
            a(f"s_and_b32 {s(S_T0)}, vcc_lo, {hex(mask)}")
        else:
            a(f"s_and_b32 {s(S_T0)}, vcc_hi, {hex(mask >> 32)}")
            a(f"s_or_b32 {s(S_T0)}, {s(S_T0)}, vcc_lo")
        a(f"s_cbranch_scc0 {Ld}")
        a(f"s_add_u32 {s(S_CNT)}, {s(S_CNT)}, 1")
        a(f"s_cmp_gt_u32 {s(S_CNT)}, 0x40000")
        a(f"s_cbranch_scc1 {Ld}")
        self.poll_issue(vdst, voff, n)
        a("s_waitcnt vmcnt(0)")
        a(f"s_branch {L}")
        a.label(Ld)
    def poll(self, vdst, voff, nlanes, n=1):
        self.poll_issue(vdst, voff, n); self.a("s_waitcnt vmcnt(0)"); self.poll_check(vdst, voff, nlanes, n)
    def only_l(self, l=0):
        L = self.lab('l0')
        self.a(f"s_cmp_lg_u32 {s(S_L)}, {l}")
        self.a(f"s_cbranch_scc1 {L}")
        return L
    def flag_store(self, voff):
        self.a(f"buffer_store_dword v41, {v(voff)}, {s(R_WS,4)}, 0 offen sc1")

    def loader(self):
        a = self.a; cfg = self.cfg
        VO = 12
        V_P2 = 23
        V_FH, V_F2, V_FP, V_FS, V_QK, V_QP, V_QH, V_QO, V_QS = 24, 25, 26, 27, 28, 29, 30, 31, 32
        V_PK = 33
        nb0 = a.nbar
        a(f"s_mov_b32 {s(S_L)}, {s(S_WID)}")
        a(f"s_mov_b32 {s(S_KC)}, {s(S_S0)}")
        if cfg.prio: a(f"s_setprio {cfg.prio}")
        a(f"v_lshrrev_b32 v2, 3, v1")
        a(f"v_lshrrev_b32 v3, 4, v1")
        a(f"v_and_b32 v4, 7, v1")
        a(f"v_xor_b32 v5, v4, v3")
        a(f"s_lshl_b32 {s(S_T0)}, {s(S_RB)}, 2")
        a(f"s_add_u32 {s(S_T0)}, {s(S_T0)}, {s(S_L)}")
        a(f"s_mul_i32 {s(S_T0)}, {s(S_T0)}, {32*1280}")
        a(f"v_mul_u32_u24 v6, 1280, v2")
        a(f"v_lshl_add_u32 v6, v5, 4, v6")
        a(f"v_add_u32 {v(VO)}, {s(S_T0)}, v6")
        a(f"v_xor_b32 v7, 64, {v(VO)}")
        a(f"v_add_u32 {v(VO+1)}, 10240, v7")
        a(f"v_add_u32 {v(VO+2)}, 20480, {v(VO)}")
        a(f"v_add_u32 {v(VO+3)}, 30720, v7")
        a(f"s_lshl_b32 {s(S_DEST)}, {s(S_L)}, 12")
        for n in range(1, 4): a(f"s_add_u32 {s(S_DEST+n)}, {s(S_DEST)}, {1024*n}")
        a(f"s_lshl_b32 {s(S_OA)}, {s(S_KC)}, 7")
        a("s_waitcnt lgkmcnt(0)")
        self.stamp(1)
        self.dbgt(2, True); self.dbgt(3)
        srd(a, R_X, P_X, 2048 * 1280)
        srds = [R_X]*4 + [R_W]*3 + [R_MID]*2 + [R_W1]*2
        soffs = [S_OA]*4 + [S_OW]*3 + [S_OM]*2 + [S_OH]*2
        def dma(k, n):
            a(f"s_add_u32 m0, {s(S_DEST+n)}, {(k % 3) * SLOT}")
            a(f"buffer_load_dwordx4 {v(VO+n)}, {s(srds[n],4)}, {s(soffs[n])} offen lds")
        for n in range(4): dma(0, n)
        srd(a, R_W, P_W, 640 * 3840)
        srd(a, R_W1, P_W1, 640 * 3072)
        def wrow(dst, i, valid_check):
            a(f"v_add_u32 v6, {s(S_T1)}, v1")
            if i: a(f"v_add_u32 v6, {64*i}, v6")
            a(f"v_mul_u32_u24 v7, 6554, v6")
            a(f"v_lshrrev_b32 v7, 16, v7")
            a(f"v_mad_i32_i24 v8, v7, -10, v6")
            a(f"v_lshrrev_b32 v9, 1, v7")
            a(f"v_xor_b32 v9, v9, v7")
            a(f"v_and_b32 v9, 4, v9")
            a(f"v_mul_u32_u24 v9, 3, v9")
            a(f"v_xor_b32 v7, v7, v9")
            a(f"v_mul_u32_u24 v7, 3840, v7")
            a(f"v_lshl_add_u32 v7, v8, 4, v7")
            a(f"v_add_u32 {v(dst)}, {s(S_T2)}, v7")
            if valid_check:
                a(f"v_cmp_gt_u32 vcc, 640, v6")
                a(f"v_mov_b32 v9, {hex(OOB)}")
                a(f"v_cndmask_b32 {v(dst)}, v9, {v(dst)}, vcc")
        a(f"s_mul_i32 {s(S_OW)}, {s(S_KC)}, {64*3840}")
        a(f"s_mul_i32 {s(S_OH)}, {s(S_KC)}, {64*3072}")
        a(f"s_mul_i32 {s(S_T3)}, {s(S_HG)}, 384")
        a(f"s_cmp_lg_u32 {s(S_TY)}, 0")
        a(f"s_cbranch_scc1 Lld_setq")
        for i in range(3): a(f"s_mov_b32 {s(R_MID+i)}, {s(R_W+i)}")
        a(f"s_mov_b32 {s(R_MID+3)}, 0x20000")
        a(f"s_mov_b32 {s(S_OM)}, {s(S_OW)}")
        a(f"v_lshrrev_b32 v6, 1, v4")
        a(f"v_xor_b32 v6, v6, v3")
        a(f"v_and_b32 v7, 1, v4")
        a(f"v_lshl_add_u32 v6, v6, 1, v7")
        a(f"v_and_b32 v7, 4, v2")
        a(f"v_add_u32 v7, v7, v2")
        a(f"v_mul_u32_u24 v7, 3072, v7")
        a(f"v_lshl_add_u32 v6, v6, 4, v7")
        a(f"s_mul_i32 {s(S_T0)}, {s(S_L)}, {16*3072}")
        a(f"s_add_u32 {s(S_T0)}, {s(S_T0)}, {s(S_T3)}")
        a(f"v_add_u32 {v(VO+9)}, {s(S_T0)}, v6")
        a(f"v_add_u32 {v(VO+10)}, {4*3072}, {v(VO+9)}")
        a(f"s_lshl_b32 {s(S_T0)}, {s(S_L)}, 11")
        a(f"s_add_u32 {s(S_DEST+9)}, {s(S_T0)}, 36864")
        a(f"s_add_u32 {s(S_DEST+10)}, {s(S_T0)}, {36864+1024}")
        dma(0, 9); dma(0, 10)
        a(f"s_and_b32 {s(S_T1)}, {s(S_L)}, 1")
        a(f"s_mul_i32 {s(S_T1)}, {s(S_T1)}, 320")
        a(f"s_lshr_b32 {s(S_T2)}, {s(S_L)}, 1")
        a(f"s_mul_i32 {s(S_T2)}, {s(S_T2)}, 1280")
        a(f"s_mul_i32 {s(S_T0)}, {s(S_HG)}, 160")
        a(f"s_add_u32 {s(S_T2)}, {s(S_T2)}, {s(S_T0)}")
        a(f"s_add_u32 {s(S_T2)}, {s(S_T2)}, 1280")
        a(f"s_mul_i32 {s(S_T0)}, {s(S_L)}, 5120")
        for i in range(5):
            a(f"s_add_u32 {s(S_DEST+4+i)}, {s(S_T0)}, {16384 + 1024*i}")
            wrow(VO + 4 + i, i, False)
            dma(0, 4 + i)
        a(f"s_branch Lld_setdone")
        a.label('Lld_setq')
        for i in range(3): a(f"s_mov_b32 {s(R_MID+i)}, {s(R_W1+i)}")
        a(f"s_mov_b32 {s(R_MID+3)}, 0x20000")
        a(f"s_mov_b32 {s(S_OM)}, {s(S_OH)}")
        a(f"s_add_u32 {s(S_T3)}, {s(S_T3)}, 128")
        a(f"v_and_b32 v8, 15, v1")
        a(f"v_lshrrev_b32 v6, 1, v8")
        a(f"v_xor_b32 v6, v6, v3")
        a(f"v_and_b32 v7, 1, v8")
        a(f"v_lshl_add_u32 v6, v6, 1, v7")
        a(f"v_mul_u32_u24 v7, 3072, v3")
        a(f"v_lshl_add_u32 v6, v6, 4, v7")
        a(f"v_xor_b32 v7, 128, v6")
        a(f"s_mul_i32 {s(S_T0)}, {s(S_L)}, {16*3072}")
        a(f"s_add_u32 {s(S_T0)}, {s(S_T0)}, {s(S_T3)}")
        a(f"v_add_u32 {v(VO+7)}, {s(S_T0)}, v6")
        a(f"v_add_u32 v7, {s(S_T0)}, v7")
        a(f"v_add_u32 {v(VO+8)}, {8*3072}, v7")
        a(f"v_add_u32 {v(VO+9)}, {4*3072}, {v(VO+7)}")
        a(f"v_add_u32 {v(VO+10)}, {12*3072}, v7")
        a(f"s_lshl_b32 {s(S_T0)}, {s(S_L)}, 12")
        for i in range(4):
            a(f"s_add_u32 {s(S_DEST+7+i)}, {s(S_T0)}, {26624 + 1024*i}")
            dma(0, 7 + i)
        a(f"s_mul_i32 {s(S_T1)}, {s(S_L)}, 192")
        a(f"s_mul_i32 {s(S_T2)}, {s(S_HG)}, 160")
        a(f"s_mul_i32 {s(S_T0)}, {s(S_L)}, 3072")
        for i in range(3):
            a(f"s_add_u32 {s(S_DEST+4+i)}, {s(S_T0)}, {16384 + 1024*i}")
            if i:
                a(f"s_cmp_eq_u32 {s(S_L)}, 3")
                a(f"s_cselect_b32 {s(S_DEST+4+i)}, {43008 + 1024*(i-1)}, {s(S_DEST+4+i)}")
            wrow(VO + 4 + i, i, i > 0)
            dma(0, 4 + i)
        a.label('Lld_setdone')
        self.stamp(40)
        def advance():
            a(f"s_add_u32 {s(S_KC)}, {s(S_KC)}, 1")
            a(f"s_cmp_eq_u32 {s(S_KC)}, 10")
            a(f"s_cselect_b32 {s(S_KC)}, 0, {s(S_KC)}")
            a(f"s_lshl_b32 {s(S_OA)}, {s(S_KC)}, 7")
            a(f"s_mul_i32 {s(S_OW)}, {s(S_KC)}, {64*3840}")
            a(f"s_mul_i32 {s(S_OH)}, {s(S_KC)}, {64*3072}")
            a(f"s_cmp_lg_u32 {s(S_TY)}, 0")
            a(f"s_cselect_b32 {s(S_OM)}, {s(S_OH)}, {s(S_OW)}")
        n1 = cfg.n1

        def idle_setup():
            srd(a, R_WS, P_WS, WS_SIZE)
            self.calc_u()
            a("v_mov_b32 v42, 0")
            a("v_mov_b32 v40, 0")
            L = self.lab('nc')
            a(f"s_or_b32 {s(S_T0)}, {s(S_L)}, s2")
            a(f"s_cbranch_scc1 {L}")
            a(f"s_load_dword {s(S_T0)}, {s(P_WS,2)}, 0")
            a("s_waitcnt lgkmcnt(0)")
            a(f"s_mul_i32 {s(S_T0)}, {s(S_T0)}, 0x9E3779B1")
            a(f"s_add_u32 {s(S_T0)}, {s(S_T0)}, 0x7F4A7C15")
            a(f"s_cmp_eq_u32 {s(S_T0)}, 0")
            a(f"s_cselect_b32 {s(S_T0)}, 1, {s(S_T0)}")
            a(f"v_mov_b32 v43, {s(S_T0)}")
            a(f"global_store_dword v42, v43, {s(P_DBG,2)} sc1")
            a(f"global_store_dword v42, v43, {s(P_WS,2)} sc1")
            a.label(L)
            a(f"v_add_u32 v0, 512, v0")
            a(f"v_lshlrev_b32 v39, 4, v1")
            a(f"v_lshl_add_u32 v10, v1, 2, {s(S_T3)}")
            srd(a, R_BI, P_B1, 3072)
            a(f"v_mov_b32 v6, {hex(OOB)}")
            a(f"v_cmp_eq_u32 vcc, 0, v1")
            a(f"s_lshl_b32 {s(S_T0)}, {s(S_RB)}, 7")
            a(f"s_lshl_b32 {s(S_T1)}, {s(S_COL)}, 2")
            a(f"s_add_u32 {s(S_T1)}, {s(S_T1)}, {s(S_T0)}")
            a(f"s_add_u32 {s(S_T1)}, {s(S_T1)}, {WS_FH}")
            a(f"v_mov_b32 v7, {s(S_T1)}")
            a(f"v_cndmask_b32 {v(V_FH)}, v6, v7, vcc")
            a(f"s_lshl_b32 {s(S_T1)}, {s(S_HG)}, 2")
            a(f"s_add_u32 {s(S_T3)}, {s(S_T0)}, {s(S_T1)}")
            a(f"s_add_u32 {s(S_T3)}, {s(S_T3)}, {WS_FO}")
            a(f"s_lshl_b32 {s(S_T1)}, {s(S_HG)}, 7")
            a(f"s_lshl_b32 {s(S_T2)}, {s(S_RB)}, 2")
            a(f"s_add_u32 {s(S_T2)}, {s(S_T2)}, {s(S_T1)}")
            a(f"s_add_u32 {s(S_T2)}, {s(S_T2)}, {WS_FK}")
            a(f"s_cmp_lg_u32 {s(S_TY)}, 0")
            a(f"s_cselect_b32 {s(S_T3)}, {s(S_T3)}, {s(S_T2)}")
            a(f"v_mov_b32 v7, {s(S_T3)}")
            a(f"v_cndmask_b32 {v(V_F2)}, v6, v7, vcc")
            a(f"s_add_u32 {s(S_T1)}, {s(S_T1)}, {WS_FK}")
            a(f"v_lshl_add_u32 {v(V_QK)}, v1, 2, {s(S_T1)}")
            a(f"s_and_b32 {s(S_T1)}, {s(S_U)}, 1")
            a(f"s_lshl_b32 {s(S_T1)}, {s(S_T1)}, 9")
            a(f"s_lshr_b32 {s(S_T2)}, {s(S_U)}, 1")
            a(f"s_lshl_b32 {s(S_T2)}, {s(S_T2)}, 2")
            a(f"s_add_u32 {s(S_T1)}, {s(S_T1)}, {s(S_T2)}")
            a(f"s_add_u32 {s(S_T1)}, {s(S_T1)}, {WS_FP}")
            a(f"v_mov_b32 v7, {s(S_T1)}")
            a(f"v_cndmask_b32 {v(V_FP)}, v6, v7, vcc")
            a(f"s_add_u32 {s(S_T0)}, {s(S_T0)}, {WS_FS}")
            a(f"s_lshl_b32 {s(S_T1)}, {s(S_COL)}, 7")
            a(f"s_add_u32 {s(S_T1)}, {s(S_T1)}, {WS_FS + 2048}")
            a(f"s_lshl_b32 {s(S_T2)}, {s(S_S0)}, 2")
            a(f"s_add_u32 {s(S_T3)}, {s(S_T0)}, {s(S_T2)}")
            a(f"s_cmp_lt_u32 {s(S_COL)}, 10")
            a(f"s_cselect_b32 {s(S_T3)}, {s(S_T3)}, {hex(OOB)}")
            a(f"v_mov_b32 v7, {s(S_T3)}")
            a(f"v_cndmask_b32 {v(V_FS)}, v6, v7, vcc")
            a(f"s_add_u32 {s(S_T3)}, {s(S_T1)}, {s(S_T2)}")
            a(f"s_cmp_lt_u32 {s(S_RB)}, 10")
            a(f"s_cselect_b32 {s(S_T3)}, {s(S_T3)}, {hex(OOB)}")
            a(f"v_writelane_b32 {v(V_FS)}, {s(S_T3)}, 1")
            a(f"s_sub_u32 {s(S_T1)}, {s(S_T1)}, 40")
            a(f"v_lshl_add_u32 v7, v1, 2, {s(S_T0)}")
            a(f"v_lshl_add_u32 v8, v1, 2, {s(S_T1)}")
            a(f"v_cmp_gt_u32 vcc, 10, v1")
            a(f"v_cndmask_b32 {v(V_QS)}, v8, v7, vcc")
            a(f"s_lshr_b32 {s(S_T1)}, {s(S_N)}, 2")
            a(f"s_lshl_b32 {s(S_T1)}, {s(S_T1)}, 9")
            a(f"s_add_u32 {s(S_T1)}, {s(S_T1)}, {WS_FP}")
            a(f"v_lshl_add_u32 {v(V_QP)}, v1, 3, {s(S_T1)}")
            a(f"s_lshr_b32 {s(S_T1)}, {s(S_TT)}, 1")
            a(f"s_lshl_b32 {s(S_T1)}, {s(S_T1)}, 7")
            a(f"s_add_u32 {s(S_T1)}, {s(S_T1)}, {WS_FH}")
            a(f"v_lshl_add_u32 {v(V_QH)}, v1, 2, {s(S_T1)}")
            a(f"v_add_u32 {v(V_QO)}, {WS_FO - WS_FH}, {v(V_QH)}")
            L = self.lab('pks')
            a(f"s_cmp_gt_u32 {s(S_U)}, 135")
            a(f"s_cselect_b32 {s(S_T0)}, 0, {s(S_U)}")
            a(f"s_lshr_b32 {s(S_T0)}, {s(S_T0)}, 1")
            a(f"s_cmp_lt_u32 {s(S_T0)}, 48")
            a(f"s_cselect_b32 {s(R_PK)}, {s(P_W2)}, {s(P_WO)}")
            a(f"s_cselect_b32 {s(R_PK+1)}, {s(P_W2+1)}, {s(P_WO+1)}")
            a(f"s_mov_b32 {s(R_PK+2)}, {hex(640*1280)}")
            a(f"s_cselect_b32 {s(R_PK+2)}, {hex(1536*1280)}, {s(R_PK+2)}")
            a(f"s_mov_b32 {s(R_PK+3)}, 0x20000")
            Lm = self.lab('pkm'); Ld = self.lab('pkd')
            a(f"s_cbranch_scc1 {Lm}")
            a(f"s_sub_u32 {s(S_T3)}, {s(S_T0)}, 48")
            a(f"s_mul_i32 {s(S_T1)}, {s(S_T3)}, 52")
            a(f"s_lshr_b32 {s(S_T1)}, {s(S_T1)}, 8")
            a(f"s_mul_i32 {s(S_T2)}, {s(S_T1)}, 5")
            a(f"s_sub_u32 {s(S_T3)}, {s(S_T3)}, {s(S_T2)}")
            a(f"s_mul_i32 {s(S_T1)}, {s(S_T1)}, 160")
            a(f"s_lshl_b32 {s(S_T2)}, {s(S_T3)}, 5")
            a(f"s_cmp_ge_u32 {s(S_T3)}, 2")
            a(f"s_cselect_b32 {s(S_CNT)}, 16, 0")
            a(f"s_add_u32 {s(S_T2)}, {s(S_T2)}, {s(S_CNT)}")
            a(f"s_cmp_eq_u32 {s(S_T3)}, 4")
            a(f"s_cselect_b32 {s(S_T2)}, 64, {s(S_T2)}")
            a(f"s_cselect_b32 {s(S_CNT)}, 64, 0")
            a(f"s_add_u32 {s(S_T1)}, {s(S_T1)}, {s(S_T2)}")
            a(f"s_branch {Ld}")
            a.label(Lm)
            a(f"s_lshl_b32 {s(S_T1)}, {s(S_T0)}, 5")
            a(f"s_mov_b32 {s(S_CNT)}, 0")
            a.label(Ld)
            a(f"s_and_b32 {s(R_PK+1)}, {s(R_PK+1)}, 0xffff")
            a(f"s_cmp_ge_u32 {s(S_L)}, 2")
            a(f"s_cselect_b32 {s(S_CNT)}, {s(S_CNT)}, 0")
            a(f"s_add_u32 {s(S_T1)}, {s(S_T1)}, {s(S_CNT)}")
            a(f"s_lshl_b32 {s(S_T2)}, {s(S_L)}, 3")
            a(f"s_add_u32 {s(S_T1)}, {s(S_T1)}, {s(S_T2)}")
            a(f"s_mul_i32 {s(S_T1)}, {s(S_T1)}, 1280")
            a(f"s_and_b32 {s(S_T2)}, {s(S_U)}, 1")
            a(f"s_mul_i32 {s(S_T3)}, {s(S_T2)}, 640")
            a(f"s_add_u32 {s(S_PKO)}, {s(S_T1)}, {s(S_T3)}")
            for i in range(5):
                a(f"v_add_u32 v6, {64*i}, v1")
                a(f"v_mul_u32_u24 v7, 1639, v6")
                a(f"v_lshrrev_b32 v7, 16, v7")
                a(f"v_mul_u32_u24 v7, 640, v7")
                a(f"v_lshl_add_u32 {v(V_PK+i)}, v6, 4, v7")
            a(f"v_and_b32 v6, 15, v1")
            a(f"s_lshl_b32 {s(S_T0)}, {s(S_L)}, 5")
            a(f"v_add_u32 v6, {s(S_T0)}, v6")
            a(f"v_mul_u32_u24 v6, 160, v6")
            a(f"v_lshl_add_u32 v6, v3, 3, v6")
            a(f"v_add_u32 v38, {OEX}, v6")
            a(f"s_lshl_b32 {s(S_T0)}, {s(S_RB)}, 3")
            a(f"s_lshl_b32 {s(S_T1)}, {s(S_L)}, 1")
            a(f"s_add_u32 {s(S_T0)}, {s(S_T0)}, {s(S_T1)}")
            a(f"s_lshl_b32 {s(S_T0)}, {s(S_T0)}, 3")
            a(f"s_add_u32 {s(S_T0)}, {s(S_T0)}, {s(S_HG)}")
            a(f"s_mul_i32 {s(S_T0)}, {s(S_T0)}, 2560")
            a(f"s_add_u32 {s(S_PKS)}, {s(S_T0)}, {WS_O2}")
        def if_pack():
            L = self.lab('pk')
            a(f"s_cmp_gt_u32 {s(S_U)}, 135")
            a(f"s_cbranch_scc1 {L}")
            return L
        def p2_setup():
            a(f"s_mul_i32 {s(S_T0)}, {s(S_N)}, {68*5120}")
            a(f"s_and_b32 {s(S_T1)}, {s(S_L)}, 1")
            a(f"s_mul_i32 {s(S_T1)}, {s(S_T1)}, 5120")
            a(f"s_add_u32 {s(S_T0)}, {s(S_T0)}, {s(S_T1)}")
            a(f"s_add_u32 {s(S_T0)}, {s(S_T0)}, {WS_P2}")
            a(f"v_add_u32 {v(V_P2)}, {s(S_T0)}, v39")
            a(f"s_mul_i32 {s(S_DEST)}, {s(S_L)}, 5120")
            a(f"s_lshr_b32 {s(S_T1)}, {s(S_L)}, 1")
            a(f"s_mul_i32 {s(S_OM)}, {s(S_T1)}, {24*5120}")
            a(f"s_mul_i32 {s(S_OH)}, {s(S_T1)}, {10*5120}")
            a(f"s_add_u32 {s(S_OH)}, {s(S_OH)}, {48*5120}")
            self.rot2(S_KC)
        def p2_chunk(i):
            if i < 12:
                a(f"s_mul_i32 {s(S_OA)}, {s(S_KC)}, 10240")
                a(f"s_add_u32 {s(S_OA)}, {s(S_OA)}, {s(S_OM)}")
                a(f"s_add_u32 {s(S_KC)}, {s(S_KC)}, 1")
                a(f"s_cmp_eq_u32 {s(S_KC)}, 12")
                a(f"s_cselect_b32 {s(S_KC)}, 0, {s(S_KC)}")
            else:
                a(f"s_add_u32 {s(S_OA)}, {s(S_OH)}, {(i-12)*10240}")
            a(f"s_add_u32 m0, {s(S_DEST)}, {RING[i % 6]}")
            for j in range(4):
                a(f"buffer_load_dwordx4 {v(V_P2)}, {s(R_WS,4)}, {s(S_OA)} offen offset:{1024*j} sc1 lds")
            a(f"s_add_u32 m0, {s(S_DEST)}, {RING[i % 6] + 4096}")
            a(f"s_add_u32 {s(S_OA)}, {s(S_OA)}, 4096")
            a(f"buffer_load_dwordx4 {v(V_P2)}, {s(R_WS,4)}, {s(S_OA)} offen sc1 lds")
        for k in range(10):
            if k + 1 < 10:
                advance()
                for n in range(n1): dma(k + 1, n)
                wait = n1
            else:
                wait = 10
            if k == 0:
                self.stamp(41); idle_setup(); self.stamp(42)
            a(f"s_waitcnt vmcnt({wait})")
            if k == 3:
                L = self.only_l(0)
                a(f"v_readfirstlane_b32 {s(S_NONCE)}, v40")
                Lp = self.lab('np'); Lq = self.lab('nq')
                a(f"s_mov_b32 {s(S_CNT)}, 0")
                a.label(Lp)
                a(f"s_cmp_lg_u32 {s(S_NONCE)}, 0")
                a(f"s_cbranch_scc1 {Lq}")
                a(f"s_add_u32 {s(S_CNT)}, {s(S_CNT)}, 1")
                a(f"s_cmp_gt_u32 {s(S_CNT)}, 0x40000")
                a(f"s_cbranch_scc1 {Lq}")
                a(f"global_load_dword v40, v42, {s(P_DBG,2)} sc1")
                a("s_waitcnt vmcnt(0)")
                a(f"v_readfirstlane_b32 {s(S_NONCE)}, v40")
                a("s_nop 1")
                a(f"s_branch {Lp}")
                a.label(Lq)
                a(f"v_mov_b32 v41, {s(S_NONCE)}")
                a.label(L)
            if k == 7:
                L = self.only_l(0); self.poll_check(64, V_QS, 20); a.label(L)
            if k == 8:
                L = self.only_l(0); self.poll_check(66, V_QP, 34, 2); a.label(L)
            if k == 9: a("s_waitcnt lgkmcnt(0)")
            a("s_barrier")
            self.stamp(2 + k)
            if k == 0: self.dbgt(4)
            if k == 4: self.dbgt(5)
            if k == 2:
                L = self.only_l(0)
                a(f"global_load_dword v40, v42, {s(P_DBG,2)} sc1")
                a.label(L)
            if k == 3:
                L = self.only_l(0); self.flag_store(V_FS); a.label(L)
            if k == 5:
                L = if_pack(); L2 = self.only_l(0); self.flag_store(V_FP); a.label(L2); a.label(L)
            if k == 6:
                L = self.only_l(0); self.poll_issue(64, V_QS); a.label(L)
            if k == 7:
                L = self.only_l(0); self.poll_issue(66, V_QP, 2); a.label(L)
            if k == 8:
                a(f"s_lshr_b32 {s(S_T0)}, {s(S_L)}, 1")
                a(f"s_mul_i32 {s(S_T0)}, {s(S_T0)}, 10240")
                a(f"s_and_b32 {s(S_T1)}, {s(S_L)}, 1")
                a(f"s_lshl_b32 {s(S_T1)}, {s(S_T1)}, 9")
                a(f"s_add_u32 {s(S_T0)}, {s(S_T0)}, {s(S_T1)}")
                a(f"s_add_u32 {s(S_T0)}, {s(S_T0)}, {SCR}")
                a(f"v_lshl_add_u32 v6, v1, 3, {s(S_T0)}")
                for ch in range(10): a(f"ds_read_b64 {v(44+2*ch,2)}, v6 offset:{1024*ch}")
            if k + 1 < 10:
                for n in range(n1, 11): dma(k + 1, n)
            if k == 0:
                L = self.only_l(1)
                a(f"s_mov_b32 m0, {B1L}")
                a(f"buffer_load_dword v10, {s(R_BI,4)}, 0 offen lds")
                a.label(L)
            if k == 1:
                L = if_pack()
                a(f"s_mul_i32 {s(S_T2)}, {s(S_L)}, 5120")
                for i in range(5):
                    a(f"s_add_u32 m0, {s(S_T2)}, {SCR + 1024*i}")
                    a(f"buffer_load_dwordx4 {v(V_PK+i)}, {s(R_PK,4)}, {s(S_PKO)} offen lds")
                a.label(L)
            if k == 7:
                a(f"s_cmp_lt_u32 {s(S_L)}, 2")
                a(f"s_cselect_b32 {s(S_T0)}, {s(S_RB)}, {s(S_COL)}")
                a(f"s_mov_b32 {s(S_T1)}, {WS_CP}")
                a(f"s_cselect_b32 {s(S_T1)}, {WS_RP}, {s(S_T1)}")
                a(f"s_mul_i32 {s(S_T0)}, {s(S_T0)}, 10240")
                a(f"s_add_u32 {s(S_T0)}, {s(S_T0)}, {s(S_T1)}")
                a(f"s_and_b32 {s(S_T1)}, {s(S_L)}, 1")
                a(f"s_mul_i32 {s(S_T1)}, {s(S_T1)}, 5120")
                a(f"s_add_u32 {s(S_T0)}, {s(S_T0)}, {s(S_T1)}")
                a(f"s_mul_i32 {s(S_T2)}, {s(S_L)}, 5120")
                a(f"s_add_u32 m0, {s(S_T2)}, {SCR}")
                for j in range(4):
                    a(f"buffer_load_dwordx4 v39, {s(R_WS,4)}, {s(S_T0)} offen offset:{1024*j} sc1 lds")
                a(f"s_add_u32 m0, {s(S_T2)}, {SCR + 4096}")
                a(f"s_add_u32 {s(S_T0)}, {s(S_T0)}, 4096")
                a(f"buffer_load_dwordx4 v39, {s(R_WS,4)}, {s(S_T0)} offen sc1 lds")
            if k == 8:
                a("s_waitcnt lgkmcnt(0)")
                for ch in range(1, 10):
                    a(f"v_add_f32 v44, v44, {v(44+2*ch)}")
                    a(f"v_add_f32 v45, v45, {v(45+2*ch)}")
                a(f"s_and_b32 {s(S_T1)}, {s(S_L)}, 1")
                a(f"s_lshl_b32 {s(S_T1)}, {s(S_T1)}, 6")
                a(f"v_add_u32 v6, {s(S_T1)}, v1")
                Lc = self.lab('stc'); Ld = self.lab('std')
                a(f"s_cmp_ge_u32 {s(S_L)}, 2")
                a(f"s_cbranch_scc1 {Lc}")
                a(f"v_lshlrev_b32 v6, 2, v6")
                a(f"v_add_u32 v6, {ST}, v6")
                a(f"v_mul_f32 v46, {lit(1/640)}, v44")
                a(f"v_mul_f32 v47, v46, v46")
                a(f"v_mov_b32 v48, {lit(1/640)}")
                a(f"v_fma_f32 v45, v45, v48, -v47")
                a(f"v_max_f32 v45, 0, v45")
                a(f"v_add_f32 v47, {lit(1e-5)}, v45")
                a(f"v_rsq_f32 v48, v47")
                a(f"v_mul_f32 v49, v48, v48")
                a(f"v_fmaak_f32 v49, v49, v45, {lit(1e-5)}")
                a(f"v_rsq_f32 v49, v49")
                a(f"v_mul_f32 v50, v48, v49")
                a(f"v_mul_f32_e64 v51, -v46, v48")
                a(f"v_mul_f32_e64 v52, -v46, v50")
                a(f"ds_write_b32 v6, v48")
                a(f"ds_write_b32 v6, v51 offset:512")
                a(f"ds_write_b32 v6, v50 offset:1024")
                a(f"ds_write_b32 v6, v52 offset:1536")
                a(f"s_branch {Ld}")
                a.label(Lc)
                a(f"v_lshlrev_b32 v6, 3, v6")
                a(f"v_add_u32 v6, {ST_CS}, v6")
                a(f"ds_write_b64 v6, v[44:45]")
                a.label(Ld)
                p2_setup()
                p2_chunk(0); p2_chunk(1)
            if k == 9:
                p2_chunk(2); p2_chunk(3)
        a("s_barrier")
        self.stamp(12); self.dbgt(6)
        p2_chunk(4); p2_chunk(5)
        a(f"s_cmp_lg_u32 {s(S_TY)}, 0")
        a(f"s_cbranch_scc1 Lld_eq")
        nb1 = a.nbar
        a("s_barrier")
        self.stamp(14)
        a("s_barrier")
        L = self.only_l(0); self.flag_store(V_F2); a.label(L)
        self.stamp(15)
        a("s_barrier")
        self.stamp(16)
        L = self.only_l(0); self.flag_store(V_FH); self.poll(64, V_QH, 16); a.label(L)
        a("s_barrier")
        self.stamp(19)
        a("s_branch Lld_p2")
        self.nb_ld_kv = a.nbar - nb0
        nb2 = a.nbar
        a.label('Lld_eq')
        a("s_barrier")
        self.stamp(14)
        L = self.only_l(0); self.flag_store(V_FH); self.poll(64, V_QK, 16); a.label(L)
        a("s_barrier")
        self.stamp(15)
        L = self.only_l(0); self.poll(64, V_QH, 16); a.label(L)
        a("s_barrier")
        self.stamp(16)
        a("s_barrier")
        self.stamp(17)
        for t in range(2):
            for k in range(5): a(f"ds_read_b64 {v(44+12*t+2*k,2)}, v38 offset:{2560*t + 32*k}")
        a(f"v_lshlrev_b32 v6, 3, v1")
        a(f"s_add_u32 {s(S_T0)}, {s(S_PKS)}, {8*2560}")
        a("s_waitcnt lgkmcnt(0)")
        for t in range(2):
            so = s(S_PKS) if t == 0 else s(S_T0)
            a(f"buffer_store_dwordx4 {v(44+12*t,4)}, v39, {s(R_WS,4)}, {so} offen sc1")
            a(f"buffer_store_dwordx4 {v(48+12*t,4)}, v39, {s(R_WS,4)}, {so} offen offset:1024 sc1")
            a(f"buffer_store_dwordx2 {v(52+12*t,2)}, v6, {s(R_WS,4)}, {so} offen offset:2048 sc1")
        self.nb_ld_q = (nb1 - nb0) + (a.nbar - nb2)
        a.label('Lld_p2')
        nb3 = a.nbar
        for i in range(17):
            issued = min(16, max(5, i + 4))
            a(f"s_waitcnt vmcnt({5 * (issued - i) if i != 1 else 0})")
            if i == cfg.ko:
                L = self.only_l(0); self.poll_check(64, V_QO, 8); a.label(L)
            a("s_barrier")
            self.stamp(20 + i)
            if i == 0: self.dbgt(7)
            if i == 11: self.dbgt(8)
            if i == 1:
                L = self.only_l(0)
                a(f"s_cmp_eq_u32 {s(S_TY)}, 0")
                a(f"s_cbranch_scc1 {L}")
                self.flag_store(V_F2)
                a.label(L)
            if i >= 1 and i + 5 <= 16: p2_chunk(i + 5)
            if i == 1:
                srd(a, R_BI, P_B2, 1280)
                a(f"s_mul_i32 {s(S_T0)}, {s(S_TT)}, {64*1280}")
                a(f"s_mul_i32 {s(S_T1)}, {s(S_N)}, 160")
                a(f"s_add_u32 {s(S_T0)}, {s(S_T0)}, {s(S_T1)}")
                a(f"s_mul_i32 {s(S_T2)}, {s(S_L)}, 192")
                a(f"s_mul_i32 {s(S_T3)}, {s(S_L)}, 3072")
                for j in range(3):
                    a(f"v_add_u32 v6, {s(S_T2)}, v1")
                    if j: a(f"v_add_u32 v6, {64*j}, v6")
                    a(f"v_mul_u32_u24 v7, 6554, v6")
                    a(f"v_lshrrev_b32 v7, 16, v7")
                    a(f"v_mul_u32_u24 v7, {1280-160}, v7")
                    a(f"v_lshl_add_u32 v7, v6, 4, v7")
                    if j:
                        L = self.lab('xt')
                        a(f"s_cmp_eq_u32 {s(S_L)}, 3")
                        a(f"s_cbranch_scc1 {L}")
                    a(f"s_add_u32 m0, {s(S_T3)}, {XT + 1024*j}")
                    a(f"buffer_load_dwordx4 v7, {s(R_X,4)}, {s(S_T0)} offen lds")
                    if j: a.label(L)
                L = self.only_l(3)
                a(f"v_lshlrev_b32 v6, 2, v1")
                a(f"s_mov_b32 m0, {B2L}")
                a(f"buffer_load_dword v6, {s(R_BI,4)}, {s(S_T1)} offen lds")
                a.label(L)
            if i == cfg.ko - 1:
                L = self.only_l(0)
                self.poll_issue(64, V_QO); a("s_waitcnt vmcnt(0)")
                a.label(L)
        a("s_barrier")
        self.stamp(37)
        a("s_barrier")
        self.stamp(38); self.dbgt(9)
        self.nb_ld_p2 = a.nbar - nb3
        a(f"s_cmp_ge_u32 {s(S_WID)}, 2")
        a(f"s_cbranch_scc1 Lfin")
        a("s_branch Lfinal_store")

    def rot2(self, dst):
        a = self.a; ra, rb_ = self.cfg.rot2
        a(f"s_lshr_b32 {s(S_T1)}, {s(S_IDX)}, 3")
        a(f"s_mul_i32 {s(dst)}, {s(S_T1)}, {ra}")
        a(f"s_and_b32 {s(S_T1)}, {s(S_IDX)}, 7")
        a(f"s_mul_i32 {s(S_T1)}, {s(S_T1)}, {rb_}")
        a(f"s_lshr_b32 {s(S_T1)}, {s(S_T1)}, 1")
        a(f"s_add_u32 {s(dst)}, {s(dst)}, {s(S_T1)}")
        a(f"s_mul_i32 {s(S_T1)}, {s(dst)}, 5462")
        a(f"s_lshr_b32 {s(S_T1)}, {s(S_T1)}, 16")
        a(f"s_mul_i32 {s(S_T1)}, {s(S_T1)}, 12")
        a(f"s_sub_u32 {s(dst)}, {s(dst)}, {s(S_T1)}")

    def final_store(self):
        a = self.a
        a.label('Lfinal_store')
        a(f"v_lshlrev_b32 v2, 4, v0")
        a(f"v_add_u32 v3, {XT}, v2")
        a(f"ds_read_b128 v[4:7], v3")
        srd(a, R_OUT, P_OUT, 2048 * 1280)
        a(f"v_mul_u32_u24 v8, 6554, v0")
        a(f"v_lshrrev_b32 v8, 16, v8")
        a(f"v_mul_u32_u24 v8, {1280-160}, v8")
        a(f"v_add_u32 v8, v8, v2")
        a(f"s_mul_i32 {s(S_T0)}, {s(S_TT)}, {64*1280}")
        a(f"s_mul_i32 {s(S_T1)}, {s(S_N)}, 160")
        a(f"s_add_u32 {s(S_T0)}, {s(S_T0)}, {s(S_T1)}")
        a("s_waitcnt lgkmcnt(0)")
        a(f"buffer_store_dwordx4 v[4:7], v8, {s(R_OUT,4)}, {s(S_T0)} offen")
        a.label('Lfin')
        if self.cfg.diag:
            a("s_waitcnt vmcnt(0)")
            self.stamp(39); self.stamp(62)
            a(f"s_memrealtime {s(S_TS,2)}")
            a("s_waitcnt lgkmcnt(0)")
            a(f"v_writelane_b32 {v(VDIAG)}, {s(S_TS)}, 63")
            a(f"s_mul_i32 {s(S_T0)}, s2, 12")
            a(f"s_add_u32 {s(S_T0)}, {s(S_T0)}, {s(S_WID)}")
            a(f"s_lshl_b32 {s(S_T0)}, {s(S_T0)}, 8")
            a(f"s_add_u32 {s(S_T0)}, {s(S_T0)}, {WS_TS2}")
            a(f"v_lshlrev_b32 v2, 2, v1")
            a(f"buffer_store_dword {v(VDIAG)}, v2, {s(R_WS,4)}, {s(S_T0)} offen")
        a.label('Lend')
        a("s_endpgm")

    ACC = 12; ONES = 68; RS = 72; SQ = 76; CSA = 80; CSB = 84
    XA = 88; XB = 96; YA = 124; YB = 132
    VA = 2
    L15 = 164; G = 165; TOK = 167
    def acc(self, t, i): return self.ACC + (2 * t + i) * 4
    def tiles(self, ty):
        if ty == 0:
            return [(6, 0, 160, 'N'), (6, 32, 160, 'N'), (7, 0, 160, 'N'), (6, 10256, 160, 'N'), (6, 10288, 160, 'N'),
                    (8, 0, 128, 'T'), (9, 0, 128, 'T')]
        return [(6, 0, 160, 'T'), (6, 32, 160, 'T'), (6, 64, 160, 'T'), (7, 0, 256, 'T'), (8, 0, 256, 'T'), (9, 0, 256, 'T'), (10, 0, 256, 'T')]

    def compute_setup(self):
        a = self.a
        a.label('Lcompute')
        T = 88
        L15, G, TOK = self.L15, self.G, self.TOK
        a(f"s_sub_u32 {s(S_T0)}, {s(S_WID)}, 4")
        a(f"s_and_b32 {s(S_R)}, {s(S_T0)}, 3")
        a(f"s_lshr_b32 {s(S_C)}, {s(S_T0)}, 2")
        a(f"v_add_u32 v0, {-256 & 0xffffffff}, v0")
        a(f"v_and_b32 {v(L15)}, 15, v1")
        a(f"v_lshrrev_b32 {v(G)}, 4, v1")
        a(f"v_lshrrev_b32 {v(T+2)}, 1, {v(L15)}")
        a(f"v_xor_b32 {v(T+2)}, {v(T+2)}, {v(G)}")
        a(f"v_lshlrev_b32 {v(T+2)}, 4, {v(T+2)}")
        a(f"v_lshl_add_u32 {v(T+2)}, {v(L15)}, 7, {v(T+2)}")
        a(f"s_lshl_b32 {s(S_T0)}, {s(S_R)}, 12")
        a(f"s_lshl_b32 {s(S_T1)}, {s(S_C)}, 11")
        a(f"s_add_u32 {s(S_T0)}, {s(S_T0)}, {s(S_T1)}")
        a(f"v_add_u32 v2, {s(S_T0)}, {v(T+2)}")
        a(f"v_xor_b32 v3, 64, v2")
        a(f"v_xor_b32 v4, 2048, v2")
        a(f"v_xor_b32 v5, 64, v4")
        a(f"s_lshr_b32 {s(S_T0)}, {s(S_T0)}, 5")
        a(f"s_add_u32 {s(S_T0)}, {s(S_T0)}, {ST}")
        a(f"v_lshl_add_u32 {v(TOK)}, {v(L15)}, 2, {s(S_T0)}")
        a(f"v_bfe_u32 {v(T+3)}, v1, 2, 3")
        a(f"v_lshrrev_b32 {v(T+4)}, 5, v1")
        a(f"v_lshl_add_u32 {v(T+4)}, {v(T+4)}, 4, {v(T+3)}")
        a(f"v_and_b32 {v(T+5)}, 3, v1")
        a(f"v_lshlrev_b32 {v(T+6)}, 3, {v(T+5)}")
        a(f"v_mul_u32_u24 v6, 160, {v(T+4)}")
        a(f"s_mul_i32 {s(S_T0)}, {s(S_C)}, 80")
        a(f"s_add_u32 {s(S_T0)}, {s(S_T0)}, 16384")
        a(f"v_add3_u32 v6, v6, {v(T+6)}, {s(S_T0)}")
        for i in range(self.ACC, self.ONES): a(f"v_mov_b32 {v(i)}, 0")
        for i in range(4): a(f"v_mov_b32 {v(self.ONES+i)}, 0x3f803f80")
        a(f"s_mov_b32 {s(S_IT)}, 0")
        self.calc_u()
        a("s_waitcnt lgkmcnt(0)")
        self.stamp(1)
        srd(a, R_WS, P_WS, WS_SIZE)
        a(f"s_cmp_lg_u32 {s(S_TY)}, 0")
        a(f"s_cbranch_scc1 Lc_q")
        a(f"v_cmp_gt_u32 vcc, 2, {v(T+5)}")
        a(f"v_mov_b32 {v(T+7)}, 10224")
        a(f"v_cndmask_b32 {v(T+7)}, {v(T+7)}, 64, vcc")
        a(f"v_add_u32 v7, v6, {v(T+7)}")
        a(f"v_lshrrev_b32 {v(T+7)}, 1, {v(T+3)}")
        a(f"v_lshl_add_u32 {v(T+8)}, {v(T+4)}, 7, {v(T+6)}")
        a(f"v_add_u32 {v(T+8)}, 36864, {v(T+8)}")
        a(f"s_lshl_b32 {s(S_T0)}, {s(S_C)}, 1")
        a(f"v_xor_b32 {v(T+7)}, {s(S_T0)}, {v(T+7)}")
        a(f"v_lshl_add_u32 v8, {v(T+7)}, 5, {v(T+8)}")
        a(f"v_xor_b32 {v(T+7)}, 1, {v(T+7)}")
        a(f"v_lshl_add_u32 v9, {v(T+7)}, 5, {v(T+8)}")
        a(f"s_branch Lp1_0")
        a.label('Lc_q')
        a(f"v_lshl_add_u32 {v(T+8)}, {v(T+4)}, 8, {v(T+6)}")
        a(f"v_add_u32 {v(T+8)}, 26624, {v(T+8)}")
        a(f"s_lshl_b32 {s(S_T0)}, {s(S_C)}, 2")
        a(f"v_xor_b32 {v(T+7)}, {s(S_T0)}, {v(T+3)}")
        for i in range(4):
            a(f"v_xor_b32 {v(T+9)}, {i}, {v(T+7)}")
            a(f"v_lshl_add_u32 {v(7+i)}, {v(T+9)}, 5, {v(T+8)}")
        a(f"s_branch Lp1_1")

    def p1_reads(self, ty, st, A, B):
        out = [f"ds_read_b128 {v(A,4)}, {v(self.VA+st)}", f"ds_read_b128 {v(A+4,4)}, {v(self.VA+2+st)}"]
        for t, (ad, ex, pitch, o) in enumerate(self.tiles(ty)):
            for u in range(2):
                out.append(f"ds_read_b64_tr_b16 {v(B+4*t+2*u,2)}, {v(ad)} offset:{(32*st+8*u)*pitch+ex}")
        return out
    def p1_mfmas(self, ty, A, B):
        M = "v_mfma_f32_16x16x32_bf16"
        out = []
        for t, (ad, ex, pitch, o) in enumerate(self.tiles(ty)):
            for i in range(2):
                d = v(self.acc(t, i), 4); x = v(A + 4*i, 4); w = v(B + 4*t, 4)
                out.append(f"{M} {d}, {x}, {w}, {d}" if o == 'N' else f"{M} {d}, {w}, {x}, {d}")
        return out

    def duty(self, half, A, B):
        a = self.a
        M = "v_mfma_f32_16x16x32_bf16"
        on = v(self.ONES, 4); x0 = v(A, 4)
        def c(r): return v(r, 4) if half else '0'
        a.label(f"Lduty{half}")
        a(f"{M} {v(self.RS,4)}, {on}, {x0}, {c(self.RS)}")
        a(f"{M} {v(self.SQ,4)}, {x0}, {x0}, {c(self.SQ)}")
        Ld = self.lab('dd')
        labs = [self.lab('dr') for _ in range(4)]
        for r in range(1, 4):
            a(f"s_cmp_eq_u32 {s(S_R)}, {r}")
            a(f"s_cbranch_scc1 {labs[r]}")
        for r in range(4):
            a.label(labs[r])
            a(f"{M} {v(self.CSA,4)}, {on}, {v(B+4*r,4)}, {c(self.CSA)}")
            if r < 3:
                a(f"{M} {v(self.CSB,4)}, {on}, {v(B+4*(r+4),4)}, {c(self.CSB)}")
                a(f"s_branch {Ld}")
        a.label(Ld)
        if half:
            T = 160
            SQ = self.SQ
            a(f"v_and_b32 {v(T)}, 3, v1")
            a(f"s_mul_i32 {s(S_T0)}, {s(S_RB)}, 10")
            a(f"s_add_u32 {s(S_T0)}, {s(S_T0)}, {s(S_S0)}")
            a(f"s_lshl_b32 {s(S_T0)}, {s(S_T0)}, 10")
            a(f"s_add_u32 {s(S_T0)}, {s(S_T0)}, {(WS_RP - 2*ST) & 0xffffffff}")
            a(f"v_lshl_add_u32 {v(T+1)}, {v(self.TOK)}, 1, {s(S_T0)}")
            a(f"s_mul_i32 {s(S_T0)}, {s(S_COL)}, 10")
            a(f"s_add_u32 {s(S_T0)}, {s(S_T0)}, {s(S_S0)}")
            a(f"s_lshl_b32 {s(S_T0)}, {s(S_T0)}, 10")
            a(f"s_mul_i32 {s(S_T1)}, {s(S_C)}, 448")
            a(f"s_add_u32 {s(S_T0)}, {s(S_T0)}, {s(S_T1)}")
            a(f"s_lshl_b32 {s(S_T1)}, {s(S_R)}, 6")
            a(f"s_add_u32 {s(S_T0)}, {s(S_T0)}, {s(S_T1)}")
            a(f"s_add_u32 {s(S_T0)}, {s(S_T0)}, {WS_CP}")
            a(f"v_lshl_add_u32 {v(T+2)}, {v(self.L15)}, 2, {s(S_T0)}")
            a(f"v_cmp_eq_u32 vcc, 1, {v(T)}")
            a(f"v_cndmask_b32 {v(self.RS+1)}, {v(SQ)}, {v(SQ+1)}, vcc")
            a(f"v_cmp_eq_u32 vcc, 2, {v(T)}")
            a(f"v_cndmask_b32 {v(self.RS+1)}, {v(self.RS+1)}, {v(SQ+2)}, vcc")
            a(f"v_cmp_eq_u32 vcc, 3, {v(T)}")
            a(f"v_cndmask_b32 {v(self.RS+1)}, {v(self.RS+1)}, {v(SQ+3)}, vcc")
            L = self.lab('dn')
            a(f"s_cmp_ge_u32 {s(S_COL)}, 10")
            a(f"s_cbranch_scc1 {L}")
            exec_mask(a, DIAGMASK)
            a(f"buffer_store_dwordx2 {v(self.RS,2)}, {v(T+1)}, {s(R_WS,4)}, 0 offen sc1")
            a.label(L)
            L = self.lab('dn')
            a(f"s_cmp_ge_u32 {s(S_RB)}, 10")
            a(f"s_cbranch_scc1 {L}")
            exec_mask(a, 0xffff)
            a(f"buffer_store_dword {v(self.CSA)}, {v(T+2)}, {s(R_WS,4)}, 0 offen sc1")
            a(f"s_cmp_eq_u32 {s(S_R)}, 3")
            a(f"s_cbranch_scc1 {L}")
            a(f"buffer_store_dword {v(self.CSB)}, {v(T+2)}, {s(R_WS,4)}, 0 offen offset:256 sc1")
            a.label(L)
            a("s_mov_b64 exec, -1")
        a(f"s_cmp_lg_u32 {s(S_TY)}, 0")
        a(f"s_cbranch_scc1 Lret{half}_1")
        a(f"s_branch Lret{half}_0")

    def pack_blocks(self):
        a = self.a
        PD = 72
        def ret(h):
            a(f"s_cmp_lg_u32 {s(S_TY)}, 0")
            a(f"s_cbranch_scc1 Lret{h}_1")
            a(f"s_branch Lret{h}_0")
        a.label('Lx1')
        a(f"s_cmp_eq_u32 {s(S_IT)}, 1")
        a(f"s_cbranch_scc1 Lduty1")
        L = self.lab('pa')
        a(f"s_cmp_gt_u32 {s(S_U)}, 135")
        a(f"s_cbranch_scc1 {L}")
        a(f"v_lshrrev_b32 v160, 2, v1")
        a(f"v_mul_u32_u24 v160, 640, v160")
        a(f"v_and_b32 v161, 3, v1")
        a(f"v_lshl_add_u32 v160, v161, 3, v160")
        a(f"s_mul_i32 {s(S_T0)}, {s(S_R)}, 160")
        a(f"s_mul_i32 {s(S_T1)}, {s(S_C)}, 96")
        a(f"s_add_u32 {s(S_T0)}, {s(S_T0)}, {s(S_T1)}")
        a(f"s_add_u32 {s(S_T0)}, {s(S_T0)}, {SCR}")
        a(f"v_add_u32 v160, {s(S_T0)}, v160")
        for c in range(3):
            a(f"ds_read_b64_tr_b16 {v(PD+4*c,2)}, v160 offset:{32*c}")
            a(f"ds_read_b64_tr_b16 {v(PD+2+4*c,2)}, v160 offset:{32*c + 16*640}")
        a.label(L)
        ret(1)
        a.label('Lx0')
        a(f"s_cmp_eq_u32 {s(S_IT)}, 1")
        a(f"s_cbranch_scc1 Lduty0")
        L = self.lab('pb'); Lw = self.lab('pw')
        a(f"s_cmp_lg_u32 {s(S_IT)}, 4")
        a(f"s_cbranch_scc1 {Lw}")
        a(f"s_cmp_gt_u32 {s(S_U)}, 135")
        a(f"s_cbranch_scc1 {L}")
        a(f"s_and_b32 {s(S_T0)}, {s(S_U)}, 1")
        a(f"s_lshl_b32 {s(S_T0)}, {s(S_T0)}, 2")
        a(f"s_add_u32 {s(S_T0)}, {s(S_T0)}, {s(S_R)}")
        a(f"s_mul_i32 {s(S_T0)}, {s(S_T0)}, 68")
        a(f"s_lshr_b32 {s(S_T1)}, {s(S_U)}, 1")
        a(f"s_add_u32 {s(S_T0)}, {s(S_T0)}, {s(S_T1)}")
        a(f"s_mul_i32 {s(S_T0)}, {s(S_T0)}, 5120")
        a(f"s_mul_i32 {s(S_T1)}, {s(S_C)}, 3072")
        a(f"s_add_u32 {s(S_T0)}, {s(S_T0)}, {s(S_T1)}")
        a(f"s_add_u32 {s(S_T0)}, {s(S_T0)}, {WS_P2}")
        a(f"v_lshlrev_b32 v160, 4, v1")
        for c in range(3):
            if c == 2:
                a(f"s_cmp_lg_u32 {s(S_C)}, 0")
                a(f"s_cbranch_scc1 {L}")
            a(f"buffer_store_dwordx4 {v(PD+4*c,4)}, v160, {s(R_WS,4)}, {s(S_T0)} offen offset:{1024*c} sc1")
        a.label(L)
        ret(0)
        a.label(Lw)
        a("s_waitcnt vmcnt(0)")
        ret(0)

    def p1_loop(self, ty):
        a = self.a
        nad = 8 if ty == 0 else 9
        nb = a.nbar
        a.label(f"Lp1_{ty}")
        a("s_barrier")
        for x in self.p1_reads(ty, 0, self.XA, self.XB): a(x)
        a(f"s_branch Lret1_{ty}")
        a.label(f"Lp1h_{ty}")
        a("s_barrier")
        interleave(a, self.p1_mfmas(ty, self.YA, self.YB), self.p1_reads(ty, 0, self.XA, self.XB), 0.75, 3)
        a(f"s_bitcmp1_b32 {(1<<1)|(1<<3)}, {s(S_IT)}")
        a(f"s_cbranch_scc1 Lx1")
        a.label(f"Lret1_{ty}")
        upd = [f"v_add_u32 {v(self.VA+i)}, {s(S_DELTA)}, {v(self.VA+i)}" for i in range(nad)]
        rd = self.p1_reads(ty, 1, self.YA, self.YB)
        a(f"s_add_u32 {s(S_IT)}, {s(S_IT)}, 1")
        a(f"s_mul_i32 {s(S_T0)}, {s(S_IT)}, 11")
        a(f"s_lshr_b32 {s(S_T0)}, {s(S_T0)}, 5")
        a(f"s_mul_i32 {s(S_T0)}, {s(S_T0)}, 3")
        a(f"s_cmp_eq_u32 {s(S_T0)}, {s(S_IT)}")
        a(f"s_mov_b32 {s(S_DELTA)}, {SLOT}")
        a(f"s_cselect_b32 {s(S_DELTA)}, {hex(-2*SLOT & 0xffffffff)}, {s(S_DELTA)}")
        a("s_waitcnt lgkmcnt(0)")
        interleave(a, self.p1_mfmas(ty, self.XA, self.XB), rd + upd, 0.9, 3)
        a(f"s_bitcmp1_b32 {(1<<1)|(1<<3)|(1<<4)|(1<<5)}, {s(S_IT)}")
        a(f"s_cbranch_scc1 Lx0")
        a.label(f"Lret0_{ty}")
        a(f"s_cmp_lt_u32 {s(S_IT)}, 10")
        a("s_waitcnt lgkmcnt(0)")
        a(f"s_cbranch_scc1 Lp1h_{ty}")
        a("s_barrier")
        self.nb_loop = 11
        a.nbar = nb

    def gelu_tile(self, t, AB, CS, BR, d0, W):
        a = self.a
        B = W; X = W + 4
        a(f"v_lshlrev_b32 {v(B)}, 16, {v(BR)}")
        a(f"v_and_b32 {v(B+1)}, {s(S_K1)}, {v(BR)}")
        a(f"v_lshlrev_b32 {v(B+2)}, 16, {v(BR+1)}")
        a(f"v_and_b32 {v(B+3)}, {s(S_K1)}, {v(BR+1)}")
        ch = [(i, p) for i in range(2) for p in range(2)]
        ac = lambda i, p: self.acc(t, i) + 2 * p
        x = lambda i, p: X + 4 * i + 2 * p
        for i, p in ch: a(pk('fma', x(i,p), ('b', AB+4*i+2), CS+2*p, B+2*p))
        for i, p in ch: a(pk('fma', ac(i,p), ('b', AB+4*i), ac(i,p), x(i,p)))
        for i, p in ch: a(pk('mul', x(i,p), ac(i,p), ac(i,p)))
        for i, p in ch: a(pk('fma', x(i,p), x(i,p), ('s', S_K0), ('b', 166)))
        for i, p in ch: a(pk('mul', x(i,p), x(i,p), ac(i,p)))
        for k in range(8): a(f"v_exp_f32 {v(X+k)}, {v(X+k)}")
        for i, p in ch: a(pk('add', x(i,p), x(i,p), '1.0'))
        for k in range(8): a(f"v_rcp_f32 {v(X+k)}, {v(X+k)}")
        for i, p in ch: a(pk('mul', x(i,p), x(i,p), ac(i,p)))
        for i, p in ch: a(f"v_cvt_pk_bf16_f32 {v(d0(i)+p)}, {v(x(i,p))}, {v(x(i,p)+1)}")
    def gelu_consts(self):
        a = self.a
        c1 = -2 * math.sqrt(2 / math.pi) * LOG2E; c2 = c1 * 0.044715
        a(f"s_mov_b32 {s(S_K0)}, {lit(c2)}")
        a(f"s_mov_b32 {s(S_K1)}, 0xffff0000")
        a(f"v_mov_b32 v166, {lit(c1)}")

    def phi_tile(self, t, fa, fb, fcs, X, EPS, d0):
        a = self.a
        ch = [(i, p) for i in range(2) for p in range(2)]
        ac = lambda i, p: self.acc(t, i) + 2 * p
        x = lambda i, p: X + 4 * i + 2 * p
        for i, p in ch: a(pk('fma', x(i,p), fb(i,p), fcs(i,p), ('b', EPS)))
        for i, p in ch: a(pk('fma', ac(i,p), fa(i,p), ac(i,p), x(i,p)))
        for i, p in ch: a(pk('mul', x(i,p), ac(i,p), ('s', S_K0)))
        for k in range(8): a(f"v_exp_f32 {v(X+k)}, {v(X+k)} clamp")
        for i in range(2):
            for k in range(4): a(f"v_max_f32 {v(X+8+4*i+k)}, {v(EPS)}, {v(self.acc(t,i)+k)}")
        for i, p in ch: a(pk('add', x(i,p), x(i,p), x(i,p)+8))
        for i, p in ch: a(f"v_cvt_pk_bf16_f32 {v(d0(i)+p)}, {v(x(i,p))}, {v(x(i,p)+1)}")

    def h_addr(self, ks0_imm, ks_c_mul):
        a = self.a
        a(f"s_lshl_b32 {s(S_T0)}, {s(S_RB)}, 3")
        a(f"s_lshl_b32 {s(S_T1)}, {s(S_R)}, 1")
        a(f"s_add_u32 {s(S_T0)}, {s(S_T0)}, {s(S_T1)}")
        a(f"s_add_u32 {s(S_T0)}, {s(S_T0)}, {s(S_C)}")
        a(f"s_xor_b32 {s(S_T1)}, {s(S_T0)}, 1")
        a(f"s_mul_i32 {s(S_T2)}, {s(S_HG)}, 6")
        a(f"s_mul_i32 {s(S_T3)}, {s(S_C)}, {ks_c_mul}")
        a(f"s_add_u32 {s(S_T2)}, {s(S_T2)}, {s(S_T3)}")
        a(f"s_add_u32 {s(S_T2)}, {s(S_T2)}, {ks0_imm + WS_H2 // 1024}")
        for k, d in ((S_T0, S_OW), (S_T1, S_OM)):
            a(f"s_mul_i32 {s(k)}, {s(k)}, 48")
            a(f"s_add_u32 {s(k)}, {s(k)}, {s(S_T2)}")
            a(f"s_lshl_b32 {s(d)}, {s(k)}, 10")
        a(f"v_lshlrev_b32 v2, 4, v1")
    def h_store(self, p, TMP):
        for i in range(2):
            self.a(f"buffer_store_dwordx4 {v(TMP+p*8+i*4,4)}, v2, {s(R_WS,4)}, {s((S_OW, S_OM)[i])} offen offset:{1024*p} sc1")

    def epi_kv(self):
        a = self.a
        nb = a.nbar
        L15, G, TOK = self.L15, self.G, self.TOK
        self.stamp(2)
        a(f"s_lshl_b32 {s(S_T0)}, {s(S_R)}, 7")
        a(f"s_lshl_b32 {s(S_T1)}, {s(S_C)}, 6")
        a(f"s_add_u32 {s(S_T0)}, {s(S_T0)}, {s(S_T1)}")
        a(f"s_add_u32 {s(S_T0)}, {s(S_T0)}, {ST}")
        a(f"v_lshl_add_u32 v2, {v(G)}, 4, {s(S_T0)}")
        a(f"v_xor_b32 v3, 64, v2")
        a(f"s_mul_i32 {s(S_T0)}, {s(S_C)}, 448")
        a(f"s_add_u32 {s(S_T0)}, {s(S_T0)}, {ST_CS}")
        a(f"v_lshl_add_u32 v4, {v(L15)}, 2, {s(S_T0)}")
        a(f"v_lshl_add_u32 v5, {v(G)}, 4, {s(S_T0)}")
        a(f"v_xor_b32 v6, 64, {v(TOK)}")
        a(f"s_lshl_b32 {s(S_T0)}, {s(S_C)}, 6")
        a(f"s_add_u32 {s(S_T0)}, {s(S_T0)}, {B1L}")
        a(f"v_lshl_add_u32 v7, {v(G)}, 3, {s(S_T0)}")
        AB = 88; CS = 104; A2 = 114; CH = 80; BR = 72
        rd = [f"ds_read_b128 {v(AB,4)}, v2", f"ds_read_b128 {v(AB+4,4)}, v2 offset:512",
              f"ds_read_b128 {v(AB+8,4)}, v3", f"ds_read_b128 {v(AB+12,4)}, v3 offset:512"]
        rd += [f"ds_read_b32 {v(CS+2*t)}, v4 offset:{64*t}" for t in range(5)]
        rd += [f"ds_read_b32 {v(A2)}, {v(TOK)} offset:1024", f"ds_read_b32 {v(A2+2)}, {v(TOK)} offset:1536",
               f"ds_read_b32 {v(A2+4)}, v6 offset:1024", f"ds_read_b32 {v(A2+6)}, v6 offset:1536"]
        for j in range(2):
            rd += [f"ds_read_b128 {v(CH+4*j,4)}, v5 offset:{64*(5+j)}", f"ds_read_b64 {v(BR+2*j,2)}, v7 offset:{32*j}"]
        interleave(a, self.p1_mfmas(0, self.YA, self.YB), rd, 0.8, 2)
        EPS = 76
        a(f"v_mov_b32 {v(EPS)}, {lit(1e-6)}")
        a(f"v_mov_b32 {v(EPS+2)}, {lit(-1e-6)}")
        a(f"s_mov_b32 {s(S_K0)}, {lit(LOG2E)}")
        a("s_waitcnt lgkmcnt(0)")
        self.stamp(3)
        FR = 124; X = 148
        fa = lambda i, p: AB + 8*i + 2*p
        fb = lambda i, p: AB + 8*i + 4 + 2*p
        ch = [(i, p) for i in range(2) for p in range(2)]
        for t in (0, 1):
            self.phi_tile(t, fa, fb, lambda i, p: ('b', CS + 2*t), X, EPS, lambda i: FR + 4*t + 2*i)
        self.phi_tile(2, fa, fb, lambda i, p: ('b', CS + 4), X, EPS, lambda i: FR + 8 + 2*i)
        for i, p in ch: a(pk('add', X+4*i+2*p, self.acc(2,i)+2*p, ('b', EPS+2)))
        for i, p in ch: a(f"v_cvt_pk_bf16_f32 {v(FR+12+2*i+p)}, {v(X+4*i+2*p)}, {v(X+4*i+2*p+1)}")
        for t in (3, 4):
            for i, p in ch: a(pk('mul', X+4*i+2*p, fb(i,p), ('b', CS+2*t)))
            for i, p in ch: a(pk('fma', X+4*i+2*p, fa(i,p), self.acc(t,i)+2*p, X+4*i+2*p))
            for i, p in ch: a(f"v_cvt_pk_bf16_f32 {v(FR+4*(t+1)+2*i+p)}, {v(X+4*i+2*p)}, {v(X+4*i+2*p+1)}")
        a(f"v_cmp_gt_u32 vcc, 8, {v(L15)}")
        for r in range(4): a(f"v_cndmask_b32 {v(FR+12+r)}, {v(FR+12+r)}, {v(self.ONES)}, vcc")
        self.stamp(4)
        pairs = [(0, 0), (0, 1), (1, 0), (1, 1), (1, 2), (2, 0), (2, 1), (2, 2)]
        KVD = 12
        a(f"s_mul_i32 {s(S_T0)}, {s(S_R)}, 6720")
        a(f"s_mul_i32 {s(S_T1)}, {s(S_C)}, 3360")
        a(f"s_add_u32 {s(S_T0)}, {s(S_T0)}, {s(S_T1)}")
        a(f"s_add_u32 {s(S_T0)}, {s(S_T0)}, {SCR}")
        for j, (td, te) in enumerate(pairs):
            a(f"v_mfma_f32_16x16x32_bf16 {v(KVD+4*j,4)}, {v(FR+4*td,4)}, {v(FR+12+4*te,4)}, 0")
        a(f"v_mul_u32_u24 v2, 336, {v(G)}")
        a(f"v_add_u32 v2, {s(S_T0)}, v2")
        a(f"v_lshl_add_u32 v3, {v(L15)}, 4, v2")
        a(f"v_add_u32 v4, {-128 & 0xffffffff}, v3")
        a(f"v_add_u32 v5, {(4*336 - 128 - 320) & 0xffffffff}, v3")
        a(f"v_add_u32 v6, {4*336 - 128}, v3")
        a(f"v_cmp_eq_u32 vcc, 0, {v(G)}")
        a(f"v_cndmask_b32 v5, v5, v6, vcc")
        a(f"v_add_u32 v6, {8*336 - 128 - 320}, v3")
        a(f"v_cmp_eq_u32 vcc, 0, {v(L15)}")
        for td in range(3):
            a(f"v_add_u32 v10, {4*td*336 + 320}, v2")
            a(f"v_cndmask_b32 {v(7+td)}, {v(4+td)}, v10, vcc")
        def valid(td, te, l):
            col = l & 15; g = l >> 4; dqg = 4 * td + g
            if dqg > 9: return False
            hh = dqg // 5
            if te == 0:
                if col == 0: return True
                if col < 8: return False
            eg = col - 8 + 16 * te
            return eg // 20 == hh
        tot = 0
        for j, (td, te) in enumerate(pairs):
            m = sum(1 << l for l in range(64) if valid(td, te, l)); tot += bin(m).count('1')
            exec_mask(a, m)
            a(f"ds_write_b128 {v(7+td if te == 0 else 4+td)}, {v(KVD+4*j,4)} offset:{256*te}")
        assert tot == 210
        a("s_mov_b64 exec, -1")
        a(f"v_lshlrev_b32 v3, 4, v0")
        a(f"v_add_u32 v4, {SCR}, v3")
        a(f"v_mov_b32 v5, {hex(OOB)}")
        a(f"v_cmp_gt_u32 vcc, 420, v0")
        a(f"v_cndmask_b32 v3, v5, v3, vcc")
        self.h_addr(0, 1)
        a(f"s_lshl_b32 {s(S_T0)}, {s(S_HG)}, 4")
        a(f"s_add_u32 {s(S_T0)}, {s(S_T0)}, {s(S_RB)}")
        a(f"s_mul_i32 {s(S_T0)}, {s(S_T0)}, {KP_STRIDE}")
        a(f"s_add_u32 {s(S_T0)}, {s(S_T0)}, {WS_KP}")
        self.gelu_consts()
        a("s_waitcnt lgkmcnt(0)")
        self.stamp(5)
        a("s_barrier")
        for r in range(4): a(f"ds_read_b128 {v(12+4*r,4)}, v4 offset:{6720*r}")
        a("s_waitcnt lgkmcnt(0)")
        for p in range(2): a(pk('add', 12+2*p, 12+2*p, 16+2*p))
        for p in range(2): a(pk('add', 20+2*p, 20+2*p, 24+2*p))
        for p in range(2): a(pk('add', 12+2*p, 12+2*p, 20+2*p))
        a(f"buffer_store_dwordx4 v[12:15], v3, {s(R_WS,4)}, {s(S_T0)} offen sc1")
        self.stamp(7)
        TMP = 124
        for j in range(2):
            self.gelu_tile(5 + j, A2, CH + 4*j, BR + 2*j, lambda i: TMP + 4*i + 2*j, 148)
        self.stamp(8)
        a("s_waitcnt vmcnt(0)")
        self.h_store(0, TMP)
        self.stamp(9)
        a("s_barrier")
        self.p2_pre_setup()
        a("s_waitcnt vmcnt(0)")
        self.stamp(11)
        a("s_barrier")
        a("s_barrier")
        self.p2_pre_loads()
        self.nb_c_kv = self.nb_loop + a.nbar - nb
        a.nbar = nb
        a("s_branch Lp2")

    def epi_q(self):
        a = self.a
        nb = a.nbar
        L15, G, TOK = self.L15, self.G, self.TOK
        self.stamp(2)
        a(f"s_mul_i32 {s(S_T0)}, {s(S_C)}, 448")
        a(f"s_add_u32 {s(S_T0)}, {s(S_T0)}, {ST_CS}")
        a(f"v_lshl_add_u32 v5, {v(G)}, 4, {s(S_T0)}")
        a(f"v_xor_b32 v6, 64, {v(TOK)}")
        a(f"s_lshl_b32 {s(S_T0)}, {s(S_C)}, 7")
        a(f"s_add_u32 {s(S_T0)}, {s(S_T0)}, {B1L}")
        a(f"v_lshl_add_u32 v7, {v(G)}, 3, {s(S_T0)}")
        A2 = 68; A1 = 112; BR = 76; CS = 84
        rd = [f"ds_read_b32 {v(A2)}, {v(TOK)} offset:1024", f"ds_read_b32 {v(A2+2)}, {v(TOK)} offset:1536",
              f"ds_read_b32 {v(A2+4)}, v6 offset:1024", f"ds_read_b32 {v(A2+6)}, v6 offset:1536"]
        for j in range(4):
            rd += [f"ds_read_b128 {v(CS+4*(3+j),4)}, v5 offset:{64*(3+j)}", f"ds_read_b64 {v(BR+2*j,2)}, v7 offset:{32*j}"]
        rd += [f"ds_read_b32 {v(A1)}, {v(TOK)}", f"ds_read_b32 {v(A1+2)}, {v(TOK)} offset:512",
               f"ds_read_b32 {v(A1+4)}, v6", f"ds_read_b32 {v(A1+6)}, v6 offset:512"]
        rd += [f"ds_read_b128 {v(CS+4*t,4)}, v5 offset:{64*t}" for t in range(3)]
        mf = self.p1_mfmas(1, self.YA, self.YB)
        mf = mf[6:] + mf[:6]
        interleave(a, mf, rd, 0.8, 2)
        self.h_addr(2, 2)
        self.gelu_consts()
        a(f"v_lshlrev_b32 v3, 4, v0")
        a(f"v_add_u32 v4, {KVT}, v3")
        for k in range(4): a(f"v_mov_b32 {v(120+k)}, 0")
        a("s_waitcnt lgkmcnt(0)")
        a(f"ds_write_b128 v4, v[120:123]")
        self.stamp(3)
        TMP = 124
        a("s_setprio 1")
        for j in range(4):
            self.gelu_tile(3 + j, A2, CS + 4*(3+j), BR + 2*j, lambda i: TMP + (j >> 1)*8 + 4*i + 2*(j & 1), 140)
            if j & 1: self.h_store(j >> 1, TMP)
        a("s_setprio 0")
        self.stamp(5)
        PQ = 152; EPS = 76; X = 112
        a(f"v_mov_b32 {v(EPS)}, {lit(1e-6)}")
        a(f"s_mov_b32 {s(S_K0)}, {lit(LOG2E)}")
        X = 96
        for t in range(3):
            self.phi_tile(t, lambda i, p: ('b', A1+4*i), lambda i, p: ('b', A1+4*i+2), lambda i, p: CS+4*t+2*p, X, EPS,
                          (lambda i: PQ + 4*i + 2*t) if t < 2 else (lambda i: PQ + 8 + 2*i))
        self.stamp(6)
        a(f"v_cmp_le_u32 vcc, 210, v0")
        a(f"v_cndmask_b32 v84, 0, 1, vcc")
        a(f"v_mov_b32 v86, -210")
        a(f"v_mad_i32_i24 v85, v84, v86, v0")
        a(f"v_mul_u32_u24 v86, 3121, v85")
        a(f"v_lshrrev_b32 v86, 16, v86")
        a(f"v_mov_b32 v88, -21")
        a(f"v_mad_i32_i24 v87, v86, v88, v85")
        a(f"v_cmp_le_u32 vcc, 5, v86")
        a(f"v_cndmask_b32 v88, 0, 1, vcc")
        a(f"v_lshlrev_b32 v89, 1, v88")
        a(f"v_subrev_u32 v90, 16, v87")
        a(f"v_lshlrev_b32 v90, 2, v90")
        a(f"v_mad_u32_u24 v90, v88, 3, v90")
        a(f"v_add_u32 v91, 1, v88")
        a(f"v_cmp_eq_u32 {s(S_MASK,2)}, 20, v87")
        a(f"v_cndmask_b32 v90, v90, v91, {s(S_MASK,2)}")
        a(f"v_cmp_gt_u32 vcc, 16, v87")
        a(f"v_cndmask_b32 v90, v90, v87, vcc")
        a(f"v_cndmask_b32 v89, 1, v89, vcc")
        a(f"v_and_b32 v91, 3, v86")
        a(f"v_lshl_add_u32 v90, v91, 4, v90")
        a(f"v_lshlrev_b32 v91, 10, v89")
        a(f"v_lshl_add_u32 v91, v90, 4, v91")
        a(f"v_and_b32 v92, 4, v86")
        a(f"v_lshl_add_u32 v91, v92, 1, v91")
        a(f"v_lshrrev_b32 v92, 1, v89")
        a(f"v_lshlrev_b32 v92, 9, v92")
        a(f"v_lshl_add_u32 v92, v90, 3, v92")
        a(f"v_add_u32 v92, 3072, v92")
        a(f"v_cmp_le_u32 vcc, 8, v86")
        a(f"v_cndmask_b32 v91, v91, v92, vcc")
        a(f"v_cndmask_b32 v149, 64, 32, vcc")
        a(f"v_lshl_add_u32 v91, v84, 12, v91")
        a(f"v_add_u32 v148, {KVT}, v91")
        a(f"v_mov_b32 v86, {hex(OOB)}")
        a(f"v_cmp_gt_u32 vcc, 420, v0")
        a(f"v_cndmask_b32 v150, v86, v3, vcc")
        a(f"s_and_b64 {s(S_MASK,2)}, {s(S_MASK,2)}, vcc")
        a(f"s_mov_b64 {s(S_DEST,2)}, vcc")
        self.p2_pre_setup()
        a(f"s_mul_i32 {s(S_T0)}, {s(S_HG)}, {16*KP_STRIDE}")
        a(f"s_add_u32 {s(S_T0)}, {s(S_T0)}, {WS_KP}")
        self.stamp(7)
        a("s_waitcnt vmcnt(0) lgkmcnt(0)")
        self.stamp(8)
        a("s_barrier")
        a(f"s_lshl_b32 {s(S_T1)}, {s(S_C)}, 12")
        a(f"s_add_u32 {s(S_T1)}, {s(S_T1)}, {KVT}")
        a(f"v_lshl_add_u32 v140, v1, 4, {s(S_T1)}")
        a(f"v_lshl_add_u32 v141, v1, 3, {s(S_T1)}")
        a(f"s_lshl_b32 {s(S_T1)}, {s(S_R)}, 5")
        a(f"s_lshl_b32 {s(S_T2)}, {s(S_C)}, 4")
        a(f"s_add_u32 {s(S_T1)}, {s(S_T1)}, {s(S_T2)}")
        a(f"v_add_u32 v142, {s(S_T1)}, {v(L15)}")
        a(f"v_xor_b32 v143, 16, v142")
        a(f"s_mul_i32 {s(S_T1)}, {s(S_C)}, 80")
        a(f"s_add_u32 {s(S_T1)}, {s(S_T1)}, {OEX}")
        for i in range(2):
            a(f"v_mul_u32_u24 {v(142+i)}, 160, {v(142+i)}")
            a(f"v_add_u32 {v(142+i)}, {s(S_T1)}, {v(142+i)}")
            a(f"v_lshl_add_u32 {v(144+i)}, {v(G)}, 1, {v(142+i)}")
            a(f"v_lshl_add_u32 {v(142+i)}, {v(G)}, 3, {v(142+i)}")
        a("s_barrier")
        self.stamp(9)
        for k in range(16):
            a(f"buffer_load_dwordx4 {v(12+4*k,4)}, v150, {s(R_WS,4)}, {s(S_T0)} offen sc1")
            if k < 15: a(f"s_add_u32 {s(S_T0)}, {s(S_T0)}, {KP_STRIDE}")
        self.stamp(10)
        for k in range(1, 16):
            a(f"s_waitcnt vmcnt({15-k})")
            for p in range(2): a(pk('add', 12+2*p, 12+2*p, 12+4*k+2*p))
        self.stamp(12)
        a(f"v_cvt_pk_bf16_f32 v12, v12, v13")
        a(f"v_cvt_pk_bf16_f32 v13, v14, v15")
        Lz = self.lab('kz')
        a(f"s_mov_b64 exec, {s(S_DEST,2)}")
        a(f"s_cbranch_execz {Lz}")
        a(f"ds_write_b64 v148, v[12:13]")
        a(f"s_mov_b64 exec, {s(S_MASK,2)}")
        a(f"s_cbranch_execz {Lz}")
        for k in range(3):
            a(f"v_add_u32 v148, v148, v149")
            a(f"ds_write_b64 v148, v[12:13]")
        a.label(Lz)
        a("s_mov_b64 exec, -1")
        a("s_waitcnt lgkmcnt(0)")
        a("s_barrier")
        F = 12
        for k in range(3): a(f"ds_read_b128 {v(F+4*k,4)}, v140 offset:{1024*k}")
        a(f"ds_read_b64 {v(F+12,2)}, v141 offset:3072")
        a(f"ds_read_b64 {v(F+14,2)}, v141 offset:3584")
        self.p2_pre_loads()
        a("s_waitcnt lgkmcnt(0)")
        U = 32
        for i in range(2):
            for k in (1, 2, 0):
                a(f"v_mfma_f32_16x16x32_bf16 {v(U+12*i+4*k,4)}, {v(F+4*k,4)}, {v(PQ+4*i,4)}, 0")
        for i in range(2):
            for k in (1, 2):
                a(f"v_mfma_f32_16x16x16_bf16 {v(U+12*i+4*k,4)}, {v(F+12+2*(k-1),2)}, {v(PQ+8+2*i,2)}, {v(U+12*i+4*k,4)}")
        a(f"v_mov_b32 v28, {lit(1e-6)}")
        for i in range(2):
            u = U + 12 * i
            a(f"v_add_f32 {v(u+5)}, v28, {v(u+5)}")
            a(f"v_add_f32 {v(u+6)}, v28, {v(u+6)}")
            a(f"v_rcp_f32 {v(56+2*i)}, {v(u+5)}")
            a(f"v_rcp_f32 {v(u+6)}, {v(u+6)}")
        for i in range(2):
            u = U + 12 * i
            for p in range(2): a(pk('mul', u+2*p, u+2*p, ('b', 56+2*i)))
            for p in range(2): a(pk('mul', u+8+2*p, u+8+2*p, ('b', u+6)))
            a(f"v_mul_f32 {v(u+4)}, {v(u+4)}, {v(56+2*i)}")
            a(f"v_mul_f32 {v(u+7)}, {v(u+7)}, {v(u+6)}")
            a(f"v_cvt_pk_bf16_f32 {v(u)}, {v(u)}, {v(u+1)}")
            a(f"v_cvt_pk_bf16_f32 {v(u+1)}, {v(u+2)}, {v(u+3)}")
            a(f"v_cvt_pk_bf16_f32 {v(u+8)}, {v(u+8)}, {v(u+9)}")
            a(f"v_cvt_pk_bf16_f32 {v(u+9)}, {v(u+10)}, {v(u+11)}")
            a(f"v_cvt_pk_bf16_f32 {v(u+4)}, {v(u+4)}, {v(u+7)}")
            a(f"ds_write_b64 {v(142+i)}, {v(u,2)}")
            a(f"ds_write_b64 {v(142+i)}, {v(u+8,2)} offset:40")
            a(f"ds_write_b16 {v(144+i)}, {v(u+4)} offset:32")
            a(f"ds_write_b16_d16_hi {v(144+i)}, {v(u+4)} offset:72")
        a("s_waitcnt lgkmcnt(0)")
        self.stamp(13)
        a("s_barrier")
        self.nb_c_q = self.nb_loop + a.nbar - nb
        a.nbar = nb

    AM = 12; AS = 32; P2X = 52; P2Y = 72; AR = 92; OR = 124
    def p2_pre_setup(self):
        a = self.a
        a(f"s_lshl_b32 {s(S_T2)}, {s(S_TT)}, 2")
        a(f"s_add_u32 {s(S_T2)}, {s(S_T2)}, {s(S_R)}")
        a(f"s_mul_i32 {s(S_OH)}, {s(S_T2)}, {48*1024}")
        a(f"s_mul_i32 {s(S_T3)}, {s(S_C)}, {24*1024}")
        a(f"s_add_u32 {s(S_OH)}, {s(S_OH)}, {s(S_T3)}")
        a(f"s_add_u32 {s(S_OH)}, {s(S_OH)}, {WS_H2}")
        a(f"s_mul_i32 {s(S_DELTA)}, {s(S_T2)}, {8*2560}")
        a(f"s_mul_i32 {s(S_T3)}, {s(S_C)}, {4*2560}")
        a(f"s_add_u32 {s(S_DELTA)}, {s(S_DELTA)}, {s(S_T3)}")
        a(f"s_add_u32 {s(S_DELTA)}, {s(S_DELTA)}, {WS_O2}")
        self.rot2(S_KC)
    def hload(self, j):
        a = self.a
        if j % 2 == 0:
            a(f"s_lshl_b32 {s(S_OA)}, {s(S_KC)}, 11")
            a(f"s_add_u32 {s(S_OA)}, {s(S_OA)}, {s(S_OH)}")
            a(f"s_add_u32 {s(S_KC)}, {s(S_KC)}, 1")
            a(f"s_cmp_eq_u32 {s(S_KC)}, 12")
            a(f"s_cselect_b32 {s(S_KC)}, 0, {s(S_KC)}")
        a(f"buffer_load_dwordx4 {v(self.AR+4*(j%8),4)}, v2, {s(R_WS,4)}, {s(S_OA)} offen offset:{1024*(j%2)} sc1")
    def p2_pre_loads(self):
        for j in range(8): self.hload(j)
        self.a(f"v_lshlrev_b32 v3, 3, v1")

    def phase2(self):
        a = self.a
        a.label('Lp2')
        a(f"s_cmp_lg_u32 {s(S_C)}, 0")
        a(f"s_cbranch_scc1 Lp2_1")
        for kap in range(2): self.phase2k(kap)

    def phase2k(self, kap):
        a = self.a; cfg = self.cfg
        nb = a.nbar
        a.label(f"Lp2_{kap}")
        AM, AS, XB, YB, AR, OR = self.AM, self.AS, self.P2X, self.P2Y, self.AR, self.OR
        VB = 4
        M = "v_mfma_f32_16x16x32_bf16"
        a(f"v_add_u32 v4, {kap*10240}, v2")
        a(f"v_add_u32 v5, {SLOT + kap*10240}, v2")
        a(f"v_add_u32 v6, {2*SLOT + kap*10240}, v2")
        q = [('A', j) for j in range(8)]
        def hload(j): self.hload(j); q.append(('A', j))
        def oloads():
            for P in range(2):
                for hh in range(2):
                    a(f"s_add_u32 {s(S_T0+hh)}, {s(S_DELTA)}, {(2*P+hh)*2560}")
                for i5 in range(4):
                    a(f"buffer_load_dwordx4 {v(OR+4*(5*P+i5),4)}, v2, {s(R_WS,4)}, {s(S_T0+(i5>>1))} offen offset:{1024*(i5&1)} sc1")
                    q.append(('A', 24 + 5*P + i5))
                for hh in range(2):
                    a(f"buffer_load_dwordx2 {v(OR+4*(5*P+4)+2*hh,2)}, v3, {s(R_WS,4)}, {s(S_T0+hh)} offen offset:2048 sc1")
                    q.append(('A', 24 + 5*P + 4))
        def wait(tag):
            idx = [k for k, t in enumerate(q) if t == tag]
            if not idx: return
            n = sum(1 for t in q[idx[-1]+1:] if t[0] != 'S')
            a(f"s_waitcnt vmcnt({n})")
            del q[:idx[-1] + 1]
        def areg(j): return AR + 4 * (j % 8) if j < 24 else OR + 4 * (j - 24)
        def reads(j, B):
            i = j // 2; base = RING[i % 6]; vb = VB + base // SLOT; off = base % SLOT + (j & 1) * 5120
            return [f"ds_read_b128 {v(B+4*c,4)}, {v(vb)} offset:{off + 1024*c}" for c in range(5)]
        def mfmas(j, B):
            ac = AM if j < 24 else AS
            first = j in (0, 24)
            return [f"{M} {v(ac+4*c,4)}, {v(B+4*c,4)}, {v(areg(j),4)}, {'0' if first else v(ac+4*c,4)}" for c in range(5)]
        own = [0, 1, 2] if kap == 0 else [3, 4]
        give = [c for c in range(5) if c not in own]
        a(f"s_mul_i32 {s(S_T0)}, {s(S_R)}, 5120")
        a(f"s_add_u32 {s(S_T0)}, {s(S_T0)}, {EXB}")
        a(f"v_add_u32 v7, {s(S_T0)}, v2")
        a(f"s_lshl_b32 {s(S_T0)}, {s(S_R)}, 4")
        a(f"v_add_u32 v8, {s(S_T0)}, {v(self.L15)}")
        a(f"v_mul_u32_u24 v8, 160, v8")
        a(f"v_lshl_add_u32 v8, {v(self.G)}, 3, v8")
        a(f"v_add_u32 v8, {XT}, v8")
        a(f"v_lshlrev_b32 v9, 3, {v(self.G)}")
        a(f"v_add_u32 v9, {B2L}, v9")
        a(f"s_mov_b32 {s(S_K1)}, 0xffff0000")
        a(f"s_mov_b32 {s(S_K0)}, {lit(-LOG2E)}")
        G = AR
        for i in range(17):
            j0 = 2 * i
            a("s_barrier")
            self.stamp(20 + i)
            if i == cfg.ko: oloads()
            rd = reads(j0, XB)
            if i > 0:
                wait(('A', j0 - 1))
                interleave(a, mfmas(j0 - 1, YB), rd, 0.6, 2)
                if j0 - 1 + 8 < 24: hload(j0 - 1 + 8)
            else:
                for x in rd: a(x)
            if i == 12:
                for c in give: a(f"ds_write_b128 v7, {v(AM+4*c,4)} offset:{1024*c}")
            if i == 13:
                for k, c in enumerate(own):
                    a(f"ds_read_b128 {v(G+4*k,4)}, v7 offset:{1024*c}")
                    a(f"ds_read_b64 {v(G+12+2*k,2)}, v9 offset:{32*c}")
            wait(('A', j0))
            a("s_waitcnt lgkmcnt(0)")
            interleave(a, mfmas(j0, XB), reads(j0 + 1, YB), 0.6, 2)
            if j0 + 8 < 24: hload(j0 + 8)
            if i == 13:
                X = G + 20
                for k, c in enumerate(own):
                    g = G + 4 * k; b = G + 12 + 2 * k; x = X + 4 * k
                    a(f"v_lshlrev_b32 {v(x)}, 16, {v(b)}")
                    a(f"v_and_b32 {v(x+1)}, {s(S_K1)}, {v(b)}")
                    a(f"v_lshlrev_b32 {v(x+2)}, 16, {v(b+1)}")
                    a(f"v_and_b32 {v(x+3)}, {s(S_K1)}, {v(b+1)}")
                prs = [(k, c, p) for k, c in enumerate(own) for p in range(2)]
                for k, c, p in prs: a(pk('add', G+4*k+2*p, G+4*k+2*p, AM+4*c+2*p))
                for k, c, p in prs: a(pk('add', G+4*k+2*p, G+4*k+2*p, X+4*k+2*p))
                for k, c, p in prs: a(pk('mul', X+4*k+2*p, G+4*k+2*p, ('s', S_K0)))
                for k in range(4*len(own)): a(f"v_exp_f32 {v(X+k)}, {v(X+k)}")
                for k, c, p in prs: a(pk('add', X+4*k+2*p, X+4*k+2*p, '1.0'))
                for k in range(4*len(own)): a(f"v_rcp_f32 {v(X+k)}, {v(X+k)}")
                for k, c, p in prs: a(pk('mul', G+4*k+2*p, G+4*k+2*p, X+4*k+2*p))
            if i == 14:
                for k, c in enumerate(own): a(f"ds_read_b64 {v(G+12+2*k,2)}, v8 offset:{32*c}")
            if i == 15:
                for k, c in enumerate(own):
                    b = G + 12 + 2 * k
                    a(f"v_lshlrev_b32 {v(AM+4*k)}, 16, {v(b)}")
                    a(f"v_and_b32 {v(AM+4*k+1)}, {s(S_K1)}, {v(b)}")
                    a(f"v_lshlrev_b32 {v(AM+4*k+2)}, 16, {v(b+1)}")
                    a(f"v_and_b32 {v(AM+4*k+3)}, {s(S_K1)}, {v(b+1)}")
            a("s_waitcnt lgkmcnt(0)")
        wait(('A', 33))
        mf = mfmas(33, YB)
        for c in give + own: a(mf[c])
        for c in give: a(f"ds_write_b128 v7, {v(AS+4*c,4)} offset:{1024*c}")
        X = AM
        a("s_waitcnt lgkmcnt(0)")
        a("s_barrier")
        for k, c in enumerate(own): a(f"ds_read_b128 {v(XB+4*k,4)}, v7 offset:{1024*c}")
        a("s_waitcnt lgkmcnt(0)")
        prs = [(k, c, p) for k, c in enumerate(own) for p in range(2)]
        for k, c, p in prs: a(pk('add', XB+4*k+2*p, XB+4*k+2*p, AS+4*c+2*p))
        for k, c, p in prs: a(pk('fma', X+4*k+2*p, XB+4*k+2*p, G+4*k+2*p, X+4*k+2*p))
        for k, c, p in prs: a(f"v_cvt_pk_bf16_f32 {v(XB+2*k+p)}, {v(X+4*k+2*p)}, {v(X+4*k+2*p+1)}")
        for k, c in enumerate(own): a(f"ds_write_b64 v8, {v(XB+2*k,2)} offset:{32*c}")
        a("s_waitcnt lgkmcnt(0)")
        a("s_barrier")
        self.nb_c_p2 = a.nbar - nb
        a.nbar = nb
        if kap == 0: a("s_branch Lfinal_store")

    def build(self):
        a = self.a
        self.entry()
        self.loader()
        self.compute_setup()
        self.duty(0, self.XA, self.XB)
        self.duty(1, self.YA, self.YB)
        self.pack_blocks()
        self.p1_loop(0); self.epi_kv()
        self.p1_loop(1); self.epi_q()
        self.phase2()
        self.final_store()
        assert self.nb_ld_kv == self.nb_c_kv, (self.nb_ld_kv, self.nb_c_kv)
        assert self.nb_ld_q == self.nb_c_q, (self.nb_ld_q, self.nb_c_q)
        assert self.nb_ld_p2 == self.nb_c_p2, (self.nb_ld_p2, self.nb_c_p2)
        body = a.finish()
        head = open('recurrent_scan__linear_attn_block__mixer_channel_mlp__prompt.s.ref').read().split('; Override launch')[0]
        txt = head + f"; @launch grid=(256,1,1) block=(768,1,1) lds={LDS_TOTAL}\n"
        txt += f'.amdgcn_target "amdgcn-amd-amdhsa--gfx950"\n.text\n.globl {NAME}\n.p2align 8\n.type {NAME},@function\n{NAME}:\n'
        txt += body
        txt += f""".section .rodata,"a"
.p2align 6
.amdhsa_kernel {NAME}
  .amdhsa_next_free_vgpr 168
  .amdhsa_next_free_sgpr 102
  .amdhsa_accum_offset 168
  .amdhsa_group_segment_fixed_size 0
  .amdhsa_kernarg_size 88
  .amdhsa_user_sgpr_count 2
  .amdhsa_user_sgpr_kernarg_segment_ptr 1
  .amdhsa_system_sgpr_workgroup_id_x 1
.end_amdhsa_kernel
"""
        return txt

def make(**kw):
    cfg = Cfg()
    for k, x in kw.items(): setattr(cfg, k, x)
    return Gen(cfg).build()

if __name__ == '__main__':
    out = sys.argv[1] if len(sys.argv) > 1 else 'recurrent_scan__linear_attn_block__mixer_channel_mlp__prompt.s'
    kw = {}
    for x in sys.argv[2:]:
        k, val = x.split('='); kw[k] = eval(val)
    open(out, 'w').write(make(**kw))
```

```python
import sys, math, struct
from asmlib import *

NAME = 'recurrent_scan__linear_attn_block__mixer_channel_mlp__prompt_kernel'

class Cfg:
    n1 = 6
    diag = False
    ko = 10
    rot2 = (3, 0)
    prio = 0
    dbgt = False

SLOT = 45056
SCR = 3 * SLOT
LDS_TOTAL = 163840
ST = SLOT + 40960
ST_CS = ST + 2048
B1L = SCR + 28160
KVT = SCR
OEX = SCR + 8192
XT = SCR
B2L = SCR + 10240
RING = [SLOT, SLOT + 20480, 2 * SLOT, 2 * SLOT + 20480, 0, 20480]
EXB = RING[5]
WS_FH = 4096; WS_FK = 6144; WS_FO = 7168; WS_FP = 9216; WS_FS = 10240
WS_TS = 0x10000
WS_RP = 0x20000; WS_CP = 0x48000
WS_KP = 0x80000; KP_STRIDE = 6784
WS_P2 = 0x200000; WS_O2 = 0x500000; WS_H2 = 0x800000
WS_TS2 = 0xE00000
WS_SIZE = 0xF00000
OOB = 0x40000000
P_X, P_W, P_WO, P_W1, P_B1, P_W2, P_B2, P_OUT, P_DBG, P_WS = 4, 6, 8, 12, 14, 16, 18, 20, 22, 24
S_S0, S_COL = 26, 27
R_X, R_W, R_W1, R_MID, R_WS, R_PK, R_OUT, R_BI = 28, 32, 36, 40, 44, 48, 52, 56
S_WID, S_RB, S_HG, S_TY, S_TT, S_N, S_XCD, S_IDX, S_R, S_C = 60, 61, 62, 63, 64, 65, 66, 67, 68, 69
S_T0, S_T1, S_T2, S_T3 = 70, 71, 72, 73
S_KC, S_OA, S_OW, S_OM, S_OH = 74, 75, 76, 77, 78
S_NONCE, S_CNT, S_U, S_DELTA, S_IT = 79, 80, 81, 82, 83
S_MASK = 84
S_DEST = 86
S_PIDX = 97
S_TS = 98
S_PKO, S_PKS = 100, 101
S_L = S_R
S_K0, S_K1 = 100, 101
VDIAG = 11

LOG2E = 1.4426950408889634
def f2u(x): return struct.unpack('<I', struct.pack('<f', x))[0]
def lit(x): return hex(f2u(x))

def srd(a, r, p, size):
    a(f"s_mov_b32 {s(r)}, {s(p)}")
    a(f"s_and_b32 {s(r+1)}, {s(p+1)}, 0xffff")
    a(f"s_mov_b32 {s(r+2)}, {hex(size)}")
    a(f"s_mov_b32 {s(r+3)}, 0x20000")

def interleave(a, main, fill, last_frac=0.7, first=0):
    n = len(main); m = len(fill); k = 0
    lim = max(1, int(n * last_frac))
    while k < min(first, m): a(fill[k]); k += 1
    for i, x in enumerate(main):
        a(x)
        tgt = first + math.ceil((m - first) * min(i + 1, lim) / lim) if m > first else m
        while k < tgt: a(fill[k]); k += 1
    while k < m: a(fill[k]); k += 1

def pk(op, d, *src):
    ops = []; lo = []; hi = []
    for x in src:
        if isinstance(x, int): assert x % 2 == 0; ops.append(v(x, 2)); lo.append(0); hi.append(1)
        elif isinstance(x, str): ops.append(x); lo.append(0); hi.append(0)
        elif x[0] == 'b': assert x[1] % 2 == 0; ops.append(v(x[1], 2)); lo.append(0); hi.append(0)
        elif x[0] == 's': assert x[1] % 2 == 0; ops.append(s(x[1], 2)); lo.append(0); hi.append(0)
    assert d % 2 == 0
    return f"v_pk_{op}_f32 {v(d,2)}, {', '.join(ops)} op_sel:[{','.join(map(str,lo))}] op_sel_hi:[{','.join(map(str,hi))}]"

def exec_mask(a, m):
    a(f"s_mov_b32 exec_lo, {hex(m & 0xffffffff)}")
    a(f"s_mov_b32 exec_hi, {hex(m >> 32)}")
DIAGMASK = sum(1 << l for l in range(64) if ((l & 15) >> 2) == (l >> 4))

class Gen:
    def __init__(self, cfg):
        self.cfg = cfg
        self.a = Asm()
        self.uid = 0
    def lab(self, p):
        self.uid += 1; return f"L{p}_{self.uid}"

    def stamp(self, i):
        if not self.cfg.diag: return
        a = self.a
        a("s_waitcnt lgkmcnt(0)")
        a(f"s_mov_b32 m0, {s(S_PIDX)}")
        a("s_nop 0")
        a(f"v_writelane_b32 {v(VDIAG)}, {s(S_TS)}, m0")
        a(f"s_memtime {s(S_TS,2)}")
        a(f"s_mov_b32 {s(S_PIDX)}, {i}")

    def dbgt(self, slot):
        if not self.cfg.dbgt: return
        a = self.a
        L = self.lab('dt')
        a(f"s_cmp_lg_u32 {s(S_WID)}, 3")
        a(f"s_cbranch_scc1 {L}")
        a(f"s_and_b32 {s(S_PIDX)}, s2, 0xdf")
        a(f"s_cmp_lg_u32 {s(S_PIDX)}, 3")
        a(f"s_cbranch_scc1 {L}")
        a(f"s_memrealtime {s(S_TS,2)}")
        a(f"s_mul_i32 {s(S_PIDX)}, {s(S_TY)}, 28")
        a(f"s_add_u32 {s(S_PIDX)}, {s(S_PIDX)}, {4*slot}")
        a("s_waitcnt lgkmcnt(0)")
        a(f"v_mov_b32 v70, {s(S_TS)}")
        a(f"v_mov_b32 v71, {s(S_PIDX)}")
        a(f"global_store_dword v71, v70, {s(P_DBG,2)}")
        a.label(L)

    def entry(self):
        a = self.a; cfg = self.cfg
        a(f"s_cmp_ge_u32 s2, 256")
        a(f"s_cbranch_scc1 Lend")
        a(f"s_load_dwordx16 s[4:19], s[0:1], 0")
        a(f"s_load_dwordx4 s[20:23], s[0:1], 64")
        a(f"s_load_dwordx2 s[24:25], s[0:1], 80")
        if cfg.diag:
            a(f"s_memrealtime {s(S_TS,2)}")
            a(f"s_mov_b32 {s(S_PIDX)}, 0")
            a(f"v_mov_b32 {v(VDIAG)}, 0")
        a(f"v_lshrrev_b32 v2, 6, v0")
        a(f"v_and_b32 v1, 63, v0")
        a(f"v_readfirstlane_b32 {s(S_WID)}, v2")
        a(f"s_and_b32 {s(S_XCD)}, s2, 7")
        a(f"s_lshr_b32 {s(S_IDX)}, s2, 3")
        a(f"s_lshr_b32 {s(S_T0)}, {s(S_XCD)}, 1")
        a(f"s_lshl_b32 {s(S_T0)}, {s(S_T0)}, 2")
        a(f"s_and_b32 {s(S_T1)}, {s(S_IDX)}, 3")
        a(f"s_add_u32 {s(S_RB)}, {s(S_T0)}, {s(S_T1)}")
        a(f"s_lshl_b32 {s(S_T0)}, {s(S_T0)}, 1")
        a(f"s_and_b32 {s(S_T1)}, {s(S_IDX)}, 7")
        a(f"s_add_u32 {s(S_TT)}, {s(S_T0)}, {s(S_T1)}")
        a(f"s_and_b32 {s(S_T0)}, {s(S_XCD)}, 1")
        a(f"s_lshl_b32 {s(S_T0)}, {s(S_T0)}, 2")
        a(f"s_lshr_b32 {s(S_T1)}, {s(S_IDX)}, 3")
        a(f"s_add_u32 {s(S_HG)}, {s(S_T0)}, {s(S_T1)}")
        a(f"s_mov_b32 {s(S_N)}, {s(S_HG)}")
        a(f"s_bfe_u32 {s(S_TY)}, {s(S_IDX)}, 0x10002")
        a(f"s_lshl_b32 {s(S_COL)}, {s(S_HG)}, 1")
        a(f"s_add_u32 {s(S_COL)}, {s(S_COL)}, {s(S_TY)}")
        a(f"s_mul_i32 {s(S_S0)}, {s(S_RB)}, 3")
        a(f"s_add_u32 {s(S_S0)}, {s(S_S0)}, {s(S_COL)}")
        a(f"s_mul_i32 {s(S_T0)}, {s(S_S0)}, 6554")
        a(f"s_lshr_b32 {s(S_T0)}, {s(S_T0)}, 16")
        a(f"s_mul_i32 {s(S_T0)}, {s(S_T0)}, 10")
        a(f"s_sub_u32 {s(S_S0)}, {s(S_S0)}, {s(S_T0)}")
        a(f"s_cmp_ge_u32 {s(S_WID)}, 4")
        a(f"s_cbranch_scc1 Lcompute")

    def calc_u(self):
        a = self.a
        a(f"s_add_u32 {s(S_U)}, {s(S_HG)}, 128")
        a(f"s_cmp_eq_u32 {s(S_RB)}, 0")
        a(f"s_cselect_b32 {s(S_U)}, {s(S_U)}, 255")
        a(f"s_lshl_b32 {s(S_T0)}, {s(S_HG)}, 4")
        a(f"s_add_u32 {s(S_T0)}, {s(S_T0)}, {s(S_RB)}")
        a(f"s_cmp_lg_u32 {s(S_TY)}, 0")
        a(f"s_cselect_b32 {s(S_U)}, {s(S_T0)}, {s(S_U)}")

    def poll_issue(self, vdst, voff, n=1):
        self.a(f"buffer_load_dword{'x2' if n == 2 else ''} {v(vdst, n)}, {v(voff)}, {s(R_WS,4)}, 0 offen sc1")
    def poll_check(self, vdst, voff, nlanes, n=1):
        a = self.a
        L = self.lab('poll'); Ld = self.lab('polld')
        mask = (1 << nlanes) - 1
        a(f"s_mov_b32 {s(S_CNT)}, 0")
        a.label(L)
        a(f"v_cmp_ne_u32 vcc, {s(S_NONCE)}, {v(vdst)}")
        if n == 2:
            a(f"v_cmp_ne_u32 {s(S_MASK,2)}, {s(S_NONCE)}, {v(vdst+1)}")
            a(f"s_or_b64 vcc, vcc, {s(S_MASK,2)}")
        if nlanes < 32:
            a(f"s_and_b32 {s(S_T0)}, vcc_lo, {hex(mask)}")
        else:
            a(f"s_and_b32 {s(S_T0)}, vcc_hi, {hex(mask >> 32)}")
            a(f"s_or_b32 {s(S_T0)}, {s(S_T0)}, vcc_lo")
        a(f"s_cbranch_scc0 {Ld}")
        a(f"s_add_u32 {s(S_CNT)}, {s(S_CNT)}, 1")
        a(f"s_cmp_gt_u32 {s(S_CNT)}, 0x40000")
        a(f"s_cbranch_scc1 {Ld}")
        self.poll_issue(vdst, voff, n)
        a("s_waitcnt vmcnt(0)")
        a(f"s_branch {L}")
        a.label(Ld)
    def poll(self, vdst, voff, nlanes, n=1):
        self.poll_issue(vdst, voff, n); self.a("s_waitcnt vmcnt(0)"); self.poll_check(vdst, voff, nlanes, n)
    def only_l(self, l=0):
        L = self.lab('l0')
        self.a(f"s_cmp_lg_u32 {s(S_L)}, {l}")
        self.a(f"s_cbranch_scc1 {L}")
        return L
    def flag_store(self, voff):
        self.a(f"buffer_store_dword v41, {v(voff)}, {s(R_WS,4)}, 0 offen sc1")

    def loader(self):
        a = self.a; cfg = self.cfg
        VO = 12
        V_P2 = 23
        V_FH, V_F2, V_FP, V_FS, V_QK, V_QP, V_QH, V_QO, V_QS = 24, 25, 26, 27, 28, 29, 30, 31, 32
        V_PK = 33
        nb0 = a.nbar
        a(f"s_mov_b32 {s(S_L)}, {s(S_WID)}")
        a(f"s_mov_b32 {s(S_KC)}, {s(S_S0)}")
        if cfg.prio: a(f"s_setprio {cfg.prio}")
        a(f"v_lshrrev_b32 v2, 3, v1")
        a(f"v_lshrrev_b32 v3, 4, v1")
        a(f"v_and_b32 v4, 7, v1")
        a(f"v_xor_b32 v5, v4, v3")
        a(f"s_lshl_b32 {s(S_T0)}, {s(S_RB)}, 2")
        a(f"s_add_u32 {s(S_T0)}, {s(S_T0)}, {s(S_L)}")
        a(f"s_mul_i32 {s(S_T0)}, {s(S_T0)}, {32*1280}")
        a(f"v_mul_u32_u24 v6, 1280, v2")
        a(f"v_lshl_add_u32 v6, v5, 4, v6")
        a(f"v_add_u32 {v(VO)}, {s(S_T0)}, v6")
        a(f"v_xor_b32 v7, 64, {v(VO)}")
        a(f"v_add_u32 {v(VO+1)}, 10240, v7")
        a(f"v_add_u32 {v(VO+2)}, 20480, {v(VO)}")
        a(f"v_add_u32 {v(VO+3)}, 30720, v7")
        a(f"s_lshl_b32 {s(S_DEST)}, {s(S_L)}, 12")
        for n in range(1, 4): a(f"s_add_u32 {s(S_DEST+n)}, {s(S_DEST)}, {1024*n}")
        a(f"s_lshl_b32 {s(S_OA)}, {s(S_KC)}, 7")
        a("s_waitcnt lgkmcnt(0)")
        self.stamp(1)
        self.dbgt(2)
        srd(a, R_X, P_X, 2048 * 1280)
        srds = [R_X]*4 + [R_W]*3 + [R_MID]*2 + [R_W1]*2
        soffs = [S_OA]*4 + [S_OW]*3 + [S_OM]*2 + [S_OH]*2
        def dma(k, n):
            a(f"s_add_u32 m0, {s(S_DEST+n)}, {(k % 3) * SLOT}")
            a(f"buffer_load_dwordx4 {v(VO+n)}, {s(srds[n],4)}, {s(soffs[n])} offen lds")
        for n in range(4): dma(0, n)
        srd(a, R_W, P_W, 640 * 3840)
        srd(a, R_W1, P_W1, 640 * 3072)
        def wrow(dst, i, valid_check):
            a(f"v_add_u32 v6, {s(S_T1)}, v1")
            if i: a(f"v_add_u32 v6, {64*i}, v6")
            a(f"v_mul_u32_u24 v7, 6554, v6")
            a(f"v_lshrrev_b32 v7, 16, v7")
            a(f"v_mad_i32_i24 v8, v7, -10, v6")
            a(f"v_lshrrev_b32 v9, 1, v7")
            a(f"v_xor_b32 v9, v9, v7")
            a(f"v_and_b32 v9, 4, v9")
            a(f"v_mul_u32_u24 v9, 3, v9")
            a(f"v_xor_b32 v7, v7, v9")
            a(f"v_mul_u32_u24 v7, 3840, v7")
            a(f"v_lshl_add_u32 v7, v8, 4, v7")
            a(f"v_add_u32 {v(dst)}, {s(S_T2)}, v7")
            if valid_check:
                a(f"v_cmp_gt_u32 vcc, 640, v6")
                a(f"v_mov_b32 v9, {hex(OOB)}")
                a(f"v_cndmask_b32 {v(dst)}, v9, {v(dst)}, vcc")
        a(f"s_mul_i32 {s(S_OW)}, {s(S_KC)}, {64*3840}")
        a(f"s_mul_i32 {s(S_OH)}, {s(S_KC)}, {64*3072}")
        a(f"s_mul_i32 {s(S_T3)}, {s(S_HG)}, 384")
        a(f"s_cmp_lg_u32 {s(S_TY)}, 0")
        a(f"s_cbranch_scc1 Lld_setq")
        for i in range(3): a(f"s_mov_b32 {s(R_MID+i)}, {s(R_W+i)}")
        a(f"s_mov_b32 {s(R_MID+3)}, 0x20000")
        a(f"s_mov_b32 {s(S_OM)}, {s(S_OW)}")
        a(f"v_lshrrev_b32 v6, 1, v4")
        a(f"v_xor_b32 v6, v6, v3")
        a(f"v_and_b32 v7, 1, v4")
        a(f"v_lshl_add_u32 v6, v6, 1, v7")
        a(f"v_and_b32 v7, 4, v2")
        a(f"v_add_u32 v7, v7, v2")
        a(f"v_mul_u32_u24 v7, 3072, v7")
        a(f"v_lshl_add_u32 v6, v6, 4, v7")
        a(f"s_mul_i32 {s(S_T0)}, {s(S_L)}, {16*3072}")
        a(f"s_add_u32 {s(S_T0)}, {s(S_T0)}, {s(S_T3)}")
        a(f"v_add_u32 {v(VO+9)}, {s(S_T0)}, v6")
        a(f"v_add_u32 {v(VO+10)}, {4*3072}, {v(VO+9)}")
        a(f"s_lshl_b32 {s(S_T0)}, {s(S_L)}, 11")
        a(f"s_add_u32 {s(S_DEST+9)}, {s(S_T0)}, 36864")
        a(f"s_add_u32 {s(S_DEST+10)}, {s(S_T0)}, {36864+1024}")
        dma(0, 9); dma(0, 10)
        a(f"s_and_b32 {s(S_T1)}, {s(S_L)}, 1")
        a(f"s_mul_i32 {s(S_T1)}, {s(S_T1)}, 320")
        a(f"s_lshr_b32 {s(S_T2)}, {s(S_L)}, 1")
        a(f"s_mul_i32 {s(S_T2)}, {s(S_T2)}, 1280")
        a(f"s_mul_i32 {s(S_T0)}, {s(S_HG)}, 160")
        a(f"s_add_u32 {s(S_T2)}, {s(S_T2)}, {s(S_T0)}")
        a(f"s_add_u32 {s(S_T2)}, {s(S_T2)}, 1280")
        a(f"s_mul_i32 {s(S_T0)}, {s(S_L)}, 5120")
        for i in range(5):
            a(f"s_add_u32 {s(S_DEST+4+i)}, {s(S_T0)}, {16384 + 1024*i}")
            wrow(VO + 4 + i, i, False)
            dma(0, 4 + i)
        a(f"s_branch Lld_setdone")
        a.label('Lld_setq')
        for i in range(3): a(f"s_mov_b32 {s(R_MID+i)}, {s(R_W1+i)}")
        a(f"s_mov_b32 {s(R_MID+3)}, 0x20000")
        a(f"s_mov_b32 {s(S_OM)}, {s(S_OH)}")
        a(f"s_add_u32 {s(S_T3)}, {s(S_T3)}, 128")
        a(f"v_and_b32 v8, 15, v1")
        a(f"v_lshrrev_b32 v6, 1, v8")
        a(f"v_xor_b32 v6, v6, v3")
        a(f"v_and_b32 v7, 1, v8")
        a(f"v_lshl_add_u32 v6, v6, 1, v7")
        a(f"v_mul_u32_u24 v7, 3072, v3")
        a(f"v_lshl_add_u32 v6, v6, 4, v7")
        a(f"v_xor_b32 v7, 128, v6")
        a(f"s_mul_i32 {s(S_T0)}, {s(S_L)}, {16*3072}")
        a(f"s_add_u32 {s(S_T0)}, {s(S_T0)}, {s(S_T3)}")
        a(f"v_add_u32 {v(VO+7)}, {s(S_T0)}, v6")
        a(f"v_add_u32 v7, {s(S_T0)}, v7")
        a(f"v_add_u32 {v(VO+8)}, {8*3072}, v7")
        a(f"v_add_u32 {v(VO+9)}, {4*3072}, {v(VO+7)}")
        a(f"v_add_u32 {v(VO+10)}, {12*3072}, v7")
        a(f"s_lshl_b32 {s(S_T0)}, {s(S_L)}, 12")
        for i in range(4):
            a(f"s_add_u32 {s(S_DEST+7+i)}, {s(S_T0)}, {26624 + 1024*i}")
            dma(0, 7 + i)
        a(f"s_mul_i32 {s(S_T1)}, {s(S_L)}, 192")
        a(f"s_mul_i32 {s(S_T2)}, {s(S_HG)}, 160")
        a(f"s_mul_i32 {s(S_T0)}, {s(S_L)}, 3072")
        for i in range(3):
            a(f"s_add_u32 {s(S_DEST+4+i)}, {s(S_T0)}, {16384 + 1024*i}")
            if i:
                a(f"s_cmp_eq_u32 {s(S_L)}, 3")
                a(f"s_cselect_b32 {s(S_DEST+4+i)}, {43008 + 1024*(i-1)}, {s(S_DEST+4+i)}")
            wrow(VO + 4 + i, i, i > 0)
            dma(0, 4 + i)
        a.label('Lld_setdone')
        self.stamp(40)
        def advance():
            a(f"s_add_u32 {s(S_KC)}, {s(S_KC)}, 1")
            a(f"s_cmp_eq_u32 {s(S_KC)}, 10")
            a(f"s_cselect_b32 {s(S_KC)}, 0, {s(S_KC)}")
            a(f"s_lshl_b32 {s(S_OA)}, {s(S_KC)}, 7")
            a(f"s_mul_i32 {s(S_OW)}, {s(S_KC)}, {64*3840}")
            a(f"s_mul_i32 {s(S_OH)}, {s(S_KC)}, {64*3072}")
            a(f"s_cmp_lg_u32 {s(S_TY)}, 0")
            a(f"s_cselect_b32 {s(S_OM)}, {s(S_OH)}, {s(S_OW)}")
        n1 = cfg.n1

        def idle_setup():
            srd(a, R_WS, P_WS, WS_SIZE)
            self.calc_u()
            a("v_mov_b32 v42, 0")
            a("v_mov_b32 v40, 0")
            L = self.lab('nc')
            a(f"s_or_b32 {s(S_T0)}, {s(S_L)}, s2")
            a(f"s_cbranch_scc1 {L}")
            a(f"s_load_dword {s(S_T0)}, {s(P_WS,2)}, 0")
            a("s_waitcnt lgkmcnt(0)")
            a(f"s_mul_i32 {s(S_T0)}, {s(S_T0)}, 0x9E3779B1")
            a(f"s_add_u32 {s(S_T0)}, {s(S_T0)}, 0x7F4A7C15")
            a(f"s_cmp_eq_u32 {s(S_T0)}, 0")
            a(f"s_cselect_b32 {s(S_T0)}, 1, {s(S_T0)}")
            a(f"v_mov_b32 v43, {s(S_T0)}")
            a(f"global_store_dword v42, v43, {s(P_DBG,2)} sc1")
            a(f"global_store_dword v42, v43, {s(P_WS,2)} sc1")
            a.label(L)
            a(f"v_add_u32 v0, 512, v0")
            a(f"v_lshlrev_b32 v39, 4, v1")
            a(f"v_lshl_add_u32 v10, v1, 2, {s(S_T3)}")
            srd(a, R_BI, P_B1, 3072)
            a(f"v_mov_b32 v6, {hex(OOB)}")
            a(f"v_cmp_eq_u32 vcc, 0, v1")
            a(f"s_lshl_b32 {s(S_T0)}, {s(S_RB)}, 7")
            a(f"s_lshl_b32 {s(S_T1)}, {s(S_COL)}, 2")
            a(f"s_add_u32 {s(S_T1)}, {s(S_T1)}, {s(S_T0)}")
            a(f"s_add_u32 {s(S_T1)}, {s(S_T1)}, {WS_FH}")
            a(f"v_mov_b32 v7, {s(S_T1)}")
            a(f"v_cndmask_b32 {v(V_FH)}, v6, v7, vcc")
            a(f"s_lshl_b32 {s(S_T1)}, {s(S_HG)}, 2")
            a(f"s_add_u32 {s(S_T3)}, {s(S_T0)}, {s(S_T1)}")
            a(f"s_add_u32 {s(S_T3)}, {s(S_T3)}, {WS_FO}")
            a(f"s_lshl_b32 {s(S_T1)}, {s(S_HG)}, 7")
            a(f"s_lshl_b32 {s(S_T2)}, {s(S_RB)}, 2")
            a(f"s_add_u32 {s(S_T2)}, {s(S_T2)}, {s(S_T1)}")
            a(f"s_add_u32 {s(S_T2)}, {s(S_T2)}, {WS_FK}")
            a(f"s_cmp_lg_u32 {s(S_TY)}, 0")
            a(f"s_cselect_b32 {s(S_T3)}, {s(S_T3)}, {s(S_T2)}")
            a(f"v_mov_b32 v7, {s(S_T3)}")
            a(f"v_cndmask_b32 {v(V_F2)}, v6, v7, vcc")
            a(f"s_add_u32 {s(S_T1)}, {s(S_T1)}, {WS_FK}")
            a(f"v_lshl_add_u32 {v(V_QK)}, v1, 2, {s(S_T1)}")
            a(f"s_and_b32 {s(S_T1)}, {s(S_U)}, 1")
            a(f"s_lshl_b32 {s(S_T1)}, {s(S_T1)}, 9")
            a(f"s_lshr_b32 {s(S_T2)}, {s(S_U)}, 1")
            a(f"s_lshl_b32 {s(S_T2)}, {s(S_T2)}, 2")
            a(f"s_add_u32 {s(S_T1)}, {s(S_T1)}, {s(S_T2)}")
            a(f"s_add_u32 {s(S_T1)}, {s(S_T1)}, {WS_FP}")
            a(f"v_mov_b32 v7, {s(S_T1)}")
            a(f"v_cndmask_b32 {v(V_FP)}, v6, v7, vcc")
            a(f"s_add_u32 {s(S_T0)}, {s(S_T0)}, {WS_FS}")
            a(f"s_lshl_b32 {s(S_T1)}, {s(S_COL)}, 7")
            a(f"s_add_u32 {s(S_T1)}, {s(S_T1)}, {WS_FS + 2048}")
            a(f"s_lshl_b32 {s(S_T2)}, {s(S_S0)}, 2")
            a(f"s_add_u32 {s(S_T3)}, {s(S_T0)}, {s(S_T2)}")
            a(f"s_cmp_lt_u32 {s(S_COL)}, 10")
            a(f"s_cselect_b32 {s(S_T3)}, {s(S_T3)}, {hex(OOB)}")
            a(f"v_mov_b32 v7, {s(S_T3)}")
            a(f"v_cndmask_b32 {v(V_FS)}, v6, v7, vcc")
            a(f"s_add_u32 {s(S_T3)}, {s(S_T1)}, {s(S_T2)}")
            a(f"s_cmp_lt_u32 {s(S_RB)}, 10")
            a(f"s_cselect_b32 {s(S_T3)}, {s(S_T3)}, {hex(OOB)}")
            a(f"v_writelane_b32 {v(V_FS)}, {s(S_T3)}, 1")
            a(f"s_sub_u32 {s(S_T1)}, {s(S_T1)}, 40")
            a(f"v_lshl_add_u32 v7, v1, 2, {s(S_T0)}")
            a(f"v_lshl_add_u32 v8, v1, 2, {s(S_T1)}")
            a(f"v_cmp_gt_u32 vcc, 10, v1")
            a(f"v_cndmask_b32 {v(V_QS)}, v8, v7, vcc")
            a(f"s_lshr_b32 {s(S_T1)}, {s(S_N)}, 2")
            a(f"s_lshl_b32 {s(S_T1)}, {s(S_T1)}, 9")
            a(f"s_add_u32 {s(S_T1)}, {s(S_T1)}, {WS_FP}")
            a(f"v_lshl_add_u32 {v(V_QP)}, v1, 3, {s(S_T1)}")
            a(f"s_lshr_b32 {s(S_T1)}, {s(S_TT)}, 1")
            a(f"s_lshl_b32 {s(S_T1)}, {s(S_T1)}, 7")
            a(f"s_add_u32 {s(S_T1)}, {s(S_T1)}, {WS_FH}")
            a(f"v_lshl_add_u32 {v(V_QH)}, v1, 2, {s(S_T1)}")
            a(f"v_add_u32 {v(V_QO)}, {WS_FO - WS_FH}, {v(V_QH)}")
            L = self.lab('pks')
            a(f"s_cmp_gt_u32 {s(S_U)}, 135")
            a(f"s_cselect_b32 {s(S_T0)}, 0, {s(S_U)}")
            a(f"s_lshr_b32 {s(S_T0)}, {s(S_T0)}, 1")
            a(f"s_cmp_lt_u32 {s(S_T0)}, 48")
            a(f"s_cselect_b32 {s(R_PK)}, {s(P_W2)}, {s(P_WO)}")
            a(f"s_cselect_b32 {s(R_PK+1)}, {s(P_W2+1)}, {s(P_WO+1)}")
            a(f"s_mov_b32 {s(R_PK+2)}, {hex(640*1280)}")
            a(f"s_cselect_b32 {s(R_PK+2)}, {hex(1536*1280)}, {s(R_PK+2)}")
            a(f"s_mov_b32 {s(R_PK+3)}, 0x20000")
            Lm = self.lab('pkm'); Ld = self.lab('pkd')
            a(f"s_cbranch_scc1 {Lm}")
            a(f"s_sub_u32 {s(S_T3)}, {s(S_T0)}, 48")
            a(f"s_mul_i32 {s(S_T1)}, {s(S_T3)}, 52")
            a(f"s_lshr_b32 {s(S_T1)}, {s(S_T1)}, 8")
            a(f"s_mul_i32 {s(S_T2)}, {s(S_T1)}, 5")
            a(f"s_sub_u32 {s(S_T3)}, {s(S_T3)}, {s(S_T2)}")
            a(f"s_mul_i32 {s(S_T1)}, {s(S_T1)}, 160")
            a(f"s_lshl_b32 {s(S_T2)}, {s(S_T3)}, 5")
            a(f"s_cmp_ge_u32 {s(S_T3)}, 2")
            a(f"s_cselect_b32 {s(S_CNT)}, 16, 0")
            a(f"s_add_u32 {s(S_T2)}, {s(S_T2)}, {s(S_CNT)}")
            a(f"s_cmp_eq_u32 {s(S_T3)}, 4")
            a(f"s_cselect_b32 {s(S_T2)}, 64, {s(S_T2)}")
            a(f"s_cselect_b32 {s(S_CNT)}, 64, 0")
            a(f"s_add_u32 {s(S_T1)}, {s(S_T1)}, {s(S_T2)}")
            a(f"s_branch {Ld}")
            a.label(Lm)
            a(f"s_lshl_b32 {s(S_T1)}, {s(S_T0)}, 5")
            a(f"s_mov_b32 {s(S_CNT)}, 0")
            a.label(Ld)
            a(f"s_and_b32 {s(R_PK+1)}, {s(R_PK+1)}, 0xffff")
            a(f"s_cmp_ge_u32 {s(S_L)}, 2")
            a(f"s_cselect_b32 {s(S_CNT)}, {s(S_CNT)}, 0")
            a(f"s_add_u32 {s(S_T1)}, {s(S_T1)}, {s(S_CNT)}")
            a(f"s_lshl_b32 {s(S_T2)}, {s(S_L)}, 3")
            a(f"s_add_u32 {s(S_T1)}, {s(S_T1)}, {s(S_T2)}")
            a(f"s_mul_i32 {s(S_T1)}, {s(S_T1)}, 1280")
            a(f"s_and_b32 {s(S_T2)}, {s(S_U)}, 1")
            a(f"s_mul_i32 {s(S_T3)}, {s(S_T2)}, 640")
            a(f"s_add_u32 {s(S_PKO)}, {s(S_T1)}, {s(S_T3)}")
            for i in range(5):
                a(f"v_add_u32 v6, {64*i}, v1")
                a(f"v_mul_u32_u24 v7, 1639, v6")
                a(f"v_lshrrev_b32 v7, 16, v7")
                a(f"v_mul_u32_u24 v7, 640, v7")
                a(f"v_lshl_add_u32 {v(V_PK+i)}, v6, 4, v7")
            a(f"v_and_b32 v6, 15, v1")
            a(f"s_lshl_b32 {s(S_T0)}, {s(S_L)}, 5")
            a(f"v_add_u32 v6, {s(S_T0)}, v6")
            a(f"v_mul_u32_u24 v6, 160, v6")
            a(f"v_lshl_add_u32 v6, v3, 3, v6")
            a(f"v_add_u32 v38, {OEX}, v6")
            a(f"s_lshl_b32 {s(S_T0)}, {s(S_RB)}, 3")
            a(f"s_lshl_b32 {s(S_T1)}, {s(S_L)}, 1")
            a(f"s_add_u32 {s(S_T0)}, {s(S_T0)}, {s(S_T1)}")
            a(f"s_lshl_b32 {s(S_T0)}, {s(S_T0)}, 3")
            a(f"s_add_u32 {s(S_T0)}, {s(S_T0)}, {s(S_HG)}")
            a(f"s_mul_i32 {s(S_T0)}, {s(S_T0)}, 2560")
            a(f"s_add_u32 {s(S_PKS)}, {s(S_T0)}, {WS_O2}")
        def if_pack():
            L = self.lab('pk')
            a(f"s_cmp_gt_u32 {s(S_U)}, 135")
            a(f"s_cbranch_scc1 {L}")
            return L
        def p2_setup():
            a(f"s_mul_i32 {s(S_T0)}, {s(S_N)}, {68*5120}")
            a(f"s_and_b32 {s(S_T1)}, {s(S_L)}, 1")
            a(f"s_mul_i32 {s(S_T1)}, {s(S_T1)}, 5120")
            a(f"s_add_u32 {s(S_T0)}, {s(S_T0)}, {s(S_T1)}")
            a(f"s_add_u32 {s(S_T0)}, {s(S_T0)}, {WS_P2}")
            a(f"v_add_u32 {v(V_P2)}, {s(S_T0)}, v39")
            a(f"s_mul_i32 {s(S_DEST)}, {s(S_L)}, 5120")
            a(f"s_lshr_b32 {s(S_T1)}, {s(S_L)}, 1")
            a(f"s_mul_i32 {s(S_OM)}, {s(S_T1)}, {24*5120}")
            a(f"s_mul_i32 {s(S_OH)}, {s(S_T1)}, {10*5120}")
            a(f"s_add_u32 {s(S_OH)}, {s(S_OH)}, {48*5120}")
            self.rot2(S_KC)
        def p2_chunk(i):
            if i < 12:
                a(f"s_mul_i32 {s(S_OA)}, {s(S_KC)}, 10240")
                a(f"s_add_u32 {s(S_OA)}, {s(S_OA)}, {s(S_OM)}")
                a(f"s_add_u32 {s(S_KC)}, {s(S_KC)}, 1")
                a(f"s_cmp_eq_u32 {s(S_KC)}, 12")
                a(f"s_cselect_b32 {s(S_KC)}, 0, {s(S_KC)}")
            else:
                a(f"s_add_u32 {s(S_OA)}, {s(S_OH)}, {(i-12)*10240}")
            a(f"s_add_u32 m0, {s(S_DEST)}, {RING[i % 6]}")
            for j in range(4):
                a(f"buffer_load_dwordx4 {v(V_P2)}, {s(R_WS,4)}, {s(S_OA)} offen offset:{1024*j} sc1 lds")
            a(f"s_add_u32 m0, {s(S_DEST)}, {RING[i % 6] + 4096}")
            a(f"s_add_u32 {s(S_OA)}, {s(S_OA)}, 4096")
            a(f"buffer_load_dwordx4 {v(V_P2)}, {s(R_WS,4)}, {s(S_OA)} offen sc1 lds")
        for k in range(10):
            if k + 1 < 10:
                advance()
                for n in range(n1): dma(k + 1, n)
                wait = n1
            else:
                wait = 10
            if k == 0:
                self.stamp(41); idle_setup(); self.stamp(42)
            a(f"s_waitcnt vmcnt({wait})")
            if k == 3:
                L = self.only_l(0)
                a(f"v_readfirstlane_b32 {s(S_NONCE)}, v40")
                Lp = self.lab('np'); Lq = self.lab('nq')
                a(f"s_mov_b32 {s(S_CNT)}, 0")
                a.label(Lp)
                a(f"s_cmp_lg_u32 {s(S_NONCE)}, 0")
                a(f"s_cbranch_scc1 {Lq}")
                a(f"s_add_u32 {s(S_CNT)}, {s(S_CNT)}, 1")
                a(f"s_cmp_gt_u32 {s(S_CNT)}, 0x40000")
                a(f"s_cbranch_scc1 {Lq}")
                a(f"global_load_dword v40, v42, {s(P_DBG,2)} sc1")
                a("s_waitcnt vmcnt(0)")
                a(f"v_readfirstlane_b32 {s(S_NONCE)}, v40")
                a("s_nop 1")
                a(f"s_branch {Lp}")
                a.label(Lq)
                a(f"v_mov_b32 v41, {s(S_NONCE)}")
                a.label(L)
            if k == 7:
                L = self.only_l(0); self.poll_check(64, V_QS, 20); a.label(L)
            if k == 8:
                L = self.only_l(0); self.poll_check(66, V_QP, 34, 2); a.label(L)
            if k == 9: a("s_waitcnt lgkmcnt(0)")
            a("s_barrier")
            self.stamp(2 + k)
            if k == 0: self.dbgt(3)
            if k == 4: self.dbgt(4)
            if k == 2:
                L = self.only_l(0)
                a(f"global_load_dword v40, v42, {s(P_DBG,2)} sc1")
                a.label(L)
            if k == 3:
                L = self.only_l(0); self.flag_store(V_FS); a.label(L)
            if k == 5:
                L = if_pack(); L2 = self.only_l(0); self.flag_store(V_FP); a.label(L2); a.label(L)
            if k == 6:
                L = self.only_l(0); self.poll_issue(64, V_QS); a.label(L)
            if k == 7:
                L = self.only_l(0); self.poll_issue(66, V_QP, 2); a.label(L)
            if k == 8:
                a(f"s_lshr_b32 {s(S_T0)}, {s(S_L)}, 1")
                a(f"s_mul_i32 {s(S_T0)}, {s(S_T0)}, 10240")
                a(f"s_and_b32 {s(S_T1)}, {s(S_L)}, 1")
                a(f"s_lshl_b32 {s(S_T1)}, {s(S_T1)}, 9")
                a(f"s_add_u32 {s(S_T0)}, {s(S_T0)}, {s(S_T1)}")
                a(f"s_add_u32 {s(S_T0)}, {s(S_T0)}, {SCR}")
                a(f"v_lshl_add_u32 v6, v1, 3, {s(S_T0)}")
                for ch in range(10): a(f"ds_read_b64 {v(44+2*ch,2)}, v6 offset:{1024*ch}")
            if k + 1 < 10:
                for n in range(n1, 11): dma(k + 1, n)
            if k == 0:
                L = self.only_l(1)
                a(f"s_mov_b32 m0, {B1L}")
                a(f"buffer_load_dword v10, {s(R_BI,4)}, 0 offen lds")
                a.label(L)
            if k == 1:
                L = if_pack()
                a(f"s_mul_i32 {s(S_T2)}, {s(S_L)}, 5120")
                for i in range(5):
                    a(f"s_add_u32 m0, {s(S_T2)}, {SCR + 1024*i}")
                    a(f"buffer_load_dwordx4 {v(V_PK+i)}, {s(R_PK,4)}, {s(S_PKO)} offen lds")
                a.label(L)
            if k == 7:
                a(f"s_cmp_lt_u32 {s(S_L)}, 2")
                a(f"s_cselect_b32 {s(S_T0)}, {s(S_RB)}, {s(S_COL)}")
                a(f"s_mov_b32 {s(S_T1)}, {WS_CP}")
                a(f"s_cselect_b32 {s(S_T1)}, {WS_RP}, {s(S_T1)}")
                a(f"s_mul_i32 {s(S_T0)}, {s(S_T0)}, 10240")
                a(f"s_add_u32 {s(S_T0)}, {s(S_T0)}, {s(S_T1)}")
                a(f"s_and_b32 {s(S_T1)}, {s(S_L)}, 1")
                a(f"s_mul_i32 {s(S_T1)}, {s(S_T1)}, 5120")
                a(f"s_add_u32 {s(S_T0)}, {s(S_T0)}, {s(S_T1)}")
                a(f"s_mul_i32 {s(S_T2)}, {s(S_L)}, 5120")
                a(f"s_add_u32 m0, {s(S_T2)}, {SCR}")
                for j in range(4):
                    a(f"buffer_load_dwordx4 v39, {s(R_WS,4)}, {s(S_T0)} offen offset:{1024*j} sc1 lds")
                a(f"s_add_u32 m0, {s(S_T2)}, {SCR + 4096}")
                a(f"s_add_u32 {s(S_T0)}, {s(S_T0)}, 4096")
                a(f"buffer_load_dwordx4 v39, {s(R_WS,4)}, {s(S_T0)} offen sc1 lds")
            if k == 8:
                a("s_waitcnt lgkmcnt(0)")
                for ch in range(1, 10):
                    a(f"v_add_f32 v44, v44, {v(44+2*ch)}")
                    a(f"v_add_f32 v45, v45, {v(45+2*ch)}")
                a(f"s_and_b32 {s(S_T1)}, {s(S_L)}, 1")
                a(f"s_lshl_b32 {s(S_T1)}, {s(S_T1)}, 6")
                a(f"v_add_u32 v6, {s(S_T1)}, v1")
                Lc = self.lab('stc'); Ld = self.lab('std')
                a(f"s_cmp_ge_u32 {s(S_L)}, 2")
                a(f"s_cbranch_scc1 {Lc}")
                a(f"v_lshlrev_b32 v6, 2, v6")
                a(f"v_add_u32 v6, {ST}, v6")
                a(f"v_mul_f32 v46, {lit(1/640)}, v44")
                a(f"v_mul_f32 v47, v46, v46")
                a(f"v_mov_b32 v48, {lit(1/640)}")
                a(f"v_fma_f32 v45, v45, v48, -v47")
                a(f"v_max_f32 v45, 0, v45")
                a(f"v_add_f32 v47, {lit(1e-5)}, v45")
                a(f"v_rsq_f32 v48, v47")
                a(f"v_mul_f32 v49, v48, v48")
                a(f"v_fmaak_f32 v49, v49, v45, {lit(1e-5)}")
                a(f"v_rsq_f32 v49, v49")
                a(f"v_mul_f32 v50, v48, v49")
                a(f"v_mul_f32_e64 v51, -v46, v48")
                a(f"v_mul_f32_e64 v52, -v46, v50")
                a(f"ds_write_b32 v6, v48")
                a(f"ds_write_b32 v6, v51 offset:512")
                a(f"ds_write_b32 v6, v50 offset:1024")
                a(f"ds_write_b32 v6, v52 offset:1536")
                a(f"s_branch {Ld}")
                a.label(Lc)
                a(f"v_lshlrev_b32 v6, 3, v6")
                a(f"v_add_u32 v6, {ST_CS}, v6")
                a(f"ds_write_b64 v6, v[44:45]")
                a.label(Ld)
                p2_setup()
                p2_chunk(0); p2_chunk(1)
            if k == 9:
                p2_chunk(2); p2_chunk(3)
        a("s_barrier")
        self.stamp(12); self.dbgt(5)
        p2_chunk(4); p2_chunk(5)
        a(f"s_cmp_lg_u32 {s(S_TY)}, 0")
        a(f"s_cbranch_scc1 Lld_eq")
        nb1 = a.nbar
        a("s_barrier")
        self.stamp(14)
        a("s_barrier")
        L = self.only_l(0); self.flag_store(V_F2); a.label(L)
        self.stamp(15)
        a("s_barrier")
        self.stamp(16)
        L = self.only_l(0); self.flag_store(V_FH); self.poll(64, V_QH, 16); a.label(L)
        a("s_barrier")
        self.stamp(19)
        a("s_branch Lld_p2")
        self.nb_ld_kv = a.nbar - nb0
        nb2 = a.nbar
        a.label('Lld_eq')
        a("s_barrier")
        self.stamp(14)
        L = self.only_l(0); self.flag_store(V_FH); self.poll(64, V_QK, 16); a.label(L)
        a("s_barrier")
        self.stamp(15)
        L = self.only_l(0); self.poll(64, V_QH, 16); a.label(L)
        a("s_barrier")
        self.stamp(16)
        a("s_barrier")
        self.stamp(17)
        for t in range(2):
            for k in range(5): a(f"ds_read_b64 {v(44+12*t+2*k,2)}, v38 offset:{2560*t + 32*k}")
        a(f"v_lshlrev_b32 v6, 3, v1")
        a(f"s_add_u32 {s(S_T0)}, {s(S_PKS)}, {8*2560}")
        a("s_waitcnt lgkmcnt(0)")
        for t in range(2):
            so = s(S_PKS) if t == 0 else s(S_T0)
            a(f"buffer_store_dwordx4 {v(44+12*t,4)}, v39, {s(R_WS,4)}, {so} offen sc1")
            a(f"buffer_store_dwordx4 {v(48+12*t,4)}, v39, {s(R_WS,4)}, {so} offen offset:1024 sc1")
            a(f"buffer_store_dwordx2 {v(52+12*t,2)}, v6, {s(R_WS,4)}, {so} offen offset:2048 sc1")
        self.nb_ld_q = (nb1 - nb0) + (a.nbar - nb2)
        a.label('Lld_p2')
        nb3 = a.nbar
        for i in range(17):
            issued = min(16, max(5, i + 4))
            a(f"s_waitcnt vmcnt({5 * (issued - i) if i != 1 else 0})")
            if i == cfg.ko:
                L = self.only_l(0); self.poll_check(64, V_QO, 8); a.label(L)
            a("s_barrier")
            self.stamp(20 + i)
            if i == 0: self.dbgt(6)
            if i == 11: self.dbgt(7)
            if i == 1:
                L = self.only_l(0)
                a(f"s_cmp_eq_u32 {s(S_TY)}, 0")
                a(f"s_cbranch_scc1 {L}")
                self.flag_store(V_F2)
                a.label(L)
            if i >= 1 and i + 5 <= 16: p2_chunk(i + 5)
            if i == 1:
                srd(a, R_BI, P_B2, 1280)
                a(f"s_mul_i32 {s(S_T0)}, {s(S_TT)}, {64*1280}")
                a(f"s_mul_i32 {s(S_T1)}, {s(S_N)}, 160")
                a(f"s_add_u32 {s(S_T0)}, {s(S_T0)}, {s(S_T1)}")
                a(f"s_mul_i32 {s(S_T2)}, {s(S_L)}, 192")
                a(f"s_mul_i32 {s(S_T3)}, {s(S_L)}, 3072")
                for j in range(3):
                    a(f"v_add_u32 v6, {s(S_T2)}, v1")
                    if j: a(f"v_add_u32 v6, {64*j}, v6")
                    a(f"v_mul_u32_u24 v7, 6554, v6")
                    a(f"v_lshrrev_b32 v7, 16, v7")
                    a(f"v_mul_u32_u24 v7, {1280-160}, v7")
                    a(f"v_lshl_add_u32 v7, v6, 4, v7")
                    if j:
                        L = self.lab('xt')
                        a(f"s_cmp_eq_u32 {s(S_L)}, 3")
                        a(f"s_cbranch_scc1 {L}")
                    a(f"s_add_u32 m0, {s(S_T3)}, {XT + 1024*j}")
                    a(f"buffer_load_dwordx4 v7, {s(R_X,4)}, {s(S_T0)} offen lds")
                    if j: a.label(L)
                L = self.only_l(3)
                a(f"v_lshlrev_b32 v6, 2, v1")
                a(f"s_mov_b32 m0, {B2L}")
                a(f"buffer_load_dword v6, {s(R_BI,4)}, {s(S_T1)} offen lds")
                a.label(L)
            if i == cfg.ko - 1:
                L = self.only_l(0)
                self.poll_issue(64, V_QO); a("s_waitcnt vmcnt(0)")
                a.label(L)
        a("s_barrier")
        self.stamp(37)
        a("s_barrier")
        self.stamp(38); self.dbgt(8)
        self.nb_ld_p2 = a.nbar - nb3
        a(f"s_cmp_ge_u32 {s(S_WID)}, 2")
        a(f"s_cbranch_scc1 Lfin")
        a("s_branch Lfinal_store")

    def rot2(self, dst):
        a = self.a; ra, rb_ = self.cfg.rot2
        a(f"s_lshr_b32 {s(S_T1)}, {s(S_IDX)}, 3")
        a(f"s_mul_i32 {s(dst)}, {s(S_T1)}, {ra}")
        a(f"s_and_b32 {s(S_T1)}, {s(S_IDX)}, 7")
        a(f"s_mul_i32 {s(S_T1)}, {s(S_T1)}, {rb_}")
        a(f"s_lshr_b32 {s(S_T1)}, {s(S_T1)}, 1")
        a(f"s_add_u32 {s(dst)}, {s(dst)}, {s(S_T1)}")
        a(f"s_mul_i32 {s(S_T1)}, {s(dst)}, 5462")
        a(f"s_lshr_b32 {s(S_T1)}, {s(S_T1)}, 16")
        a(f"s_mul_i32 {s(S_T1)}, {s(S_T1)}, 12")
        a(f"s_sub_u32 {s(dst)}, {s(dst)}, {s(S_T1)}")

    def final_store(self):
        a = self.a
        a.label('Lfinal_store')
        a(f"v_lshlrev_b32 v2, 4, v0")
        a(f"v_add_u32 v3, {XT}, v2")
        a(f"ds_read_b128 v[4:7], v3")
        srd(a, R_OUT, P_OUT, 2048 * 1280)
        a(f"v_mul_u32_u24 v8, 6554, v0")
        a(f"v_lshrrev_b32 v8, 16, v8")
        a(f"v_mul_u32_u24 v8, {1280-160}, v8")
        a(f"v_add_u32 v8, v8, v2")
        a(f"s_mul_i32 {s(S_T0)}, {s(S_TT)}, {64*1280}")
        a(f"s_mul_i32 {s(S_T1)}, {s(S_N)}, 160")
        a(f"s_add_u32 {s(S_T0)}, {s(S_T0)}, {s(S_T1)}")
        a("s_waitcnt lgkmcnt(0)")
        a(f"buffer_store_dwordx4 v[4:7], v8, {s(R_OUT,4)}, {s(S_T0)} offen")
        a.label('Lfin')
        if self.cfg.diag:
            a("s_waitcnt vmcnt(0)")
            self.stamp(39); self.stamp(62)
            a(f"s_memrealtime {s(S_TS,2)}")
            a("s_waitcnt lgkmcnt(0)")
            a(f"v_writelane_b32 {v(VDIAG)}, {s(S_TS)}, 63")
            a(f"s_mul_i32 {s(S_T0)}, s2, 12")
            a(f"s_add_u32 {s(S_T0)}, {s(S_T0)}, {s(S_WID)}")
            a(f"s_lshl_b32 {s(S_T0)}, {s(S_T0)}, 8")
            a(f"s_add_u32 {s(S_T0)}, {s(S_T0)}, {WS_TS2}")
            a(f"v_lshlrev_b32 v2, 2, v1")
            a(f"buffer_store_dword {v(VDIAG)}, v2, {s(R_WS,4)}, {s(S_T0)} offen")
        a.label('Lend')
        a("s_endpgm")

    ACC = 12; ONES = 68; RS = 72; SQ = 76; CSA = 80; CSB = 84
    XA = 88; XB = 96; YA = 124; YB = 132
    VA = 2
    L15 = 164; G = 165; TOK = 167
    def acc(self, t, i): return self.ACC + (2 * t + i) * 4
    def tiles(self, ty):
        if ty == 0:
            return [(6, 0, 160, 'N'), (6, 32, 160, 'N'), (7, 0, 160, 'N'), (6, 10256, 160, 'N'), (6, 10288, 160, 'N'),
                    (8, 0, 128, 'T'), (9, 0, 128, 'T')]
        return [(6, 0, 160, 'T'), (6, 32, 160, 'T'), (6, 64, 160, 'T'), (7, 0, 256, 'T'), (8, 0, 256, 'T'), (9, 0, 256, 'T'), (10, 0, 256, 'T')]

    def compute_setup(self):
        a = self.a
        a.label('Lcompute')
        T = 88
        L15, G, TOK = self.L15, self.G, self.TOK
        a(f"s_sub_u32 {s(S_T0)}, {s(S_WID)}, 4")
        a(f"s_and_b32 {s(S_R)}, {s(S_T0)}, 3")
        a(f"s_lshr_b32 {s(S_C)}, {s(S_T0)}, 2")
        a(f"v_add_u32 v0, {-256 & 0xffffffff}, v0")
        a(f"v_and_b32 {v(L15)}, 15, v1")
        a(f"v_lshrrev_b32 {v(G)}, 4, v1")
        a(f"v_lshrrev_b32 {v(T+2)}, 1, {v(L15)}")
        a(f"v_xor_b32 {v(T+2)}, {v(T+2)}, {v(G)}")
        a(f"v_lshlrev_b32 {v(T+2)}, 4, {v(T+2)}")
        a(f"v_lshl_add_u32 {v(T+2)}, {v(L15)}, 7, {v(T+2)}")
        a(f"s_lshl_b32 {s(S_T0)}, {s(S_R)}, 12")
        a(f"s_lshl_b32 {s(S_T1)}, {s(S_C)}, 11")
        a(f"s_add_u32 {s(S_T0)}, {s(S_T0)}, {s(S_T1)}")
        a(f"v_add_u32 v2, {s(S_T0)}, {v(T+2)}")
        a(f"v_xor_b32 v3, 64, v2")
        a(f"v_xor_b32 v4, 2048, v2")
        a(f"v_xor_b32 v5, 64, v4")
        a(f"s_lshr_b32 {s(S_T0)}, {s(S_T0)}, 5")
        a(f"s_add_u32 {s(S_T0)}, {s(S_T0)}, {ST}")
        a(f"v_lshl_add_u32 {v(TOK)}, {v(L15)}, 2, {s(S_T0)}")
        a(f"v_bfe_u32 {v(T+3)}, v1, 2, 3")
        a(f"v_lshrrev_b32 {v(T+4)}, 5, v1")
        a(f"v_lshl_add_u32 {v(T+4)}, {v(T+4)}, 4, {v(T+3)}")
        a(f"v_and_b32 {v(T+5)}, 3, v1")
        a(f"v_lshlrev_b32 {v(T+6)}, 3, {v(T+5)}")
        a(f"v_mul_u32_u24 v6, 160, {v(T+4)}")
        a(f"s_mul_i32 {s(S_T0)}, {s(S_C)}, 80")
        a(f"s_add_u32 {s(S_T0)}, {s(S_T0)}, 16384")
        a(f"v_add3_u32 v6, v6, {v(T+6)}, {s(S_T0)}")
        for i in range(self.ACC, self.ONES): a(f"v_mov_b32 {v(i)}, 0")
        for i in range(4): a(f"v_mov_b32 {v(self.ONES+i)}, 0x3f803f80")
        a(f"s_mov_b32 {s(S_IT)}, 0")
        self.calc_u()
        a("s_waitcnt lgkmcnt(0)")
        self.stamp(1)
        srd(a, R_WS, P_WS, WS_SIZE)
        a(f"s_cmp_lg_u32 {s(S_TY)}, 0")
        a(f"s_cbranch_scc1 Lc_q")
        a(f"v_cmp_gt_u32 vcc, 2, {v(T+5)}")
        a(f"v_mov_b32 {v(T+7)}, 10224")
        a(f"v_cndmask_b32 {v(T+7)}, {v(T+7)}, 64, vcc")
        a(f"v_add_u32 v7, v6, {v(T+7)}")
        a(f"v_lshrrev_b32 {v(T+7)}, 1, {v(T+3)}")
        a(f"v_lshl_add_u32 {v(T+8)}, {v(T+4)}, 7, {v(T+6)}")
        a(f"v_add_u32 {v(T+8)}, 36864, {v(T+8)}")
        a(f"s_lshl_b32 {s(S_T0)}, {s(S_C)}, 1")
        a(f"v_xor_b32 {v(T+7)}, {s(S_T0)}, {v(T+7)}")
        a(f"v_lshl_add_u32 v8, {v(T+7)}, 5, {v(T+8)}")
        a(f"v_xor_b32 {v(T+7)}, 1, {v(T+7)}")
        a(f"v_lshl_add_u32 v9, {v(T+7)}, 5, {v(T+8)}")
        a(f"s_branch Lp1_0")
        a.label('Lc_q')
        a(f"v_lshl_add_u32 {v(T+8)}, {v(T+4)}, 8, {v(T+6)}")
        a(f"v_add_u32 {v(T+8)}, 26624, {v(T+8)}")
        a(f"s_lshl_b32 {s(S_T0)}, {s(S_C)}, 2")
        a(f"v_xor_b32 {v(T+7)}, {s(S_T0)}, {v(T+3)}")
        for i in range(4):
            a(f"v_xor_b32 {v(T+9)}, {i}, {v(T+7)}")
            a(f"v_lshl_add_u32 {v(7+i)}, {v(T+9)}, 5, {v(T+8)}")
        a(f"s_branch Lp1_1")

    def p1_reads(self, ty, st, A, B):
        out = [f"ds_read_b128 {v(A,4)}, {v(self.VA+st)}", f"ds_read_b128 {v(A+4,4)}, {v(self.VA+2+st)}"]
        for t, (ad, ex, pitch, o) in enumerate(self.tiles(ty)):
            for u in range(2):
                out.append(f"ds_read_b64_tr_b16 {v(B+4*t+2*u,2)}, {v(ad)} offset:{(32*st+8*u)*pitch+ex}")
        return out
    def p1_mfmas(self, ty, A, B):
        M = "v_mfma_f32_16x16x32_bf16"
        out = []
        for t, (ad, ex, pitch, o) in enumerate(self.tiles(ty)):
            for i in range(2):
                d = v(self.acc(t, i), 4); x = v(A + 4*i, 4); w = v(B + 4*t, 4)
                out.append(f"{M} {d}, {x}, {w}, {d}" if o == 'N' else f"{M} {d}, {w}, {x}, {d}")
        return out

    def duty(self, half, A, B):
        a = self.a
        M = "v_mfma_f32_16x16x32_bf16"
        on = v(self.ONES, 4); x0 = v(A, 4)
        def c(r): return v(r, 4) if half else '0'
        a.label(f"Lduty{half}")
        a(f"{M} {v(self.RS,4)}, {on}, {x0}, {c(self.RS)}")
        a(f"{M} {v(self.SQ,4)}, {x0}, {x0}, {c(self.SQ)}")
        Ld = self.lab('dd')
        labs = [self.lab('dr') for _ in range(4)]
        for r in range(1, 4):
            a(f"s_cmp_eq_u32 {s(S_R)}, {r}")
            a(f"s_cbranch_scc1 {labs[r]}")
        for r in range(4):
            a.label(labs[r])
            a(f"{M} {v(self.CSA,4)}, {on}, {v(B+4*r,4)}, {c(self.CSA)}")
            if r < 3:
                a(f"{M} {v(self.CSB,4)}, {on}, {v(B+4*(r+4),4)}, {c(self.CSB)}")
                a(f"s_branch {Ld}")
        a.label(Ld)
        if half:
            T = 160
            SQ = self.SQ
            a(f"v_and_b32 {v(T)}, 3, v1")
            a(f"s_mul_i32 {s(S_T0)}, {s(S_RB)}, 10")
            a(f"s_add_u32 {s(S_T0)}, {s(S_T0)}, {s(S_S0)}")
            a(f"s_lshl_b32 {s(S_T0)}, {s(S_T0)}, 10")
            a(f"s_add_u32 {s(S_T0)}, {s(S_T0)}, {(WS_RP - 2*ST) & 0xffffffff}")
            a(f"v_lshl_add_u32 {v(T+1)}, {v(self.TOK)}, 1, {s(S_T0)}")
            a(f"s_mul_i32 {s(S_T0)}, {s(S_COL)}, 10")
            a(f"s_add_u32 {s(S_T0)}, {s(S_T0)}, {s(S_S0)}")
            a(f"s_lshl_b32 {s(S_T0)}, {s(S_T0)}, 10")
            a(f"s_mul_i32 {s(S_T1)}, {s(S_C)}, 448")
            a(f"s_add_u32 {s(S_T0)}, {s(S_T0)}, {s(S_T1)}")
            a(f"s_lshl_b32 {s(S_T1)}, {s(S_R)}, 6")
            a(f"s_add_u32 {s(S_T0)}, {s(S_T0)}, {s(S_T1)}")
            a(f"s_add_u32 {s(S_T0)}, {s(S_T0)}, {WS_CP}")
            a(f"v_lshl_add_u32 {v(T+2)}, {v(self.L15)}, 2, {s(S_T0)}")
            a(f"v_cmp_eq_u32 vcc, 1, {v(T)}")
            a(f"v_cndmask_b32 {v(self.RS+1)}, {v(SQ)}, {v(SQ+1)}, vcc")
            a(f"v_cmp_eq_u32 vcc, 2, {v(T)}")
            a(f"v_cndmask_b32 {v(self.RS+1)}, {v(self.RS+1)}, {v(SQ+2)}, vcc")
            a(f"v_cmp_eq_u32 vcc, 3, {v(T)}")
            a(f"v_cndmask_b32 {v(self.RS+1)}, {v(self.RS+1)}, {v(SQ+3)}, vcc")
            L = self.lab('dn')
            a(f"s_cmp_ge_u32 {s(S_COL)}, 10")
            a(f"s_cbranch_scc1 {L}")
            exec_mask(a, DIAGMASK)
            a(f"buffer_store_dwordx2 {v(self.RS,2)}, {v(T+1)}, {s(R_WS,4)}, 0 offen sc1")
            a.label(L)
            L = self.lab('dn')
            a(f"s_cmp_ge_u32 {s(S_RB)}, 10")
            a(f"s_cbranch_scc1 {L}")
            exec_mask(a, 0xffff)
            a(f"buffer_store_dword {v(self.CSA)}, {v(T+2)}, {s(R_WS,4)}, 0 offen sc1")
            a(f"s_cmp_eq_u32 {s(S_R)}, 3")
            a(f"s_cbranch_scc1 {L}")
            a(f"buffer_store_dword {v(self.CSB)}, {v(T+2)}, {s(R_WS,4)}, 0 offen offset:256 sc1")
            a.label(L)
            a("s_mov_b64 exec, -1")
        a(f"s_cmp_lg_u32 {s(S_TY)}, 0")
        a(f"s_cbranch_scc1 Lret{half}_1")
        a(f"s_branch Lret{half}_0")

    def pack_blocks(self):
        a = self.a
        PD = 72
        def ret(h):
            a(f"s_cmp_lg_u32 {s(S_TY)}, 0")
            a(f"s_cbranch_scc1 Lret{h}_1")
            a(f"s_branch Lret{h}_0")
        a.label('Lx1')
        a(f"s_cmp_eq_u32 {s(S_IT)}, 1")
        a(f"s_cbranch_scc1 Lduty1")
        L = self.lab('pa')
        a(f"s_cmp_gt_u32 {s(S_U)}, 135")
        a(f"s_cbranch_scc1 {L}")
        a(f"v_lshrrev_b32 v160, 2, v1")
        a(f"v_mul_u32_u24 v160, 640, v160")
        a(f"v_and_b32 v161, 3, v1")
        a(f"v_lshl_add_u32 v160, v161, 3, v160")
        a(f"s_mul_i32 {s(S_T0)}, {s(S_R)}, 160")
        a(f"s_mul_i32 {s(S_T1)}, {s(S_C)}, 96")
        a(f"s_add_u32 {s(S_T0)}, {s(S_T0)}, {s(S_T1)}")
        a(f"s_add_u32 {s(S_T0)}, {s(S_T0)}, {SCR}")
        a(f"v_add_u32 v160, {s(S_T0)}, v160")
        for c in range(3):
            a(f"ds_read_b64_tr_b16 {v(PD+4*c,2)}, v160 offset:{32*c}")
            a(f"ds_read_b64_tr_b16 {v(PD+2+4*c,2)}, v160 offset:{32*c + 16*640}")
        a.label(L)
        ret(1)
        a.label('Lx0')
        a(f"s_cmp_eq_u32 {s(S_IT)}, 1")
        a(f"s_cbranch_scc1 Lduty0")
        L = self.lab('pb'); Lw = self.lab('pw')
        a(f"s_cmp_lg_u32 {s(S_IT)}, 4")
        a(f"s_cbranch_scc1 {Lw}")
        a(f"s_cmp_gt_u32 {s(S_U)}, 135")
        a(f"s_cbranch_scc1 {L}")
        a(f"s_and_b32 {s(S_T0)}, {s(S_U)}, 1")
        a(f"s_lshl_b32 {s(S_T0)}, {s(S_T0)}, 2")
        a(f"s_add_u32 {s(S_T0)}, {s(S_T0)}, {s(S_R)}")
        a(f"s_mul_i32 {s(S_T0)}, {s(S_T0)}, 68")
        a(f"s_lshr_b32 {s(S_T1)}, {s(S_U)}, 1")
        a(f"s_add_u32 {s(S_T0)}, {s(S_T0)}, {s(S_T1)}")
        a(f"s_mul_i32 {s(S_T0)}, {s(S_T0)}, 5120")
        a(f"s_mul_i32 {s(S_T1)}, {s(S_C)}, 3072")
        a(f"s_add_u32 {s(S_T0)}, {s(S_T0)}, {s(S_T1)}")
        a(f"s_add_u32 {s(S_T0)}, {s(S_T0)}, {WS_P2}")
        a(f"v_lshlrev_b32 v160, 4, v1")
        for c in range(3):
            if c == 2:
                a(f"s_cmp_lg_u32 {s(S_C)}, 0")
                a(f"s_cbranch_scc1 {L}")
            a(f"buffer_store_dwordx4 {v(PD+4*c,4)}, v160, {s(R_WS,4)}, {s(S_T0)} offen offset:{1024*c} sc1")
        a.label(L)
        ret(0)
        a.label(Lw)
        a("s_waitcnt vmcnt(0)")
        ret(0)

    def p1_loop(self, ty):
        a = self.a
        nad = 8 if ty == 0 else 9
        nb = a.nbar
        a.label(f"Lp1_{ty}")
        a("s_barrier")
        for x in self.p1_reads(ty, 0, self.XA, self.XB): a(x)
        a(f"s_branch Lret1_{ty}")
        a.label(f"Lp1h_{ty}")
        a("s_barrier")
        interleave(a, self.p1_mfmas(ty, self.YA, self.YB), self.p1_reads(ty, 0, self.XA, self.XB), 0.75, 3)
        a(f"s_bitcmp1_b32 {(1<<1)|(1<<3)}, {s(S_IT)}")
        a(f"s_cbranch_scc1 Lx1")
        a.label(f"Lret1_{ty}")
        upd = [f"v_add_u32 {v(self.VA+i)}, {s(S_DELTA)}, {v(self.VA+i)}" for i in range(nad)]
        rd = self.p1_reads(ty, 1, self.YA, self.YB)
        a(f"s_add_u32 {s(S_IT)}, {s(S_IT)}, 1")
        a(f"s_mul_i32 {s(S_T0)}, {s(S_IT)}, 11")
        a(f"s_lshr_b32 {s(S_T0)}, {s(S_T0)}, 5")
        a(f"s_mul_i32 {s(S_T0)}, {s(S_T0)}, 3")
        a(f"s_cmp_eq_u32 {s(S_T0)}, {s(S_IT)}")
        a(f"s_mov_b32 {s(S_DELTA)}, {SLOT}")
        a(f"s_cselect_b32 {s(S_DELTA)}, {hex(-2*SLOT & 0xffffffff)}, {s(S_DELTA)}")
        a("s_waitcnt lgkmcnt(0)")
        interleave(a, self.p1_mfmas(ty, self.XA, self.XB), rd + upd, 0.9, 3)
        a(f"s_bitcmp1_b32 {(1<<1)|(1<<3)|(1<<4)|(1<<5)}, {s(S_IT)}")
        a(f"s_cbranch_scc1 Lx0")
        a.label(f"Lret0_{ty}")
        a(f"s_cmp_lt_u32 {s(S_IT)}, 10")
        a("s_waitcnt lgkmcnt(0)")
        a(f"s_cbranch_scc1 Lp1h_{ty}")
        a("s_barrier")
        self.nb_loop = 11
        a.nbar = nb

    def gelu_tile(self, t, AB, CS, BR, d0, W):
        a = self.a
        B = W; X = W + 4
        a(f"v_lshlrev_b32 {v(B)}, 16, {v(BR)}")
        a(f"v_and_b32 {v(B+1)}, {s(S_K1)}, {v(BR)}")
        a(f"v_lshlrev_b32 {v(B+2)}, 16, {v(BR+1)}")
        a(f"v_and_b32 {v(B+3)}, {s(S_K1)}, {v(BR+1)}")
        ch = [(i, p) for i in range(2) for p in range(2)]
        ac = lambda i, p: self.acc(t, i) + 2 * p
        x = lambda i, p: X + 4 * i + 2 * p
        for i, p in ch: a(pk('fma', x(i,p), ('b', AB+4*i+2), CS+2*p, B+2*p))
        for i, p in ch: a(pk('fma', ac(i,p), ('b', AB+4*i), ac(i,p), x(i,p)))
        for i, p in ch: a(pk('mul', x(i,p), ac(i,p), ac(i,p)))
        for i, p in ch: a(pk('fma', x(i,p), x(i,p), ('s', S_K0), ('b', 166)))
        for i, p in ch: a(pk('mul', x(i,p), x(i,p), ac(i,p)))
        for k in range(8): a(f"v_exp_f32 {v(X+k)}, {v(X+k)}")
        for i, p in ch: a(pk('add', x(i,p), x(i,p), '1.0'))
        for k in range(8): a(f"v_rcp_f32 {v(X+k)}, {v(X+k)}")
        for i, p in ch: a(pk('mul', x(i,p), x(i,p), ac(i,p)))
        for i, p in ch: a(f"v_cvt_pk_bf16_f32 {v(d0(i)+p)}, {v(x(i,p))}, {v(x(i,p)+1)}")
    def gelu_consts(self):
        a = self.a
        c1 = -2 * math.sqrt(2 / math.pi) * LOG2E; c2 = c1 * 0.044715
        a(f"s_mov_b32 {s(S_K0)}, {lit(c2)}")
        a(f"s_mov_b32 {s(S_K1)}, 0xffff0000")
        a(f"v_mov_b32 v166, {lit(c1)}")

    def phi_tile(self, t, fa, fb, fcs, X, EPS, d0):
        a = self.a
        ch = [(i, p) for i in range(2) for p in range(2)]
        ac = lambda i, p: self.acc(t, i) + 2 * p
        x = lambda i, p: X + 4 * i + 2 * p
        for i, p in ch: a(pk('fma', x(i,p), fb(i,p), fcs(i,p), ('b', EPS)))
        for i, p in ch: a(pk('fma', ac(i,p), fa(i,p), ac(i,p), x(i,p)))
        for i, p in ch: a(pk('mul', x(i,p), ac(i,p), ('s', S_K0)))
        for k in range(8): a(f"v_exp_f32 {v(X+k)}, {v(X+k)} clamp")
        for i in range(2):
            for k in range(4): a(f"v_max_f32 {v(X+8+4*i+k)}, {v(EPS)}, {v(self.acc(t,i)+k)}")
        for i, p in ch: a(pk('add', x(i,p), x(i,p), x(i,p)+8))
        for i, p in ch: a(f"v_cvt_pk_bf16_f32 {v(d0(i)+p)}, {v(x(i,p))}, {v(x(i,p)+1)}")

    def h_addr(self, ks0_imm, ks_c_mul):
        a = self.a
        a(f"s_lshl_b32 {s(S_T0)}, {s(S_RB)}, 3")
        a(f"s_lshl_b32 {s(S_T1)}, {s(S_R)}, 1")
        a(f"s_add_u32 {s(S_T0)}, {s(S_T0)}, {s(S_T1)}")
        a(f"s_add_u32 {s(S_T0)}, {s(S_T0)}, {s(S_C)}")
        a(f"s_xor_b32 {s(S_T1)}, {s(S_T0)}, 1")
        a(f"s_mul_i32 {s(S_T2)}, {s(S_HG)}, 6")
        a(f"s_mul_i32 {s(S_T3)}, {s(S_C)}, {ks_c_mul}")
        a(f"s_add_u32 {s(S_T2)}, {s(S_T2)}, {s(S_T3)}")
        a(f"s_add_u32 {s(S_T2)}, {s(S_T2)}, {ks0_imm + WS_H2 // 1024}")
        for k, d in ((S_T0, S_OW), (S_T1, S_OM)):
            a(f"s_mul_i32 {s(k)}, {s(k)}, 48")
            a(f"s_add_u32 {s(k)}, {s(k)}, {s(S_T2)}")
            a(f"s_lshl_b32 {s(d)}, {s(k)}, 10")
        a(f"v_lshlrev_b32 v2, 4, v1")
    def h_store(self, p, TMP):
        for i in range(2):
            self.a(f"buffer_store_dwordx4 {v(TMP+p*8+i*4,4)}, v2, {s(R_WS,4)}, {s((S_OW, S_OM)[i])} offen offset:{1024*p} sc1")

    def epi_kv(self):
        a = self.a
        nb = a.nbar
        L15, G, TOK = self.L15, self.G, self.TOK
        self.stamp(2)
        a(f"s_lshl_b32 {s(S_T0)}, {s(S_R)}, 7")
        a(f"s_lshl_b32 {s(S_T1)}, {s(S_C)}, 6")
        a(f"s_add_u32 {s(S_T0)}, {s(S_T0)}, {s(S_T1)}")
        a(f"s_add_u32 {s(S_T0)}, {s(S_T0)}, {ST}")
        a(f"v_lshl_add_u32 v2, {v(G)}, 4, {s(S_T0)}")
        a(f"v_xor_b32 v3, 64, v2")
        a(f"s_mul_i32 {s(S_T0)}, {s(S_C)}, 448")
        a(f"s_add_u32 {s(S_T0)}, {s(S_T0)}, {ST_CS}")
        a(f"v_lshl_add_u32 v4, {v(L15)}, 2, {s(S_T0)}")
        a(f"v_lshl_add_u32 v5, {v(G)}, 4, {s(S_T0)}")
        a(f"v_xor_b32 v6, 64, {v(TOK)}")
        a(f"s_lshl_b32 {s(S_T0)}, {s(S_C)}, 6")
        a(f"s_add_u32 {s(S_T0)}, {s(S_T0)}, {B1L}")
        a(f"v_lshl_add_u32 v7, {v(G)}, 3, {s(S_T0)}")
        AB = 88; CS = 104; A2 = 114; CH = 80; BR = 72
        rd = [f"ds_read_b128 {v(AB,4)}, v2", f"ds_read_b128 {v(AB+4,4)}, v2 offset:512",
              f"ds_read_b128 {v(AB+8,4)}, v3", f"ds_read_b128 {v(AB+12,4)}, v3 offset:512"]
        rd += [f"ds_read_b32 {v(CS+2*t)}, v4 offset:{64*t}" for t in range(5)]
        rd += [f"ds_read_b32 {v(A2)}, {v(TOK)} offset:1024", f"ds_read_b32 {v(A2+2)}, {v(TOK)} offset:1536",
               f"ds_read_b32 {v(A2+4)}, v6 offset:1024", f"ds_read_b32 {v(A2+6)}, v6 offset:1536"]
        for j in range(2):
            rd += [f"ds_read_b128 {v(CH+4*j,4)}, v5 offset:{64*(5+j)}", f"ds_read_b64 {v(BR+2*j,2)}, v7 offset:{32*j}"]
        interleave(a, self.p1_mfmas(0, self.YA, self.YB), rd, 0.8, 2)
        EPS = 76
        a(f"v_mov_b32 {v(EPS)}, {lit(1e-6)}")
        a(f"v_mov_b32 {v(EPS+2)}, {lit(-1e-6)}")
        a(f"s_mov_b32 {s(S_K0)}, {lit(LOG2E)}")
        a("s_waitcnt lgkmcnt(0)")
        self.stamp(3)
        FR = 124; X = 148
        fa = lambda i, p: AB + 8*i + 2*p
        fb = lambda i, p: AB + 8*i + 4 + 2*p
        ch = [(i, p) for i in range(2) for p in range(2)]
        for t in (0, 1):
            self.phi_tile(t, fa, fb, lambda i, p: ('b', CS + 2*t), X, EPS, lambda i: FR + 4*t + 2*i)
        self.phi_tile(2, fa, fb, lambda i, p: ('b', CS + 4), X, EPS, lambda i: FR + 8 + 2*i)
        for i, p in ch: a(pk('add', X+4*i+2*p, self.acc(2,i)+2*p, ('b', EPS+2)))
        for i, p in ch: a(f"v_cvt_pk_bf16_f32 {v(FR+12+2*i+p)}, {v(X+4*i+2*p)}, {v(X+4*i+2*p+1)}")
        for t in (3, 4):
            for i, p in ch: a(pk('mul', X+4*i+2*p, fb(i,p), ('b', CS+2*t)))
            for i, p in ch: a(pk('fma', X+4*i+2*p, fa(i,p), self.acc(t,i)+2*p, X+4*i+2*p))
            for i, p in ch: a(f"v_cvt_pk_bf16_f32 {v(FR+4*(t+1)+2*i+p)}, {v(X+4*i+2*p)}, {v(X+4*i+2*p+1)}")
        a(f"v_cmp_gt_u32 vcc, 8, {v(L15)}")
        for r in range(4): a(f"v_cndmask_b32 {v(FR+12+r)}, {v(FR+12+r)}, {v(self.ONES)}, vcc")
        self.stamp(4)
        pairs = [(0, 0), (0, 1), (1, 0), (1, 1), (1, 2), (2, 0), (2, 1), (2, 2)]
        KVD = 12
        a(f"s_mul_i32 {s(S_T0)}, {s(S_R)}, 6720")
        a(f"s_mul_i32 {s(S_T1)}, {s(S_C)}, 3360")
        a(f"s_add_u32 {s(S_T0)}, {s(S_T0)}, {s(S_T1)}")
        a(f"s_add_u32 {s(S_T0)}, {s(S_T0)}, {SCR}")
        for j, (td, te) in enumerate(pairs):
            a(f"v_mfma_f32_16x16x32_bf16 {v(KVD+4*j,4)}, {v(FR+4*td,4)}, {v(FR+12+4*te,4)}, 0")
        a(f"v_mul_u32_u24 v2, 336, {v(G)}")
        a(f"v_add_u32 v2, {s(S_T0)}, v2")
        a(f"v_lshl_add_u32 v3, {v(L15)}, 4, v2")
        a(f"v_add_u32 v4, {-128 & 0xffffffff}, v3")
        a(f"v_add_u32 v5, {(4*336 - 128 - 320) & 0xffffffff}, v3")
        a(f"v_add_u32 v6, {4*336 - 128}, v3")
        a(f"v_cmp_eq_u32 vcc, 0, {v(G)}")
        a(f"v_cndmask_b32 v5, v5, v6, vcc")
        a(f"v_add_u32 v6, {8*336 - 128 - 320}, v3")
        a(f"v_cmp_eq_u32 vcc, 0, {v(L15)}")
        for td in range(3):
            a(f"v_add_u32 v10, {4*td*336 + 320}, v2")
            a(f"v_cndmask_b32 {v(7+td)}, {v(4+td)}, v10, vcc")
        def valid(td, te, l):
            col = l & 15; g = l >> 4; dqg = 4 * td + g
            if dqg > 9: return False
            hh = dqg // 5
            if te == 0:
                if col == 0: return True
                if col < 8: return False
            eg = col - 8 + 16 * te
            return eg // 20 == hh
        tot = 0
        for j, (td, te) in enumerate(pairs):
            m = sum(1 << l for l in range(64) if valid(td, te, l)); tot += bin(m).count('1')
            exec_mask(a, m)
            a(f"ds_write_b128 {v(7+td if te == 0 else 4+td)}, {v(KVD+4*j,4)} offset:{256*te}")
        assert tot == 210
        a("s_mov_b64 exec, -1")
        a(f"v_lshlrev_b32 v3, 4, v0")
        a(f"v_add_u32 v4, {SCR}, v3")
        a(f"v_mov_b32 v5, {hex(OOB)}")
        a(f"v_cmp_gt_u32 vcc, 420, v0")
        a(f"v_cndmask_b32 v3, v5, v3, vcc")
        self.h_addr(0, 1)
        a(f"s_lshl_b32 {s(S_T0)}, {s(S_HG)}, 4")
        a(f"s_add_u32 {s(S_T0)}, {s(S_T0)}, {s(S_RB)}")
        a(f"s_mul_i32 {s(S_T0)}, {s(S_T0)}, {KP_STRIDE}")
        a(f"s_add_u32 {s(S_T0)}, {s(S_T0)}, {WS_KP}")
        self.gelu_consts()
        a("s_waitcnt lgkmcnt(0)")
        self.stamp(5)
        a("s_barrier")
        for r in range(4): a(f"ds_read_b128 {v(12+4*r,4)}, v4 offset:{6720*r}")
        a("s_waitcnt lgkmcnt(0)")
        for p in range(2): a(pk('add', 12+2*p, 12+2*p, 16+2*p))
        for p in range(2): a(pk('add', 20+2*p, 20+2*p, 24+2*p))
        for p in range(2): a(pk('add', 12+2*p, 12+2*p, 20+2*p))
        a(f"buffer_store_dwordx4 v[12:15], v3, {s(R_WS,4)}, {s(S_T0)} offen sc1")
        self.stamp(7)
        TMP = 124
        for j in range(2):
            self.gelu_tile(5 + j, A2, CH + 4*j, BR + 2*j, lambda i: TMP + 4*i + 2*j, 148)
        self.stamp(8)
        a("s_waitcnt vmcnt(0)")
        self.h_store(0, TMP)
        self.stamp(9)
        a("s_barrier")
        self.p2_pre_setup()
        a("s_waitcnt vmcnt(0)")
        self.stamp(11)
        a("s_barrier")
        a("s_barrier")
        self.p2_pre_loads()
        self.nb_c_kv = self.nb_loop + a.nbar - nb
        a.nbar = nb
        a("s_branch Lp2")

    def epi_q(self):
        a = self.a
        nb = a.nbar
        L15, G, TOK = self.L15, self.G, self.TOK
        self.stamp(2)
        a(f"s_mul_i32 {s(S_T0)}, {s(S_C)}, 448")
        a(f"s_add_u32 {s(S_T0)}, {s(S_T0)}, {ST_CS}")
        a(f"v_lshl_add_u32 v5, {v(G)}, 4, {s(S_T0)}")
        a(f"v_xor_b32 v6, 64, {v(TOK)}")
        a(f"s_lshl_b32 {s(S_T0)}, {s(S_C)}, 7")
        a(f"s_add_u32 {s(S_T0)}, {s(S_T0)}, {B1L}")
        a(f"v_lshl_add_u32 v7, {v(G)}, 3, {s(S_T0)}")
        A2 = 68; A1 = 112; BR = 76; CS = 84
        rd = [f"ds_read_b32 {v(A2)}, {v(TOK)} offset:1024", f"ds_read_b32 {v(A2+2)}, {v(TOK)} offset:1536",
              f"ds_read_b32 {v(A2+4)}, v6 offset:1024", f"ds_read_b32 {v(A2+6)}, v6 offset:1536"]
        for j in range(4):
            rd += [f"ds_read_b128 {v(CS+4*(3+j),4)}, v5 offset:{64*(3+j)}", f"ds_read_b64 {v(BR+2*j,2)}, v7 offset:{32*j}"]
        rd += [f"ds_read_b32 {v(A1)}, {v(TOK)}", f"ds_read_b32 {v(A1+2)}, {v(TOK)} offset:512",
               f"ds_read_b32 {v(A1+4)}, v6", f"ds_read_b32 {v(A1+6)}, v6 offset:512"]
        rd += [f"ds_read_b128 {v(CS+4*t,4)}, v5 offset:{64*t}" for t in range(3)]
        mf = self.p1_mfmas(1, self.YA, self.YB)
        mf = mf[6:] + mf[:6]
        interleave(a, mf, rd, 0.8, 2)
        self.h_addr(2, 2)
        self.gelu_consts()
        a(f"v_lshlrev_b32 v3, 4, v0")
        a(f"v_add_u32 v4, {KVT}, v3")
        for k in range(4): a(f"v_mov_b32 {v(120+k)}, 0")
        a("s_waitcnt lgkmcnt(0)")
        a(f"ds_write_b128 v4, v[120:123]")
        self.stamp(3)
        TMP = 124
        a("s_setprio 1")
        for j in range(4):
            self.gelu_tile(3 + j, A2, CS + 4*(3+j), BR + 2*j, lambda i: TMP + (j >> 1)*8 + 4*i + 2*(j & 1), 140)
            if j & 1: self.h_store(j >> 1, TMP)
        a("s_setprio 0")
        self.stamp(5)
        PQ = 152; EPS = 76; X = 112
        a(f"v_mov_b32 {v(EPS)}, {lit(1e-6)}")
        a(f"s_mov_b32 {s(S_K0)}, {lit(LOG2E)}")
        X = 96
        for t in range(3):
            self.phi_tile(t, lambda i, p: ('b', A1+4*i), lambda i, p: ('b', A1+4*i+2), lambda i, p: CS+4*t+2*p, X, EPS,
                          (lambda i: PQ + 4*i + 2*t) if t < 2 else (lambda i: PQ + 8 + 2*i))
        self.stamp(6)
        a(f"v_cmp_le_u32 vcc, 210, v0")
        a(f"v_cndmask_b32 v84, 0, 1, vcc")
        a(f"v_mov_b32 v86, -210")
        a(f"v_mad_i32_i24 v85, v84, v86, v0")
        a(f"v_mul_u32_u24 v86, 3121, v85")
        a(f"v_lshrrev_b32 v86, 16, v86")
        a(f"v_mov_b32 v88, -21")
        a(f"v_mad_i32_i24 v87, v86, v88, v85")
        a(f"v_cmp_le_u32 vcc, 5, v86")
        a(f"v_cndmask_b32 v88, 0, 1, vcc")
        a(f"v_lshlrev_b32 v89, 1, v88")
        a(f"v_subrev_u32 v90, 16, v87")
        a(f"v_lshlrev_b32 v90, 2, v90")
        a(f"v_mad_u32_u24 v90, v88, 3, v90")
        a(f"v_add_u32 v91, 1, v88")
        a(f"v_cmp_eq_u32 {s(S_MASK,2)}, 20, v87")
        a(f"v_cndmask_b32 v90, v90, v91, {s(S_MASK,2)}")
        a(f"v_cmp_gt_u32 vcc, 16, v87")
        a(f"v_cndmask_b32 v90, v90, v87, vcc")
        a(f"v_cndmask_b32 v89, 1, v89, vcc")
        a(f"v_and_b32 v91, 3, v86")
        a(f"v_lshl_add_u32 v90, v91, 4, v90")
        a(f"v_lshlrev_b32 v91, 10, v89")
        a(f"v_lshl_add_u32 v91, v90, 4, v91")
        a(f"v_and_b32 v92, 4, v86")
        a(f"v_lshl_add_u32 v91, v92, 1, v91")
        a(f"v_lshrrev_b32 v92, 1, v89")
        a(f"v_lshlrev_b32 v92, 9, v92")
        a(f"v_lshl_add_u32 v92, v90, 3, v92")
        a(f"v_add_u32 v92, 3072, v92")
        a(f"v_cmp_le_u32 vcc, 8, v86")
        a(f"v_cndmask_b32 v91, v91, v92, vcc")
        a(f"v_cndmask_b32 v149, 64, 32, vcc")
        a(f"v_lshl_add_u32 v91, v84, 12, v91")
        a(f"v_add_u32 v148, {KVT}, v91")
        a(f"v_mov_b32 v86, {hex(OOB)}")
        a(f"v_cmp_gt_u32 vcc, 420, v0")
        a(f"v_cndmask_b32 v150, v86, v3, vcc")
        a(f"s_and_b64 {s(S_MASK,2)}, {s(S_MASK,2)}, vcc")
        a(f"s_mov_b64 {s(S_DEST,2)}, vcc")
        self.p2_pre_setup()
        a(f"s_mul_i32 {s(S_T0)}, {s(S_HG)}, {16*KP_STRIDE}")
        a(f"s_add_u32 {s(S_T0)}, {s(S_T0)}, {WS_KP}")
        self.stamp(7)
        a("s_waitcnt vmcnt(0) lgkmcnt(0)")
        self.stamp(8)
        a("s_barrier")
        a(f"s_lshl_b32 {s(S_T1)}, {s(S_C)}, 12")
        a(f"s_add_u32 {s(S_T1)}, {s(S_T1)}, {KVT}")
        a(f"v_lshl_add_u32 v140, v1, 4, {s(S_T1)}")
        a(f"v_lshl_add_u32 v141, v1, 3, {s(S_T1)}")
        a(f"s_lshl_b32 {s(S_T1)}, {s(S_R)}, 5")
        a(f"s_lshl_b32 {s(S_T2)}, {s(S_C)}, 4")
        a(f"s_add_u32 {s(S_T1)}, {s(S_T1)}, {s(S_T2)}")
        a(f"v_add_u32 v142, {s(S_T1)}, {v(L15)}")
        a(f"v_xor_b32 v143, 16, v142")
        a(f"s_mul_i32 {s(S_T1)}, {s(S_C)}, 80")
        a(f"s_add_u32 {s(S_T1)}, {s(S_T1)}, {OEX}")
        for i in range(2):
            a(f"v_mul_u32_u24 {v(142+i)}, 160, {v(142+i)}")
            a(f"v_add_u32 {v(142+i)}, {s(S_T1)}, {v(142+i)}")
            a(f"v_lshl_add_u32 {v(144+i)}, {v(G)}, 1, {v(142+i)}")
            a(f"v_lshl_add_u32 {v(142+i)}, {v(G)}, 3, {v(142+i)}")
        a("s_barrier")
        self.stamp(9)
        for k in range(16):
            a(f"buffer_load_dwordx4 {v(12+4*k,4)}, v150, {s(R_WS,4)}, {s(S_T0)} offen sc1")
            if k < 15: a(f"s_add_u32 {s(S_T0)}, {s(S_T0)}, {KP_STRIDE}")
        self.stamp(10)
        for k in range(1, 16):
            a(f"s_waitcnt vmcnt({15-k})")
            for p in range(2): a(pk('add', 12+2*p, 12+2*p, 12+4*k+2*p))
        self.stamp(12)
        a(f"v_cvt_pk_bf16_f32 v12, v12, v13")
        a(f"v_cvt_pk_bf16_f32 v13, v14, v15")
        Lz = self.lab('kz')
        a(f"s_mov_b64 exec, {s(S_DEST,2)}")
        a(f"s_cbranch_execz {Lz}")
        a(f"ds_write_b64 v148, v[12:13]")
        a(f"s_mov_b64 exec, {s(S_MASK,2)}")
        a(f"s_cbranch_execz {Lz}")
        for k in range(3):
            a(f"v_add_u32 v148, v148, v149")
            a(f"ds_write_b64 v148, v[12:13]")
        a.label(Lz)
        a("s_mov_b64 exec, -1")
        a("s_waitcnt lgkmcnt(0)")
        a("s_barrier")
        F = 12
        for k in range(3): a(f"ds_read_b128 {v(F+4*k,4)}, v140 offset:{1024*k}")
        a(f"ds_read_b64 {v(F+12,2)}, v141 offset:3072")
        a(f"ds_read_b64 {v(F+14,2)}, v141 offset:3584")
        self.p2_pre_loads()
        a("s_waitcnt lgkmcnt(0)")
        U = 32
        for i in range(2):
            for k in (1, 2, 0):
                a(f"v_mfma_f32_16x16x32_bf16 {v(U+12*i+4*k,4)}, {v(F+4*k,4)}, {v(PQ+4*i,4)}, 0")
        for i in range(2):
            for k in (1, 2):
                a(f"v_mfma_f32_16x16x16_bf16 {v(U+12*i+4*k,4)}, {v(F+12+2*(k-1),2)}, {v(PQ+8+2*i,2)}, {v(U+12*i+4*k,4)}")
        a(f"v_mov_b32 v28, {lit(1e-6)}")
        for i in range(2):
            u = U + 12 * i
            a(f"v_add_f32 {v(u+5)}, v28, {v(u+5)}")
            a(f"v_add_f32 {v(u+6)}, v28, {v(u+6)}")
            a(f"v_rcp_f32 {v(56+2*i)}, {v(u+5)}")
            a(f"v_rcp_f32 {v(u+6)}, {v(u+6)}")
        for i in range(2):
            u = U + 12 * i
            for p in range(2): a(pk('mul', u+2*p, u+2*p, ('b', 56+2*i)))
            for p in range(2): a(pk('mul', u+8+2*p, u+8+2*p, ('b', u+6)))
            a(f"v_mul_f32 {v(u+4)}, {v(u+4)}, {v(56+2*i)}")
            a(f"v_mul_f32 {v(u+7)}, {v(u+7)}, {v(u+6)}")
            a(f"v_cvt_pk_bf16_f32 {v(u)}, {v(u)}, {v(u+1)}")
            a(f"v_cvt_pk_bf16_f32 {v(u+1)}, {v(u+2)}, {v(u+3)}")
            a(f"v_cvt_pk_bf16_f32 {v(u+8)}, {v(u+8)}, {v(u+9)}")
            a(f"v_cvt_pk_bf16_f32 {v(u+9)}, {v(u+10)}, {v(u+11)}")
            a(f"v_cvt_pk_bf16_f32 {v(u+4)}, {v(u+4)}, {v(u+7)}")
            a(f"ds_write_b64 {v(142+i)}, {v(u,2)}")
            a(f"ds_write_b64 {v(142+i)}, {v(u+8,2)} offset:40")
            a(f"ds_write_b16 {v(144+i)}, {v(u+4)} offset:32")
            a(f"ds_write_b16_d16_hi {v(144+i)}, {v(u+4)} offset:72")
        a("s_waitcnt lgkmcnt(0)")
        self.stamp(13)
        a("s_barrier")
        self.nb_c_q = self.nb_loop + a.nbar - nb
        a.nbar = nb

    AM = 12; AS = 32; P2X = 52; P2Y = 72; AR = 92; OR = 124
    def p2_pre_setup(self):
        a = self.a
        a(f"s_lshl_b32 {s(S_T2)}, {s(S_TT)}, 2")
        a(f"s_add_u32 {s(S_T2)}, {s(S_T2)}, {s(S_R)}")
        a(f"s_mul_i32 {s(S_OH)}, {s(S_T2)}, {48*1024}")
        a(f"s_mul_i32 {s(S_T3)}, {s(S_C)}, {24*1024}")
        a(f"s_add_u32 {s(S_OH)}, {s(S_OH)}, {s(S_T3)}")
        a(f"s_add_u32 {s(S_OH)}, {s(S_OH)}, {WS_H2}")
        a(f"s_mul_i32 {s(S_DELTA)}, {s(S_T2)}, {8*2560}")
        a(f"s_mul_i32 {s(S_T3)}, {s(S_C)}, {4*2560}")
        a(f"s_add_u32 {s(S_DELTA)}, {s(S_DELTA)}, {s(S_T3)}")
        a(f"s_add_u32 {s(S_DELTA)}, {s(S_DELTA)}, {WS_O2}")
        self.rot2(S_KC)
    def hload(self, j):
        a = self.a
        if j % 2 == 0:
            a(f"s_lshl_b32 {s(S_OA)}, {s(S_KC)}, 11")
            a(f"s_add_u32 {s(S_OA)}, {s(S_OA)}, {s(S_OH)}")
            a(f"s_add_u32 {s(S_KC)}, {s(S_KC)}, 1")
            a(f"s_cmp_eq_u32 {s(S_KC)}, 12")
            a(f"s_cselect_b32 {s(S_KC)}, 0, {s(S_KC)}")
        a(f"buffer_load_dwordx4 {v(self.AR+4*(j%8),4)}, v2, {s(R_WS,4)}, {s(S_OA)} offen offset:{1024*(j%2)} sc1")
    def p2_pre_loads(self):
        for j in range(8): self.hload(j)
        self.a(f"v_lshlrev_b32 v3, 3, v1")

    def phase2(self):
        a = self.a
        a.label('Lp2')
        a(f"s_cmp_lg_u32 {s(S_C)}, 0")
        a(f"s_cbranch_scc1 Lp2_1")
        for kap in range(2): self.phase2k(kap)

    def phase2k(self, kap):
        a = self.a; cfg = self.cfg
        nb = a.nbar
        a.label(f"Lp2_{kap}")
        AM, AS, XB, YB, AR, OR = self.AM, self.AS, self.P2X, self.P2Y, self.AR, self.OR
        VB = 4
        M = "v_mfma_f32_16x16x32_bf16"
        a(f"v_add_u32 v4, {kap*10240}, v2")
        a(f"v_add_u32 v5, {SLOT + kap*10240}, v2")
        a(f"v_add_u32 v6, {2*SLOT + kap*10240}, v2")
        q = [('A', j) for j in range(8)]
        def hload(j): self.hload(j); q.append(('A', j))
        def oloads():
            for P in range(2):
                for hh in range(2):
                    a(f"s_add_u32 {s(S_T0+hh)}, {s(S_DELTA)}, {(2*P+hh)*2560}")
                for i5 in range(4):
                    a(f"buffer_load_dwordx4 {v(OR+4*(5*P+i5),4)}, v2, {s(R_WS,4)}, {s(S_T0+(i5>>1))} offen offset:{1024*(i5&1)} sc1")
                    q.append(('A', 24 + 5*P + i5))
                for hh in range(2):
                    a(f"buffer_load_dwordx2 {v(OR+4*(5*P+4)+2*hh,2)}, v3, {s(R_WS,4)}, {s(S_T0+hh)} offen offset:2048 sc1")
                    q.append(('A', 24 + 5*P + 4))
        def wait(tag):
            idx = [k for k, t in enumerate(q) if t == tag]
            if not idx: return
            n = sum(1 for t in q[idx[-1]+1:] if t[0] != 'S')
            a(f"s_waitcnt vmcnt({n})")
            del q[:idx[-1] + 1]
        def areg(j): return AR + 4 * (j % 8) if j < 24 else OR + 4 * (j - 24)
        def reads(j, B):
            i = j // 2; base = RING[i % 6]; vb = VB + base // SLOT; off = base % SLOT + (j & 1) * 5120
            return [f"ds_read_b128 {v(B+4*c,4)}, {v(vb)} offset:{off + 1024*c}" for c in range(5)]
        def mfmas(j, B):
            ac = AM if j < 24 else AS
            first = j in (0, 24)
            return [f"{M} {v(ac+4*c,4)}, {v(B+4*c,4)}, {v(areg(j),4)}, {'0' if first else v(ac+4*c,4)}" for c in range(5)]
        own = [0, 1, 2] if kap == 0 else [3, 4]
        give = [c for c in range(5) if c not in own]
        a(f"s_mul_i32 {s(S_T0)}, {s(S_R)}, 5120")
        a(f"s_add_u32 {s(S_T0)}, {s(S_T0)}, {EXB}")
        a(f"v_add_u32 v7, {s(S_T0)}, v2")
        a(f"s_lshl_b32 {s(S_T0)}, {s(S_R)}, 4")
        a(f"v_add_u32 v8, {s(S_T0)}, {v(self.L15)}")
        a(f"v_mul_u32_u24 v8, 160, v8")
        a(f"v_lshl_add_u32 v8, {v(self.G)}, 3, v8")
        a(f"v_add_u32 v8, {XT}, v8")
        a(f"v_lshlrev_b32 v9, 3, {v(self.G)}")
        a(f"v_add_u32 v9, {B2L}, v9")
        a(f"s_mov_b32 {s(S_K1)}, 0xffff0000")
        a(f"s_mov_b32 {s(S_K0)}, {lit(-LOG2E)}")
        G = AR
        for i in range(17):
            j0 = 2 * i
            a("s_barrier")
            self.stamp(20 + i)
            if i == cfg.ko: oloads()
            rd = reads(j0, XB)
            if i > 0:
                wait(('A', j0 - 1))
                interleave(a, mfmas(j0 - 1, YB), rd, 0.6, 2)
                if j0 - 1 + 8 < 24: hload(j0 - 1 + 8)
            else:
                for x in rd: a(x)
            if i == 12:
                for c in give: a(f"ds_write_b128 v7, {v(AM+4*c,4)} offset:{1024*c}")
            if i == 13:
                for k, c in enumerate(own):
                    a(f"ds_read_b128 {v(G+4*k,4)}, v7 offset:{1024*c}")
                    a(f"ds_read_b64 {v(G+12+2*k,2)}, v9 offset:{32*c}")
            wait(('A', j0))
            a("s_waitcnt lgkmcnt(0)")
            interleave(a, mfmas(j0, XB), reads(j0 + 1, YB), 0.6, 2)
            if j0 + 8 < 24: hload(j0 + 8)
            if i == 13:
                X = G + 20
                for k, c in enumerate(own):
                    g = G + 4 * k; b = G + 12 + 2 * k; x = X + 4 * k
                    a(f"v_lshlrev_b32 {v(x)}, 16, {v(b)}")
                    a(f"v_and_b32 {v(x+1)}, {s(S_K1)}, {v(b)}")
                    a(f"v_lshlrev_b32 {v(x+2)}, 16, {v(b+1)}")
                    a(f"v_and_b32 {v(x+3)}, {s(S_K1)}, {v(b+1)}")
                prs = [(k, c, p) for k, c in enumerate(own) for p in range(2)]
                for k, c, p in prs: a(pk('add', G+4*k+2*p, G+4*k+2*p, AM+4*c+2*p))
                for k, c, p in prs: a(pk('add', G+4*k+2*p, G+4*k+2*p, X+4*k+2*p))
                for k, c, p in prs: a(pk('mul', X+4*k+2*p, G+4*k+2*p, ('s', S_K0)))
                for k in range(4*len(own)): a(f"v_exp_f32 {v(X+k)}, {v(X+k)}")
                for k, c, p in prs: a(pk('add', X+4*k+2*p, X+4*k+2*p, '1.0'))
                for k in range(4*len(own)): a(f"v_rcp_f32 {v(X+k)}, {v(X+k)}")
                for k, c, p in prs: a(pk('mul', G+4*k+2*p, G+4*k+2*p, X+4*k+2*p))
            if i == 14:
                for k, c in enumerate(own): a(f"ds_read_b64 {v(G+12+2*k,2)}, v8 offset:{32*c}")
            if i == 15:
                for k, c in enumerate(own):
                    b = G + 12 + 2 * k
                    a(f"v_lshlrev_b32 {v(AM+4*k)}, 16, {v(b)}")
                    a(f"v_and_b32 {v(AM+4*k+1)}, {s(S_K1)}, {v(b)}")
                    a(f"v_lshlrev_b32 {v(AM+4*k+2)}, 16, {v(b+1)}")
                    a(f"v_and_b32 {v(AM+4*k+3)}, {s(S_K1)}, {v(b+1)}")
            a("s_waitcnt lgkmcnt(0)")
        wait(('A', 33))
        mf = mfmas(33, YB)
        for c in give + own: a(mf[c])
        for c in give: a(f"ds_write_b128 v7, {v(AS+4*c,4)} offset:{1024*c}")
        X = AM
        a("s_waitcnt lgkmcnt(0)")
        a("s_barrier")
        for k, c in enumerate(own): a(f"ds_read_b128 {v(XB+4*k,4)}, v7 offset:{1024*c}")
        a("s_waitcnt lgkmcnt(0)")
        prs = [(k, c, p) for k, c in enumerate(own) for p in range(2)]
        for k, c, p in prs: a(pk('add', XB+4*k+2*p, XB+4*k+2*p, AS+4*c+2*p))
        for k, c, p in prs: a(pk('fma', X+4*k+2*p, XB+4*k+2*p, G+4*k+2*p, X+4*k+2*p))
        for k, c, p in prs: a(f"v_cvt_pk_bf16_f32 {v(XB+2*k+p)}, {v(X+4*k+2*p)}, {v(X+4*k+2*p+1)}")
        for k, c in enumerate(own): a(f"ds_write_b64 v8, {v(XB+2*k,2)} offset:{32*c}")
        a("s_waitcnt lgkmcnt(0)")
        a("s_barrier")
        self.nb_c_p2 = a.nbar - nb
        a.nbar = nb
        if kap == 0: a("s_branch Lfinal_store")

    def build(self):
        a = self.a
        self.entry()
        self.loader()
        self.compute_setup()
        self.duty(0, self.XA, self.XB)
        self.duty(1, self.YA, self.YB)
        self.pack_blocks()
        self.p1_loop(0); self.epi_kv()
        self.p1_loop(1); self.epi_q()
        self.phase2()
        self.final_store()
        assert self.nb_ld_kv == self.nb_c_kv, (self.nb_ld_kv, self.nb_c_kv)
        assert self.nb_ld_q == self.nb_c_q, (self.nb_ld_q, self.nb_c_q)
        assert self.nb_ld_p2 == self.nb_c_p2, (self.nb_ld_p2, self.nb_c_p2)
        body = a.finish()
        head = open('recurrent_scan__linear_attn_block__mixer_channel_mlp__prompt.s.ref').read().split('; Override launch')[0]
        txt = head + f"; @launch grid=(256,1,1) block=(768,1,1) lds={LDS_TOTAL}\n"
        txt += f'.amdgcn_target "amdgcn-amd-amdhsa--gfx950"\n.text\n.globl {NAME}\n.p2align 8\n.type {NAME},@function\n{NAME}:\n'
        txt += body
        txt += f""".section .rodata,"a"
.p2align 6
.amdhsa_kernel {NAME}
  .amdhsa_next_free_vgpr 168
  .amdhsa_next_free_sgpr 102
  .amdhsa_accum_offset 168
  .amdhsa_group_segment_fixed_size 0
  .amdhsa_kernarg_size 88
  .amdhsa_user_sgpr_count 2
  .amdhsa_user_sgpr_kernarg_segment_ptr 1
  .amdhsa_system_sgpr_workgroup_id_x 1
.end_amdhsa_kernel
"""
        return txt

def make(**kw):
    cfg = Cfg()
    for k, x in kw.items(): setattr(cfg, k, x)
    return Gen(cfg).build()

if __name__ == '__main__':
    out = sys.argv[1] if len(sys.argv) > 1 else 'recurrent_scan__linear_attn_block__mixer_channel_mlp__prompt.s'
    kw = {}
    for x in sys.argv[2:]:
        k, val = x.split('='); kw[k] = eval(val)
    open(out, 'w').write(make(**kw))
```

```python
import sys, math, struct
from asmlib import *

NAME = 'recurrent_scan__linear_attn_block__mixer_channel_mlp__prompt_kernel'

class Cfg:
    n1 = 8
    diag = False
    ko = 11
    rot2 = (0, 1)
    kh = 5
    map1 = 'D'
    kprot = True
    fs = 7
    psl = 2
    ka = 2
    kvo = 0
    prew = True
    sbar = True
    hsc = 'sc1'
    bsc = 'sc1'
    nh0 = 3
    pe = 2
    pp = 0
    gfirst = False
    staged = (6, 8, 10, 12, 14, 16)
    map2 = 'A'
    opc = 4
    cpw = 11
    pl = 3
    rpm = 1
    rp2 = 3
    wopf = False
    ramp = 2
    xr = 7
    xm = 7
    xd = 11
    rot1 = (1, 3)
    pfs = (0, 1)
    cpn = 8
    cpf = 2
    il1 = (0.75, 3)
    il0 = (0.9, 3)
    prio = 0
    dbgt = False
    light = False

SLOT = 45056
SCR = 3 * SLOT
LDS_TOTAL = 163840
ST = SLOT + 40960
ST_CS = ST + 2048
B1L = SCR + 28160
KVT = SCR
OEX = SCR + 8192
XT = SCR
B2L = ST + 3328
RING = [SLOT, SLOT + 20480, 2 * SLOT, 2 * SLOT + 20480, 0, 20480]
EXB = RING[5]
WS_FH = 0x160000; WS_FK = 0x168000; WS_FO = 0x170000; WS_FP = 9216; WS_FS = 10240
WS_TS = 0x10000
WS_RP = 0x20000; WS_CP = 0x48000
WS_KP = 0x80000; KP_STRIDE = 6784; WS_KT = 0x178000
ST_N = ST + 3072; ST_C = ST + 3076
WS_P2 = 0x200000; WS_O2 = 0x500000; WS_H2 = 0x800000
WS_TS2 = 0xE00000
WS_SIZE = 0xF00000
OOB = 0x40000000
P_X, P_W, P_WO, P_W1, P_B1, P_W2, P_B2, P_OUT, P_DBG, P_WS = 4, 6, 8, 12, 14, 16, 18, 20, 22, 24
S_S0, S_COL = 26, 27
R_X, R_W, R_W1, R_MID, R_WS, R_PK, R_OUT, R_BI = 28, 32, 36, 40, 44, 48, 52, 56
S_WID, S_RB, S_HG, S_TY, S_TT, S_N, S_XCD, S_IDX, S_R, S_C = 60, 61, 62, 63, 64, 65, 66, 67, 68, 69
S_T0, S_T1, S_T2, S_T3 = 70, 71, 72, 73
S_KC, S_OA, S_OW, S_OM, S_OH = 74, 75, 76, 77, 78
S_NONCE, S_CNT, S_U, S_DELTA, S_IT = 79, 80, 81, 82, 83
S_MASK = 84
S_DEST = 86
S_PIDX = 97
S_TS = 98
S_PKO, S_PKS = 100, 101
S_L = S_R
S_K0, S_K1 = 100, 101
VDIAG = 11

LOG2E = 1.4426950408889634
def f2u(x): return struct.unpack('<I', struct.pack('<f', x))[0]
def lit(x): return hex(f2u(x))

def srd(a, r, p, size):
    a(f"s_mov_b32 {s(r)}, {s(p)}")
    a(f"s_and_b32 {s(r+1)}, {s(p+1)}, 0xffff")
    a(f"s_mov_b32 {s(r+2)}, {hex(size)}")
    a(f"s_mov_b32 {s(r+3)}, 0x20000")

def interleave(a, main, fill, last_frac=0.7, first=0):
    n = len(main); m = len(fill); k = 0
    lim = max(1, int(n * last_frac))
    while k < min(first, m): a(fill[k]); k += 1
    for i, x in enumerate(main):
        a(x)
        tgt = first + math.ceil((m - first) * min(i + 1, lim) / lim) if m > first else m
        while k < tgt: a(fill[k]); k += 1
    while k < m: a(fill[k]); k += 1

def pk(op, d, *src):
    ops = []; lo = []; hi = []
    for x in src:
        if isinstance(x, int): assert x % 2 == 0; ops.append(v(x, 2)); lo.append(0); hi.append(1)
        elif isinstance(x, str): ops.append(x); lo.append(0); hi.append(0)
        elif x[0] == 'b': assert x[1] % 2 == 0; ops.append(v(x[1], 2)); lo.append(0); hi.append(0)
        elif x[0] == 's': assert x[1] % 2 == 0; ops.append(s(x[1], 2)); lo.append(0); hi.append(0)
    assert d % 2 == 0
    return f"v_pk_{op}_f32 {v(d,2)}, {', '.join(ops)} op_sel:[{','.join(map(str,lo))}] op_sel_hi:[{','.join(map(str,hi))}]"

def exec_mask(a, m):
    a(f"s_mov_b32 exec_lo, {hex(m & 0xffffffff)}")
    a(f"s_mov_b32 exec_hi, {hex(m >> 32)}")
DIAGMASK = sum(1 << l for l in range(64) if ((l & 15) >> 2) == (l >> 4))

class Gen:
    def __init__(self, cfg):
        self.cfg = cfg
        self.a = Asm()
        self.uid = 0
    def lab(self, p):
        self.uid += 1; return f"L{p}_{self.uid}"

    def stamp(self, i):
        if not self.cfg.diag: return
        a = self.a
        a("s_waitcnt lgkmcnt(0)")
        a(f"s_mov_b32 m0, {s(S_PIDX)}")
        a("s_nop 0")
        a(f"v_writelane_b32 {v(VDIAG)}, {s(S_TS)}, m0")
        a(f"s_memtime {s(S_TS,2)}")
        a(f"s_mov_b32 {s(S_PIDX)}, {i}")

    def dbgt(self, slot):
        if not self.cfg.dbgt: return
        a = self.a
        L = self.lab('dt')
        a(f"s_cmp_lg_u32 {s(S_WID)}, 3")
        a(f"s_cbranch_scc1 {L}")
        a(f"s_and_b32 {s(S_PIDX)}, s2, 0xdf")
        a(f"s_cmp_lg_u32 {s(S_PIDX)}, 3")
        a(f"s_cbranch_scc1 {L}")
        a(f"s_memrealtime {s(S_TS,2)}")
        a(f"s_mul_i32 {s(S_PIDX)}, {s(S_TY)}, 28")
        a(f"s_add_u32 {s(S_PIDX)}, {s(S_PIDX)}, {4*slot}")
        a("s_waitcnt lgkmcnt(0)")
        a(f"v_mov_b32 v70, {s(S_TS)}")
        a(f"v_mov_b32 v71, {s(S_PIDX)}")
        a(f"global_store_dword v71, v70, {s(P_DBG,2)}")
        a.label(L)

    def entry(self):
        a = self.a; cfg = self.cfg
        a(f"s_cmp_ge_u32 s2, 256")
        a(f"s_cbranch_scc1 Lend")
        a(f"s_load_dwordx16 s[4:19], s[0:1], 0")
        a(f"s_load_dwordx4 s[20:23], s[0:1], 64")
        a(f"s_load_dwordx2 s[24:25], s[0:1], 80")
        if cfg.light:
            a(f"s_memrealtime {s(S_TS,2)}")
            a(f"s_memtime {s(S_MASK,2)}")
        if cfg.diag:
            a(f"s_memrealtime {s(S_TS,2)}")
            a(f"s_mov_b32 {s(S_PIDX)}, 0")
            a(f"v_mov_b32 {v(VDIAG)}, 0")
        a(f"v_lshrrev_b32 v2, 6, v0")
        a(f"v_and_b32 v1, 63, v0")
        a(f"v_readfirstlane_b32 {s(S_WID)}, v2")
        a(f"s_and_b32 {s(S_XCD)}, s2, 7")
        a(f"s_lshr_b32 {s(S_IDX)}, s2, 3")
        def field(dst, xs, xm, xl, is_, im):
            a(f"s_bfe_u32 {s(S_T0)}, {s(S_XCD)}, {hex((xm.bit_length() << 16) | xs)}")
            a(f"s_lshl_b32 {s(S_T0)}, {s(S_T0)}, {xl}")
            a(f"s_bfe_u32 {s(S_T1)}, {s(S_IDX)}, {hex((im.bit_length() << 16) | is_)}")
            a(f"s_add_u32 {s(dst)}, {s(S_T0)}, {s(S_T1)}")
        if cfg.map1 == 'A':
            field(S_RB, 1, 3, 2, 0, 3); field(S_HG, 0, 1, 2, 3, 3)
            a(f"s_bfe_u32 {s(S_TY)}, {s(S_IDX)}, 0x10002")
        elif cfg.map1 == 'B':
            field(S_RB, 0, 1, 3, 0, 7); field(S_HG, 1, 3, 1, 4, 1)
            a(f"s_bfe_u32 {s(S_TY)}, {s(S_IDX)}, 0x10003")
        else:
            field(S_RB, 0, 1, 3, 0, 7); field(S_HG, 1, 3, 1, 3, 1)
            a(f"s_bfe_u32 {s(S_TY)}, {s(S_IDX)}, 0x10004")
        a(f"s_lshl_b32 {s(S_COL)}, {s(S_HG)}, 1")
        a(f"s_add_u32 {s(S_COL)}, {s(S_COL)}, {s(S_TY)}")
        a(f"s_mul_i32 {s(S_S0)}, {s(S_RB)}, {cfg.rot1[1]}")
        a(f"s_mul_i32 {s(S_T0)}, {s(S_COL)}, {cfg.rot1[0]}")
        a(f"s_add_u32 {s(S_S0)}, {s(S_S0)}, {s(S_T0)}")
        a(f"s_mul_i32 {s(S_T0)}, {s(S_S0)}, 6554")
        a(f"s_lshr_b32 {s(S_T0)}, {s(S_T0)}, 16")
        a(f"s_mul_i32 {s(S_T0)}, {s(S_T0)}, 10")
        a(f"s_sub_u32 {s(S_S0)}, {s(S_S0)}, {s(S_T0)}")
        a(f"s_cmp_ge_u32 {s(S_WID)}, 4")
        a(f"s_cbranch_scc1 Lcompute")

    def calc_p2map(self):
        a = self.a
        if self.cfg.map2 == 'A':
            a(f"s_lshr_b32 {s(S_T0)}, {s(S_XCD)}, 1")
            a(f"s_lshl_b32 {s(S_T0)}, {s(S_T0)}, 3")
            a(f"s_and_b32 {s(S_T1)}, {s(S_IDX)}, 7")
            a(f"s_add_u32 {s(S_TT)}, {s(S_T0)}, {s(S_T1)}")
            a(f"s_and_b32 {s(S_T0)}, {s(S_XCD)}, 1")
            a(f"s_lshl_b32 {s(S_T0)}, {s(S_T0)}, 2")
            a(f"s_lshr_b32 {s(S_T1)}, {s(S_IDX)}, 3")
            a(f"s_add_u32 {s(S_N)}, {s(S_T0)}, {s(S_T1)}")
        else:
            a(f"s_lshl_b32 {s(S_T0)}, {s(S_XCD)}, 2")
            a(f"s_and_b32 {s(S_T1)}, {s(S_IDX)}, 3")
            a(f"s_add_u32 {s(S_TT)}, {s(S_T0)}, {s(S_T1)}")
            a(f"s_lshr_b32 {s(S_N)}, {s(S_IDX)}, 2")
    def calc_u(self):
        a = self.a
        self.calc_p2map()
        a(f"s_add_u32 {s(S_U)}, {s(S_HG)}, 128")
        a(f"s_cmp_lt_u32 {s(S_RB)}, 4")
        a(f"s_cselect_b32 {s(S_U)}, {s(S_U)}, 255")
        a(f"s_lshl_b32 {s(S_T0)}, {s(S_HG)}, 4")
        a(f"s_add_u32 {s(S_T0)}, {s(S_T0)}, {s(S_RB)}")
        a(f"s_cmp_lg_u32 {s(S_TY)}, 0")
        a(f"s_cselect_b32 {s(S_U)}, {s(S_T0)}, {s(S_U)}")

    def poll_issue(self, vdst, voff, n=1):
        self.a(f"buffer_load_dword{'x2' if n == 2 else ''} {v(vdst, n)}, {v(voff)}, {s(R_WS,4)}, 0 offen sc1")
    def poll_check(self, vdst, voff, nlanes, n=1):
        a = self.a
        L = self.lab('poll'); Ld = self.lab('polld')
        mask = (1 << nlanes) - 1
        a(f"s_mov_b32 {s(S_CNT)}, 0")
        a.label(L)
        a(f"v_cmp_ne_u32 vcc, {s(S_NONCE)}, {v(vdst)}")
        if n == 2:
            a(f"v_cmp_ne_u32 {s(S_MASK,2)}, {s(S_NONCE)}, {v(vdst+1)}")
            a(f"s_or_b64 vcc, vcc, {s(S_MASK,2)}")
        if nlanes < 32:
            a(f"s_and_b32 {s(S_T0)}, vcc_lo, {hex(mask)}")
        else:
            a(f"s_and_b32 {s(S_T0)}, vcc_hi, {hex(mask >> 32)}")
            a(f"s_or_b32 {s(S_T0)}, {s(S_T0)}, vcc_lo")
        a(f"s_cbranch_scc0 {Ld}")
        a(f"s_add_u32 {s(S_CNT)}, {s(S_CNT)}, 1")
        a(f"s_cmp_gt_u32 {s(S_CNT)}, 0x40000")
        a(f"s_cbranch_scc1 {Ld}")
        if self.cfg.psl: a(f"s_sleep {self.cfg.psl}")
        self.poll_issue(vdst, voff, n)
        a("s_waitcnt vmcnt(0)")
        a(f"s_branch {L}")
        a.label(Ld)
    def poll(self, vdst, voff, nlanes, n=1):
        self.poll_issue(vdst, voff, n); self.a("s_waitcnt vmcnt(0)"); self.poll_check(vdst, voff, nlanes, n)
    def only_l(self, l=0):
        L = self.lab('l0')
        self.a(f"s_cmp_lg_u32 {s(S_L)}, {l}")
        self.a(f"s_cbranch_scc1 {L}")
        return L
    def flag_store(self, voff):
        self.a(f"buffer_store_dword v41, {v(voff)}, {s(R_WS,4)}, 0 offen sc1")

    def loader(self):
        a = self.a; cfg = self.cfg
        VO = 12
        V_P2 = 23
        V_FH, V_F2, V_FP, V_FS, V_QK, V_QP, V_QH, V_QO, V_QS = 24, 25, 26, 27, 28, 29, 30, 31, 32
        V_PK = 33
        nb0 = a.nbar
        a(f"s_mov_b32 {s(S_L)}, {s(S_WID)}")
        a(f"s_mov_b32 {s(S_KC)}, {s(S_S0)}")
        if cfg.prio: a(f"s_setprio {cfg.prio}")
        a(f"v_lshrrev_b32 v2, 3, v1")
        a(f"v_lshrrev_b32 v3, 4, v1")
        a(f"v_and_b32 v4, 7, v1")
        a(f"v_xor_b32 v5, v4, v3")
        a(f"s_lshl_b32 {s(S_T0)}, {s(S_RB)}, 2")
        a(f"s_add_u32 {s(S_T0)}, {s(S_T0)}, {s(S_L)}")
        a(f"s_mul_i32 {s(S_T0)}, {s(S_T0)}, {32*1280}")
        a(f"v_mul_u32_u24 v6, 1280, v2")
        a(f"v_lshl_add_u32 v6, v5, 4, v6")
        a(f"v_add_u32 {v(VO)}, {s(S_T0)}, v6")
        a(f"v_xor_b32 v7, 64, {v(VO)}")
        a(f"v_add_u32 {v(VO+1)}, 10240, v7")
        a(f"v_add_u32 {v(VO+2)}, 20480, {v(VO)}")
        a(f"v_add_u32 {v(VO+3)}, 30720, v7")
        a(f"s_lshl_b32 {s(S_DEST)}, {s(S_L)}, 12")
        for n in range(1, 4): a(f"s_add_u32 {s(S_DEST+n)}, {s(S_DEST)}, {1024*n}")
        a(f"s_lshl_b32 {s(S_OA)}, {s(S_KC)}, 7")
        a("s_waitcnt lgkmcnt(0)")
        if cfg.light: a(f"s_mov_b32 s3, {s(S_MASK)}")
        self.stamp(1)
        self.dbgt(2)
        srd(a, R_X, P_X, 2048 * 1280)
        srds = [R_X]*4 + [R_W]*3 + [R_MID]*2 + [R_W1]*2
        soffs = [S_OA]*4 + [S_OW]*3 + [S_OM]*2 + [S_OH]*2
        def dma(k, n):
            a(f"s_add_u32 m0, {s(S_DEST+n)}, {(k % 3) * SLOT}")
            a(f"buffer_load_dwordx4 {v(VO+n if n < cfg.xd or k < 2 else 5)}, {s(srds[n],4)}, {s(soffs[n])} offen lds")
        for n in range(4): dma(0, n)
        srd(a, R_W, P_W, 640 * 3840)
        srd(a, R_W1, P_W1, 640 * 3072)
        def wrow(dst, i, valid_check):
            a(f"v_add_u32 v6, {s(S_T1)}, v1")
            if i: a(f"v_add_u32 v6, {64*i}, v6")
            a(f"v_mul_u32_u24 v7, 6554, v6")
            a(f"v_lshrrev_b32 v7, 16, v7")
            a(f"v_mad_i32_i24 v8, v7, -10, v6")
            a(f"v_lshrrev_b32 v9, 1, v7")
            a(f"v_xor_b32 v9, v9, v7")
            a(f"v_and_b32 v9, 4, v9")
            a(f"v_mul_u32_u24 v9, 3, v9")
            a(f"v_xor_b32 v7, v7, v9")
            a(f"v_mul_u32_u24 v7, 3840, v7")
            a(f"v_lshl_add_u32 v7, v8, 4, v7")
            a(f"v_add_u32 {v(dst)}, {s(S_T2)}, v7")
            if valid_check:
                a(f"v_cmp_gt_u32 vcc, 640, v6")
                a(f"v_mov_b32 v9, {hex(OOB)}")
                a(f"v_cndmask_b32 {v(dst)}, v9, {v(dst)}, vcc")
        a(f"s_mul_i32 {s(S_OW)}, {s(S_KC)}, {64*3840}")
        a(f"s_mul_i32 {s(S_OH)}, {s(S_KC)}, {64*3072}")
        a(f"s_mul_i32 {s(S_T3)}, {s(S_HG)}, 384")
        a(f"s_cmp_lg_u32 {s(S_TY)}, 0")
        a(f"s_cbranch_scc1 Lld_setq")
        for i in range(3): a(f"s_mov_b32 {s(R_MID+i)}, {s(R_W+i)}")
        a(f"s_mov_b32 {s(R_MID+3)}, 0x20000")
        a(f"s_mov_b32 {s(S_OM)}, {s(S_OW)}")
        a(f"v_lshrrev_b32 v6, 1, v4")
        a(f"v_xor_b32 v6, v6, v3")
        a(f"v_and_b32 v7, 1, v4")
        a(f"v_lshl_add_u32 v6, v6, 1, v7")
        a(f"v_and_b32 v7, 4, v2")
        a(f"v_add_u32 v7, v7, v2")
        a(f"v_mul_u32_u24 v7, 3072, v7")
        a(f"v_lshl_add_u32 v6, v6, 4, v7")
        a(f"s_mul_i32 {s(S_T0)}, {s(S_L)}, {16*3072}")
        a(f"s_add_u32 {s(S_T0)}, {s(S_T0)}, {s(S_T3)}")
        a(f"v_add_u32 {v(VO+9)}, {s(S_T0)}, v6")
        a(f"v_add_u32 {v(VO+10)}, {4*3072}, {v(VO+9)}")
        a(f"s_lshl_b32 {s(S_T0)}, {s(S_L)}, 11")
        a(f"s_add_u32 {s(S_DEST+9)}, {s(S_T0)}, 36864")
        a(f"s_add_u32 {s(S_DEST+10)}, {s(S_T0)}, {36864+1024}")
        dma(0, 9); dma(0, 10)
        a(f"s_and_b32 {s(S_T1)}, {s(S_L)}, 1")
        a(f"s_mul_i32 {s(S_T1)}, {s(S_T1)}, 320")
        a(f"s_lshr_b32 {s(S_T2)}, {s(S_L)}, 1")
        a(f"s_mul_i32 {s(S_T2)}, {s(S_T2)}, 1280")
        a(f"s_mul_i32 {s(S_T0)}, {s(S_HG)}, 160")
        a(f"s_add_u32 {s(S_T2)}, {s(S_T2)}, {s(S_T0)}")
        a(f"s_add_u32 {s(S_T2)}, {s(S_T2)}, 1280")
        a(f"s_mul_i32 {s(S_T0)}, {s(S_L)}, 5120")
        for i in range(5):
            a(f"s_add_u32 {s(S_DEST+4+i)}, {s(S_T0)}, {16384 + 1024*i}")
            wrow(VO + 4 + i, i, False)
            dma(0, 4 + i)
        a(f"s_branch Lld_setdone")
        a.label('Lld_setq')
        for i in range(3): a(f"s_mov_b32 {s(R_MID+i)}, {s(R_W1+i)}")
        a(f"s_mov_b32 {s(R_MID+3)}, 0x20000")
        a(f"s_mov_b32 {s(S_OM)}, {s(S_OH)}")
        a(f"s_add_u32 {s(S_T3)}, {s(S_T3)}, 128")
        a(f"v_and_b32 v8, 15, v1")
        a(f"v_lshrrev_b32 v6, 1, v8")
        a(f"v_xor_b32 v6, v6, v3")
        a(f"v_and_b32 v7, 1, v8")
        a(f"v_lshl_add_u32 v6, v6, 1, v7")
        a(f"v_mul_u32_u24 v7, 3072, v3")
        a(f"v_lshl_add_u32 v6, v6, 4, v7")
        a(f"v_xor_b32 v7, 128, v6")
        a(f"s_mul_i32 {s(S_T0)}, {s(S_L)}, {16*3072}")
        a(f"s_add_u32 {s(S_T0)}, {s(S_T0)}, {s(S_T3)}")
        a(f"v_add_u32 {v(VO+7)}, {s(S_T0)}, v6")
        a(f"v_add_u32 v7, {s(S_T0)}, v7")
        a(f"v_add_u32 {v(VO+8)}, {8*3072}, v7")
        a(f"v_add_u32 {v(VO+9)}, {4*3072}, {v(VO+7)}")
        a(f"v_add_u32 {v(VO+10)}, {12*3072}, v7")
        a(f"s_lshl_b32 {s(S_T0)}, {s(S_L)}, 12")
        for i in range(4):
            a(f"s_add_u32 {s(S_DEST+7+i)}, {s(S_T0)}, {26624 + 1024*i}")
            dma(0, 7 + i)
        a(f"s_mul_i32 {s(S_T1)}, {s(S_L)}, 192")
        a(f"s_mul_i32 {s(S_T2)}, {s(S_HG)}, 160")
        a(f"s_mul_i32 {s(S_T0)}, {s(S_L)}, 3072")
        for i in range(3):
            a(f"s_add_u32 {s(S_DEST+4+i)}, {s(S_T0)}, {16384 + 1024*i}")
            if i:
                a(f"s_cmp_eq_u32 {s(S_L)}, 3")
                a(f"s_cselect_b32 {s(S_DEST+4+i)}, {43008 + 1024*(i-1)}, {s(S_DEST+4+i)}")
            wrow(VO + 4 + i, i, i > 0)
            dma(0, 4 + i)
        a.label('Lld_setdone')
        self.stamp(40)
        def advance():
            a(f"s_add_u32 {s(S_KC)}, {s(S_KC)}, 1")
            a(f"s_cmp_eq_u32 {s(S_KC)}, 10")
            a(f"s_cselect_b32 {s(S_KC)}, 0, {s(S_KC)}")
            a(f"s_lshl_b32 {s(S_OA)}, {s(S_KC)}, 7")
            a(f"s_mul_i32 {s(S_OW)}, {s(S_KC)}, {64*3840}")
            a(f"s_mul_i32 {s(S_OH)}, {s(S_KC)}, {64*3072}")
            a(f"s_cmp_lg_u32 {s(S_TY)}, 0")
            a(f"s_cselect_b32 {s(S_OM)}, {s(S_OH)}, {s(S_OW)}")
        n1 = cfg.n1

        def idle_setup():
            srd(a, R_WS, P_WS, WS_SIZE)
            self.calc_u()
            a("v_mov_b32 v42, 0")
            a("v_mov_b32 v40, 0")
            L = self.lab('nc')
            a(f"s_or_b32 {s(S_T0)}, {s(S_L)}, s2")
            a(f"s_cbranch_scc1 {L}")
            a(f"s_load_dword {s(S_T0)}, {s(P_WS,2)}, 0")
            a("s_waitcnt lgkmcnt(0)")
            a(f"s_mul_i32 {s(S_T0)}, {s(S_T0)}, 0x9E3779B1")
            a(f"s_add_u32 {s(S_T0)}, {s(S_T0)}, 0x7F4A7C15")
            a(f"s_cmp_eq_u32 {s(S_T0)}, 0")
            a(f"s_cselect_b32 {s(S_T0)}, 1, {s(S_T0)}")
            a(f"v_mov_b32 v43, {s(S_T0)}")
            a(f"global_store_dword v42, v43, {s(P_DBG,2)} sc1")
            a(f"global_store_dword v42, v43, {s(P_WS,2)} sc1")
            a.label(L)
            a(f"v_add_u32 v0, 512, v0")
            if cfg.xd < 11: a(f"v_mov_b32 v5, {hex(OOB)}")
            a(f"v_lshlrev_b32 v39, 4, v1")
            a(f"v_lshl_add_u32 v10, v1, 2, {s(S_T3)}")
            srd(a, R_BI, P_B1, 3072)
            a(f"v_mov_b32 v6, {hex(OOB)}")
            a(f"v_cmp_eq_u32 vcc, 0, v1")
            fs = cfg.fs; gs = max(7, fs + 4)
            a(f"v_min_u32 v9, 15, v1")
            assert fs == 7
            a(f"v_cmp_gt_u32 {s(S_MASK,2)}, 32, v1")
            a(f"s_lshl_b32 {s(S_T0)}, {s(S_RB)}, {gs}")
            a(f"s_lshl_b32 {s(S_T1)}, {s(S_COL)}, {fs}")
            a(f"s_add_u32 {s(S_T1)}, {s(S_T1)}, {s(S_T0)}")
            a(f"s_add_u32 {s(S_T1)}, {s(S_T1)}, {WS_FH}")
            a(f"v_lshl_add_u32 v7, v1, 2, {s(S_T1)}")
            a(f"v_cndmask_b32 {v(V_FH)}, v6, v7, {s(S_MASK,2)}")
            a(f"s_lshl_b32 {s(S_T1)}, {s(S_HG)}, {fs}")
            a(f"s_add_u32 {s(S_T3)}, {s(S_T0)}, {s(S_T1)}")
            a(f"s_add_u32 {s(S_T3)}, {s(S_T3)}, {WS_FO}")
            a(f"s_cmp_lg_u32 {s(S_TY)}, 0")
            a(f"s_cselect_b32 {s(S_T3)}, {s(S_T3)}, {hex(OOB)}")
            a(f"v_lshl_add_u32 v7, v1, 2, {s(S_T3)}")
            a(f"v_cndmask_b32 {v(V_F2)}, v6, v7, {s(S_MASK,2)}")
            a(f"s_lshl_b32 {s(S_T0)}, {s(S_RB)}, 7")
            a(f"s_and_b32 {s(S_T1)}, {s(S_U)}, 1")
            a(f"s_lshl_b32 {s(S_T1)}, {s(S_T1)}, 9")
            a(f"s_lshr_b32 {s(S_T2)}, {s(S_U)}, 1")
            a(f"s_lshl_b32 {s(S_T2)}, {s(S_T2)}, 2")
            a(f"s_add_u32 {s(S_T1)}, {s(S_T1)}, {s(S_T2)}")
            a(f"s_lshl_b32 {s(S_T2)}, {s(S_RB)}, 4")
            a(f"s_cmp_lg_u32 {s(S_TY)}, 0")
            a(f"s_cselect_b32 {s(S_T2)}, 0, {s(S_T2)}")
            a(f"s_add_u32 {s(S_T1)}, {s(S_T1)}, {s(S_T2)}")
            a(f"s_add_u32 {s(S_T1)}, {s(S_T1)}, {WS_FP}")
            a(f"v_mov_b32 v7, {s(S_T1)}")
            a(f"v_cndmask_b32 {v(V_FP)}, v6, v7, vcc")
            a(f"s_add_u32 {s(S_T0)}, {s(S_T0)}, {WS_FS}")
            a(f"s_lshl_b32 {s(S_T1)}, {s(S_COL)}, 7")
            a(f"s_add_u32 {s(S_T1)}, {s(S_T1)}, {WS_FS + 2048}")
            a(f"s_lshl_b32 {s(S_T2)}, {s(S_S0)}, 2")
            a(f"s_add_u32 {s(S_T3)}, {s(S_T0)}, {s(S_T2)}")
            a(f"s_cmp_lt_u32 {s(S_COL)}, 10")
            a(f"s_cselect_b32 {s(S_T3)}, {s(S_T3)}, {hex(OOB)}")
            a(f"v_mov_b32 v7, {s(S_T3)}")
            a(f"v_cndmask_b32 {v(V_FS)}, v6, v7, vcc")
            a(f"s_add_u32 {s(S_T3)}, {s(S_T1)}, {s(S_T2)}")
            a(f"s_cmp_lt_u32 {s(S_RB)}, 10")
            a(f"s_cselect_b32 {s(S_T3)}, {s(S_T3)}, {hex(OOB)}")
            a(f"v_writelane_b32 {v(V_FS)}, {s(S_T3)}, 1")
            a(f"s_sub_u32 {s(S_T1)}, {s(S_T1)}, 40")
            a(f"v_lshl_add_u32 v7, v1, 2, {s(S_T0)}")
            a(f"v_lshl_add_u32 v8, v1, 2, {s(S_T1)}")
            a(f"v_cmp_gt_u32 vcc, 10, v1")
            a(f"v_cndmask_b32 {v(V_QS)}, v8, v7, vcc")
            a(f"s_lshr_b32 {s(S_T1)}, {s(S_N)}, 2")
            a(f"s_lshl_b32 {s(S_T1)}, {s(S_T1)}, 9")
            a(f"s_add_u32 {s(S_T1)}, {s(S_T1)}, {WS_FP}")
            a(f"v_lshl_add_u32 {v(V_QP)}, v1, 3, {s(S_T1)}")
            a(f"s_and_b32 {s(S_T1)}, {s(S_N)}, 3")
            a(f"s_lshl_b32 {s(S_T1)}, {s(S_T1)}, 4")
            a(f"v_add_u32 v7, {s(S_T1)}, {v(V_QP)}")
            a(f"v_cndmask_b32 {v(V_QP)}, v7, {v(V_QP)}, {s(S_MASK,2)}")
            a(f"s_lshr_b32 {s(S_T1)}, {s(S_TT)}, 1")
            a(f"s_lshl_b32 {s(S_T1)}, {s(S_T1)}, {gs}")
            a(f"s_add_u32 {s(S_T1)}, {s(S_T1)}, {WS_FH}")
            a(f"v_min_u32 v9, 7, v1")
            a(f"v_lshl_add_u32 {v(V_QK)}, v9, {fs + 1}, {s(S_T1)}")
            a(f"v_add_u32 {v(V_QH)}, {1 << fs}, {v(V_QK)}")
            a(f"s_add_u32 {s(S_T1)}, {s(S_T1)}, {WS_FO - WS_FH}")
            a(f"v_lshl_add_u32 {v(V_QO)}, v9, {fs}, {s(S_T1)}")
            a(f"v_and_b32 v6, 15, v1")
            a(f"s_lshl_b32 {s(S_T0)}, {s(S_L)}, 5")
            a(f"v_add_u32 v6, {s(S_T0)}, v6")
            a(f"v_mul_u32_u24 v6, 160, v6")
            a(f"v_lshl_add_u32 v6, v3, 3, v6")
            a(f"v_add_u32 v38, {OEX}, v6")
            a(f"s_lshl_b32 {s(S_T0)}, {s(S_RB)}, 3")
            a(f"s_lshl_b32 {s(S_T1)}, {s(S_L)}, 1")
            a(f"s_add_u32 {s(S_T0)}, {s(S_T0)}, {s(S_T1)}")
            a(f"s_lshl_b32 {s(S_T0)}, {s(S_T0)}, 3")
            a(f"s_add_u32 {s(S_T0)}, {s(S_T0)}, {s(S_HG)}")
            a(f"s_mul_i32 {s(S_T0)}, {s(S_T0)}, 2560")
            a(f"s_add_u32 {s(S_PKS)}, {s(S_T0)}, {WS_O2}")
        def if_pack():
            L = self.lab('pk')
            a(f"s_cmp_gt_u32 {s(S_U)}, 135")
            a(f"s_cbranch_scc1 {L}")
            return L
        def p2_setup():
            a(f"s_mul_i32 {s(S_T0)}, {s(S_N)}, {68*5120}")
            a(f"s_and_b32 {s(S_T1)}, {s(S_L)}, 1")
            a(f"s_mul_i32 {s(S_T1)}, {s(S_T1)}, 5120")
            a(f"s_add_u32 {s(S_T0)}, {s(S_T0)}, {s(S_T1)}")
            a(f"s_add_u32 {s(S_T0)}, {s(S_T0)}, {WS_P2}")
            a(f"v_add_u32 {v(V_P2)}, {s(S_T0)}, v39")
            a(f"s_mul_i32 {s(S_DEST)}, {s(S_L)}, 5120")
            a(f"s_lshr_b32 {s(S_T1)}, {s(S_L)}, 1")
            a(f"s_mul_i32 {s(S_OM)}, {s(S_T1)}, {24*5120}")
            a(f"s_mul_i32 {s(S_OH)}, {s(S_T1)}, {10*5120}")
            a(f"s_add_u32 {s(S_OH)}, {s(S_OH)}, {48*5120}")
            self.rot2(S_KC)
        def p2_off(i):
            if i < 12:
                self.chunk_id(S_OA, S_T0, i)
                a(f"s_mul_i32 {s(S_OA)}, {s(S_OA)}, 10240")
                a(f"s_add_u32 {s(S_OA)}, {s(S_OA)}, {s(S_OM)}")
            else:
                a(f"s_add_u32 {s(S_OA)}, {s(S_OH)}, {(i-12)*10240}")
        def p2_chunk(i):
            p2_off(i)
            a(f"s_add_u32 m0, {s(S_DEST)}, {RING[i % 6]}")
            for j in range(4):
                a(f"buffer_load_dwordx4 {v(V_P2)}, {s(R_WS,4)}, {s(S_OA)} offen offset:{1024*j} {cfg.bsc} lds")
            a(f"s_add_u32 m0, {s(S_DEST)}, {RING[i % 6] + 4096}")
            a(f"s_add_u32 {s(S_OA)}, {s(S_OA)}, 4096")
            a(f"buffer_load_dwordx4 {v(V_P2)}, {s(R_WS,4)}, {s(S_OA)} offen {cfg.bsc} lds")
        def sreg(i): return 48 + 20 * cfg.staged.index(i)
        def p2_stage(i):
            p2_off(i)
            for j in range(4):
                a(f"buffer_load_dwordx4 {v(sreg(i)+4*j,4)}, {v(V_P2)}, {s(R_WS,4)}, {s(S_OA)} offen offset:{1024*j} {cfg.bsc}")
            a(f"s_add_u32 {s(S_OA)}, {s(S_OA)}, 4096")
            a(f"buffer_load_dwordx4 {v(sreg(i)+16,4)}, {v(V_P2)}, {s(R_WS,4)}, {s(S_OA)} offen {cfg.bsc}")
        def p2_put(i):
            base = RING[i % 6]
            for j in range(5):
                a(f"ds_write_b128 {v(2 + base // SLOT)}, {v(sreg(i)+4*j,4)} offset:{base % SLOT + 1024*j}")
        for k in range(10):
            if k + 1 < 10:
                advance()
                for n in range(n1): dma(k + 1, n)
                wait = n1
            else:
                wait = 5 * cfg.pfs[0]
            if k == 0:
                self.stamp(41); idle_setup(); self.stamp(42)
            a(f"s_waitcnt vmcnt({wait})")
            if k == 3:
                L = self.only_l(0)
                a(f"v_readfirstlane_b32 {s(S_NONCE)}, v40")
                Lp = self.lab('np'); Lq = self.lab('nq')
                a(f"s_mov_b32 {s(S_CNT)}, 0")
                a.label(Lp)
                a(f"s_cmp_lg_u32 {s(S_NONCE)}, 0")
                a(f"s_cbranch_scc1 {Lq}")
                a(f"s_add_u32 {s(S_CNT)}, {s(S_CNT)}, 1")
                a(f"s_cmp_gt_u32 {s(S_CNT)}, 0x40000")
                a(f"s_cbranch_scc1 {Lq}")
                a(f"global_load_dword v40, v42, {s(P_DBG,2)} sc1")
                a("s_waitcnt vmcnt(0)")
                a(f"v_readfirstlane_b32 {s(S_NONCE)}, v40")
                a("s_nop 1")
                a(f"s_branch {Lp}")
                a.label(Lq)
                a(f"v_mov_b32 v41, {s(S_NONCE)}")
                a.label(L)
            if k == 7:
                L = self.only_l(0); self.poll_check(44, V_QS, 20); a.label(L)
            if k == 8:
                L = self.only_l(0); self.poll_check(46, V_QP, 34, 2); a.label(L)
            if k == 9: a("s_waitcnt lgkmcnt(0)")
            a("s_barrier")
            self.stamp(2 + k)
            if k == 0: self.dbgt(3)
            if k == 4: self.dbgt(4)
            if k == 1 and cfg.prew:
                L = self.only_l(0)
                a(f"buffer_store_dword v42, {v(V_FH)}, {s(R_WS,4)}, 0 offen sc1")
                a(f"buffer_store_dword v42, {v(V_F2)}, {s(R_WS,4)}, 0 offen sc1")
                a.label(L)
            if k == 2:
                L = self.only_l(0)
                a(f"global_load_dword v40, v42, {s(P_DBG,2)} sc1")
                a.label(L)
            if k == 3:
                L = self.only_l(0); self.flag_store(V_FS); a.label(L)
            if k == 5:
                L = if_pack(); L2 = self.only_l(0); self.flag_store(V_FP); a.label(L2); a.label(L)
            if k == 6:
                L = self.only_l(0); self.poll_issue(44, V_QS); a.label(L)
            if k == 7:
                L = self.only_l(0); self.poll_issue(46, V_QP, 2); a.label(L)
            if k == 7:
                a(f"s_cmp_lt_u32 {s(S_L)}, 2")
                a(f"s_cselect_b32 {s(S_T0)}, {s(S_RB)}, {s(S_COL)}")
                a(f"s_mov_b32 {s(S_T1)}, {WS_CP}")
                a(f"s_cselect_b32 {s(S_T1)}, {WS_RP}, {s(S_T1)}")
                a(f"s_mul_i32 {s(S_T0)}, {s(S_T0)}, 10240")
                a(f"s_add_u32 {s(S_T0)}, {s(S_T0)}, {s(S_T1)}")
                a(f"s_and_b32 {s(S_T1)}, {s(S_L)}, 1")
                a(f"s_mul_i32 {s(S_T1)}, {s(S_T1)}, 5120")
                a(f"s_add_u32 {s(S_T0)}, {s(S_T0)}, {s(S_T1)}")
                a(f"s_mul_i32 {s(S_T2)}, {s(S_L)}, 5120")
                a(f"s_add_u32 m0, {s(S_T2)}, {SCR}")
                for j in range(4):
                    a(f"buffer_load_dwordx4 v39, {s(R_WS,4)}, {s(S_T0)} offen offset:{1024*j} sc1 lds")
                a(f"s_add_u32 m0, {s(S_T2)}, {SCR + 4096}")
                a(f"s_add_u32 {s(S_T0)}, {s(S_T0)}, 4096")
                a(f"buffer_load_dwordx4 v39, {s(R_WS,4)}, {s(S_T0)} offen sc1 lds")
            if k == 8:
                a(f"s_lshr_b32 {s(S_T0)}, {s(S_L)}, 1")
                a(f"s_mul_i32 {s(S_T0)}, {s(S_T0)}, 10240")
                a(f"s_and_b32 {s(S_T1)}, {s(S_L)}, 1")
                a(f"s_lshl_b32 {s(S_T1)}, {s(S_T1)}, 9")
                a(f"s_add_u32 {s(S_T0)}, {s(S_T0)}, {s(S_T1)}")
                a(f"s_add_u32 {s(S_T0)}, {s(S_T0)}, {SCR}")
                a(f"v_lshl_add_u32 v6, v1, 3, {s(S_T0)}")
                for ch in range(10): a(f"ds_read_b64 {v(44+2*ch,2)}, v6 offset:{1024*ch}")
            if k + 1 < 10:
                for n in range(n1, 11): dma(k + 1, n)
            if k == 0:
                L = self.only_l(1)
                a(f"s_mov_b32 m0, {B1L}")
                a(f"buffer_load_dword v10, {s(R_BI,4)}, 0 offen lds")
                a.label(L)
            if k == 8:
                a("s_waitcnt lgkmcnt(0)")
                for ch in range(1, 10):
                    a(f"v_add_f32 v44, v44, {v(44+2*ch)}")
                    a(f"v_add_f32 v45, v45, {v(45+2*ch)}")
                a(f"s_and_b32 {s(S_T1)}, {s(S_L)}, 1")
                a(f"s_lshl_b32 {s(S_T1)}, {s(S_T1)}, 6")
                a(f"v_add_u32 v6, {s(S_T1)}, v1")
                Lc = self.lab('stc'); Ld = self.lab('std')
                a(f"s_cmp_ge_u32 {s(S_L)}, 2")
                a(f"s_cbranch_scc1 {Lc}")
                a(f"v_lshlrev_b32 v6, 2, v6")
                a(f"v_add_u32 v6, {ST}, v6")
                a(f"v_mul_f32 v46, {lit(1/640)}, v44")
                a(f"v_mul_f32 v47, v46, v46")
                a(f"v_mov_b32 v48, {lit(1/640)}")
                a(f"v_fma_f32 v45, v45, v48, -v47")
                a(f"v_max_f32 v45, 0, v45")
                a(f"v_add_f32 v47, {lit(1e-5)}, v45")
                a(f"v_rsq_f32 v48, v47")
                a(f"v_mul_f32 v49, v48, v48")
                a(f"v_fmaak_f32 v49, v49, v45, {lit(1e-5)}")
                a(f"v_rsq_f32 v49, v49")
                a(f"v_mul_f32 v50, v48, v49")
                a(f"v_mul_f32_e64 v51, -v46, v48")
                a(f"v_mul_f32_e64 v52, -v46, v50")
                a(f"ds_write_b32 v6, v48")
                a(f"ds_write_b32 v6, v51 offset:512")
                a(f"ds_write_b32 v6, v50 offset:1024")
                a(f"ds_write_b32 v6, v52 offset:1536")
                a(f"s_branch {Ld}")
                a.label(Lc)
                a(f"v_lshlrev_b32 v6, 3, v6")
                a(f"v_add_u32 v6, {ST_CS}, v6")
                a(f"ds_write_b64 v6, v[44:45]")
                a.label(Ld)
                L = self.only_l(0)
                a(f"v_mov_b32 v6, {ST_N}")
                a(f"ds_write2_b32 v6, v41, v42 offset1:1")
                a.label(L)
                srd(a, R_BI, P_B2, 1280)
                L = self.only_l(3)
                a(f"s_mul_i32 {s(S_T1)}, {s(S_N)}, 160")
                a(f"v_lshlrev_b32 v6, 2, v1")
                a(f"s_mov_b32 m0, {B2L}")
                a(f"buffer_load_dword v6, {s(R_BI,4)}, {s(S_T1)} offen lds")
                a.label(L)
                p2_setup()
                for c in range(cfg.pfs[0]): p2_chunk(c)
            if k == 9:
                a(f"s_lshl_b32 {s(S_T0)}, {s(S_L)}, 11")
                a(f"s_add_u32 {s(S_T0)}, {s(S_T0)}, {KVT}")
                a(f"v_add_u32 v6, {s(S_T0)}, v39")
                for e in range(4): a(f"v_mov_b32 {v(44+e)}, 0")
                a(f"ds_write_b128 v6, v[44:47]")
                a(f"ds_write_b128 v6, v[44:47] offset:1024")
                for c in range(cfg.pfs[0], sum(cfg.pfs)): p2_chunk(c)
        a("s_waitcnt lgkmcnt(0)")
        a("s_barrier")
        self.stamp(12); self.dbgt(5)
        a(f"s_setprio {cfg.pl}")
        for c in range(sum(cfg.pfs), 6): p2_chunk(c)
        if cfg.wopf:
            nsh = 8 if cfg.map2 == 'A' else 4
            per = 102400 // nsh // 4
            a(f"s_and_b32 {s(S_T0)}, {s(S_IDX)}, {nsh - 1}")
            a(f"s_lshl_b32 {s(S_T0)}, {s(S_T0)}, 2")
            a(f"s_add_u32 {s(S_T0)}, {s(S_T0)}, {s(S_L)}")
            a(f"s_mul_i32 {s(S_T0)}, {s(S_T0)}, {per}")
            a(f"s_mul_i32 {s(S_T1)}, {s(S_N)}, {68*5120}")
            a(f"s_add_u32 {s(S_T0)}, {s(S_T0)}, {s(S_T1)}")
            a(f"s_add_u32 {s(S_T0)}, {s(S_T0)}, {WS_P2 + 48*5120}")
            a(f"v_min_u32 v6, {per // 128 - 1}, v1")
            a(f"v_lshlrev_b32 v6, 7, v6")
            a(f"buffer_load_dword v94, v6, {s(R_WS,4)}, {s(S_T0)} offen sc1")
        a(f"v_mov_b32 v6, {ST_N}")
        a(f"ds_read_b32 v41, v6")
        a(f"s_cmp_lg_u32 {s(S_TY)}, 0")
        a(f"s_cbranch_scc1 Lld_eq")
        self.l1_setup()
        a("s_barrier")
        self.stamp(14)
        a("s_branch Lld_e4")
        a.label('Lld_eq')
        for n in range(2): self.kvt_addr(n)
        a(f"s_mul_i32 {s(S_T0)}, {s(S_HG)}, {KP_STRIDE}")
        a(f"s_add_u32 {s(S_PKO)}, {s(S_T0)}, {WS_KT}")
        a.label('Lld_e4')
        L2 = self.lab('c8'); Lr = self.lab('c8r'); Lg = self.lab('c8g')
        a(f"s_cmp_ge_u32 {s(S_L)}, 2")
        a(f"s_cbranch_scc1 {L2}")
        a(f"v_mov_b32 v6, {ST_C}")
        a(f"s_mov_b32 {s(S_CNT)}, 0")
        a.label(Lr)
        a(f"ds_read_b32 v7, v6")
        a("s_waitcnt lgkmcnt(0)")
        a(f"v_readfirstlane_b32 {s(S_T0)}, v7")
        a(f"s_cmp_ge_u32 {s(S_T0)}, 8")
        a(f"s_cbranch_scc1 {Lg}")
        a("s_sleep 1")
        a(f"s_add_u32 {s(S_CNT)}, {s(S_CNT)}, 1")
        a(f"s_cmp_lt_u32 {s(S_CNT)}, 0x400000")
        a(f"s_cbranch_scc1 {Lr}")
        a.label(Lg)
        self.stamp(16)
        L = self.only_l(0)
        Lk = self.lab('fk')
        a(f"s_cmp_eq_u32 {s(S_TY)}, 0")
        a(f"s_cbranch_scc1 {Lk}")
        self.flag_store(V_FH); a("s_waitcnt vmcnt(0)")
        a.label(Lk)
        self.poll(44, V_QH, 8); a.label(L)
        a.label(L2)
        a("s_waitcnt lgkmcnt(0)")
        self.l1_run()
        a("s_barrier")
        self.stamp(19)
        self.nb_ld_kv = a.nbar - nb0
        self.nb_ld_q = a.nbar - nb0 - 1
        nb3 = a.nbar
        pend = []
        ka = cfg.ka
        def if_q():
            L = self.lab('iq')
            a(f"s_cmp_eq_u32 {s(S_TY)}, 0")
            a(f"s_cbranch_scc1 {L}")
            return L
        def kt_loads():
            for n in range(2): a(f"buffer_load_dwordx4 {v(48+4*n,4)}, {v(60+n)}, {s(R_WS,4)}, {s(S_PKO)} offen sc1")
        for i in range(13):
            if i in (ka + 3, 12):
                a("s_waitcnt vmcnt(0)"); pend.clear()
            elif i + 1 in pend:
                k = pend.index(i + 1)
                a(f"s_waitcnt vmcnt({5 * (len(pend) - 1 - k)})"); del pend[:k+1]
            if i == ka:
                L = if_q(); Lr = self.lab('kr'); Lg = self.lab('kg')
                a(f"s_waitcnt vmcnt({5 if ka >= 2 else 0})")
                a(f"s_mov_b32 {s(S_CNT)}, 0")
                a.label(Lr)
                a(f"v_cmp_ne_u32 vcc, v50, v41")
                a(f"v_cmp_ne_u32 {s(S_MASK,2)}, v54, v41")
                a(f"s_and_b64 {s(S_MASK,2)}, {s(S_MASK,2)}, {s(S_DEST+4,2)}")
                a(f"s_or_b64 vcc, vcc, {s(S_MASK,2)}")
                a(f"s_cbranch_scc0 {Lg}")
                a(f"s_add_u32 {s(S_CNT)}, {s(S_CNT)}, 1")
                a(f"s_cmp_gt_u32 {s(S_CNT)}, 0x40000")
                a(f"s_cbranch_scc1 {Lg}")
                if cfg.psl: a(f"s_sleep {cfg.psl}")
                kt_loads()
                a("s_waitcnt vmcnt(0)")
                a(f"s_branch {Lr}")
                a.label(Lg)
                for n in range(2):
                    Lz = self.lab('kz')
                    if n:
                        a(f"s_mov_b64 exec, {s(S_DEST+4,2)}")
                        a(f"s_cbranch_execz {Lz}")
                    a(f"ds_write_b64 {v(56+n)}, {v(48+4*n,2)}")
                    a(f"s_mov_b64 exec, {s(S_DEST+6+2*n,2)}")
                    a(f"s_cbranch_execz {Lz}")
                    for k in range(3):
                        a(f"v_add_u32 {v(56+n)}, {v(56+n)}, {v(58+n)}")
                        a(f"ds_write_b64 {v(56+n)}, {v(48+4*n,2)}")
                    a.label(Lz)
                    a("s_mov_b64 exec, -1")
                a("s_waitcnt lgkmcnt(0)")
                a.label(L)
            if i == cfg.kh:
                L = self.only_l(0)
                a(f"s_waitcnt vmcnt({0 if i - 1 in (ka + 1, ka + 2) else 5})")
                self.poll_check(45, V_QK, 8); a.label(L)
            if i == cfg.ko:
                L = self.only_l(0)
                a(f"s_waitcnt vmcnt({5 if i - 1 + 5 <= 16 else 0})")
                self.poll_check(44, V_QO, 8); a.label(L)
            if i: a("s_barrier")
            self.stamp(20 + i)
            if i == 0: self.dbgt(6)
            if i == 11: self.dbgt(7)
            if i == cfg.ko - 1:
                L = self.only_l(0); self.poll_issue(44, V_QO); a.label(L)
            if i == 1:
                L = self.only_l(0)
                a(f"s_cmp_lg_u32 {s(S_TY)}, 0")
                a(f"s_cbranch_scc1 {L}")
                self.flag_store(V_FH)
                a.label(L)
            if i == cfg.kh - 1:
                L = self.only_l(0); self.poll_issue(45, V_QK); a.label(L)
            if i == ka - 1:
                L = if_q(); kt_loads(); a.label(L)
            if i == ka + 1:
                L = if_q()
                for t in range(2):
                    for k in range(5): a(f"ds_read_b64 {v(48+12*t+2*k,2)}, v38 offset:{2560*t + 32*k}")
                a(f"v_lshlrev_b32 v6, 3, v1")
                a(f"s_add_u32 {s(S_T0)}, {s(S_PKS)}, {8*2560}")
                a("s_waitcnt lgkmcnt(0)")
                for t in range(2):
                    so = s(S_PKS) if t == 0 else s(S_T0)
                    a(f"buffer_store_dwordx4 {v(48+12*t,4)}, v39, {s(R_WS,4)}, {so} offen sc1")
                    a(f"buffer_store_dwordx4 {v(52+12*t,4)}, v39, {s(R_WS,4)}, {so} offen offset:1024 sc1")
                    a(f"buffer_store_dwordx2 {v(56+12*t,2)}, v6, {s(R_WS,4)}, {so} offen offset:2048 sc1")
                a.label(L)
            if i == ka + 3:
                L = self.only_l(0); self.flag_store(V_F2); a.label(L)
            todo = [] if i in (0, ka + 1, ka + 2) else ([i + 3, i + 4, i + 5] if i == ka + 3 else [i + 5])
            for c in todo:
                if c <= 16: p2_chunk(c); pend.append(c)
            if i == ka + 4:
                a(f"s_mul_i32 {s(S_T0)}, {s(S_TT)}, {64*1280}")
                a(f"s_mul_i32 {s(S_T1)}, {s(S_N)}, 160")
                a(f"s_add_u32 {s(S_T0)}, {s(S_T0)}, {s(S_T1)}")
                a(f"s_mul_i32 {s(S_T2)}, {s(S_L)}, 192")
                a(f"s_mul_i32 {s(S_T3)}, {s(S_L)}, 3072")
                for j in range(3):
                    a(f"v_add_u32 v6, {s(S_T2)}, v1")
                    if j: a(f"v_add_u32 v6, {64*j}, v6")
                    a(f"v_mul_u32_u24 v7, 6554, v6")
                    a(f"v_lshrrev_b32 v7, 16, v7")
                    a(f"v_mul_u32_u24 v7, {1280-160}, v7")
                    a(f"v_lshl_add_u32 v7, v6, 4, v7")
                    if j:
                        L = self.lab('xt')
                        a(f"s_cmp_eq_u32 {s(S_L)}, 3")
                        a(f"s_cbranch_scc1 {L}")
                    a(f"s_add_u32 m0, {s(S_T3)}, {XT + 1024*j}")
                    a(f"buffer_load_dwordx4 v7, {s(R_X,4)}, {s(S_T0)} offen lds")
                    if j: a.label(L)
        self.final_prep()
        a("s_barrier")
        self.stamp(33)
        a("s_barrier")
        self.stamp(37)
        a("s_barrier")
        self.stamp(38); self.dbgt(8)
        self.nb_ld_p2 = a.nbar - nb3
        a(f"s_cmp_ge_u32 {s(S_WID)}, 2")
        a(f"s_cbranch_scc1 Lfin")
        a("s_branch Lfinal_store")

    def kvt_addr(self, n):
        a = self.a
        a(f"v_add_u32 v70, {(256*n - 512) & 0xffffffff}, v0")
        a(f"v_cmp_le_u32 vcc, 210, v70")
        a(f"v_cndmask_b32 v84, 0, 1, vcc")
        a(f"v_mov_b32 v86, -210")
        a(f"v_mad_i32_i24 v85, v84, v86, v70")
        a(f"v_mul_u32_u24 v86, 3121, v85")
        a(f"v_lshrrev_b32 v86, 16, v86")
        a(f"v_mov_b32 v88, -21")
        a(f"v_mad_i32_i24 v87, v86, v88, v85")
        a(f"v_cmp_le_u32 vcc, 5, v86")
        a(f"v_cndmask_b32 v88, 0, 1, vcc")
        a(f"v_lshlrev_b32 v89, 1, v88")
        a(f"v_subrev_u32 v90, 16, v87")
        a(f"v_lshlrev_b32 v90, 2, v90")
        a(f"v_mad_u32_u24 v90, v88, 3, v90")
        a(f"v_add_u32 v91, 1, v88")
        a(f"v_cmp_eq_u32 {s(S_MASK,2)}, 20, v87")
        a(f"v_cndmask_b32 v90, v90, v91, {s(S_MASK,2)}")
        a(f"v_cmp_gt_u32 vcc, 16, v87")
        a(f"v_cndmask_b32 v90, v90, v87, vcc")
        a(f"v_cndmask_b32 v89, 1, v89, vcc")
        a(f"v_and_b32 v91, 3, v86")
        a(f"v_lshl_add_u32 v90, v91, 4, v90")
        a(f"v_lshlrev_b32 v91, 10, v89")
        a(f"v_lshl_add_u32 v91, v90, 4, v91")
        a(f"v_and_b32 v92, 4, v86")
        a(f"v_lshl_add_u32 v91, v92, 1, v91")
        a(f"v_lshrrev_b32 v92, 1, v89")
        a(f"v_lshlrev_b32 v92, 9, v92")
        a(f"v_lshl_add_u32 v92, v90, 3, v92")
        a(f"v_add_u32 v92, 3072, v92")
        a(f"v_cmp_le_u32 vcc, 8, v86")
        a(f"v_cndmask_b32 v91, v91, v92, vcc")
        a(f"v_cndmask_b32 {v(58+n)}, 64, 32, vcc")
        a(f"v_lshl_add_u32 v91, v84, 12, v91")
        a(f"v_add_u32 {v(56+n)}, {KVT}, v91")
        a(f"v_mov_b32 v86, {hex(OOB)}")
        a(f"v_cmp_gt_u32 vcc, 420, v70")
        a(f"v_lshlrev_b32 v70, 4, v70")
        a(f"v_cndmask_b32 {v(60+n)}, v86, v70, vcc")
        a(f"s_and_b64 {s(S_DEST+6+2*n,2)}, {s(S_MASK,2)}, vcc")
        if n: a(f"s_mov_b64 {s(S_DEST+4,2)}, vcc")

    def l1_setup(self):
        a = self.a
        a(f"v_mov_b32 v5, {hex(OOB)}")
        a(f"v_and_b32 v4, 31, v1")
        a(f"s_lshl_b32 {s(S_T0)}, {s(S_RB)}, 5")
        a(f"v_add_u32 v4, {s(S_T0)}, v4")
        a(f"v_cmp_gt_u32 vcc, 420, v4")
        a(f"v_lshlrev_b32 v4, 4, v4")
        a(f"v_lshrrev_b32 v3, 5, v1")
        a(f"v_mul_u32_u24 v3, {8*KP_STRIDE}, v3")
        a(f"v_add_u32 v3, v3, v4")
        a(f"v_cndmask_b32 v3, v5, v3, vcc")
        a(f"s_mov_b64 {s(S_DEST+4,2)}, vcc")
        a(f"v_cmp_gt_u32 vcc, 32, v1")
        a(f"s_and_b64 vcc, vcc, {s(S_DEST+4,2)}")
        a(f"v_cndmask_b32 v4, v5, v4, vcc")
        a("s_waitcnt lgkmcnt(0)")
        for e in range(1, 4): a(f"v_lshrrev_b32 {v(88+e)}, {8*e}, v41")
        a(f"v_mov_b32 v88, v41")
        a(f"v_mov_b32 v92, 0xffffff00")
    def l1_run(self):
        a = self.a
        Ls = self.lab('l1s'); Lr = self.lab('l1r'); Lg = self.lab('l1g')
        a(f"s_cmp_lg_u32 {s(S_L)}, 1")
        a(f"s_cbranch_scc1 {Ls}")
        a(f"s_cmp_lg_u32 {s(S_TY)}, 0")
        a(f"s_cbranch_scc1 {Ls}")
        a(f"s_cmp_ge_u32 {s(S_RB)}, 14")
        a(f"s_cbranch_scc1 {Ls}")
        a(f"s_mul_i32 {s(S_T1)}, {s(S_HG)}, {KP_STRIDE}")
        a(f"s_lshl_b32 {s(S_T2)}, {s(S_T1)}, 4")
        a(f"s_add_u32 {s(S_T1)}, {s(S_T1)}, {WS_KT}")
        a(f"s_add_u32 {s(S_T2)}, {s(S_T2)}, {WS_KP}")
        a(f"s_mov_b32 {s(S_CNT)}, 0")
        D = 48
        a.label(Lr)
        for k in range(8):
            a(f"s_add_u32 {s(S_T3)}, {s(S_T2)}, {k*KP_STRIDE}")
            a(f"buffer_load_dwordx4 {v(D+4*k,4)}, v3, {s(R_WS,4)}, {s(S_T3)} offen sc1")
        for k in range(8):
            a(f"s_waitcnt vmcnt({7-k})")
            for e in range(4):
                if k == 0: a(f"v_xor_b32 {v(84+e)}, {v(D+e)}, {v(88+e)}")
                else: a(f"v_bitop3_b32 {v(84+e)}, {v(84+e)}, {v(D+4*k+e)}, {v(88+e)} bitop3:0xf6")
            for e in range(4): a(f"v_and_b32 {v(D+4*k+e)}, v92, {v(D+4*k+e)}")
            if k:
                for e in range(4): a(f"v_add_f32 {v(D+e)}, {v(D+e)}, {v(D+4*k+e)}")
        a(f"v_or3_b32 v84, v84, v85, v86")
        a(f"v_or_b32 v84, v84, v87")
        a(f"v_and_b32 v84, 0xff, v84")
        a(f"v_cmp_ne_u32 vcc, 0, v84")
        a(f"s_and_b64 vcc, vcc, {s(S_DEST+4,2)}")
        a(f"s_cbranch_scc0 {Lg}")
        a(f"s_add_u32 {s(S_CNT)}, {s(S_CNT)}, 1")
        a(f"s_cmp_lt_u32 {s(S_CNT)}, 0x40000")
        a(f"s_cbranch_scc1 {Lr}")
        a.label(Lg)
        for e in range(4): a(f"v_mov_b32 {v(D+4+e)}, {v(D+e)}")
        for e in range(4): a(f"v_permlane32_swap_b32 {v(D+4+e)}, {v(D+e)}")
        for e in range(4): a(f"v_add_f32 {v(D+e)}, {v(D+e)}, {v(D+4+e)}")
        a(f"v_cvt_pk_bf16_f32 {v(D)}, {v(D)}, {v(D+1)}")
        a(f"v_cvt_pk_bf16_f32 {v(D+1)}, {v(D+2)}, {v(D+3)}")
        a(f"v_mov_b32 {v(D+2)}, v41")
        a(f"v_mov_b32 {v(D+3)}, v41")
        a(f"buffer_store_dwordx4 {v(D,4)}, v4, {s(R_WS,4)}, {s(S_T1)} offen sc1")
        self.stamp(17)
        a(f"s_branch {Ls}x")
        a.label(Ls)
        a(f"s_waitcnt vmcnt(0)")
        a.label(Ls + 'x')

    def rot2(self, dst):
        a = self.a; ra, rb_ = self.cfg.rot2
        sh = 3 if self.cfg.map2 == 'A' else 2
        a(f"s_lshr_b32 {s(S_T1)}, {s(S_IDX)}, {sh}")
        a(f"s_mul_i32 {s(dst)}, {s(S_T1)}, {ra}")
        a(f"s_and_b32 {s(S_T1)}, {s(S_IDX)}, {(1 << sh) - 1}")
        a(f"s_mul_i32 {s(S_T1)}, {s(S_T1)}, {rb_}")
        a(f"s_add_u32 {s(dst)}, {s(dst)}, {s(S_T1)}")
    def chunk_id(self, d, t, i):
        a = self.a
        a(f"s_add_u32 {s(d)}, {s(S_KC)}, {i}")
        if i < 8:
            a(f"s_and_b32 {s(d)}, {s(d)}, 7")
            a(f"s_lshr_b32 {s(t)}, {s(d)}, 1")
            a(f"s_add_u32 {s(d)}, {s(d)}, {s(t)}")
            a(f"s_add_u32 {s(d)}, {s(d)}, 1")
        else:
            a(f"s_and_b32 {s(d)}, {s(d)}, 3")
            a(f"s_mul_i32 {s(d)}, {s(d)}, 3")

    def final_prep(self):
        a = self.a
        srd(a, R_OUT, P_OUT, 2048 * 1280)
        a(f"v_lshlrev_b32 v164, 4, v0")
        a(f"v_mul_u32_u24 v165, 6554, v0")
        a(f"v_lshrrev_b32 v165, 16, v165")
        a(f"v_mul_u32_u24 v165, {1280-160}, v165")
        a(f"v_add_u32 v165, v165, v164")
        a(f"v_add_u32 v164, {XT}, v164")
        a(f"s_mul_i32 {s(S_IT)}, {s(S_TT)}, {64*1280}")
        a(f"s_mul_i32 {s(S_T1)}, {s(S_N)}, 160")
        a(f"s_add_u32 {s(S_IT)}, {s(S_IT)}, {s(S_T1)}")
    def final_store(self):
        a = self.a
        a.label('Lfinal_store')
        a(f"ds_read_b128 v[4:7], v164")
        a("s_waitcnt lgkmcnt(0)")
        a(f"buffer_store_dwordx4 v[4:7], v165, {s(R_OUT,4)}, {s(S_IT)} offen")
        a.label('Lfin')
        if self.cfg.light:
            a(f"s_cmp_lg_u32 {s(S_WID)}, 0")
            a(f"s_cbranch_scc1 Lend")
            a(f"v_mov_b32 v4, {s(S_TS)}")
            a("s_waitcnt vmcnt(0)")
            a(f"s_memrealtime {s(S_TS,2)}")
            a(f"s_memtime s[8:9]")
            a(f"s_lshl_b32 {s(S_T0)}, s2, 4")
            a(f"s_add_u32 {s(S_T0)}, {s(S_T0)}, {WS_TS}")
            a("v_mov_b32 v2, 0")
            a("s_waitcnt lgkmcnt(0)")
            a(f"v_mov_b32 v5, {s(S_TS)}")
            a(f"v_mov_b32 v6, s3")
            a(f"v_mov_b32 v7, s8")
            a(f"buffer_store_dwordx4 v[4:7], v2, {s(R_WS,4)}, {s(S_T0)} offen")
        if self.cfg.diag:
            a("s_waitcnt vmcnt(0)")
            self.stamp(39); self.stamp(62)
            a(f"s_memrealtime {s(S_TS,2)}")
            a("s_waitcnt lgkmcnt(0)")
            a(f"v_writelane_b32 {v(VDIAG)}, {s(S_TS)}, 63")
            a(f"s_mul_i32 {s(S_T0)}, s2, 12")
            a(f"s_add_u32 {s(S_T0)}, {s(S_T0)}, {s(S_WID)}")
            a(f"s_lshl_b32 {s(S_T0)}, {s(S_T0)}, 8")
            a(f"s_add_u32 {s(S_T0)}, {s(S_T0)}, {WS_TS2}")
            a(f"v_lshlrev_b32 v2, 2, v1")
            a(f"buffer_store_dword {v(VDIAG)}, v2, {s(R_WS,4)}, {s(S_T0)} offen")
        a.label('Lend')
        a("s_endpgm")

    ACC = 12; ONES = 68; RS = 72; SQ = 76; CSA = 80; CSB = 84
    XA = 88; XB = 96; YA = 124; YB = 132
    VA = 2
    L15 = 164; G = 165; TOK = 167
    def acc(self, t, i): return self.ACC + (2 * t + i) * 4
    def tiles(self, ty):
        if ty == 0:
            return [(6, 0, 160, 'N'), (6, 32, 160, 'N'), (7, 0, 160, 'N'), (6, 10256, 160, 'N'), (6, 10288, 160, 'N'),
                    (8, 0, 128, 'T'), (9, 0, 128, 'T')]
        return [(6, 0, 160, 'T'), (6, 32, 160, 'T'), (6, 64, 160, 'T'), (7, 0, 256, 'T'), (8, 0, 256, 'T'), (9, 0, 256, 'T'), (10, 0, 256, 'T')]

    def pack_setup(self):
        a = self.a
        a(f"s_cmp_gt_u32 {s(S_U)}, 135")
        a(f"s_cselect_b32 {s(S_T0)}, 0, {s(S_U)}")
        a(f"s_lshr_b32 {s(S_T0)}, {s(S_T0)}, 1")
        a(f"s_cmp_lt_u32 {s(S_T0)}, 48")
        a(f"s_cselect_b32 {s(R_PK)}, {s(P_W2)}, {s(P_WO)}")
        a(f"s_cselect_b32 {s(R_PK+1)}, {s(P_W2+1)}, {s(P_WO+1)}")
        a(f"s_mov_b32 {s(R_PK+2)}, {hex(640*1280)}")
        a(f"s_cselect_b32 {s(R_PK+2)}, {hex(1536*1280)}, {s(R_PK+2)}")
        a(f"s_mov_b32 {s(R_PK+3)}, 0x20000")
        Lm = self.lab('pkm'); Ld = self.lab('pkd')
        a(f"s_cbranch_scc1 {Lm}")
        a(f"s_sub_u32 {s(S_T3)}, {s(S_T0)}, 48")
        a(f"s_mul_i32 {s(S_T1)}, {s(S_T3)}, 52")
        a(f"s_lshr_b32 {s(S_T1)}, {s(S_T1)}, 8")
        a(f"s_mul_i32 {s(S_T2)}, {s(S_T1)}, 5")
        a(f"s_sub_u32 {s(S_T3)}, {s(S_T3)}, {s(S_T2)}")
        a(f"s_mul_i32 {s(S_T1)}, {s(S_T1)}, 160")
        a(f"s_lshl_b32 {s(S_T2)}, {s(S_T3)}, 5")
        a(f"s_cmp_ge_u32 {s(S_T3)}, 2")
        a(f"s_cselect_b32 {s(S_T0)}, 16, 0")
        a(f"s_add_u32 {s(S_T2)}, {s(S_T2)}, {s(S_T0)}")
        a(f"s_cmp_eq_u32 {s(S_T3)}, 4")
        a(f"s_cselect_b32 {s(S_T2)}, 64, {s(S_T2)}")
        a(f"s_cselect_b32 {s(S_T0)}, {64*1280}, 0")
        a(f"s_add_u32 {s(S_T1)}, {s(S_T1)}, {s(S_T2)}")
        a(f"s_branch {Ld}")
        a.label(Lm)
        a(f"s_lshl_b32 {s(S_T1)}, {s(S_T0)}, 5")
        a(f"s_mov_b32 {s(S_T0)}, 0")
        a.label(Ld)
        a(f"s_and_b32 {s(R_PK+1)}, {s(R_PK+1)}, 0xffff")
        a(f"s_mul_i32 {s(S_T1)}, {s(S_T1)}, 1280")
        a(f"s_and_b32 {s(S_T2)}, {s(S_U)}, 1")
        a(f"s_mul_i32 {s(S_T3)}, {s(S_T2)}, 640")
        a(f"s_add_u32 {s(S_PKO)}, {s(S_T1)}, {s(S_T3)}")
        a(f"v_mov_b32 v100, {s(S_T0)}")
        a(f"v_mov_b32 v105, {hex(OOB)}")
        a(f"s_mul_i32 {s(S_T2)}, {s(S_RB)}, 160")
        a(f"s_cmp_lg_u32 {s(S_TY)}, 0")
        a(f"s_cselect_b32 {s(S_T2)}, 0, {s(S_T2)}")
        a(f"s_movk_i32 {s(S_T3)}, 160")
        a(f"s_cselect_b32 {s(S_T3)}, 640, {s(S_T3)}")
        for i in range(3):
            a(f"v_add_u32 v101, {512*i}, v0")
            a(f"v_mul_u32_u24 v102, 1639, v101")
            a(f"v_lshrrev_b32 v102, 16, v102")
            a(f"v_cmp_le_u32 vcc, 16, v102")
            a(f"v_mul_u32_u24 v102, 640, v102")
            a(f"v_cndmask_b32 v103, 0, v100, vcc")
            a(f"v_lshlrev_b32 v101, 4, v101")
            a(f"v_sub_u32 v104, v101, v102")
            a(f"v_add3_u32 v102, v102, v101, v103")
            a(f"v_subrev_u32 v104, {s(S_T2)}, v104")
            a(f"v_cmp_gt_u32 vcc, {s(S_T3)}, v104")
            a(f"v_cndmask_b32 {v(161+i)}, v105, v102, vcc")

    def code_prefetch(self, T):
        a = self.a; cfg = self.cfg
        L = self.lab('cp'); Lpc = self.lab('pc')
        a(f"s_cmp_lg_u32 {s(S_WID)}, {cfg.cpw}")
        a(f"s_cbranch_scc1 {L}")
        a(f"s_getpc_b64 {s(S_T0,2)}")
        a.label(Lpc)
        a(f"s_sub_u32 {s(S_T0)}, {s(S_T0)}, {Lpc}-{NAME}")
        a(f"s_subb_u32 {s(S_T1)}, {s(S_T1)}, 0")
        n = cfg.cpn
        a(f"s_and_b32 {s(S_T2)}, {s(S_IDX)}, {256 // n - 1}")
        a(f"s_mul_i32 {s(S_T2)}, {s(S_T2)}, {128 * n}")
        a(f"v_lshlrev_b32 {v(T)}, 7, v1")
        a(f"v_and_b32 {v(T)}, {128 * n - 128}, {v(T)}")
        a(f"v_add_u32 {v(T)}, {s(S_T2)}, {v(T)}")
        a(f"v_min_u32 {v(T)}, Lend-{NAME}, {v(T)}")
        a(f"v_mov_b32 {v(T+1)}, {s(S_T1)}")
        a(f"v_add_co_u32 {v(T)}, vcc, {s(S_T0)}, {v(T)}")
        a(f"v_addc_co_u32 {v(T+1)}, vcc, 0, {v(T+1)}, vcc")
        exec_mask(a, (1 << n) - 1)
        a(f"global_load_dword v166, {v(T,2)}, off")
        a(f"s_mov_b64 exec, -1")
        a.label(L)

    def compute_setup(self):
        a = self.a
        a.label('Lcompute')
        if self.cfg.cpf == 1: self.code_prefetch(102)
        T = 88
        L15, G, TOK = self.L15, self.G, self.TOK
        a(f"s_sub_u32 {s(S_T0)}, {s(S_WID)}, 4")
        a(f"s_and_b32 {s(S_R)}, {s(S_T0)}, 3")
        a(f"s_lshr_b32 {s(S_C)}, {s(S_T0)}, 2")
        a(f"v_add_u32 v0, {-256 & 0xffffffff}, v0")
        a(f"v_and_b32 {v(L15)}, 15, v1")
        a(f"v_lshrrev_b32 {v(G)}, 4, v1")
        a(f"v_lshrrev_b32 {v(T+2)}, 1, {v(L15)}")
        a(f"v_xor_b32 {v(T+2)}, {v(T+2)}, {v(G)}")
        a(f"v_lshlrev_b32 {v(T+2)}, 4, {v(T+2)}")
        a(f"v_lshl_add_u32 {v(T+2)}, {v(L15)}, 7, {v(T+2)}")
        a(f"s_lshl_b32 {s(S_T0)}, {s(S_R)}, 12")
        a(f"s_lshl_b32 {s(S_T1)}, {s(S_C)}, 11")
        a(f"s_add_u32 {s(S_T0)}, {s(S_T0)}, {s(S_T1)}")
        a(f"v_add_u32 v2, {s(S_T0)}, {v(T+2)}")
        a(f"v_xor_b32 v3, 64, v2")
        a(f"v_xor_b32 v4, 2048, v2")
        a(f"v_xor_b32 v5, 64, v4")
        a(f"s_lshr_b32 {s(S_T0)}, {s(S_T0)}, 5")
        a(f"s_add_u32 {s(S_T0)}, {s(S_T0)}, {ST}")
        a(f"v_lshl_add_u32 {v(TOK)}, {v(L15)}, 2, {s(S_T0)}")
        a(f"v_bfe_u32 {v(T+3)}, v1, 2, 3")
        a(f"v_lshrrev_b32 {v(T+4)}, 5, v1")
        a(f"v_lshl_add_u32 {v(T+4)}, {v(T+4)}, 4, {v(T+3)}")
        a(f"v_and_b32 {v(T+5)}, 3, v1")
        a(f"v_lshlrev_b32 {v(T+6)}, 3, {v(T+5)}")
        a(f"v_mul_u32_u24 v6, 160, {v(T+4)}")
        a(f"s_mul_i32 {s(S_T0)}, {s(S_C)}, 80")
        a(f"s_add_u32 {s(S_T0)}, {s(S_T0)}, 16384")
        a(f"v_add3_u32 v6, v6, {v(T+6)}, {s(S_T0)}")
        for i in range(self.ACC, self.ONES): a(f"v_mov_b32 {v(i)}, 0")
        for i in range(4): a(f"v_mov_b32 {v(self.ONES+i)}, 0x3f803f80")
        a(f"s_mov_b32 {s(S_IT)}, 0")
        self.calc_u()
        a("s_waitcnt lgkmcnt(0)")
        self.stamp(1)
        srd(a, R_WS, P_WS, WS_SIZE)
        self.pack_setup()
        self.p2_pre_setup()
        a(f"s_cmp_lg_u32 {s(S_TY)}, 0")
        a(f"s_cbranch_scc1 Lc_q")
        self.h_addr(0, 1)
        a(f"s_lshl_b32 {s(S_T0)}, {s(S_HG)}, 4")
        a(f"s_add_u32 {s(S_T0)}, {s(S_T0)}, {s(S_RB)}")
        a(f"s_mul_i32 {s(S_T0)}, {s(S_T0)}, {KP_STRIDE}")
        a(f"s_add_u32 {s(S_CNT)}, {s(S_T0)}, {WS_KP}")
        a(f"s_mul_i32 {s(S_T0)}, {s(S_R)}, 6720")
        a(f"s_mul_i32 {s(S_T1)}, {s(S_C)}, 3360")
        a(f"s_add_u32 {s(S_T0)}, {s(S_T0)}, {s(S_T1)}")
        a(f"s_add_u32 {s(S_OA)}, {s(S_T0)}, {SCR}")
        a(f"v_cmp_gt_u32 vcc, 2, {v(T+5)}")
        a(f"v_mov_b32 {v(T+7)}, 10224")
        a(f"v_cndmask_b32 {v(T+7)}, {v(T+7)}, 64, vcc")
        a(f"v_add_u32 v7, v6, {v(T+7)}")
        a(f"v_lshrrev_b32 {v(T+7)}, 1, {v(T+3)}")
        a(f"v_lshl_add_u32 {v(T+8)}, {v(T+4)}, 7, {v(T+6)}")
        a(f"v_add_u32 {v(T+8)}, 36864, {v(T+8)}")
        a(f"s_lshl_b32 {s(S_T0)}, {s(S_C)}, 1")
        a(f"v_xor_b32 {v(T+7)}, {s(S_T0)}, {v(T+7)}")
        a(f"v_lshl_add_u32 v8, {v(T+7)}, 5, {v(T+8)}")
        a(f"v_xor_b32 {v(T+7)}, 1, {v(T+7)}")
        a(f"v_lshl_add_u32 v9, {v(T+7)}, 5, {v(T+8)}")
        a(f"s_branch Lp1_0")
        a.label('Lc_q')
        self.h_addr(2, 2)
        a(f"s_mul_i32 {s(S_T0)}, {s(S_HG)}, {KP_STRIDE}")
        a(f"s_add_u32 {s(S_CNT)}, {s(S_T0)}, {WS_KT}")
        a(f"v_lshl_add_u32 {v(T+8)}, {v(T+4)}, 8, {v(T+6)}")
        a(f"v_add_u32 {v(T+8)}, 26624, {v(T+8)}")
        a(f"s_lshl_b32 {s(S_T0)}, {s(S_C)}, 2")
        a(f"v_xor_b32 {v(T+7)}, {s(S_T0)}, {v(T+3)}")
        for i in range(4):
            a(f"v_xor_b32 {v(T+9)}, {i}, {v(T+7)}")
            a(f"v_lshl_add_u32 {v(7+i)}, {v(T+9)}, 5, {v(T+8)}")
        a(f"s_branch Lp1_1")

    def p1_reads(self, ty, st, A, B):
        out = [f"ds_read_b128 {v(A,4)}, {v(self.VA+st)}", f"ds_read_b128 {v(A+4,4)}, {v(self.VA+2+st)}"]
        for t, (ad, ex, pitch, o) in enumerate(self.tiles(ty)):
            for u in range(2):
                if t < self.cfg.xr: out.append(f"ds_read_b64_tr_b16 {v(B+4*t+2*u,2)}, {v(ad)} offset:{(32*st+8*u)*pitch+ex}")
        return out
    def p1_mfmas(self, ty, A, B):
        M = "v_mfma_f32_16x16x32_bf16"
        out = []
        for t, (ad, ex, pitch, o) in enumerate(self.tiles(ty)):
            for i in range(2):
                d = v(self.acc(t, i), 4); x = v(A + 4*i, 4); w = v(B + 4*t, 4)
                if t < self.cfg.xm: out.append(f"{M} {d}, {x}, {w}, {d}" if o == 'N' else f"{M} {d}, {w}, {x}, {d}")
        return out

    def duty(self, half, A, B):
        a = self.a
        M = "v_mfma_f32_16x16x32_bf16"
        on = v(self.ONES, 4); x0 = v(A, 4)
        def c(r): return v(r, 4) if half else '0'
        a.label(f"Lduty{half}")
        a(f"{M} {v(self.RS,4)}, {on}, {x0}, {c(self.RS)}")
        a(f"{M} {v(self.SQ,4)}, {x0}, {x0}, {c(self.SQ)}")
        Ld = self.lab('dd')
        labs = [self.lab('dr') for _ in range(4)]
        for r in range(1, 4):
            a(f"s_cmp_eq_u32 {s(S_R)}, {r}")
            a(f"s_cbranch_scc1 {labs[r]}")
        for r in range(4):
            a.label(labs[r])
            a(f"{M} {v(self.CSA,4)}, {on}, {v(B+4*r,4)}, {c(self.CSA)}")
            if r < 3:
                a(f"{M} {v(self.CSB,4)}, {on}, {v(B+4*(r+4),4)}, {c(self.CSB)}")
                a(f"s_branch {Ld}")
        a.label(Ld)
        if half:
            T = 160
            SQ = self.SQ
            a(f"v_and_b32 {v(T)}, 3, v1")
            a(f"s_mul_i32 {s(S_T0)}, {s(S_RB)}, 10")
            a(f"s_add_u32 {s(S_T0)}, {s(S_T0)}, {s(S_S0)}")
            a(f"s_lshl_b32 {s(S_T0)}, {s(S_T0)}, 10")
            a(f"s_add_u32 {s(S_T0)}, {s(S_T0)}, {(WS_RP - 2*ST) & 0xffffffff}")
            a(f"v_lshl_add_u32 {v(T+1)}, {v(self.TOK)}, 1, {s(S_T0)}")
            a(f"s_mul_i32 {s(S_T0)}, {s(S_COL)}, 10")
            a(f"s_add_u32 {s(S_T0)}, {s(S_T0)}, {s(S_S0)}")
            a(f"s_lshl_b32 {s(S_T0)}, {s(S_T0)}, 10")
            a(f"s_mul_i32 {s(S_T1)}, {s(S_C)}, 448")
            a(f"s_add_u32 {s(S_T0)}, {s(S_T0)}, {s(S_T1)}")
            a(f"s_lshl_b32 {s(S_T1)}, {s(S_R)}, 6")
            a(f"s_add_u32 {s(S_T0)}, {s(S_T0)}, {s(S_T1)}")
            a(f"s_add_u32 {s(S_T0)}, {s(S_T0)}, {WS_CP}")
            a(f"v_lshl_add_u32 {v(T+2)}, {v(self.L15)}, 2, {s(S_T0)}")
            a(f"v_cmp_eq_u32 vcc, 1, {v(T)}")
            a(f"v_cndmask_b32 {v(self.RS+1)}, {v(SQ)}, {v(SQ+1)}, vcc")
            a(f"v_cmp_eq_u32 vcc, 2, {v(T)}")
            a(f"v_cndmask_b32 {v(self.RS+1)}, {v(self.RS+1)}, {v(SQ+2)}, vcc")
            a(f"v_cmp_eq_u32 vcc, 3, {v(T)}")
            a(f"v_cndmask_b32 {v(self.RS+1)}, {v(self.RS+1)}, {v(SQ+3)}, vcc")
            L = self.lab('dn')
            a(f"s_cmp_ge_u32 {s(S_COL)}, 10")
            a(f"s_cbranch_scc1 {L}")
            exec_mask(a, DIAGMASK)
            a(f"buffer_store_dwordx2 {v(self.RS,2)}, {v(T+1)}, {s(R_WS,4)}, 0 offen sc1")
            a.label(L)
            L = self.lab('dn')
            a(f"s_cmp_ge_u32 {s(S_RB)}, 10")
            a(f"s_cbranch_scc1 {L}")
            exec_mask(a, 0xffff)
            a(f"buffer_store_dword {v(self.CSA)}, {v(T+2)}, {s(R_WS,4)}, 0 offen sc1")
            a(f"s_cmp_eq_u32 {s(S_R)}, 3")
            a(f"s_cbranch_scc1 {L}")
            a(f"buffer_store_dword {v(self.CSB)}, {v(T+2)}, {s(R_WS,4)}, 0 offen offset:256 sc1")
            a.label(L)
            a("s_mov_b64 exec, -1")
        a(f"s_cmp_lg_u32 {s(S_TY)}, 0")
        a(f"s_cbranch_scc1 Lret{half}_1")
        a(f"s_branch Lret{half}_0")

    def pack_blocks(self):
        a = self.a
        PD = 72
        def ret(h):
            a(f"s_cmp_lg_u32 {s(S_TY)}, 0")
            a(f"s_cbranch_scc1 Lret{h}_1")
            a(f"s_branch Lret{h}_0")
        a.label('Lx1')
        L3 = self.lab('p3')
        a(f"s_cmp_lg_u32 {s(S_IT)}, 1")
        a(f"s_cbranch_scc1 {L3}")
        a(f"s_cmp_gt_u32 {s(S_U)}, 135")
        a(f"s_cbranch_scc1 Lduty1")
        a(f"s_lshl_b32 {s(S_T0)}, {s(S_WID)}, 10")
        for i in range(3):
            if i == 2:
                a(f"s_cmp_lg_u32 {s(S_C)}, 0")
                a(f"s_cbranch_scc1 Lduty1")
            a(f"s_add_u32 m0, {s(S_T0)}, {SCR - 4096 + 8192*i}")
            a(f"buffer_load_dwordx4 {v(161+i)}, {s(R_PK,4)}, {s(S_PKO)} offen lds")
        a("s_branch Lduty1")
        a.label(L3)
        if self.cfg.cpf == 2: self.code_prefetch(162)
        L = self.lab('pa')
        a(f"s_cmp_gt_u32 {s(S_U)}, 135")
        a(f"s_cbranch_scc1 {L}")
        a(f"v_lshrrev_b32 v160, 2, v1")
        a(f"v_mul_u32_u24 v160, 640, v160")
        a(f"v_and_b32 v161, 3, v1")
        a(f"v_lshl_add_u32 v160, v161, 3, v160")
        a(f"s_mul_i32 {s(S_T0)}, {s(S_R)}, 160")
        a(f"s_mul_i32 {s(S_T1)}, {s(S_C)}, 96")
        a(f"s_add_u32 {s(S_T0)}, {s(S_T0)}, {s(S_T1)}")
        a(f"s_add_u32 {s(S_T0)}, {s(S_T0)}, {SCR}")
        a(f"v_add_u32 v160, {s(S_T0)}, v160")
        for c in range(3):
            a(f"ds_read_b64_tr_b16 {v(PD+4*c,2)}, v160 offset:{32*c}")
            a(f"ds_read_b64_tr_b16 {v(PD+2+4*c,2)}, v160 offset:{32*c + 16*640}")
        a.label(L)
        ret(1)
        a.label('Lx0')
        a("s_waitcnt lgkmcnt(0)")
        a(f"s_cmp_eq_u32 {s(S_IT)}, 1")
        a(f"s_cbranch_scc1 Lduty0")
        L = self.lab('pb')
        a(f"s_cmp_gt_u32 {s(S_U)}, 135")
        a(f"s_cbranch_scc1 {L}")
        a(f"s_cmp_lg_u32 {s(S_TY)}, 0")
        a(f"s_cselect_b32 {s(S_T0)}, {s(S_R)}, {s(S_RB)}")
        a(f"s_cmp_lg_u32 {s(S_T0)}, {s(S_R)}")
        a(f"s_cbranch_scc1 {L}")
        a(f"s_and_b32 {s(S_T0)}, {s(S_U)}, 1")
        a(f"s_lshl_b32 {s(S_T0)}, {s(S_T0)}, 2")
        a(f"s_add_u32 {s(S_T0)}, {s(S_T0)}, {s(S_R)}")
        a(f"s_mul_i32 {s(S_T0)}, {s(S_T0)}, 68")
        a(f"s_lshr_b32 {s(S_T1)}, {s(S_U)}, 1")
        a(f"s_add_u32 {s(S_T0)}, {s(S_T0)}, {s(S_T1)}")
        a(f"s_mul_i32 {s(S_T0)}, {s(S_T0)}, 5120")
        a(f"s_mul_i32 {s(S_T1)}, {s(S_C)}, 3072")
        a(f"s_add_u32 {s(S_T0)}, {s(S_T0)}, {s(S_T1)}")
        a(f"s_add_u32 {s(S_T0)}, {s(S_T0)}, {WS_P2}")
        a(f"v_lshlrev_b32 v160, 4, v1")
        for c in range(3):
            if c == 2:
                a(f"s_cmp_lg_u32 {s(S_C)}, 0")
                a(f"s_cbranch_scc1 {L}")
            a(f"buffer_store_dwordx4 {v(PD+4*c,4)}, v160, {s(R_WS,4)}, {s(S_T0)} offen offset:{1024*c} sc1")
        a.label(L)
        ret(0)

    def p1_loop(self, ty):
        a = self.a; cfg = self.cfg
        nad = 8 if ty == 0 else 9
        nb = a.nbar
        rx = self.p1_reads(ty, 0, self.XA, self.XB); ry = self.p1_reads(ty, 1, self.YA, self.YB)
        my = self.p1_mfmas(ty, self.YA, self.YB); mx = self.p1_mfmas(ty, self.XA, self.XB)
        sal = [f"s_add_u32 {s(S_IT)}, {s(S_IT)}, 1",
               f"s_bitcmp1_b32 {hex((1<<3)|(1<<6)|(1<<9))}, {s(S_IT)}",
               f"s_cselect_b32 {s(S_DELTA)}, {s(S_DEST)}, {s(S_DEST+1)}"]
        a.label(f"Lp1_{ty}")
        a(f"s_mov_b32 {s(S_DEST)}, {hex(-2*SLOT & 0xffffffff)}")
        a(f"s_mov_b32 {s(S_DEST+1)}, {SLOT}")
        a("s_barrier")
        for x in rx: a(x)
        a(f"s_branch Lret1_{ty}")
        a(".p2align 3")
        a.label(f"Lp1h_{ty}")
        a("s_barrier")
        k = 0
        for m, x in enumerate(my):
            a(x)
            for _ in range(cfg.rpm + (1 if m < cfg.rp2 else 0)):
                if k < len(rx): a(rx[k]); k += 1
        assert k == len(rx)
        a(f"s_bitcmp1_b32 {(1<<1)|(1<<3)}, {s(S_IT)}")
        a(f"s_cbranch_scc1 Lx1")
        a.label(f"Lret1_{ty}")
        upd = [f"v_add_u32 {v(self.VA+i)}, {s(S_DELTA)}, {v(self.VA+i)}" for i in range(nad)]
        k = 0; u = 0
        for m, x in enumerate(mx):
            if m % 2 == 0:
                t = m // 2
                rem = len(rx) - (2 + 2 * (t + 1))
                if rem >= 0:
                    a(f"s_waitcnt lgkmcnt({min(15, rem + k)})")
            if m == len(mx) - 1: a(f"s_cmp_lt_u32 {s(S_IT)}, 10")
            a(x)
            if m == 0:
                for y in sal: a(y)
            for _ in range(cfg.rpm + (1 if m < cfg.rp2 else 0)):
                t1 = (m + 2) // 2
                rem1 = max(0, len(rx) - (2 + 2 * (t1 + 1)))
                if k < len(ry) and (rem1 + k + 1 <= 15 or rem1 == 0): a(ry[k]); k += 1
            n = 0
            while u < len(upd) and n < 2 and not any(f", {v(self.VA+u)} " in y + " " for y in ry[k:]): a(upd[u]); u += 1; n += 1
            if m == len(mx) - 3:
                L = self.lab('vw')
                a(f"s_bitcmp0_b32 {(1<<3)|(1<<5)}, {s(S_IT)}")
                a(f"s_cbranch_scc1 {L}")
                a("s_waitcnt vmcnt(0)")
                a.label(L)
                a(f"s_bitcmp1_b32 {(1<<1)|(1<<4)}, {s(S_IT)}")
                a(f"s_cbranch_scc1 Lx0")
                a.label(f"Lret0_{ty}")
        while u < len(upd): a(upd[u]); u += 1
        assert k == len(ry)
        a("s_waitcnt lgkmcnt(0)")
        a(f"s_cbranch_scc1 Lp1h_{ty}")
        a("s_barrier")
        self.nb_loop = 11
        a.nbar = nb

    def gelu_tile(self, t, AB, CS, BR, d0, W):
        a = self.a
        B = W; X = W + 4
        a(f"v_lshlrev_b32 {v(B)}, 16, {v(BR)}")
        a(f"v_and_b32 {v(B+1)}, {s(S_K1)}, {v(BR)}")
        a(f"v_lshlrev_b32 {v(B+2)}, 16, {v(BR+1)}")
        a(f"v_and_b32 {v(B+3)}, {s(S_K1)}, {v(BR+1)}")
        ch = [(i, p) for i in range(2) for p in range(2)]
        ac = lambda i, p: self.acc(t, i) + 2 * p
        x = lambda i, p: X + 4 * i + 2 * p
        for i, p in ch: a(pk('fma', x(i,p), ('b', AB+4*i+2), CS+2*p, B+2*p))
        for i, p in ch: a(pk('fma', ac(i,p), ('b', AB+4*i), ac(i,p), x(i,p)))
        for i, p in ch: a(pk('mul', x(i,p), ac(i,p), ac(i,p)))
        for i, p in ch: a(pk('fma', x(i,p), x(i,p), ('s', S_K0), ('b', 166)))
        for i, p in ch: a(pk('mul', x(i,p), x(i,p), ac(i,p)))
        for k in range(8): a(f"v_exp_f32 {v(X+k)}, {v(X+k)}")
        for i, p in ch: a(pk('add', x(i,p), x(i,p), '1.0'))
        for k in range(8): a(f"v_rcp_f32 {v(X+k)}, {v(X+k)}")
        for i, p in ch: a(pk('mul', x(i,p), x(i,p), ac(i,p)))
        for i, p in ch: a(f"v_cvt_pk_bf16_f32 {v(d0(i)+p)}, {v(x(i,p))}, {v(x(i,p)+1)}")
    def gelu_consts(self):
        a = self.a
        c1 = -2 * math.sqrt(2 / math.pi) * LOG2E; c2 = c1 * 0.044715
        a(f"s_mov_b32 {s(S_K0)}, {lit(c2)}")
        a(f"s_mov_b32 {s(S_K1)}, 0xffff0000")
        a(f"v_mov_b32 v166, {lit(c1)}")

    def phi_tile(self, t, fa, fb, fcs, X, EPS, d0):
        a = self.a
        ch = [(i, p) for i in range(2) for p in range(2)]
        ac = lambda i, p: self.acc(t, i) + 2 * p
        x = lambda i, p: X + 4 * i + 2 * p
        for i, p in ch: a(pk('fma', x(i,p), fb(i,p), fcs(i,p), ('b', EPS)))
        for i, p in ch: a(pk('fma', ac(i,p), fa(i,p), ac(i,p), x(i,p)))
        for i, p in ch: a(pk('mul', x(i,p), ac(i,p), ('s', S_K0)))
        for k in range(8): a(f"v_exp_f32 {v(X+k)}, {v(X+k)} clamp")
        for i in range(2):
            for k in range(4): a(f"v_max_f32 {v(X+8+4*i+k)}, {v(EPS)}, {v(self.acc(t,i)+k)}")
        for i, p in ch: a(pk('add', x(i,p), x(i,p), x(i,p)+8))
        for i, p in ch: a(f"v_cvt_pk_bf16_f32 {v(d0(i)+p)}, {v(x(i,p))}, {v(x(i,p)+1)}")

    def h_addr(self, ks0_imm, ks_c_mul):
        a = self.a
        a(f"s_lshl_b32 {s(S_T0)}, {s(S_RB)}, 3")
        a(f"s_lshl_b32 {s(S_T1)}, {s(S_R)}, 1")
        a(f"s_add_u32 {s(S_T0)}, {s(S_T0)}, {s(S_T1)}")
        a(f"s_add_u32 {s(S_T0)}, {s(S_T0)}, {s(S_C)}")
        a(f"s_xor_b32 {s(S_T1)}, {s(S_T0)}, 1")
        a(f"s_mul_i32 {s(S_T2)}, {s(S_HG)}, 6")
        a(f"s_mul_i32 {s(S_T3)}, {s(S_C)}, {ks_c_mul}")
        a(f"s_add_u32 {s(S_T2)}, {s(S_T2)}, {s(S_T3)}")
        a(f"s_add_u32 {s(S_T2)}, {s(S_T2)}, {ks0_imm + WS_H2 // 1024}")
        for k, d in ((S_T0, S_OW), (S_T1, S_OM)):
            a(f"s_mul_i32 {s(k)}, {s(k)}, 48")
            a(f"s_add_u32 {s(k)}, {s(k)}, {s(S_T2)}")
            a(f"s_lshl_b32 {s(d)}, {s(k)}, 10")
    def h_flag(self, vn):
        a = self.a; fs = self.cfg.fs
        a(f"buffer_store_dword {v(vn)}, v10, {s(R_WS,4)}, 0 offen sc1")
    def h_flag_addr(self):
        a = self.a; fs = self.cfg.fs
        a(f"s_lshl_b32 {s(S_T0)}, {s(S_RB)}, 1")
        a(f"s_lshr_b32 {s(S_T1)}, {s(S_R)}, 1")
        a(f"s_add_u32 {s(S_T0)}, {s(S_T0)}, {s(S_T1)}")
        a(f"s_lshl_b32 {s(S_T0)}, {s(S_T0)}, 4")
        a(f"s_add_u32 {s(S_T0)}, {s(S_T0)}, {s(S_COL)}")
        a(f"s_lshl_b32 {s(S_T0)}, {s(S_T0)}, 1")
        a(f"s_and_b32 {s(S_T1)}, {s(S_R)}, 1")
        a(f"s_add_u32 {s(S_T0)}, {s(S_T0)}, {s(S_T1)}")
        a(f"s_lshl_b32 {s(S_T0)}, {s(S_T0)}, 1")
        a(f"s_add_u32 {s(S_T0)}, {s(S_T0)}, {s(S_C)}")
        a(f"s_lshl_b32 {s(S_T0)}, {s(S_T0)}, {fs}")
        a(f"s_add_u32 {s(S_XCD)}, {s(S_T0)}, {WS_FH}")
    def h_poll(self, vn):
        a = self.a; fs = self.cfg.fs
        L = self.lab('hp'); Lr = self.lab('hr')
        a(f"s_cmp_lg_u32 {s(S_WID)}, 11")
        a(f"s_cbranch_scc1 {L}")
        a(f"s_lshl_b32 {s(S_T1)}, {s(S_TT)}, {fs + 6}")
        a(f"s_add_u32 {s(S_T1)}, {s(S_T1)}, {WS_FH}")
        a(f"v_lshlrev_b32 v12, {fs}, v1")
        a(f"s_mov_b32 {s(S_IT)}, 0")
        a.label(Lr)
        a(f"buffer_load_dword v13, v12, {s(R_WS,4)}, {s(S_T1)} offen sc1")
        a("s_waitcnt vmcnt(0)")
        a(f"v_cmp_ne_u32 vcc, v13, {v(vn)}")
        a(f"s_cbranch_vccz {L}")
        if self.cfg.psl: a(f"s_sleep {self.cfg.psl}")
        a(f"s_add_u32 {s(S_IT)}, {s(S_IT)}, 1")
        a(f"s_cmp_lt_u32 {s(S_IT)}, 0x40000")
        a(f"s_cbranch_scc1 {Lr}")
        a.label(L)
    def signal(self):
        a = self.a
        a(f"v_mov_b32 v4, {ST_C}")
        a(f"v_mov_b32 v5, 1")
        a("s_mov_b64 exec, 1")
        a("ds_add_u32 v4, v5")
        a("s_mov_b64 exec, -1")
    def h_flag_v(self):
        a = self.a
        a(f"v_mov_b32 v10, {hex(OOB)}")
        a(f"v_writelane_b32 v10, {s(S_XCD)}, 0")
    def h_store(self, p, TMP):
        for i in range(2):
            self.a(f"buffer_store_dwordx4 {v(TMP+p*8+i*4,4)}, v2, {s(R_WS,4)}, {s((S_OW, S_OM)[i])} offen offset:{1024*p} sc1")

    def epi_kv(self):
        a = self.a
        nb = a.nbar
        L15, G, TOK = self.L15, self.G, self.TOK
        self.stamp(2)
        a(f"s_setprio {self.cfg.pe}")
        a(f"s_lshl_b32 {s(S_T0)}, {s(S_R)}, 7")
        a(f"s_lshl_b32 {s(S_T1)}, {s(S_C)}, 6")
        a(f"s_add_u32 {s(S_T0)}, {s(S_T0)}, {s(S_T1)}")
        a(f"s_add_u32 {s(S_T0)}, {s(S_T0)}, {ST}")
        a(f"v_lshl_add_u32 v2, {v(G)}, 4, {s(S_T0)}")
        a(f"v_xor_b32 v3, 64, v2")
        a(f"s_mul_i32 {s(S_T0)}, {s(S_C)}, 448")
        a(f"s_add_u32 {s(S_T0)}, {s(S_T0)}, {ST_CS}")
        a(f"v_lshl_add_u32 v4, {v(L15)}, 2, {s(S_T0)}")
        a(f"v_lshl_add_u32 v5, {v(G)}, 4, {s(S_T0)}")
        a(f"v_xor_b32 v6, 64, {v(TOK)}")
        a(f"s_lshl_b32 {s(S_T0)}, {s(S_C)}, 6")
        a(f"s_add_u32 {s(S_T0)}, {s(S_T0)}, {B1L}")
        a(f"v_lshl_add_u32 v7, {v(G)}, 3, {s(S_T0)}")
        AB = 88; CS = 104; A2 = 114; CH = 80; BR = 72
        rd = [f"ds_read_b128 {v(AB,4)}, v2", f"ds_read_b128 {v(AB+4,4)}, v2 offset:512",
              f"ds_read_b128 {v(AB+8,4)}, v3", f"ds_read_b128 {v(AB+12,4)}, v3 offset:512"]
        rd += [f"ds_read_b32 {v(CS+2*t)}, v4 offset:{64*t}" for t in range(5)]
        rd += [f"ds_read_b32 {v(A2)}, {v(TOK)} offset:1024", f"ds_read_b32 {v(A2+2)}, {v(TOK)} offset:1536",
               f"ds_read_b32 {v(A2+4)}, v6 offset:1024", f"ds_read_b32 {v(A2+6)}, v6 offset:1536"]
        for j in range(2):
            rd += [f"ds_read_b128 {v(CH+4*j,4)}, v5 offset:{64*(5+j)}", f"ds_read_b64 {v(BR+2*j,2)}, v7 offset:{32*j}"]
        a(f"v_mov_b32 v8, {ST_N}")
        rd += [f"ds_read_b32 v79, v8"]
        mf = self.p1_mfmas(0, self.YA, self.YB)
        if self.cfg.kvo == 2: mf = mf[10:] + mf[:10]
        interleave(a, mf, rd, 0.8, 2)
        TMP = 124
        def gelu():
            a(f"v_lshlrev_b32 v2, 4, v1")
            self.gelu_consts()
            for j in range(2):
                self.gelu_tile(5 + j, A2, CH + 4*j, BR + 2*j, lambda i: TMP + 4*i + 2*j, 148)
            self.h_store(0, TMP)
        if self.cfg.kvo == 2:
            a("s_setprio 3")
            a("s_waitcnt lgkmcnt(0)")
            gelu()
            a(f"s_setprio {self.cfg.pe}")
        EPS = 76
        a(f"v_mov_b32 {v(EPS)}, {lit(1e-6)}")
        a(f"v_mov_b32 {v(EPS+2)}, {lit(-1e-6)}")
        a(f"s_mov_b32 {s(S_K0)}, {lit(LOG2E)}")
        a("s_waitcnt lgkmcnt(0)")
        self.stamp(3)
        FR = 124; X = 148
        fa = lambda i, p: AB + 8*i + 2*p
        fb = lambda i, p: AB + 8*i + 4 + 2*p
        ch = [(i, p) for i in range(2) for p in range(2)]
        for t in (0, 1):
            self.phi_tile(t, fa, fb, lambda i, p: ('b', CS + 2*t), X, EPS, lambda i: FR + 4*t + 2*i)
        self.phi_tile(2, fa, fb, lambda i, p: ('b', CS + 4), X, EPS, lambda i: FR + 8 + 2*i)
        for i, p in ch: a(pk('add', X+4*i+2*p, self.acc(2,i)+2*p, ('b', EPS+2)))
        for i, p in ch: a(f"v_cvt_pk_bf16_f32 {v(FR+12+2*i+p)}, {v(X+4*i+2*p)}, {v(X+4*i+2*p+1)}")
        for t in (3, 4):
            for i, p in ch: a(pk('mul', X+4*i+2*p, fb(i,p), ('b', CS+2*t)))
            for i, p in ch: a(pk('fma', X+4*i+2*p, fa(i,p), self.acc(t,i)+2*p, X+4*i+2*p))
            for i, p in ch: a(f"v_cvt_pk_bf16_f32 {v(FR+4*(t+1)+2*i+p)}, {v(X+4*i+2*p)}, {v(X+4*i+2*p+1)}")
        a(f"v_cmp_gt_u32 vcc, 8, {v(L15)}")
        for r in range(4): a(f"v_cndmask_b32 {v(FR+12+r)}, {v(FR+12+r)}, {v(self.ONES)}, vcc")
        self.stamp(4)
        pairs = [(0, 0), (0, 1), (1, 0), (1, 1), (1, 2), (2, 0), (2, 1), (2, 2)]
        KVD = 12
        for j, (td, te) in enumerate(pairs):
            a(f"v_mfma_f32_16x16x32_bf16 {v(KVD+4*j,4)}, {v(FR+4*td,4)}, {v(FR+12+4*te,4)}, 0")
        a(f"v_mul_u32_u24 v2, 336, {v(G)}")
        a(f"v_add_u32 v2, {s(S_OA)}, v2")
        a(f"v_lshl_add_u32 v3, {v(L15)}, 4, v2")
        a(f"v_add_u32 v4, {-128 & 0xffffffff}, v3")
        a(f"v_add_u32 v5, {(4*336 - 128 - 320) & 0xffffffff}, v3")
        a(f"v_add_u32 v6, {4*336 - 128}, v3")
        a(f"v_cmp_eq_u32 vcc, 0, {v(G)}")
        a(f"v_cndmask_b32 v5, v5, v6, vcc")
        a(f"v_add_u32 v6, {8*336 - 128 - 320}, v3")
        a(f"v_cmp_eq_u32 vcc, 0, {v(L15)}")
        for td in range(3):
            a(f"v_add_u32 v10, {4*td*336 + 320}, v2")
            a(f"v_cndmask_b32 {v(7+td)}, {v(4+td)}, v10, vcc")
        def valid(td, te, l):
            col = l & 15; g = l >> 4; dqg = 4 * td + g
            if dqg > 9: return False
            hh = dqg // 5
            if te == 0:
                if col == 0: return True
                if col < 8: return False
            eg = col - 8 + 16 * te
            return eg // 20 == hh
        tot = 0
        for j, (td, te) in enumerate(pairs):
            m = sum(1 << l for l in range(64) if valid(td, te, l)); tot += bin(m).count('1')
            exec_mask(a, m)
            a(f"ds_write_b128 {v(7+td if te == 0 else 4+td)}, {v(KVD+4*j,4)} offset:{256*te}")
        assert tot == 210
        a("s_mov_b64 exec, -1")
        a(f"v_lshlrev_b32 v3, 4, v0")
        a(f"v_add_u32 v4, {SCR}, v3")
        a(f"v_mov_b32 v5, {hex(OOB)}")
        a(f"v_cmp_gt_u32 vcc, 420, v0")
        a(f"v_cndmask_b32 v3, v5, v3, vcc")
        if self.cfg.kvo == 1: gelu()
        a("s_waitcnt lgkmcnt(0)")
        self.stamp(5)
        a("s_barrier")
        for r in range(4): a(f"ds_read_b128 {v(12+4*r,4)}, v4 offset:{6720*r}")
        for e in range(4): a(f"s_mov_b32 {s(S_T0+e)}, {hex(0x07060500 + e)}")
        a("s_waitcnt lgkmcnt(0)")
        for p in range(2): a(pk('add', 12+2*p, 12+2*p, 16+2*p))
        for p in range(2): a(pk('add', 20+2*p, 20+2*p, 24+2*p))
        for p in range(2): a(pk('add', 12+2*p, 12+2*p, 20+2*p))
        for e in range(4): a(f"v_perm_b32 {v(12+e)}, {v(12+e)}, v79, {s(S_T0+e)}")
        a(f"buffer_store_dwordx4 v[12:15], v3, {s(R_WS,4)}, {s(S_CNT)} offen sc1")
        self.stamp(7)
        if self.cfg.kvo == 0: gelu()
        a(f"v_lshlrev_b32 v2, 4, v1")
        self.signal()
        self.stamp(9)
        self.nb_c_kv = self.nb_loop + a.nbar - nb + 1
        a.nbar = nb
        a("s_branch Lp2")

    def epi_q(self):
        a = self.a
        nb = a.nbar
        L15, G, TOK = self.L15, self.G, self.TOK
        self.stamp(2)
        a(f"s_setprio {min(3, self.cfg.pe + 1)}")
        a(f"s_mul_i32 {s(S_T0)}, {s(S_C)}, 448")
        a(f"s_add_u32 {s(S_T0)}, {s(S_T0)}, {ST_CS}")
        a(f"v_lshl_add_u32 v5, {v(G)}, 4, {s(S_T0)}")
        a(f"v_xor_b32 v6, 64, {v(TOK)}")
        a(f"s_lshl_b32 {s(S_T0)}, {s(S_C)}, 7")
        a(f"s_add_u32 {s(S_T0)}, {s(S_T0)}, {B1L}")
        a(f"v_lshl_add_u32 v7, {v(G)}, 3, {s(S_T0)}")
        A2 = 68; A1 = 112; BR = 76; CS = 84
        rd = [f"ds_read_b32 {v(A2)}, {v(TOK)} offset:1024", f"ds_read_b32 {v(A2+2)}, {v(TOK)} offset:1536",
              f"ds_read_b32 {v(A2+4)}, v6 offset:1024", f"ds_read_b32 {v(A2+6)}, v6 offset:1536"]
        for j in range(4):
            rd += [f"ds_read_b128 {v(CS+4*(3+j),4)}, v5 offset:{64*(3+j)}", f"ds_read_b64 {v(BR+2*j,2)}, v7 offset:{32*j}"]
        rd += [f"ds_read_b32 {v(A1)}, {v(TOK)}", f"ds_read_b32 {v(A1+2)}, {v(TOK)} offset:512",
               f"ds_read_b32 {v(A1+4)}, v6", f"ds_read_b32 {v(A1+6)}, v6 offset:512"]
        rd += [f"ds_read_b128 {v(CS+4*t,4)}, v5 offset:{64*t}" for t in range(3)]
        mf = self.p1_mfmas(1, self.YA, self.YB)
        mf = mf[6:] + mf[:6]
        interleave(a, mf, rd, 0.8, 2)
        a(f"v_lshlrev_b32 v2, 4, v1")
        self.gelu_consts()
        a("s_waitcnt lgkmcnt(0)")
        self.stamp(3)
        TMP = 124
        for j in range(4):
            self.gelu_tile(3 + j, A2, CS + 4*(3+j), BR + 2*j, lambda i: TMP + (j >> 1)*8 + 4*i + 2*(j & 1), 140)
            if j & 1: self.h_store(j >> 1, TMP)
        a(f"s_setprio {self.cfg.pe}")
        self.stamp(5)
        a(f"s_cmp_eq_u32 {s(S_C)}, 0")
        a(f"s_cbranch_scc1 Lq_phi")
        a.label('Lq_bar')
        a("s_waitcnt vmcnt(0)")
        self.signal()
        self.stamp(8)
        a(f"s_cmp_eq_u32 {s(S_C)}, 0")
        a(f"s_cbranch_scc1 Lq_after")
        a.label('Lq_phi')
        PQ = 152; EPS = 76; X = 112
        a(f"v_mov_b32 {v(EPS)}, {lit(1e-6)}")
        a(f"s_mov_b32 {s(S_K0)}, {lit(LOG2E)}")
        X = 96
        for t in range(3):
            self.phi_tile(t, lambda i, p: ('b', A1+4*i), lambda i, p: ('b', A1+4*i+2), lambda i, p: CS+4*t+2*p, X, EPS,
                          (lambda i: PQ + 4*i + 2*t) if t < 2 else (lambda i: PQ + 8 + 2*i))
        self.stamp(6)
        self.stamp(7)
        a(f"s_cmp_eq_u32 {s(S_C)}, 0")
        a(f"s_cbranch_scc1 Lq_bar")
        a.label('Lq_after')
        a(f"s_lshl_b32 {s(S_T1)}, {s(S_C)}, 12")
        a(f"s_add_u32 {s(S_T1)}, {s(S_T1)}, {KVT}")
        a(f"v_lshl_add_u32 v140, v1, 4, {s(S_T1)}")
        a(f"v_lshl_add_u32 v141, v1, 3, {s(S_T1)}")
        a(f"s_lshl_b32 {s(S_T1)}, {s(S_R)}, 5")
        a(f"s_lshl_b32 {s(S_T2)}, {s(S_C)}, 4")
        a(f"s_add_u32 {s(S_T1)}, {s(S_T1)}, {s(S_T2)}")
        a(f"v_add_u32 v142, {s(S_T1)}, {v(L15)}")
        a(f"v_xor_b32 v143, 16, v142")
        a(f"s_mul_i32 {s(S_T1)}, {s(S_C)}, 80")
        a(f"s_add_u32 {s(S_T1)}, {s(S_T1)}, {OEX}")
        for i in range(2):
            a(f"v_mul_u32_u24 {v(142+i)}, 160, {v(142+i)}")
            a(f"v_add_u32 {v(142+i)}, {s(S_T1)}, {v(142+i)}")
            a(f"v_lshl_add_u32 {v(144+i)}, {v(G)}, 1, {v(142+i)}")
            a(f"v_lshl_add_u32 {v(142+i)}, {v(G)}, 3, {v(142+i)}")
        self.stamp(9)
        self.nb_c_q = self.nb_loop + a.nbar - nb + 1
        a.nbar = nb

    def o_block(self):
        a = self.a
        a.label('Lob')
        F = 124; PQ = 152
        U = [[32, 36, 40], [44, 48, 148]]
        R = [146, 166]
        for k in range(3): a(f"ds_read_b128 {v(F+4*k,4)}, v140 offset:{1024*k}")
        a(f"ds_read_b64 {v(F+12,2)}, v141 offset:3072")
        a(f"ds_read_b64 {v(F+14,2)}, v141 offset:3584")
        a("s_waitcnt lgkmcnt(0)")
        for i in range(2):
            for k in (1, 2, 0):
                a(f"v_mfma_f32_16x16x32_bf16 {v(U[i][k],4)}, {v(F+4*k,4)}, {v(PQ+4*i,4)}, 0")
        for i in range(2):
            for k in (1, 2):
                a(f"v_mfma_f32_16x16x16_bf16 {v(U[i][k],4)}, {v(F+12+2*(k-1),2)}, {v(PQ+8+2*i,2)}, {v(U[i][k],4)}")
        for i in range(2):
            u = U[i][1]
            a(f"v_add_f32 {v(u+1)}, {lit(1e-6)}, {v(u+1)}")
            a(f"v_add_f32 {v(u+2)}, {lit(1e-6)}, {v(u+2)}")
            a(f"v_rcp_f32 {v(u+1)}, {v(u+1)}")
            a(f"v_rcp_f32 {v(u+2)}, {v(u+2)}")
        for i in range(2):
            u0, u1, u2 = U[i]
            for r in range(4): a(f"v_mul_f32 {v(u0+r)}, {v(u0+r)}, {v(u1+1)}")
            for r in range(4): a(f"v_mul_f32 {v(u2+r)}, {v(u2+r)}, {v(u1+2)}")
            a(f"v_mul_f32 {v(u1)}, {v(u1)}, {v(u1+1)}")
            a(f"v_mul_f32 {v(u1+3)}, {v(u1+3)}, {v(u1+2)}")
            a(f"v_cvt_pk_bf16_f32 {v(u0)}, {v(u0)}, {v(u0+1)}")
            a(f"v_cvt_pk_bf16_f32 {v(u0+1)}, {v(u0+2)}, {v(u0+3)}")
            a(f"v_cvt_pk_bf16_f32 {v(u2)}, {v(u2)}, {v(u2+1)}")
            a(f"v_cvt_pk_bf16_f32 {v(u2+1)}, {v(u2+2)}, {v(u2+3)}")
            a(f"v_cvt_pk_bf16_f32 {v(u1)}, {v(u1)}, {v(u1+3)}")
            a(f"ds_write_b64 {v(142+i)}, {v(u0,2)}")
            a(f"ds_write_b64 {v(142+i)}, {v(u2,2)} offset:40")
            a(f"ds_write_b16 {v(144+i)}, {v(u1)} offset:32")
            a(f"ds_write_b16_d16_hi {v(144+i)}, {v(u1)} offset:72")
        self.stamp(13)
        a(f"s_cmp_lg_u32 {s(S_C)}, 0")
        a(f"s_cbranch_scc1 Lobr_1")
        a(f"s_branch Lobr_0")

    AM = 12; AS = 32; P2X = 52; P2Y = 72; AR = 92; OR = 124
    def p2_pre_setup(self):
        a = self.a
        a(f"s_lshl_b32 {s(S_T2)}, {s(S_TT)}, 2")
        a(f"s_add_u32 {s(S_T2)}, {s(S_T2)}, {s(S_R)}")
        a(f"s_mul_i32 {s(S_OH)}, {s(S_T2)}, {48*1024}")
        a(f"s_mul_i32 {s(S_T3)}, {s(S_C)}, {24*1024}")
        a(f"s_add_u32 {s(S_OH)}, {s(S_OH)}, {s(S_T3)}")
        a(f"s_add_u32 {s(S_OH)}, {s(S_OH)}, {WS_H2}")
        a(f"s_mul_i32 {s(S_NONCE)}, {s(S_T2)}, {8*2560}")
        a(f"s_mul_i32 {s(S_T3)}, {s(S_C)}, {4*2560}")
        a(f"s_add_u32 {s(S_NONCE)}, {s(S_NONCE)}, {s(S_T3)}")
        a(f"s_add_u32 {s(S_NONCE)}, {s(S_NONCE)}, {WS_O2}")
        self.rot2(S_KC)
    def hload(self, j):
        a = self.a
        if j % 2 == 0:
            self.chunk_id(S_OA, S_T3, j // 2)
            a(f"s_lshl_b32 {s(S_OA)}, {s(S_OA)}, 11")
            a(f"s_add_u32 {s(S_OA)}, {s(S_OA)}, {s(S_OH)}")
        a(f"buffer_load_dwordx4 {v(self.AR+4*(j%8),4)}, v2, {s(R_WS,4)}, {s(S_OA)} offen offset:{1024*(j%2)} {self.cfg.hsc}")
    def p2_pre_loads(self, j0, j1):
        for j in range(j0, j1): self.hload(j)

    def phase2(self):
        a = self.a
        a.label('Lp2')
        a(f"s_cmp_lg_u32 {s(S_C)}, 0")
        a(f"s_cbranch_scc1 Lp2_1")
        for kap in range(2): self.phase2k(kap)

    def phase2k(self, kap):
        a = self.a; cfg = self.cfg
        nb = a.nbar
        a.label(f"Lp2_{kap}")
        AM, AS, XB, YB, AR, OR = self.AM, self.AS, self.P2X, self.P2Y, self.AR, self.OR
        VB = 4
        M = "v_mfma_f32_16x16x32_bf16"
        a(f"v_add_u32 v4, {kap*10240}, v2")
        a(f"v_add_u32 v5, {SLOT + kap*10240}, v2")
        a(f"v_add_u32 v6, {2*SLOT + kap*10240}, v2")
        q = [('A', j) for j in range(cfg.ramp)]
        hn = [cfg.ramp]
        def hload_upto(n, cap):
            while hn[0] < min(n, 24) and cap > 0:
                self.hload(hn[0]); q.append(('A', hn[0])); hn[0] += 1; cap -= 1
        ol = []
        for P in range(2):
            for i5 in range(4):
                ol.append((P, i5 >> 1, f"buffer_load_dwordx4 {v(OR+4*(5*P+i5),4)}, v2, {s(R_WS,4)}, {s(S_T0)} offen offset:{1024*(i5&1)} sc1", 24 + 5*P + i5))
            for hh in range(2):
                ol.append((P, hh, f"buffer_load_dwordx2 {v(OR+4*(5*P+4)+2*hh,2)}, v3, {s(R_WS,4)}, {s(S_T0)} offen offset:2048 sc1", 24 + 5*P + 4))
        def oloads(n):
            for _ in range(n):
                if not ol: return
                P, hh, txt, st = ol.pop(0)
                a(f"s_add_u32 {s(S_T0)}, {s(S_NONCE)}, {(2*P+hh)*2560}")
                a(txt); q.append(('A', st))
        def wait(tag):
            assert not any(o[3] == tag[1] for o in ol)
            idx = [k for k, t in enumerate(q) if t == tag]
            if not idx: return
            n = sum(1 for t in q[idx[-1]+1:] if t[0] != 'S')
            a(f"s_waitcnt vmcnt({n})")
            del q[:idx[-1] + 1]
        def areg(j): return AR + 4 * (j % 8) if j < 24 else OR + 4 * (j - 24)
        def reads(j, B):
            i = j // 2; base = RING[i % 6]; vb = VB + base // SLOT; off = base % SLOT + (j & 1) * 5120
            return [f"ds_read_b128 {v(B+4*c,4)}, {v(vb)} offset:{off + 1024*c}" for c in range(5)]
        def mfmas(j, B):
            ac = AM if j < 24 else AS
            first = j == 24 or (j == 0 and kap == 1)
            return [f"{M} {v(ac+4*c,4)}, {v(B+4*c,4)}, {v(areg(j),4)}, {'0' if first else v(ac+4*c,4)}" for c in range(5)]
        lq = []
        def lds(txt, tag): a(txt); lq.append(tag)
        def lwait(tag):
            idx = [k for k, t in enumerate(lq) if t == tag]
            if not idx: return
            a(f"s_waitcnt lgkmcnt({len(lq) - 1 - idx[-1]})")
            del lq[:idx[-1] + 1]
        own = [0, 1, 2] if kap == 0 else [3, 4]
        give = [c for c in range(5) if c not in own]
        a(f"v_lshlrev_b32 v3, 3, v1")
        a(f"v_mov_b32 v167, 0xffff0000")
        def unpack(d, b):
            return [f"v_lshlrev_b32 {v(d)}, 16, {v(b)}", f"v_and_b32 {v(d+1)}, v167, {v(b)}",
                    f"v_lshlrev_b32 {v(d+2)}, 16, {v(b+1)}", f"v_and_b32 {v(d+3)}, v167, {v(b+1)}"]
        if kap == 0:
            a(f"v_lshlrev_b32 v9, 3, {v(self.G)}")
            a(f"v_add_u32 v9, {B2L}, v9")
            for c in range(5): lds(f"ds_read_b64 {v(AS+2*c,2)}, v9 offset:{32*c}", 'b2')
        if kap == 0:
            lwait('b2')
            for c in range(5):
                for x in unpack(AM + 4*c, AS + 2*c): a(x)
        a(f"s_mul_i32 {s(S_T0)}, {s(S_R)}, 5120")
        a(f"s_add_u32 {s(S_T0)}, {s(S_T0)}, {EXB}")
        a(f"v_add_u32 v7, {s(S_T0)}, v2")
        a(f"s_lshl_b32 {s(S_T0)}, {s(S_R)}, 4")
        a(f"v_add_u32 v8, {s(S_T0)}, {v(self.L15)}")
        a(f"v_mul_u32_u24 v8, 160, v8")
        a(f"v_lshl_add_u32 v8, {v(self.G)}, 3, v8")
        a(f"v_add_u32 v8, {XT}, v8")
        G = AR
        self.final_prep()
        a(f"v_mov_b32 v10, {lit(-LOG2E)}")
        X = G + 20
        sil = []
        for k, c in enumerate(own):
            g = G + 4 * k; x = X + 4 * k; R = range(4)
            sil += [f"v_add_f32 {v(g+r)}, {v(g+r)}, {v(AM+4*c+r)}" for r in R]
            sil += [f"v_mul_f32 {v(x+r)}, v10, {v(g+r)}" for r in R]
            sil += [f"v_exp_f32 {v(x+r)}, {v(x+r)}" for r in R]
            sil += [f"v_add_f32 {v(x+r)}, 1.0, {v(x+r)}" for r in R]
            sil += [f"v_rcp_f32 {v(x+r)}, {v(x+r)}" for r in R]
            sil += [f"v_mul_f32 {v(g+r)}, {v(g+r)}, {v(x+r)}" for r in R]
        XR = G + 12
        for k, c in enumerate(own): sil += unpack(AM + 4 * k, XR + 2 * k)
        nsl = 7; per = -(-len(sil) // nsl)
        def take():
            r = sil[:per]; del sil[:per]; return r
        def step(j):
            B = XB if j % 2 == 0 else YB
            mf = mfmas(j, B); rd = reads(j + 2, B) if j + 2 < 34 else []
            ex = take() if j >= 27 else []
            order = give + own if j == 33 else range(5)
            n = 0
            for k, c in enumerate(order):
                a(mf[c])
                if rd: lds(rd[c], j + 2)
                while n < (k + 1) * len(ex) // 5: a(ex[n]); n += 1
            hload_upto(j + 9 if j >= 2 * cfg.kh - 1 else min(j + 9, 16), 3)
        a(f"s_setprio {cfg.pp}")
        a("s_barrier"); a.nbar -= 1
        self.p2_pre_loads(0, cfg.ramp)
        for x in reads(0, XB): lds(x, 0)
        for x in reads(1, YB): lds(x, 1)
        self.stamp(20)
        for j in range(34):
            i = j // 2
            if j % 2 == 0:
                if i >= cfg.ko: oloads((cfg.opc + 1) // 2)
            else:
                if i >= cfg.ko: oloads(cfg.opc // 2)
            if j == 0:
                a("s_waitcnt vmcnt(0)"); q.clear()
            wait(('A', j))
            lwait(j)
            if j == 27: lwait('g')
            if j % 2 == 1 and i <= 11:
                a("s_barrier"); self.stamp(21 + i)
            if j == 26:
                lwait('mx')
                a("s_barrier"); self.stamp(33)
                for k, c in enumerate(own):
                    lds(f"ds_read_b128 {v(G+4*k,4)}, v7 offset:{1024*c}", 'g')
                    lds(f"ds_read_b64 {v(XR+2*k,2)}, v8 offset:{32*c}", 'g')
            step(j)
            if j == 2 * cfg.ka - 1:
                a(f"s_cmp_lg_u32 {s(S_TY)}, 0")
                a(f"s_cbranch_scc1 Lob")
                a.label(f"Lobr_{kap}")
            if j == 2 * cfg.ka + 1 - 1: pass
            if j == 24:
                for c in give: lds(f"ds_write_b128 v7, {v(AM+4*c,4)} offset:{1024*c}", 'mx')
        assert not ol and not sil
        for c in give: a(f"ds_write_b128 v7, {v(AS+4*c,4)} offset:{1024*c}")
        X = AM
        a("s_waitcnt lgkmcnt(0)")
        a("s_barrier")
        for k, c in enumerate(own): a(f"ds_read_b128 {v(XB+4*k,4)}, v7 offset:{1024*c}")
        a("s_waitcnt lgkmcnt(0)")
        prs = [(k, c, p) for k, c in enumerate(own) for p in range(2)]
        for k, c, p in prs: a(pk('add', XB+4*k+2*p, XB+4*k+2*p, AS+4*c+2*p))
        for k, c, p in prs: a(pk('fma', X+4*k+2*p, XB+4*k+2*p, G+4*k+2*p, X+4*k+2*p))
        for k, c, p in prs: a(f"v_cvt_pk_bf16_f32 {v(XB+2*k+p)}, {v(X+4*k+2*p)}, {v(X+4*k+2*p+1)}")
        for k, c in enumerate(own): a(f"ds_write_b64 v8, {v(XB+2*k,2)} offset:{32*c}")
        a("s_waitcnt lgkmcnt(0)")
        a("s_barrier")
        self.nb_c_p2 = a.nbar - nb
        a.nbar = nb
        if kap == 0: a("s_branch Lfinal_store")

    def build(self):
        a = self.a
        self.entry()
        self.loader()
        self.compute_setup()
        self.duty(0, self.XA, self.XB)
        self.duty(1, self.YA, self.YB)
        self.pack_blocks()
        self.o_block()
        self.p1_loop(0); self.epi_kv()
        self.p1_loop(1); self.epi_q()
        self.phase2()
        self.final_store()
        assert self.nb_ld_kv == self.nb_c_kv, (self.nb_ld_kv, self.nb_c_kv)
        assert self.nb_ld_q == self.nb_c_q, (self.nb_ld_q, self.nb_c_q)
        assert self.nb_ld_p2 == self.nb_c_p2, (self.nb_ld_p2, self.nb_c_p2)
        body = a.finish()
        head = open('recurrent_scan__linear_attn_block__mixer_channel_mlp__prompt.s.ref').read().split('; Override launch')[0]
        txt = head + f"; @launch grid=(256,1,1) block=(768,1,1) lds={LDS_TOTAL}\n"
        txt += f'.amdgcn_target "amdgcn-amd-amdhsa--gfx950"\n.text\n.globl {NAME}\n.p2align 8\n.type {NAME},@function\n{NAME}:\n'
        txt += body
        txt += f""".section .rodata,"a"
.p2align 6
.amdhsa_kernel {NAME}
  .amdhsa_next_free_vgpr 168
  .amdhsa_next_free_sgpr 102
  .amdhsa_accum_offset 168
  .amdhsa_group_segment_fixed_size 0
  .amdhsa_kernarg_size 88
  .amdhsa_user_sgpr_count 2
  .amdhsa_user_sgpr_kernarg_segment_ptr 1
  .amdhsa_system_sgpr_workgroup_id_x 1
.end_amdhsa_kernel
"""
        return txt

def wg_type(cfg_kw, wg):
    m = cfg_kw.get('map1', Cfg.map1)
    return (wg >> {'A': 5, 'B': 6, 'D': 7}[m]) & 1

def make(**kw):
    cfg = Cfg()
    for k, x in kw.items(): setattr(cfg, k, x)
    return Gen(cfg).build()

if __name__ == '__main__':
    out = sys.argv[1] if len(sys.argv) > 1 else 'recurrent_scan__linear_attn_block__mixer_channel_mlp__prompt.s'
    kw = {}
    for x in sys.argv[2:]:
        k, val = x.split('='); kw[k] = eval(val)
    open(out, 'w').write(make(**kw))
```

```python
import sys, math, struct
from asmlib import *

NAME = 'recurrent_scan__linear_attn_block__mixer_channel_mlp__prompt_kernel'

class Cfg:
    n1 = 8
    diag = False
    ko = 11
    rot2 = (0, 1)
    kh = 5
    map1 = 'D'
    kprot = True
    fs = 7
    psl = 2
    ka = 2
    kvo = 0
    prew = True
    sbar = True
    hsc = 'sc1'
    bsc = 'sc1'
    nh0 = 3
    pe = 2
    pp = 0
    gfirst = False
    staged = (6, 8, 10, 12, 14, 16)
    map2 = 'A'
    opc = 4
    cpw = 11
    pl = 3
    rpm = 1
    rp2 = 3
    wopf = False
    ramp = 2
    xr = 7
    xm = 7
    xd = 11
    rot1 = (1, 3)
    pfs = (0, 1)
    cpn = 8
    cpf = 2
    il1 = (0.75, 3)
    il0 = (0.9, 3)
    prio = 0
    dbgt = False
    light = False

SLOT = 45056
SCR = 3 * SLOT
LDS_TOTAL = 163840
ST = SLOT + 40960
ST_CS = ST + 2048
B1L = SCR + 28160
KVT = SCR
OEX = SCR + 8192
XT = SCR
B2L = ST + 3328
RING = [SLOT, SLOT + 20480, 2 * SLOT, 2 * SLOT + 20480, 0, 20480]
EXB = RING[5]
WS_FH = 0x160000; WS_FK = 0x168000; WS_FO = 0x170000; WS_FP = 9216; WS_FS = 10240
WS_TS = 0x10000
WS_RP = 0x20000; WS_CP = 0x48000
WS_KP = 0x80000; KP_STRIDE = 6784; WS_KT = 0x178000
ST_N = ST + 3072; ST_C = ST + 3076
WS_P2 = 0x200000; WS_O2 = 0x500000; WS_H2 = 0x800000
WS_TS2 = 0xE00000
WS_SIZE = 0xF00000
OOB = 0x40000000
P_X, P_W, P_WO, P_W1, P_B1, P_W2, P_B2, P_OUT, P_DBG, P_WS = 4, 6, 8, 12, 14, 16, 18, 20, 22, 24
S_S0, S_COL = 26, 27
R_X, R_W, R_W1, R_MID, R_WS, R_PK, R_OUT, R_BI = 28, 32, 36, 40, 44, 48, 52, 56
S_WID, S_RB, S_HG, S_TY, S_TT, S_N, S_XCD, S_IDX, S_R, S_C = 60, 61, 62, 63, 64, 65, 66, 67, 68, 69
S_T0, S_T1, S_T2, S_T3 = 70, 71, 72, 73
S_KC, S_OA, S_OW, S_OM, S_OH = 74, 75, 76, 77, 78
S_NONCE, S_CNT, S_U, S_DELTA, S_IT = 79, 80, 81, 82, 83
S_MASK = 84
S_DEST = 86
S_PIDX = 97
S_TS = 98
S_PKO, S_PKS = 100, 101
S_L = S_R
S_K0, S_K1 = 100, 101
VDIAG = 11

LOG2E = 1.4426950408889634
def f2u(x): return struct.unpack('<I', struct.pack('<f', x))[0]
def lit(x): return hex(f2u(x))

def srd(a, r, p, size):
    a(f"s_mov_b32 {s(r)}, {s(p)}")
    a(f"s_and_b32 {s(r+1)}, {s(p+1)}, 0xffff")
    a(f"s_mov_b32 {s(r+2)}, {hex(size)}")
    a(f"s_mov_b32 {s(r+3)}, 0x20000")

def interleave(a, main, fill, last_frac=0.7, first=0):
    n = len(main); m = len(fill); k = 0
    lim = max(1, int(n * last_frac))
    while k < min(first, m): a(fill[k]); k += 1
    for i, x in enumerate(main):
        a(x)
        tgt = first + math.ceil((m - first) * min(i + 1, lim) / lim) if m > first else m
        while k < tgt: a(fill[k]); k += 1
    while k < m: a(fill[k]); k += 1

def pk(op, d, *src):
    ops = []; lo = []; hi = []
    for x in src:
        if isinstance(x, int): assert x % 2 == 0; ops.append(v(x, 2)); lo.append(0); hi.append(1)
        elif isinstance(x, str): ops.append(x); lo.append(0); hi.append(0)
        elif x[0] == 'b': assert x[1] % 2 == 0; ops.append(v(x[1], 2)); lo.append(0); hi.append(0)
        elif x[0] == 's': assert x[1] % 2 == 0; ops.append(s(x[1], 2)); lo.append(0); hi.append(0)
    assert d % 2 == 0
    return f"v_pk_{op}_f32 {v(d,2)}, {', '.join(ops)} op_sel:[{','.join(map(str,lo))}] op_sel_hi:[{','.join(map(str,hi))}]"

def exec_mask(a, m):
    a(f"s_mov_b32 exec_lo, {hex(m & 0xffffffff)}")
    a(f"s_mov_b32 exec_hi, {hex(m >> 32)}")
DIAGMASK = sum(1 << l for l in range(64) if ((l & 15) >> 2) == (l >> 4))

class Gen:
    def __init__(self, cfg):
        self.cfg = cfg
        self.a = Asm()
        self.uid = 0
    def lab(self, p):
        self.uid += 1; return f"L{p}_{self.uid}"

    def stamp(self, i):
        if not self.cfg.diag: return
        a = self.a
        a("s_waitcnt lgkmcnt(0)")
        a(f"s_mov_b32 m0, {s(S_PIDX)}")
        a("s_nop 0")
        a(f"v_writelane_b32 {v(VDIAG)}, {s(S_TS)}, m0")
        a(f"s_memtime {s(S_TS,2)}")
        a(f"s_mov_b32 {s(S_PIDX)}, {i}")

    def dbgt(self, slot):
        if not self.cfg.dbgt: return
        a = self.a
        L = self.lab('dt')
        a(f"s_cmp_lg_u32 {s(S_WID)}, 3")
        a(f"s_cbranch_scc1 {L}")
        a(f"s_cmp_lg_u32 s2, 3")
        a(f"s_cbranch_scc1 {L}")
        a(f"s_memrealtime {s(S_TS,2)}")
        a("s_waitcnt lgkmcnt(0)")
        a(f"v_mov_b32 v120, {s(S_TS)}")
        a(f"s_memtime {s(S_TS,2)}")
        a("s_waitcnt lgkmcnt(0)")
        a(f"v_mov_b32 v121, {s(S_TS)}")
        a(f"v_mov_b32 v122, {8*(slot-1)}")
        a(f"global_store_dwordx2 v122, v[120:121], {s(P_DBG,2)}")
        a.label(L)

    def entry(self):
        a = self.a; cfg = self.cfg
        a(f"s_cmp_ge_u32 s2, 256")
        a(f"s_cbranch_scc1 Lend")
        a(f"s_load_dwordx16 s[4:19], s[0:1], 0")
        a(f"s_load_dwordx4 s[20:23], s[0:1], 64")
        a(f"s_load_dwordx2 s[24:25], s[0:1], 80")
        if cfg.light:
            a(f"s_memrealtime {s(S_TS,2)}")
            a(f"s_memtime {s(S_MASK,2)}")
        if cfg.diag:
            a(f"s_memrealtime {s(S_TS,2)}")
            a(f"s_mov_b32 {s(S_PIDX)}, 0")
            a(f"v_mov_b32 {v(VDIAG)}, 0")
        a(f"v_lshrrev_b32 v2, 6, v0")
        a(f"v_and_b32 v1, 63, v0")
        a(f"v_readfirstlane_b32 {s(S_WID)}, v2")
        a(f"s_and_b32 {s(S_XCD)}, s2, 7")
        a(f"s_lshr_b32 {s(S_IDX)}, s2, 3")
        def field(dst, xs, xm, xl, is_, im):
            a(f"s_bfe_u32 {s(S_T0)}, {s(S_XCD)}, {hex((xm.bit_length() << 16) | xs)}")
            a(f"s_lshl_b32 {s(S_T0)}, {s(S_T0)}, {xl}")
            a(f"s_bfe_u32 {s(S_T1)}, {s(S_IDX)}, {hex((im.bit_length() << 16) | is_)}")
            a(f"s_add_u32 {s(dst)}, {s(S_T0)}, {s(S_T1)}")
        if cfg.map1 == 'A':
            field(S_RB, 1, 3, 2, 0, 3); field(S_HG, 0, 1, 2, 3, 3)
            a(f"s_bfe_u32 {s(S_TY)}, {s(S_IDX)}, 0x10002")
        elif cfg.map1 == 'B':
            field(S_RB, 0, 1, 3, 0, 7); field(S_HG, 1, 3, 1, 4, 1)
            a(f"s_bfe_u32 {s(S_TY)}, {s(S_IDX)}, 0x10003")
        else:
            field(S_RB, 0, 1, 3, 0, 7); field(S_HG, 1, 3, 1, 3, 1)
            a(f"s_bfe_u32 {s(S_TY)}, {s(S_IDX)}, 0x10004")
        a(f"s_lshl_b32 {s(S_COL)}, {s(S_HG)}, 1")
        a(f"s_add_u32 {s(S_COL)}, {s(S_COL)}, {s(S_TY)}")
        a(f"s_mul_i32 {s(S_S0)}, {s(S_RB)}, {cfg.rot1[1]}")
        a(f"s_mul_i32 {s(S_T0)}, {s(S_COL)}, {cfg.rot1[0]}")
        a(f"s_add_u32 {s(S_S0)}, {s(S_S0)}, {s(S_T0)}")
        a(f"s_mul_i32 {s(S_T0)}, {s(S_S0)}, 6554")
        a(f"s_lshr_b32 {s(S_T0)}, {s(S_T0)}, 16")
        a(f"s_mul_i32 {s(S_T0)}, {s(S_T0)}, 10")
        a(f"s_sub_u32 {s(S_S0)}, {s(S_S0)}, {s(S_T0)}")
        a(f"s_cmp_ge_u32 {s(S_WID)}, 4")
        a(f"s_cbranch_scc1 Lcompute")

    def calc_p2map(self):
        a = self.a
        if self.cfg.map2 == 'A':
            a(f"s_lshr_b32 {s(S_T0)}, {s(S_XCD)}, 1")
            a(f"s_lshl_b32 {s(S_T0)}, {s(S_T0)}, 3")
            a(f"s_and_b32 {s(S_T1)}, {s(S_IDX)}, 7")
            a(f"s_add_u32 {s(S_TT)}, {s(S_T0)}, {s(S_T1)}")
            a(f"s_and_b32 {s(S_T0)}, {s(S_XCD)}, 1")
            a(f"s_lshl_b32 {s(S_T0)}, {s(S_T0)}, 2")
            a(f"s_lshr_b32 {s(S_T1)}, {s(S_IDX)}, 3")
            a(f"s_add_u32 {s(S_N)}, {s(S_T0)}, {s(S_T1)}")
        else:
            a(f"s_lshl_b32 {s(S_T0)}, {s(S_XCD)}, 2")
            a(f"s_and_b32 {s(S_T1)}, {s(S_IDX)}, 3")
            a(f"s_add_u32 {s(S_TT)}, {s(S_T0)}, {s(S_T1)}")
            a(f"s_lshr_b32 {s(S_N)}, {s(S_IDX)}, 2")
    def calc_u(self):
        a = self.a
        self.calc_p2map()
        a(f"s_add_u32 {s(S_U)}, {s(S_HG)}, 128")
        a(f"s_cmp_lt_u32 {s(S_RB)}, 4")
        a(f"s_cselect_b32 {s(S_U)}, {s(S_U)}, 255")
        a(f"s_lshl_b32 {s(S_T0)}, {s(S_HG)}, 4")
        a(f"s_add_u32 {s(S_T0)}, {s(S_T0)}, {s(S_RB)}")
        a(f"s_cmp_lg_u32 {s(S_TY)}, 0")
        a(f"s_cselect_b32 {s(S_U)}, {s(S_T0)}, {s(S_U)}")

    def poll_issue(self, vdst, voff, n=1):
        self.a(f"buffer_load_dword{'x2' if n == 2 else ''} {v(vdst, n)}, {v(voff)}, {s(R_WS,4)}, 0 offen sc1")
    def poll_check(self, vdst, voff, nlanes, n=1):
        a = self.a
        L = self.lab('poll'); Ld = self.lab('polld')
        mask = (1 << nlanes) - 1
        a(f"s_mov_b32 {s(S_CNT)}, 0")
        a.label(L)
        a(f"v_cmp_ne_u32 vcc, {s(S_NONCE)}, {v(vdst)}")
        if n == 2:
            a(f"v_cmp_ne_u32 {s(S_MASK,2)}, {s(S_NONCE)}, {v(vdst+1)}")
            a(f"s_or_b64 vcc, vcc, {s(S_MASK,2)}")
        if nlanes < 32:
            a(f"s_and_b32 {s(S_T0)}, vcc_lo, {hex(mask)}")
        else:
            a(f"s_and_b32 {s(S_T0)}, vcc_hi, {hex(mask >> 32)}")
            a(f"s_or_b32 {s(S_T0)}, {s(S_T0)}, vcc_lo")
        a(f"s_cbranch_scc0 {Ld}")
        a(f"s_add_u32 {s(S_CNT)}, {s(S_CNT)}, 1")
        a(f"s_cmp_gt_u32 {s(S_CNT)}, 0x40000")
        a(f"s_cbranch_scc1 {Ld}")
        if self.cfg.psl: a(f"s_sleep {self.cfg.psl}")
        self.poll_issue(vdst, voff, n)
        a("s_waitcnt vmcnt(0)")
        a(f"s_branch {L}")
        a.label(Ld)
    def poll(self, vdst, voff, nlanes, n=1):
        self.poll_issue(vdst, voff, n); self.a("s_waitcnt vmcnt(0)"); self.poll_check(vdst, voff, nlanes, n)
    def only_l(self, l=0):
        L = self.lab('l0')
        self.a(f"s_cmp_lg_u32 {s(S_L)}, {l}")
        self.a(f"s_cbranch_scc1 {L}")
        return L
    def flag_store(self, voff):
        self.a(f"buffer_store_dword v41, {v(voff)}, {s(R_WS,4)}, 0 offen sc1")

    def loader(self):
        a = self.a; cfg = self.cfg
        VO = 12
        V_P2 = 23
        V_FH, V_F2, V_FP, V_FS, V_QK, V_QP, V_QH, V_QO, V_QS = 24, 25, 26, 27, 28, 29, 30, 31, 32
        V_PK = 33
        nb0 = a.nbar
        a(f"s_mov_b32 {s(S_L)}, {s(S_WID)}")
        a(f"s_mov_b32 {s(S_KC)}, {s(S_S0)}")
        if cfg.prio: a(f"s_setprio {cfg.prio}")
        a(f"v_lshrrev_b32 v2, 3, v1")
        a(f"v_lshrrev_b32 v3, 4, v1")
        a(f"v_and_b32 v4, 7, v1")
        a(f"v_xor_b32 v5, v4, v3")
        a(f"s_lshl_b32 {s(S_T0)}, {s(S_RB)}, 2")
        a(f"s_add_u32 {s(S_T0)}, {s(S_T0)}, {s(S_L)}")
        a(f"s_mul_i32 {s(S_T0)}, {s(S_T0)}, {32*1280}")
        a(f"v_mul_u32_u24 v6, 1280, v2")
        a(f"v_lshl_add_u32 v6, v5, 4, v6")
        a(f"v_add_u32 {v(VO)}, {s(S_T0)}, v6")
        a(f"v_xor_b32 v7, 64, {v(VO)}")
        a(f"v_add_u32 {v(VO+1)}, 10240, v7")
        a(f"v_add_u32 {v(VO+2)}, 20480, {v(VO)}")
        a(f"v_add_u32 {v(VO+3)}, 30720, v7")
        a(f"s_lshl_b32 {s(S_DEST)}, {s(S_L)}, 12")
        for n in range(1, 4): a(f"s_add_u32 {s(S_DEST+n)}, {s(S_DEST)}, {1024*n}")
        a(f"s_lshl_b32 {s(S_OA)}, {s(S_KC)}, 7")
        a("s_waitcnt lgkmcnt(0)")
        if cfg.light: a(f"s_mov_b32 s3, {s(S_MASK)}")
        self.stamp(1)
        self.dbgt(2)
        srd(a, R_X, P_X, 2048 * 1280)
        srds = [R_X]*4 + [R_W]*3 + [R_MID]*2 + [R_W1]*2
        soffs = [S_OA]*4 + [S_OW]*3 + [S_OM]*2 + [S_OH]*2
        def dma(k, n):
            a(f"s_add_u32 m0, {s(S_DEST+n)}, {(k % 3) * SLOT}")
            a(f"buffer_load_dwordx4 {v(VO+n if n < cfg.xd or k < 2 else 5)}, {s(srds[n],4)}, {s(soffs[n])} offen lds")
        for n in range(4): dma(0, n)
        srd(a, R_W, P_W, 640 * 3840)
        srd(a, R_W1, P_W1, 640 * 3072)
        def wrow(dst, i, valid_check):
            a(f"v_add_u32 v6, {s(S_T1)}, v1")
            if i: a(f"v_add_u32 v6, {64*i}, v6")
            a(f"v_mul_u32_u24 v7, 6554, v6")
            a(f"v_lshrrev_b32 v7, 16, v7")
            a(f"v_mad_i32_i24 v8, v7, -10, v6")
            a(f"v_lshrrev_b32 v9, 1, v7")
            a(f"v_xor_b32 v9, v9, v7")
            a(f"v_and_b32 v9, 4, v9")
            a(f"v_mul_u32_u24 v9, 3, v9")
            a(f"v_xor_b32 v7, v7, v9")
            a(f"v_mul_u32_u24 v7, 3840, v7")
            a(f"v_lshl_add_u32 v7, v8, 4, v7")
            a(f"v_add_u32 {v(dst)}, {s(S_T2)}, v7")
            if valid_check:
                a(f"v_cmp_gt_u32 vcc, 640, v6")
                a(f"v_mov_b32 v9, {hex(OOB)}")
                a(f"v_cndmask_b32 {v(dst)}, v9, {v(dst)}, vcc")
        a(f"s_mul_i32 {s(S_OW)}, {s(S_KC)}, {64*3840}")
        a(f"s_mul_i32 {s(S_OH)}, {s(S_KC)}, {64*3072}")
        a(f"s_mul_i32 {s(S_T3)}, {s(S_HG)}, 384")
        a(f"s_cmp_lg_u32 {s(S_TY)}, 0")
        a(f"s_cbranch_scc1 Lld_setq")
        for i in range(3): a(f"s_mov_b32 {s(R_MID+i)}, {s(R_W+i)}")
        a(f"s_mov_b32 {s(R_MID+3)}, 0x20000")
        a(f"s_mov_b32 {s(S_OM)}, {s(S_OW)}")
        a(f"v_lshrrev_b32 v6, 1, v4")
        a(f"v_xor_b32 v6, v6, v3")
        a(f"v_and_b32 v7, 1, v4")
        a(f"v_lshl_add_u32 v6, v6, 1, v7")
        a(f"v_and_b32 v7, 4, v2")
        a(f"v_add_u32 v7, v7, v2")
        a(f"v_mul_u32_u24 v7, 3072, v7")
        a(f"v_lshl_add_u32 v6, v6, 4, v7")
        a(f"s_mul_i32 {s(S_T0)}, {s(S_L)}, {16*3072}")
        a(f"s_add_u32 {s(S_T0)}, {s(S_T0)}, {s(S_T3)}")
        a(f"v_add_u32 {v(VO+9)}, {s(S_T0)}, v6")
        a(f"v_add_u32 {v(VO+10)}, {4*3072}, {v(VO+9)}")
        a(f"s_lshl_b32 {s(S_T0)}, {s(S_L)}, 11")
        a(f"s_add_u32 {s(S_DEST+9)}, {s(S_T0)}, 36864")
        a(f"s_add_u32 {s(S_DEST+10)}, {s(S_T0)}, {36864+1024}")
        dma(0, 9); dma(0, 10)
        a(f"s_and_b32 {s(S_T1)}, {s(S_L)}, 1")
        a(f"s_mul_i32 {s(S_T1)}, {s(S_T1)}, 320")
        a(f"s_lshr_b32 {s(S_T2)}, {s(S_L)}, 1")
        a(f"s_mul_i32 {s(S_T2)}, {s(S_T2)}, 1280")
        a(f"s_mul_i32 {s(S_T0)}, {s(S_HG)}, 160")
        a(f"s_add_u32 {s(S_T2)}, {s(S_T2)}, {s(S_T0)}")
        a(f"s_add_u32 {s(S_T2)}, {s(S_T2)}, 1280")
        a(f"s_mul_i32 {s(S_T0)}, {s(S_L)}, 5120")
        for i in range(5):
            a(f"s_add_u32 {s(S_DEST+4+i)}, {s(S_T0)}, {16384 + 1024*i}")
            wrow(VO + 4 + i, i, False)
            dma(0, 4 + i)
        a(f"s_branch Lld_setdone")
        a.label('Lld_setq')
        for i in range(3): a(f"s_mov_b32 {s(R_MID+i)}, {s(R_W1+i)}")
        a(f"s_mov_b32 {s(R_MID+3)}, 0x20000")
        a(f"s_mov_b32 {s(S_OM)}, {s(S_OH)}")
        a(f"s_add_u32 {s(S_T3)}, {s(S_T3)}, 128")
        a(f"v_and_b32 v8, 15, v1")
        a(f"v_lshrrev_b32 v6, 1, v8")
        a(f"v_xor_b32 v6, v6, v3")
        a(f"v_and_b32 v7, 1, v8")
        a(f"v_lshl_add_u32 v6, v6, 1, v7")
        a(f"v_mul_u32_u24 v7, 3072, v3")
        a(f"v_lshl_add_u32 v6, v6, 4, v7")
        a(f"v_xor_b32 v7, 128, v6")
        a(f"s_mul_i32 {s(S_T0)}, {s(S_L)}, {16*3072}")
        a(f"s_add_u32 {s(S_T0)}, {s(S_T0)}, {s(S_T3)}")
        a(f"v_add_u32 {v(VO+7)}, {s(S_T0)}, v6")
        a(f"v_add_u32 v7, {s(S_T0)}, v7")
        a(f"v_add_u32 {v(VO+8)}, {8*3072}, v7")
        a(f"v_add_u32 {v(VO+9)}, {4*3072}, {v(VO+7)}")
        a(f"v_add_u32 {v(VO+10)}, {12*3072}, v7")
        a(f"s_lshl_b32 {s(S_T0)}, {s(S_L)}, 12")
        for i in range(4):
            a(f"s_add_u32 {s(S_DEST+7+i)}, {s(S_T0)}, {26624 + 1024*i}")
            dma(0, 7 + i)
        a(f"s_mul_i32 {s(S_T1)}, {s(S_L)}, 192")
        a(f"s_mul_i32 {s(S_T2)}, {s(S_HG)}, 160")
        a(f"s_mul_i32 {s(S_T0)}, {s(S_L)}, 3072")
        for i in range(3):
            a(f"s_add_u32 {s(S_DEST+4+i)}, {s(S_T0)}, {16384 + 1024*i}")
            if i:
                a(f"s_cmp_eq_u32 {s(S_L)}, 3")
                a(f"s_cselect_b32 {s(S_DEST+4+i)}, {43008 + 1024*(i-1)}, {s(S_DEST+4+i)}")
            wrow(VO + 4 + i, i, i > 0)
            dma(0, 4 + i)
        a.label('Lld_setdone')
        self.stamp(40)
        def advance():
            a(f"s_add_u32 {s(S_KC)}, {s(S_KC)}, 1")
            a(f"s_cmp_eq_u32 {s(S_KC)}, 10")
            a(f"s_cselect_b32 {s(S_KC)}, 0, {s(S_KC)}")
            a(f"s_lshl_b32 {s(S_OA)}, {s(S_KC)}, 7")
            a(f"s_mul_i32 {s(S_OW)}, {s(S_KC)}, {64*3840}")
            a(f"s_mul_i32 {s(S_OH)}, {s(S_KC)}, {64*3072}")
            a(f"s_cmp_lg_u32 {s(S_TY)}, 0")
            a(f"s_cselect_b32 {s(S_OM)}, {s(S_OH)}, {s(S_OW)}")
        n1 = cfg.n1

        def idle_setup():
            srd(a, R_WS, P_WS, WS_SIZE)
            self.calc_u()
            a("v_mov_b32 v42, 0")
            a("v_mov_b32 v40, 0")
            L = self.lab('nc')
            a(f"s_or_b32 {s(S_T0)}, {s(S_L)}, s2")
            a(f"s_cbranch_scc1 {L}")
            a(f"s_load_dword {s(S_T0)}, {s(P_WS,2)}, 0")
            a("s_waitcnt lgkmcnt(0)")
            a(f"s_mul_i32 {s(S_T0)}, {s(S_T0)}, 0x9E3779B1")
            a(f"s_add_u32 {s(S_T0)}, {s(S_T0)}, 0x7F4A7C15")
            a(f"s_cmp_eq_u32 {s(S_T0)}, 0")
            a(f"s_cselect_b32 {s(S_T0)}, 1, {s(S_T0)}")
            a(f"v_mov_b32 v43, {s(S_T0)}")
            a(f"global_store_dword v42, v43, {s(P_DBG,2)} sc1")
            a(f"global_store_dword v42, v43, {s(P_WS,2)} sc1")
            a.label(L)
            a(f"v_add_u32 v0, 512, v0")
            if cfg.xd < 11: a(f"v_mov_b32 v5, {hex(OOB)}")
            a(f"v_lshlrev_b32 v39, 4, v1")
            a(f"v_lshl_add_u32 v10, v1, 2, {s(S_T3)}")
            srd(a, R_BI, P_B1, 3072)
            a(f"v_mov_b32 v6, {hex(OOB)}")
            a(f"v_cmp_eq_u32 vcc, 0, v1")
            fs = cfg.fs; gs = max(7, fs + 4)
            a(f"v_min_u32 v9, 15, v1")
            assert fs == 7
            a(f"v_cmp_gt_u32 {s(S_MASK,2)}, 32, v1")
            a(f"s_lshl_b32 {s(S_T0)}, {s(S_RB)}, {gs}")
            a(f"s_lshl_b32 {s(S_T1)}, {s(S_COL)}, {fs}")
            a(f"s_add_u32 {s(S_T1)}, {s(S_T1)}, {s(S_T0)}")
            a(f"s_add_u32 {s(S_T1)}, {s(S_T1)}, {WS_FH}")
            a(f"v_lshl_add_u32 v7, v1, 2, {s(S_T1)}")
            a(f"v_cndmask_b32 {v(V_FH)}, v6, v7, {s(S_MASK,2)}")
            a(f"s_lshl_b32 {s(S_T1)}, {s(S_HG)}, {fs}")
            a(f"s_add_u32 {s(S_T3)}, {s(S_T0)}, {s(S_T1)}")
            a(f"s_add_u32 {s(S_T3)}, {s(S_T3)}, {WS_FO}")
            a(f"s_cmp_lg_u32 {s(S_TY)}, 0")
            a(f"s_cselect_b32 {s(S_T3)}, {s(S_T3)}, {hex(OOB)}")
            a(f"v_lshl_add_u32 v7, v1, 2, {s(S_T3)}")
            a(f"v_cndmask_b32 {v(V_F2)}, v6, v7, {s(S_MASK,2)}")
            a(f"s_lshl_b32 {s(S_T0)}, {s(S_RB)}, 7")
            a(f"s_and_b32 {s(S_T1)}, {s(S_U)}, 1")
            a(f"s_lshl_b32 {s(S_T1)}, {s(S_T1)}, 9")
            a(f"s_lshr_b32 {s(S_T2)}, {s(S_U)}, 1")
            a(f"s_lshl_b32 {s(S_T2)}, {s(S_T2)}, 2")
            a(f"s_add_u32 {s(S_T1)}, {s(S_T1)}, {s(S_T2)}")
            a(f"s_lshl_b32 {s(S_T2)}, {s(S_RB)}, 4")
            a(f"s_cmp_lg_u32 {s(S_TY)}, 0")
            a(f"s_cselect_b32 {s(S_T2)}, 0, {s(S_T2)}")
            a(f"s_add_u32 {s(S_T1)}, {s(S_T1)}, {s(S_T2)}")
            a(f"s_add_u32 {s(S_T1)}, {s(S_T1)}, {WS_FP}")
            a(f"v_mov_b32 v7, {s(S_T1)}")
            a(f"v_cndmask_b32 {v(V_FP)}, v6, v7, vcc")
            a(f"s_add_u32 {s(S_T0)}, {s(S_T0)}, {WS_FS}")
            a(f"s_lshl_b32 {s(S_T1)}, {s(S_COL)}, 7")
            a(f"s_add_u32 {s(S_T1)}, {s(S_T1)}, {WS_FS + 2048}")
            a(f"s_lshl_b32 {s(S_T2)}, {s(S_S0)}, 2")
            a(f"s_add_u32 {s(S_T3)}, {s(S_T0)}, {s(S_T2)}")
            a(f"s_cmp_lt_u32 {s(S_COL)}, 10")
            a(f"s_cselect_b32 {s(S_T3)}, {s(S_T3)}, {hex(OOB)}")
            a(f"v_mov_b32 v7, {s(S_T3)}")
            a(f"v_cndmask_b32 {v(V_FS)}, v6, v7, vcc")
            a(f"s_add_u32 {s(S_T3)}, {s(S_T1)}, {s(S_T2)}")
            a(f"s_cmp_lt_u32 {s(S_RB)}, 10")
            a(f"s_cselect_b32 {s(S_T3)}, {s(S_T3)}, {hex(OOB)}")
            a(f"v_writelane_b32 {v(V_FS)}, {s(S_T3)}, 1")
            a(f"s_sub_u32 {s(S_T1)}, {s(S_T1)}, 40")
            a(f"v_lshl_add_u32 v7, v1, 2, {s(S_T0)}")
            a(f"v_lshl_add_u32 v8, v1, 2, {s(S_T1)}")
            a(f"v_cmp_gt_u32 vcc, 10, v1")
            a(f"v_cndmask_b32 {v(V_QS)}, v8, v7, vcc")
            a(f"s_lshr_b32 {s(S_T1)}, {s(S_N)}, 2")
            a(f"s_lshl_b32 {s(S_T1)}, {s(S_T1)}, 9")
            a(f"s_add_u32 {s(S_T1)}, {s(S_T1)}, {WS_FP}")
            a(f"v_lshl_add_u32 {v(V_QP)}, v1, 3, {s(S_T1)}")
            a(f"s_and_b32 {s(S_T1)}, {s(S_N)}, 3")
            a(f"s_lshl_b32 {s(S_T1)}, {s(S_T1)}, 4")
            a(f"v_add_u32 v7, {s(S_T1)}, {v(V_QP)}")
            a(f"v_cndmask_b32 {v(V_QP)}, v7, {v(V_QP)}, {s(S_MASK,2)}")
            a(f"s_lshr_b32 {s(S_T1)}, {s(S_TT)}, 1")
            a(f"s_lshl_b32 {s(S_T1)}, {s(S_T1)}, {gs}")
            a(f"s_add_u32 {s(S_T1)}, {s(S_T1)}, {WS_FH}")
            a(f"v_min_u32 v9, 7, v1")
            a(f"v_lshl_add_u32 {v(V_QK)}, v9, {fs + 1}, {s(S_T1)}")
            a(f"v_add_u32 {v(V_QH)}, {1 << fs}, {v(V_QK)}")
            a(f"s_add_u32 {s(S_T1)}, {s(S_T1)}, {WS_FO - WS_FH}")
            a(f"v_lshl_add_u32 {v(V_QO)}, v9, {fs}, {s(S_T1)}")
            a(f"v_and_b32 v6, 15, v1")
            a(f"s_lshl_b32 {s(S_T0)}, {s(S_L)}, 5")
            a(f"v_add_u32 v6, {s(S_T0)}, v6")
            a(f"v_mul_u32_u24 v6, 160, v6")
            a(f"v_lshl_add_u32 v6, v3, 3, v6")
            a(f"v_add_u32 v38, {OEX}, v6")
            a(f"s_lshl_b32 {s(S_T0)}, {s(S_RB)}, 3")
            a(f"s_lshl_b32 {s(S_T1)}, {s(S_L)}, 1")
            a(f"s_add_u32 {s(S_T0)}, {s(S_T0)}, {s(S_T1)}")
            a(f"s_lshl_b32 {s(S_T0)}, {s(S_T0)}, 3")
            a(f"s_add_u32 {s(S_T0)}, {s(S_T0)}, {s(S_HG)}")
            a(f"s_mul_i32 {s(S_T0)}, {s(S_T0)}, 2560")
            a(f"s_add_u32 {s(S_PKS)}, {s(S_T0)}, {WS_O2}")
        def if_pack():
            L = self.lab('pk')
            a(f"s_cmp_gt_u32 {s(S_U)}, 135")
            a(f"s_cbranch_scc1 {L}")
            return L
        def p2_setup():
            a(f"s_mul_i32 {s(S_T0)}, {s(S_N)}, {68*5120}")
            a(f"s_and_b32 {s(S_T1)}, {s(S_L)}, 1")
            a(f"s_mul_i32 {s(S_T1)}, {s(S_T1)}, 5120")
            a(f"s_add_u32 {s(S_T0)}, {s(S_T0)}, {s(S_T1)}")
            a(f"s_add_u32 {s(S_T0)}, {s(S_T0)}, {WS_P2}")
            a(f"v_add_u32 {v(V_P2)}, {s(S_T0)}, v39")
            a(f"s_mul_i32 {s(S_DEST)}, {s(S_L)}, 5120")
            a(f"s_lshr_b32 {s(S_T1)}, {s(S_L)}, 1")
            a(f"s_mul_i32 {s(S_OM)}, {s(S_T1)}, {24*5120}")
            a(f"s_mul_i32 {s(S_OH)}, {s(S_T1)}, {10*5120}")
            a(f"s_add_u32 {s(S_OH)}, {s(S_OH)}, {48*5120}")
            self.rot2(S_KC)
        def p2_off(i):
            if i < 12:
                self.chunk_id(S_OA, S_T0, i)
                a(f"s_mul_i32 {s(S_OA)}, {s(S_OA)}, 10240")
                a(f"s_add_u32 {s(S_OA)}, {s(S_OA)}, {s(S_OM)}")
            else:
                a(f"s_add_u32 {s(S_OA)}, {s(S_OH)}, {(i-12)*10240}")
        def p2_chunk(i):
            p2_off(i)
            a(f"s_add_u32 m0, {s(S_DEST)}, {RING[i % 6]}")
            for j in range(4):
                a(f"buffer_load_dwordx4 {v(V_P2)}, {s(R_WS,4)}, {s(S_OA)} offen offset:{1024*j} {cfg.bsc} lds")
            a(f"s_add_u32 m0, {s(S_DEST)}, {RING[i % 6] + 4096}")
            a(f"s_add_u32 {s(S_OA)}, {s(S_OA)}, 4096")
            a(f"buffer_load_dwordx4 {v(V_P2)}, {s(R_WS,4)}, {s(S_OA)} offen {cfg.bsc} lds")
        def sreg(i): return 48 + 20 * cfg.staged.index(i)
        def p2_stage(i):
            p2_off(i)
            for j in range(4):
                a(f"buffer_load_dwordx4 {v(sreg(i)+4*j,4)}, {v(V_P2)}, {s(R_WS,4)}, {s(S_OA)} offen offset:{1024*j} {cfg.bsc}")
            a(f"s_add_u32 {s(S_OA)}, {s(S_OA)}, 4096")
            a(f"buffer_load_dwordx4 {v(sreg(i)+16,4)}, {v(V_P2)}, {s(R_WS,4)}, {s(S_OA)} offen {cfg.bsc}")
        def p2_put(i):
            base = RING[i % 6]
            for j in range(5):
                a(f"ds_write_b128 {v(2 + base // SLOT)}, {v(sreg(i)+4*j,4)} offset:{base % SLOT + 1024*j}")
        for k in range(10):
            if k + 1 < 10:
                advance()
                for n in range(n1): dma(k + 1, n)
                wait = n1
            else:
                wait = 5 * cfg.pfs[0]
            if k == 0:
                self.stamp(41); idle_setup(); self.stamp(42)
            a(f"s_waitcnt vmcnt({wait})")
            if k == 3:
                L = self.only_l(0)
                a(f"v_readfirstlane_b32 {s(S_NONCE)}, v40")
                Lp = self.lab('np'); Lq = self.lab('nq')
                a(f"s_mov_b32 {s(S_CNT)}, 0")
                a.label(Lp)
                a(f"s_cmp_lg_u32 {s(S_NONCE)}, 0")
                a(f"s_cbranch_scc1 {Lq}")
                a(f"s_add_u32 {s(S_CNT)}, {s(S_CNT)}, 1")
                a(f"s_cmp_gt_u32 {s(S_CNT)}, 0x40000")
                a(f"s_cbranch_scc1 {Lq}")
                a(f"global_load_dword v40, v42, {s(P_DBG,2)} sc1")
                a("s_waitcnt vmcnt(0)")
                a(f"v_readfirstlane_b32 {s(S_NONCE)}, v40")
                a("s_nop 1")
                a(f"s_branch {Lp}")
                a.label(Lq)
                a(f"v_mov_b32 v41, {s(S_NONCE)}")
                a.label(L)
            if k == 7:
                L = self.only_l(0); self.poll_check(44, V_QS, 20); a.label(L)
            if k == 8:
                L = self.only_l(0); self.poll_check(46, V_QP, 34, 2); a.label(L)
            if k == 9: a("s_waitcnt lgkmcnt(0)")
            a("s_barrier")
            self.stamp(2 + k)
            if k == 0: self.dbgt(3)
            if k == 4: self.dbgt(4)
            if k == 1 and cfg.prew:
                L = self.only_l(0)
                a(f"buffer_store_dword v42, {v(V_FH)}, {s(R_WS,4)}, 0 offen sc1")
                a(f"buffer_store_dword v42, {v(V_F2)}, {s(R_WS,4)}, 0 offen sc1")
                a.label(L)
            if k == 2:
                L = self.only_l(0)
                a(f"global_load_dword v40, v42, {s(P_DBG,2)} sc1")
                a.label(L)
            if k == 3:
                L = self.only_l(0); self.flag_store(V_FS); a.label(L)
            if k == 5:
                L = if_pack(); L2 = self.only_l(0); self.flag_store(V_FP); a.label(L2); a.label(L)
            if k == 6:
                L = self.only_l(0); self.poll_issue(44, V_QS); a.label(L)
            if k == 7:
                L = self.only_l(0); self.poll_issue(46, V_QP, 2); a.label(L)
            if k == 7:
                a(f"s_cmp_lt_u32 {s(S_L)}, 2")
                a(f"s_cselect_b32 {s(S_T0)}, {s(S_RB)}, {s(S_COL)}")
                a(f"s_mov_b32 {s(S_T1)}, {WS_CP}")
                a(f"s_cselect_b32 {s(S_T1)}, {WS_RP}, {s(S_T1)}")
                a(f"s_mul_i32 {s(S_T0)}, {s(S_T0)}, 10240")
                a(f"s_add_u32 {s(S_T0)}, {s(S_T0)}, {s(S_T1)}")
                a(f"s_and_b32 {s(S_T1)}, {s(S_L)}, 1")
                a(f"s_mul_i32 {s(S_T1)}, {s(S_T1)}, 5120")
                a(f"s_add_u32 {s(S_T0)}, {s(S_T0)}, {s(S_T1)}")
                a(f"s_mul_i32 {s(S_T2)}, {s(S_L)}, 5120")
                a(f"s_add_u32 m0, {s(S_T2)}, {SCR}")
                for j in range(4):
                    a(f"buffer_load_dwordx4 v39, {s(R_WS,4)}, {s(S_T0)} offen offset:{1024*j} sc1 lds")
                a(f"s_add_u32 m0, {s(S_T2)}, {SCR + 4096}")
                a(f"s_add_u32 {s(S_T0)}, {s(S_T0)}, 4096")
                a(f"buffer_load_dwordx4 v39, {s(R_WS,4)}, {s(S_T0)} offen sc1 lds")
            if k == 8:
                a(f"s_lshr_b32 {s(S_T0)}, {s(S_L)}, 1")
                a(f"s_mul_i32 {s(S_T0)}, {s(S_T0)}, 10240")
                a(f"s_and_b32 {s(S_T1)}, {s(S_L)}, 1")
                a(f"s_lshl_b32 {s(S_T1)}, {s(S_T1)}, 9")
                a(f"s_add_u32 {s(S_T0)}, {s(S_T0)}, {s(S_T1)}")
                a(f"s_add_u32 {s(S_T0)}, {s(S_T0)}, {SCR}")
                a(f"v_lshl_add_u32 v6, v1, 3, {s(S_T0)}")
                for ch in range(10): a(f"ds_read_b64 {v(44+2*ch,2)}, v6 offset:{1024*ch}")
            if k + 1 < 10:
                for n in range(n1, 11): dma(k + 1, n)
            if k == 0:
                L = self.only_l(1)
                a(f"s_mov_b32 m0, {B1L}")
                a(f"buffer_load_dword v10, {s(R_BI,4)}, 0 offen lds")
                a.label(L)
            if k == 8:
                a("s_waitcnt lgkmcnt(0)")
                for ch in range(1, 10):
                    a(f"v_add_f32 v44, v44, {v(44+2*ch)}")
                    a(f"v_add_f32 v45, v45, {v(45+2*ch)}")
                a(f"s_and_b32 {s(S_T1)}, {s(S_L)}, 1")
                a(f"s_lshl_b32 {s(S_T1)}, {s(S_T1)}, 6")
                a(f"v_add_u32 v6, {s(S_T1)}, v1")
                Lc = self.lab('stc'); Ld = self.lab('std')
                a(f"s_cmp_ge_u32 {s(S_L)}, 2")
                a(f"s_cbranch_scc1 {Lc}")
                a(f"v_lshlrev_b32 v6, 2, v6")
                a(f"v_add_u32 v6, {ST}, v6")
                a(f"v_mul_f32 v46, {lit(1/640)}, v44")
                a(f"v_mul_f32 v47, v46, v46")
                a(f"v_mov_b32 v48, {lit(1/640)}")
                a(f"v_fma_f32 v45, v45, v48, -v47")
                a(f"v_max_f32 v45, 0, v45")
                a(f"v_add_f32 v47, {lit(1e-5)}, v45")
                a(f"v_rsq_f32 v48, v47")
                a(f"v_mul_f32 v49, v48, v48")
                a(f"v_fmaak_f32 v49, v49, v45, {lit(1e-5)}")
                a(f"v_rsq_f32 v49, v49")
                a(f"v_mul_f32 v50, v48, v49")
                a(f"v_mul_f32_e64 v51, -v46, v48")
                a(f"v_mul_f32_e64 v52, -v46, v50")
                a(f"ds_write_b32 v6, v48")
                a(f"ds_write_b32 v6, v51 offset:512")
                a(f"ds_write_b32 v6, v50 offset:1024")
                a(f"ds_write_b32 v6, v52 offset:1536")
                a(f"s_branch {Ld}")
                a.label(Lc)
                a(f"v_lshlrev_b32 v6, 3, v6")
                a(f"v_add_u32 v6, {ST_CS}, v6")
                a(f"ds_write_b64 v6, v[44:45]")
                a.label(Ld)
                L = self.only_l(0)
                a(f"v_mov_b32 v6, {ST_N}")
                a(f"ds_write2_b32 v6, v41, v42 offset1:1")
                a.label(L)
                srd(a, R_BI, P_B2, 1280)
                L = self.only_l(3)
                a(f"s_mul_i32 {s(S_T1)}, {s(S_N)}, 160")
                a(f"v_lshlrev_b32 v6, 2, v1")
                a(f"s_mov_b32 m0, {B2L}")
                a(f"buffer_load_dword v6, {s(R_BI,4)}, {s(S_T1)} offen lds")
                a.label(L)
                p2_setup()
                for c in range(cfg.pfs[0]): p2_chunk(c)
            if k == 9:
                a(f"s_lshl_b32 {s(S_T0)}, {s(S_L)}, 11")
                a(f"s_add_u32 {s(S_T0)}, {s(S_T0)}, {KVT}")
                a(f"v_add_u32 v6, {s(S_T0)}, v39")
                for e in range(4): a(f"v_mov_b32 {v(44+e)}, 0")
                a(f"ds_write_b128 v6, v[44:47]")
                a(f"ds_write_b128 v6, v[44:47] offset:1024")
                for c in range(cfg.pfs[0], sum(cfg.pfs)): p2_chunk(c)
        a("s_waitcnt lgkmcnt(0)")
        a("s_barrier")
        self.stamp(12); self.dbgt(5)
        a(f"s_setprio {cfg.pl}")
        for c in range(sum(cfg.pfs), 6): p2_chunk(c)
        if cfg.wopf:
            nsh = 8 if cfg.map2 == 'A' else 4
            per = 102400 // nsh // 4
            a(f"s_and_b32 {s(S_T0)}, {s(S_IDX)}, {nsh - 1}")
            a(f"s_lshl_b32 {s(S_T0)}, {s(S_T0)}, 2")
            a(f"s_add_u32 {s(S_T0)}, {s(S_T0)}, {s(S_L)}")
            a(f"s_mul_i32 {s(S_T0)}, {s(S_T0)}, {per}")
            a(f"s_mul_i32 {s(S_T1)}, {s(S_N)}, {68*5120}")
            a(f"s_add_u32 {s(S_T0)}, {s(S_T0)}, {s(S_T1)}")
            a(f"s_add_u32 {s(S_T0)}, {s(S_T0)}, {WS_P2 + 48*5120}")
            a(f"v_min_u32 v6, {per // 128 - 1}, v1")
            a(f"v_lshlrev_b32 v6, 7, v6")
            a(f"buffer_load_dword v94, v6, {s(R_WS,4)}, {s(S_T0)} offen sc1")
        a(f"v_mov_b32 v6, {ST_N}")
        a(f"ds_read_b32 v41, v6")
        a(f"s_cmp_lg_u32 {s(S_TY)}, 0")
        a(f"s_cbranch_scc1 Lld_eq")
        self.l1_setup()
        a("s_barrier")
        self.stamp(14)
        a("s_branch Lld_e4")
        a.label('Lld_eq')
        for n in range(2): self.kvt_addr(n)
        a(f"s_mul_i32 {s(S_T0)}, {s(S_HG)}, {KP_STRIDE}")
        a(f"s_add_u32 {s(S_PKO)}, {s(S_T0)}, {WS_KT}")
        a.label('Lld_e4')
        L2 = self.lab('c8'); Lr = self.lab('c8r'); Lg = self.lab('c8g')
        a(f"s_cmp_ge_u32 {s(S_L)}, 2")
        a(f"s_cbranch_scc1 {L2}")
        a(f"v_mov_b32 v6, {ST_C}")
        a(f"s_mov_b32 {s(S_CNT)}, 0")
        a.label(Lr)
        a(f"ds_read_b32 v7, v6")
        a("s_waitcnt lgkmcnt(0)")
        a(f"v_readfirstlane_b32 {s(S_T0)}, v7")
        a(f"s_cmp_ge_u32 {s(S_T0)}, 8")
        a(f"s_cbranch_scc1 {Lg}")
        a("s_sleep 1")
        a(f"s_add_u32 {s(S_CNT)}, {s(S_CNT)}, 1")
        a(f"s_cmp_lt_u32 {s(S_CNT)}, 0x400000")
        a(f"s_cbranch_scc1 {Lr}")
        a.label(Lg)
        self.stamp(16)
        L = self.only_l(0)
        Lk = self.lab('fk')
        a(f"s_cmp_eq_u32 {s(S_TY)}, 0")
        a(f"s_cbranch_scc1 {Lk}")
        self.flag_store(V_FH); a("s_waitcnt vmcnt(0)")
        a.label(Lk)
        self.poll(44, V_QH, 8); a.label(L)
        a.label(L2)
        a("s_waitcnt lgkmcnt(0)")
        self.l1_run()
        a("s_barrier")
        self.stamp(19)
        self.nb_ld_kv = a.nbar - nb0
        self.nb_ld_q = a.nbar - nb0 - 1
        nb3 = a.nbar
        pend = []
        ka = cfg.ka
        def if_q():
            L = self.lab('iq')
            a(f"s_cmp_eq_u32 {s(S_TY)}, 0")
            a(f"s_cbranch_scc1 {L}")
            return L
        def kt_loads():
            for n in range(2): a(f"buffer_load_dwordx4 {v(48+4*n,4)}, {v(60+n)}, {s(R_WS,4)}, {s(S_PKO)} offen sc1")
        for i in range(13):
            if i in (ka + 3, 12):
                a("s_waitcnt vmcnt(0)"); pend.clear()
            elif i + 1 in pend:
                k = pend.index(i + 1)
                a(f"s_waitcnt vmcnt({5 * (len(pend) - 1 - k)})"); del pend[:k+1]
            if i == ka:
                L = if_q(); Lr = self.lab('kr'); Lg = self.lab('kg')
                a(f"s_waitcnt vmcnt({5 if ka >= 2 else 0})")
                a(f"s_mov_b32 {s(S_CNT)}, 0")
                a.label(Lr)
                a(f"v_cmp_ne_u32 vcc, v50, v41")
                a(f"v_cmp_ne_u32 {s(S_MASK,2)}, v54, v41")
                a(f"s_and_b64 {s(S_MASK,2)}, {s(S_MASK,2)}, {s(S_DEST+4,2)}")
                a(f"s_or_b64 vcc, vcc, {s(S_MASK,2)}")
                a(f"s_cbranch_scc0 {Lg}")
                a(f"s_add_u32 {s(S_CNT)}, {s(S_CNT)}, 1")
                a(f"s_cmp_gt_u32 {s(S_CNT)}, 0x40000")
                a(f"s_cbranch_scc1 {Lg}")
                if cfg.psl: a(f"s_sleep {cfg.psl}")
                kt_loads()
                a("s_waitcnt vmcnt(0)")
                a(f"s_branch {Lr}")
                a.label(Lg)
                for n in range(2):
                    Lz = self.lab('kz')
                    if n:
                        a(f"s_mov_b64 exec, {s(S_DEST+4,2)}")
                        a(f"s_cbranch_execz {Lz}")
                    a(f"ds_write_b64 {v(56+n)}, {v(48+4*n,2)}")
                    a(f"s_mov_b64 exec, {s(S_DEST+6+2*n,2)}")
                    a(f"s_cbranch_execz {Lz}")
                    for k in range(3):
                        a(f"v_add_u32 {v(56+n)}, {v(56+n)}, {v(58+n)}")
                        a(f"ds_write_b64 {v(56+n)}, {v(48+4*n,2)}")
                    a.label(Lz)
                    a("s_mov_b64 exec, -1")
                a("s_waitcnt lgkmcnt(0)")
                a.label(L)
            if i == cfg.kh:
                L = self.only_l(0)
                a(f"s_waitcnt vmcnt({0 if i - 1 in (ka + 1, ka + 2) else 5})")
                self.poll_check(45, V_QK, 8); a.label(L)
            if i == cfg.ko:
                L = self.only_l(0)
                a(f"s_waitcnt vmcnt({5 if i - 1 + 5 <= 16 else 0})")
                self.poll_check(44, V_QO, 8); a.label(L)
            if i: a("s_barrier")
            self.stamp(20 + i)
            if i == 0: self.dbgt(6)
            if i == 11: self.dbgt(7)
            if i == cfg.ko - 1:
                L = self.only_l(0); self.poll_issue(44, V_QO); a.label(L)
            if i == 1:
                L = self.only_l(0)
                a(f"s_cmp_lg_u32 {s(S_TY)}, 0")
                a(f"s_cbranch_scc1 {L}")
                self.flag_store(V_FH)
                a.label(L)
            if i == cfg.kh - 1:
                L = self.only_l(0); self.poll_issue(45, V_QK); a.label(L)
            if i == ka - 1:
                L = if_q(); kt_loads(); a.label(L)
            if i == ka + 1:
                L = if_q()
                for t in range(2):
                    for k in range(5): a(f"ds_read_b64 {v(48+12*t+2*k,2)}, v38 offset:{2560*t + 32*k}")
                a(f"v_lshlrev_b32 v6, 3, v1")
                a(f"s_add_u32 {s(S_T0)}, {s(S_PKS)}, {8*2560}")
                a("s_waitcnt lgkmcnt(0)")
                for t in range(2):
                    so = s(S_PKS) if t == 0 else s(S_T0)
                    a(f"buffer_store_dwordx4 {v(48+12*t,4)}, v39, {s(R_WS,4)}, {so} offen sc1")
                    a(f"buffer_store_dwordx4 {v(52+12*t,4)}, v39, {s(R_WS,4)}, {so} offen offset:1024 sc1")
                    a(f"buffer_store_dwordx2 {v(56+12*t,2)}, v6, {s(R_WS,4)}, {so} offen offset:2048 sc1")
                a.label(L)
            if i == ka + 3:
                L = self.only_l(0); self.flag_store(V_F2); a.label(L)
            todo = [] if i in (0, ka + 1, ka + 2) else ([i + 3, i + 4, i + 5] if i == ka + 3 else [i + 5])
            for c in todo:
                if c <= 16: p2_chunk(c); pend.append(c)
            if i == ka + 4:
                a(f"s_mul_i32 {s(S_T0)}, {s(S_TT)}, {64*1280}")
                a(f"s_mul_i32 {s(S_T1)}, {s(S_N)}, 160")
                a(f"s_add_u32 {s(S_T0)}, {s(S_T0)}, {s(S_T1)}")
                a(f"s_mul_i32 {s(S_T2)}, {s(S_L)}, 192")
                a(f"s_mul_i32 {s(S_T3)}, {s(S_L)}, 3072")
                for j in range(3):
                    a(f"v_add_u32 v6, {s(S_T2)}, v1")
                    if j: a(f"v_add_u32 v6, {64*j}, v6")
                    a(f"v_mul_u32_u24 v7, 6554, v6")
                    a(f"v_lshrrev_b32 v7, 16, v7")
                    a(f"v_mul_u32_u24 v7, {1280-160}, v7")
                    a(f"v_lshl_add_u32 v7, v6, 4, v7")
                    if j:
                        L = self.lab('xt')
                        a(f"s_cmp_eq_u32 {s(S_L)}, 3")
                        a(f"s_cbranch_scc1 {L}")
                    a(f"s_add_u32 m0, {s(S_T3)}, {XT + 1024*j}")
                    a(f"buffer_load_dwordx4 v7, {s(R_X,4)}, {s(S_T0)} offen lds")
                    if j: a.label(L)
        self.final_prep()
        a("s_barrier")
        self.stamp(33)
        a("s_barrier")
        self.stamp(37)
        a("s_barrier")
        self.stamp(38); self.dbgt(8)
        self.nb_ld_p2 = a.nbar - nb3
        a(f"s_cmp_ge_u32 {s(S_WID)}, 2")
        a(f"s_cbranch_scc1 Lfin")
        a("s_branch Lfinal_store")

    def kvt_addr(self, n):
        a = self.a
        a(f"v_add_u32 v70, {(256*n - 512) & 0xffffffff}, v0")
        a(f"v_cmp_le_u32 vcc, 210, v70")
        a(f"v_cndmask_b32 v84, 0, 1, vcc")
        a(f"v_mov_b32 v86, -210")
        a(f"v_mad_i32_i24 v85, v84, v86, v70")
        a(f"v_mul_u32_u24 v86, 3121, v85")
        a(f"v_lshrrev_b32 v86, 16, v86")
        a(f"v_mov_b32 v88, -21")
        a(f"v_mad_i32_i24 v87, v86, v88, v85")
        a(f"v_cmp_le_u32 vcc, 5, v86")
        a(f"v_cndmask_b32 v88, 0, 1, vcc")
        a(f"v_lshlrev_b32 v89, 1, v88")
        a(f"v_subrev_u32 v90, 16, v87")
        a(f"v_lshlrev_b32 v90, 2, v90")
        a(f"v_mad_u32_u24 v90, v88, 3, v90")
        a(f"v_add_u32 v91, 1, v88")
        a(f"v_cmp_eq_u32 {s(S_MASK,2)}, 20, v87")
        a(f"v_cndmask_b32 v90, v90, v91, {s(S_MASK,2)}")
        a(f"v_cmp_gt_u32 vcc, 16, v87")
        a(f"v_cndmask_b32 v90, v90, v87, vcc")
        a(f"v_cndmask_b32 v89, 1, v89, vcc")
        a(f"v_and_b32 v91, 3, v86")
        a(f"v_lshl_add_u32 v90, v91, 4, v90")
        a(f"v_lshlrev_b32 v91, 10, v89")
        a(f"v_lshl_add_u32 v91, v90, 4, v91")
        a(f"v_and_b32 v92, 4, v86")
        a(f"v_lshl_add_u32 v91, v92, 1, v91")
        a(f"v_lshrrev_b32 v92, 1, v89")
        a(f"v_lshlrev_b32 v92, 9, v92")
        a(f"v_lshl_add_u32 v92, v90, 3, v92")
        a(f"v_add_u32 v92, 3072, v92")
        a(f"v_cmp_le_u32 vcc, 8, v86")
        a(f"v_cndmask_b32 v91, v91, v92, vcc")
        a(f"v_cndmask_b32 {v(58+n)}, 64, 32, vcc")
        a(f"v_lshl_add_u32 v91, v84, 12, v91")
        a(f"v_add_u32 {v(56+n)}, {KVT}, v91")
        a(f"v_mov_b32 v86, {hex(OOB)}")
        a(f"v_cmp_gt_u32 vcc, 420, v70")
        a(f"v_lshlrev_b32 v70, 4, v70")
        a(f"v_cndmask_b32 {v(60+n)}, v86, v70, vcc")
        a(f"s_and_b64 {s(S_DEST+6+2*n,2)}, {s(S_MASK,2)}, vcc")
        if n: a(f"s_mov_b64 {s(S_DEST+4,2)}, vcc")

    def l1_setup(self):
        a = self.a
        a(f"v_mov_b32 v5, {hex(OOB)}")
        a(f"v_and_b32 v4, 31, v1")
        a(f"s_lshl_b32 {s(S_T0)}, {s(S_RB)}, 5")
        a(f"v_add_u32 v4, {s(S_T0)}, v4")
        a(f"v_cmp_gt_u32 vcc, 420, v4")
        a(f"v_lshlrev_b32 v4, 4, v4")
        a(f"v_lshrrev_b32 v3, 5, v1")
        a(f"v_mul_u32_u24 v3, {8*KP_STRIDE}, v3")
        a(f"v_add_u32 v3, v3, v4")
        a(f"v_cndmask_b32 v3, v5, v3, vcc")
        a(f"s_mov_b64 {s(S_DEST+4,2)}, vcc")
        a(f"v_cmp_gt_u32 vcc, 32, v1")
        a(f"s_and_b64 vcc, vcc, {s(S_DEST+4,2)}")
        a(f"v_cndmask_b32 v4, v5, v4, vcc")
        a("s_waitcnt lgkmcnt(0)")
        for e in range(1, 4): a(f"v_lshrrev_b32 {v(88+e)}, {8*e}, v41")
        a(f"v_mov_b32 v88, v41")
        a(f"v_mov_b32 v92, 0xffffff00")
    def l1_run(self):
        a = self.a
        Ls = self.lab('l1s'); Lr = self.lab('l1r'); Lg = self.lab('l1g')
        a(f"s_cmp_lg_u32 {s(S_L)}, 1")
        a(f"s_cbranch_scc1 {Ls}")
        a(f"s_cmp_lg_u32 {s(S_TY)}, 0")
        a(f"s_cbranch_scc1 {Ls}")
        a(f"s_cmp_ge_u32 {s(S_RB)}, 14")
        a(f"s_cbranch_scc1 {Ls}")
        a(f"s_mul_i32 {s(S_T1)}, {s(S_HG)}, {KP_STRIDE}")
        a(f"s_lshl_b32 {s(S_T2)}, {s(S_T1)}, 4")
        a(f"s_add_u32 {s(S_T1)}, {s(S_T1)}, {WS_KT}")
        a(f"s_add_u32 {s(S_T2)}, {s(S_T2)}, {WS_KP}")
        a(f"s_mov_b32 {s(S_CNT)}, 0")
        D = 48
        a.label(Lr)
        for k in range(8):
            a(f"s_add_u32 {s(S_T3)}, {s(S_T2)}, {k*KP_STRIDE}")
            a(f"buffer_load_dwordx4 {v(D+4*k,4)}, v3, {s(R_WS,4)}, {s(S_T3)} offen sc1")
        for k in range(8):
            a(f"s_waitcnt vmcnt({7-k})")
            for e in range(4):
                if k == 0: a(f"v_xor_b32 {v(84+e)}, {v(D+e)}, {v(88+e)}")
                else: a(f"v_bitop3_b32 {v(84+e)}, {v(84+e)}, {v(D+4*k+e)}, {v(88+e)} bitop3:0xf6")
            for e in range(4): a(f"v_and_b32 {v(D+4*k+e)}, v92, {v(D+4*k+e)}")
            if k:
                for e in range(4): a(f"v_add_f32 {v(D+e)}, {v(D+e)}, {v(D+4*k+e)}")
        a(f"v_or3_b32 v84, v84, v85, v86")
        a(f"v_or_b32 v84, v84, v87")
        a(f"v_and_b32 v84, 0xff, v84")
        a(f"v_cmp_ne_u32 vcc, 0, v84")
        a(f"s_and_b64 vcc, vcc, {s(S_DEST+4,2)}")
        a(f"s_cbranch_scc0 {Lg}")
        a(f"s_add_u32 {s(S_CNT)}, {s(S_CNT)}, 1")
        a(f"s_cmp_lt_u32 {s(S_CNT)}, 0x40000")
        a(f"s_cbranch_scc1 {Lr}")
        a.label(Lg)
        for e in range(4): a(f"v_mov_b32 {v(D+4+e)}, {v(D+e)}")
        for e in range(4): a(f"v_permlane32_swap_b32 {v(D+4+e)}, {v(D+e)}")
        for e in range(4): a(f"v_add_f32 {v(D+e)}, {v(D+e)}, {v(D+4+e)}")
        a(f"v_cvt_pk_bf16_f32 {v(D)}, {v(D)}, {v(D+1)}")
        a(f"v_cvt_pk_bf16_f32 {v(D+1)}, {v(D+2)}, {v(D+3)}")
        a(f"v_mov_b32 {v(D+2)}, v41")
        a(f"v_mov_b32 {v(D+3)}, v41")
        a(f"buffer_store_dwordx4 {v(D,4)}, v4, {s(R_WS,4)}, {s(S_T1)} offen sc1")
        self.stamp(17)
        a(f"s_branch {Ls}x")
        a.label(Ls)
        a(f"s_waitcnt vmcnt(0)")
        a.label(Ls + 'x')

    def rot2(self, dst):
        a = self.a; ra, rb_ = self.cfg.rot2
        sh = 3 if self.cfg.map2 == 'A' else 2
        a(f"s_lshr_b32 {s(S_T1)}, {s(S_IDX)}, {sh}")
        a(f"s_mul_i32 {s(dst)}, {s(S_T1)}, {ra}")
        a(f"s_and_b32 {s(S_T1)}, {s(S_IDX)}, {(1 << sh) - 1}")
        a(f"s_mul_i32 {s(S_T1)}, {s(S_T1)}, {rb_}")
        a(f"s_add_u32 {s(dst)}, {s(dst)}, {s(S_T1)}")
    def chunk_id(self, d, t, i):
        a = self.a
        a(f"s_add_u32 {s(d)}, {s(S_KC)}, {i}")
        if i < 8:
            a(f"s_and_b32 {s(d)}, {s(d)}, 7")
            a(f"s_lshr_b32 {s(t)}, {s(d)}, 1")
            a(f"s_add_u32 {s(d)}, {s(d)}, {s(t)}")
            a(f"s_add_u32 {s(d)}, {s(d)}, 1")
        else:
            a(f"s_and_b32 {s(d)}, {s(d)}, 3")
            a(f"s_mul_i32 {s(d)}, {s(d)}, 3")

    def final_prep(self):
        a = self.a
        srd(a, R_OUT, P_OUT, 2048 * 1280)
        a(f"v_lshlrev_b32 v164, 4, v0")
        a(f"v_mul_u32_u24 v165, 6554, v0")
        a(f"v_lshrrev_b32 v165, 16, v165")
        a(f"v_mul_u32_u24 v165, {1280-160}, v165")
        a(f"v_add_u32 v165, v165, v164")
        a(f"v_add_u32 v164, {XT}, v164")
        a(f"s_mul_i32 {s(S_IT)}, {s(S_TT)}, {64*1280}")
        a(f"s_mul_i32 {s(S_T1)}, {s(S_N)}, 160")
        a(f"s_add_u32 {s(S_IT)}, {s(S_IT)}, {s(S_T1)}")
    def final_store(self):
        a = self.a
        a.label('Lfinal_store')
        a(f"ds_read_b128 v[4:7], v164")
        a("s_waitcnt lgkmcnt(0)")
        a(f"buffer_store_dwordx4 v[4:7], v165, {s(R_OUT,4)}, {s(S_IT)} offen")
        a.label('Lfin')
        if self.cfg.light:
            a(f"s_cmp_lg_u32 {s(S_WID)}, 0")
            a(f"s_cbranch_scc1 Lend")
            a(f"v_mov_b32 v4, {s(S_TS)}")
            a("s_waitcnt vmcnt(0)")
            a(f"s_memrealtime {s(S_TS,2)}")
            a(f"s_memtime s[8:9]")
            a(f"s_lshl_b32 {s(S_T0)}, s2, 4")
            a(f"s_add_u32 {s(S_T0)}, {s(S_T0)}, {WS_TS}")
            a("v_mov_b32 v2, 0")
            a("s_waitcnt lgkmcnt(0)")
            a(f"v_mov_b32 v5, {s(S_TS)}")
            a(f"v_mov_b32 v6, s3")
            a(f"v_mov_b32 v7, s8")
            a(f"buffer_store_dwordx4 v[4:7], v2, {s(R_WS,4)}, {s(S_T0)} offen")
        if self.cfg.diag:
            a("s_waitcnt vmcnt(0)")
            self.stamp(39); self.stamp(62)
            a(f"s_memrealtime {s(S_TS,2)}")
            a("s_waitcnt lgkmcnt(0)")
            a(f"v_writelane_b32 {v(VDIAG)}, {s(S_TS)}, 63")
            a(f"s_mul_i32 {s(S_T0)}, s2, 12")
            a(f"s_add_u32 {s(S_T0)}, {s(S_T0)}, {s(S_WID)}")
            a(f"s_lshl_b32 {s(S_T0)}, {s(S_T0)}, 8")
            a(f"s_add_u32 {s(S_T0)}, {s(S_T0)}, {WS_TS2}")
            a(f"v_lshlrev_b32 v2, 2, v1")
            a(f"buffer_store_dword {v(VDIAG)}, v2, {s(R_WS,4)}, {s(S_T0)} offen")
        a.label('Lend')
        a("s_endpgm")

    ACC = 12; ONES = 68; RS = 72; SQ = 76; CSA = 80; CSB = 84
    XA = 88; XB = 96; YA = 124; YB = 132
    VA = 2
    L15 = 164; G = 165; TOK = 167
    def acc(self, t, i): return self.ACC + (2 * t + i) * 4
    def tiles(self, ty):
        if ty == 0:
            return [(6, 0, 160, 'N'), (6, 32, 160, 'N'), (7, 0, 160, 'N'), (6, 10256, 160, 'N'), (6, 10288, 160, 'N'),
                    (8, 0, 128, 'T'), (9, 0, 128, 'T')]
        return [(6, 0, 160, 'T'), (6, 32, 160, 'T'), (6, 64, 160, 'T'), (7, 0, 256, 'T'), (8, 0, 256, 'T'), (9, 0, 256, 'T'), (10, 0, 256, 'T')]

    def pack_setup(self):
        a = self.a
        a(f"s_cmp_gt_u32 {s(S_U)}, 135")
        a(f"s_cselect_b32 {s(S_T0)}, 0, {s(S_U)}")
        a(f"s_lshr_b32 {s(S_T0)}, {s(S_T0)}, 1")
        a(f"s_cmp_lt_u32 {s(S_T0)}, 48")
        a(f"s_cselect_b32 {s(R_PK)}, {s(P_W2)}, {s(P_WO)}")
        a(f"s_cselect_b32 {s(R_PK+1)}, {s(P_W2+1)}, {s(P_WO+1)}")
        a(f"s_mov_b32 {s(R_PK+2)}, {hex(640*1280)}")
        a(f"s_cselect_b32 {s(R_PK+2)}, {hex(1536*1280)}, {s(R_PK+2)}")
        a(f"s_mov_b32 {s(R_PK+3)}, 0x20000")
        Lm = self.lab('pkm'); Ld = self.lab('pkd')
        a(f"s_cbranch_scc1 {Lm}")
        a(f"s_sub_u32 {s(S_T3)}, {s(S_T0)}, 48")
        a(f"s_mul_i32 {s(S_T1)}, {s(S_T3)}, 52")
        a(f"s_lshr_b32 {s(S_T1)}, {s(S_T1)}, 8")
        a(f"s_mul_i32 {s(S_T2)}, {s(S_T1)}, 5")
        a(f"s_sub_u32 {s(S_T3)}, {s(S_T3)}, {s(S_T2)}")
        a(f"s_mul_i32 {s(S_T1)}, {s(S_T1)}, 160")
        a(f"s_lshl_b32 {s(S_T2)}, {s(S_T3)}, 5")
        a(f"s_cmp_ge_u32 {s(S_T3)}, 2")
        a(f"s_cselect_b32 {s(S_T0)}, 16, 0")
        a(f"s_add_u32 {s(S_T2)}, {s(S_T2)}, {s(S_T0)}")
        a(f"s_cmp_eq_u32 {s(S_T3)}, 4")
        a(f"s_cselect_b32 {s(S_T2)}, 64, {s(S_T2)}")
        a(f"s_cselect_b32 {s(S_T0)}, {64*1280}, 0")
        a(f"s_add_u32 {s(S_T1)}, {s(S_T1)}, {s(S_T2)}")
        a(f"s_branch {Ld}")
        a.label(Lm)
        a(f"s_lshl_b32 {s(S_T1)}, {s(S_T0)}, 5")
        a(f"s_mov_b32 {s(S_T0)}, 0")
        a.label(Ld)
        a(f"s_and_b32 {s(R_PK+1)}, {s(R_PK+1)}, 0xffff")
        a(f"s_mul_i32 {s(S_T1)}, {s(S_T1)}, 1280")
        a(f"s_and_b32 {s(S_T2)}, {s(S_U)}, 1")
        a(f"s_mul_i32 {s(S_T3)}, {s(S_T2)}, 640")
        a(f"s_add_u32 {s(S_PKO)}, {s(S_T1)}, {s(S_T3)}")
        a(f"v_mov_b32 v100, {s(S_T0)}")
        a(f"v_mov_b32 v105, {hex(OOB)}")
        a(f"s_mul_i32 {s(S_T2)}, {s(S_RB)}, 160")
        a(f"s_cmp_lg_u32 {s(S_TY)}, 0")
        a(f"s_cselect_b32 {s(S_T2)}, 0, {s(S_T2)}")
        a(f"s_movk_i32 {s(S_T3)}, 160")
        a(f"s_cselect_b32 {s(S_T3)}, 640, {s(S_T3)}")
        for i in range(3):
            a(f"v_add_u32 v101, {512*i}, v0")
            a(f"v_mul_u32_u24 v102, 1639, v101")
            a(f"v_lshrrev_b32 v102, 16, v102")
            a(f"v_cmp_le_u32 vcc, 16, v102")
            a(f"v_mul_u32_u24 v102, 640, v102")
            a(f"v_cndmask_b32 v103, 0, v100, vcc")
            a(f"v_lshlrev_b32 v101, 4, v101")
            a(f"v_sub_u32 v104, v101, v102")
            a(f"v_add3_u32 v102, v102, v101, v103")
            a(f"v_subrev_u32 v104, {s(S_T2)}, v104")
            a(f"v_cmp_gt_u32 vcc, {s(S_T3)}, v104")
            a(f"v_cndmask_b32 {v(161+i)}, v105, v102, vcc")

    def code_prefetch(self, T):
        a = self.a; cfg = self.cfg
        L = self.lab('cp'); Lpc = self.lab('pc')
        a(f"s_cmp_lg_u32 {s(S_WID)}, {cfg.cpw}")
        a(f"s_cbranch_scc1 {L}")
        a(f"s_getpc_b64 {s(S_T0,2)}")
        a.label(Lpc)
        a(f"s_sub_u32 {s(S_T0)}, {s(S_T0)}, {Lpc}-{NAME}")
        a(f"s_subb_u32 {s(S_T1)}, {s(S_T1)}, 0")
        n = cfg.cpn
        a(f"s_and_b32 {s(S_T2)}, {s(S_IDX)}, {256 // n - 1}")
        a(f"s_mul_i32 {s(S_T2)}, {s(S_T2)}, {128 * n}")
        a(f"v_lshlrev_b32 {v(T)}, 7, v1")
        a(f"v_and_b32 {v(T)}, {128 * n - 128}, {v(T)}")
        a(f"v_add_u32 {v(T)}, {s(S_T2)}, {v(T)}")
        a(f"v_min_u32 {v(T)}, Lend-{NAME}, {v(T)}")
        a(f"v_mov_b32 {v(T+1)}, {s(S_T1)}")
        a(f"v_add_co_u32 {v(T)}, vcc, {s(S_T0)}, {v(T)}")
        a(f"v_addc_co_u32 {v(T+1)}, vcc, 0, {v(T+1)}, vcc")
        exec_mask(a, (1 << n) - 1)
        a(f"global_load_dword v166, {v(T,2)}, off")
        a(f"s_mov_b64 exec, -1")
        a.label(L)

    def compute_setup(self):
        a = self.a
        a.label('Lcompute')
        if self.cfg.cpf == 1: self.code_prefetch(102)
        T = 88
        L15, G, TOK = self.L15, self.G, self.TOK
        a(f"s_sub_u32 {s(S_T0)}, {s(S_WID)}, 4")
        a(f"s_and_b32 {s(S_R)}, {s(S_T0)}, 3")
        a(f"s_lshr_b32 {s(S_C)}, {s(S_T0)}, 2")
        a(f"v_add_u32 v0, {-256 & 0xffffffff}, v0")
        a(f"v_and_b32 {v(L15)}, 15, v1")
        a(f"v_lshrrev_b32 {v(G)}, 4, v1")
        a(f"v_lshrrev_b32 {v(T+2)}, 1, {v(L15)}")
        a(f"v_xor_b32 {v(T+2)}, {v(T+2)}, {v(G)}")
        a(f"v_lshlrev_b32 {v(T+2)}, 4, {v(T+2)}")
        a(f"v_lshl_add_u32 {v(T+2)}, {v(L15)}, 7, {v(T+2)}")
        a(f"s_lshl_b32 {s(S_T0)}, {s(S_R)}, 12")
        a(f"s_lshl_b32 {s(S_T1)}, {s(S_C)}, 11")
        a(f"s_add_u32 {s(S_T0)}, {s(S_T0)}, {s(S_T1)}")
        a(f"v_add_u32 v2, {s(S_T0)}, {v(T+2)}")
        a(f"v_xor_b32 v3, 64, v2")
        a(f"v_xor_b32 v4, 2048, v2")
        a(f"v_xor_b32 v5, 64, v4")
        a(f"s_lshr_b32 {s(S_T0)}, {s(S_T0)}, 5")
        a(f"s_add_u32 {s(S_T0)}, {s(S_T0)}, {ST}")
        a(f"v_lshl_add_u32 {v(TOK)}, {v(L15)}, 2, {s(S_T0)}")
        a(f"v_bfe_u32 {v(T+3)}, v1, 2, 3")
        a(f"v_lshrrev_b32 {v(T+4)}, 5, v1")
        a(f"v_lshl_add_u32 {v(T+4)}, {v(T+4)}, 4, {v(T+3)}")
        a(f"v_and_b32 {v(T+5)}, 3, v1")
        a(f"v_lshlrev_b32 {v(T+6)}, 3, {v(T+5)}")
        a(f"v_mul_u32_u24 v6, 160, {v(T+4)}")
        a(f"s_mul_i32 {s(S_T0)}, {s(S_C)}, 80")
        a(f"s_add_u32 {s(S_T0)}, {s(S_T0)}, 16384")
        a(f"v_add3_u32 v6, v6, {v(T+6)}, {s(S_T0)}")
        for i in range(self.ACC, self.ONES): a(f"v_mov_b32 {v(i)}, 0")
        for i in range(4): a(f"v_mov_b32 {v(self.ONES+i)}, 0x3f803f80")
        a(f"s_mov_b32 {s(S_IT)}, 0")
        self.calc_u()
        a("s_waitcnt lgkmcnt(0)")
        self.stamp(1)
        srd(a, R_WS, P_WS, WS_SIZE)
        self.pack_setup()
        self.p2_pre_setup()
        a(f"s_cmp_lg_u32 {s(S_TY)}, 0")
        a(f"s_cbranch_scc1 Lc_q")
        self.h_addr(0, 1)
        a(f"s_lshl_b32 {s(S_T0)}, {s(S_HG)}, 4")
        a(f"s_add_u32 {s(S_T0)}, {s(S_T0)}, {s(S_RB)}")
        a(f"s_mul_i32 {s(S_T0)}, {s(S_T0)}, {KP_STRIDE}")
        a(f"s_add_u32 {s(S_CNT)}, {s(S_T0)}, {WS_KP}")
        a(f"s_mul_i32 {s(S_T0)}, {s(S_R)}, 6720")
        a(f"s_mul_i32 {s(S_T1)}, {s(S_C)}, 3360")
        a(f"s_add_u32 {s(S_T0)}, {s(S_T0)}, {s(S_T1)}")
        a(f"s_add_u32 {s(S_OA)}, {s(S_T0)}, {SCR}")
        a(f"v_cmp_gt_u32 vcc, 2, {v(T+5)}")
        a(f"v_mov_b32 {v(T+7)}, 10224")
        a(f"v_cndmask_b32 {v(T+7)}, {v(T+7)}, 64, vcc")
        a(f"v_add_u32 v7, v6, {v(T+7)}")
        a(f"v_lshrrev_b32 {v(T+7)}, 1, {v(T+3)}")
        a(f"v_lshl_add_u32 {v(T+8)}, {v(T+4)}, 7, {v(T+6)}")
        a(f"v_add_u32 {v(T+8)}, 36864, {v(T+8)}")
        a(f"s_lshl_b32 {s(S_T0)}, {s(S_C)}, 1")
        a(f"v_xor_b32 {v(T+7)}, {s(S_T0)}, {v(T+7)}")
        a(f"v_lshl_add_u32 v8, {v(T+7)}, 5, {v(T+8)}")
        a(f"v_xor_b32 {v(T+7)}, 1, {v(T+7)}")
        a(f"v_lshl_add_u32 v9, {v(T+7)}, 5, {v(T+8)}")
        a(f"s_branch Lp1_0")
        a.label('Lc_q')
        self.h_addr(2, 2)
        a(f"s_mul_i32 {s(S_T0)}, {s(S_HG)}, {KP_STRIDE}")
        a(f"s_add_u32 {s(S_CNT)}, {s(S_T0)}, {WS_KT}")
        a(f"v_lshl_add_u32 {v(T+8)}, {v(T+4)}, 8, {v(T+6)}")
        a(f"v_add_u32 {v(T+8)}, 26624, {v(T+8)}")
        a(f"s_lshl_b32 {s(S_T0)}, {s(S_C)}, 2")
        a(f"v_xor_b32 {v(T+7)}, {s(S_T0)}, {v(T+3)}")
        for i in range(4):
            a(f"v_xor_b32 {v(T+9)}, {i}, {v(T+7)}")
            a(f"v_lshl_add_u32 {v(7+i)}, {v(T+9)}, 5, {v(T+8)}")
        a(f"s_branch Lp1_1")

    def p1_reads(self, ty, st, A, B):
        out = [f"ds_read_b128 {v(A,4)}, {v(self.VA+st)}", f"ds_read_b128 {v(A+4,4)}, {v(self.VA+2+st)}"]
        for t, (ad, ex, pitch, o) in enumerate(self.tiles(ty)):
            for u in range(2):
                if t < self.cfg.xr: out.append(f"ds_read_b64_tr_b16 {v(B+4*t+2*u,2)}, {v(ad)} offset:{(32*st+8*u)*pitch+ex}")
        return out
    def p1_mfmas(self, ty, A, B):
        M = "v_mfma_f32_16x16x32_bf16"
        out = []
        for t, (ad, ex, pitch, o) in enumerate(self.tiles(ty)):
            for i in range(2):
                d = v(self.acc(t, i), 4); x = v(A + 4*i, 4); w = v(B + 4*t, 4)
                if t < self.cfg.xm: out.append(f"{M} {d}, {x}, {w}, {d}" if o == 'N' else f"{M} {d}, {w}, {x}, {d}")
        return out

    def duty(self, half, A, B):
        a = self.a
        M = "v_mfma_f32_16x16x32_bf16"
        on = v(self.ONES, 4); x0 = v(A, 4)
        def c(r): return v(r, 4) if half else '0'
        a.label(f"Lduty{half}")
        a(f"{M} {v(self.RS,4)}, {on}, {x0}, {c(self.RS)}")
        a(f"{M} {v(self.SQ,4)}, {x0}, {x0}, {c(self.SQ)}")
        Ld = self.lab('dd')
        labs = [self.lab('dr') for _ in range(4)]
        for r in range(1, 4):
            a(f"s_cmp_eq_u32 {s(S_R)}, {r}")
            a(f"s_cbranch_scc1 {labs[r]}")
        for r in range(4):
            a.label(labs[r])
            a(f"{M} {v(self.CSA,4)}, {on}, {v(B+4*r,4)}, {c(self.CSA)}")
            if r < 3:
                a(f"{M} {v(self.CSB,4)}, {on}, {v(B+4*(r+4),4)}, {c(self.CSB)}")
                a(f"s_branch {Ld}")
        a.label(Ld)
        if half:
            T = 160
            SQ = self.SQ
            a(f"v_and_b32 {v(T)}, 3, v1")
            a(f"s_mul_i32 {s(S_T0)}, {s(S_RB)}, 10")
            a(f"s_add_u32 {s(S_T0)}, {s(S_T0)}, {s(S_S0)}")
            a(f"s_lshl_b32 {s(S_T0)}, {s(S_T0)}, 10")
            a(f"s_add_u32 {s(S_T0)}, {s(S_T0)}, {(WS_RP - 2*ST) & 0xffffffff}")
            a(f"v_lshl_add_u32 {v(T+1)}, {v(self.TOK)}, 1, {s(S_T0)}")
            a(f"s_mul_i32 {s(S_T0)}, {s(S_COL)}, 10")
            a(f"s_add_u32 {s(S_T0)}, {s(S_T0)}, {s(S_S0)}")
            a(f"s_lshl_b32 {s(S_T0)}, {s(S_T0)}, 10")
            a(f"s_mul_i32 {s(S_T1)}, {s(S_C)}, 448")
            a(f"s_add_u32 {s(S_T0)}, {s(S_T0)}, {s(S_T1)}")
            a(f"s_lshl_b32 {s(S_T1)}, {s(S_R)}, 6")
            a(f"s_add_u32 {s(S_T0)}, {s(S_T0)}, {s(S_T1)}")
            a(f"s_add_u32 {s(S_T0)}, {s(S_T0)}, {WS_CP}")
            a(f"v_lshl_add_u32 {v(T+2)}, {v(self.L15)}, 2, {s(S_T0)}")
            a(f"v_cmp_eq_u32 vcc, 1, {v(T)}")
            a(f"v_cndmask_b32 {v(self.RS+1)}, {v(SQ)}, {v(SQ+1)}, vcc")
            a(f"v_cmp_eq_u32 vcc, 2, {v(T)}")
            a(f"v_cndmask_b32 {v(self.RS+1)}, {v(self.RS+1)}, {v(SQ+2)}, vcc")
            a(f"v_cmp_eq_u32 vcc, 3, {v(T)}")
            a(f"v_cndmask_b32 {v(self.RS+1)}, {v(self.RS+1)}, {v(SQ+3)}, vcc")
            L = self.lab('dn')
            a(f"s_cmp_ge_u32 {s(S_COL)}, 10")
            a(f"s_cbranch_scc1 {L}")
            exec_mask(a, DIAGMASK)
            a(f"buffer_store_dwordx2 {v(self.RS,2)}, {v(T+1)}, {s(R_WS,4)}, 0 offen sc1")
            a.label(L)
            L = self.lab('dn')
            a(f"s_cmp_ge_u32 {s(S_RB)}, 10")
            a(f"s_cbranch_scc1 {L}")
            exec_mask(a, 0xffff)
            a(f"buffer_store_dword {v(self.CSA)}, {v(T+2)}, {s(R_WS,4)}, 0 offen sc1")
            a(f"s_cmp_eq_u32 {s(S_R)}, 3")
            a(f"s_cbranch_scc1 {L}")
            a(f"buffer_store_dword {v(self.CSB)}, {v(T+2)}, {s(R_WS,4)}, 0 offen offset:256 sc1")
            a.label(L)
            a("s_mov_b64 exec, -1")
        a(f"s_cmp_lg_u32 {s(S_TY)}, 0")
        a(f"s_cbranch_scc1 Lret{half}_1")
        a(f"s_branch Lret{half}_0")

    def pack_blocks(self):
        a = self.a
        PD = 72
        def ret(h):
            a(f"s_cmp_lg_u32 {s(S_TY)}, 0")
            a(f"s_cbranch_scc1 Lret{h}_1")
            a(f"s_branch Lret{h}_0")
        a.label('Lx1')
        L3 = self.lab('p3')
        a(f"s_cmp_lg_u32 {s(S_IT)}, 1")
        a(f"s_cbranch_scc1 {L3}")
        a(f"s_cmp_gt_u32 {s(S_U)}, 135")
        a(f"s_cbranch_scc1 Lduty1")
        a(f"s_lshl_b32 {s(S_T0)}, {s(S_WID)}, 10")
        for i in range(3):
            if i == 2:
                a(f"s_cmp_lg_u32 {s(S_C)}, 0")
                a(f"s_cbranch_scc1 Lduty1")
            a(f"s_add_u32 m0, {s(S_T0)}, {SCR - 4096 + 8192*i}")
            a(f"buffer_load_dwordx4 {v(161+i)}, {s(R_PK,4)}, {s(S_PKO)} offen lds")
        a("s_branch Lduty1")
        a.label(L3)
        if self.cfg.cpf == 2: self.code_prefetch(162)
        L = self.lab('pa')
        a(f"s_cmp_gt_u32 {s(S_U)}, 135")
        a(f"s_cbranch_scc1 {L}")
        a(f"v_lshrrev_b32 v160, 2, v1")
        a(f"v_mul_u32_u24 v160, 640, v160")
        a(f"v_and_b32 v161, 3, v1")
        a(f"v_lshl_add_u32 v160, v161, 3, v160")
        a(f"s_mul_i32 {s(S_T0)}, {s(S_R)}, 160")
        a(f"s_mul_i32 {s(S_T1)}, {s(S_C)}, 96")
        a(f"s_add_u32 {s(S_T0)}, {s(S_T0)}, {s(S_T1)}")
        a(f"s_add_u32 {s(S_T0)}, {s(S_T0)}, {SCR}")
        a(f"v_add_u32 v160, {s(S_T0)}, v160")
        for c in range(3):
            a(f"ds_read_b64_tr_b16 {v(PD+4*c,2)}, v160 offset:{32*c}")
            a(f"ds_read_b64_tr_b16 {v(PD+2+4*c,2)}, v160 offset:{32*c + 16*640}")
        a.label(L)
        ret(1)
        a.label('Lx0')
        a("s_waitcnt lgkmcnt(0)")
        a(f"s_cmp_eq_u32 {s(S_IT)}, 1")
        a(f"s_cbranch_scc1 Lduty0")
        L = self.lab('pb')
        a(f"s_cmp_gt_u32 {s(S_U)}, 135")
        a(f"s_cbranch_scc1 {L}")
        a(f"s_cmp_lg_u32 {s(S_TY)}, 0")
        a(f"s_cselect_b32 {s(S_T0)}, {s(S_R)}, {s(S_RB)}")
        a(f"s_cmp_lg_u32 {s(S_T0)}, {s(S_R)}")
        a(f"s_cbranch_scc1 {L}")
        a(f"s_and_b32 {s(S_T0)}, {s(S_U)}, 1")
        a(f"s_lshl_b32 {s(S_T0)}, {s(S_T0)}, 2")
        a(f"s_add_u32 {s(S_T0)}, {s(S_T0)}, {s(S_R)}")
        a(f"s_mul_i32 {s(S_T0)}, {s(S_T0)}, 68")
        a(f"s_lshr_b32 {s(S_T1)}, {s(S_U)}, 1")
        a(f"s_add_u32 {s(S_T0)}, {s(S_T0)}, {s(S_T1)}")
        a(f"s_mul_i32 {s(S_T0)}, {s(S_T0)}, 5120")
        a(f"s_mul_i32 {s(S_T1)}, {s(S_C)}, 3072")
        a(f"s_add_u32 {s(S_T0)}, {s(S_T0)}, {s(S_T1)}")
        a(f"s_add_u32 {s(S_T0)}, {s(S_T0)}, {WS_P2}")
        a(f"v_lshlrev_b32 v160, 4, v1")
        for c in range(3):
            if c == 2:
                a(f"s_cmp_lg_u32 {s(S_C)}, 0")
                a(f"s_cbranch_scc1 {L}")
            a(f"buffer_store_dwordx4 {v(PD+4*c,4)}, v160, {s(R_WS,4)}, {s(S_T0)} offen offset:{1024*c} sc1")
        a.label(L)
        ret(0)

    def p1_loop(self, ty):
        a = self.a; cfg = self.cfg
        nad = 8 if ty == 0 else 9
        nb = a.nbar
        rx = self.p1_reads(ty, 0, self.XA, self.XB); ry = self.p1_reads(ty, 1, self.YA, self.YB)
        my = self.p1_mfmas(ty, self.YA, self.YB); mx = self.p1_mfmas(ty, self.XA, self.XB)
        sal = [f"s_add_u32 {s(S_IT)}, {s(S_IT)}, 1",
               f"s_bitcmp1_b32 {hex((1<<3)|(1<<6)|(1<<9))}, {s(S_IT)}",
               f"s_cselect_b32 {s(S_DELTA)}, {s(S_DEST)}, {s(S_DEST+1)}"]
        a.label(f"Lp1_{ty}")
        a(f"s_mov_b32 {s(S_DEST)}, {hex(-2*SLOT & 0xffffffff)}")
        a(f"s_mov_b32 {s(S_DEST+1)}, {SLOT}")
        a("s_barrier")
        for x in rx: a(x)
        a(f"s_branch Lret1_{ty}")
        a(".p2align 3")
        a.label(f"Lp1h_{ty}")
        a("s_barrier")
        k = 0
        for m, x in enumerate(my):
            a(x)
            for _ in range(cfg.rpm + (1 if m < cfg.rp2 else 0)):
                if k < len(rx): a(rx[k]); k += 1
        assert k == len(rx)
        a(f"s_bitcmp1_b32 {(1<<1)|(1<<3)}, {s(S_IT)}")
        a(f"s_cbranch_scc1 Lx1")
        a.label(f"Lret1_{ty}")
        upd = [f"v_add_u32 {v(self.VA+i)}, {s(S_DELTA)}, {v(self.VA+i)}" for i in range(nad)]
        k = 0; u = 0
        for m, x in enumerate(mx):
            if m % 2 == 0:
                t = m // 2
                rem = len(rx) - (2 + 2 * (t + 1))
                if rem >= 0:
                    a(f"s_waitcnt lgkmcnt({min(15, rem + k)})")
            if m == len(mx) - 1: a(f"s_cmp_lt_u32 {s(S_IT)}, 10")
            a(x)
            if m == 0:
                for y in sal: a(y)
            for _ in range(cfg.rpm + (1 if m < cfg.rp2 else 0)):
                t1 = (m + 2) // 2
                rem1 = max(0, len(rx) - (2 + 2 * (t1 + 1)))
                if k < len(ry) and (rem1 + k + 1 <= 15 or rem1 == 0): a(ry[k]); k += 1
            n = 0
            while u < len(upd) and n < 2 and not any(f", {v(self.VA+u)} " in y + " " for y in ry[k:]): a(upd[u]); u += 1; n += 1
            if m == len(mx) - 3:
                L = self.lab('vw')
                a(f"s_bitcmp0_b32 {(1<<3)|(1<<5)}, {s(S_IT)}")
                a(f"s_cbranch_scc1 {L}")
                a("s_waitcnt vmcnt(0)")
                a.label(L)
                a(f"s_bitcmp1_b32 {(1<<1)|(1<<4)}, {s(S_IT)}")
                a(f"s_cbranch_scc1 Lx0")
                a.label(f"Lret0_{ty}")
        while u < len(upd): a(upd[u]); u += 1
        assert k == len(ry)
        a("s_waitcnt lgkmcnt(0)")
        a(f"s_cbranch_scc1 Lp1h_{ty}")
        a("s_barrier")
        self.nb_loop = 11
        a.nbar = nb

    def gelu_tile(self, t, AB, CS, BR, d0, W):
        a = self.a
        B = W; X = W + 4
        a(f"v_lshlrev_b32 {v(B)}, 16, {v(BR)}")
        a(f"v_and_b32 {v(B+1)}, {s(S_K1)}, {v(BR)}")
        a(f"v_lshlrev_b32 {v(B+2)}, 16, {v(BR+1)}")
        a(f"v_and_b32 {v(B+3)}, {s(S_K1)}, {v(BR+1)}")
        ch = [(i, p) for i in range(2) for p in range(2)]
        ac = lambda i, p: self.acc(t, i) + 2 * p
        x = lambda i, p: X + 4 * i + 2 * p
        for i, p in ch: a(pk('fma', x(i,p), ('b', AB+4*i+2), CS+2*p, B+2*p))
        for i, p in ch: a(pk('fma', ac(i,p), ('b', AB+4*i), ac(i,p), x(i,p)))
        for i, p in ch: a(pk('mul', x(i,p), ac(i,p), ac(i,p)))
        for i, p in ch: a(pk('fma', x(i,p), x(i,p), ('s', S_K0), ('b', 166)))
        for i, p in ch: a(pk('mul', x(i,p), x(i,p), ac(i,p)))
        for k in range(8): a(f"v_exp_f32 {v(X+k)}, {v(X+k)}")
        for i, p in ch: a(pk('add', x(i,p), x(i,p), '1.0'))
        for k in range(8): a(f"v_rcp_f32 {v(X+k)}, {v(X+k)}")
        for i, p in ch: a(pk('mul', x(i,p), x(i,p), ac(i,p)))
        for i, p in ch: a(f"v_cvt_pk_bf16_f32 {v(d0(i)+p)}, {v(x(i,p))}, {v(x(i,p)+1)}")
    def gelu_consts(self):
        a = self.a
        c1 = -2 * math.sqrt(2 / math.pi) * LOG2E; c2 = c1 * 0.044715
        a(f"s_mov_b32 {s(S_K0)}, {lit(c2)}")
        a(f"s_mov_b32 {s(S_K1)}, 0xffff0000")
        a(f"v_mov_b32 v166, {lit(c1)}")

    def phi_tile(self, t, fa, fb, fcs, X, EPS, d0):
        a = self.a
        ch = [(i, p) for i in range(2) for p in range(2)]
        ac = lambda i, p: self.acc(t, i) + 2 * p
        x = lambda i, p: X + 4 * i + 2 * p
        for i, p in ch: a(pk('fma', x(i,p), fb(i,p), fcs(i,p), ('b', EPS)))
        for i, p in ch: a(pk('fma', ac(i,p), fa(i,p), ac(i,p), x(i,p)))
        for i, p in ch: a(pk('mul', x(i,p), ac(i,p), ('s', S_K0)))
        for k in range(8): a(f"v_exp_f32 {v(X+k)}, {v(X+k)} clamp")
        for i in range(2):
            for k in range(4): a(f"v_max_f32 {v(X+8+4*i+k)}, {v(EPS)}, {v(self.acc(t,i)+k)}")
        for i, p in ch: a(pk('add', x(i,p), x(i,p), x(i,p)+8))
        for i, p in ch: a(f"v_cvt_pk_bf16_f32 {v(d0(i)+p)}, {v(x(i,p))}, {v(x(i,p)+1)}")

    def h_addr(self, ks0_imm, ks_c_mul):
        a = self.a
        a(f"s_lshl_b32 {s(S_T0)}, {s(S_RB)}, 3")
        a(f"s_lshl_b32 {s(S_T1)}, {s(S_R)}, 1")
        a(f"s_add_u32 {s(S_T0)}, {s(S_T0)}, {s(S_T1)}")
        a(f"s_add_u32 {s(S_T0)}, {s(S_T0)}, {s(S_C)}")
        a(f"s_xor_b32 {s(S_T1)}, {s(S_T0)}, 1")
        a(f"s_mul_i32 {s(S_T2)}, {s(S_HG)}, 6")
        a(f"s_mul_i32 {s(S_T3)}, {s(S_C)}, {ks_c_mul}")
        a(f"s_add_u32 {s(S_T2)}, {s(S_T2)}, {s(S_T3)}")
        a(f"s_add_u32 {s(S_T2)}, {s(S_T2)}, {ks0_imm + WS_H2 // 1024}")
        for k, d in ((S_T0, S_OW), (S_T1, S_OM)):
            a(f"s_mul_i32 {s(k)}, {s(k)}, 48")
            a(f"s_add_u32 {s(k)}, {s(k)}, {s(S_T2)}")
            a(f"s_lshl_b32 {s(d)}, {s(k)}, 10")
    def h_flag(self, vn):
        a = self.a; fs = self.cfg.fs
        a(f"buffer_store_dword {v(vn)}, v10, {s(R_WS,4)}, 0 offen sc1")
    def h_flag_addr(self):
        a = self.a; fs = self.cfg.fs
        a(f"s_lshl_b32 {s(S_T0)}, {s(S_RB)}, 1")
        a(f"s_lshr_b32 {s(S_T1)}, {s(S_R)}, 1")
        a(f"s_add_u32 {s(S_T0)}, {s(S_T0)}, {s(S_T1)}")
        a(f"s_lshl_b32 {s(S_T0)}, {s(S_T0)}, 4")
        a(f"s_add_u32 {s(S_T0)}, {s(S_T0)}, {s(S_COL)}")
        a(f"s_lshl_b32 {s(S_T0)}, {s(S_T0)}, 1")
        a(f"s_and_b32 {s(S_T1)}, {s(S_R)}, 1")
        a(f"s_add_u32 {s(S_T0)}, {s(S_T0)}, {s(S_T1)}")
        a(f"s_lshl_b32 {s(S_T0)}, {s(S_T0)}, 1")
        a(f"s_add_u32 {s(S_T0)}, {s(S_T0)}, {s(S_C)}")
        a(f"s_lshl_b32 {s(S_T0)}, {s(S_T0)}, {fs}")
        a(f"s_add_u32 {s(S_XCD)}, {s(S_T0)}, {WS_FH}")
    def h_poll(self, vn):
        a = self.a; fs = self.cfg.fs
        L = self.lab('hp'); Lr = self.lab('hr')
        a(f"s_cmp_lg_u32 {s(S_WID)}, 11")
        a(f"s_cbranch_scc1 {L}")
        a(f"s_lshl_b32 {s(S_T1)}, {s(S_TT)}, {fs + 6}")
        a(f"s_add_u32 {s(S_T1)}, {s(S_T1)}, {WS_FH}")
        a(f"v_lshlrev_b32 v12, {fs}, v1")
        a(f"s_mov_b32 {s(S_IT)}, 0")
        a.label(Lr)
        a(f"buffer_load_dword v13, v12, {s(R_WS,4)}, {s(S_T1)} offen sc1")
        a("s_waitcnt vmcnt(0)")
        a(f"v_cmp_ne_u32 vcc, v13, {v(vn)}")
        a(f"s_cbranch_vccz {L}")
        if self.cfg.psl: a(f"s_sleep {self.cfg.psl}")
        a(f"s_add_u32 {s(S_IT)}, {s(S_IT)}, 1")
        a(f"s_cmp_lt_u32 {s(S_IT)}, 0x40000")
        a(f"s_cbranch_scc1 {Lr}")
        a.label(L)
    def signal(self):
        a = self.a
        a(f"v_mov_b32 v4, {ST_C}")
        a(f"v_mov_b32 v5, 1")
        a("s_mov_b64 exec, 1")
        a("ds_add_u32 v4, v5")
        a("s_mov_b64 exec, -1")
    def h_flag_v(self):
        a = self.a
        a(f"v_mov_b32 v10, {hex(OOB)}")
        a(f"v_writelane_b32 v10, {s(S_XCD)}, 0")
    def h_store(self, p, TMP):
        for i in range(2):
            self.a(f"buffer_store_dwordx4 {v(TMP+p*8+i*4,4)}, v2, {s(R_WS,4)}, {s((S_OW, S_OM)[i])} offen offset:{1024*p} sc1")

    def epi_kv(self):
        a = self.a
        nb = a.nbar
        L15, G, TOK = self.L15, self.G, self.TOK
        self.stamp(2)
        a(f"s_setprio {self.cfg.pe}")
        a(f"s_lshl_b32 {s(S_T0)}, {s(S_R)}, 7")
        a(f"s_lshl_b32 {s(S_T1)}, {s(S_C)}, 6")
        a(f"s_add_u32 {s(S_T0)}, {s(S_T0)}, {s(S_T1)}")
        a(f"s_add_u32 {s(S_T0)}, {s(S_T0)}, {ST}")
        a(f"v_lshl_add_u32 v2, {v(G)}, 4, {s(S_T0)}")
        a(f"v_xor_b32 v3, 64, v2")
        a(f"s_mul_i32 {s(S_T0)}, {s(S_C)}, 448")
        a(f"s_add_u32 {s(S_T0)}, {s(S_T0)}, {ST_CS}")
        a(f"v_lshl_add_u32 v4, {v(L15)}, 2, {s(S_T0)}")
        a(f"v_lshl_add_u32 v5, {v(G)}, 4, {s(S_T0)}")
        a(f"v_xor_b32 v6, 64, {v(TOK)}")
        a(f"s_lshl_b32 {s(S_T0)}, {s(S_C)}, 6")
        a(f"s_add_u32 {s(S_T0)}, {s(S_T0)}, {B1L}")
        a(f"v_lshl_add_u32 v7, {v(G)}, 3, {s(S_T0)}")
        AB = 88; CS = 104; A2 = 114; CH = 80; BR = 72
        rd = [f"ds_read_b128 {v(AB,4)}, v2", f"ds_read_b128 {v(AB+4,4)}, v2 offset:512",
              f"ds_read_b128 {v(AB+8,4)}, v3", f"ds_read_b128 {v(AB+12,4)}, v3 offset:512"]
        rd += [f"ds_read_b32 {v(CS+2*t)}, v4 offset:{64*t}" for t in range(5)]
        rd += [f"ds_read_b32 {v(A2)}, {v(TOK)} offset:1024", f"ds_read_b32 {v(A2+2)}, {v(TOK)} offset:1536",
               f"ds_read_b32 {v(A2+4)}, v6 offset:1024", f"ds_read_b32 {v(A2+6)}, v6 offset:1536"]
        for j in range(2):
            rd += [f"ds_read_b128 {v(CH+4*j,4)}, v5 offset:{64*(5+j)}", f"ds_read_b64 {v(BR+2*j,2)}, v7 offset:{32*j}"]
        a(f"v_mov_b32 v8, {ST_N}")
        rd += [f"ds_read_b32 v79, v8"]
        mf = self.p1_mfmas(0, self.YA, self.YB)
        if self.cfg.kvo == 2: mf = mf[10:] + mf[:10]
        interleave(a, mf, rd, 0.8, 2)
        TMP = 124
        def gelu():
            a(f"v_lshlrev_b32 v2, 4, v1")
            self.gelu_consts()
            for j in range(2):
                self.gelu_tile(5 + j, A2, CH + 4*j, BR + 2*j, lambda i: TMP + 4*i + 2*j, 148)
            self.h_store(0, TMP)
        if self.cfg.kvo == 2:
            a("s_setprio 3")
            a("s_waitcnt lgkmcnt(0)")
            gelu()
            a(f"s_setprio {self.cfg.pe}")
        EPS = 76
        a(f"v_mov_b32 {v(EPS)}, {lit(1e-6)}")
        a(f"v_mov_b32 {v(EPS+2)}, {lit(-1e-6)}")
        a(f"s_mov_b32 {s(S_K0)}, {lit(LOG2E)}")
        a("s_waitcnt lgkmcnt(0)")
        self.stamp(3)
        FR = 124; X = 148
        fa = lambda i, p: AB + 8*i + 2*p
        fb = lambda i, p: AB + 8*i + 4 + 2*p
        ch = [(i, p) for i in range(2) for p in range(2)]
        for t in (0, 1):
            self.phi_tile(t, fa, fb, lambda i, p: ('b', CS + 2*t), X, EPS, lambda i: FR + 4*t + 2*i)
        self.phi_tile(2, fa, fb, lambda i, p: ('b', CS + 4), X, EPS, lambda i: FR + 8 + 2*i)
        for i, p in ch: a(pk('add', X+4*i+2*p, self.acc(2,i)+2*p, ('b', EPS+2)))
        for i, p in ch: a(f"v_cvt_pk_bf16_f32 {v(FR+12+2*i+p)}, {v(X+4*i+2*p)}, {v(X+4*i+2*p+1)}")
        for t in (3, 4):
            for i, p in ch: a(pk('mul', X+4*i+2*p, fb(i,p), ('b', CS+2*t)))
            for i, p in ch: a(pk('fma', X+4*i+2*p, fa(i,p), self.acc(t,i)+2*p, X+4*i+2*p))
            for i, p in ch: a(f"v_cvt_pk_bf16_f32 {v(FR+4*(t+1)+2*i+p)}, {v(X+4*i+2*p)}, {v(X+4*i+2*p+1)}")
        a(f"v_cmp_gt_u32 vcc, 8, {v(L15)}")
        for r in range(4): a(f"v_cndmask_b32 {v(FR+12+r)}, {v(FR+12+r)}, {v(self.ONES)}, vcc")
        self.stamp(4)
        pairs = [(0, 0), (0, 1), (1, 0), (1, 1), (1, 2), (2, 0), (2, 1), (2, 2)]
        KVD = 12
        for j, (td, te) in enumerate(pairs):
            a(f"v_mfma_f32_16x16x32_bf16 {v(KVD+4*j,4)}, {v(FR+4*td,4)}, {v(FR+12+4*te,4)}, 0")
        a(f"v_mul_u32_u24 v2, 336, {v(G)}")
        a(f"v_add_u32 v2, {s(S_OA)}, v2")
        a(f"v_lshl_add_u32 v3, {v(L15)}, 4, v2")
        a(f"v_add_u32 v4, {-128 & 0xffffffff}, v3")
        a(f"v_add_u32 v5, {(4*336 - 128 - 320) & 0xffffffff}, v3")
        a(f"v_add_u32 v6, {4*336 - 128}, v3")
        a(f"v_cmp_eq_u32 vcc, 0, {v(G)}")
        a(f"v_cndmask_b32 v5, v5, v6, vcc")
        a(f"v_add_u32 v6, {8*336 - 128 - 320}, v3")
        a(f"v_cmp_eq_u32 vcc, 0, {v(L15)}")
        for td in range(3):
            a(f"v_add_u32 v10, {4*td*336 + 320}, v2")
            a(f"v_cndmask_b32 {v(7+td)}, {v(4+td)}, v10, vcc")
        def valid(td, te, l):
            col = l & 15; g = l >> 4; dqg = 4 * td + g
            if dqg > 9: return False
            hh = dqg // 5
            if te == 0:
                if col == 0: return True
                if col < 8: return False
            eg = col - 8 + 16 * te
            return eg // 20 == hh
        tot = 0
        for j, (td, te) in enumerate(pairs):
            m = sum(1 << l for l in range(64) if valid(td, te, l)); tot += bin(m).count('1')
            exec_mask(a, m)
            a(f"ds_write_b128 {v(7+td if te == 0 else 4+td)}, {v(KVD+4*j,4)} offset:{256*te}")
        assert tot == 210
        a("s_mov_b64 exec, -1")
        a(f"v_lshlrev_b32 v3, 4, v0")
        a(f"v_add_u32 v4, {SCR}, v3")
        a(f"v_mov_b32 v5, {hex(OOB)}")
        a(f"v_cmp_gt_u32 vcc, 420, v0")
        a(f"v_cndmask_b32 v3, v5, v3, vcc")
        if self.cfg.kvo == 1: gelu()
        a("s_waitcnt lgkmcnt(0)")
        self.stamp(5)
        a("s_barrier")
        for r in range(4): a(f"ds_read_b128 {v(12+4*r,4)}, v4 offset:{6720*r}")
        for e in range(4): a(f"s_mov_b32 {s(S_T0+e)}, {hex(0x07060500 + e)}")
        a("s_waitcnt lgkmcnt(0)")
        for p in range(2): a(pk('add', 12+2*p, 12+2*p, 16+2*p))
        for p in range(2): a(pk('add', 20+2*p, 20+2*p, 24+2*p))
        for p in range(2): a(pk('add', 12+2*p, 12+2*p, 20+2*p))
        for e in range(4): a(f"v_perm_b32 {v(12+e)}, {v(12+e)}, v79, {s(S_T0+e)}")
        a(f"buffer_store_dwordx4 v[12:15], v3, {s(R_WS,4)}, {s(S_CNT)} offen sc1")
        self.stamp(7)
        if self.cfg.kvo == 0: gelu()
        a(f"v_lshlrev_b32 v2, 4, v1")
        self.signal()
        self.stamp(9)
        self.nb_c_kv = self.nb_loop + a.nbar - nb + 1
        a.nbar = nb
        a("s_branch Lp2")

    def epi_q(self):
        a = self.a
        nb = a.nbar
        L15, G, TOK = self.L15, self.G, self.TOK
        self.stamp(2)
        a(f"s_setprio {min(3, self.cfg.pe + 1)}")
        a(f"s_mul_i32 {s(S_T0)}, {s(S_C)}, 448")
        a(f"s_add_u32 {s(S_T0)}, {s(S_T0)}, {ST_CS}")
        a(f"v_lshl_add_u32 v5, {v(G)}, 4, {s(S_T0)}")
        a(f"v_xor_b32 v6, 64, {v(TOK)}")
        a(f"s_lshl_b32 {s(S_T0)}, {s(S_C)}, 7")
        a(f"s_add_u32 {s(S_T0)}, {s(S_T0)}, {B1L}")
        a(f"v_lshl_add_u32 v7, {v(G)}, 3, {s(S_T0)}")
        A2 = 68; A1 = 112; BR = 76; CS = 84
        rd = [f"ds_read_b32 {v(A2)}, {v(TOK)} offset:1024", f"ds_read_b32 {v(A2+2)}, {v(TOK)} offset:1536",
              f"ds_read_b32 {v(A2+4)}, v6 offset:1024", f"ds_read_b32 {v(A2+6)}, v6 offset:1536"]
        for j in range(4):
            rd += [f"ds_read_b128 {v(CS+4*(3+j),4)}, v5 offset:{64*(3+j)}", f"ds_read_b64 {v(BR+2*j,2)}, v7 offset:{32*j}"]
        rd += [f"ds_read_b32 {v(A1)}, {v(TOK)}", f"ds_read_b32 {v(A1+2)}, {v(TOK)} offset:512",
               f"ds_read_b32 {v(A1+4)}, v6", f"ds_read_b32 {v(A1+6)}, v6 offset:512"]
        rd += [f"ds_read_b128 {v(CS+4*t,4)}, v5 offset:{64*t}" for t in range(3)]
        mf = self.p1_mfmas(1, self.YA, self.YB)
        mf = mf[6:] + mf[:6]
        interleave(a, mf, rd, 0.8, 2)
        a(f"v_lshlrev_b32 v2, 4, v1")
        self.gelu_consts()
        a("s_waitcnt lgkmcnt(0)")
        self.stamp(3)
        TMP = 124
        for j in range(4):
            self.gelu_tile(3 + j, A2, CS + 4*(3+j), BR + 2*j, lambda i: TMP + (j >> 1)*8 + 4*i + 2*(j & 1), 140)
            if j & 1: self.h_store(j >> 1, TMP)
        a(f"s_setprio {self.cfg.pe}")
        self.stamp(5)
        a(f"s_cmp_eq_u32 {s(S_C)}, 0")
        a(f"s_cbranch_scc1 Lq_phi")
        a.label('Lq_bar')
        a("s_waitcnt vmcnt(0)")
        self.signal()
        self.stamp(8)
        a(f"s_cmp_eq_u32 {s(S_C)}, 0")
        a(f"s_cbranch_scc1 Lq_after")
        a.label('Lq_phi')
        PQ = 152; EPS = 76; X = 112
        a(f"v_mov_b32 {v(EPS)}, {lit(1e-6)}")
        a(f"s_mov_b32 {s(S_K0)}, {lit(LOG2E)}")
        X = 96
        for t in range(3):
            self.phi_tile(t, lambda i, p: ('b', A1+4*i), lambda i, p: ('b', A1+4*i+2), lambda i, p: CS+4*t+2*p, X, EPS,
                          (lambda i: PQ + 4*i + 2*t) if t < 2 else (lambda i: PQ + 8 + 2*i))
        self.stamp(6)
        self.stamp(7)
        a(f"s_cmp_eq_u32 {s(S_C)}, 0")
        a(f"s_cbranch_scc1 Lq_bar")
        a.label('Lq_after')
        a(f"s_lshl_b32 {s(S_T1)}, {s(S_C)}, 12")
        a(f"s_add_u32 {s(S_T1)}, {s(S_T1)}, {KVT}")
        a(f"v_lshl_add_u32 v140, v1, 4, {s(S_T1)}")
        a(f"v_lshl_add_u32 v141, v1, 3, {s(S_T1)}")
        a(f"s_lshl_b32 {s(S_T1)}, {s(S_R)}, 5")
        a(f"s_lshl_b32 {s(S_T2)}, {s(S_C)}, 4")
        a(f"s_add_u32 {s(S_T1)}, {s(S_T1)}, {s(S_T2)}")
        a(f"v_add_u32 v142, {s(S_T1)}, {v(L15)}")
        a(f"v_xor_b32 v143, 16, v142")
        a(f"s_mul_i32 {s(S_T1)}, {s(S_C)}, 80")
        a(f"s_add_u32 {s(S_T1)}, {s(S_T1)}, {OEX}")
        for i in range(2):
            a(f"v_mul_u32_u24 {v(142+i)}, 160, {v(142+i)}")
            a(f"v_add_u32 {v(142+i)}, {s(S_T1)}, {v(142+i)}")
            a(f"v_lshl_add_u32 {v(144+i)}, {v(G)}, 1, {v(142+i)}")
            a(f"v_lshl_add_u32 {v(142+i)}, {v(G)}, 3, {v(142+i)}")
        self.stamp(9)
        self.nb_c_q = self.nb_loop + a.nbar - nb + 1
        a.nbar = nb

    def o_block(self):
        a = self.a
        a.label('Lob')
        F = 124; PQ = 152
        U = [[32, 36, 40], [44, 48, 148]]
        R = [146, 166]
        for k in range(3): a(f"ds_read_b128 {v(F+4*k,4)}, v140 offset:{1024*k}")
        a(f"ds_read_b64 {v(F+12,2)}, v141 offset:3072")
        a(f"ds_read_b64 {v(F+14,2)}, v141 offset:3584")
        a("s_waitcnt lgkmcnt(0)")
        for i in range(2):
            for k in (1, 2, 0):
                a(f"v_mfma_f32_16x16x32_bf16 {v(U[i][k],4)}, {v(F+4*k,4)}, {v(PQ+4*i,4)}, 0")
        for i in range(2):
            for k in (1, 2):
                a(f"v_mfma_f32_16x16x16_bf16 {v(U[i][k],4)}, {v(F+12+2*(k-1),2)}, {v(PQ+8+2*i,2)}, {v(U[i][k],4)}")
        for i in range(2):
            u = U[i][1]
            a(f"v_add_f32 {v(u+1)}, {lit(1e-6)}, {v(u+1)}")
            a(f"v_add_f32 {v(u+2)}, {lit(1e-6)}, {v(u+2)}")
            a(f"v_rcp_f32 {v(u+1)}, {v(u+1)}")
            a(f"v_rcp_f32 {v(u+2)}, {v(u+2)}")
        for i in range(2):
            u0, u1, u2 = U[i]
            for r in range(4): a(f"v_mul_f32 {v(u0+r)}, {v(u0+r)}, {v(u1+1)}")
            for r in range(4): a(f"v_mul_f32 {v(u2+r)}, {v(u2+r)}, {v(u1+2)}")
            a(f"v_mul_f32 {v(u1)}, {v(u1)}, {v(u1+1)}")
            a(f"v_mul_f32 {v(u1+3)}, {v(u1+3)}, {v(u1+2)}")
            a(f"v_cvt_pk_bf16_f32 {v(u0)}, {v(u0)}, {v(u0+1)}")
            a(f"v_cvt_pk_bf16_f32 {v(u0+1)}, {v(u0+2)}, {v(u0+3)}")
            a(f"v_cvt_pk_bf16_f32 {v(u2)}, {v(u2)}, {v(u2+1)}")
            a(f"v_cvt_pk_bf16_f32 {v(u2+1)}, {v(u2+2)}, {v(u2+3)}")
            a(f"v_cvt_pk_bf16_f32 {v(u1)}, {v(u1)}, {v(u1+3)}")
            a(f"ds_write_b64 {v(142+i)}, {v(u0,2)}")
            a(f"ds_write_b64 {v(142+i)}, {v(u2,2)} offset:40")
            a(f"ds_write_b16 {v(144+i)}, {v(u1)} offset:32")
            a(f"ds_write_b16_d16_hi {v(144+i)}, {v(u1)} offset:72")
        self.stamp(13)
        a(f"s_cmp_lg_u32 {s(S_C)}, 0")
        a(f"s_cbranch_scc1 Lobr_1")
        a(f"s_branch Lobr_0")

    AM = 12; AS = 32; P2X = 52; P2Y = 72; AR = 92; OR = 124
    def p2_pre_setup(self):
        a = self.a
        a(f"s_lshl_b32 {s(S_T2)}, {s(S_TT)}, 2")
        a(f"s_add_u32 {s(S_T2)}, {s(S_T2)}, {s(S_R)}")
        a(f"s_mul_i32 {s(S_OH)}, {s(S_T2)}, {48*1024}")
        a(f"s_mul_i32 {s(S_T3)}, {s(S_C)}, {24*1024}")
        a(f"s_add_u32 {s(S_OH)}, {s(S_OH)}, {s(S_T3)}")
        a(f"s_add_u32 {s(S_OH)}, {s(S_OH)}, {WS_H2}")
        a(f"s_mul_i32 {s(S_NONCE)}, {s(S_T2)}, {8*2560}")
        a(f"s_mul_i32 {s(S_T3)}, {s(S_C)}, {4*2560}")
        a(f"s_add_u32 {s(S_NONCE)}, {s(S_NONCE)}, {s(S_T3)}")
        a(f"s_add_u32 {s(S_NONCE)}, {s(S_NONCE)}, {WS_O2}")
        self.rot2(S_KC)
    def hload(self, j):
        a = self.a
        if j % 2 == 0:
            self.chunk_id(S_OA, S_T3, j // 2)
            a(f"s_lshl_b32 {s(S_OA)}, {s(S_OA)}, 11")
            a(f"s_add_u32 {s(S_OA)}, {s(S_OA)}, {s(S_OH)}")
        a(f"buffer_load_dwordx4 {v(self.AR+4*(j%8),4)}, v2, {s(R_WS,4)}, {s(S_OA)} offen offset:{1024*(j%2)} {self.cfg.hsc}")
    def p2_pre_loads(self, j0, j1):
        for j in range(j0, j1): self.hload(j)

    def phase2(self):
        a = self.a
        a.label('Lp2')
        a(f"s_cmp_lg_u32 {s(S_C)}, 0")
        a(f"s_cbranch_scc1 Lp2_1")
        for kap in range(2): self.phase2k(kap)

    def phase2k(self, kap):
        a = self.a; cfg = self.cfg
        nb = a.nbar
        a.label(f"Lp2_{kap}")
        AM, AS, XB, YB, AR, OR = self.AM, self.AS, self.P2X, self.P2Y, self.AR, self.OR
        VB = 4
        M = "v_mfma_f32_16x16x32_bf16"
        a(f"v_add_u32 v4, {kap*10240}, v2")
        a(f"v_add_u32 v5, {SLOT + kap*10240}, v2")
        a(f"v_add_u32 v6, {2*SLOT + kap*10240}, v2")
        q = [('A', j) for j in range(cfg.ramp)]
        hn = [cfg.ramp]
        def hload_upto(n, cap):
            while hn[0] < min(n, 24) and cap > 0:
                self.hload(hn[0]); q.append(('A', hn[0])); hn[0] += 1; cap -= 1
        ol = []
        for P in range(2):
            for i5 in range(4):
                ol.append((P, i5 >> 1, f"buffer_load_dwordx4 {v(OR+4*(5*P+i5),4)}, v2, {s(R_WS,4)}, {s(S_T0)} offen offset:{1024*(i5&1)} sc1", 24 + 5*P + i5))
            for hh in range(2):
                ol.append((P, hh, f"buffer_load_dwordx2 {v(OR+4*(5*P+4)+2*hh,2)}, v3, {s(R_WS,4)}, {s(S_T0)} offen offset:2048 sc1", 24 + 5*P + 4))
        def oloads(n):
            for _ in range(n):
                if not ol: return
                P, hh, txt, st = ol.pop(0)
                a(f"s_add_u32 {s(S_T0)}, {s(S_NONCE)}, {(2*P+hh)*2560}")
                a(txt); q.append(('A', st))
        def wait(tag):
            assert not any(o[3] == tag[1] for o in ol)
            idx = [k for k, t in enumerate(q) if t == tag]
            if not idx: return
            n = sum(1 for t in q[idx[-1]+1:] if t[0] != 'S')
            a(f"s_waitcnt vmcnt({n})")
            del q[:idx[-1] + 1]
        def areg(j): return AR + 4 * (j % 8) if j < 24 else OR + 4 * (j - 24)
        def reads(j, B):
            i = j // 2; base = RING[i % 6]; vb = VB + base // SLOT; off = base % SLOT + (j & 1) * 5120
            return [f"ds_read_b128 {v(B+4*c,4)}, {v(vb)} offset:{off + 1024*c}" for c in range(5)]
        def mfmas(j, B):
            ac = AM if j < 24 else AS
            first = j == 24 or (j == 0 and kap == 1)
            return [f"{M} {v(ac+4*c,4)}, {v(B+4*c,4)}, {v(areg(j),4)}, {'0' if first else v(ac+4*c,4)}" for c in range(5)]
        lq = []
        def lds(txt, tag): a(txt); lq.append(tag)
        def lwait(tag):
            idx = [k for k, t in enumerate(lq) if t == tag]
            if not idx: return
            a(f"s_waitcnt lgkmcnt({len(lq) - 1 - idx[-1]})")
            del lq[:idx[-1] + 1]
        own = [0, 1, 2] if kap == 0 else [3, 4]
        give = [c for c in range(5) if c not in own]
        a(f"v_lshlrev_b32 v3, 3, v1")
        a(f"v_mov_b32 v167, 0xffff0000")
        def unpack(d, b):
            return [f"v_lshlrev_b32 {v(d)}, 16, {v(b)}", f"v_and_b32 {v(d+1)}, v167, {v(b)}",
                    f"v_lshlrev_b32 {v(d+2)}, 16, {v(b+1)}", f"v_and_b32 {v(d+3)}, v167, {v(b+1)}"]
        if kap == 0:
            a(f"v_lshlrev_b32 v9, 3, {v(self.G)}")
            a(f"v_add_u32 v9, {B2L}, v9")
            for c in range(5): lds(f"ds_read_b64 {v(AS+2*c,2)}, v9 offset:{32*c}", 'b2')
        if kap == 0:
            lwait('b2')
            for c in range(5):
                for x in unpack(AM + 4*c, AS + 2*c): a(x)
        a(f"s_mul_i32 {s(S_T0)}, {s(S_R)}, 5120")
        a(f"s_add_u32 {s(S_T0)}, {s(S_T0)}, {EXB}")
        a(f"v_add_u32 v7, {s(S_T0)}, v2")
        a(f"s_lshl_b32 {s(S_T0)}, {s(S_R)}, 4")
        a(f"v_add_u32 v8, {s(S_T0)}, {v(self.L15)}")
        a(f"v_mul_u32_u24 v8, 160, v8")
        a(f"v_lshl_add_u32 v8, {v(self.G)}, 3, v8")
        a(f"v_add_u32 v8, {XT}, v8")
        G = AR
        self.final_prep()
        a(f"v_mov_b32 v10, {lit(-LOG2E)}")
        X = G + 20
        sil = []
        for k, c in enumerate(own):
            g = G + 4 * k; x = X + 4 * k; R = range(4)
            sil += [f"v_add_f32 {v(g+r)}, {v(g+r)}, {v(AM+4*c+r)}" for r in R]
            sil += [f"v_mul_f32 {v(x+r)}, v10, {v(g+r)}" for r in R]
            sil += [f"v_exp_f32 {v(x+r)}, {v(x+r)}" for r in R]
            sil += [f"v_add_f32 {v(x+r)}, 1.0, {v(x+r)}" for r in R]
            sil += [f"v_rcp_f32 {v(x+r)}, {v(x+r)}" for r in R]
            sil += [f"v_mul_f32 {v(g+r)}, {v(g+r)}, {v(x+r)}" for r in R]
        XR = G + 12
        for k, c in enumerate(own): sil += unpack(AM + 4 * k, XR + 2 * k)
        nsl = 7; per = -(-len(sil) // nsl)
        def take():
            r = sil[:per]; del sil[:per]; return r
        def step(j):
            B = XB if j % 2 == 0 else YB
            mf = mfmas(j, B); rd = reads(j + 2, B) if j + 2 < 34 else []
            ex = take() if j >= 27 else []
            order = give + own if j == 33 else range(5)
            n = 0
            for k, c in enumerate(order):
                a(mf[c])
                if rd: lds(rd[c], j + 2)
                while n < (k + 1) * len(ex) // 5: a(ex[n]); n += 1
            hload_upto(j + 9 if j >= 2 * cfg.kh - 1 else min(j + 9, 16), 3)
        a(f"s_setprio {cfg.pp}")
        a("s_barrier"); a.nbar -= 1
        self.p2_pre_loads(0, cfg.ramp)
        for x in reads(0, XB): lds(x, 0)
        for x in reads(1, YB): lds(x, 1)
        self.stamp(20)
        for j in range(34):
            i = j // 2
            if j % 2 == 0:
                if i >= cfg.ko: oloads((cfg.opc + 1) // 2)
            else:
                if i >= cfg.ko: oloads(cfg.opc // 2)
            if j == 0:
                a("s_waitcnt vmcnt(0)"); q.clear()
            wait(('A', j))
            lwait(j)
            if j == 27: lwait('g')
            if j % 2 == 1 and i <= 11:
                a("s_barrier"); self.stamp(21 + i)
            if j == 26:
                lwait('mx')
                a("s_barrier"); self.stamp(33)
                for k, c in enumerate(own):
                    lds(f"ds_read_b128 {v(G+4*k,4)}, v7 offset:{1024*c}", 'g')
                    lds(f"ds_read_b64 {v(XR+2*k,2)}, v8 offset:{32*c}", 'g')
            step(j)
            if j == 2 * cfg.ka - 1:
                a(f"s_cmp_lg_u32 {s(S_TY)}, 0")
                a(f"s_cbranch_scc1 Lob")
                a.label(f"Lobr_{kap}")
            if j == 2 * cfg.ka + 1 - 1: pass
            if j == 24:
                for c in give: lds(f"ds_write_b128 v7, {v(AM+4*c,4)} offset:{1024*c}", 'mx')
        assert not ol and not sil
        for c in give: a(f"ds_write_b128 v7, {v(AS+4*c,4)} offset:{1024*c}")
        X = AM
        a("s_waitcnt lgkmcnt(0)")
        a("s_barrier")
        for k, c in enumerate(own): a(f"ds_read_b128 {v(XB+4*k,4)}, v7 offset:{1024*c}")
        a("s_waitcnt lgkmcnt(0)")
        prs = [(k, c, p) for k, c in enumerate(own) for p in range(2)]
        for k, c, p in prs: a(pk('add', XB+4*k+2*p, XB+4*k+2*p, AS+4*c+2*p))
        for k, c, p in prs: a(pk('fma', X+4*k+2*p, XB+4*k+2*p, G+4*k+2*p, X+4*k+2*p))
        for k, c, p in prs: a(f"v_cvt_pk_bf16_f32 {v(XB+2*k+p)}, {v(X+4*k+2*p)}, {v(X+4*k+2*p+1)}")
        for k, c in enumerate(own): a(f"ds_write_b64 v8, {v(XB+2*k,2)} offset:{32*c}")
        a("s_waitcnt lgkmcnt(0)")
        a("s_barrier")
        self.nb_c_p2 = a.nbar - nb
        a.nbar = nb
        if kap == 0: a("s_branch Lfinal_store")

    def build(self):
        a = self.a
        self.entry()
        self.loader()
        self.compute_setup()
        self.duty(0, self.XA, self.XB)
        self.duty(1, self.YA, self.YB)
        self.pack_blocks()
        self.o_block()
        self.p1_loop(0); self.epi_kv()
        self.p1_loop(1); self.epi_q()
        self.phase2()
        self.final_store()
        assert self.nb_ld_kv == self.nb_c_kv, (self.nb_ld_kv, self.nb_c_kv)
        assert self.nb_ld_q == self.nb_c_q, (self.nb_ld_q, self.nb_c_q)
        assert self.nb_ld_p2 == self.nb_c_p2, (self.nb_ld_p2, self.nb_c_p2)
        body = a.finish()
        head = open('recurrent_scan__linear_attn_block__mixer_channel_mlp__prompt.s.ref').read().split('; Override launch')[0]
        txt = head + f"; @launch grid=(256,1,1) block=(768,1,1) lds={LDS_TOTAL}\n"
        txt += f'.amdgcn_target "amdgcn-amd-amdhsa--gfx950"\n.text\n.globl {NAME}\n.p2align 8\n.type {NAME},@function\n{NAME}:\n'
        txt += body
        txt += f""".section .rodata,"a"
.p2align 6
.amdhsa_kernel {NAME}
  .amdhsa_next_free_vgpr 168
  .amdhsa_next_free_sgpr 102
  .amdhsa_accum_offset 168
  .amdhsa_group_segment_fixed_size 0
  .amdhsa_kernarg_size 88
  .amdhsa_user_sgpr_count 2
  .amdhsa_user_sgpr_kernarg_segment_ptr 1
  .amdhsa_system_sgpr_workgroup_id_x 1
.end_amdhsa_kernel
"""
        return txt

def wg_type(cfg_kw, wg):
    m = cfg_kw.get('map1', Cfg.map1)
    return (wg >> {'A': 5, 'B': 6, 'D': 7}[m]) & 1

def make(**kw):
    cfg = Cfg()
    for k, x in kw.items(): setattr(cfg, k, x)
    return Gen(cfg).build()

if __name__ == '__main__':
    out = sys.argv[1] if len(sys.argv) > 1 else 'recurrent_scan__linear_attn_block__mixer_channel_mlp__prompt.s'
    kw = {}
    for x in sys.argv[2:]:
        k, val = x.split('='); kw[k] = eval(val)
    open(out, 'w').write(make(**kw))
```

```python
import sys, math, struct
from asmlib import *

NAME = 'recurrent_scan__linear_attn_block__mixer_channel_mlp__prompt_kernel'

class Cfg:
    n1 = 8
    diag = False
    ko = 11
    rot2 = (0, 1)
    kh = 5
    map1 = 'D'
    kprot = True
    fs = 7
    psl = 2
    ka = 2
    kvo = 0
    prew = True
    sbar = True
    hsc = 'sc1'
    bsc = 'sc1'
    nh0 = 3
    pe = 2
    pp = 0
    gfirst = False
    staged = (6, 8, 10, 12, 14, 16)
    map2 = 'A'
    opc = 4
    cpw = 11
    xlat = None
    xg = None
    pl = 0
    rpm = 1
    rp2 = 3
    wopf = False
    ramp = 2
    xr = 7
    xm = 7
    xd = 11
    rot1 = (1, 3)
    pfs = (0, 1)
    cpn = 8
    cpf = 2
    il1 = (0.75, 3)
    il0 = (0.9, 3)
    prio = 0
    dbgt = False
    light = False

SLOT = 45056
SCR = 3 * SLOT
LDS_TOTAL = 163840
ST = SLOT + 40960
ST_CS = ST + 2048
B1L = SCR + 28160
KVT = SCR
OEX = SCR + 8192
XT = SCR
B2L = ST + 3328
RING = [SLOT, SLOT + 20480, 2 * SLOT, 2 * SLOT + 20480, 0, 20480]
EXB = RING[5]
WS_FH = 0x160000; WS_FK = 0x168000; WS_FO = 0x170000; WS_FP = 9216; WS_FS = 10240
WS_TS = 0x10000
WS_RP = 0x20000; WS_CP = 0x48000
WS_KP = 0x80000; KP_STRIDE = 6784; WS_KT = 0x178000
ST_N = ST + 3072; ST_C = ST + 3076
WS_P2 = 0x200000; WS_O2 = 0x500000; WS_H2 = 0x800000
WS_TS2 = 0xE00000
WS_SIZE = 0xF00000
OOB = 0x40000000
P_X, P_W, P_WO, P_W1, P_B1, P_W2, P_B2, P_OUT, P_DBG, P_WS = 4, 6, 8, 12, 14, 16, 18, 20, 22, 24
S_S0, S_COL = 26, 27
R_X, R_W, R_W1, R_MID, R_WS, R_PK, R_OUT, R_BI = 28, 32, 36, 40, 44, 48, 52, 56
S_WID, S_RB, S_HG, S_TY, S_TT, S_N, S_XCD, S_IDX, S_R, S_C = 60, 61, 62, 63, 64, 65, 66, 67, 68, 69
S_T0, S_T1, S_T2, S_T3 = 70, 71, 72, 73
S_KC, S_OA, S_OW, S_OM, S_OH = 74, 75, 76, 77, 78
S_NONCE, S_CNT, S_U, S_DELTA, S_IT = 79, 80, 81, 82, 83
S_MASK = 84
S_DEST = 86
S_PIDX = 97
S_TS = 98
S_PKO, S_PKS = 100, 101
S_L = S_R
S_K0, S_K1 = 100, 101
VDIAG = 11

LOG2E = 1.4426950408889634
def f2u(x): return struct.unpack('<I', struct.pack('<f', x))[0]
def lit(x): return hex(f2u(x))

def srd(a, r, p, size):
    a(f"s_mov_b32 {s(r)}, {s(p)}")
    a(f"s_and_b32 {s(r+1)}, {s(p+1)}, 0xffff")
    a(f"s_mov_b32 {s(r+2)}, {hex(size)}")
    a(f"s_mov_b32 {s(r+3)}, 0x20000")

def interleave(a, main, fill, last_frac=0.7, first=0):
    n = len(main); m = len(fill); k = 0
    lim = max(1, int(n * last_frac))
    while k < min(first, m): a(fill[k]); k += 1
    for i, x in enumerate(main):
        a(x)
        tgt = first + math.ceil((m - first) * min(i + 1, lim) / lim) if m > first else m
        while k < tgt: a(fill[k]); k += 1
    while k < m: a(fill[k]); k += 1

def pk(op, d, *src):
    ops = []; lo = []; hi = []
    for x in src:
        if isinstance(x, int): assert x % 2 == 0; ops.append(v(x, 2)); lo.append(0); hi.append(1)
        elif isinstance(x, str): ops.append(x); lo.append(0); hi.append(0)
        elif x[0] == 'b': assert x[1] % 2 == 0; ops.append(v(x[1], 2)); lo.append(0); hi.append(0)
        elif x[0] == 's': assert x[1] % 2 == 0; ops.append(s(x[1], 2)); lo.append(0); hi.append(0)
    assert d % 2 == 0
    return f"v_pk_{op}_f32 {v(d,2)}, {', '.join(ops)} op_sel:[{','.join(map(str,lo))}] op_sel_hi:[{','.join(map(str,hi))}]"

def exec_mask(a, m):
    a(f"s_mov_b32 exec_lo, {hex(m & 0xffffffff)}")
    a(f"s_mov_b32 exec_hi, {hex(m >> 32)}")
DIAGMASK = sum(1 << l for l in range(64) if ((l & 15) >> 2) == (l >> 4))

class Gen:
    def __init__(self, cfg):
        self.cfg = cfg
        self.a = Asm()
        self.uid = 0
    def lab(self, p):
        self.uid += 1; return f"L{p}_{self.uid}"

    def stamp(self, i):
        if not self.cfg.diag: return
        a = self.a
        a("s_waitcnt lgkmcnt(0)")
        a(f"s_mov_b32 m0, {s(S_PIDX)}")
        a("s_nop 0")
        a(f"v_writelane_b32 {v(VDIAG)}, {s(S_TS)}, m0")
        a(f"{'s_memrealtime' if self.cfg.diag == 'rt' else 's_memtime'} {s(S_TS,2)}")
        a(f"s_mov_b32 {s(S_PIDX)}, {i}")

    def dbgt(self, slot):
        if not self.cfg.dbgt: return
        a = self.a
        L = self.lab('dt')
        a(f"s_cmp_lg_u32 {s(S_WID)}, 3")
        a(f"s_cbranch_scc1 {L}")
        a(f"s_cmp_lg_u32 s2, 3")
        a(f"s_cbranch_scc1 {L}")
        a(f"s_memrealtime {s(S_TS,2)}")
        a("s_waitcnt lgkmcnt(0)")
        a(f"v_mov_b32 v120, {s(S_TS)}")
        a(f"s_memtime {s(S_TS,2)}")
        a("s_waitcnt lgkmcnt(0)")
        a(f"v_mov_b32 v121, {s(S_TS)}")
        a(f"v_mov_b32 v122, {8*(slot-1)}")
        a(f"global_store_dwordx2 v122, v[120:121], {s(P_DBG,2)}")
        a.label(L)

    def entry(self):
        a = self.a; cfg = self.cfg
        a(f"s_cmp_ge_u32 s2, 256")
        a(f"s_cbranch_scc1 Lend")
        a(f"s_load_dwordx16 s[4:19], s[0:1], 0")
        a(f"s_load_dwordx4 s[20:23], s[0:1], 64")
        a(f"s_load_dwordx2 s[24:25], s[0:1], 80")
        if cfg.light:
            a(f"s_memrealtime {s(S_TS,2)}")
            a(f"s_memtime {s(S_MASK,2)}")
        if cfg.diag:
            a(f"s_memrealtime {s(S_TS,2)}")
            a(f"s_mov_b32 {s(S_PIDX)}, 0")
            a(f"v_mov_b32 {v(VDIAG)}, 0")
        a(f"v_lshrrev_b32 v2, 6, v0")
        a(f"v_and_b32 v1, 63, v0")
        a(f"v_readfirstlane_b32 {s(S_WID)}, v2")
        a(f"s_and_b32 {s(S_XCD)}, s2, 7")
        a(f"s_lshr_b32 {s(S_IDX)}, s2, 3")
        def field(dst, xs, xm, xl, is_, im):
            a(f"s_bfe_u32 {s(S_T0)}, {s(S_XCD)}, {hex((xm.bit_length() << 16) | xs)}")
            a(f"s_lshl_b32 {s(S_T0)}, {s(S_T0)}, {xl}")
            a(f"s_bfe_u32 {s(S_T1)}, {s(S_IDX)}, {hex((im.bit_length() << 16) | is_)}")
            a(f"s_add_u32 {s(dst)}, {s(S_T0)}, {s(S_T1)}")
        if cfg.map1 == 'A':
            field(S_RB, 1, 3, 2, 0, 3); field(S_HG, 0, 1, 2, 3, 3)
            a(f"s_bfe_u32 {s(S_TY)}, {s(S_IDX)}, 0x10002")
        elif cfg.map1 == 'B':
            field(S_RB, 0, 1, 3, 0, 7); field(S_HG, 1, 3, 1, 4, 1)
            a(f"s_bfe_u32 {s(S_TY)}, {s(S_IDX)}, 0x10003")
        else:
            field(S_RB, 0, 1, 3, 0, 7); field(S_HG, 1, 3, 1, 3, 1)
            a(f"s_bfe_u32 {s(S_TY)}, {s(S_IDX)}, 0x10004")
        a(f"s_lshl_b32 {s(S_COL)}, {s(S_HG)}, 1")
        a(f"s_add_u32 {s(S_COL)}, {s(S_COL)}, {s(S_TY)}")
        a(f"s_mul_i32 {s(S_S0)}, {s(S_RB)}, {cfg.rot1[1]}")
        a(f"s_mul_i32 {s(S_T0)}, {s(S_COL)}, {cfg.rot1[0]}")
        a(f"s_add_u32 {s(S_S0)}, {s(S_S0)}, {s(S_T0)}")
        a(f"s_mul_i32 {s(S_T0)}, {s(S_S0)}, 6554")
        a(f"s_lshr_b32 {s(S_T0)}, {s(S_T0)}, 16")
        a(f"s_mul_i32 {s(S_T0)}, {s(S_T0)}, 10")
        a(f"s_sub_u32 {s(S_S0)}, {s(S_S0)}, {s(S_T0)}")
        a(f"s_cmp_ge_u32 {s(S_WID)}, 4")
        a(f"s_cbranch_scc1 Lcompute")

    def calc_p2map(self):
        a = self.a
        if self.cfg.map2 == 'A':
            a(f"s_lshr_b32 {s(S_T0)}, {s(S_XCD)}, 1")
            a(f"s_lshl_b32 {s(S_T0)}, {s(S_T0)}, 3")
            a(f"s_and_b32 {s(S_T1)}, {s(S_IDX)}, 7")
            a(f"s_add_u32 {s(S_TT)}, {s(S_T0)}, {s(S_T1)}")
            a(f"s_and_b32 {s(S_T0)}, {s(S_XCD)}, 1")
            a(f"s_lshl_b32 {s(S_T0)}, {s(S_T0)}, 2")
            a(f"s_lshr_b32 {s(S_T1)}, {s(S_IDX)}, 3")
            a(f"s_add_u32 {s(S_N)}, {s(S_T0)}, {s(S_T1)}")
        else:
            a(f"s_lshl_b32 {s(S_T0)}, {s(S_XCD)}, 2")
            a(f"s_and_b32 {s(S_T1)}, {s(S_IDX)}, 3")
            a(f"s_add_u32 {s(S_TT)}, {s(S_T0)}, {s(S_T1)}")
            a(f"s_lshr_b32 {s(S_N)}, {s(S_IDX)}, 2")
    def calc_u(self):
        a = self.a
        self.calc_p2map()
        a(f"s_add_u32 {s(S_U)}, {s(S_HG)}, 128")
        a(f"s_cmp_lt_u32 {s(S_RB)}, 4")
        a(f"s_cselect_b32 {s(S_U)}, {s(S_U)}, 255")
        a(f"s_lshl_b32 {s(S_T0)}, {s(S_HG)}, 4")
        a(f"s_add_u32 {s(S_T0)}, {s(S_T0)}, {s(S_RB)}")
        a(f"s_cmp_lg_u32 {s(S_TY)}, 0")
        a(f"s_cselect_b32 {s(S_U)}, {s(S_T0)}, {s(S_U)}")

    def poll_issue(self, vdst, voff, n=1):
        self.a(f"buffer_load_dword{'x2' if n == 2 else ''} {v(vdst, n)}, {v(voff)}, {s(R_WS,4)}, 0 offen sc1")
    def poll_check(self, vdst, voff, nlanes, n=1):
        a = self.a
        L = self.lab('poll'); Ld = self.lab('polld')
        mask = (1 << nlanes) - 1
        a(f"s_mov_b32 {s(S_CNT)}, 0")
        a.label(L)
        a(f"v_cmp_ne_u32 vcc, {s(S_NONCE)}, {v(vdst)}")
        if n == 2:
            a(f"v_cmp_ne_u32 {s(S_MASK,2)}, {s(S_NONCE)}, {v(vdst+1)}")
            a(f"s_or_b64 vcc, vcc, {s(S_MASK,2)}")
        if nlanes < 32:
            a(f"s_and_b32 {s(S_T0)}, vcc_lo, {hex(mask)}")
        else:
            a(f"s_and_b32 {s(S_T0)}, vcc_hi, {hex(mask >> 32)}")
            a(f"s_or_b32 {s(S_T0)}, {s(S_T0)}, vcc_lo")
        a(f"s_cbranch_scc0 {Ld}")
        a(f"s_add_u32 {s(S_CNT)}, {s(S_CNT)}, 1")
        a(f"s_cmp_gt_u32 {s(S_CNT)}, 0x40000")
        a(f"s_cbranch_scc1 {Ld}")
        if self.cfg.psl: a(f"s_sleep {self.cfg.psl}")
        self.poll_issue(vdst, voff, n)
        a("s_waitcnt vmcnt(0)")
        a(f"s_branch {L}")
        a.label(Ld)
    def poll(self, vdst, voff, nlanes, n=1):
        self.poll_issue(vdst, voff, n); self.a("s_waitcnt vmcnt(0)"); self.poll_check(vdst, voff, nlanes, n)
    def only_l(self, l=0):
        L = self.lab('l0')
        self.a(f"s_cmp_lg_u32 {s(S_L)}, {l}")
        self.a(f"s_cbranch_scc1 {L}")
        return L
    def flag_store(self, voff):
        self.a(f"buffer_store_dword v41, {v(voff)}, {s(R_WS,4)}, 0 offen sc1")

    def loader(self):
        a = self.a; cfg = self.cfg
        VO = 12
        V_P2 = 23
        V_FH, V_F2, V_FP, V_FS, V_QK, V_QP, V_QH, V_QO, V_QS = 24, 25, 26, 27, 28, 29, 30, 31, 32
        V_PK = 33
        nb0 = a.nbar
        a(f"s_mov_b32 {s(S_L)}, {s(S_WID)}")
        a(f"s_mov_b32 {s(S_KC)}, {s(S_S0)}")
        if cfg.xg:
            G, mul, ca, cb = cfg.xg
            a(f"s_mul_i32 {s(S_KC)}, {s(S_COL)}, {ca}")
            a(f"s_mul_i32 {s(S_T0)}, {s(S_RB)}, {cb}")
            a(f"s_add_u32 {s(S_KC)}, {s(S_KC)}, {s(S_T0)}")
            a(f"s_and_b32 {s(S_KC)}, {s(S_KC)}, {G - 1}")
            a(f"s_mul_i32 {s(S_KC)}, {s(S_KC)}, {mul}")
        if cfg.prio: a(f"s_setprio {cfg.prio}")
        a(f"v_lshrrev_b32 v2, 3, v1")
        a(f"v_lshrrev_b32 v3, 4, v1")
        a(f"v_and_b32 v4, 7, v1")
        a(f"v_xor_b32 v5, v4, v3")
        a(f"s_lshl_b32 {s(S_T0)}, {s(S_RB)}, 2")
        a(f"s_add_u32 {s(S_T0)}, {s(S_T0)}, {s(S_L)}")
        a(f"s_mul_i32 {s(S_T0)}, {s(S_T0)}, {32*1280}")
        a(f"v_mul_u32_u24 v6, 1280, v2")
        a(f"v_lshl_add_u32 v6, v5, 4, v6")
        a(f"v_add_u32 {v(VO)}, {s(S_T0)}, v6")
        a(f"v_xor_b32 v7, 64, {v(VO)}")
        a(f"v_add_u32 {v(VO+1)}, 10240, v7")
        a(f"v_add_u32 {v(VO+2)}, 20480, {v(VO)}")
        a(f"v_add_u32 {v(VO+3)}, 30720, v7")
        a(f"s_lshl_b32 {s(S_DEST)}, {s(S_L)}, 12")
        for n in range(1, 4): a(f"s_add_u32 {s(S_DEST+n)}, {s(S_DEST)}, {1024*n}")
        a(f"s_lshl_b32 {s(S_OA)}, {s(S_KC)}, 7")
        a("s_waitcnt lgkmcnt(0)")
        if cfg.light: a(f"s_mov_b32 s3, {s(S_MASK)}")
        self.stamp(1)
        self.dbgt(2)
        srd(a, R_X, P_X, 2048 * 1280)
        srds = [R_X]*4 + [R_W]*3 + [R_MID]*2 + [R_W1]*2
        soffs = [S_OA]*4 + [S_OW]*3 + [S_OM]*2 + [S_OH]*2
        def dma(k, n):
            a(f"s_add_u32 m0, {s(S_DEST+n)}, {(k % 3) * SLOT}")
            a(f"buffer_load_dwordx4 {v(VO+n if n < cfg.xd or k < 2 else 5)}, {s(srds[n],4)}, {s(soffs[n])} offen lds")
        for n in range(4): dma(0, n)
        srd(a, R_W, P_W, 640 * 3840)
        srd(a, R_W1, P_W1, 640 * 3072)
        def wrow(dst, i, valid_check):
            a(f"v_add_u32 v6, {s(S_T1)}, v1")
            if i: a(f"v_add_u32 v6, {64*i}, v6")
            a(f"v_mul_u32_u24 v7, 6554, v6")
            a(f"v_lshrrev_b32 v7, 16, v7")
            a(f"v_mad_i32_i24 v8, v7, -10, v6")
            a(f"v_lshrrev_b32 v9, 1, v7")
            a(f"v_xor_b32 v9, v9, v7")
            a(f"v_and_b32 v9, 4, v9")
            a(f"v_mul_u32_u24 v9, 3, v9")
            a(f"v_xor_b32 v7, v7, v9")
            a(f"v_mul_u32_u24 v7, 3840, v7")
            a(f"v_lshl_add_u32 v7, v8, 4, v7")
            a(f"v_add_u32 {v(dst)}, {s(S_T2)}, v7")
            if valid_check:
                a(f"v_cmp_gt_u32 vcc, 640, v6")
                a(f"v_mov_b32 v9, {hex(OOB)}")
                a(f"v_cndmask_b32 {v(dst)}, v9, {v(dst)}, vcc")
        a(f"s_mul_i32 {s(S_OW)}, {s(S_KC)}, {64*3840}")
        a(f"s_mul_i32 {s(S_OH)}, {s(S_KC)}, {64*3072}")
        a(f"s_mul_i32 {s(S_T3)}, {s(S_HG)}, 384")
        a(f"s_cmp_lg_u32 {s(S_TY)}, 0")
        a(f"s_cbranch_scc1 Lld_setq")
        for i in range(3): a(f"s_mov_b32 {s(R_MID+i)}, {s(R_W+i)}")
        a(f"s_mov_b32 {s(R_MID+3)}, 0x20000")
        a(f"s_mov_b32 {s(S_OM)}, {s(S_OW)}")
        a(f"v_lshrrev_b32 v6, 1, v4")
        a(f"v_xor_b32 v6, v6, v3")
        a(f"v_and_b32 v7, 1, v4")
        a(f"v_lshl_add_u32 v6, v6, 1, v7")
        a(f"v_and_b32 v7, 4, v2")
        a(f"v_add_u32 v7, v7, v2")
        a(f"v_mul_u32_u24 v7, 3072, v7")
        a(f"v_lshl_add_u32 v6, v6, 4, v7")
        a(f"s_mul_i32 {s(S_T0)}, {s(S_L)}, {16*3072}")
        a(f"s_add_u32 {s(S_T0)}, {s(S_T0)}, {s(S_T3)}")
        a(f"v_add_u32 {v(VO+9)}, {s(S_T0)}, v6")
        a(f"v_add_u32 {v(VO+10)}, {4*3072}, {v(VO+9)}")
        a(f"s_lshl_b32 {s(S_T0)}, {s(S_L)}, 11")
        a(f"s_add_u32 {s(S_DEST+9)}, {s(S_T0)}, 36864")
        a(f"s_add_u32 {s(S_DEST+10)}, {s(S_T0)}, {36864+1024}")
        dma(0, 9); dma(0, 10)
        a(f"s_and_b32 {s(S_T1)}, {s(S_L)}, 1")
        a(f"s_mul_i32 {s(S_T1)}, {s(S_T1)}, 320")
        a(f"s_lshr_b32 {s(S_T2)}, {s(S_L)}, 1")
        a(f"s_mul_i32 {s(S_T2)}, {s(S_T2)}, 1280")
        a(f"s_mul_i32 {s(S_T0)}, {s(S_HG)}, 160")
        a(f"s_add_u32 {s(S_T2)}, {s(S_T2)}, {s(S_T0)}")
        a(f"s_add_u32 {s(S_T2)}, {s(S_T2)}, 1280")
        a(f"s_mul_i32 {s(S_T0)}, {s(S_L)}, 5120")
        for i in range(5):
            a(f"s_add_u32 {s(S_DEST+4+i)}, {s(S_T0)}, {16384 + 1024*i}")
            wrow(VO + 4 + i, i, False)
            dma(0, 4 + i)
        a(f"s_branch Lld_setdone")
        a.label('Lld_setq')
        for i in range(3): a(f"s_mov_b32 {s(R_MID+i)}, {s(R_W1+i)}")
        a(f"s_mov_b32 {s(R_MID+3)}, 0x20000")
        a(f"s_mov_b32 {s(S_OM)}, {s(S_OH)}")
        a(f"s_add_u32 {s(S_T3)}, {s(S_T3)}, 128")
        a(f"v_and_b32 v8, 15, v1")
        a(f"v_lshrrev_b32 v6, 1, v8")
        a(f"v_xor_b32 v6, v6, v3")
        a(f"v_and_b32 v7, 1, v8")
        a(f"v_lshl_add_u32 v6, v6, 1, v7")
        a(f"v_mul_u32_u24 v7, 3072, v3")
        a(f"v_lshl_add_u32 v6, v6, 4, v7")
        a(f"v_xor_b32 v7, 128, v6")
        a(f"s_mul_i32 {s(S_T0)}, {s(S_L)}, {16*3072}")
        a(f"s_add_u32 {s(S_T0)}, {s(S_T0)}, {s(S_T3)}")
        a(f"v_add_u32 {v(VO+7)}, {s(S_T0)}, v6")
        a(f"v_add_u32 v7, {s(S_T0)}, v7")
        a(f"v_add_u32 {v(VO+8)}, {8*3072}, v7")
        a(f"v_add_u32 {v(VO+9)}, {4*3072}, {v(VO+7)}")
        a(f"v_add_u32 {v(VO+10)}, {12*3072}, v7")
        a(f"s_lshl_b32 {s(S_T0)}, {s(S_L)}, 12")
        for i in range(4):
            a(f"s_add_u32 {s(S_DEST+7+i)}, {s(S_T0)}, {26624 + 1024*i}")
            dma(0, 7 + i)
        a(f"s_mul_i32 {s(S_T1)}, {s(S_L)}, 192")
        a(f"s_mul_i32 {s(S_T2)}, {s(S_HG)}, 160")
        a(f"s_mul_i32 {s(S_T0)}, {s(S_L)}, 3072")
        for i in range(3):
            a(f"s_add_u32 {s(S_DEST+4+i)}, {s(S_T0)}, {16384 + 1024*i}")
            if i:
                a(f"s_cmp_eq_u32 {s(S_L)}, 3")
                a(f"s_cselect_b32 {s(S_DEST+4+i)}, {43008 + 1024*(i-1)}, {s(S_DEST+4+i)}")
            wrow(VO + 4 + i, i, i > 0)
            dma(0, 4 + i)
        a.label('Lld_setdone')
        self.stamp(40)
        def advance():
            a(f"s_add_u32 {s(S_KC)}, {s(S_KC)}, 1")
            a(f"s_cmp_eq_u32 {s(S_KC)}, 10")
            a(f"s_cselect_b32 {s(S_KC)}, 0, {s(S_KC)}")
            a(f"s_lshl_b32 {s(S_OA)}, {s(S_KC)}, 7")
            a(f"s_mul_i32 {s(S_OW)}, {s(S_KC)}, {64*3840}")
            a(f"s_mul_i32 {s(S_OH)}, {s(S_KC)}, {64*3072}")
            a(f"s_cmp_lg_u32 {s(S_TY)}, 0")
            a(f"s_cselect_b32 {s(S_OM)}, {s(S_OH)}, {s(S_OW)}")
        n1 = cfg.n1

        def idle_setup():
            srd(a, R_WS, P_WS, WS_SIZE)
            self.calc_u()
            a("v_mov_b32 v42, 0")
            a("v_mov_b32 v40, 0")
            L = self.lab('nc')
            a(f"s_or_b32 {s(S_T0)}, {s(S_L)}, s2")
            a(f"s_cbranch_scc1 {L}")
            if cfg.xlat:
                n, ptr, stride = cfg.xlat
                a("s_waitcnt vmcnt(0)")
                a("v_mov_b32 v50, 4096")
                for _ in range(n):
                    a(f"global_load_dword v51, v50, {s(ptr,2)}")
                    a(f"v_add_u32 v50, {stride}, v50")
                    a("s_waitcnt vmcnt(0)")
            a(f"s_load_dword {s(S_T0)}, {s(P_WS,2)}, 0")
            a("s_waitcnt lgkmcnt(0)")
            a(f"s_mul_i32 {s(S_T0)}, {s(S_T0)}, 0x9E3779B1")
            a(f"s_add_u32 {s(S_T0)}, {s(S_T0)}, 0x7F4A7C15")
            a(f"s_cmp_eq_u32 {s(S_T0)}, 0")
            a(f"s_cselect_b32 {s(S_T0)}, 1, {s(S_T0)}")
            a(f"v_mov_b32 v43, {s(S_T0)}")
            a(f"global_store_dword v42, v43, {s(P_DBG,2)} sc1")
            a(f"global_store_dword v42, v43, {s(P_WS,2)} sc1")
            a.label(L)
            a(f"v_add_u32 v0, 512, v0")
            if cfg.xd < 11: a(f"v_mov_b32 v5, {hex(OOB)}")
            a(f"v_lshlrev_b32 v39, 4, v1")
            a(f"v_lshl_add_u32 v10, v1, 2, {s(S_T3)}")
            srd(a, R_BI, P_B1, 3072)
            a(f"v_mov_b32 v6, {hex(OOB)}")
            a(f"v_cmp_eq_u32 vcc, 0, v1")
            fs = cfg.fs; gs = max(7, fs + 4)
            a(f"v_min_u32 v9, 15, v1")
            assert fs == 7
            a(f"v_cmp_gt_u32 {s(S_MASK,2)}, 32, v1")
            a(f"s_lshl_b32 {s(S_T0)}, {s(S_RB)}, {gs}")
            a(f"s_lshl_b32 {s(S_T1)}, {s(S_COL)}, {fs}")
            a(f"s_add_u32 {s(S_T1)}, {s(S_T1)}, {s(S_T0)}")
            a(f"s_add_u32 {s(S_T1)}, {s(S_T1)}, {WS_FH}")
            a(f"v_lshl_add_u32 v7, v1, 2, {s(S_T1)}")
            a(f"v_cndmask_b32 {v(V_FH)}, v6, v7, {s(S_MASK,2)}")
            a(f"s_lshl_b32 {s(S_T1)}, {s(S_HG)}, {fs}")
            a(f"s_add_u32 {s(S_T3)}, {s(S_T0)}, {s(S_T1)}")
            a(f"s_add_u32 {s(S_T3)}, {s(S_T3)}, {WS_FO}")
            a(f"s_cmp_lg_u32 {s(S_TY)}, 0")
            a(f"s_cselect_b32 {s(S_T3)}, {s(S_T3)}, {hex(OOB)}")
            a(f"v_lshl_add_u32 v7, v1, 2, {s(S_T3)}")
            a(f"v_cndmask_b32 {v(V_F2)}, v6, v7, {s(S_MASK,2)}")
            a(f"s_lshl_b32 {s(S_T0)}, {s(S_RB)}, 7")
            a(f"s_and_b32 {s(S_T1)}, {s(S_U)}, 1")
            a(f"s_lshl_b32 {s(S_T1)}, {s(S_T1)}, 9")
            a(f"s_lshr_b32 {s(S_T2)}, {s(S_U)}, 1")
            a(f"s_lshl_b32 {s(S_T2)}, {s(S_T2)}, 2")
            a(f"s_add_u32 {s(S_T1)}, {s(S_T1)}, {s(S_T2)}")
            a(f"s_lshl_b32 {s(S_T2)}, {s(S_RB)}, 4")
            a(f"s_cmp_lg_u32 {s(S_TY)}, 0")
            a(f"s_cselect_b32 {s(S_T2)}, 0, {s(S_T2)}")
            a(f"s_add_u32 {s(S_T1)}, {s(S_T1)}, {s(S_T2)}")
            a(f"s_add_u32 {s(S_T1)}, {s(S_T1)}, {WS_FP}")
            a(f"v_mov_b32 v7, {s(S_T1)}")
            a(f"v_cndmask_b32 {v(V_FP)}, v6, v7, vcc")
            a(f"s_add_u32 {s(S_T0)}, {s(S_T0)}, {WS_FS}")
            a(f"s_lshl_b32 {s(S_T1)}, {s(S_COL)}, 7")
            a(f"s_add_u32 {s(S_T1)}, {s(S_T1)}, {WS_FS + 2048}")
            a(f"s_lshl_b32 {s(S_T2)}, {s(S_S0)}, 2")
            a(f"s_add_u32 {s(S_T3)}, {s(S_T0)}, {s(S_T2)}")
            a(f"s_cmp_lt_u32 {s(S_COL)}, 10")
            a(f"s_cselect_b32 {s(S_T3)}, {s(S_T3)}, {hex(OOB)}")
            a(f"v_mov_b32 v7, {s(S_T3)}")
            a(f"v_cndmask_b32 {v(V_FS)}, v6, v7, vcc")
            a(f"s_add_u32 {s(S_T3)}, {s(S_T1)}, {s(S_T2)}")
            a(f"s_cmp_lt_u32 {s(S_RB)}, 10")
            a(f"s_cselect_b32 {s(S_T3)}, {s(S_T3)}, {hex(OOB)}")
            a(f"v_writelane_b32 {v(V_FS)}, {s(S_T3)}, 1")
            a(f"s_sub_u32 {s(S_T1)}, {s(S_T1)}, 40")
            a(f"v_lshl_add_u32 v7, v1, 2, {s(S_T0)}")
            a(f"v_lshl_add_u32 v8, v1, 2, {s(S_T1)}")
            a(f"v_cmp_gt_u32 vcc, 10, v1")
            a(f"v_cndmask_b32 {v(V_QS)}, v8, v7, vcc")
            a(f"s_lshr_b32 {s(S_T1)}, {s(S_N)}, 2")
            a(f"s_lshl_b32 {s(S_T1)}, {s(S_T1)}, 9")
            a(f"s_add_u32 {s(S_T1)}, {s(S_T1)}, {WS_FP}")
            a(f"v_lshl_add_u32 {v(V_QP)}, v1, 3, {s(S_T1)}")
            a(f"s_and_b32 {s(S_T1)}, {s(S_N)}, 3")
            a(f"s_lshl_b32 {s(S_T1)}, {s(S_T1)}, 4")
            a(f"v_add_u32 v7, {s(S_T1)}, {v(V_QP)}")
            a(f"v_cndmask_b32 {v(V_QP)}, v7, {v(V_QP)}, {s(S_MASK,2)}")
            a(f"s_lshr_b32 {s(S_T1)}, {s(S_TT)}, 1")
            a(f"s_lshl_b32 {s(S_T1)}, {s(S_T1)}, {gs}")
            a(f"s_add_u32 {s(S_T1)}, {s(S_T1)}, {WS_FH}")
            a(f"v_min_u32 v9, 7, v1")
            a(f"v_lshl_add_u32 {v(V_QK)}, v9, {fs + 1}, {s(S_T1)}")
            a(f"v_add_u32 {v(V_QH)}, {1 << fs}, {v(V_QK)}")
            a(f"s_add_u32 {s(S_T1)}, {s(S_T1)}, {WS_FO - WS_FH}")
            a(f"v_lshl_add_u32 {v(V_QO)}, v9, {fs}, {s(S_T1)}")
            a(f"v_and_b32 v6, 15, v1")
            a(f"s_lshl_b32 {s(S_T0)}, {s(S_L)}, 5")
            a(f"v_add_u32 v6, {s(S_T0)}, v6")
            a(f"v_mul_u32_u24 v6, 160, v6")
            a(f"v_lshl_add_u32 v6, v3, 3, v6")
            a(f"v_add_u32 v38, {OEX}, v6")
            a(f"s_lshl_b32 {s(S_T0)}, {s(S_RB)}, 3")
            a(f"s_lshl_b32 {s(S_T1)}, {s(S_L)}, 1")
            a(f"s_add_u32 {s(S_T0)}, {s(S_T0)}, {s(S_T1)}")
            a(f"s_lshl_b32 {s(S_T0)}, {s(S_T0)}, 3")
            a(f"s_add_u32 {s(S_T0)}, {s(S_T0)}, {s(S_HG)}")
            a(f"s_mul_i32 {s(S_T0)}, {s(S_T0)}, 2560")
            a(f"s_add_u32 {s(S_PKS)}, {s(S_T0)}, {WS_O2}")
        def if_pack():
            L = self.lab('pk')
            a(f"s_cmp_gt_u32 {s(S_U)}, 135")
            a(f"s_cbranch_scc1 {L}")
            return L
        def p2_setup():
            a(f"s_mul_i32 {s(S_T0)}, {s(S_N)}, {68*5120}")
            a(f"s_and_b32 {s(S_T1)}, {s(S_L)}, 1")
            a(f"s_mul_i32 {s(S_T1)}, {s(S_T1)}, 5120")
            a(f"s_add_u32 {s(S_T0)}, {s(S_T0)}, {s(S_T1)}")
            a(f"s_add_u32 {s(S_T0)}, {s(S_T0)}, {WS_P2}")
            a(f"v_add_u32 {v(V_P2)}, {s(S_T0)}, v39")
            a(f"s_mul_i32 {s(S_DEST)}, {s(S_L)}, 5120")
            a(f"s_lshr_b32 {s(S_T1)}, {s(S_L)}, 1")
            a(f"s_mul_i32 {s(S_OM)}, {s(S_T1)}, {24*5120}")
            a(f"s_mul_i32 {s(S_OH)}, {s(S_T1)}, {10*5120}")
            a(f"s_add_u32 {s(S_OH)}, {s(S_OH)}, {48*5120}")
            self.rot2(S_KC)
        def p2_off(i):
            if i < 12:
                self.chunk_id(S_OA, S_T0, i)
                a(f"s_mul_i32 {s(S_OA)}, {s(S_OA)}, 10240")
                a(f"s_add_u32 {s(S_OA)}, {s(S_OA)}, {s(S_OM)}")
            else:
                a(f"s_add_u32 {s(S_OA)}, {s(S_OH)}, {(i-12)*10240}")
        def p2_chunk(i):
            p2_off(i)
            a(f"s_add_u32 m0, {s(S_DEST)}, {RING[i % 6]}")
            for j in range(4):
                a(f"buffer_load_dwordx4 {v(V_P2)}, {s(R_WS,4)}, {s(S_OA)} offen offset:{1024*j} {cfg.bsc} lds")
            a(f"s_add_u32 m0, {s(S_DEST)}, {RING[i % 6] + 4096}")
            a(f"s_add_u32 {s(S_OA)}, {s(S_OA)}, 4096")
            a(f"buffer_load_dwordx4 {v(V_P2)}, {s(R_WS,4)}, {s(S_OA)} offen {cfg.bsc} lds")
        def sreg(i): return 48 + 20 * cfg.staged.index(i)
        def p2_stage(i):
            p2_off(i)
            for j in range(4):
                a(f"buffer_load_dwordx4 {v(sreg(i)+4*j,4)}, {v(V_P2)}, {s(R_WS,4)}, {s(S_OA)} offen offset:{1024*j} {cfg.bsc}")
            a(f"s_add_u32 {s(S_OA)}, {s(S_OA)}, 4096")
            a(f"buffer_load_dwordx4 {v(sreg(i)+16,4)}, {v(V_P2)}, {s(R_WS,4)}, {s(S_OA)} offen {cfg.bsc}")
        def p2_put(i):
            base = RING[i % 6]
            for j in range(5):
                a(f"ds_write_b128 {v(2 + base // SLOT)}, {v(sreg(i)+4*j,4)} offset:{base % SLOT + 1024*j}")
        for k in range(10):
            if k + 1 < 10:
                advance()
                for n in range(n1): dma(k + 1, n)
                wait = n1
            else:
                wait = 5 * cfg.pfs[0]
            if k == 0:
                self.stamp(41); idle_setup(); self.stamp(42)
            a(f"s_waitcnt vmcnt({wait})")
            if k == 3:
                L = self.only_l(0)
                a(f"v_readfirstlane_b32 {s(S_NONCE)}, v40")
                Lp = self.lab('np'); Lq = self.lab('nq')
                a(f"s_mov_b32 {s(S_CNT)}, 0")
                a.label(Lp)
                a(f"s_cmp_lg_u32 {s(S_NONCE)}, 0")
                a(f"s_cbranch_scc1 {Lq}")
                a(f"s_add_u32 {s(S_CNT)}, {s(S_CNT)}, 1")
                a(f"s_cmp_gt_u32 {s(S_CNT)}, 0x40000")
                a(f"s_cbranch_scc1 {Lq}")
                a(f"global_load_dword v40, v42, {s(P_DBG,2)} sc1")
                a("s_waitcnt vmcnt(0)")
                a(f"v_readfirstlane_b32 {s(S_NONCE)}, v40")
                a("s_nop 1")
                a(f"s_branch {Lp}")
                a.label(Lq)
                a(f"v_mov_b32 v41, {s(S_NONCE)}")
                a.label(L)
            if k == 7:
                L = self.only_l(0); self.poll_check(44, V_QS, 20); a.label(L)
            if k == 8:
                L = self.only_l(0); self.poll_check(46, V_QP, 34, 2); a.label(L)
            if k == 9: a("s_waitcnt lgkmcnt(0)")
            a("s_barrier")
            self.stamp(2 + k)
            if k == 0: self.dbgt(3)
            if k == 4: self.dbgt(4)
            if k == 1 and cfg.prew:
                L = self.only_l(0)
                a(f"buffer_store_dword v42, {v(V_FH)}, {s(R_WS,4)}, 0 offen sc1")
                a(f"buffer_store_dword v42, {v(V_F2)}, {s(R_WS,4)}, 0 offen sc1")
                a.label(L)
            if k == 2:
                L = self.only_l(0)
                a(f"global_load_dword v40, v42, {s(P_DBG,2)} sc1")
                a.label(L)
            if k == 3:
                L = self.only_l(0); self.flag_store(V_FS); a.label(L)
            if k == 5:
                L = if_pack(); L2 = self.only_l(0); self.flag_store(V_FP); a.label(L2); a.label(L)
            if k == 6:
                L = self.only_l(0); self.poll_issue(44, V_QS); a.label(L)
            if k == 7:
                L = self.only_l(0); self.poll_issue(46, V_QP, 2); a.label(L)
            if k == 7:
                a(f"s_cmp_lt_u32 {s(S_L)}, 2")
                a(f"s_cselect_b32 {s(S_T0)}, {s(S_RB)}, {s(S_COL)}")
                a(f"s_mov_b32 {s(S_T1)}, {WS_CP}")
                a(f"s_cselect_b32 {s(S_T1)}, {WS_RP}, {s(S_T1)}")
                a(f"s_mul_i32 {s(S_T0)}, {s(S_T0)}, 10240")
                a(f"s_add_u32 {s(S_T0)}, {s(S_T0)}, {s(S_T1)}")
                a(f"s_and_b32 {s(S_T1)}, {s(S_L)}, 1")
                a(f"s_mul_i32 {s(S_T1)}, {s(S_T1)}, 5120")
                a(f"s_add_u32 {s(S_T0)}, {s(S_T0)}, {s(S_T1)}")
                a(f"s_mul_i32 {s(S_T2)}, {s(S_L)}, 5120")
                a(f"s_add_u32 m0, {s(S_T2)}, {SCR}")
                for j in range(4):
                    a(f"buffer_load_dwordx4 v39, {s(R_WS,4)}, {s(S_T0)} offen offset:{1024*j} sc1 lds")
                a(f"s_add_u32 m0, {s(S_T2)}, {SCR + 4096}")
                a(f"s_add_u32 {s(S_T0)}, {s(S_T0)}, 4096")
                a(f"buffer_load_dwordx4 v39, {s(R_WS,4)}, {s(S_T0)} offen sc1 lds")
            if k == 8:
                a(f"s_lshr_b32 {s(S_T0)}, {s(S_L)}, 1")
                a(f"s_mul_i32 {s(S_T0)}, {s(S_T0)}, 10240")
                a(f"s_and_b32 {s(S_T1)}, {s(S_L)}, 1")
                a(f"s_lshl_b32 {s(S_T1)}, {s(S_T1)}, 9")
                a(f"s_add_u32 {s(S_T0)}, {s(S_T0)}, {s(S_T1)}")
                a(f"s_add_u32 {s(S_T0)}, {s(S_T0)}, {SCR}")
                a(f"v_lshl_add_u32 v6, v1, 3, {s(S_T0)}")
                for ch in range(10): a(f"ds_read_b64 {v(44+2*ch,2)}, v6 offset:{1024*ch}")
            if k + 1 < 10:
                for n in range(n1, 11): dma(k + 1, n)
            if k == 0:
                L = self.only_l(1)
                a(f"s_mov_b32 m0, {B1L}")
                a(f"buffer_load_dword v10, {s(R_BI,4)}, 0 offen lds")
                a.label(L)
            if k == 8:
                a("s_waitcnt lgkmcnt(0)")
                for ch in range(1, 10):
                    a(f"v_add_f32 v44, v44, {v(44+2*ch)}")
                    a(f"v_add_f32 v45, v45, {v(45+2*ch)}")
                a(f"s_and_b32 {s(S_T1)}, {s(S_L)}, 1")
                a(f"s_lshl_b32 {s(S_T1)}, {s(S_T1)}, 6")
                a(f"v_add_u32 v6, {s(S_T1)}, v1")
                Lc = self.lab('stc'); Ld = self.lab('std')
                a(f"s_cmp_ge_u32 {s(S_L)}, 2")
                a(f"s_cbranch_scc1 {Lc}")
                a(f"v_lshlrev_b32 v6, 2, v6")
                a(f"v_add_u32 v6, {ST}, v6")
                a(f"v_mul_f32 v46, {lit(1/640)}, v44")
                a(f"v_mul_f32 v47, v46, v46")
                a(f"v_mov_b32 v48, {lit(1/640)}")
                a(f"v_fma_f32 v45, v45, v48, -v47")
                a(f"v_max_f32 v45, 0, v45")
                a(f"v_add_f32 v47, {lit(1e-5)}, v45")
                a(f"v_rsq_f32 v48, v47")
                a(f"v_mul_f32 v49, v48, v48")
                a(f"v_fmaak_f32 v49, v49, v45, {lit(1e-5)}")
                a(f"v_rsq_f32 v49, v49")
                a(f"v_mul_f32 v50, v48, v49")
                a(f"v_mul_f32_e64 v51, -v46, v48")
                a(f"v_mul_f32_e64 v52, -v46, v50")
                a(f"ds_write_b32 v6, v48")
                a(f"ds_write_b32 v6, v51 offset:512")
                a(f"ds_write_b32 v6, v50 offset:1024")
                a(f"ds_write_b32 v6, v52 offset:1536")
                a(f"s_branch {Ld}")
                a.label(Lc)
                a(f"v_lshlrev_b32 v6, 3, v6")
                a(f"v_add_u32 v6, {ST_CS}, v6")
                a(f"ds_write_b64 v6, v[44:45]")
                a.label(Ld)
                L = self.only_l(0)
                a(f"v_mov_b32 v6, {ST_N}")
                a(f"ds_write2_b32 v6, v41, v42 offset1:1")
                a.label(L)
                srd(a, R_BI, P_B2, 1280)
                L = self.only_l(3)
                a(f"s_mul_i32 {s(S_T1)}, {s(S_N)}, 160")
                a(f"v_lshlrev_b32 v6, 2, v1")
                a(f"s_mov_b32 m0, {B2L}")
                a(f"buffer_load_dword v6, {s(R_BI,4)}, {s(S_T1)} offen lds")
                a.label(L)
                p2_setup()
                for c in range(cfg.pfs[0]): p2_chunk(c)
            if k == 9:
                a(f"s_lshl_b32 {s(S_T0)}, {s(S_L)}, 11")
                a(f"s_add_u32 {s(S_T0)}, {s(S_T0)}, {KVT}")
                a(f"v_add_u32 v6, {s(S_T0)}, v39")
                for e in range(4): a(f"v_mov_b32 {v(44+e)}, 0")
                a(f"ds_write_b128 v6, v[44:47]")
                a(f"ds_write_b128 v6, v[44:47] offset:1024")
                for c in range(cfg.pfs[0], sum(cfg.pfs)): p2_chunk(c)
        a("s_waitcnt lgkmcnt(0)")
        a("s_barrier")
        self.stamp(12); self.dbgt(5)
        a(f"s_setprio {cfg.pl}")
        for c in range(sum(cfg.pfs), 6): p2_chunk(c)
        if cfg.wopf:
            nsh = 8 if cfg.map2 == 'A' else 4
            per = 102400 // nsh // 4
            a(f"s_and_b32 {s(S_T0)}, {s(S_IDX)}, {nsh - 1}")
            a(f"s_lshl_b32 {s(S_T0)}, {s(S_T0)}, 2")
            a(f"s_add_u32 {s(S_T0)}, {s(S_T0)}, {s(S_L)}")
            a(f"s_mul_i32 {s(S_T0)}, {s(S_T0)}, {per}")
            a(f"s_mul_i32 {s(S_T1)}, {s(S_N)}, {68*5120}")
            a(f"s_add_u32 {s(S_T0)}, {s(S_T0)}, {s(S_T1)}")
            a(f"s_add_u32 {s(S_T0)}, {s(S_T0)}, {WS_P2 + 48*5120}")
            a(f"v_min_u32 v6, {per // 128 - 1}, v1")
            a(f"v_lshlrev_b32 v6, 7, v6")
            a(f"buffer_load_dword v94, v6, {s(R_WS,4)}, {s(S_T0)} offen sc1")
        a(f"v_mov_b32 v6, {ST_N}")
        a(f"ds_read_b32 v41, v6")
        a(f"s_cmp_lg_u32 {s(S_TY)}, 0")
        a(f"s_cbranch_scc1 Lld_eq")
        self.l1_setup()
        a("s_barrier")
        self.stamp(14)
        a("s_branch Lld_e4")
        a.label('Lld_eq')
        for n in range(2): self.kvt_addr(n)
        a(f"s_mul_i32 {s(S_T0)}, {s(S_HG)}, {KP_STRIDE}")
        a(f"s_add_u32 {s(S_PKO)}, {s(S_T0)}, {WS_KT}")
        a.label('Lld_e4')
        L2 = self.lab('c8'); Lr = self.lab('c8r'); Lg = self.lab('c8g')
        a(f"s_cmp_ge_u32 {s(S_L)}, 2")
        a(f"s_cbranch_scc1 {L2}")
        a(f"v_mov_b32 v6, {ST_C}")
        a(f"s_mov_b32 {s(S_CNT)}, 0")
        a.label(Lr)
        a(f"ds_read_b32 v7, v6")
        a("s_waitcnt lgkmcnt(0)")
        a(f"v_readfirstlane_b32 {s(S_T0)}, v7")
        a(f"s_cmp_ge_u32 {s(S_T0)}, 8")
        a(f"s_cbranch_scc1 {Lg}")
        a("s_sleep 1")
        a(f"s_add_u32 {s(S_CNT)}, {s(S_CNT)}, 1")
        a(f"s_cmp_lt_u32 {s(S_CNT)}, 0x400000")
        a(f"s_cbranch_scc1 {Lr}")
        a.label(Lg)
        self.stamp(16)
        L = self.only_l(0)
        Lk = self.lab('fk')
        a(f"s_cmp_eq_u32 {s(S_TY)}, 0")
        a(f"s_cbranch_scc1 {Lk}")
        self.flag_store(V_FH); a("s_waitcnt vmcnt(0)")
        a.label(Lk)
        self.poll(44, V_QH, 8); a.label(L)
        a.label(L2)
        a("s_waitcnt lgkmcnt(0)")
        self.l1_run()
        a("s_barrier")
        self.stamp(19)
        self.nb_ld_kv = a.nbar - nb0
        self.nb_ld_q = a.nbar - nb0 - 1
        nb3 = a.nbar
        pend = []
        ka = cfg.ka
        def if_q():
            L = self.lab('iq')
            a(f"s_cmp_eq_u32 {s(S_TY)}, 0")
            a(f"s_cbranch_scc1 {L}")
            return L
        def kt_loads():
            for n in range(2): a(f"buffer_load_dwordx4 {v(48+4*n,4)}, {v(60+n)}, {s(R_WS,4)}, {s(S_PKO)} offen sc1")
        for i in range(13):
            if i in (ka + 3, 12):
                a("s_waitcnt vmcnt(0)"); pend.clear()
            elif i + 1 in pend:
                k = pend.index(i + 1)
                a(f"s_waitcnt vmcnt({5 * (len(pend) - 1 - k)})"); del pend[:k+1]
            if i == ka:
                L = if_q(); Lr = self.lab('kr'); Lg = self.lab('kg')
                a(f"s_waitcnt vmcnt({5 if ka >= 2 else 0})")
                a(f"s_mov_b32 {s(S_CNT)}, 0")
                a.label(Lr)
                a(f"v_cmp_ne_u32 vcc, v50, v41")
                a(f"v_cmp_ne_u32 {s(S_MASK,2)}, v54, v41")
                a(f"s_and_b64 {s(S_MASK,2)}, {s(S_MASK,2)}, {s(S_DEST+4,2)}")
                a(f"s_or_b64 vcc, vcc, {s(S_MASK,2)}")
                a(f"s_cbranch_scc0 {Lg}")
                a(f"s_add_u32 {s(S_CNT)}, {s(S_CNT)}, 1")
                a(f"s_cmp_gt_u32 {s(S_CNT)}, 0x40000")
                a(f"s_cbranch_scc1 {Lg}")
                if cfg.psl: a(f"s_sleep {cfg.psl}")
                kt_loads()
                a("s_waitcnt vmcnt(0)")
                a(f"s_branch {Lr}")
                a.label(Lg)
                for n in range(2):
                    Lz = self.lab('kz')
                    if n:
                        a(f"s_mov_b64 exec, {s(S_DEST+4,2)}")
                        a(f"s_cbranch_execz {Lz}")
                    a(f"ds_write_b64 {v(56+n)}, {v(48+4*n,2)}")
                    a(f"s_mov_b64 exec, {s(S_DEST+6+2*n,2)}")
                    a(f"s_cbranch_execz {Lz}")
                    for k in range(3):
                        a(f"v_add_u32 {v(56+n)}, {v(56+n)}, {v(58+n)}")
                        a(f"ds_write_b64 {v(56+n)}, {v(48+4*n,2)}")
                    a.label(Lz)
                    a("s_mov_b64 exec, -1")
                a("s_waitcnt lgkmcnt(0)")
                a.label(L)
            if i == cfg.kh:
                L = self.only_l(0)
                a(f"s_waitcnt vmcnt({0 if i - 1 in (ka + 1, ka + 2) else 5})")
                self.poll_check(45, V_QK, 8); a.label(L)
            if i == cfg.ko:
                L = self.only_l(0)
                a(f"s_waitcnt vmcnt({5 if i - 1 + 5 <= 16 else 0})")
                self.poll_check(44, V_QO, 8); a.label(L)
            if i: a("s_barrier")
            self.stamp(20 + i)
            if i == 0: self.dbgt(6)
            if i == 11: self.dbgt(7)
            if i == cfg.ko - 1:
                L = self.only_l(0); self.poll_issue(44, V_QO); a.label(L)
            if i == 1:
                L = self.only_l(0)
                a(f"s_cmp_lg_u32 {s(S_TY)}, 0")
                a(f"s_cbranch_scc1 {L}")
                self.flag_store(V_FH)
                a.label(L)
            if i == cfg.kh - 1:
                L = self.only_l(0); self.poll_issue(45, V_QK); a.label(L)
            if i == ka - 1:
                L = if_q(); kt_loads(); a.label(L)
            if i == ka + 1:
                L = if_q()
                for t in range(2):
                    for k in range(5): a(f"ds_read_b64 {v(48+12*t+2*k,2)}, v38 offset:{2560*t + 32*k}")
                a(f"v_lshlrev_b32 v6, 3, v1")
                a(f"s_add_u32 {s(S_T0)}, {s(S_PKS)}, {8*2560}")
                a("s_waitcnt lgkmcnt(0)")
                for t in range(2):
                    so = s(S_PKS) if t == 0 else s(S_T0)
                    a(f"buffer_store_dwordx4 {v(48+12*t,4)}, v39, {s(R_WS,4)}, {so} offen sc1")
                    a(f"buffer_store_dwordx4 {v(52+12*t,4)}, v39, {s(R_WS,4)}, {so} offen offset:1024 sc1")
                    a(f"buffer_store_dwordx2 {v(56+12*t,2)}, v6, {s(R_WS,4)}, {so} offen offset:2048 sc1")
                a.label(L)
            if i == ka + 3:
                L = self.only_l(0); self.flag_store(V_F2); a.label(L)
            todo = [] if i in (0, ka + 1, ka + 2) else ([i + 3, i + 4, i + 5] if i == ka + 3 else [i + 5])
            for c in todo:
                if c <= 16: p2_chunk(c); pend.append(c)
            if i == ka + 4:
                a(f"s_mul_i32 {s(S_T0)}, {s(S_TT)}, {64*1280}")
                a(f"s_mul_i32 {s(S_T1)}, {s(S_N)}, 160")
                a(f"s_add_u32 {s(S_T0)}, {s(S_T0)}, {s(S_T1)}")
                a(f"s_mul_i32 {s(S_T2)}, {s(S_L)}, 192")
                a(f"s_mul_i32 {s(S_T3)}, {s(S_L)}, 3072")
                for j in range(3):
                    a(f"v_add_u32 v6, {s(S_T2)}, v1")
                    if j: a(f"v_add_u32 v6, {64*j}, v6")
                    a(f"v_mul_u32_u24 v7, 6554, v6")
                    a(f"v_lshrrev_b32 v7, 16, v7")
                    a(f"v_mul_u32_u24 v7, {1280-160}, v7")
                    a(f"v_lshl_add_u32 v7, v6, 4, v7")
                    if j:
                        L = self.lab('xt')
                        a(f"s_cmp_eq_u32 {s(S_L)}, 3")
                        a(f"s_cbranch_scc1 {L}")
                    a(f"s_add_u32 m0, {s(S_T3)}, {XT + 1024*j}")
                    a(f"buffer_load_dwordx4 v7, {s(R_X,4)}, {s(S_T0)} offen lds")
                    if j: a.label(L)
        self.final_prep()
        a("s_barrier")
        self.stamp(33)
        a("s_barrier")
        self.stamp(37)
        a("s_barrier")
        self.stamp(38); self.dbgt(8)
        self.nb_ld_p2 = a.nbar - nb3
        a(f"s_cmp_ge_u32 {s(S_WID)}, 2")
        a(f"s_cbranch_scc1 Lfin")
        a("s_branch Lfinal_store")

    def kvt_addr(self, n):
        a = self.a
        a(f"v_add_u32 v70, {(256*n - 512) & 0xffffffff}, v0")
        a(f"v_cmp_le_u32 vcc, 210, v70")
        a(f"v_cndmask_b32 v84, 0, 1, vcc")
        a(f"v_mov_b32 v86, -210")
        a(f"v_mad_i32_i24 v85, v84, v86, v70")
        a(f"v_mul_u32_u24 v86, 3121, v85")
        a(f"v_lshrrev_b32 v86, 16, v86")
        a(f"v_mov_b32 v88, -21")
        a(f"v_mad_i32_i24 v87, v86, v88, v85")
        a(f"v_cmp_le_u32 vcc, 5, v86")
        a(f"v_cndmask_b32 v88, 0, 1, vcc")
        a(f"v_lshlrev_b32 v89, 1, v88")
        a(f"v_subrev_u32 v90, 16, v87")
        a(f"v_lshlrev_b32 v90, 2, v90")
        a(f"v_mad_u32_u24 v90, v88, 3, v90")
        a(f"v_add_u32 v91, 1, v88")
        a(f"v_cmp_eq_u32 {s(S_MASK,2)}, 20, v87")
        a(f"v_cndmask_b32 v90, v90, v91, {s(S_MASK,2)}")
        a(f"v_cmp_gt_u32 vcc, 16, v87")
        a(f"v_cndmask_b32 v90, v90, v87, vcc")
        a(f"v_cndmask_b32 v89, 1, v89, vcc")
        a(f"v_and_b32 v91, 3, v86")
        a(f"v_lshl_add_u32 v90, v91, 4, v90")
        a(f"v_lshlrev_b32 v91, 10, v89")
        a(f"v_lshl_add_u32 v91, v90, 4, v91")
        a(f"v_and_b32 v92, 4, v86")
        a(f"v_lshl_add_u32 v91, v92, 1, v91")
        a(f"v_lshrrev_b32 v92, 1, v89")
        a(f"v_lshlrev_b32 v92, 9, v92")
        a(f"v_lshl_add_u32 v92, v90, 3, v92")
        a(f"v_add_u32 v92, 3072, v92")
        a(f"v_cmp_le_u32 vcc, 8, v86")
        a(f"v_cndmask_b32 v91, v91, v92, vcc")
        a(f"v_cndmask_b32 {v(58+n)}, 64, 32, vcc")
        a(f"v_lshl_add_u32 v91, v84, 12, v91")
        a(f"v_add_u32 {v(56+n)}, {KVT}, v91")
        a(f"v_mov_b32 v86, {hex(OOB)}")
        a(f"v_cmp_gt_u32 vcc, 420, v70")
        a(f"v_lshlrev_b32 v70, 4, v70")
        a(f"v_cndmask_b32 {v(60+n)}, v86, v70, vcc")
        a(f"s_and_b64 {s(S_DEST+6+2*n,2)}, {s(S_MASK,2)}, vcc")
        if n: a(f"s_mov_b64 {s(S_DEST+4,2)}, vcc")

    def l1_setup(self):
        a = self.a
        a(f"v_mov_b32 v5, {hex(OOB)}")
        a(f"v_and_b32 v4, 31, v1")
        a(f"s_lshl_b32 {s(S_T0)}, {s(S_RB)}, 5")
        a(f"v_add_u32 v4, {s(S_T0)}, v4")
        a(f"v_cmp_gt_u32 vcc, 420, v4")
        a(f"v_lshlrev_b32 v4, 4, v4")
        a(f"v_lshrrev_b32 v3, 5, v1")
        a(f"v_mul_u32_u24 v3, {8*KP_STRIDE}, v3")
        a(f"v_add_u32 v3, v3, v4")
        a(f"v_cndmask_b32 v3, v5, v3, vcc")
        a(f"s_mov_b64 {s(S_DEST+4,2)}, vcc")
        a(f"v_cmp_gt_u32 vcc, 32, v1")
        a(f"s_and_b64 vcc, vcc, {s(S_DEST+4,2)}")
        a(f"v_cndmask_b32 v4, v5, v4, vcc")
        a("s_waitcnt lgkmcnt(0)")
        for e in range(1, 4): a(f"v_lshrrev_b32 {v(88+e)}, {8*e}, v41")
        a(f"v_mov_b32 v88, v41")
        a(f"v_mov_b32 v92, 0xffffff00")
    def l1_run(self):
        a = self.a
        Ls = self.lab('l1s'); Lr = self.lab('l1r'); Lg = self.lab('l1g')
        a(f"s_cmp_lg_u32 {s(S_L)}, 1")
        a(f"s_cbranch_scc1 {Ls}")
        a(f"s_cmp_lg_u32 {s(S_TY)}, 0")
        a(f"s_cbranch_scc1 {Ls}")
        a(f"s_cmp_ge_u32 {s(S_RB)}, 14")
        a(f"s_cbranch_scc1 {Ls}")
        a(f"s_mul_i32 {s(S_T1)}, {s(S_HG)}, {KP_STRIDE}")
        a(f"s_lshl_b32 {s(S_T2)}, {s(S_T1)}, 4")
        a(f"s_add_u32 {s(S_T1)}, {s(S_T1)}, {WS_KT}")
        a(f"s_add_u32 {s(S_T2)}, {s(S_T2)}, {WS_KP}")
        a(f"s_mov_b32 {s(S_CNT)}, 0")
        D = 48
        a.label(Lr)
        for k in range(8):
            a(f"s_add_u32 {s(S_T3)}, {s(S_T2)}, {k*KP_STRIDE}")
            a(f"buffer_load_dwordx4 {v(D+4*k,4)}, v3, {s(R_WS,4)}, {s(S_T3)} offen sc1")
        for k in range(8):
            a(f"s_waitcnt vmcnt({7-k})")
            for e in range(4):
                if k == 0: a(f"v_xor_b32 {v(84+e)}, {v(D+e)}, {v(88+e)}")
                else: a(f"v_bitop3_b32 {v(84+e)}, {v(84+e)}, {v(D+4*k+e)}, {v(88+e)} bitop3:0xf6")
            for e in range(4): a(f"v_and_b32 {v(D+4*k+e)}, v92, {v(D+4*k+e)}")
            if k:
                for e in range(4): a(f"v_add_f32 {v(D+e)}, {v(D+e)}, {v(D+4*k+e)}")
        a(f"v_or3_b32 v84, v84, v85, v86")
        a(f"v_or_b32 v84, v84, v87")
        a(f"v_and_b32 v84, 0xff, v84")
        a(f"v_cmp_ne_u32 vcc, 0, v84")
        a(f"s_and_b64 vcc, vcc, {s(S_DEST+4,2)}")
        a(f"s_cbranch_scc0 {Lg}")
        a(f"s_add_u32 {s(S_CNT)}, {s(S_CNT)}, 1")
        a(f"s_cmp_lt_u32 {s(S_CNT)}, 0x40000")
        a(f"s_cbranch_scc1 {Lr}")
        a.label(Lg)
        for e in range(4): a(f"v_mov_b32 {v(D+4+e)}, {v(D+e)}")
        for e in range(4): a(f"v_permlane32_swap_b32 {v(D+4+e)}, {v(D+e)}")
        for e in range(4): a(f"v_add_f32 {v(D+e)}, {v(D+e)}, {v(D+4+e)}")
        a(f"v_cvt_pk_bf16_f32 {v(D)}, {v(D)}, {v(D+1)}")
        a(f"v_cvt_pk_bf16_f32 {v(D+1)}, {v(D+2)}, {v(D+3)}")
        a(f"v_mov_b32 {v(D+2)}, v41")
        a(f"v_mov_b32 {v(D+3)}, v41")
        a(f"buffer_store_dwordx4 {v(D,4)}, v4, {s(R_WS,4)}, {s(S_T1)} offen sc1")
        self.stamp(17)
        a(f"s_branch {Ls}x")
        a.label(Ls)
        a(f"s_waitcnt vmcnt(0)")
        a.label(Ls + 'x')

    def rot2(self, dst):
        a = self.a; ra, rb_ = self.cfg.rot2
        sh = 3 if self.cfg.map2 == 'A' else 2
        a(f"s_lshr_b32 {s(S_T1)}, {s(S_IDX)}, {sh}")
        a(f"s_mul_i32 {s(dst)}, {s(S_T1)}, {ra}")
        a(f"s_and_b32 {s(S_T1)}, {s(S_IDX)}, {(1 << sh) - 1}")
        a(f"s_mul_i32 {s(S_T1)}, {s(S_T1)}, {rb_}")
        a(f"s_add_u32 {s(dst)}, {s(dst)}, {s(S_T1)}")
    def chunk_id(self, d, t, i):
        a = self.a
        a(f"s_add_u32 {s(d)}, {s(S_KC)}, {i}")
        if i < 8:
            a(f"s_and_b32 {s(d)}, {s(d)}, 7")
            a(f"s_lshr_b32 {s(t)}, {s(d)}, 1")
            a(f"s_add_u32 {s(d)}, {s(d)}, {s(t)}")
            a(f"s_add_u32 {s(d)}, {s(d)}, 1")
        else:
            a(f"s_and_b32 {s(d)}, {s(d)}, 3")
            a(f"s_mul_i32 {s(d)}, {s(d)}, 3")

    def final_prep(self):
        a = self.a
        srd(a, R_OUT, P_OUT, 2048 * 1280)
        a(f"v_lshlrev_b32 v164, 4, v0")
        a(f"v_mul_u32_u24 v165, 6554, v0")
        a(f"v_lshrrev_b32 v165, 16, v165")
        a(f"v_mul_u32_u24 v165, {1280-160}, v165")
        a(f"v_add_u32 v165, v165, v164")
        a(f"v_add_u32 v164, {XT}, v164")
        a(f"s_mul_i32 {s(S_IT)}, {s(S_TT)}, {64*1280}")
        a(f"s_mul_i32 {s(S_T1)}, {s(S_N)}, 160")
        a(f"s_add_u32 {s(S_IT)}, {s(S_IT)}, {s(S_T1)}")
    def final_store(self):
        a = self.a
        a.label('Lfinal_store')
        a(f"ds_read_b128 v[4:7], v164")
        a("s_waitcnt lgkmcnt(0)")
        a(f"buffer_store_dwordx4 v[4:7], v165, {s(R_OUT,4)}, {s(S_IT)} offen")
        a.label('Lfin')
        if self.cfg.light:
            a(f"s_cmp_lg_u32 {s(S_WID)}, 0")
            a(f"s_cbranch_scc1 Lend")
            a(f"v_mov_b32 v4, {s(S_TS)}")
            a("s_waitcnt vmcnt(0)")
            a(f"s_memrealtime {s(S_TS,2)}")
            a(f"s_memtime s[8:9]")
            a(f"s_lshl_b32 {s(S_T0)}, s2, 4")
            a(f"s_add_u32 {s(S_T0)}, {s(S_T0)}, {WS_TS}")
            a("v_mov_b32 v2, 0")
            a("s_waitcnt lgkmcnt(0)")
            a(f"v_mov_b32 v5, {s(S_TS)}")
            a(f"v_mov_b32 v6, s3")
            a(f"v_mov_b32 v7, s8")
            a(f"buffer_store_dwordx4 v[4:7], v2, {s(R_WS,4)}, {s(S_T0)} offen")
        if self.cfg.diag:
            a("s_waitcnt vmcnt(0)")
            self.stamp(39); self.stamp(62)
            a(f"s_memrealtime {s(S_TS,2)}")
            a("s_waitcnt lgkmcnt(0)")
            a(f"v_writelane_b32 {v(VDIAG)}, {s(S_TS)}, 63")
            a(f"s_mul_i32 {s(S_T0)}, s2, 12")
            a(f"s_add_u32 {s(S_T0)}, {s(S_T0)}, {s(S_WID)}")
            a(f"s_lshl_b32 {s(S_T0)}, {s(S_T0)}, 8")
            a(f"s_add_u32 {s(S_T0)}, {s(S_T0)}, {WS_TS2}")
            a(f"v_lshlrev_b32 v2, 2, v1")
            a(f"buffer_store_dword {v(VDIAG)}, v2, {s(R_WS,4)}, {s(S_T0)} offen")
        a.label('Lend')
        a("s_endpgm")

    ACC = 12; ONES = 68; RS = 72; SQ = 76; CSA = 80; CSB = 84
    XA = 88; XB = 96; YA = 124; YB = 132
    VA = 2
    L15 = 164; G = 165; TOK = 167
    def acc(self, t, i): return self.ACC + (2 * t + i) * 4
    def tiles(self, ty):
        if ty == 0:
            return [(6, 0, 160, 'N'), (6, 32, 160, 'N'), (7, 0, 160, 'N'), (6, 10256, 160, 'N'), (6, 10288, 160, 'N'),
                    (8, 0, 128, 'T'), (9, 0, 128, 'T')]
        return [(6, 0, 160, 'T'), (6, 32, 160, 'T'), (6, 64, 160, 'T'), (7, 0, 256, 'T'), (8, 0, 256, 'T'), (9, 0, 256, 'T'), (10, 0, 256, 'T')]

    def pack_setup(self):
        a = self.a
        a(f"s_cmp_gt_u32 {s(S_U)}, 135")
        a(f"s_cselect_b32 {s(S_T0)}, 0, {s(S_U)}")
        a(f"s_lshr_b32 {s(S_T0)}, {s(S_T0)}, 1")
        a(f"s_cmp_lt_u32 {s(S_T0)}, 48")
        a(f"s_cselect_b32 {s(R_PK)}, {s(P_W2)}, {s(P_WO)}")
        a(f"s_cselect_b32 {s(R_PK+1)}, {s(P_W2+1)}, {s(P_WO+1)}")
        a(f"s_mov_b32 {s(R_PK+2)}, {hex(640*1280)}")
        a(f"s_cselect_b32 {s(R_PK+2)}, {hex(1536*1280)}, {s(R_PK+2)}")
        a(f"s_mov_b32 {s(R_PK+3)}, 0x20000")
        Lm = self.lab('pkm'); Ld = self.lab('pkd')
        a(f"s_cbranch_scc1 {Lm}")
        a(f"s_sub_u32 {s(S_T3)}, {s(S_T0)}, 48")
        a(f"s_mul_i32 {s(S_T1)}, {s(S_T3)}, 52")
        a(f"s_lshr_b32 {s(S_T1)}, {s(S_T1)}, 8")
        a(f"s_mul_i32 {s(S_T2)}, {s(S_T1)}, 5")
        a(f"s_sub_u32 {s(S_T3)}, {s(S_T3)}, {s(S_T2)}")
        a(f"s_mul_i32 {s(S_T1)}, {s(S_T1)}, 160")
        a(f"s_lshl_b32 {s(S_T2)}, {s(S_T3)}, 5")
        a(f"s_cmp_ge_u32 {s(S_T3)}, 2")
        a(f"s_cselect_b32 {s(S_T0)}, 16, 0")
        a(f"s_add_u32 {s(S_T2)}, {s(S_T2)}, {s(S_T0)}")
        a(f"s_cmp_eq_u32 {s(S_T3)}, 4")
        a(f"s_cselect_b32 {s(S_T2)}, 64, {s(S_T2)}")
        a(f"s_cselect_b32 {s(S_T0)}, {64*1280}, 0")
        a(f"s_add_u32 {s(S_T1)}, {s(S_T1)}, {s(S_T2)}")
        a(f"s_branch {Ld}")
        a.label(Lm)
        a(f"s_lshl_b32 {s(S_T1)}, {s(S_T0)}, 5")
        a(f"s_mov_b32 {s(S_T0)}, 0")
        a.label(Ld)
        a(f"s_and_b32 {s(R_PK+1)}, {s(R_PK+1)}, 0xffff")
        a(f"s_mul_i32 {s(S_T1)}, {s(S_T1)}, 1280")
        a(f"s_and_b32 {s(S_T2)}, {s(S_U)}, 1")
        a(f"s_mul_i32 {s(S_T3)}, {s(S_T2)}, 640")
        a(f"s_add_u32 {s(S_PKO)}, {s(S_T1)}, {s(S_T3)}")
        a(f"v_mov_b32 v100, {s(S_T0)}")
        a(f"v_mov_b32 v105, {hex(OOB)}")
        a(f"s_mul_i32 {s(S_T2)}, {s(S_RB)}, 160")
        a(f"s_cmp_lg_u32 {s(S_TY)}, 0")
        a(f"s_cselect_b32 {s(S_T2)}, 0, {s(S_T2)}")
        a(f"s_movk_i32 {s(S_T3)}, 160")
        a(f"s_cselect_b32 {s(S_T3)}, 640, {s(S_T3)}")
        for i in range(3):
            a(f"v_add_u32 v101, {512*i}, v0")
            a(f"v_mul_u32_u24 v102, 1639, v101")
            a(f"v_lshrrev_b32 v102, 16, v102")
            a(f"v_cmp_le_u32 vcc, 16, v102")
            a(f"v_mul_u32_u24 v102, 640, v102")
            a(f"v_cndmask_b32 v103, 0, v100, vcc")
            a(f"v_lshlrev_b32 v101, 4, v101")
            a(f"v_sub_u32 v104, v101, v102")
            a(f"v_add3_u32 v102, v102, v101, v103")
            a(f"v_subrev_u32 v104, {s(S_T2)}, v104")
            a(f"v_cmp_gt_u32 vcc, {s(S_T3)}, v104")
            a(f"v_cndmask_b32 {v(161+i)}, v105, v102, vcc")

    def code_prefetch(self, T):
        a = self.a; cfg = self.cfg
        L = self.lab('cp'); Lpc = self.lab('pc')
        a(f"s_cmp_lg_u32 {s(S_WID)}, {cfg.cpw}")
        a(f"s_cbranch_scc1 {L}")
        a(f"s_getpc_b64 {s(S_T0,2)}")
        a.label(Lpc)
        a(f"s_sub_u32 {s(S_T0)}, {s(S_T0)}, {Lpc}-{NAME}")
        a(f"s_subb_u32 {s(S_T1)}, {s(S_T1)}, 0")
        n = cfg.cpn
        a(f"s_and_b32 {s(S_T2)}, {s(S_IDX)}, {256 // n - 1}")
        a(f"s_mul_i32 {s(S_T2)}, {s(S_T2)}, {128 * n}")
        a(f"v_lshlrev_b32 {v(T)}, 7, v1")
        a(f"v_and_b32 {v(T)}, {128 * n - 128}, {v(T)}")
        a(f"v_add_u32 {v(T)}, {s(S_T2)}, {v(T)}")
        a(f"v_min_u32 {v(T)}, Lend-{NAME}, {v(T)}")
        a(f"v_mov_b32 {v(T+1)}, {s(S_T1)}")
        a(f"v_add_co_u32 {v(T)}, vcc, {s(S_T0)}, {v(T)}")
        a(f"v_addc_co_u32 {v(T+1)}, vcc, 0, {v(T+1)}, vcc")
        exec_mask(a, (1 << n) - 1)
        a(f"global_load_dword v166, {v(T,2)}, off")
        a(f"s_mov_b64 exec, -1")
        a.label(L)

    def compute_setup(self):
        a = self.a
        a.label('Lcompute')
        if self.cfg.cpf == 1: self.code_prefetch(102)
        T = 88
        L15, G, TOK = self.L15, self.G, self.TOK
        a(f"s_sub_u32 {s(S_T0)}, {s(S_WID)}, 4")
        a(f"s_and_b32 {s(S_R)}, {s(S_T0)}, 3")
        a(f"s_lshr_b32 {s(S_C)}, {s(S_T0)}, 2")
        a(f"v_add_u32 v0, {-256 & 0xffffffff}, v0")
        a(f"v_and_b32 {v(L15)}, 15, v1")
        a(f"v_lshrrev_b32 {v(G)}, 4, v1")
        a(f"v_lshrrev_b32 {v(T+2)}, 1, {v(L15)}")
        a(f"v_xor_b32 {v(T+2)}, {v(T+2)}, {v(G)}")
        a(f"v_lshlrev_b32 {v(T+2)}, 4, {v(T+2)}")
        a(f"v_lshl_add_u32 {v(T+2)}, {v(L15)}, 7, {v(T+2)}")
        a(f"s_lshl_b32 {s(S_T0)}, {s(S_R)}, 12")
        a(f"s_lshl_b32 {s(S_T1)}, {s(S_C)}, 11")
        a(f"s_add_u32 {s(S_T0)}, {s(S_T0)}, {s(S_T1)}")
        a(f"v_add_u32 v2, {s(S_T0)}, {v(T+2)}")
        a(f"v_xor_b32 v3, 64, v2")
        a(f"v_xor_b32 v4, 2048, v2")
        a(f"v_xor_b32 v5, 64, v4")
        a(f"s_lshr_b32 {s(S_T0)}, {s(S_T0)}, 5")
        a(f"s_add_u32 {s(S_T0)}, {s(S_T0)}, {ST}")
        a(f"v_lshl_add_u32 {v(TOK)}, {v(L15)}, 2, {s(S_T0)}")
        a(f"v_bfe_u32 {v(T+3)}, v1, 2, 3")
        a(f"v_lshrrev_b32 {v(T+4)}, 5, v1")
        a(f"v_lshl_add_u32 {v(T+4)}, {v(T+4)}, 4, {v(T+3)}")
        a(f"v_and_b32 {v(T+5)}, 3, v1")
        a(f"v_lshlrev_b32 {v(T+6)}, 3, {v(T+5)}")
        a(f"v_mul_u32_u24 v6, 160, {v(T+4)}")
        a(f"s_mul_i32 {s(S_T0)}, {s(S_C)}, 80")
        a(f"s_add_u32 {s(S_T0)}, {s(S_T0)}, 16384")
        a(f"v_add3_u32 v6, v6, {v(T+6)}, {s(S_T0)}")
        for i in range(self.ACC, self.ONES): a(f"v_mov_b32 {v(i)}, 0")
        for i in range(4): a(f"v_mov_b32 {v(self.ONES+i)}, 0x3f803f80")
        a(f"s_mov_b32 {s(S_IT)}, 0")
        self.calc_u()
        a("s_waitcnt lgkmcnt(0)")
        self.stamp(1)
        srd(a, R_WS, P_WS, WS_SIZE)
        self.pack_setup()
        self.p2_pre_setup()
        a(f"s_cmp_lg_u32 {s(S_TY)}, 0")
        a(f"s_cbranch_scc1 Lc_q")
        self.h_addr(0, 1)
        a(f"s_lshl_b32 {s(S_T0)}, {s(S_HG)}, 4")
        a(f"s_add_u32 {s(S_T0)}, {s(S_T0)}, {s(S_RB)}")
        a(f"s_mul_i32 {s(S_T0)}, {s(S_T0)}, {KP_STRIDE}")
        a(f"s_add_u32 {s(S_CNT)}, {s(S_T0)}, {WS_KP}")
        a(f"s_mul_i32 {s(S_T0)}, {s(S_R)}, 6720")
        a(f"s_mul_i32 {s(S_T1)}, {s(S_C)}, 3360")
        a(f"s_add_u32 {s(S_T0)}, {s(S_T0)}, {s(S_T1)}")
        a(f"s_add_u32 {s(S_OA)}, {s(S_T0)}, {SCR}")
        a(f"v_cmp_gt_u32 vcc, 2, {v(T+5)}")
        a(f"v_mov_b32 {v(T+7)}, 10224")
        a(f"v_cndmask_b32 {v(T+7)}, {v(T+7)}, 64, vcc")
        a(f"v_add_u32 v7, v6, {v(T+7)}")
        a(f"v_lshrrev_b32 {v(T+7)}, 1, {v(T+3)}")
        a(f"v_lshl_add_u32 {v(T+8)}, {v(T+4)}, 7, {v(T+6)}")
        a(f"v_add_u32 {v(T+8)}, 36864, {v(T+8)}")
        a(f"s_lshl_b32 {s(S_T0)}, {s(S_C)}, 1")
        a(f"v_xor_b32 {v(T+7)}, {s(S_T0)}, {v(T+7)}")
        a(f"v_lshl_add_u32 v8, {v(T+7)}, 5, {v(T+8)}")
        a(f"v_xor_b32 {v(T+7)}, 1, {v(T+7)}")
        a(f"v_lshl_add_u32 v9, {v(T+7)}, 5, {v(T+8)}")
        a(f"s_branch Lp1_0")
        a.label('Lc_q')
        self.h_addr(2, 2)
        a(f"s_mul_i32 {s(S_T0)}, {s(S_HG)}, {KP_STRIDE}")
        a(f"s_add_u32 {s(S_CNT)}, {s(S_T0)}, {WS_KT}")
        a(f"v_lshl_add_u32 {v(T+8)}, {v(T+4)}, 8, {v(T+6)}")
        a(f"v_add_u32 {v(T+8)}, 26624, {v(T+8)}")
        a(f"s_lshl_b32 {s(S_T0)}, {s(S_C)}, 2")
        a(f"v_xor_b32 {v(T+7)}, {s(S_T0)}, {v(T+3)}")
        for i in range(4):
            a(f"v_xor_b32 {v(T+9)}, {i}, {v(T+7)}")
            a(f"v_lshl_add_u32 {v(7+i)}, {v(T+9)}, 5, {v(T+8)}")
        a(f"s_branch Lp1_1")

    def p1_reads(self, ty, st, A, B):
        out = [f"ds_read_b128 {v(A,4)}, {v(self.VA+st)}", f"ds_read_b128 {v(A+4,4)}, {v(self.VA+2+st)}"]
        for t, (ad, ex, pitch, o) in enumerate(self.tiles(ty)):
            for u in range(2):
                if t < self.cfg.xr: out.append(f"ds_read_b64_tr_b16 {v(B+4*t+2*u,2)}, {v(ad)} offset:{(32*st+8*u)*pitch+ex}")
        return out
    def p1_mfmas(self, ty, A, B):
        M = "v_mfma_f32_16x16x32_bf16"
        out = []
        for t, (ad, ex, pitch, o) in enumerate(self.tiles(ty)):
            for i in range(2):
                d = v(self.acc(t, i), 4); x = v(A + 4*i, 4); w = v(B + 4*t, 4)
                if t < self.cfg.xm: out.append(f"{M} {d}, {x}, {w}, {d}" if o == 'N' else f"{M} {d}, {w}, {x}, {d}")
        return out

    def duty(self, half, A, B):
        a = self.a
        M = "v_mfma_f32_16x16x32_bf16"
        on = v(self.ONES, 4); x0 = v(A, 4)
        def c(r): return v(r, 4) if half else '0'
        a.label(f"Lduty{half}")
        a(f"{M} {v(self.RS,4)}, {on}, {x0}, {c(self.RS)}")
        a(f"{M} {v(self.SQ,4)}, {x0}, {x0}, {c(self.SQ)}")
        Ld = self.lab('dd')
        labs = [self.lab('dr') for _ in range(4)]
        for r in range(1, 4):
            a(f"s_cmp_eq_u32 {s(S_R)}, {r}")
            a(f"s_cbranch_scc1 {labs[r]}")
        for r in range(4):
            a.label(labs[r])
            a(f"{M} {v(self.CSA,4)}, {on}, {v(B+4*r,4)}, {c(self.CSA)}")
            if r < 3:
                a(f"{M} {v(self.CSB,4)}, {on}, {v(B+4*(r+4),4)}, {c(self.CSB)}")
                a(f"s_branch {Ld}")
        a.label(Ld)
        if half:
            T = 160
            SQ = self.SQ
            a(f"v_and_b32 {v(T)}, 3, v1")
            a(f"s_mul_i32 {s(S_T0)}, {s(S_RB)}, 10")
            a(f"s_add_u32 {s(S_T0)}, {s(S_T0)}, {s(S_S0)}")
            a(f"s_lshl_b32 {s(S_T0)}, {s(S_T0)}, 10")
            a(f"s_add_u32 {s(S_T0)}, {s(S_T0)}, {(WS_RP - 2*ST) & 0xffffffff}")
            a(f"v_lshl_add_u32 {v(T+1)}, {v(self.TOK)}, 1, {s(S_T0)}")
            a(f"s_mul_i32 {s(S_T0)}, {s(S_COL)}, 10")
            a(f"s_add_u32 {s(S_T0)}, {s(S_T0)}, {s(S_S0)}")
            a(f"s_lshl_b32 {s(S_T0)}, {s(S_T0)}, 10")
            a(f"s_mul_i32 {s(S_T1)}, {s(S_C)}, 448")
            a(f"s_add_u32 {s(S_T0)}, {s(S_T0)}, {s(S_T1)}")
            a(f"s_lshl_b32 {s(S_T1)}, {s(S_R)}, 6")
            a(f"s_add_u32 {s(S_T0)}, {s(S_T0)}, {s(S_T1)}")
            a(f"s_add_u32 {s(S_T0)}, {s(S_T0)}, {WS_CP}")
            a(f"v_lshl_add_u32 {v(T+2)}, {v(self.L15)}, 2, {s(S_T0)}")
            a(f"v_cmp_eq_u32 vcc, 1, {v(T)}")
            a(f"v_cndmask_b32 {v(self.RS+1)}, {v(SQ)}, {v(SQ+1)}, vcc")
            a(f"v_cmp_eq_u32 vcc, 2, {v(T)}")
            a(f"v_cndmask_b32 {v(self.RS+1)}, {v(self.RS+1)}, {v(SQ+2)}, vcc")
            a(f"v_cmp_eq_u32 vcc, 3, {v(T)}")
            a(f"v_cndmask_b32 {v(self.RS+1)}, {v(self.RS+1)}, {v(SQ+3)}, vcc")
            L = self.lab('dn')
            a(f"s_cmp_ge_u32 {s(S_COL)}, 10")
            a(f"s_cbranch_scc1 {L}")
            exec_mask(a, DIAGMASK)
            a(f"buffer_store_dwordx2 {v(self.RS,2)}, {v(T+1)}, {s(R_WS,4)}, 0 offen sc1")
            a.label(L)
            L = self.lab('dn')
            a(f"s_cmp_ge_u32 {s(S_RB)}, 10")
            a(f"s_cbranch_scc1 {L}")
            exec_mask(a, 0xffff)
            a(f"buffer_store_dword {v(self.CSA)}, {v(T+2)}, {s(R_WS,4)}, 0 offen sc1")
            a(f"s_cmp_eq_u32 {s(S_R)}, 3")
            a(f"s_cbranch_scc1 {L}")
            a(f"buffer_store_dword {v(self.CSB)}, {v(T+2)}, {s(R_WS,4)}, 0 offen offset:256 sc1")
            a.label(L)
            a("s_mov_b64 exec, -1")
        a(f"s_cmp_lg_u32 {s(S_TY)}, 0")
        a(f"s_cbranch_scc1 Lret{half}_1")
        a(f"s_branch Lret{half}_0")

    def pack_blocks(self):
        a = self.a
        PD = 72
        def ret(h):
            a(f"s_cmp_lg_u32 {s(S_TY)}, 0")
            a(f"s_cbranch_scc1 Lret{h}_1")
            a(f"s_branch Lret{h}_0")
        a.label('Lx1')
        L3 = self.lab('p3')
        a(f"s_cmp_lg_u32 {s(S_IT)}, 1")
        a(f"s_cbranch_scc1 {L3}")
        a(f"s_cmp_gt_u32 {s(S_U)}, 135")
        a(f"s_cbranch_scc1 Lduty1")
        a(f"s_lshl_b32 {s(S_T0)}, {s(S_WID)}, 10")
        for i in range(3):
            if i == 2:
                a(f"s_cmp_lg_u32 {s(S_C)}, 0")
                a(f"s_cbranch_scc1 Lduty1")
            a(f"s_add_u32 m0, {s(S_T0)}, {SCR - 4096 + 8192*i}")
            a(f"buffer_load_dwordx4 {v(161+i)}, {s(R_PK,4)}, {s(S_PKO)} offen lds")
        a("s_branch Lduty1")
        a.label(L3)
        if self.cfg.cpf == 2: self.code_prefetch(162)
        L = self.lab('pa')
        a(f"s_cmp_gt_u32 {s(S_U)}, 135")
        a(f"s_cbranch_scc1 {L}")
        a(f"v_lshrrev_b32 v160, 2, v1")
        a(f"v_mul_u32_u24 v160, 640, v160")
        a(f"v_and_b32 v161, 3, v1")
        a(f"v_lshl_add_u32 v160, v161, 3, v160")
        a(f"s_mul_i32 {s(S_T0)}, {s(S_R)}, 160")
        a(f"s_mul_i32 {s(S_T1)}, {s(S_C)}, 96")
        a(f"s_add_u32 {s(S_T0)}, {s(S_T0)}, {s(S_T1)}")
        a(f"s_add_u32 {s(S_T0)}, {s(S_T0)}, {SCR}")
        a(f"v_add_u32 v160, {s(S_T0)}, v160")
        for c in range(3):
            a(f"ds_read_b64_tr_b16 {v(PD+4*c,2)}, v160 offset:{32*c}")
            a(f"ds_read_b64_tr_b16 {v(PD+2+4*c,2)}, v160 offset:{32*c + 16*640}")
        a.label(L)
        ret(1)
        a.label('Lx0')
        a("s_waitcnt lgkmcnt(0)")
        a(f"s_cmp_eq_u32 {s(S_IT)}, 1")
        a(f"s_cbranch_scc1 Lduty0")
        L = self.lab('pb')
        a(f"s_cmp_gt_u32 {s(S_U)}, 135")
        a(f"s_cbranch_scc1 {L}")
        a(f"s_cmp_lg_u32 {s(S_TY)}, 0")
        a(f"s_cselect_b32 {s(S_T0)}, {s(S_R)}, {s(S_RB)}")
        a(f"s_cmp_lg_u32 {s(S_T0)}, {s(S_R)}")
        a(f"s_cbranch_scc1 {L}")
        a(f"s_and_b32 {s(S_T0)}, {s(S_U)}, 1")
        a(f"s_lshl_b32 {s(S_T0)}, {s(S_T0)}, 2")
        a(f"s_add_u32 {s(S_T0)}, {s(S_T0)}, {s(S_R)}")
        a(f"s_mul_i32 {s(S_T0)}, {s(S_T0)}, 68")
        a(f"s_lshr_b32 {s(S_T1)}, {s(S_U)}, 1")
        a(f"s_add_u32 {s(S_T0)}, {s(S_T0)}, {s(S_T1)}")
        a(f"s_mul_i32 {s(S_T0)}, {s(S_T0)}, 5120")
        a(f"s_mul_i32 {s(S_T1)}, {s(S_C)}, 3072")
        a(f"s_add_u32 {s(S_T0)}, {s(S_T0)}, {s(S_T1)}")
        a(f"s_add_u32 {s(S_T0)}, {s(S_T0)}, {WS_P2}")
        a(f"v_lshlrev_b32 v160, 4, v1")
        for c in range(3):
            if c == 2:
                a(f"s_cmp_lg_u32 {s(S_C)}, 0")
                a(f"s_cbranch_scc1 {L}")
            a(f"buffer_store_dwordx4 {v(PD+4*c,4)}, v160, {s(R_WS,4)}, {s(S_T0)} offen offset:{1024*c} sc1")
        a.label(L)
        ret(0)

    def p1_loop(self, ty):
        a = self.a; cfg = self.cfg
        nad = 8 if ty == 0 else 9
        nb = a.nbar
        rx = self.p1_reads(ty, 0, self.XA, self.XB); ry = self.p1_reads(ty, 1, self.YA, self.YB)
        my = self.p1_mfmas(ty, self.YA, self.YB); mx = self.p1_mfmas(ty, self.XA, self.XB)
        sal = [f"s_add_u32 {s(S_IT)}, {s(S_IT)}, 1",
               f"s_bitcmp1_b32 {hex((1<<3)|(1<<6)|(1<<9))}, {s(S_IT)}",
               f"s_cselect_b32 {s(S_DELTA)}, {s(S_DEST)}, {s(S_DEST+1)}"]
        a.label(f"Lp1_{ty}")
        a(f"s_mov_b32 {s(S_DEST)}, {hex(-2*SLOT & 0xffffffff)}")
        a(f"s_mov_b32 {s(S_DEST+1)}, {SLOT}")
        a("s_barrier")
        for x in rx: a(x)
        a(f"s_branch Lret1_{ty}")
        a(".p2align 3")
        a.label(f"Lp1h_{ty}")
        a("s_barrier")
        k = 0
        for m, x in enumerate(my):
            a(x)
            for _ in range(cfg.rpm + (1 if m < cfg.rp2 else 0)):
                if k < len(rx): a(rx[k]); k += 1
        while k < len(rx): a(rx[k]); k += 1
        a(f"s_bitcmp1_b32 {(1<<1)|(1<<3)}, {s(S_IT)}")
        a(f"s_cbranch_scc1 Lx1")
        a.label(f"Lret1_{ty}")
        upd = [f"v_add_u32 {v(self.VA+i)}, {s(S_DELTA)}, {v(self.VA+i)}" for i in range(nad)]
        k = 0; u = 0
        for m, x in enumerate(mx):
            if m % 2 == 0:
                t = m // 2
                rem = len(rx) - (2 + 2 * (t + 1))
                if rem >= 0:
                    a(f"s_waitcnt lgkmcnt({min(15, rem + k)})")
            if m == len(mx) - 1: a(f"s_cmp_lt_u32 {s(S_IT)}, 10")
            a(x)
            if m == 0:
                for y in sal: a(y)
            for _ in range(cfg.rpm + (1 if m < cfg.rp2 else 0)):
                t1 = (m + 2) // 2
                rem1 = max(0, len(rx) - (2 + 2 * (t1 + 1)))
                if k < len(ry) and (rem1 + k + 1 <= 15 or rem1 == 0): a(ry[k]); k += 1
            n = 0
            while u < len(upd) and n < 2 and not any(f", {v(self.VA+u)} " in y + " " for y in ry[k:]): a(upd[u]); u += 1; n += 1
            if m == len(mx) - 3:
                L = self.lab('vw')
                a(f"s_bitcmp0_b32 {(1<<3)|(1<<5)}, {s(S_IT)}")
                a(f"s_cbranch_scc1 {L}")
                a("s_waitcnt vmcnt(0)")
                a.label(L)
                a(f"s_bitcmp1_b32 {(1<<1)|(1<<4)}, {s(S_IT)}")
                a(f"s_cbranch_scc1 Lx0")
                a.label(f"Lret0_{ty}")
        while k < len(ry): a(ry[k]); k += 1
        while u < len(upd): a(upd[u]); u += 1
        a("s_waitcnt lgkmcnt(0)")
        a(f"s_cbranch_scc1 Lp1h_{ty}")
        a("s_barrier")
        self.nb_loop = 11
        a.nbar = nb

    def gelu_tile(self, t, AB, CS, BR, d0, W):
        a = self.a
        B = W; X = W + 4
        a(f"v_lshlrev_b32 {v(B)}, 16, {v(BR)}")
        a(f"v_and_b32 {v(B+1)}, {s(S_K1)}, {v(BR)}")
        a(f"v_lshlrev_b32 {v(B+2)}, 16, {v(BR+1)}")
        a(f"v_and_b32 {v(B+3)}, {s(S_K1)}, {v(BR+1)}")
        ch = [(i, p) for i in range(2) for p in range(2)]
        ac = lambda i, p: self.acc(t, i) + 2 * p
        x = lambda i, p: X + 4 * i + 2 * p
        for i, p in ch: a(pk('fma', x(i,p), ('b', AB+4*i+2), CS+2*p, B+2*p))
        for i, p in ch: a(pk('fma', ac(i,p), ('b', AB+4*i), ac(i,p), x(i,p)))
        for i, p in ch: a(pk('mul', x(i,p), ac(i,p), ac(i,p)))
        for i, p in ch: a(pk('fma', x(i,p), x(i,p), ('s', S_K0), ('b', 166)))
        for i, p in ch: a(pk('mul', x(i,p), x(i,p), ac(i,p)))
        for k in range(8): a(f"v_exp_f32 {v(X+k)}, {v(X+k)}")
        for i, p in ch: a(pk('add', x(i,p), x(i,p), '1.0'))
        for k in range(8): a(f"v_rcp_f32 {v(X+k)}, {v(X+k)}")
        for i, p in ch: a(pk('mul', x(i,p), x(i,p), ac(i,p)))
        for i, p in ch: a(f"v_cvt_pk_bf16_f32 {v(d0(i)+p)}, {v(x(i,p))}, {v(x(i,p)+1)}")
    def gelu_consts(self):
        a = self.a
        c1 = -2 * math.sqrt(2 / math.pi) * LOG2E; c2 = c1 * 0.044715
        a(f"s_mov_b32 {s(S_K0)}, {lit(c2)}")
        a(f"s_mov_b32 {s(S_K1)}, 0xffff0000")
        a(f"v_mov_b32 v166, {lit(c1)}")

    def phi_tile(self, t, fa, fb, fcs, X, EPS, d0):
        a = self.a
        ch = [(i, p) for i in range(2) for p in range(2)]
        ac = lambda i, p: self.acc(t, i) + 2 * p
        x = lambda i, p: X + 4 * i + 2 * p
        for i, p in ch: a(pk('fma', x(i,p), fb(i,p), fcs(i,p), ('b', EPS)))
        for i, p in ch: a(pk('fma', ac(i,p), fa(i,p), ac(i,p), x(i,p)))
        for i, p in ch: a(pk('mul', x(i,p), ac(i,p), ('s', S_K0)))
        for k in range(8): a(f"v_exp_f32 {v(X+k)}, {v(X+k)} clamp")
        for i in range(2):
            for k in range(4): a(f"v_max_f32 {v(X+8+4*i+k)}, {v(EPS)}, {v(self.acc(t,i)+k)}")
        for i, p in ch: a(pk('add', x(i,p), x(i,p), x(i,p)+8))
        for i, p in ch: a(f"v_cvt_pk_bf16_f32 {v(d0(i)+p)}, {v(x(i,p))}, {v(x(i,p)+1)}")

    def h_addr(self, ks0_imm, ks_c_mul):
        a = self.a
        a(f"s_lshl_b32 {s(S_T0)}, {s(S_RB)}, 3")
        a(f"s_lshl_b32 {s(S_T1)}, {s(S_R)}, 1")
        a(f"s_add_u32 {s(S_T0)}, {s(S_T0)}, {s(S_T1)}")
        a(f"s_add_u32 {s(S_T0)}, {s(S_T0)}, {s(S_C)}")
        a(f"s_xor_b32 {s(S_T1)}, {s(S_T0)}, 1")
        a(f"s_mul_i32 {s(S_T2)}, {s(S_HG)}, 6")
        a(f"s_mul_i32 {s(S_T3)}, {s(S_C)}, {ks_c_mul}")
        a(f"s_add_u32 {s(S_T2)}, {s(S_T2)}, {s(S_T3)}")
        a(f"s_add_u32 {s(S_T2)}, {s(S_T2)}, {ks0_imm + WS_H2 // 1024}")
        for k, d in ((S_T0, S_OW), (S_T1, S_OM)):
            a(f"s_mul_i32 {s(k)}, {s(k)}, 48")
            a(f"s_add_u32 {s(k)}, {s(k)}, {s(S_T2)}")
            a(f"s_lshl_b32 {s(d)}, {s(k)}, 10")
    def h_flag(self, vn):
        a = self.a; fs = self.cfg.fs
        a(f"buffer_store_dword {v(vn)}, v10, {s(R_WS,4)}, 0 offen sc1")
    def h_flag_addr(self):
        a = self.a; fs = self.cfg.fs
        a(f"s_lshl_b32 {s(S_T0)}, {s(S_RB)}, 1")
        a(f"s_lshr_b32 {s(S_T1)}, {s(S_R)}, 1")
        a(f"s_add_u32 {s(S_T0)}, {s(S_T0)}, {s(S_T1)}")
        a(f"s_lshl_b32 {s(S_T0)}, {s(S_T0)}, 4")
        a(f"s_add_u32 {s(S_T0)}, {s(S_T0)}, {s(S_COL)}")
        a(f"s_lshl_b32 {s(S_T0)}, {s(S_T0)}, 1")
        a(f"s_and_b32 {s(S_T1)}, {s(S_R)}, 1")
        a(f"s_add_u32 {s(S_T0)}, {s(S_T0)}, {s(S_T1)}")
        a(f"s_lshl_b32 {s(S_T0)}, {s(S_T0)}, 1")
        a(f"s_add_u32 {s(S_T0)}, {s(S_T0)}, {s(S_C)}")
        a(f"s_lshl_b32 {s(S_T0)}, {s(S_T0)}, {fs}")
        a(f"s_add_u32 {s(S_XCD)}, {s(S_T0)}, {WS_FH}")
    def h_poll(self, vn):
        a = self.a; fs = self.cfg.fs
        L = self.lab('hp'); Lr = self.lab('hr')
        a(f"s_cmp_lg_u32 {s(S_WID)}, 11")
        a(f"s_cbranch_scc1 {L}")
        a(f"s_lshl_b32 {s(S_T1)}, {s(S_TT)}, {fs + 6}")
        a(f"s_add_u32 {s(S_T1)}, {s(S_T1)}, {WS_FH}")
        a(f"v_lshlrev_b32 v12, {fs}, v1")
        a(f"s_mov_b32 {s(S_IT)}, 0")
        a.label(Lr)
        a(f"buffer_load_dword v13, v12, {s(R_WS,4)}, {s(S_T1)} offen sc1")
        a("s_waitcnt vmcnt(0)")
        a(f"v_cmp_ne_u32 vcc, v13, {v(vn)}")
        a(f"s_cbranch_vccz {L}")
        if self.cfg.psl: a(f"s_sleep {self.cfg.psl}")
        a(f"s_add_u32 {s(S_IT)}, {s(S_IT)}, 1")
        a(f"s_cmp_lt_u32 {s(S_IT)}, 0x40000")
        a(f"s_cbranch_scc1 {Lr}")
        a.label(L)
    def signal(self):
        a = self.a
        a(f"v_mov_b32 v4, {ST_C}")
        a(f"v_mov_b32 v5, 1")
        a("s_mov_b64 exec, 1")
        a("ds_add_u32 v4, v5")
        a("s_mov_b64 exec, -1")
    def h_flag_v(self):
        a = self.a
        a(f"v_mov_b32 v10, {hex(OOB)}")
        a(f"v_writelane_b32 v10, {s(S_XCD)}, 0")
    def h_store(self, p, TMP):
        for i in range(2):
            self.a(f"buffer_store_dwordx4 {v(TMP+p*8+i*4,4)}, v2, {s(R_WS,4)}, {s((S_OW, S_OM)[i])} offen offset:{1024*p} sc1")

    def epi_kv(self):
        a = self.a
        nb = a.nbar
        L15, G, TOK = self.L15, self.G, self.TOK
        self.stamp(2)
        a(f"s_setprio {self.cfg.pe}")
        a(f"s_lshl_b32 {s(S_T0)}, {s(S_R)}, 7")
        a(f"s_lshl_b32 {s(S_T1)}, {s(S_C)}, 6")
        a(f"s_add_u32 {s(S_T0)}, {s(S_T0)}, {s(S_T1)}")
        a(f"s_add_u32 {s(S_T0)}, {s(S_T0)}, {ST}")
        a(f"v_lshl_add_u32 v2, {v(G)}, 4, {s(S_T0)}")
        a(f"v_xor_b32 v3, 64, v2")
        a(f"s_mul_i32 {s(S_T0)}, {s(S_C)}, 448")
        a(f"s_add_u32 {s(S_T0)}, {s(S_T0)}, {ST_CS}")
        a(f"v_lshl_add_u32 v4, {v(L15)}, 2, {s(S_T0)}")
        a(f"v_lshl_add_u32 v5, {v(G)}, 4, {s(S_T0)}")
        a(f"v_xor_b32 v6, 64, {v(TOK)}")
        a(f"s_lshl_b32 {s(S_T0)}, {s(S_C)}, 6")
        a(f"s_add_u32 {s(S_T0)}, {s(S_T0)}, {B1L}")
        a(f"v_lshl_add_u32 v7, {v(G)}, 3, {s(S_T0)}")
        AB = 88; CS = 104; A2 = 114; CH = 80; BR = 72
        rd = [f"ds_read_b128 {v(AB,4)}, v2", f"ds_read_b128 {v(AB+4,4)}, v2 offset:512",
              f"ds_read_b128 {v(AB+8,4)}, v3", f"ds_read_b128 {v(AB+12,4)}, v3 offset:512"]
        rd += [f"ds_read_b32 {v(CS+2*t)}, v4 offset:{64*t}" for t in range(5)]
        rd += [f"ds_read_b32 {v(A2)}, {v(TOK)} offset:1024", f"ds_read_b32 {v(A2+2)}, {v(TOK)} offset:1536",
               f"ds_read_b32 {v(A2+4)}, v6 offset:1024", f"ds_read_b32 {v(A2+6)}, v6 offset:1536"]
        for j in range(2):
            rd += [f"ds_read_b128 {v(CH+4*j,4)}, v5 offset:{64*(5+j)}", f"ds_read_b64 {v(BR+2*j,2)}, v7 offset:{32*j}"]
        a(f"v_mov_b32 v8, {ST_N}")
        rd += [f"ds_read_b32 v79, v8"]
        mf = self.p1_mfmas(0, self.YA, self.YB)
        if self.cfg.kvo == 2: mf = mf[10:] + mf[:10]
        interleave(a, mf, rd, 0.8, 2)
        TMP = 124
        def gelu():
            a(f"v_lshlrev_b32 v2, 4, v1")
            self.gelu_consts()
            for j in range(2):
                self.gelu_tile(5 + j, A2, CH + 4*j, BR + 2*j, lambda i: TMP + 4*i + 2*j, 148)
            self.h_store(0, TMP)
        if self.cfg.kvo == 2:
            a("s_setprio 3")
            a("s_waitcnt lgkmcnt(0)")
            gelu()
            a(f"s_setprio {self.cfg.pe}")
        EPS = 76
        a(f"v_mov_b32 {v(EPS)}, {lit(1e-6)}")
        a(f"v_mov_b32 {v(EPS+2)}, {lit(-1e-6)}")
        a(f"s_mov_b32 {s(S_K0)}, {lit(LOG2E)}")
        a("s_waitcnt lgkmcnt(0)")
        self.stamp(3)
        FR = 124; X = 148
        fa = lambda i, p: AB + 8*i + 2*p
        fb = lambda i, p: AB + 8*i + 4 + 2*p
        ch = [(i, p) for i in range(2) for p in range(2)]
        for t in (0, 1):
            self.phi_tile(t, fa, fb, lambda i, p: ('b', CS + 2*t), X, EPS, lambda i: FR + 4*t + 2*i)
        self.phi_tile(2, fa, fb, lambda i, p: ('b', CS + 4), X, EPS, lambda i: FR + 8 + 2*i)
        for i, p in ch: a(pk('add', X+4*i+2*p, self.acc(2,i)+2*p, ('b', EPS+2)))
        for i, p in ch: a(f"v_cvt_pk_bf16_f32 {v(FR+12+2*i+p)}, {v(X+4*i+2*p)}, {v(X+4*i+2*p+1)}")
        for t in (3, 4):
            for i, p in ch: a(pk('mul', X+4*i+2*p, fb(i,p), ('b', CS+2*t)))
            for i, p in ch: a(pk('fma', X+4*i+2*p, fa(i,p), self.acc(t,i)+2*p, X+4*i+2*p))
            for i, p in ch: a(f"v_cvt_pk_bf16_f32 {v(FR+4*(t+1)+2*i+p)}, {v(X+4*i+2*p)}, {v(X+4*i+2*p+1)}")
        a(f"v_cmp_gt_u32 vcc, 8, {v(L15)}")
        for r in range(4): a(f"v_cndmask_b32 {v(FR+12+r)}, {v(FR+12+r)}, {v(self.ONES)}, vcc")
        self.stamp(4)
        pairs = [(0, 0), (0, 1), (1, 0), (1, 1), (1, 2), (2, 0), (2, 1), (2, 2)]
        KVD = 12
        for j, (td, te) in enumerate(pairs):
            a(f"v_mfma_f32_16x16x32_bf16 {v(KVD+4*j,4)}, {v(FR+4*td,4)}, {v(FR+12+4*te,4)}, 0")
        a(f"v_mul_u32_u24 v2, 336, {v(G)}")
        a(f"v_add_u32 v2, {s(S_OA)}, v2")
        a(f"v_lshl_add_u32 v3, {v(L15)}, 4, v2")
        a(f"v_add_u32 v4, {-128 & 0xffffffff}, v3")
        a(f"v_add_u32 v5, {(4*336 - 128 - 320) & 0xffffffff}, v3")
        a(f"v_add_u32 v6, {4*336 - 128}, v3")
        a(f"v_cmp_eq_u32 vcc, 0, {v(G)}")
        a(f"v_cndmask_b32 v5, v5, v6, vcc")
        a(f"v_add_u32 v6, {8*336 - 128 - 320}, v3")
        a(f"v_cmp_eq_u32 vcc, 0, {v(L15)}")
        for td in range(3):
            a(f"v_add_u32 v10, {4*td*336 + 320}, v2")
            a(f"v_cndmask_b32 {v(7+td)}, {v(4+td)}, v10, vcc")
        def valid(td, te, l):
            col = l & 15; g = l >> 4; dqg = 4 * td + g
            if dqg > 9: return False
            hh = dqg // 5
            if te == 0:
                if col == 0: return True
                if col < 8: return False
            eg = col - 8 + 16 * te
            return eg // 20 == hh
        tot = 0
        for j, (td, te) in enumerate(pairs):
            m = sum(1 << l for l in range(64) if valid(td, te, l)); tot += bin(m).count('1')
            exec_mask(a, m)
            a(f"ds_write_b128 {v(7+td if te == 0 else 4+td)}, {v(KVD+4*j,4)} offset:{256*te}")
        assert tot == 210
        a("s_mov_b64 exec, -1")
        a(f"v_lshlrev_b32 v3, 4, v0")
        a(f"v_add_u32 v4, {SCR}, v3")
        a(f"v_mov_b32 v5, {hex(OOB)}")
        a(f"v_cmp_gt_u32 vcc, 420, v0")
        a(f"v_cndmask_b32 v3, v5, v3, vcc")
        if self.cfg.kvo == 1: gelu()
        a("s_waitcnt lgkmcnt(0)")
        self.stamp(5)
        a("s_barrier")
        for r in range(4): a(f"ds_read_b128 {v(12+4*r,4)}, v4 offset:{6720*r}")
        for e in range(4): a(f"s_mov_b32 {s(S_T0+e)}, {hex(0x07060500 + e)}")
        a("s_waitcnt lgkmcnt(0)")
        for p in range(2): a(pk('add', 12+2*p, 12+2*p, 16+2*p))
        for p in range(2): a(pk('add', 20+2*p, 20+2*p, 24+2*p))
        for p in range(2): a(pk('add', 12+2*p, 12+2*p, 20+2*p))
        for e in range(4): a(f"v_perm_b32 {v(12+e)}, {v(12+e)}, v79, {s(S_T0+e)}")
        a(f"buffer_store_dwordx4 v[12:15], v3, {s(R_WS,4)}, {s(S_CNT)} offen sc1")
        self.stamp(7)
        if self.cfg.kvo == 0: gelu()
        a(f"v_lshlrev_b32 v2, 4, v1")
        self.signal()
        self.stamp(9)
        self.nb_c_kv = self.nb_loop + a.nbar - nb + 1
        a.nbar = nb
        a("s_branch Lp2")

    def epi_q(self):
        a = self.a
        nb = a.nbar
        L15, G, TOK = self.L15, self.G, self.TOK
        self.stamp(2)
        a(f"s_setprio {min(3, self.cfg.pe + 1)}")
        a(f"s_mul_i32 {s(S_T0)}, {s(S_C)}, 448")
        a(f"s_add_u32 {s(S_T0)}, {s(S_T0)}, {ST_CS}")
        a(f"v_lshl_add_u32 v5, {v(G)}, 4, {s(S_T0)}")
        a(f"v_xor_b32 v6, 64, {v(TOK)}")
        a(f"s_lshl_b32 {s(S_T0)}, {s(S_C)}, 7")
        a(f"s_add_u32 {s(S_T0)}, {s(S_T0)}, {B1L}")
        a(f"v_lshl_add_u32 v7, {v(G)}, 3, {s(S_T0)}")
        A2 = 68; A1 = 112; BR = 76; CS = 84
        rd = [f"ds_read_b32 {v(A2)}, {v(TOK)} offset:1024", f"ds_read_b32 {v(A2+2)}, {v(TOK)} offset:1536",
              f"ds_read_b32 {v(A2+4)}, v6 offset:1024", f"ds_read_b32 {v(A2+6)}, v6 offset:1536"]
        for j in range(4):
            rd += [f"ds_read_b128 {v(CS+4*(3+j),4)}, v5 offset:{64*(3+j)}", f"ds_read_b64 {v(BR+2*j,2)}, v7 offset:{32*j}"]
        rd += [f"ds_read_b32 {v(A1)}, {v(TOK)}", f"ds_read_b32 {v(A1+2)}, {v(TOK)} offset:512",
               f"ds_read_b32 {v(A1+4)}, v6", f"ds_read_b32 {v(A1+6)}, v6 offset:512"]
        rd += [f"ds_read_b128 {v(CS+4*t,4)}, v5 offset:{64*t}" for t in range(3)]
        mf = self.p1_mfmas(1, self.YA, self.YB)
        mf = mf[6:] + mf[:6]
        interleave(a, mf, rd, 0.8, 2)
        a(f"v_lshlrev_b32 v2, 4, v1")
        self.gelu_consts()
        a("s_waitcnt lgkmcnt(0)")
        self.stamp(3)
        TMP = 124
        for j in range(4):
            self.gelu_tile(3 + j, A2, CS + 4*(3+j), BR + 2*j, lambda i: TMP + (j >> 1)*8 + 4*i + 2*(j & 1), 140)
            if j & 1: self.h_store(j >> 1, TMP)
        a(f"s_setprio {self.cfg.pe}")
        self.stamp(5)
        a(f"s_cmp_eq_u32 {s(S_C)}, 0")
        a(f"s_cbranch_scc1 Lq_phi")
        a.label('Lq_bar')
        a("s_waitcnt vmcnt(0)")
        self.signal()
        self.stamp(8)
        a(f"s_cmp_eq_u32 {s(S_C)}, 0")
        a(f"s_cbranch_scc1 Lq_after")
        a.label('Lq_phi')
        PQ = 152; EPS = 76; X = 112
        a(f"v_mov_b32 {v(EPS)}, {lit(1e-6)}")
        a(f"s_mov_b32 {s(S_K0)}, {lit(LOG2E)}")
        X = 96
        for t in range(3):
            self.phi_tile(t, lambda i, p: ('b', A1+4*i), lambda i, p: ('b', A1+4*i+2), lambda i, p: CS+4*t+2*p, X, EPS,
                          (lambda i: PQ + 4*i + 2*t) if t < 2 else (lambda i: PQ + 8 + 2*i))
        self.stamp(6)
        self.stamp(7)
        a(f"s_cmp_eq_u32 {s(S_C)}, 0")
        a(f"s_cbranch_scc1 Lq_bar")
        a.label('Lq_after')
        a(f"s_lshl_b32 {s(S_T1)}, {s(S_C)}, 12")
        a(f"s_add_u32 {s(S_T1)}, {s(S_T1)}, {KVT}")
        a(f"v_lshl_add_u32 v140, v1, 4, {s(S_T1)}")
        a(f"v_lshl_add_u32 v141, v1, 3, {s(S_T1)}")
        a(f"s_lshl_b32 {s(S_T1)}, {s(S_R)}, 5")
        a(f"s_lshl_b32 {s(S_T2)}, {s(S_C)}, 4")
        a(f"s_add_u32 {s(S_T1)}, {s(S_T1)}, {s(S_T2)}")
        a(f"v_add_u32 v142, {s(S_T1)}, {v(L15)}")
        a(f"v_xor_b32 v143, 16, v142")
        a(f"s_mul_i32 {s(S_T1)}, {s(S_C)}, 80")
        a(f"s_add_u32 {s(S_T1)}, {s(S_T1)}, {OEX}")
        for i in range(2):
            a(f"v_mul_u32_u24 {v(142+i)}, 160, {v(142+i)}")
            a(f"v_add_u32 {v(142+i)}, {s(S_T1)}, {v(142+i)}")
            a(f"v_lshl_add_u32 {v(144+i)}, {v(G)}, 1, {v(142+i)}")
            a(f"v_lshl_add_u32 {v(142+i)}, {v(G)}, 3, {v(142+i)}")
        self.stamp(9)
        self.nb_c_q = self.nb_loop + a.nbar - nb + 1
        a.nbar = nb

    def o_block(self):
        a = self.a
        a.label('Lob')
        F = 124; PQ = 152
        U = [[32, 36, 40], [44, 48, 148]]
        R = [146, 166]
        for k in range(3): a(f"ds_read_b128 {v(F+4*k,4)}, v140 offset:{1024*k}")
        a(f"ds_read_b64 {v(F+12,2)}, v141 offset:3072")
        a(f"ds_read_b64 {v(F+14,2)}, v141 offset:3584")
        a("s_waitcnt lgkmcnt(0)")
        for i in range(2):
            for k in (1, 2, 0):
                a(f"v_mfma_f32_16x16x32_bf16 {v(U[i][k],4)}, {v(F+4*k,4)}, {v(PQ+4*i,4)}, 0")
        for i in range(2):
            for k in (1, 2):
                a(f"v_mfma_f32_16x16x16_bf16 {v(U[i][k],4)}, {v(F+12+2*(k-1),2)}, {v(PQ+8+2*i,2)}, {v(U[i][k],4)}")
        for i in range(2):
            u = U[i][1]
            a(f"v_add_f32 {v(u+1)}, {lit(1e-6)}, {v(u+1)}")
            a(f"v_add_f32 {v(u+2)}, {lit(1e-6)}, {v(u+2)}")
            a(f"v_rcp_f32 {v(u+1)}, {v(u+1)}")
            a(f"v_rcp_f32 {v(u+2)}, {v(u+2)}")
        for i in range(2):
            u0, u1, u2 = U[i]
            for r in range(4): a(f"v_mul_f32 {v(u0+r)}, {v(u0+r)}, {v(u1+1)}")
            for r in range(4): a(f"v_mul_f32 {v(u2+r)}, {v(u2+r)}, {v(u1+2)}")
            a(f"v_mul_f32 {v(u1)}, {v(u1)}, {v(u1+1)}")
            a(f"v_mul_f32 {v(u1+3)}, {v(u1+3)}, {v(u1+2)}")
            a(f"v_cvt_pk_bf16_f32 {v(u0)}, {v(u0)}, {v(u0+1)}")
            a(f"v_cvt_pk_bf16_f32 {v(u0+1)}, {v(u0+2)}, {v(u0+3)}")
            a(f"v_cvt_pk_bf16_f32 {v(u2)}, {v(u2)}, {v(u2+1)}")
            a(f"v_cvt_pk_bf16_f32 {v(u2+1)}, {v(u2+2)}, {v(u2+3)}")
            a(f"v_cvt_pk_bf16_f32 {v(u1)}, {v(u1)}, {v(u1+3)}")
            a(f"ds_write_b64 {v(142+i)}, {v(u0,2)}")
            a(f"ds_write_b64 {v(142+i)}, {v(u2,2)} offset:40")
            a(f"ds_write_b16 {v(144+i)}, {v(u1)} offset:32")
            a(f"ds_write_b16_d16_hi {v(144+i)}, {v(u1)} offset:72")
        self.stamp(13)
        a(f"s_cmp_lg_u32 {s(S_C)}, 0")
        a(f"s_cbranch_scc1 Lobr_1")
        a(f"s_branch Lobr_0")

    AM = 12; AS = 32; P2X = 52; P2Y = 72; AR = 92; OR = 124
    def p2_pre_setup(self):
        a = self.a
        a(f"s_lshl_b32 {s(S_T2)}, {s(S_TT)}, 2")
        a(f"s_add_u32 {s(S_T2)}, {s(S_T2)}, {s(S_R)}")
        a(f"s_mul_i32 {s(S_OH)}, {s(S_T2)}, {48*1024}")
        a(f"s_mul_i32 {s(S_T3)}, {s(S_C)}, {24*1024}")
        a(f"s_add_u32 {s(S_OH)}, {s(S_OH)}, {s(S_T3)}")
        a(f"s_add_u32 {s(S_OH)}, {s(S_OH)}, {WS_H2}")
        a(f"s_mul_i32 {s(S_NONCE)}, {s(S_T2)}, {8*2560}")
        a(f"s_mul_i32 {s(S_T3)}, {s(S_C)}, {4*2560}")
        a(f"s_add_u32 {s(S_NONCE)}, {s(S_NONCE)}, {s(S_T3)}")
        a(f"s_add_u32 {s(S_NONCE)}, {s(S_NONCE)}, {WS_O2}")
        self.rot2(S_KC)
    def hload(self, j):
        a = self.a
        if j % 2 == 0:
            self.chunk_id(S_OA, S_T3, j // 2)
            a(f"s_lshl_b32 {s(S_OA)}, {s(S_OA)}, 11")
            a(f"s_add_u32 {s(S_OA)}, {s(S_OA)}, {s(S_OH)}")
        a(f"buffer_load_dwordx4 {v(self.AR+4*(j%8),4)}, v2, {s(R_WS,4)}, {s(S_OA)} offen offset:{1024*(j%2)} {self.cfg.hsc}")
    def p2_pre_loads(self, j0, j1):
        for j in range(j0, j1): self.hload(j)

    def phase2(self):
        a = self.a
        a.label('Lp2')
        a(f"s_cmp_lg_u32 {s(S_C)}, 0")
        a(f"s_cbranch_scc1 Lp2_1")
        for kap in range(2): self.phase2k(kap)

    def phase2k(self, kap):
        a = self.a; cfg = self.cfg
        nb = a.nbar
        a.label(f"Lp2_{kap}")
        AM, AS, XB, YB, AR, OR = self.AM, self.AS, self.P2X, self.P2Y, self.AR, self.OR
        VB = 4
        M = "v_mfma_f32_16x16x32_bf16"
        a(f"v_add_u32 v4, {kap*10240}, v2")
        a(f"v_add_u32 v5, {SLOT + kap*10240}, v2")
        a(f"v_add_u32 v6, {2*SLOT + kap*10240}, v2")
        q = [('A', j) for j in range(cfg.ramp)]
        hn = [cfg.ramp]
        def hload_upto(n, cap):
            while hn[0] < min(n, 24) and cap > 0:
                self.hload(hn[0]); q.append(('A', hn[0])); hn[0] += 1; cap -= 1
        ol = []
        for P in range(2):
            for i5 in range(4):
                ol.append((P, i5 >> 1, f"buffer_load_dwordx4 {v(OR+4*(5*P+i5),4)}, v2, {s(R_WS,4)}, {s(S_T0)} offen offset:{1024*(i5&1)} sc1", 24 + 5*P + i5))
            for hh in range(2):
                ol.append((P, hh, f"buffer_load_dwordx2 {v(OR+4*(5*P+4)+2*hh,2)}, v3, {s(R_WS,4)}, {s(S_T0)} offen offset:2048 sc1", 24 + 5*P + 4))
        def oloads(n):
            for _ in range(n):
                if not ol: return
                P, hh, txt, st = ol.pop(0)
                a(f"s_add_u32 {s(S_T0)}, {s(S_NONCE)}, {(2*P+hh)*2560}")
                a(txt); q.append(('A', st))
        def wait(tag):
            assert not any(o[3] == tag[1] for o in ol)
            idx = [k for k, t in enumerate(q) if t == tag]
            if not idx: return
            n = sum(1 for t in q[idx[-1]+1:] if t[0] != 'S')
            a(f"s_waitcnt vmcnt({n})")
            del q[:idx[-1] + 1]
        def areg(j): return AR + 4 * (j % 8) if j < 24 else OR + 4 * (j - 24)
        def reads(j, B):
            i = j // 2; base = RING[i % 6]; vb = VB + base // SLOT; off = base % SLOT + (j & 1) * 5120
            return [f"ds_read_b128 {v(B+4*c,4)}, {v(vb)} offset:{off + 1024*c}" for c in range(5)]
        def mfmas(j, B):
            ac = AM if j < 24 else AS
            first = j == 24 or (j == 0 and kap == 1)
            return [f"{M} {v(ac+4*c,4)}, {v(B+4*c,4)}, {v(areg(j),4)}, {'0' if first else v(ac+4*c,4)}" for c in range(5)]
        lq = []
        def lds(txt, tag): a(txt); lq.append(tag)
        def lwait(tag):
            idx = [k for k, t in enumerate(lq) if t == tag]
            if not idx: return
            a(f"s_waitcnt lgkmcnt({len(lq) - 1 - idx[-1]})")
            del lq[:idx[-1] + 1]
        own = [0, 1, 2] if kap == 0 else [3, 4]
        give = [c for c in range(5) if c not in own]
        a(f"v_lshlrev_b32 v3, 3, v1")
        a(f"v_mov_b32 v167, 0xffff0000")
        def unpack(d, b):
            return [f"v_lshlrev_b32 {v(d)}, 16, {v(b)}", f"v_and_b32 {v(d+1)}, v167, {v(b)}",
                    f"v_lshlrev_b32 {v(d+2)}, 16, {v(b+1)}", f"v_and_b32 {v(d+3)}, v167, {v(b+1)}"]
        if kap == 0:
            a(f"v_lshlrev_b32 v9, 3, {v(self.G)}")
            a(f"v_add_u32 v9, {B2L}, v9")
            for c in range(5): lds(f"ds_read_b64 {v(AS+2*c,2)}, v9 offset:{32*c}", 'b2')
        if kap == 0:
            lwait('b2')
            for c in range(5):
                for x in unpack(AM + 4*c, AS + 2*c): a(x)
        a(f"s_mul_i32 {s(S_T0)}, {s(S_R)}, 5120")
        a(f"s_add_u32 {s(S_T0)}, {s(S_T0)}, {EXB}")
        a(f"v_add_u32 v7, {s(S_T0)}, v2")
        a(f"s_lshl_b32 {s(S_T0)}, {s(S_R)}, 4")
        a(f"v_add_u32 v8, {s(S_T0)}, {v(self.L15)}")
        a(f"v_mul_u32_u24 v8, 160, v8")
        a(f"v_lshl_add_u32 v8, {v(self.G)}, 3, v8")
        a(f"v_add_u32 v8, {XT}, v8")
        G = AR
        self.final_prep()
        a(f"v_mov_b32 v10, {lit(-LOG2E)}")
        X = G + 20
        sil = []
        for k, c in enumerate(own):
            g = G + 4 * k; x = X + 4 * k; R = range(4)
            sil += [f"v_add_f32 {v(g+r)}, {v(g+r)}, {v(AM+4*c+r)}" for r in R]
            sil += [f"v_mul_f32 {v(x+r)}, v10, {v(g+r)}" for r in R]
            sil += [f"v_exp_f32 {v(x+r)}, {v(x+r)}" for r in R]
            sil += [f"v_add_f32 {v(x+r)}, 1.0, {v(x+r)}" for r in R]
            sil += [f"v_rcp_f32 {v(x+r)}, {v(x+r)}" for r in R]
            sil += [f"v_mul_f32 {v(g+r)}, {v(g+r)}, {v(x+r)}" for r in R]
        XR = G + 12
        for k, c in enumerate(own): sil += unpack(AM + 4 * k, XR + 2 * k)
        nsl = 7; per = -(-len(sil) // nsl)
        def take():
            r = sil[:per]; del sil[:per]; return r
        def step(j):
            B = XB if j % 2 == 0 else YB
            mf = mfmas(j, B); rd = reads(j + 2, B) if j + 2 < 34 else []
            ex = take() if j >= 27 else []
            order = give + own if j == 33 else range(5)
            n = 0
            for k, c in enumerate(order):
                a(mf[c])
                if rd: lds(rd[c], j + 2)
                while n < (k + 1) * len(ex) // 5: a(ex[n]); n += 1
            hload_upto(j + 9 if j >= 2 * cfg.kh - 1 else min(j + 9, 16), 3)
        a(f"s_setprio {cfg.pp}")
        a("s_barrier"); a.nbar -= 1
        self.p2_pre_loads(0, cfg.ramp)
        for x in reads(0, XB): lds(x, 0)
        for x in reads(1, YB): lds(x, 1)
        self.stamp(20)
        for j in range(34):
            i = j // 2
            if j % 2 == 0:
                if i >= cfg.ko: oloads((cfg.opc + 1) // 2)
            else:
                if i >= cfg.ko: oloads(cfg.opc // 2)
            if j == 0:
                a("s_waitcnt vmcnt(0)"); q.clear()
            wait(('A', j))
            lwait(j)
            if j == 27: lwait('g')
            if j % 2 == 1 and i <= 11:
                a("s_barrier"); self.stamp(21 + i)
            if j == 26:
                lwait('mx')
                a("s_barrier"); self.stamp(33)
                for k, c in enumerate(own):
                    lds(f"ds_read_b128 {v(G+4*k,4)}, v7 offset:{1024*c}", 'g')
                    lds(f"ds_read_b64 {v(XR+2*k,2)}, v8 offset:{32*c}", 'g')
            step(j)
            if j == 2 * cfg.ka - 1:
                a(f"s_cmp_lg_u32 {s(S_TY)}, 0")
                a(f"s_cbranch_scc1 Lob")
                a.label(f"Lobr_{kap}")
            if j == 2 * cfg.ka + 1 - 1: pass
            if j == 24:
                for c in give: lds(f"ds_write_b128 v7, {v(AM+4*c,4)} offset:{1024*c}", 'mx')
        assert not ol and not sil
        for c in give: a(f"ds_write_b128 v7, {v(AS+4*c,4)} offset:{1024*c}")
        X = AM
        a("s_waitcnt lgkmcnt(0)")
        a("s_barrier")
        for k, c in enumerate(own): a(f"ds_read_b128 {v(XB+4*k,4)}, v7 offset:{1024*c}")
        a("s_waitcnt lgkmcnt(0)")
        prs = [(k, c, p) for k, c in enumerate(own) for p in range(2)]
        for k, c, p in prs: a(pk('add', XB+4*k+2*p, XB+4*k+2*p, AS+4*c+2*p))
        for k, c, p in prs: a(pk('fma', X+4*k+2*p, XB+4*k+2*p, G+4*k+2*p, X+4*k+2*p))
        for k, c, p in prs: a(f"v_cvt_pk_bf16_f32 {v(XB+2*k+p)}, {v(X+4*k+2*p)}, {v(X+4*k+2*p+1)}")
        for k, c in enumerate(own): a(f"ds_write_b64 v8, {v(XB+2*k,2)} offset:{32*c}")
        a("s_waitcnt lgkmcnt(0)")
        a("s_barrier")
        self.nb_c_p2 = a.nbar - nb
        a.nbar = nb
        if kap == 0: a("s_branch Lfinal_store")

    def build(self):
        a = self.a
        self.entry()
        self.loader()
        self.compute_setup()
        self.duty(0, self.XA, self.XB)
        self.duty(1, self.YA, self.YB)
        self.pack_blocks()
        self.o_block()
        self.p1_loop(0); self.epi_kv()
        self.p1_loop(1); self.epi_q()
        self.phase2()
        self.final_store()
        assert self.nb_ld_kv == self.nb_c_kv, (self.nb_ld_kv, self.nb_c_kv)
        assert self.nb_ld_q == self.nb_c_q, (self.nb_ld_q, self.nb_c_q)
        assert self.nb_ld_p2 == self.nb_c_p2, (self.nb_ld_p2, self.nb_c_p2)
        body = a.finish()
        head = open('recurrent_scan__linear_attn_block__mixer_channel_mlp__prompt.s.ref').read().split('; Override launch')[0]
        txt = head + f"; @launch grid=(256,1,1) block=(768,1,1) lds={LDS_TOTAL}\n"
        txt += f'.amdgcn_target "amdgcn-amd-amdhsa--gfx950"\n.text\n.globl {NAME}\n.p2align 8\n.type {NAME},@function\n{NAME}:\n'
        txt += body
        txt += f""".section .rodata,"a"
.p2align 6
.amdhsa_kernel {NAME}
  .amdhsa_next_free_vgpr 168
  .amdhsa_next_free_sgpr 102
  .amdhsa_accum_offset 168
  .amdhsa_group_segment_fixed_size 0
  .amdhsa_kernarg_size 88
  .amdhsa_user_sgpr_count 2
  .amdhsa_user_sgpr_kernarg_segment_ptr 1
  .amdhsa_system_sgpr_workgroup_id_x 1
.end_amdhsa_kernel
"""
        return txt

def wg_type(cfg_kw, wg):
    m = cfg_kw.get('map1', Cfg.map1)
    return (wg >> {'A': 5, 'B': 6, 'D': 7}[m]) & 1

def make(**kw):
    cfg = Cfg()
    for k, x in kw.items(): setattr(cfg, k, x)
    return Gen(cfg).build()

if __name__ == '__main__':
    out = sys.argv[1] if len(sys.argv) > 1 else 'recurrent_scan__linear_attn_block__mixer_channel_mlp__prompt.s'
    kw = {}
    for x in sys.argv[2:]:
        k, val = x.split('='); kw[k] = eval(val)
    open(out, 'w').write(make(**kw))
```

```python
import sys, math, struct
from asmlib import *

NAME = 'recurrent_scan__linear_attn_block__mixer_channel_mlp__prompt_kernel'

class Cfg:
    n1 = 8
    diag = False
    ko = 12
    rot2 = (0, 1)
    kb = 2
    pfw = 0
    kvd = -2
    osc = ''
    kh = 5
    map1 = 'D'
    kprot = True
    fs = 7
    psl = 2
    ka = 3
    kvo = 0
    prew = True
    sbar = True
    hsc = 'sc1'
    bsc = 'sc1'
    nh0 = 3
    pe = 2
    pp = 0
    gfirst = False
    staged = (6, 8, 10, 12, 14, 16)
    map2 = 'A'
    opc = 6
    cpw = 11
    l1in = True
    n10 = 8
    l1d = 0
    kte = False
    fo = 2
    pw = 3
    rf1 = True
    pk0 = 1
    cpi = 3
    xlat = None
    xg = None
    pl = 0
    rpm = 1
    rp2 = 3
    wopf = False
    ramp = 2
    xr = 7
    xm = 7
    xd = 11
    rot1 = (1, 7)
    pfs = (1, 1)
    kx = 9
    late = False
    rfb = True
    ofirst = 4
    onc = 1
    oil = True
    pc1 = 0
    fpd = 2
    cpn = 8
    cpf = 2
    il1 = (0.75, 3)
    il0 = (0.9, 3)
    prio = 0
    dbgt = False
    light = False

SLOT = 45056
SCR = 3 * SLOT
LDS_TOTAL = 163840
ST = SLOT + 40960
ST_CS = ST + 2048
B1L = SCR + 28160
KVT = 40960; KVT_C = 2 * SLOT
OEX = SCR; OP = 168
XT = SCR
B2L = ST + 3328
RING = [SLOT, SLOT + 20480, 2 * SLOT, 2 * SLOT + 20480, 0, 20480]
EXB = RING[5]
WS_FH = 0x160000; WS_FO = 0x170000; WS_FP = 9216; WS_FS = 10240
WS_TS = 0x10000
WS_RP = 0x20000; WS_CP = 0x48000
WS_KP = 0x80000; KP_STRIDE = 6784; WS_KT = 0x180000
ST_N = ST + 3072; ST_C = ST + 3076
WS_P2 = 0x200000; WS_O2 = 0x500000; WS_H2 = 0x800000
WS_TS2 = 0xE00000
WS_SIZE = 0xF00000
OOB = 0x40000000
P_X, P_W, P_WO, P_W1, P_B1, P_W2, P_B2, P_OUT, P_DBG, P_WS = 4, 6, 8, 12, 14, 16, 18, 20, 22, 24
S_S0, S_COL = 26, 27
R_X, R_W, R_W1, R_MID, R_WS, R_PK, R_OUT, R_BI = 28, 32, 36, 40, 44, 48, 52, 56
S_WID, S_RB, S_HG, S_TY, S_TT, S_N, S_XCD, S_IDX, S_R, S_C = 60, 61, 62, 63, 64, 65, 66, 67, 68, 69
S_T0, S_T1, S_T2, S_T3 = 70, 71, 72, 73
S_KC, S_OA, S_OW, S_OM, S_OH = 74, 75, 76, 77, 78
S_NONCE, S_CNT, S_U, S_DELTA, S_IT = 79, 80, 81, 82, 83
S_MASK = 84
S_DEST = 86
S_PIDX = 97
M_V, M_Z0 = 8, 10
M_Z = (10, 16)
S_TS = 98
S_PKO, S_PKS = 100, 101
S_L = S_R
S_K0, S_K1 = 100, 101
VDIAG = 11

LOG2E = 1.4426950408889634
def f2u(x): return struct.unpack('<I', struct.pack('<f', x))[0]
def lit(x): return hex(f2u(x))

def srd(a, r, p, size):
    a(f"s_mov_b32 {s(r)}, {s(p)}")
    a(f"s_and_b32 {s(r+1)}, {s(p+1)}, 0xffff")
    a(f"s_mov_b32 {s(r+2)}, {hex(size)}")
    a(f"s_mov_b32 {s(r+3)}, 0x20000")

def interleave(a, main, fill, last_frac=0.7, first=0):
    n = len(main); m = len(fill); k = 0
    lim = max(1, int(n * last_frac))
    while k < min(first, m): a(fill[k]); k += 1
    for i, x in enumerate(main):
        a(x)
        tgt = first + math.ceil((m - first) * min(i + 1, lim) / lim) if m > first else m
        while k < tgt: a(fill[k]); k += 1
    while k < m: a(fill[k]); k += 1

def pk(op, d, *src):
    ops = []; lo = []; hi = []
    for x in src:
        if isinstance(x, int): assert x % 2 == 0; ops.append(v(x, 2)); lo.append(0); hi.append(1)
        elif isinstance(x, str): ops.append(x); lo.append(0); hi.append(0)
        elif x[0] == 'b': assert x[1] % 2 == 0; ops.append(v(x[1], 2)); lo.append(0); hi.append(0)
        elif x[0] == 's': assert x[1] % 2 == 0; ops.append(s(x[1], 2)); lo.append(0); hi.append(0)
    assert d % 2 == 0
    return f"v_pk_{op}_f32 {v(d,2)}, {', '.join(ops)} op_sel:[{','.join(map(str,lo))}] op_sel_hi:[{','.join(map(str,hi))}]"

def exec_mask(a, m):
    a(f"s_mov_b32 exec_lo, {hex(m & 0xffffffff)}")
    a(f"s_mov_b32 exec_hi, {hex(m >> 32)}")
DIAGMASK = sum(1 << l for l in range(64) if ((l & 15) >> 2) == (l >> 4))

class Gen:
    def __init__(self, cfg):
        self.cfg = cfg
        self.a = Asm()
        self.uid = 0
    def lab(self, p):
        self.uid += 1; return f"L{p}_{self.uid}"

    def stamp(self, i):
        if not self.cfg.diag: return
        a = self.a
        a("s_waitcnt lgkmcnt(0)")
        a(f"s_mov_b32 m0, {s(S_PIDX)}")
        a("s_nop 0")
        a(f"v_writelane_b32 {v(VDIAG)}, {s(S_TS)}, m0")
        a(f"{'s_memrealtime' if self.cfg.diag == 'rt' else 's_memtime'} {s(S_TS,2)}")
        a(f"s_mov_b32 {s(S_PIDX)}, {i}")

    def dbgt(self, slot):
        if not self.cfg.dbgt: return
        a = self.a
        L = self.lab('dt')
        a(f"s_cmp_lg_u32 {s(S_WID)}, 3")
        a(f"s_cbranch_scc1 {L}")
        a(f"s_cmp_lg_u32 s2, 3")
        a(f"s_cbranch_scc1 {L}")
        a(f"s_memrealtime {s(S_TS,2)}")
        a("s_waitcnt lgkmcnt(0)")
        a(f"v_mov_b32 v120, {s(S_TS)}")
        a(f"s_memtime {s(S_TS,2)}")
        a("s_waitcnt lgkmcnt(0)")
        a(f"v_mov_b32 v121, {s(S_TS)}")
        a(f"v_mov_b32 v122, {8*(slot-1)}")
        a(f"global_store_dwordx2 v122, v[120:121], {s(P_DBG,2)}")
        a.label(L)

    def entry(self):
        a = self.a; cfg = self.cfg
        a(f"s_cmp_ge_u32 s2, 256")
        a(f"s_cbranch_scc1 Lend")
        a(f"s_load_dwordx16 s[4:19], s[0:1], 0")
        a(f"s_load_dwordx4 s[20:23], s[0:1], 64")
        a(f"s_load_dwordx2 s[24:25], s[0:1], 80")
        if cfg.light:
            a(f"s_memrealtime {s(S_TS,2)}")
            a(f"s_memtime {s(S_MASK,2)}")
        if cfg.diag:
            a(f"s_memrealtime {s(S_TS,2)}")
            a(f"s_mov_b32 {s(S_PIDX)}, 0")
            a(f"v_mov_b32 {v(VDIAG)}, 0")
        a(f"v_lshrrev_b32 v2, 6, v0")
        a(f"v_and_b32 v1, 63, v0")
        a(f"v_readfirstlane_b32 {s(S_WID)}, v2")
        a(f"s_and_b32 {s(S_XCD)}, s2, 7")
        a(f"s_lshr_b32 {s(S_IDX)}, s2, 3")
        def field(dst, xs, xm, xl, is_, im):
            a(f"s_bfe_u32 {s(S_T0)}, {s(S_XCD)}, {hex((xm.bit_length() << 16) | xs)}")
            a(f"s_lshl_b32 {s(S_T0)}, {s(S_T0)}, {xl}")
            a(f"s_bfe_u32 {s(S_T1)}, {s(S_IDX)}, {hex((im.bit_length() << 16) | is_)}")
            a(f"s_add_u32 {s(dst)}, {s(S_T0)}, {s(S_T1)}")
        if cfg.map1 == 'A':
            field(S_RB, 1, 3, 2, 0, 3); field(S_HG, 0, 1, 2, 3, 3)
            a(f"s_bfe_u32 {s(S_TY)}, {s(S_IDX)}, 0x10002")
        elif cfg.map1 == 'B':
            field(S_RB, 0, 1, 3, 0, 7); field(S_HG, 1, 3, 1, 4, 1)
            a(f"s_bfe_u32 {s(S_TY)}, {s(S_IDX)}, 0x10003")
        else:
            field(S_RB, 0, 1, 3, 0, 7); field(S_HG, 1, 3, 1, 3, 1)
            a(f"s_bfe_u32 {s(S_TY)}, {s(S_IDX)}, 0x10004")
        a(f"s_lshl_b32 {s(S_COL)}, {s(S_HG)}, 1")
        a(f"s_add_u32 {s(S_COL)}, {s(S_COL)}, {s(S_TY)}")
        a(f"s_mul_i32 {s(S_S0)}, {s(S_RB)}, {cfg.rot1[1]}")
        a(f"s_mul_i32 {s(S_T0)}, {s(S_COL)}, {cfg.rot1[0]}")
        a(f"s_add_u32 {s(S_S0)}, {s(S_S0)}, {s(S_T0)}")
        a(f"s_mul_i32 {s(S_T0)}, {s(S_S0)}, 6554")
        a(f"s_lshr_b32 {s(S_T0)}, {s(S_T0)}, 16")
        a(f"s_mul_i32 {s(S_T0)}, {s(S_T0)}, 10")
        a(f"s_sub_u32 {s(S_S0)}, {s(S_S0)}, {s(S_T0)}")
        a(f"s_cmp_ge_u32 {s(S_WID)}, 4")
        a(f"s_cbranch_scc1 Lcompute")

    def calc_p2map(self):
        a = self.a
        if self.cfg.map2 == 'A':
            a(f"s_lshr_b32 {s(S_T0)}, {s(S_XCD)}, 1")
            a(f"s_lshl_b32 {s(S_T0)}, {s(S_T0)}, 3")
            a(f"s_and_b32 {s(S_T1)}, {s(S_IDX)}, 7")
            a(f"s_add_u32 {s(S_TT)}, {s(S_T0)}, {s(S_T1)}")
            a(f"s_and_b32 {s(S_T0)}, {s(S_XCD)}, 1")
            a(f"s_lshl_b32 {s(S_T0)}, {s(S_T0)}, 2")
            a(f"s_lshr_b32 {s(S_T1)}, {s(S_IDX)}, 3")
            a(f"s_add_u32 {s(S_N)}, {s(S_T0)}, {s(S_T1)}")
        else:
            a(f"s_lshl_b32 {s(S_T0)}, {s(S_XCD)}, 2")
            a(f"s_and_b32 {s(S_T1)}, {s(S_IDX)}, 3")
            a(f"s_add_u32 {s(S_TT)}, {s(S_T0)}, {s(S_T1)}")
            a(f"s_lshr_b32 {s(S_N)}, {s(S_IDX)}, 2")
    def calc_u(self):
        a = self.a
        self.calc_p2map()
        a(f"s_add_u32 {s(S_U)}, {s(S_HG)}, 128")
        a(f"s_cmp_lt_u32 {s(S_RB)}, 4")
        a(f"s_cselect_b32 {s(S_U)}, {s(S_U)}, 255")
        a(f"s_lshl_b32 {s(S_T0)}, {s(S_HG)}, 4")
        a(f"s_add_u32 {s(S_T0)}, {s(S_T0)}, {s(S_RB)}")
        a(f"s_cmp_lg_u32 {s(S_TY)}, 0")
        a(f"s_cselect_b32 {s(S_U)}, {s(S_T0)}, {s(S_U)}")

    def poll_issue(self, vdst, voff, n=1):
        self.a(f"buffer_load_dword{'x2' if n == 2 else ''} {v(vdst, n)}, {v(voff)}, {s(R_WS,4)}, 0 offen sc1")
    def poll_check(self, vdst, voff, nlanes, n=1):
        a = self.a
        L = self.lab('poll'); Ld = self.lab('polld')
        mask = (1 << nlanes) - 1
        a(f"s_mov_b32 {s(S_CNT)}, 0")
        a.label(L)
        a(f"v_cmp_ne_u32 vcc, {s(S_NONCE)}, {v(vdst)}")
        if n == 2:
            a(f"v_cmp_ne_u32 {s(S_MASK,2)}, {s(S_NONCE)}, {v(vdst+1)}")
            a(f"s_or_b64 vcc, vcc, {s(S_MASK,2)}")
        if nlanes < 32:
            a(f"s_and_b32 {s(S_T0)}, vcc_lo, {hex(mask)}")
        else:
            a(f"s_and_b32 {s(S_T0)}, vcc_hi, {hex(mask >> 32)}")
            a(f"s_or_b32 {s(S_T0)}, {s(S_T0)}, vcc_lo")
        a(f"s_cbranch_scc0 {Ld}")
        a(f"s_add_u32 {s(S_CNT)}, {s(S_CNT)}, 1")
        a(f"s_cmp_gt_u32 {s(S_CNT)}, 0x40000")
        a(f"s_cbranch_scc1 {Ld}")
        if self.cfg.psl: a(f"s_sleep {self.cfg.psl}")
        self.poll_issue(vdst, voff, n)
        a("s_waitcnt vmcnt(0)")
        a(f"s_branch {L}")
        a.label(Ld)
    def poll(self, vdst, voff, nlanes, n=1):
        self.poll_issue(vdst, voff, n); self.a("s_waitcnt vmcnt(0)"); self.poll_check(vdst, voff, nlanes, n)
    def only_l(self, l=0):
        L = self.lab('l0')
        self.a(f"s_cmp_lg_u32 {s(S_L)}, {l}")
        self.a(f"s_cbranch_scc1 {L}")
        return L
    def flag_store(self, voff):
        self.a(f"buffer_store_dword v41, {v(voff)}, {s(R_WS,4)}, 0 offen sc1")

    def loader(self):
        a = self.a; cfg = self.cfg
        VO = 12
        V_P2 = 23
        V_FH, V_F2, V_FP, V_FS, V_QK, V_QP, V_QH, V_QO, V_QS = 24, 25, 26, 27, 28, 29, 30, 31, 32
        V_PK = 33
        nb0 = a.nbar
        a(f"s_mov_b32 {s(S_L)}, {s(S_WID)}")
        a(f"s_mov_b32 {s(S_KC)}, {s(S_S0)}")
        if cfg.xg:
            G, mul, ca, cb = cfg.xg
            a(f"s_mul_i32 {s(S_KC)}, {s(S_COL)}, {ca}")
            a(f"s_mul_i32 {s(S_T0)}, {s(S_RB)}, {cb}")
            a(f"s_add_u32 {s(S_KC)}, {s(S_KC)}, {s(S_T0)}")
            a(f"s_and_b32 {s(S_KC)}, {s(S_KC)}, {G - 1}")
            a(f"s_mul_i32 {s(S_KC)}, {s(S_KC)}, {mul}")
        if cfg.prio: a(f"s_setprio {cfg.prio}")
        a(f"v_lshrrev_b32 v2, 3, v1")
        a(f"v_lshrrev_b32 v3, 4, v1")
        a(f"v_and_b32 v4, 7, v1")
        a(f"v_xor_b32 v5, v4, v3")
        a(f"s_lshl_b32 {s(S_T0)}, {s(S_RB)}, 2")
        a(f"s_add_u32 {s(S_T0)}, {s(S_T0)}, {s(S_L)}")
        a(f"s_mul_i32 {s(S_T0)}, {s(S_T0)}, {32*1280}")
        a(f"v_mul_u32_u24 v6, 1280, v2")
        a(f"v_lshl_add_u32 v6, v5, 4, v6")
        a(f"v_add_u32 {v(VO)}, {s(S_T0)}, v6")
        a(f"v_xor_b32 v7, 64, {v(VO)}")
        a(f"v_add_u32 {v(VO+1)}, 10240, v7")
        a(f"v_add_u32 {v(VO+2)}, 20480, {v(VO)}")
        a(f"v_add_u32 {v(VO+3)}, 30720, v7")
        a(f"s_lshl_b32 {s(S_DEST)}, {s(S_L)}, 12")
        for n in range(1, 4): a(f"s_add_u32 {s(S_DEST+n)}, {s(S_DEST)}, {1024*n}")
        a(f"s_lshl_b32 {s(S_OA)}, {s(S_KC)}, 7")
        a("s_waitcnt lgkmcnt(0)")
        if cfg.light: a(f"s_mov_b32 s3, {s(S_MASK)}")
        self.stamp(1)
        self.dbgt(2)
        srd(a, R_X, P_X, 2048 * 1280)
        srds = [R_X]*4 + [R_W]*3 + [R_MID]*2 + [R_W1]*2
        soffs = [S_OA]*4 + [S_OW]*3 + [S_OM]*2 + [S_OH]*2
        def dma(k, n):
            a(f"s_add_u32 m0, {s(S_DEST+n)}, {(k % 3) * SLOT}")
            a(f"buffer_load_dwordx4 {v(VO+n if n < cfg.xd or k < 2 else 5)}, {s(srds[n],4)}, {s(soffs[n])} offen lds")
        for n in range(4): dma(0, n)
        srd(a, R_W, P_W, 640 * 3840)
        srd(a, R_W1, P_W1, 640 * 3072)
        def wrow(dst, i, valid_check):
            a(f"v_add_u32 v6, {s(S_T1)}, v1")
            if i: a(f"v_add_u32 v6, {64*i}, v6")
            a(f"v_mul_u32_u24 v7, 6554, v6")
            a(f"v_lshrrev_b32 v7, 16, v7")
            a(f"v_mad_i32_i24 v8, v7, -10, v6")
            a(f"v_lshrrev_b32 v9, 1, v7")
            a(f"v_xor_b32 v9, v9, v7")
            a(f"v_and_b32 v9, 4, v9")
            a(f"v_mul_u32_u24 v9, 3, v9")
            a(f"v_xor_b32 v7, v7, v9")
            a(f"v_mul_u32_u24 v7, 3840, v7")
            a(f"v_lshl_add_u32 v7, v8, 4, v7")
            a(f"v_add_u32 {v(dst)}, {s(S_T2)}, v7")
            if valid_check:
                a(f"v_cmp_gt_u32 vcc, 640, v6")
                a(f"v_mov_b32 v9, {hex(OOB)}")
                a(f"v_cndmask_b32 {v(dst)}, v9, {v(dst)}, vcc")
        a(f"s_mul_i32 {s(S_OW)}, {s(S_KC)}, {64*3840}")
        a(f"s_mul_i32 {s(S_OH)}, {s(S_KC)}, {64*3072}")
        a(f"s_mul_i32 {s(S_T3)}, {s(S_HG)}, 384")
        a(f"s_cmp_lg_u32 {s(S_TY)}, 0")
        a(f"s_cbranch_scc1 Lld_setq")
        for i in range(3): a(f"s_mov_b32 {s(R_MID+i)}, {s(R_W+i)}")
        a(f"s_mov_b32 {s(R_MID+3)}, 0x20000")
        a(f"s_mov_b32 {s(S_OM)}, {s(S_OW)}")
        a(f"v_lshrrev_b32 v6, 1, v4")
        a(f"v_xor_b32 v6, v6, v3")
        a(f"v_and_b32 v7, 1, v4")
        a(f"v_lshl_add_u32 v6, v6, 1, v7")
        a(f"v_and_b32 v7, 4, v2")
        a(f"v_add_u32 v7, v7, v2")
        a(f"v_mul_u32_u24 v7, 3072, v7")
        a(f"v_lshl_add_u32 v6, v6, 4, v7")
        a(f"s_mul_i32 {s(S_T0)}, {s(S_L)}, {16*3072}")
        a(f"s_add_u32 {s(S_T0)}, {s(S_T0)}, {s(S_T3)}")
        a(f"v_add_u32 {v(VO+9)}, {s(S_T0)}, v6")
        a(f"v_add_u32 {v(VO+10)}, {4*3072}, {v(VO+9)}")
        a(f"s_lshl_b32 {s(S_T0)}, {s(S_L)}, 11")
        a(f"s_add_u32 {s(S_DEST+9)}, {s(S_T0)}, 36864")
        a(f"s_add_u32 {s(S_DEST+10)}, {s(S_T0)}, {36864+1024}")
        dma(0, 9); dma(0, 10)
        a(f"s_and_b32 {s(S_T1)}, {s(S_L)}, 1")
        a(f"s_mul_i32 {s(S_T1)}, {s(S_T1)}, 320")
        a(f"s_lshr_b32 {s(S_T2)}, {s(S_L)}, 1")
        a(f"s_mul_i32 {s(S_T2)}, {s(S_T2)}, 1280")
        a(f"s_mul_i32 {s(S_T0)}, {s(S_HG)}, 160")
        a(f"s_add_u32 {s(S_T2)}, {s(S_T2)}, {s(S_T0)}")
        a(f"s_add_u32 {s(S_T2)}, {s(S_T2)}, 1280")
        a(f"s_mul_i32 {s(S_T0)}, {s(S_L)}, 5120")
        for i in range(5):
            a(f"s_add_u32 {s(S_DEST+4+i)}, {s(S_T0)}, {16384 + 1024*i}")
            wrow(VO + 4 + i, i, False)
            dma(0, 4 + i)
        a(f"s_branch Lld_setdone")
        a.label('Lld_setq')
        for i in range(3): a(f"s_mov_b32 {s(R_MID+i)}, {s(R_W1+i)}")
        a(f"s_mov_b32 {s(R_MID+3)}, 0x20000")
        a(f"s_mov_b32 {s(S_OM)}, {s(S_OH)}")
        a(f"s_add_u32 {s(S_T3)}, {s(S_T3)}, 128")
        a(f"v_and_b32 v8, 15, v1")
        a(f"v_lshrrev_b32 v6, 1, v8")
        a(f"v_xor_b32 v6, v6, v3")
        a(f"v_and_b32 v7, 1, v8")
        a(f"v_lshl_add_u32 v6, v6, 1, v7")
        a(f"v_mul_u32_u24 v7, 3072, v3")
        a(f"v_lshl_add_u32 v6, v6, 4, v7")
        a(f"v_xor_b32 v7, 128, v6")
        a(f"s_mul_i32 {s(S_T0)}, {s(S_L)}, {16*3072}")
        a(f"s_add_u32 {s(S_T0)}, {s(S_T0)}, {s(S_T3)}")
        a(f"v_add_u32 {v(VO+7)}, {s(S_T0)}, v6")
        a(f"v_add_u32 v7, {s(S_T0)}, v7")
        a(f"v_add_u32 {v(VO+8)}, {8*3072}, v7")
        a(f"v_add_u32 {v(VO+9)}, {4*3072}, {v(VO+7)}")
        a(f"v_add_u32 {v(VO+10)}, {12*3072}, v7")
        a(f"s_lshl_b32 {s(S_T0)}, {s(S_L)}, 12")
        for i in range(4):
            a(f"s_add_u32 {s(S_DEST+7+i)}, {s(S_T0)}, {26624 + 1024*i}")
            dma(0, 7 + i)
        a(f"s_mul_i32 {s(S_T1)}, {s(S_L)}, 192")
        a(f"s_mul_i32 {s(S_T2)}, {s(S_HG)}, 160")
        a(f"s_mul_i32 {s(S_T0)}, {s(S_L)}, 3072")
        for i in range(3):
            a(f"s_add_u32 {s(S_DEST+4+i)}, {s(S_T0)}, {16384 + 1024*i}")
            if i:
                a(f"s_cmp_eq_u32 {s(S_L)}, 3")
                a(f"s_cselect_b32 {s(S_DEST+4+i)}, {43008 + 1024*(i-1)}, {s(S_DEST+4+i)}")
            wrow(VO + 4 + i, i, i > 0)
            dma(0, 4 + i)
        a.label('Lld_setdone')
        self.stamp(40)
        def advance():
            a(f"s_add_u32 {s(S_KC)}, {s(S_KC)}, 1")
            a(f"s_cmp_eq_u32 {s(S_KC)}, 10")
            a(f"s_cselect_b32 {s(S_KC)}, 0, {s(S_KC)}")
            a(f"s_lshl_b32 {s(S_OA)}, {s(S_KC)}, 7")
            a(f"s_mul_i32 {s(S_OW)}, {s(S_KC)}, {64*3840}")
            a(f"s_mul_i32 {s(S_OH)}, {s(S_KC)}, {64*3072}")
            a(f"s_cmp_lg_u32 {s(S_TY)}, 0")
            a(f"s_cselect_b32 {s(S_OM)}, {s(S_OH)}, {s(S_OW)}")
        n1 = cfg.n1

        def idle_setup():
            srd(a, R_WS, P_WS, WS_SIZE)
            self.calc_u()
            a("v_mov_b32 v42, 0")
            a("v_mov_b32 v40, 0")
            L = self.lab('nc')
            a(f"s_or_b32 {s(S_T0)}, {s(S_L)}, s2")
            a(f"s_cbranch_scc1 {L}")
            if cfg.xlat:
                n, ptr, stride = cfg.xlat
                a("s_waitcnt vmcnt(0)")
                a("v_mov_b32 v50, 4096")
                for _ in range(n):
                    a(f"global_load_dword v51, v50, {s(ptr,2)}")
                    a(f"v_add_u32 v50, {stride}, v50")
                    a("s_waitcnt vmcnt(0)")
            a(f"s_load_dword {s(S_T0)}, {s(P_WS,2)}, 0")
            a("s_waitcnt lgkmcnt(0)")
            a(f"s_mul_i32 {s(S_T0)}, {s(S_T0)}, 0x9E3779B1")
            a(f"s_add_u32 {s(S_T0)}, {s(S_T0)}, 0x7F4A7C15")
            a(f"s_cmp_eq_u32 {s(S_T0)}, 0")
            a(f"s_cselect_b32 {s(S_T0)}, 1, {s(S_T0)}")
            a(f"v_mov_b32 v43, {s(S_T0)}")
            a(f"global_store_dword v42, v43, {s(P_DBG,2)} sc1")
            a(f"global_store_dword v42, v43, {s(P_WS,2)} sc1")
            a.label(L)
            a(f"v_add_u32 v0, 512, v0")
            a(f"v_mov_b32 v100, {hex(OOB)}")
            a(f"v_mov_b32 v101, {hex(OOB)}")
            if cfg.xd < 11: a(f"v_mov_b32 v5, {hex(OOB)}")
            a(f"v_lshlrev_b32 v39, 4, v1")
            a(f"v_lshl_add_u32 v10, v1, 2, {s(S_T3)}")
            srd(a, R_BI, P_B1, 3072)
            a(f"v_mov_b32 v6, {hex(OOB)}")
            a(f"v_cmp_eq_u32 vcc, 0, v1")
            fs = cfg.fs; gs = fs + 5
            assert fs == 7
            a(f"v_cmp_gt_u32 {s(S_MASK,2)}, 32, v1")
            a(f"s_lshl_b32 {s(S_T0)}, {s(S_RB)}, {gs}")
            a(f"s_lshl_b32 {s(S_T1)}, {s(S_HG)}, {fs}")
            a(f"s_add_u32 {s(S_T0)}, {s(S_T0)}, {s(S_T1)}")
            a(f"s_lshl_b32 {s(S_T1)}, {s(S_TY)}, {fs + 3}")
            a(f"s_add_u32 {s(S_T1)}, {s(S_T1)}, {s(S_T0)}")
            a(f"s_add_u32 {s(S_T1)}, {s(S_T1)}, {WS_FH}")
            a(f"v_lshl_add_u32 v7, v1, 2, {s(S_T1)}")
            a(f"v_cndmask_b32 {v(V_FH)}, v6, v7, {s(S_MASK,2)}")
            a(f"s_add_u32 {s(S_T3)}, {s(S_T0)}, {WS_FO}")
            a(f"s_cmp_lg_u32 {s(S_TY)}, 0")
            a(f"s_cselect_b32 {s(S_T3)}, {s(S_T3)}, {hex(OOB)}")
            a(f"v_lshl_add_u32 v7, v1, 2, {s(S_T3)}")
            a(f"v_cndmask_b32 {v(V_F2)}, v6, v7, {s(S_MASK,2)}")
            a(f"s_lshl_b32 {s(S_T0)}, {s(S_RB)}, 7")
            a(f"s_and_b32 {s(S_T1)}, {s(S_U)}, 1")
            a(f"s_lshl_b32 {s(S_T1)}, {s(S_T1)}, 9")
            a(f"s_lshr_b32 {s(S_T2)}, {s(S_U)}, 1")
            a(f"s_lshl_b32 {s(S_T2)}, {s(S_T2)}, 2")
            a(f"s_add_u32 {s(S_T1)}, {s(S_T1)}, {s(S_T2)}")
            a(f"s_lshl_b32 {s(S_T2)}, {s(S_RB)}, 4")
            a(f"s_cmp_lg_u32 {s(S_TY)}, 0")
            a(f"s_cselect_b32 {s(S_T2)}, 0, {s(S_T2)}")
            a(f"s_add_u32 {s(S_T1)}, {s(S_T1)}, {s(S_T2)}")
            a(f"s_add_u32 {s(S_T1)}, {s(S_T1)}, {WS_FP}")
            a(f"v_mov_b32 v7, {s(S_T1)}")
            a(f"v_cndmask_b32 {v(V_FP)}, v6, v7, vcc")
            a(f"s_add_u32 {s(S_T0)}, {s(S_T0)}, {WS_FS}")
            a(f"s_lshl_b32 {s(S_T1)}, {s(S_COL)}, 7")
            a(f"s_add_u32 {s(S_T1)}, {s(S_T1)}, {WS_FS + 2048}")
            a(f"s_lshl_b32 {s(S_T2)}, {s(S_S0)}, 2")
            a(f"s_add_u32 {s(S_T3)}, {s(S_T0)}, {s(S_T2)}")
            a(f"s_cmp_lt_u32 {s(S_COL)}, 10")
            a(f"s_cselect_b32 {s(S_T3)}, {s(S_T3)}, {hex(OOB)}")
            a(f"v_mov_b32 v7, {s(S_T3)}")
            a(f"v_cndmask_b32 {v(V_FS)}, v6, v7, vcc")
            a(f"s_add_u32 {s(S_T3)}, {s(S_T1)}, {s(S_T2)}")
            a(f"s_cmp_lt_u32 {s(S_RB)}, 10")
            a(f"s_cselect_b32 {s(S_T3)}, {s(S_T3)}, {hex(OOB)}")
            a(f"v_writelane_b32 {v(V_FS)}, {s(S_T3)}, 1")
            a(f"s_sub_u32 {s(S_T1)}, {s(S_T1)}, 40")
            a(f"v_lshl_add_u32 v7, v1, 2, {s(S_T0)}")
            a(f"v_lshl_add_u32 v8, v1, 2, {s(S_T1)}")
            a(f"v_cmp_gt_u32 vcc, 10, v1")
            a(f"v_cndmask_b32 {v(V_QS)}, v8, v7, vcc")
            a(f"s_lshr_b32 {s(S_T1)}, {s(S_N)}, 2")
            a(f"s_lshl_b32 {s(S_T1)}, {s(S_T1)}, 9")
            a(f"s_add_u32 {s(S_T1)}, {s(S_T1)}, {WS_FP}")
            a(f"v_lshl_add_u32 {v(V_QP)}, v1, 3, {s(S_T1)}")
            a(f"s_and_b32 {s(S_T1)}, {s(S_N)}, 3")
            a(f"s_lshl_b32 {s(S_T1)}, {s(S_T1)}, 4")
            a(f"v_add_u32 v7, {s(S_T1)}, {v(V_QP)}")
            a(f"v_cndmask_b32 {v(V_QP)}, v7, {v(V_QP)}, {s(S_MASK,2)}")
            a(f"s_lshr_b32 {s(S_T1)}, {s(S_TT)}, 1")
            a(f"s_lshl_b32 {s(S_T1)}, {s(S_T1)}, {gs}")
            a(f"s_add_u32 {s(S_T1)}, {s(S_T1)}, {WS_FH}")
            a(f"v_min_u32 v9, 7, v1")
            a(f"v_lshl_add_u32 {v(V_QK)}, v9, {fs}, {s(S_T1)}")
            a(f"v_add_u32 {v(V_QH)}, {8 << fs}, {v(V_QK)}")
            a(f"v_add_u32 v33, {16 << fs}, {v(V_QK)}")
            a(f"s_add_u32 {s(S_T1)}, {s(S_T1)}, {WS_FO - WS_FH}")
            a(f"v_lshl_add_u32 {v(V_QO)}, v9, {fs}, {s(S_T1)}")
            a(f"v_and_b32 v6, 15, v1")
            a(f"s_lshl_b32 {s(S_T0)}, {s(S_L)}, 5")
            a(f"v_add_u32 v6, {s(S_T0)}, v6")
            a(f"v_mul_u32_u24 v6, {OP}, v6")
            a(f"v_lshl_add_u32 v6, v3, 3, v6")
            a(f"v_add_u32 v38, {OEX}, v6")
            a(f"s_lshl_b32 {s(S_T0)}, {s(S_RB)}, 3")
            a(f"s_lshl_b32 {s(S_T1)}, {s(S_L)}, 1")
            a(f"s_add_u32 {s(S_T0)}, {s(S_T0)}, {s(S_T1)}")
            a(f"s_lshl_b32 {s(S_T0)}, {s(S_T0)}, 3")
            a(f"s_add_u32 {s(S_T0)}, {s(S_T0)}, {s(S_HG)}")
            a(f"s_mul_i32 {s(S_T0)}, {s(S_T0)}, 2560")
            a(f"s_add_u32 {s(S_PKS)}, {s(S_T0)}, {WS_O2}")
        def if_pack():
            L = self.lab('pk')
            a(f"s_cmp_gt_u32 {s(S_U)}, 135")
            a(f"s_cbranch_scc1 {L}")
            return L
        def p2_setup():
            a(f"s_mul_i32 {s(S_T0)}, {s(S_N)}, {68*5120}")
            a(f"s_and_b32 {s(S_T1)}, {s(S_L)}, 1")
            a(f"s_mul_i32 {s(S_T1)}, {s(S_T1)}, 5120")
            a(f"s_add_u32 {s(S_T0)}, {s(S_T0)}, {s(S_T1)}")
            a(f"s_add_u32 {s(S_T0)}, {s(S_T0)}, {WS_P2}")
            a(f"v_add_u32 {v(V_P2)}, {s(S_T0)}, v39")
            a(f"s_mul_i32 {s(S_DEST)}, {s(S_L)}, 5120")
            a(f"s_lshr_b32 {s(S_T1)}, {s(S_L)}, 1")
            a(f"s_mul_i32 {s(S_OM)}, {s(S_T1)}, {24*5120}")
            a(f"s_mul_i32 {s(S_OH)}, {s(S_T1)}, {10*5120}")
            a(f"s_add_u32 {s(S_OH)}, {s(S_OH)}, {48*5120}")
            self.rot2(S_KC)
        def p2_off(i):
            if i < 12:
                self.chunk_id(S_OA, S_T0, i)
                a(f"s_mul_i32 {s(S_OA)}, {s(S_OA)}, 10240")
                a(f"s_add_u32 {s(S_OA)}, {s(S_OA)}, {s(S_OM)}")
            else:
                a(f"s_add_u32 {s(S_OA)}, {s(S_OH)}, {(i-12)*10240}")
        def p2_chunk(i):
            p2_off(i)
            a(f"s_add_u32 m0, {s(S_DEST)}, {RING[i % 6]}")
            for j in range(4):
                a(f"buffer_load_dwordx4 {v(V_P2)}, {s(R_WS,4)}, {s(S_OA)} offen offset:{1024*j} {cfg.bsc} lds")
            a(f"s_add_u32 m0, {s(S_DEST)}, {RING[i % 6] + 4096}")
            a(f"s_add_u32 {s(S_OA)}, {s(S_OA)}, 4096")
            a(f"buffer_load_dwordx4 {v(V_P2)}, {s(R_WS,4)}, {s(S_OA)} offen {cfg.bsc} lds")
        def sreg(i): return 48 + 20 * cfg.staged.index(i)
        def p2_stage(i):
            p2_off(i)
            for j in range(4):
                a(f"buffer_load_dwordx4 {v(sreg(i)+4*j,4)}, {v(V_P2)}, {s(R_WS,4)}, {s(S_OA)} offen offset:{1024*j} {cfg.bsc}")
            a(f"s_add_u32 {s(S_OA)}, {s(S_OA)}, 4096")
            a(f"buffer_load_dwordx4 {v(sreg(i)+16,4)}, {v(V_P2)}, {s(R_WS,4)}, {s(S_OA)} offen {cfg.bsc}")
        def p2_put(i):
            base = RING[i % 6]
            for j in range(5):
                a(f"ds_write_b128 {v(2 + base // SLOT)}, {v(sreg(i)+4*j,4)} offset:{base % SLOT + 1024*j}")
        for k in range(10):
            n1 = cfg.n10 if k == 0 else cfg.n1
            if k + 1 < 10:
                advance()
                for n in range(n1): dma(k + 1, n)
                wait = n1
            else:
                wait = 5 * cfg.pfs[0]
            if k == 0:
                self.stamp(41); idle_setup(); self.stamp(42)
            a(f"s_waitcnt vmcnt({wait})")
            if k == 3:
                L = self.only_l(0)
                a(f"v_readfirstlane_b32 {s(S_NONCE)}, v40")
                Lp = self.lab('np'); Lq = self.lab('nq')
                a(f"s_mov_b32 {s(S_CNT)}, 0")
                a.label(Lp)
                a(f"s_cmp_lg_u32 {s(S_NONCE)}, 0")
                a(f"s_cbranch_scc1 {Lq}")
                a(f"s_add_u32 {s(S_CNT)}, {s(S_CNT)}, 1")
                a(f"s_cmp_gt_u32 {s(S_CNT)}, 0x40000")
                a(f"s_cbranch_scc1 {Lq}")
                a(f"global_load_dword v40, v42, {s(P_DBG,2)} sc1")
                a("s_waitcnt vmcnt(0)")
                a(f"v_readfirstlane_b32 {s(S_NONCE)}, v40")
                a("s_nop 1")
                a(f"s_branch {Lp}")
                a.label(Lq)
                a(f"v_mov_b32 v41, {s(S_NONCE)}")
                a.label(L)
            if k == 7:
                L = self.only_l(0); self.poll_check(44, V_QS, 20); a.label(L)
            if k == 8 and cfg.pk0 == 1:
                L = self.only_l(0); self.poll_check(46, V_QP, 34, 2); a.label(L)
            if k == 9: a("s_waitcnt lgkmcnt(0)")
            a("s_barrier")
            self.stamp(2 + k)
            if k == 0: self.dbgt(3)
            if k == 4: self.dbgt(4)
            if k == 1 and cfg.prew:
                L = self.only_l(0)
                a(f"buffer_store_dword v42, {v(V_FH)}, {s(R_WS,4)}, 0 offen sc1")
                a(f"buffer_store_dword v42, {v(V_F2)}, {s(R_WS,4)}, 0 offen sc1")
                a(f"s_cmp_eq_u32 {s(S_TY)}, 0")
                a(f"s_cbranch_scc1 {L}")
                a(f"buffer_store_dword v42, {v(V_FH)}, {s(R_WS,4)}, 0 offen offset:1024 sc1")
                a.label(L)
            if k == 2:
                L = self.only_l(0)
                a(f"global_load_dword v40, v42, {s(P_DBG,2)} sc1")
                a.label(L)
            if k == 3:
                L = self.only_l(0); self.flag_store(V_FS); a.label(L)
            if k == cfg.pk0 + (4 if cfg.pk0 == 1 else 5):
                L = if_pack(); L2 = self.only_l(0); self.flag_store(V_FP); a.label(L2); a.label(L)
            if k == 6:
                L = self.only_l(0); self.poll_issue(44, V_QS); a.label(L)
            if k == 7 and cfg.pk0 == 1:
                L = self.only_l(0); self.poll_issue(46, V_QP, 2); a.label(L)
            if k == 7:
                a(f"s_cmp_lt_u32 {s(S_L)}, 2")
                a(f"s_cselect_b32 {s(S_T0)}, {s(S_RB)}, {s(S_COL)}")
                a(f"s_mov_b32 {s(S_T1)}, {WS_CP}")
                a(f"s_cselect_b32 {s(S_T1)}, {WS_RP}, {s(S_T1)}")
                a(f"s_mul_i32 {s(S_T0)}, {s(S_T0)}, 10240")
                a(f"s_add_u32 {s(S_T0)}, {s(S_T0)}, {s(S_T1)}")
                a(f"s_and_b32 {s(S_T1)}, {s(S_L)}, 1")
                a(f"s_mul_i32 {s(S_T1)}, {s(S_T1)}, 5120")
                a(f"s_add_u32 {s(S_T0)}, {s(S_T0)}, {s(S_T1)}")
                a(f"s_mul_i32 {s(S_T2)}, {s(S_L)}, 5120")
                a(f"s_add_u32 m0, {s(S_T2)}, {SCR}")
                for j in range(4):
                    a(f"buffer_load_dwordx4 v39, {s(R_WS,4)}, {s(S_T0)} offen offset:{1024*j} sc1 lds")
                a(f"s_add_u32 m0, {s(S_T2)}, {SCR + 4096}")
                a(f"s_add_u32 {s(S_T0)}, {s(S_T0)}, 4096")
                a(f"buffer_load_dwordx4 v39, {s(R_WS,4)}, {s(S_T0)} offen sc1 lds")
            if k == 8:
                a(f"s_lshr_b32 {s(S_T0)}, {s(S_L)}, 1")
                a(f"s_mul_i32 {s(S_T0)}, {s(S_T0)}, 10240")
                a(f"s_and_b32 {s(S_T1)}, {s(S_L)}, 1")
                a(f"s_lshl_b32 {s(S_T1)}, {s(S_T1)}, 9")
                a(f"s_add_u32 {s(S_T0)}, {s(S_T0)}, {s(S_T1)}")
                a(f"s_add_u32 {s(S_T0)}, {s(S_T0)}, {SCR}")
                a(f"v_lshl_add_u32 v6, v1, 3, {s(S_T0)}")
                for ch in range(10): a(f"ds_read_b64 {v(44+2*ch,2)}, v6 offset:{1024*ch}")
            if k + 1 < 10:
                for n in range(n1, 11): dma(k + 1, n)
            if k == 5:
                Lq = self.lab('sq'); Le = self.lab('se')
                a(f"s_cmp_lg_u32 {s(S_TY)}, 0")
                a(f"s_cbranch_scc1 {Lq}")
                self.l1_setup()
                a(f"s_branch {Le}")
                a.label(Lq)
                for n in range(2): self.kvt_addr(n)
                a(f"s_mul_i32 {s(S_T0)}, {s(S_HG)}, {KP_STRIDE}")
                a(f"s_add_u32 {s(S_PKO)}, {s(S_T0)}, {WS_KT}")
                a.label(Le)
            if k == 0:
                L = self.only_l(1)
                a(f"s_mov_b32 m0, {B1L}")
                a(f"buffer_load_dword v10, {s(R_BI,4)}, 0 offen lds")
                a.label(L)
            if k == 8:
                a("s_waitcnt lgkmcnt(0)")
                for ch in range(1, 10):
                    a(f"v_add_f32 v44, v44, {v(44+2*ch)}")
                    a(f"v_add_f32 v45, v45, {v(45+2*ch)}")
                a(f"s_and_b32 {s(S_T1)}, {s(S_L)}, 1")
                a(f"s_lshl_b32 {s(S_T1)}, {s(S_T1)}, 6")
                a(f"v_add_u32 v6, {s(S_T1)}, v1")
                Lc = self.lab('stc'); Ld = self.lab('std')
                a(f"s_cmp_ge_u32 {s(S_L)}, 2")
                a(f"s_cbranch_scc1 {Lc}")
                a(f"v_lshlrev_b32 v6, 2, v6")
                a(f"v_add_u32 v6, {ST}, v6")
                a(f"v_mul_f32 v46, {lit(1/640)}, v44")
                a(f"v_mul_f32 v47, v46, v46")
                a(f"v_mov_b32 v48, {lit(1/640)}")
                a(f"v_fma_f32 v45, v45, v48, -v47")
                a(f"v_max_f32 v45, 0, v45")
                a(f"v_add_f32 v47, {lit(1e-5)}, v45")
                a(f"v_rsq_f32 v48, v47")
                a(f"v_mul_f32 v49, v48, v48")
                a(f"v_fmaak_f32 v49, v49, v45, {lit(1e-5)}")
                a(f"v_rsq_f32 v49, v49")
                a(f"v_mul_f32 v50, v48, v49")
                a(f"v_mul_f32_e64 v51, -v46, v48")
                a(f"v_mul_f32_e64 v52, -v46, v50")
                a(f"ds_write_b32 v6, v48")
                a(f"ds_write_b32 v6, v51 offset:512")
                a(f"ds_write_b32 v6, v50 offset:1024")
                a(f"ds_write_b32 v6, v52 offset:1536")
                a(f"s_branch {Ld}")
                a.label(Lc)
                a(f"v_lshlrev_b32 v6, 3, v6")
                a(f"v_add_u32 v6, {ST_CS}, v6")
                a(f"ds_write_b64 v6, v[44:45]")
                a.label(Ld)
                L = self.only_l(0)
                a(f"v_mov_b32 v6, {ST_N}")
                a(f"ds_write2_b32 v6, v41, v42 offset1:1")
                a(f"ds_write_b32 v6, v42 offset:8")
                a.label(L)
                srd(a, R_BI, P_B2, 1280)
                L = self.only_l(3)
                a(f"s_mul_i32 {s(S_T1)}, {s(S_N)}, 160")
                a(f"v_lshlrev_b32 v6, 2, v1")
                a(f"s_mov_b32 m0, {B2L}")
                a(f"buffer_load_dword v6, {s(R_BI,4)}, {s(S_T1)} offen lds")
                a.label(L)
                p2_setup()
                for c in range(cfg.pfs[0]): p2_chunk(c)
            if k == 9:
                for c in range(cfg.pfs[0], sum(cfg.pfs)): p2_chunk(c)
        if cfg.pk0 != 1:
            assert sum(cfg.pfs) == 0
            L = self.only_l(0); a(f"s_sleep {cfg.fpd}"); self.poll(46, V_QP, 34, 2); a.label(L)
        a("s_waitcnt lgkmcnt(0)")
        a("s_barrier")
        self.stamp(12); self.dbgt(5)
        a(f"s_setprio {cfg.pw}")
        a(f"s_lshr_b32 {s(S_T0)}, {s(S_L)}, 1")
        a(f"s_mul_i32 {s(S_T0)}, {s(S_T0)}, {KVT_C - 4096}")
        a(f"s_lshl_b32 {s(S_T1)}, {s(S_L)}, 11")
        a(f"s_add_u32 {s(S_T0)}, {s(S_T0)}, {s(S_T1)}")
        a(f"s_add_u32 {s(S_T0)}, {s(S_T0)}, {KVT}")
        a(f"v_add_u32 v6, {s(S_T0)}, v39")
        for e in range(4): a(f"v_mov_b32 {v(44+e)}, 0")
        a(f"ds_write_b128 v6, v[44:47]")
        a(f"ds_write_b128 v6, v[44:47] offset:1024")
        for c in range(sum(cfg.pfs), 6 - cfg.pfw): p2_chunk(c)
        if cfg.wopf:
            nsh = 8 if cfg.map2 == 'A' else 4
            per = 102400 // nsh // 4
            a(f"s_and_b32 {s(S_T0)}, {s(S_IDX)}, {nsh - 1}")
            a(f"s_lshl_b32 {s(S_T0)}, {s(S_T0)}, 2")
            a(f"s_add_u32 {s(S_T0)}, {s(S_T0)}, {s(S_L)}")
            a(f"s_mul_i32 {s(S_T0)}, {s(S_T0)}, {per}")
            a(f"s_mul_i32 {s(S_T1)}, {s(S_N)}, {68*5120}")
            a(f"s_add_u32 {s(S_T0)}, {s(S_T0)}, {s(S_T1)}")
            a(f"s_add_u32 {s(S_T0)}, {s(S_T0)}, {WS_P2 + 48*5120}")
            a(f"v_min_u32 v6, {per // 128 - 1}, v1")
            a(f"v_lshlrev_b32 v6, 7, v6")
            a(f"buffer_load_dword v94, v6, {s(R_WS,4)}, {s(S_T0)} offen sc1")
        a(f"v_mov_b32 v6, {ST_N}")
        a(f"ds_read_b32 v41, v6")
        a(f"s_cmp_lg_u32 {s(S_TY)}, 0")
        a(f"s_cbranch_scc1 Lld_eq")
        a("s_barrier")
        self.stamp(14)
        a.label('Lld_eq')
        a("s_waitcnt lgkmcnt(0)")
        def spin(off, n):
            Lr = self.lab('c8r'); Lg = self.lab('c8g')
            a(f"v_mov_b32 v6, {ST_C + off}")
            a(f"s_mov_b32 {s(S_CNT)}, 0")
            a.label(Lr)
            a(f"ds_read_b32 v7, v6")
            a("s_waitcnt lgkmcnt(0)")
            a(f"v_readfirstlane_b32 {s(S_T0)}, v7")
            a(f"s_cmp_ge_u32 {s(S_T0)}, {n}")
            a(f"s_cbranch_scc1 {Lg}")
            a("s_sleep 1")
            a(f"s_add_u32 {s(S_CNT)}, {s(S_CNT)}, 1")
            a(f"s_cmp_lt_u32 {s(S_CNT)}, 0x400000")
            a(f"s_cbranch_scc1 {Lr}")
            a.label(Lg)
        L = self.only_l(0)
        Lk = self.lab('fk'); Lj = self.lab('fj')
        a("s_setprio 3")
        a(f"s_cmp_eq_u32 {s(S_TY)}, 0")
        a(f"s_cbranch_scc1 {Lk}")
        spin(0, 4)
        self.flag_store(V_FH); a("s_waitcnt vmcnt(0)")
        self.stamp(16)
        self.poll_issue(44, V_QH)
        spin(4, 4)
        a(f"buffer_store_dword v41, {v(V_FH)}, {s(R_WS,4)}, 0 offen offset:1024 sc1")
        self.stamp(17)
        a(f"s_branch {Lj}")
        a.label(Lk)
        if cfg.kvd > 0: a(f"s_sleep {cfg.kvd}")
        elif cfg.kvd < 0: spin(4 * (-cfg.kvd - 1), 4)
        self.poll_issue(44, V_QH)
        a.label(Lj)
        for c in range(6 - cfg.pfw, 6): p2_chunk(c)
        a(f"s_waitcnt vmcnt({5 * cfg.pfw})")
        self.poll_check(44, V_QH, 8)
        a(f"s_setprio {cfg.pl}")
        if cfg.pfw:
            L1 = self.lab('pfw')
            a(f"s_branch {L1}")
            a.label(L)
            spin(4, 4)
            for c in range(6 - cfg.pfw, 6): p2_chunk(c)
            a.label(L1)
        else:
            a.label(L)
        self.l1_run(spin)
        a(f"s_setprio {cfg.pl}")
        self.stamp(19)
        self.nb_ld_kv = a.nbar - nb0
        self.nb_ld_q = a.nbar - nb0 - 1
        nb3 = a.nbar
        ka = cfg.ka
        assert cfg.oil and not cfg.pfw and ka >= 2
        ko = 13 if cfg.late else cfg.ko
        def if_q():
            L = self.lab('iq')
            a(f"s_cmp_eq_u32 {s(S_TY)}, 0")
            a(f"s_cbranch_scc1 {L}")
            return L
        def kt_loads():
            for n in range(2): a(f"buffer_load_dwordx4 {v(48+4*n,4)}, {v(100+n)}, {s(R_WS,4)}, {s(S_PKO)} offen sc1")
        def kt_scatter(younger):
            L = if_q(); Lr = self.lab('kr'); Lg = self.lab('kg')
            a(f"s_waitcnt vmcnt({younger})")
            a(f"s_mov_b32 {s(S_CNT)}, 0")
            a.label(Lr)
            a(f"v_cmp_ne_u32 vcc, v50, v41")
            a(f"v_cmp_ne_u32 {s(S_MASK,2)}, v54, v41")
            a(f"s_and_b64 {s(S_MASK,2)}, {s(S_MASK,2)}, {s(M_V,2)}")
            a(f"s_or_b64 vcc, vcc, {s(S_MASK,2)}")
            a(f"s_cbranch_scc0 {Lg}")
            a(f"s_add_u32 {s(S_CNT)}, {s(S_CNT)}, 1")
            a(f"s_cmp_gt_u32 {s(S_CNT)}, 0x40000")
            a(f"s_cbranch_scc1 {Lg}")
            if cfg.psl: a(f"s_sleep {cfg.psl}")
            kt_loads()
            a("s_waitcnt vmcnt(0)")
            a(f"s_branch {Lr}")
            a.label(Lg)
            for n in range(2):
                Lz = self.lab('kz')
                if n:
                    a(f"s_mov_b64 exec, {s(M_V,2)}")
                    a(f"s_cbranch_execz {Lz}")
                a(f"ds_write_b64 {v(96+n)}, {v(48+4*n,2)}")
                a(f"s_mov_b64 exec, {s(M_Z[n],2)}")
                a(f"s_cbranch_execz {Lz}")
                for k in range(3):
                    a(f"v_add_u32 {v(96+n)}, {v(96+n)}, {v(98+n)}")
                    a(f"ds_write_b64 {v(96+n)}, {v(48+4*n,2)}")
                a.label(Lz)
                a("s_mov_b64 exec, -1")
            a("s_waitcnt lgkmcnt(0)")
            a.label(L)
        kl = ka - (2 if cfg.kte else 1)
        def tail(aux):
            self.final_prep()
            a("s_waitcnt vmcnt(0)")
            if aux and cfg.late:
                L = self.only_l(0); self.poll_check(44, V_QO, 8); a.label(L)
            a("s_barrier")
            self.stamp(33)
            a("s_barrier")
            self.stamp(37)
            a("s_barrier")
            self.stamp(38); self.dbgt(8)
        a(f"s_bitcmp1_b32 {s(S_L)}, 0")
        a(f"s_cbranch_scc1 Lring")
        for i in range(13):
            if i == ka and not cfg.kte: kt_scatter(0)
            if i == ka + cfg.onc + cfg.fo: a("s_waitcnt vmcnt(0)")
            for kk, vd, va in ((cfg.kb, 46, 33), (cfg.kh, 45, V_QK), (ko, 44, V_QO)):
                if i == kk:
                    L = self.only_l(0); a("s_waitcnt vmcnt(0)"); self.poll_check(vd, va, 8); a.label(L)
            if i: a("s_barrier")
            self.stamp(20 + i)
            if i == 1:
                L = self.only_l(0)
                a(f"s_cmp_lg_u32 {s(S_TY)}, 0")
                a(f"s_cbranch_scc1 {L}")
                self.flag_store(V_FH)
                a.label(L)
            if i == ka + cfg.onc + cfg.fo:
                L = self.only_l(0); self.flag_store(V_F2); a.label(L)
            if i == ka - 1 and cfg.kte: kt_scatter(0)
            for kk, vd, va in ((cfg.kb, 46, 33), (cfg.kh, 45, V_QK), (ko, 44, V_QO)):
                if i == kk - 1:
                    L = self.only_l(0); self.poll_issue(vd, va); a.label(L)
            if i == kl:
                L = if_q(); kt_loads(); a.label(L)
            if i == ka + cfg.onc:
                L = if_q()
                for t in range(4):
                    for k in range(5): a(f"ds_read_b64 {v(104+12*t+2*k,2)}, v38 offset:{16*OP*t + 32*k}")
                a(f"v_lshlrev_b32 v6, 3, v1")
                for t in range(4):
                    a(f"s_waitcnt lgkmcnt({min(15, 15 - 5*t)})")
                    a(f"buffer_store_dwordx4 {v(104+12*t,4)}, v39, {s(R_WS,4)}, {s(S_PKS)} offen sc1")
                    a(f"buffer_store_dwordx4 {v(108+12*t,4)}, v39, {s(R_WS,4)}, {s(S_PKS)} offen offset:1024 sc1")
                    a(f"buffer_store_dwordx2 {v(112+12*t,2)}, v6, {s(R_WS,4)}, {s(S_PKS)} offen offset:2048 sc1")
                    if t < 3: a(f"s_add_u32 {s(S_PKS)}, {s(S_PKS)}, {8*2560}")
                a.label(L)
            if i == max(ka + cfg.onc + 1 + cfg.fo, cfg.kx):
                a(f"s_mul_i32 {s(S_T0)}, {s(S_TT)}, {64*1280}")
                a(f"s_mul_i32 {s(S_T1)}, {s(S_N)}, 160")
                a(f"s_add_u32 {s(S_T1)}, {s(S_T0)}, {s(S_T1)}")
                a(f"s_mul_i32 {s(S_T2)}, {s(S_L)}, 160")
                a(f"s_mul_i32 {s(S_T3)}, {s(S_L)}, 2560")
                for j in range(5):
                    a(f"v_add_u32 v6, {s(S_T2)}, v1")
                    if j: a(f"v_add_u32 v6, {64*j}, v6")
                    a(f"v_mul_u32_u24 v7, 6554, v6")
                    a(f"v_lshrrev_b32 v7, 16, v7")
                    a(f"v_mul_u32_u24 v7, {1280-160}, v7")
                    a(f"v_lshl_add_u32 v7, v6, 4, v7")
                    a(f"s_add_u32 m0, {s(S_T3)}, {XT + 1024*j}")
                    a(f"buffer_load_dwordx4 v7, {s(R_X,4)}, {s(S_T1)} offen lds")
        tail(True)
        a(f"s_cmp_ge_u32 {s(S_WID)}, 2")
        a(f"s_cbranch_scc1 Lfin")
        a("s_branch Lfinal_store")
        nb_aux = a.nbar - nb3
        a.label('Lring')
        nb3 = a.nbar
        a(f"v_add_u32 {v(V_P2)}, {-5120 & 0xffffffff}, {v(V_P2)}")
        a(f"s_sub_u32 {s(S_DEST)}, {s(S_DEST)}, 5120")
        pend = []
        for i in range(13):
            if i == ka and not cfg.kte: kt_scatter(10)
            if i + 1 in pend:
                k = pend.index(i + 1)
                a(f"s_waitcnt vmcnt({10 * (len(pend) - 1 - k)})"); del pend[:k+1]
            if i: a("s_barrier")
            if i == 0: self.dbgt(6)
            if i == 11: self.dbgt(7)
            if i == kl:
                L = if_q(); kt_loads(); a.label(L)
            if 1 <= i <= 11:
                c = i + 5
                p2_off(c)
                for g0 in range(0, 10, 4):
                    a(f"s_add_u32 m0, {s(S_DEST)}, {RING[c % 6] + 1024*g0}")
                    if g0: a(f"s_add_u32 {s(S_OA)}, {s(S_OA)}, 4096")
                    for j in range(min(4, 10 - g0)):
                        a(f"buffer_load_dwordx4 {v(V_P2)}, {s(R_WS,4)}, {s(S_OA)} offen offset:{1024*j} {cfg.bsc} lds")
                pend.append(c)
            if i == ka - 1 and cfg.kte: kt_scatter(20 if kl >= 1 else 10)
        tail(False)
        assert a.nbar - nb3 == nb_aux
        self.nb_ld_p2 = a.nbar - nb3
        a(f"s_cmp_ge_u32 {s(S_WID)}, 2")
        a(f"s_cbranch_scc1 Lfin")
        a("s_branch Lfinal_store")

    def kvt_addr(self, n):
        a = self.a
        a(f"v_add_u32 v70, {(256*n - 512) & 0xffffffff}, v0")
        a(f"v_cmp_le_u32 vcc, 210, v70")
        a(f"v_cndmask_b32 v84, 0, 1, vcc")
        a(f"v_mov_b32 v86, -210")
        a(f"v_mad_i32_i24 v85, v84, v86, v70")
        a(f"v_mul_u32_u24 v86, 3121, v85")
        a(f"v_lshrrev_b32 v86, 16, v86")
        a(f"v_mov_b32 v88, -21")
        a(f"v_mad_i32_i24 v87, v86, v88, v85")
        a(f"v_cmp_le_u32 vcc, 5, v86")
        a(f"v_cndmask_b32 v88, 0, 1, vcc")
        a(f"v_lshlrev_b32 v89, 1, v88")
        a(f"v_subrev_u32 v90, 16, v87")
        a(f"v_lshlrev_b32 v90, 2, v90")
        a(f"v_mad_u32_u24 v90, v88, 3, v90")
        a(f"v_add_u32 v91, 1, v88")
        a(f"v_cmp_eq_u32 {s(S_MASK,2)}, 20, v87")
        a(f"v_cndmask_b32 v90, v90, v91, {s(S_MASK,2)}")
        a(f"v_cmp_gt_u32 vcc, 16, v87")
        a(f"v_cndmask_b32 v90, v90, v87, vcc")
        a(f"v_cndmask_b32 v89, 1, v89, vcc")
        a(f"v_and_b32 v91, 3, v86")
        a(f"v_lshl_add_u32 v90, v91, 4, v90")
        a(f"v_lshlrev_b32 v91, 10, v89")
        a(f"v_lshl_add_u32 v91, v90, 4, v91")
        a(f"v_and_b32 v92, 4, v86")
        a(f"v_lshl_add_u32 v91, v92, 1, v91")
        a(f"v_lshrrev_b32 v92, 1, v89")
        a(f"v_lshlrev_b32 v92, 9, v92")
        a(f"v_lshl_add_u32 v92, v90, 3, v92")
        a(f"v_add_u32 v92, 3072, v92")
        a(f"v_cmp_le_u32 vcc, 8, v86")
        a(f"v_cndmask_b32 v91, v91, v92, vcc")
        a(f"v_cndmask_b32 {v(98+n)}, 64, 32, vcc")
        a(f"v_mul_u32_u24 v84, {KVT_C}, v84")
        a(f"v_add_u32 v91, v84, v91")
        a(f"v_add_u32 {v(96+n)}, {KVT}, v91")
        a(f"v_mov_b32 v86, {hex(OOB)}")
        a(f"v_cmp_gt_u32 vcc, 420, v70")
        a(f"v_lshlrev_b32 v70, 4, v70")
        a(f"v_cndmask_b32 {v(100+n)}, v86, v70, vcc")
        a(f"s_and_b64 {s(M_Z[n],2)}, {s(S_MASK,2)}, vcc")
        if n: a(f"s_mov_b64 {s(M_V,2)}, vcc")

    def l1_setup(self):
        a = self.a
        a(f"v_mov_b32 v5, {hex(OOB)}")
        a(f"v_and_b32 v4, 31, v1")
        a(f"s_lshl_b32 {s(S_T0)}, {s(S_RB)}, 5")
        a(f"v_add_u32 v4, {s(S_T0)}, v4")
        a(f"v_cmp_gt_u32 vcc, 420, v4")
        a(f"v_lshlrev_b32 v4, 4, v4")
        a(f"v_lshrrev_b32 v3, 5, v1")
        a(f"v_mul_u32_u24 v3, {8*KP_STRIDE}, v3")
        a(f"v_add_u32 v3, v3, v4")
        a(f"v_cndmask_b32 v3, v5, v3, vcc")
        a(f"s_mov_b64 {s(M_V,2)}, vcc")
        a(f"v_cmp_gt_u32 vcc, 32, v1")
        a(f"s_and_b64 vcc, vcc, {s(M_V,2)}")
        a(f"v_cndmask_b32 v4, v5, v4, vcc")
    def l1_run(self, spin):
        a = self.a
        Ls = self.lab('l1s'); Lr = self.lab('l1r'); Lg = self.lab('l1g')
        a(f"s_cmp_lg_u32 {s(S_L)}, 2")
        a(f"s_cbranch_scc1 {Ls}")
        a(f"s_cmp_lg_u32 {s(S_TY)}, 0")
        a(f"s_cbranch_scc1 {Ls}")
        a(f"s_cmp_ge_u32 {s(S_RB)}, 14")
        a(f"s_cbranch_scc1 {Ls}")
        a(f"s_mul_i32 {s(S_T1)}, {s(S_HG)}, {KP_STRIDE}")
        a(f"s_lshl_b32 {s(S_T2)}, {s(S_T1)}, 4")
        a(f"s_add_u32 {s(S_T1)}, {s(S_T1)}, {WS_KT}")
        a(f"s_add_u32 {s(S_T2)}, {s(S_T2)}, {WS_KP}")
        for e in range(1, 4): a(f"v_lshrrev_b32 {v(88+e)}, {8*e}, v41")
        a(f"v_mov_b32 v88, v41")
        a(f"v_mov_b32 v92, 0xffffff00")
        if self.cfg.l1d: a(f"s_sleep {self.cfg.l1d}")
        else: spin(4, 4)
        a(f"s_mov_b32 {s(S_CNT)}, 0")
        D = 48
        a.label(Lr)
        for k in range(8):
            a(f"s_add_u32 {s(S_T3)}, {s(S_T2)}, {k*KP_STRIDE}")
            a(f"buffer_load_dwordx4 {v(D+4*k,4)}, v3, {s(R_WS,4)}, {s(S_T3)} offen sc1")
        if self.cfg.l1in:
            Lb = self.lab('l1b')
            a(f"s_cmp_lg_u32 {s(S_CNT)}, 0")
            a(f"s_cbranch_scc1 {Lb}")
            a(f"s_waitcnt vmcnt({8 + 5 * self.cfg.pfw})")
            a("s_barrier"); a.nbar -= 1
            a.label(Lb)

        for k in range(8):
            a(f"s_waitcnt vmcnt({7-k})")
            for e in range(4):
                if k == 0: a(f"v_xor_b32 {v(84+e)}, {v(D+e)}, {v(88+e)}")
                else: a(f"v_bitop3_b32 {v(84+e)}, {v(84+e)}, {v(D+4*k+e)}, {v(88+e)} bitop3:0xf6")
            for e in range(4): a(f"v_and_b32 {v(D+4*k+e)}, v92, {v(D+4*k+e)}")
            if k:
                for e in range(4): a(f"v_add_f32 {v(D+e)}, {v(D+e)}, {v(D+4*k+e)}")
        a(f"v_or3_b32 v84, v84, v85, v86")
        a(f"v_or_b32 v84, v84, v87")
        a(f"v_and_b32 v84, 0xff, v84")
        a(f"v_cmp_ne_u32 vcc, 0, v84")
        a(f"s_and_b64 vcc, vcc, {s(M_V,2)}")
        a(f"s_cbranch_scc0 {Lg}")
        a(f"s_add_u32 {s(S_CNT)}, {s(S_CNT)}, 1")
        a(f"s_cmp_lt_u32 {s(S_CNT)}, 0x40000")
        a(f"s_cbranch_scc1 {Lr}")
        a.label(Lg)
        for e in range(4): a(f"v_mov_b32 {v(D+4+e)}, {v(D+e)}")
        for e in range(4): a(f"v_permlane32_swap_b32 {v(D+4+e)}, {v(D+e)}")
        for e in range(4): a(f"v_add_f32 {v(D+e)}, {v(D+e)}, {v(D+4+e)}")
        a(f"v_cvt_pk_bf16_f32 {v(D)}, {v(D)}, {v(D+1)}")
        a(f"v_cvt_pk_bf16_f32 {v(D+1)}, {v(D+2)}, {v(D+3)}")
        a(f"v_mov_b32 {v(D+2)}, v41")
        a(f"v_mov_b32 {v(D+3)}, v41")
        a(f"buffer_store_dwordx4 {v(D,4)}, v4, {s(R_WS,4)}, {s(S_T1)} offen sc1")
        self.stamp(17)
        a(f"s_branch {Ls}x")
        a.label(Ls)
        a(f"s_waitcnt vmcnt({5 * self.cfg.pfw})")
        if self.cfg.l1in: a("s_barrier")
        a.label(Ls + 'x')
        if not self.cfg.l1in: a("s_barrier")

    def rot2(self, dst):
        a = self.a; ra, rb_ = self.cfg.rot2
        sh = 3 if self.cfg.map2 == 'A' else 2
        a(f"s_lshr_b32 {s(S_T1)}, {s(S_IDX)}, {sh}")
        a(f"s_mul_i32 {s(dst)}, {s(S_T1)}, {ra}")
        a(f"s_and_b32 {s(S_T1)}, {s(S_IDX)}, {(1 << sh) - 1}")
        a(f"s_mul_i32 {s(S_T1)}, {s(S_T1)}, {rb_}")
        a(f"s_add_u32 {s(dst)}, {s(dst)}, {s(S_T1)}")
    def chunk_id(self, d, t, i):
        a = self.a
        a(f"s_add_u32 {s(d)}, {s(S_KC)}, {i}")
        a(f"s_and_b32 {s(d)}, {s(d)}, 3")
        a(f"s_mul_i32 {s(d)}, {s(d)}, 3")
        if i < 8: a(f"s_add_u32 {s(d)}, {s(d)}, {1 + i // 4}")

    def final_prep(self):
        a = self.a
        srd(a, R_OUT, P_OUT, 2048 * 1280)
        a(f"v_lshlrev_b32 v164, 4, v0")
        a(f"v_mul_u32_u24 v165, 6554, v0")
        a(f"v_lshrrev_b32 v165, 16, v165")
        a(f"v_mul_u32_u24 v165, {1280-160}, v165")
        a(f"v_add_u32 v165, v165, v164")
        a(f"v_add_u32 v164, {XT}, v164")
        a(f"s_mul_i32 {s(S_IT)}, {s(S_TT)}, {64*1280}")
        a(f"s_mul_i32 {s(S_T1)}, {s(S_N)}, 160")
        a(f"s_add_u32 {s(S_IT)}, {s(S_IT)}, {s(S_T1)}")
    def final_store(self):
        a = self.a
        a.label('Lfinal_store')
        a(f"ds_read_b128 v[4:7], v164")
        a("s_waitcnt lgkmcnt(0)")
        a(f"buffer_store_dwordx4 v[4:7], v165, {s(R_OUT,4)}, {s(S_IT)} offen {self.cfg.osc}")
        a.label('Lfin')
        if self.cfg.light:
            a(f"s_cmp_lg_u32 {s(S_WID)}, 0")
            a(f"s_cbranch_scc1 Lend")
            a(f"v_mov_b32 v4, {s(S_TS)}")
            a("s_waitcnt vmcnt(0)")
            a(f"s_memrealtime {s(S_TS,2)}")
            a(f"s_memtime s[8:9]")
            a(f"s_lshl_b32 {s(S_T0)}, s2, 4")
            a(f"s_add_u32 {s(S_T0)}, {s(S_T0)}, {WS_TS}")
            a("v_mov_b32 v2, 0")
            a("s_waitcnt lgkmcnt(0)")
            a(f"v_mov_b32 v5, {s(S_TS)}")
            a(f"v_mov_b32 v6, s3")
            a(f"v_mov_b32 v7, s8")
            a(f"buffer_store_dwordx4 v[4:7], v2, {s(R_WS,4)}, {s(S_T0)} offen")
        if self.cfg.diag:
            a("s_waitcnt vmcnt(0)")
            self.stamp(39); self.stamp(62)
            a(f"s_memrealtime {s(S_TS,2)}")
            a("s_waitcnt lgkmcnt(0)")
            a(f"v_writelane_b32 {v(VDIAG)}, {s(S_TS)}, 63")
            a(f"s_mul_i32 {s(S_T0)}, s2, 12")
            a(f"s_add_u32 {s(S_T0)}, {s(S_T0)}, {s(S_WID)}")
            a(f"s_lshl_b32 {s(S_T0)}, {s(S_T0)}, 8")
            a(f"s_add_u32 {s(S_T0)}, {s(S_T0)}, {WS_TS2}")
            a(f"v_lshlrev_b32 v2, 2, v1")
            a(f"buffer_store_dword {v(VDIAG)}, v2, {s(R_WS,4)}, {s(S_T0)} offen")
        a.label('Lend')
        a("s_endpgm")

    ACC = 12; ONES = 68; RS = 72; SQ = 76; CSA = 80; CSB = 84
    XA = 88; XB = 96; YA = 124; YB = 132
    VA = 2
    L15 = 164; G = 165; TOK = 167
    def acc(self, t, i): return self.ACC + (2 * t + i) * 4
    def tiles(self, ty):
        if ty == 0:
            return [(6, 0, 160, 'N'), (6, 32, 160, 'N'), (7, 0, 160, 'N'), (6, 10256, 160, 'N'), (6, 10288, 160, 'N'),
                    (8, 0, 128, 'T'), (9, 0, 128, 'T')]
        return [(6, 0, 160, 'T'), (6, 32, 160, 'T'), (6, 64, 160, 'T'), (7, 0, 256, 'T'), (8, 0, 256, 'T'), (9, 0, 256, 'T'), (10, 0, 256, 'T')]

    def pack_setup(self):
        a = self.a
        a(f"s_cmp_gt_u32 {s(S_U)}, 135")
        a(f"s_cselect_b32 {s(S_T0)}, 0, {s(S_U)}")
        a(f"s_lshr_b32 {s(S_T0)}, {s(S_T0)}, 1")
        a(f"s_cmp_lt_u32 {s(S_T0)}, 48")
        a(f"s_cselect_b32 {s(R_PK)}, {s(P_W2)}, {s(P_WO)}")
        a(f"s_cselect_b32 {s(R_PK+1)}, {s(P_W2+1)}, {s(P_WO+1)}")
        a(f"s_mov_b32 {s(R_PK+2)}, {hex(640*1280)}")
        a(f"s_cselect_b32 {s(R_PK+2)}, {hex(1536*1280)}, {s(R_PK+2)}")
        a(f"s_mov_b32 {s(R_PK+3)}, 0x20000")
        Lm = self.lab('pkm'); Ld = self.lab('pkd')
        a(f"s_cbranch_scc1 {Lm}")
        a(f"s_sub_u32 {s(S_T3)}, {s(S_T0)}, 48")
        a(f"s_mul_i32 {s(S_T1)}, {s(S_T3)}, 52")
        a(f"s_lshr_b32 {s(S_T1)}, {s(S_T1)}, 8")
        a(f"s_mul_i32 {s(S_T2)}, {s(S_T1)}, 5")
        a(f"s_sub_u32 {s(S_T3)}, {s(S_T3)}, {s(S_T2)}")
        a(f"s_mul_i32 {s(S_T1)}, {s(S_T1)}, 160")
        a(f"s_lshl_b32 {s(S_T2)}, {s(S_T3)}, 5")
        a(f"s_cmp_ge_u32 {s(S_T3)}, 2")
        a(f"s_cselect_b32 {s(S_T0)}, 16, 0")
        a(f"s_add_u32 {s(S_T2)}, {s(S_T2)}, {s(S_T0)}")
        a(f"s_cmp_eq_u32 {s(S_T3)}, 4")
        a(f"s_cselect_b32 {s(S_T2)}, 64, {s(S_T2)}")
        a(f"s_cselect_b32 {s(S_T0)}, {64*1280}, 0")
        a(f"s_add_u32 {s(S_T1)}, {s(S_T1)}, {s(S_T2)}")
        a(f"s_branch {Ld}")
        a.label(Lm)
        a(f"s_lshl_b32 {s(S_T1)}, {s(S_T0)}, 5")
        a(f"s_mov_b32 {s(S_T0)}, 0")
        a.label(Ld)
        a(f"s_and_b32 {s(R_PK+1)}, {s(R_PK+1)}, 0xffff")
        a(f"s_mul_i32 {s(S_T1)}, {s(S_T1)}, 1280")
        a(f"s_and_b32 {s(S_T2)}, {s(S_U)}, 1")
        a(f"s_mul_i32 {s(S_T3)}, {s(S_T2)}, 640")
        a(f"s_add_u32 {s(S_PKO)}, {s(S_T1)}, {s(S_T3)}")
        a(f"v_mov_b32 v100, {s(S_T0)}")
        a(f"v_mov_b32 v105, {hex(OOB)}")
        a(f"s_mul_i32 {s(S_T2)}, {s(S_RB)}, 160")
        a(f"s_cmp_lg_u32 {s(S_TY)}, 0")
        a(f"s_cselect_b32 {s(S_T2)}, 0, {s(S_T2)}")
        a(f"s_movk_i32 {s(S_T3)}, 160")
        a(f"s_cselect_b32 {s(S_T3)}, 640, {s(S_T3)}")
        for i in range(3):
            a(f"v_add_u32 v101, {512*i}, v0")
            a(f"v_mul_u32_u24 v102, 1639, v101")
            a(f"v_lshrrev_b32 v102, 16, v102")
            a(f"v_cmp_le_u32 vcc, 16, v102")
            a(f"v_mul_u32_u24 v102, 640, v102")
            a(f"v_cndmask_b32 v103, 0, v100, vcc")
            a(f"v_lshlrev_b32 v101, 4, v101")
            a(f"v_sub_u32 v104, v101, v102")
            a(f"v_add3_u32 v102, v102, v101, v103")
            a(f"v_subrev_u32 v104, {s(S_T2)}, v104")
            a(f"v_cmp_gt_u32 vcc, {s(S_T3)}, v104")
            a(f"v_cndmask_b32 {v(161+i)}, v105, v102, vcc")

    def code_prefetch(self, T):
        a = self.a; cfg = self.cfg
        L = self.lab('cp'); Lpc = self.lab('pc')
        a(f"s_cmp_lg_u32 {s(S_WID)}, {cfg.cpw}")
        a(f"s_cbranch_scc1 {L}")
        a(f"s_getpc_b64 {s(S_T0,2)}")
        a.label(Lpc)
        a(f"s_sub_u32 {s(S_T0)}, {s(S_T0)}, {Lpc}-{NAME}")
        a(f"s_subb_u32 {s(S_T1)}, {s(S_T1)}, 0")
        n = cfg.cpn
        a(f"s_and_b32 {s(S_T2)}, {s(S_IDX)}, {256 // n - 1}")
        a(f"s_mul_i32 {s(S_T2)}, {s(S_T2)}, {128 * n}")
        a(f"v_lshlrev_b32 {v(T)}, 7, v1")
        a(f"v_and_b32 {v(T)}, {128 * n - 128}, {v(T)}")
        a(f"v_add_u32 {v(T)}, {s(S_T2)}, {v(T)}")
        a(f"v_min_u32 {v(T)}, Lend-{NAME}, {v(T)}")
        a(f"v_mov_b32 {v(T+1)}, {s(S_T1)}")
        a(f"v_add_co_u32 {v(T)}, vcc, {s(S_T0)}, {v(T)}")
        a(f"v_addc_co_u32 {v(T+1)}, vcc, 0, {v(T+1)}, vcc")
        exec_mask(a, (1 << n) - 1)
        a(f"global_load_dword v166, {v(T,2)}, off")
        a(f"s_mov_b64 exec, -1")
        a.label(L)

    def compute_setup(self):
        a = self.a
        a.label('Lcompute')
        if self.cfg.cpf == 1: self.code_prefetch(102)
        T = 88
        L15, G, TOK = self.L15, self.G, self.TOK
        a(f"s_sub_u32 {s(S_T0)}, {s(S_WID)}, 4")
        a(f"s_and_b32 {s(S_R)}, {s(S_T0)}, 3")
        a(f"s_lshr_b32 {s(S_C)}, {s(S_T0)}, 2")
        a(f"v_add_u32 v0, {-256 & 0xffffffff}, v0")
        a(f"v_and_b32 {v(L15)}, 15, v1")
        a(f"v_lshrrev_b32 {v(G)}, 4, v1")
        a(f"v_lshrrev_b32 {v(T+2)}, 1, {v(L15)}")
        a(f"v_xor_b32 {v(T+2)}, {v(T+2)}, {v(G)}")
        a(f"v_lshlrev_b32 {v(T+2)}, 4, {v(T+2)}")
        a(f"v_lshl_add_u32 {v(T+2)}, {v(L15)}, 7, {v(T+2)}")
        a(f"s_lshl_b32 {s(S_T0)}, {s(S_R)}, 12")
        a(f"s_lshl_b32 {s(S_T1)}, {s(S_C)}, 11")
        a(f"s_add_u32 {s(S_T0)}, {s(S_T0)}, {s(S_T1)}")
        a(f"v_add_u32 v2, {s(S_T0)}, {v(T+2)}")
        a(f"v_xor_b32 v3, 64, v2")
        a(f"v_xor_b32 v4, 2048, v2")
        a(f"v_xor_b32 v5, 64, v4")
        a(f"s_lshr_b32 {s(S_T0)}, {s(S_T0)}, 5")
        a(f"s_add_u32 {s(S_T0)}, {s(S_T0)}, {ST}")
        a(f"v_lshl_add_u32 {v(TOK)}, {v(L15)}, 2, {s(S_T0)}")
        a(f"v_bfe_u32 {v(T+3)}, v1, 2, 3")
        a(f"v_lshrrev_b32 {v(T+4)}, 5, v1")
        a(f"v_lshl_add_u32 {v(T+4)}, {v(T+4)}, 4, {v(T+3)}")
        a(f"v_and_b32 {v(T+5)}, 3, v1")
        a(f"v_lshlrev_b32 {v(T+6)}, 3, {v(T+5)}")
        a(f"v_mul_u32_u24 v6, 160, {v(T+4)}")
        a(f"s_mul_i32 {s(S_T0)}, {s(S_C)}, 80")
        a(f"s_add_u32 {s(S_T0)}, {s(S_T0)}, 16384")
        a(f"v_add3_u32 v6, v6, {v(T+6)}, {s(S_T0)}")
        for i in range(self.ACC, self.ONES): a(f"v_mov_b32 {v(i)}, 0")
        for i in range(4): a(f"v_mov_b32 {v(self.ONES+i)}, 0x3f803f80")
        a(f"s_mov_b32 {s(S_IT)}, 0")
        self.calc_u()
        a("s_waitcnt lgkmcnt(0)")
        self.stamp(1)
        srd(a, R_WS, P_WS, WS_SIZE)
        self.pack_setup()
        self.p2_pre_setup()
        a(f"s_cmp_lg_u32 {s(S_TY)}, 0")
        a(f"s_cbranch_scc1 Lc_q")
        self.h_addr(0, 1)
        a(f"s_lshl_b32 {s(S_T0)}, {s(S_HG)}, 4")
        a(f"s_add_u32 {s(S_T0)}, {s(S_T0)}, {s(S_RB)}")
        a(f"s_mul_i32 {s(S_T0)}, {s(S_T0)}, {KP_STRIDE}")
        a(f"s_add_u32 {s(S_CNT)}, {s(S_T0)}, {WS_KP}")
        a(f"s_mul_i32 {s(S_T0)}, {s(S_R)}, 6720")
        a(f"s_mul_i32 {s(S_T1)}, {s(S_C)}, 3360")
        a(f"s_add_u32 {s(S_T0)}, {s(S_T0)}, {s(S_T1)}")
        a(f"s_add_u32 {s(S_OA)}, {s(S_T0)}, {SCR}")
        a(f"v_cmp_gt_u32 vcc, 2, {v(T+5)}")
        a(f"v_mov_b32 {v(T+7)}, 10224")
        a(f"v_cndmask_b32 {v(T+7)}, {v(T+7)}, 64, vcc")
        a(f"v_add_u32 v7, v6, {v(T+7)}")
        a(f"v_lshrrev_b32 {v(T+7)}, 1, {v(T+3)}")
        a(f"v_lshl_add_u32 {v(T+8)}, {v(T+4)}, 7, {v(T+6)}")
        a(f"v_add_u32 {v(T+8)}, 36864, {v(T+8)}")
        a(f"s_lshl_b32 {s(S_T0)}, {s(S_C)}, 1")
        a(f"v_xor_b32 {v(T+7)}, {s(S_T0)}, {v(T+7)}")
        a(f"v_lshl_add_u32 v8, {v(T+7)}, 5, {v(T+8)}")
        a(f"v_xor_b32 {v(T+7)}, 1, {v(T+7)}")
        a(f"v_lshl_add_u32 v9, {v(T+7)}, 5, {v(T+8)}")
        a(f"s_branch Lp1_0")
        a.label('Lc_q')
        self.h_addr(2, 2)
        a(f"s_mul_i32 {s(S_T0)}, {s(S_HG)}, {KP_STRIDE}")
        a(f"s_add_u32 {s(S_CNT)}, {s(S_T0)}, {WS_KT}")
        a(f"v_lshl_add_u32 {v(T+8)}, {v(T+4)}, 8, {v(T+6)}")
        a(f"v_add_u32 {v(T+8)}, 26624, {v(T+8)}")
        a(f"s_lshl_b32 {s(S_T0)}, {s(S_C)}, 2")
        a(f"v_xor_b32 {v(T+7)}, {s(S_T0)}, {v(T+3)}")
        for i in range(4):
            a(f"v_xor_b32 {v(T+9)}, {i}, {v(T+7)}")
            a(f"v_lshl_add_u32 {v(7+i)}, {v(T+9)}, 5, {v(T+8)}")
        a(f"s_branch Lp1_1")

    def p1_reads(self, ty, st, A, B):
        out = [f"ds_read_b128 {v(A,4)}, {v(self.VA+st)}", f"ds_read_b128 {v(A+4,4)}, {v(self.VA+2+st)}"]
        for t, (ad, ex, pitch, o) in enumerate(self.tiles(ty)):
            for u in range(2):
                if t < self.cfg.xr: out.append(f"ds_read_b64_tr_b16 {v(B+4*t+2*u,2)}, {v(ad)} offset:{(32*st+8*u)*pitch+ex}")
        return out
    def p1_mfmas(self, ty, A, B):
        M = "v_mfma_f32_16x16x32_bf16"
        out = []
        for t, (ad, ex, pitch, o) in enumerate(self.tiles(ty)):
            for i in range(2):
                d = v(self.acc(t, i), 4); x = v(A + 4*i, 4); w = v(B + 4*t, 4)
                if t < self.cfg.xm: out.append(f"{M} {d}, {x}, {w}, {d}" if o == 'N' else f"{M} {d}, {w}, {x}, {d}")
        return out

    def duty(self, half, A, B):
        a = self.a
        M = "v_mfma_f32_16x16x32_bf16"
        on = v(self.ONES, 4); x0 = v(A, 4)
        def c(r): return v(r, 4) if half else '0'
        a.label(f"Lduty{half}")
        a(f"{M} {v(self.RS,4)}, {on}, {x0}, {c(self.RS)}")
        a(f"{M} {v(self.SQ,4)}, {x0}, {x0}, {c(self.SQ)}")
        Ld = self.lab('dd')
        labs = [self.lab('dr') for _ in range(4)]
        for r in range(1, 4):
            a(f"s_cmp_eq_u32 {s(S_R)}, {r}")
            a(f"s_cbranch_scc1 {labs[r]}")
        for r in range(4):
            a.label(labs[r])
            a(f"{M} {v(self.CSA,4)}, {on}, {v(B+4*r,4)}, {c(self.CSA)}")
            if r < 3:
                a(f"{M} {v(self.CSB,4)}, {on}, {v(B+4*(r+4),4)}, {c(self.CSB)}")
                a(f"s_branch {Ld}")
        a.label(Ld)
        if half:
            T = self.RS + 1
            SQ = self.SQ
            a(f"v_and_b32 v160, 3, v1")
            a(f"s_mul_i32 {s(S_T0)}, {s(S_RB)}, 10")
            a(f"s_add_u32 {s(S_T0)}, {s(S_T0)}, {s(S_S0)}")
            a(f"s_lshl_b32 {s(S_T0)}, {s(S_T0)}, 10")
            a(f"s_add_u32 {s(S_T0)}, {s(S_T0)}, {(WS_RP - 2*ST) & 0xffffffff}")
            a(f"v_lshl_add_u32 {v(T+1)}, {v(self.TOK)}, 1, {s(S_T0)}")
            a(f"s_mul_i32 {s(S_T0)}, {s(S_COL)}, 10")
            a(f"s_add_u32 {s(S_T0)}, {s(S_T0)}, {s(S_S0)}")
            a(f"s_lshl_b32 {s(S_T0)}, {s(S_T0)}, 10")
            a(f"s_mul_i32 {s(S_T1)}, {s(S_C)}, 448")
            a(f"s_add_u32 {s(S_T0)}, {s(S_T0)}, {s(S_T1)}")
            a(f"s_lshl_b32 {s(S_T1)}, {s(S_R)}, 6")
            a(f"s_add_u32 {s(S_T0)}, {s(S_T0)}, {s(S_T1)}")
            a(f"s_add_u32 {s(S_T0)}, {s(S_T0)}, {WS_CP}")
            a(f"v_lshl_add_u32 {v(T+2)}, {v(self.L15)}, 2, {s(S_T0)}")
            a(f"v_cmp_eq_u32 vcc, 1, v160")
            a(f"v_cndmask_b32 {v(self.RS+1)}, {v(SQ)}, {v(SQ+1)}, vcc")
            a(f"v_cmp_eq_u32 vcc, 2, v160")
            a(f"v_cndmask_b32 {v(self.RS+1)}, {v(self.RS+1)}, {v(SQ+2)}, vcc")
            a(f"v_cmp_eq_u32 vcc, 3, v160")
            a(f"v_cndmask_b32 {v(self.RS+1)}, {v(self.RS+1)}, {v(SQ+3)}, vcc")
            L = self.lab('dn')
            a(f"s_cmp_ge_u32 {s(S_COL)}, 10")
            a(f"s_cbranch_scc1 {L}")
            exec_mask(a, DIAGMASK)
            a(f"buffer_store_dwordx2 {v(self.RS,2)}, {v(T+1)}, {s(R_WS,4)}, 0 offen sc1")
            a.label(L)
            L = self.lab('dn')
            a(f"s_cmp_ge_u32 {s(S_RB)}, 10")
            a(f"s_cbranch_scc1 {L}")
            exec_mask(a, 0xffff)
            a(f"buffer_store_dword {v(self.CSA)}, {v(T+2)}, {s(R_WS,4)}, 0 offen sc1")
            a(f"s_cmp_eq_u32 {s(S_R)}, 3")
            a(f"s_cbranch_scc1 {L}")
            a(f"buffer_store_dword {v(self.CSB)}, {v(T+2)}, {s(R_WS,4)}, 0 offen offset:256 sc1")
            a.label(L)
            a("s_mov_b64 exec, -1")
        a(f"s_cmp_lg_u32 {s(S_TY)}, 0")
        a(f"s_cbranch_scc1 Lret{half}_1")
        a(f"s_branch Lret{half}_0")

    def pack_blocks(self):
        a = self.a
        PD = 72
        def ret(h):
            a(f"s_cmp_lg_u32 {s(S_TY)}, 0")
            a(f"s_cbranch_scc1 Lret{h}_1")
            a(f"s_branch Lret{h}_0")
        cfg = self.cfg; pk0 = cfg.pk0
        a.label('Lx1')
        L3 = self.lab('p3'); L = self.lab('pa'); Lc = self.lab('pc')
        if cfg.cpf == 2:
            a(f"s_cmp_lg_u32 {s(S_IT)}, {cfg.cpi}")
            a(f"s_cbranch_scc1 {Lc}")
            self.code_prefetch(84)
            a.label(Lc)
        a(f"s_cmp_lg_u32 {s(S_IT)}, {pk0}")
        a(f"s_cbranch_scc1 {L3}")
        Ln = 'Lduty1' if pk0 == 1 else L
        a(f"s_cmp_gt_u32 {s(S_U)}, 135")
        a(f"s_cbranch_scc1 {Ln}")
        a(f"s_lshl_b32 {s(S_T0)}, {s(S_WID)}, 10")
        for i in range(3):
            if i == 2:
                a(f"s_cmp_lg_u32 {s(S_C)}, 0")
                a(f"s_cbranch_scc1 {Ln}")
            a(f"s_add_u32 m0, {s(S_T0)}, {SCR - 4096 + 8192*i}")
            a(f"buffer_load_dwordx4 {v(161+i)}, {s(R_PK,4)}, {s(S_PKO)} offen lds")
        a(f"s_branch {Ln}")
        a.label(L3)
        a(f"s_cmp_eq_u32 {s(S_IT)}, 1")
        a(f"s_cbranch_scc1 Lduty1")
        a(f"s_cmp_lg_u32 {s(S_IT)}, {pk0 + 2}")
        a(f"s_cbranch_scc1 {L}")
        a(f"s_cmp_gt_u32 {s(S_U)}, 135")
        a(f"s_cbranch_scc1 {L}")
        a(f"v_lshrrev_b32 v160, 2, v1")
        a(f"v_mul_u32_u24 v160, 640, v160")
        a(f"v_and_b32 v161, 3, v1")
        a(f"v_lshl_add_u32 v160, v161, 3, v160")
        a(f"s_mul_i32 {s(S_T0)}, {s(S_R)}, 160")
        a(f"s_mul_i32 {s(S_T1)}, {s(S_C)}, 96")
        a(f"s_add_u32 {s(S_T0)}, {s(S_T0)}, {s(S_T1)}")
        a(f"s_add_u32 {s(S_T0)}, {s(S_T0)}, {SCR}")
        a(f"v_add_u32 v160, {s(S_T0)}, v160")
        for c in range(3):
            a(f"ds_read_b64_tr_b16 {v(PD+4*c,2)}, v160 offset:{32*c}")
            a(f"ds_read_b64_tr_b16 {v(PD+2+4*c,2)}, v160 offset:{32*c + 16*640}")
        a.label(L)
        ret(1)
        a.label('Lx0')
        a("s_waitcnt lgkmcnt(0)")
        a(f"s_cmp_eq_u32 {s(S_IT)}, 1")
        a(f"s_cbranch_scc1 Lduty0")
        L = self.lab('pb')
        a(f"s_cmp_gt_u32 {s(S_U)}, 135")
        a(f"s_cbranch_scc1 {L}")
        a(f"s_cmp_lg_u32 {s(S_TY)}, 0")
        a(f"s_cselect_b32 {s(S_T0)}, {s(S_R)}, {s(S_RB)}")
        a(f"s_cmp_lg_u32 {s(S_T0)}, {s(S_R)}")
        a(f"s_cbranch_scc1 {L}")
        a(f"s_and_b32 {s(S_T0)}, {s(S_U)}, 1")
        a(f"s_lshl_b32 {s(S_T0)}, {s(S_T0)}, 2")
        a(f"s_add_u32 {s(S_T0)}, {s(S_T0)}, {s(S_R)}")
        a(f"s_mul_i32 {s(S_T0)}, {s(S_T0)}, 68")
        a(f"s_lshr_b32 {s(S_T1)}, {s(S_U)}, 1")
        a(f"s_add_u32 {s(S_T0)}, {s(S_T0)}, {s(S_T1)}")
        a(f"s_mul_i32 {s(S_T0)}, {s(S_T0)}, 5120")
        a(f"s_mul_i32 {s(S_T1)}, {s(S_C)}, 3072")
        a(f"s_add_u32 {s(S_T0)}, {s(S_T0)}, {s(S_T1)}")
        a(f"s_add_u32 {s(S_T0)}, {s(S_T0)}, {WS_P2}")
        a(f"v_lshlrev_b32 v160, 4, v1")
        for c in range(3):
            if c == 2:
                a(f"s_cmp_lg_u32 {s(S_C)}, 0")
                a(f"s_cbranch_scc1 {L}")
            a(f"buffer_store_dwordx4 {v(PD+4*c,4)}, v160, {s(R_WS,4)}, {s(S_T0)} offen offset:{1024*c} sc1")
        a.label(L)
        ret(0)

    def p1_loop(self, ty):
        a = self.a; cfg = self.cfg
        nad = 8 if ty == 0 else 9
        nb = a.nbar
        rx = self.p1_reads(ty, 0, self.XA, self.XB); ry = self.p1_reads(ty, 1, self.YA, self.YB)
        my = self.p1_mfmas(ty, self.YA, self.YB); mx = self.p1_mfmas(ty, self.XA, self.XB)
        sal = [f"s_add_u32 {s(S_IT)}, {s(S_IT)}, 1",
               f"s_bitcmp1_b32 {hex((1<<3)|(1<<6)|(1<<9))}, {s(S_IT)}",
               f"s_cselect_b32 {s(S_DELTA)}, {s(S_DEST)}, {s(S_DEST+1)}"]
        a.label(f"Lp1_{ty}")
        if cfg.pc1:
            L = self.lab('pr')
            a(f"s_cmp_eq_u32 {s(S_C)}, 0")
            a(f"s_cbranch_scc1 {L}")
            a(f"s_setprio {cfg.pc1}")
            a.label(L)
        a(f"s_mov_b32 {s(S_DEST)}, {hex(-2*SLOT & 0xffffffff)}")
        a(f"s_mov_b32 {s(S_DEST+1)}, {SLOT}")
        a("s_barrier")
        for x in rx: a(x)
        a(f"s_branch Lret1_{ty}")
        a(".p2align 3")
        a.label(f"Lp1h_{ty}")
        a("s_barrier")
        k = 0
        for m, x in enumerate(my):
            a(x)
            for _ in range(cfg.rpm + (1 if m < cfg.rp2 else 0)):
                if k < len(rx): a(rx[k]); k += 1
        while k < len(rx): a(rx[k]); k += 1
        a(f"s_bitcmp1_b32 {hex((1<<1)|(1<<cfg.pk0)|(1<<(cfg.pk0+2))|(1<<cfg.cpi))}, {s(S_IT)}")
        a(f"s_cbranch_scc1 Lx1")
        a.label(f"Lret1_{ty}")
        upd = [f"v_add_u32 {v(self.VA+i)}, {s(S_DELTA)}, {v(self.VA+i)}" for i in range(nad)]
        k = 0; u = 0
        for m, x in enumerate(mx):
            if m % 2 == 0:
                t = m // 2
                rem = len(rx) - (2 + 2 * (t + 1))
                if rem >= 0:
                    a(f"s_waitcnt lgkmcnt({min(15, rem + k)})")
            if m == len(mx) - 1: a(f"s_cmp_lt_u32 {s(S_IT)}, 10")
            a(x)
            if m == 0:
                for y in sal: a(y)
            for _ in range(cfg.rpm + (1 if m < cfg.rp2 else 0)):
                t1 = (m + 2) // 2
                rem1 = max(0, len(rx) - (2 + 2 * (t1 + 1)))
                if k < len(ry) and (rem1 + k + 1 <= 15 or rem1 == 0): a(ry[k]); k += 1
            n = 0
            while u < len(upd) and n < 2 and not any(f", {v(self.VA+u)} " in y + " " for y in ry[k:]): a(upd[u]); u += 1; n += 1
            if m == len(mx) - 3:
                L = self.lab('vw')
                a(f"s_bitcmp0_b32 {hex((1<<3)|(1<<(cfg.pk0+2))|(1<<(cfg.pk0+(4 if cfg.pk0 == 1 else 5))))}, {s(S_IT)}")
                a(f"s_cbranch_scc1 {L}")
                a("s_waitcnt vmcnt(0)")
                a.label(L)
                a(f"s_bitcmp1_b32 {hex((1<<1)|(1<<(cfg.pk0+3)))}, {s(S_IT)}")
                a(f"s_cbranch_scc1 Lx0")
                a.label(f"Lret0_{ty}")
        while k < len(ry): a(ry[k]); k += 1
        while u < len(upd): a(upd[u]); u += 1
        a("s_waitcnt lgkmcnt(0)")
        a(f"s_cbranch_scc1 Lp1h_{ty}")
        a("s_barrier")
        self.nb_loop = 11
        a.nbar = nb

    def gelu_tile(self, t, AB, CS, BR, d0, W):
        a = self.a
        B = W; X = W + 4
        a(f"v_lshlrev_b32 {v(B)}, 16, {v(BR)}")
        a(f"v_and_b32 {v(B+1)}, {s(S_K1)}, {v(BR)}")
        a(f"v_lshlrev_b32 {v(B+2)}, 16, {v(BR+1)}")
        a(f"v_and_b32 {v(B+3)}, {s(S_K1)}, {v(BR+1)}")
        ch = [(i, p) for i in range(2) for p in range(2)]
        ac = lambda i, p: self.acc(t, i) + 2 * p
        x = lambda i, p: X + 4 * i + 2 * p
        for i, p in ch: a(pk('fma', x(i,p), ('b', AB+4*i+2), CS+2*p, B+2*p))
        for i, p in ch: a(pk('fma', ac(i,p), ('b', AB+4*i), ac(i,p), x(i,p)))
        for i, p in ch: a(pk('mul', x(i,p), ac(i,p), ac(i,p)))
        for i, p in ch: a(pk('fma', x(i,p), x(i,p), ('s', S_K0), ('b', 166)))
        for i, p in ch: a(pk('mul', x(i,p), x(i,p), ac(i,p)))
        for k in range(8): a(f"v_exp_f32 {v(X+k)}, {v(X+k)}")
        for i, p in ch: a(pk('add', x(i,p), x(i,p), '1.0'))
        for k in range(8): a(f"v_rcp_f32 {v(X+k)}, {v(X+k)}")
        for i, p in ch: a(pk('mul', x(i,p), x(i,p), ac(i,p)))
        for i, p in ch: a(f"v_cvt_pk_bf16_f32 {v(d0(i)+p)}, {v(x(i,p))}, {v(x(i,p)+1)}")
    def gelu_consts(self):
        a = self.a
        c1 = -2 * math.sqrt(2 / math.pi) * LOG2E; c2 = c1 * 0.044715
        a(f"s_mov_b32 {s(S_K0)}, {lit(c2)}")
        a(f"s_mov_b32 {s(S_K1)}, 0xffff0000")
        a(f"v_mov_b32 v166, {lit(c1)}")

    def phi_tile(self, t, fa, fb, fcs, X, EPS, d0):
        a = self.a
        ch = [(i, p) for i in range(2) for p in range(2)]
        ac = lambda i, p: self.acc(t, i) + 2 * p
        x = lambda i, p: X + 4 * i + 2 * p
        for i, p in ch: a(pk('fma', x(i,p), fb(i,p), fcs(i,p), ('b', EPS)))
        for i, p in ch: a(pk('fma', ac(i,p), fa(i,p), ac(i,p), x(i,p)))
        for i, p in ch: a(pk('mul', x(i,p), ac(i,p), ('s', S_K0)))
        for k in range(8): a(f"v_exp_f32 {v(X+k)}, {v(X+k)} clamp")
        for i in range(2):
            for k in range(4): a(f"v_max_f32 {v(X+8+4*i+k)}, {v(EPS)}, {v(self.acc(t,i)+k)}")
        for i, p in ch: a(pk('add', x(i,p), x(i,p), x(i,p)+8))
        for i, p in ch: a(f"v_cvt_pk_bf16_f32 {v(d0(i)+p)}, {v(x(i,p))}, {v(x(i,p)+1)}")

    def h_addr(self, ks0_imm, ks_c_mul):
        a = self.a
        a(f"s_lshl_b32 {s(S_T0)}, {s(S_RB)}, 3")
        a(f"s_lshl_b32 {s(S_T1)}, {s(S_R)}, 1")
        a(f"s_add_u32 {s(S_T0)}, {s(S_T0)}, {s(S_T1)}")
        a(f"s_add_u32 {s(S_T0)}, {s(S_T0)}, {s(S_C)}")
        a(f"s_xor_b32 {s(S_T1)}, {s(S_T0)}, 1")
        a(f"s_mul_i32 {s(S_T2)}, {s(S_HG)}, 6")
        a(f"s_mul_i32 {s(S_T3)}, {s(S_C)}, {ks_c_mul}")
        a(f"s_add_u32 {s(S_T2)}, {s(S_T2)}, {s(S_T3)}")
        a(f"s_add_u32 {s(S_T2)}, {s(S_T2)}, {ks0_imm + WS_H2 // 1024}")
        for k, d in ((S_T0, S_OW), (S_T1, S_OM)):
            a(f"s_mul_i32 {s(k)}, {s(k)}, 48")
            a(f"s_add_u32 {s(k)}, {s(k)}, {s(S_T2)}")
            a(f"s_lshl_b32 {s(d)}, {s(k)}, 10")
    def h_flag(self, vn):
        a = self.a; fs = self.cfg.fs
        a(f"buffer_store_dword {v(vn)}, v10, {s(R_WS,4)}, 0 offen sc1")
    def h_flag_addr(self):
        a = self.a; fs = self.cfg.fs
        a(f"s_lshl_b32 {s(S_T0)}, {s(S_RB)}, 1")
        a(f"s_lshr_b32 {s(S_T1)}, {s(S_R)}, 1")
        a(f"s_add_u32 {s(S_T0)}, {s(S_T0)}, {s(S_T1)}")
        a(f"s_lshl_b32 {s(S_T0)}, {s(S_T0)}, 4")
        a(f"s_add_u32 {s(S_T0)}, {s(S_T0)}, {s(S_COL)}")
        a(f"s_lshl_b32 {s(S_T0)}, {s(S_T0)}, 1")
        a(f"s_and_b32 {s(S_T1)}, {s(S_R)}, 1")
        a(f"s_add_u32 {s(S_T0)}, {s(S_T0)}, {s(S_T1)}")
        a(f"s_lshl_b32 {s(S_T0)}, {s(S_T0)}, 1")
        a(f"s_add_u32 {s(S_T0)}, {s(S_T0)}, {s(S_C)}")
        a(f"s_lshl_b32 {s(S_T0)}, {s(S_T0)}, {fs}")
        a(f"s_add_u32 {s(S_XCD)}, {s(S_T0)}, {WS_FH}")
    def h_poll(self, vn):
        a = self.a; fs = self.cfg.fs
        L = self.lab('hp'); Lr = self.lab('hr')
        a(f"s_cmp_lg_u32 {s(S_WID)}, 11")
        a(f"s_cbranch_scc1 {L}")
        a(f"s_lshl_b32 {s(S_T1)}, {s(S_TT)}, {fs + 6}")
        a(f"s_add_u32 {s(S_T1)}, {s(S_T1)}, {WS_FH}")
        a(f"v_lshlrev_b32 v12, {fs}, v1")
        a(f"s_mov_b32 {s(S_IT)}, 0")
        a.label(Lr)
        a(f"buffer_load_dword v13, v12, {s(R_WS,4)}, {s(S_T1)} offen sc1")
        a("s_waitcnt vmcnt(0)")
        a(f"v_cmp_ne_u32 vcc, v13, {v(vn)}")
        a(f"s_cbranch_vccz {L}")
        if self.cfg.psl: a(f"s_sleep {self.cfg.psl}")
        a(f"s_add_u32 {s(S_IT)}, {s(S_IT)}, 1")
        a(f"s_cmp_lt_u32 {s(S_IT)}, 0x40000")
        a(f"s_cbranch_scc1 {Lr}")
        a.label(L)
    def signal(self):
        a = self.a
        a(f"s_lshl_b32 {s(S_T0)}, {s(S_C)}, 2")
        a(f"s_add_u32 {s(S_T0)}, {s(S_T0)}, {ST_C}")
        a(f"v_mov_b32 v4, {s(S_T0)}")
        a(f"v_mov_b32 v5, 1")
        a("s_mov_b64 exec, 1")
        a("ds_add_u32 v4, v5")
        a("s_mov_b64 exec, -1")
    def h_flag_v(self):
        a = self.a
        a(f"v_mov_b32 v10, {hex(OOB)}")
        a(f"v_writelane_b32 v10, {s(S_XCD)}, 0")
    def h_store(self, p, TMP):
        for i in range(2):
            self.a(f"buffer_store_dwordx4 {v(TMP+p*8+i*4,4)}, v2, {s(R_WS,4)}, {s((S_OW, S_OM)[i])} offen offset:{1024*p} sc1")

    def epi_kv(self):
        a = self.a
        nb = a.nbar
        L15, G, TOK = self.L15, self.G, self.TOK
        self.stamp(2)
        a(f"s_setprio {self.cfg.pe}")
        a(f"s_lshl_b32 {s(S_T0)}, {s(S_R)}, 7")
        a(f"s_lshl_b32 {s(S_T1)}, {s(S_C)}, 6")
        a(f"s_add_u32 {s(S_T0)}, {s(S_T0)}, {s(S_T1)}")
        a(f"s_add_u32 {s(S_T0)}, {s(S_T0)}, {ST}")
        a(f"v_lshl_add_u32 v2, {v(G)}, 4, {s(S_T0)}")
        a(f"v_xor_b32 v3, 64, v2")
        a(f"s_mul_i32 {s(S_T0)}, {s(S_C)}, 448")
        a(f"s_add_u32 {s(S_T0)}, {s(S_T0)}, {ST_CS}")
        a(f"v_lshl_add_u32 v4, {v(L15)}, 2, {s(S_T0)}")
        a(f"v_lshl_add_u32 v5, {v(G)}, 4, {s(S_T0)}")
        a(f"v_xor_b32 v6, 64, {v(TOK)}")
        a(f"s_lshl_b32 {s(S_T0)}, {s(S_C)}, 6")
        a(f"s_add_u32 {s(S_T0)}, {s(S_T0)}, {B1L}")
        a(f"v_lshl_add_u32 v7, {v(G)}, 3, {s(S_T0)}")
        AB = 88; CS = 104; A2 = 114; CH = 80; BR = 72
        rd = [f"ds_read_b128 {v(AB,4)}, v2", f"ds_read_b128 {v(AB+4,4)}, v2 offset:512",
              f"ds_read_b128 {v(AB+8,4)}, v3", f"ds_read_b128 {v(AB+12,4)}, v3 offset:512"]
        rd += [f"ds_read_b32 {v(CS+2*t)}, v4 offset:{64*t}" for t in range(5)]
        rd += [f"ds_read_b32 {v(A2)}, {v(TOK)} offset:1024", f"ds_read_b32 {v(A2+2)}, {v(TOK)} offset:1536",
               f"ds_read_b32 {v(A2+4)}, v6 offset:1024", f"ds_read_b32 {v(A2+6)}, v6 offset:1536"]
        for j in range(2):
            rd += [f"ds_read_b128 {v(CH+4*j,4)}, v5 offset:{64*(5+j)}", f"ds_read_b64 {v(BR+2*j,2)}, v7 offset:{32*j}"]
        a(f"v_mov_b32 v8, {ST_N}")
        rd += [f"ds_read_b32 v79, v8"]
        SA = [105, 107, 109]; SZ = [111, 113, 115]
        ad = [f"v_mul_u32_u24 v9, 336, {v(G)}", f"v_add_u32 v9, {s(S_OA)}, v9", f"v_lshl_add_u32 v10, {v(L15)}, 4, v9",
              f"v_add_u32 {v(SA[0])}, {-128 & 0xffffffff}, v10", f"v_add_u32 {v(SA[1])}, {(4*336 - 128 - 320) & 0xffffffff}, v10",
              f"v_add_u32 {v(SA[2])}, {4*336 - 128}, v10", f"v_cmp_eq_u32 vcc, 0, {v(G)}",
              f"v_cndmask_b32 {v(SA[1])}, {v(SA[1])}, {v(SA[2])}, vcc", f"v_add_u32 {v(SA[2])}, {8*336 - 128 - 320}, v10",
              f"v_cmp_eq_u32 vcc, 0, {v(L15)}"]
        for td in range(3):
            ad += [f"v_add_u32 v10, {4*td*336 + 320}, v9", f"v_cndmask_b32 {v(SZ[td])}, {v(SA[td])}, v10, vcc"]
        mf = self.p1_mfmas(0, self.YA, self.YB)
        if self.cfg.kvo == 2: mf = mf[10:] + mf[:10]
        interleave(a, mf, rd + ad, 1.0, 2)
        TMP = 124
        def gelu():
            a(f"v_lshlrev_b32 v2, 4, v1")
            self.gelu_consts()
            for j in range(2):
                self.gelu_tile(5 + j, A2, CH + 4*j, BR + 2*j, lambda i: TMP + 4*i + 2*j, 148)
            self.h_store(0, TMP)
        if self.cfg.kvo == 2:
            a("s_setprio 3")
            a("s_waitcnt lgkmcnt(0)")
            gelu()
            a(f"s_setprio {self.cfg.pe}")
        EPS = 76
        a(f"v_mov_b32 {v(EPS)}, {lit(1e-6)}")
        a(f"v_mov_b32 {v(EPS+2)}, {lit(-1e-6)}")
        a(f"s_mov_b32 {s(S_K0)}, {lit(LOG2E)}")
        a("s_waitcnt lgkmcnt(0)")
        self.stamp(3)
        FR = 124; X = 148
        fa = lambda i, p: AB + 8*i + 2*p
        fb = lambda i, p: AB + 8*i + 4 + 2*p
        ch = [(i, p) for i in range(2) for p in range(2)]
        for t in (0, 1):
            self.phi_tile(t, fa, fb, lambda i, p: ('b', CS + 2*t), X, EPS, lambda i: FR + 4*t + 2*i)
        self.phi_tile(2, fa, fb, lambda i, p: ('b', CS + 4), X, EPS, lambda i: FR + 8 + 2*i)
        for i, p in ch: a(pk('add', X+4*i+2*p, self.acc(2,i)+2*p, ('b', EPS+2)))
        for i, p in ch: a(f"v_cvt_pk_bf16_f32 {v(FR+12+2*i+p)}, {v(X+4*i+2*p)}, {v(X+4*i+2*p+1)}")
        for t in (3, 4):
            for i, p in ch: a(pk('mul', X+4*i+2*p, fb(i,p), ('b', CS+2*t)))
            for i, p in ch: a(pk('fma', X+4*i+2*p, fa(i,p), self.acc(t,i)+2*p, X+4*i+2*p))
            for i, p in ch: a(f"v_cvt_pk_bf16_f32 {v(FR+4*(t+1)+2*i+p)}, {v(X+4*i+2*p)}, {v(X+4*i+2*p+1)}")
        a(f"v_cmp_gt_u32 vcc, 8, {v(L15)}")
        for r in range(4): a(f"v_cndmask_b32 {v(FR+12+r)}, {v(FR+12+r)}, {v(self.ONES)}, vcc")
        self.stamp(4)
        pairs = [(0, 0), (0, 1), (1, 0), (1, 1), (1, 2), (2, 0), (2, 1), (2, 2)]
        KVD = 12
        for j, (td, te) in enumerate(pairs):
            a(f"v_mfma_f32_16x16x32_bf16 {v(KVD+4*j,4)}, {v(FR+4*td,4)}, {v(FR+12+4*te,4)}, 0")
        def valid(td, te, l):
            col = l & 15; g = l >> 4; dqg = 4 * td + g
            if dqg > 9: return False
            hh = dqg // 5
            if te == 0:
                if col == 0: return True
                if col < 8: return False
            eg = col - 8 + 16 * te
            return eg // 20 == hh
        tot = 0
        for j, (td, te) in enumerate(pairs):
            m = sum(1 << l for l in range(64) if valid(td, te, l)); tot += bin(m).count('1')
            exec_mask(a, m)
            a(f"ds_write_b128 {v(SZ[td] if te == 0 else SA[td])}, {v(KVD+4*j,4)} offset:{256*te}")
        assert tot == 210
        a("s_mov_b64 exec, -1")
        a(f"v_lshlrev_b32 v3, 4, v0")
        a(f"v_add_u32 v4, {SCR}, v3")
        a(f"v_mov_b32 v5, {hex(OOB)}")
        a(f"v_cmp_gt_u32 vcc, 420, v0")
        a(f"v_cndmask_b32 v3, v5, v3, vcc")
        if self.cfg.kvo == 1: gelu()
        a("s_setprio 3")
        a("s_waitcnt lgkmcnt(0)")
        self.stamp(5)
        a("s_barrier")
        for r in range(4): a(f"ds_read_b128 {v(12+4*r,4)}, v4 offset:{6720*r}")
        for e in range(4): a(f"s_mov_b32 {s(S_T0+e)}, {hex(0x07060500 + e)}")
        a("s_waitcnt lgkmcnt(0)")
        for p in range(2): a(pk('add', 12+2*p, 12+2*p, 16+2*p))
        for p in range(2): a(pk('add', 20+2*p, 20+2*p, 24+2*p))
        for p in range(2): a(pk('add', 12+2*p, 12+2*p, 20+2*p))
        for e in range(4): a(f"v_perm_b32 {v(12+e)}, {v(12+e)}, v79, {s(S_T0+e)}")
        a(f"buffer_store_dwordx4 v[12:15], v3, {s(R_WS,4)}, {s(S_CNT)} offen sc1")
        a(f"s_setprio {self.cfg.pe}")
        self.stamp(7)
        if self.cfg.kvo == 0: gelu()
        a(f"v_lshlrev_b32 v2, 4, v1")
        self.signal()
        self.stamp(9)
        self.nb_c_kv = self.nb_loop + a.nbar - nb + 1
        a.nbar = nb
        a("s_branch Lp2")

    def epi_q(self):
        a = self.a
        nb = a.nbar
        L15, G, TOK = self.L15, self.G, self.TOK
        self.stamp(2)
        a(f"s_setprio {min(3, self.cfg.pe + 1)}")
        a(f"s_mul_i32 {s(S_T0)}, {s(S_C)}, 448")
        a(f"s_add_u32 {s(S_T0)}, {s(S_T0)}, {ST_CS}")
        a(f"v_lshl_add_u32 v5, {v(G)}, 4, {s(S_T0)}")
        a(f"v_xor_b32 v6, 64, {v(TOK)}")
        a(f"s_lshl_b32 {s(S_T0)}, {s(S_C)}, 7")
        a(f"s_add_u32 {s(S_T0)}, {s(S_T0)}, {B1L}")
        a(f"v_lshl_add_u32 v7, {v(G)}, 3, {s(S_T0)}")
        A2 = 68; A1 = 112; BR = 76; CS = 84
        rd = [f"ds_read_b32 {v(A2)}, {v(TOK)} offset:1024", f"ds_read_b32 {v(A2+2)}, {v(TOK)} offset:1536",
              f"ds_read_b32 {v(A2+4)}, v6 offset:1024", f"ds_read_b32 {v(A2+6)}, v6 offset:1536"]
        for j in range(4):
            rd += [f"ds_read_b128 {v(CS+4*(3+j),4)}, v5 offset:{64*(3+j)}", f"ds_read_b64 {v(BR+2*j,2)}, v7 offset:{32*j}"]
        rd += [f"ds_read_b32 {v(A1)}, {v(TOK)}", f"ds_read_b32 {v(A1+2)}, {v(TOK)} offset:512",
               f"ds_read_b32 {v(A1+4)}, v6", f"ds_read_b32 {v(A1+6)}, v6 offset:512"]
        rd += [f"ds_read_b128 {v(CS+4*t,4)}, v5 offset:{64*t}" for t in range(3)]
        mf = self.p1_mfmas(1, self.YA, self.YB)
        mf = mf[6:] + mf[:6]
        interleave(a, mf, rd, 0.8, 2)
        a(f"v_lshlrev_b32 v2, 4, v1")
        self.gelu_consts()
        a("s_waitcnt lgkmcnt(0)")
        self.stamp(3)
        TMP = 124
        for j in range(4):
            self.gelu_tile(3 + j, A2, CS + 4*(3+j), BR + 2*j, lambda i: TMP + (j >> 1)*8 + 4*i + 2*(j & 1), 140)
            if j & 1: self.h_store(j >> 1, TMP)
        a(f"s_setprio {self.cfg.pe}")
        self.stamp(5)
        a("s_waitcnt vmcnt(0)")
        self.signal()
        self.stamp(8)
        PQ = 152; EPS = 76; X = 112
        a(f"v_mov_b32 {v(EPS)}, {lit(1e-6)}")
        a(f"s_mov_b32 {s(S_K0)}, {lit(LOG2E)}")
        X = 96
        for t in range(3):
            self.phi_tile(t, lambda i, p: ('b', A1+4*i), lambda i, p: ('b', A1+4*i+2), lambda i, p: CS+4*t+2*p, X, EPS,
                          (lambda i: PQ + 4*i + 2*t) if t < 2 else (lambda i: PQ + 8 + 2*i))
        self.stamp(6)
        self.stamp(7)
        a(f"s_mul_i32 {s(S_T1)}, {s(S_C)}, {KVT_C}")
        a(f"s_add_u32 {s(S_T1)}, {s(S_T1)}, {KVT}")
        a(f"v_lshl_add_u32 v140, v1, 4, {s(S_T1)}")
        a(f"v_lshl_add_u32 v141, v1, 3, {s(S_T1)}")
        a(f"s_lshl_b32 {s(S_T1)}, {s(S_R)}, 5")
        a(f"s_lshl_b32 {s(S_T2)}, {s(S_C)}, 4")
        a(f"s_add_u32 {s(S_T1)}, {s(S_T1)}, {s(S_T2)}")
        a(f"v_add_u32 v142, {s(S_T1)}, {v(L15)}")
        a(f"v_xor_b32 v143, 16, v142")
        a(f"s_mul_i32 {s(S_T1)}, {s(S_C)}, 80")
        a(f"s_add_u32 {s(S_T1)}, {s(S_T1)}, {OEX}")
        for i in range(2):
            a(f"v_mul_u32_u24 {v(142+i)}, {OP}, {v(142+i)}")
            a(f"v_add_u32 {v(142+i)}, {s(S_T1)}, {v(142+i)}")
            a(f"v_lshl_add_u32 {v(144+i)}, {v(G)}, 1, {v(142+i)}")
            a(f"v_lshl_add_u32 {v(142+i)}, {v(G)}, 3, {v(142+i)}")
        self.stamp(9)
        self.nb_c_q = self.nb_loop + a.nbar - nb + 1
        a.nbar = nb

    def o_segments(self):
        F = 124; PQ = 152
        U = [[32, 36, 40], [44, 48, 148]]
        s0 = [f"ds_read_b64 {v(F+12,2)}, v141 offset:3072", f"ds_read_b64 {v(F+14,2)}, v141 offset:3584"]
        s0 += [f"ds_read_b128 {v(F+4*k,4)}, v140 offset:{1024*k}" for k in (1, 2, 0)]
        s1 = [f"v_mfma_f32_16x16x16_bf16 {v(U[i][k],4)}, {v(F+12+2*(k-1),2)}, {v(PQ+8+2*i,2)}, 0" for k in (1, 2) for i in range(2)]
        s1 += [f"v_mfma_f32_16x16x32_bf16 {v(U[i][0],4)}, {v(F,4)}, {v(PQ+4*i,4)}, 0" for i in range(2)]
        s1 += [f"v_mfma_f32_16x16x32_bf16 {v(U[i][k],4)}, {v(F+4*k,4)}, {v(PQ+4*i,4)}, {v(U[i][k],4)}" for k in (1, 2) for i in range(2)]
        s2 = []
        for i in range(2): s2 += [f"v_add_f32 {v(U[i][1]+e)}, {lit(1e-6)}, {v(U[i][1]+e)}" for e in (1, 2)]
        for i in range(2): s2 += [f"v_rcp_f32 {v(U[i][1]+e)}, {v(U[i][1]+e)}" for e in (1, 2)]
        tl = []
        for i in range(2):
            u0, u1, u2 = U[i]
            t = [f"v_mul_f32 {v(u0+r)}, {v(u0+r)}, {v(u1+1)}" for r in range(4)]
            t += [f"v_mul_f32 {v(u1)}, {v(u1)}, {v(u1+1)}", f"v_cvt_pk_bf16_f32 {v(u0)}, {v(u0)}, {v(u0+1)}",
                  f"v_cvt_pk_bf16_f32 {v(u0+1)}, {v(u0+2)}, {v(u0+3)}", f"ds_write_b64 {v(142+i)}, {v(u0,2)}"]
            t += [f"v_mul_f32 {v(u2+r)}, {v(u2+r)}, {v(u1+2)}" for r in range(4)]
            t += [f"v_mul_f32 {v(u1+3)}, {v(u1+3)}, {v(u1+2)}", f"v_cvt_pk_bf16_f32 {v(u2)}, {v(u2)}, {v(u2+1)}",
                  f"v_cvt_pk_bf16_f32 {v(u2+1)}, {v(u2+2)}, {v(u2+3)}", f"v_cvt_pk_bf16_f32 {v(u1)}, {v(u1)}, {v(u1+3)}",
                  f"ds_write_b64 {v(142+i)}, {v(u2,2)} offset:40", f"ds_write_b16 {v(144+i)}, {v(u1)} offset:32",
                  f"ds_write_b16_d16_hi {v(144+i)}, {v(u1)} offset:72"]
            tl.append(t)
        return [s0, s1, s2 + tl[0], tl[1]]
    def o_block(self):
        a = self.a; sg = self.o_segments()
        for x in sg[0]: a(x)
        a("s_waitcnt lgkmcnt(0)")
        for g in sg[1:]:
            for x in g: a(x)
        self.stamp(13)

    AM = 12; AS = 32; P2X = 52; P2Y = 72; AR = 92; OR = 124
    def p2_pre_setup(self):
        a = self.a
        a(f"s_lshl_b32 {s(S_T2)}, {s(S_TT)}, 2")
        a(f"s_add_u32 {s(S_T2)}, {s(S_T2)}, {s(S_R)}")
        a(f"s_mul_i32 {s(S_OH)}, {s(S_T2)}, {48*1024}")
        a(f"s_mul_i32 {s(S_T3)}, {s(S_C)}, {24*1024}")
        a(f"s_add_u32 {s(S_OH)}, {s(S_OH)}, {s(S_T3)}")
        a(f"s_add_u32 {s(S_OH)}, {s(S_OH)}, {WS_H2}")
        a(f"s_mul_i32 {s(S_NONCE)}, {s(S_T2)}, {8*2560}")
        a(f"s_mul_i32 {s(S_T3)}, {s(S_C)}, {4*2560}")
        a(f"s_add_u32 {s(S_NONCE)}, {s(S_NONCE)}, {s(S_T3)}")
        a(f"s_add_u32 {s(S_NONCE)}, {s(S_NONCE)}, {WS_O2}")
        self.rot2(S_KC)
    def hload(self, j):
        a = self.a
        if j % 2 == 0:
            self.chunk_id(S_OA, S_T3, j // 2)
            a(f"s_lshl_b32 {s(S_OA)}, {s(S_OA)}, 11")
            a(f"s_add_u32 {s(S_OA)}, {s(S_OA)}, {s(S_OH)}")
        a(f"buffer_load_dwordx4 {v(self.AR+4*(j%8),4)}, v2, {s(R_WS,4)}, {s(S_OA)} offen offset:{1024*(j%2)} {self.cfg.hsc}")
    def p2_pre_loads(self, j0, j1):
        for j in range(j0, j1): self.hload(j)

    def phase2(self):
        a = self.a
        a.label('Lp2')
        a(f"s_cmp_lg_u32 {s(S_C)}, 0")
        a(f"s_cbranch_scc1 Lp2_1")
        for kap in range(2): self.phase2k(kap)

    def phase2k(self, kap):
        a = self.a; cfg = self.cfg
        nb = a.nbar
        a.label(f"Lp2_{kap}")
        AM, AS, XB, YB, AR, OR = self.AM, self.AS, self.P2X, self.P2Y, self.AR, self.OR
        VB = 4
        M = "v_mfma_f32_16x16x32_bf16"
        a(f"v_add_u32 v4, {kap*10240}, v2")
        a(f"v_add_u32 v5, {SLOT + kap*10240}, v2")
        a(f"v_add_u32 v6, {2*SLOT + kap*10240}, v2")
        q = [('A', j) for j in range(cfg.ramp)]
        hn = [cfg.ramp]
        def hload_upto(n, cap):
            while hn[0] < min(n, 24) and cap > 0:
                self.hload(hn[0]); q.append(('A', hn[0])); hn[0] += 1; cap -= 1
        ol = []
        for P in range(2):
            for i5 in range(4):
                ol.append((P, i5 >> 1, f"buffer_load_dwordx4 {v(OR+4*(5*P+i5),4)}, v2, {s(R_WS,4)}, {s(S_T0)} offen offset:{1024*(i5&1)} sc1", 24 + 5*P + i5))
            for hh in range(2):
                ol.append((P, hh, f"buffer_load_dwordx2 {v(OR+4*(5*P+4)+2*hh,2)}, v3, {s(R_WS,4)}, {s(S_T0)} offen offset:2048 sc1", 24 + 5*P + 4))
        def oloads(n):
            for _ in range(n):
                if not ol: return
                P, hh, txt, st = ol.pop(0)
                a(f"s_add_u32 {s(S_T0)}, {s(S_NONCE)}, {(2*P+hh)*2560}")
                a(txt); q.append(('A', st))
        def wait(tag):
            assert not any(o[3] == tag[1] for o in ol)
            idx = [k for k, t in enumerate(q) if t == tag]
            if not idx: return
            n = sum(1 for t in q[idx[-1]+1:] if t[0] != 'S')
            a(f"s_waitcnt vmcnt({n})")
            del q[:idx[-1] + 1]
        def areg(j): return AR + 4 * (j % 8) if j < 24 else OR + 4 * (j - 24)
        def reads(j, B):
            i = j // 2; base = RING[i % 6]; vb = VB + base // SLOT; off = base % SLOT + (j & 1) * 5120
            return [f"ds_read_b128 {v(B+4*c,4)}, {v(vb)} offset:{off + 1024*c}" for c in range(5)]
        def mfmas(j, B):
            ac = AM if j < 24 else AS
            first = j == 24 or (j == 0 and kap == 1)
            return [f"{M} {v(ac+4*c,4)}, {v(B+4*c,4)}, {v(areg(j),4)}, {'0' if first else v(ac+4*c,4)}" for c in range(5)]
        lq = []
        def lds(txt, tag): a(txt); lq.append(tag)
        def lwait(tag):
            idx = [k for k, t in enumerate(lq) if t == tag]
            if not idx: return
            a(f"s_waitcnt lgkmcnt({len(lq) - 1 - idx[-1]})")
            del lq[:idx[-1] + 1]
        own = [0, 1, 2] if kap == 0 else [3, 4]
        give = [c for c in range(5) if c not in own]
        a(f"v_lshlrev_b32 v3, 3, v1")
        a(f"v_mov_b32 v167, 0xffff0000")
        def unpack(d, b):
            return [f"v_lshlrev_b32 {v(d)}, 16, {v(b)}", f"v_and_b32 {v(d+1)}, v167, {v(b)}",
                    f"v_lshlrev_b32 {v(d+2)}, 16, {v(b+1)}", f"v_and_b32 {v(d+3)}, v167, {v(b+1)}"]
        if kap == 0:
            a(f"v_lshlrev_b32 v9, 3, {v(self.G)}")
            a(f"v_add_u32 v9, {B2L}, v9")
            for c in range(5): lds(f"ds_read_b64 {v(AS+2*c,2)}, v9 offset:{32*c}", 'b2')
        if kap == 0:
            lwait('b2')
            for c in range(5):
                for x in unpack(AM + 4*c, AS + 2*c): a(x)
        a(f"s_mul_i32 {s(S_T0)}, {s(S_R)}, 5120")
        a(f"s_add_u32 {s(S_T0)}, {s(S_T0)}, {EXB}")
        a(f"v_add_u32 v7, {s(S_T0)}, v2")
        a(f"s_lshl_b32 {s(S_T0)}, {s(S_R)}, 4")
        a(f"v_add_u32 v8, {s(S_T0)}, {v(self.L15)}")
        a(f"v_mul_u32_u24 v8, 160, v8")
        a(f"v_lshl_add_u32 v8, {v(self.G)}, 3, v8")
        a(f"v_add_u32 v8, {XT}, v8")
        G = AR
        self.final_prep()
        a(f"v_mov_b32 v10, {lit(-LOG2E)}")
        X = G + 20
        sil = []
        for k, c in enumerate(own):
            g = G + 4 * k; x = X + 4 * k; R = range(4)
            sil += [f"v_add_f32 {v(g+r)}, {v(g+r)}, {v(AM+4*c+r)}" for r in R]
            sil += [f"v_mul_f32 {v(x+r)}, v10, {v(g+r)}" for r in R]
            sil += [f"v_exp_f32 {v(x+r)}, {v(x+r)}" for r in R]
            sil += [f"v_add_f32 {v(x+r)}, 1.0, {v(x+r)}" for r in R]
            sil += [f"v_rcp_f32 {v(x+r)}, {v(x+r)}" for r in R]
            sil += [f"v_mul_f32 {v(g+r)}, {v(g+r)}, {v(x+r)}" for r in R]
        XR = G + 12
        for k, c in enumerate(own): sil += unpack(AM + 4 * k, XR + 2 * k)
        if cfg.late:
            prs = [(k, c, p) for k, c in enumerate(own) for p in range(2)]
            sil = [pk('add', G+4*k+2*p, G+4*k+2*p, AM+4*c+2*p) for k, c, p in prs]
            sil += [pk('mul', X+4*k+2*p, G+4*k+2*p, ('b', 10)) for k, c, p in prs]
            sil += [f"v_exp_f32 {v(X+k)}, {v(X+k)}" for k in range(4*len(own))]
            sil += [pk('add', X+4*k+2*p, X+4*k+2*p, '1.0') for k, c, p in prs]
            sil += [f"v_rcp_f32 {v(X+k)}, {v(X+k)}" for k in range(4*len(own))]
            sil += [pk('mul', G+4*k+2*p, G+4*k+2*p, X+4*k+2*p) for k, c, p in prs]
            for k, c in enumerate(own): sil += unpack(AM + 4 * k, XR + 2 * k)
        nsl = 7; per = -(-len(sil) // nsl)
        def take():
            r = sil[:per]; del sil[:per]; return r
        def step(j, extra=(), tag=None):
            B = XB if j % 2 == 0 else YB
            mf = mfmas(j, B); rd = reads(j + 2, B) if j + 2 < 34 else []
            ex = take() if j >= 27 and not cfg.late else list(extra)
            order = give + own if j == 33 else range(5)
            n = 0
            for k, c in enumerate(order):
                a(mf[c])
                if rd: lds(rd[c], j + 2)
                while n < (k + 1) * len(ex) // 5:
                    if ex[n].startswith('ds_'): lds(ex[n], tag)
                    else: a(ex[n])
                    n += 1
            hload_upto(min(j + 9, 8 if j < 2 * cfg.kb - 1 else (16 if j < 2 * cfg.kh - 1 else 24)), 3)
        a(f"s_setprio {cfg.pp}")
        a("s_barrier"); a.nbar -= 1
        self.p2_pre_loads(0, cfg.ramp)
        for x in reads(0, XB): lds(x, 0)
        for x in reads(1, YB): lds(x, 1)
        self.stamp(20)
        def one(j, extra=(), tag=None, pre=None):
            i = j // 2
            if cfg.late:
                if j == 24:
                    for c in give: lds(f"ds_write_b128 v7, {v(AM+4*c,4)} offset:{1024*c}", 'mx')
                    lwait('mx')
                    a("s_barrier"); self.stamp(33)
                    for k, c in enumerate(own):
                        lds(f"ds_read_b128 {v(G+4*k,4)}, v7 offset:{1024*c}", 'g')
                        lds(f"ds_read_b64 {v(XR+2*k,2)}, v8 offset:{32*c}", 'g')
                    oloads(cfg.ofirst)
                    lwait('g')
                    nrest = len(ol); nsil = len(sil)
                    for n, x in enumerate(sil):
                        a(x)
                        if nrest and (n + 1) * nrest // nsil > n * nrest // nsil: oloads(1)
                    sil.clear()
                    self.stamp(34)
            elif j % 2 == 0:
                if i >= cfg.ko: oloads((cfg.opc + 1) // 2)
            else:
                if i >= cfg.ko: oloads(cfg.opc // 2)
            if j == 0:
                a("s_waitcnt vmcnt(0)"); q.clear()
            wait(('A', j))
            lwait(j)
            if j == 27 and not cfg.late: lwait('g')
            if j % 2 == 1 and i <= 11:
                a("s_barrier"); self.stamp(21 + i)
            if j == 26 and not cfg.late:
                lwait('mx')
                a("s_barrier"); self.stamp(33)
                for k, c in enumerate(own):
                    lds(f"ds_read_b128 {v(G+4*k,4)}, v7 offset:{1024*c}", 'g')
                    lds(f"ds_read_b64 {v(XR+2*k,2)}, v8 offset:{32*c}", 'g')
            if pre: lwait(pre)
            if tag == 'of':
                for x in extra: lds(x, tag)
                extra = ()
            step(j, extra, tag)
            if j == 24 and not cfg.late:
                for c in give: lds(f"ds_write_b128 v7, {v(AM+4*c,4)} offset:{1024*c}", 'mx')
        j = 0
        while j < 34:
            if j == 2 * cfg.ka - 1 and cfg.oil:
                import copy
                sg = self.o_segments()
                Lk = f"Lok_{kap}"; Lj = f"Loj_{kap}"
                a(f"s_cmp_eq_u32 {s(S_TY)}, 0")
                a(f"s_cbranch_scc1 {Lk}")
                st = (list(q), list(lq), list(hn), a.nbar)
                ns = 2 * cfg.onc
                if ns == 4:
                    for n in range(4): one(j + n, sg[n], 'of' if n == 0 else 'ox', 'of' if n == 1 else None)
                else:
                    one(j, sg[0], 'of')
                    lwait('of')
                    for x in sg[1]: a(x)
                    one(j + 1, sg[2] + sg[3], 'ox')
                lwait('ox')
                self.stamp(13)
                a(f"s_branch {Lj}")
                q[:], lq[:], hn[:], a.nbar = st[0], st[1], st[2], st[3]
                a.label(Lk)
                for n in range(ns): one(j + n)
                a.label(Lj)
                j += ns
                continue
            one(j)
            if j == 2 * cfg.ka - 1:
                a(f"s_cmp_eq_u32 {s(S_TY)}, 0")
                a(f"s_cbranch_scc1 Lobr_{kap}")
                self.o_block()
                a.label(f"Lobr_{kap}")
            j += 1
        assert not ol and not sil
        for c in give: a(f"ds_write_b128 v7, {v(AS+4*c,4)} offset:{1024*c}")
        X = AM
        a("s_waitcnt lgkmcnt(0)")
        a("s_barrier")
        for k, c in enumerate(own): a(f"ds_read_b128 {v(XB+4*k,4)}, v7 offset:{1024*c}")
        a("s_waitcnt lgkmcnt(0)")
        prs = [(k, c, p) for k, c in enumerate(own) for p in range(2)]
        for k, c, p in prs: a(pk('add', XB+4*k+2*p, XB+4*k+2*p, AS+4*c+2*p))
        for k, c, p in prs: a(pk('fma', X+4*k+2*p, XB+4*k+2*p, G+4*k+2*p, X+4*k+2*p))
        for k, c, p in prs: a(f"v_cvt_pk_bf16_f32 {v(XB+2*k+p)}, {v(X+4*k+2*p)}, {v(X+4*k+2*p+1)}")
        for k, c in enumerate(own): a(f"ds_write_b64 v8, {v(XB+2*k,2)} offset:{32*c}")
        a("s_waitcnt lgkmcnt(0)")
        a("s_barrier")
        self.nb_c_p2 = a.nbar - nb
        a.nbar = nb
        if kap == 0: a("s_branch Lfinal_store")

    def build(self):
        a = self.a
        self.entry()
        self.loader()
        self.compute_setup()
        self.duty(0, self.XA, self.XB)
        self.duty(1, self.YA, self.YB)
        self.pack_blocks()
        self.p1_loop(0); self.epi_kv()
        self.p1_loop(1); self.epi_q()
        self.phase2()
        self.final_store()
        assert self.nb_ld_kv == self.nb_c_kv, (self.nb_ld_kv, self.nb_c_kv)
        assert self.nb_ld_q == self.nb_c_q, (self.nb_ld_q, self.nb_c_q)
        assert self.nb_ld_p2 == self.nb_c_p2, (self.nb_ld_p2, self.nb_c_p2)
        body = a.finish()
        head = open('recurrent_scan__linear_attn_block__mixer_channel_mlp__prompt.s.ref').read().split('; Override launch')[0]
        txt = head + f"; @launch grid=(256,1,1) block=(768,1,1) lds={LDS_TOTAL}\n"
        txt += f'.amdgcn_target "amdgcn-amd-amdhsa--gfx950"\n.text\n.globl {NAME}\n.p2align 8\n.type {NAME},@function\n{NAME}:\n'
        txt += body
        txt += f""".section .rodata,"a"
.p2align 6
.amdhsa_kernel {NAME}
  .amdhsa_next_free_vgpr 168
  .amdhsa_next_free_sgpr 102
  .amdhsa_accum_offset 168
  .amdhsa_group_segment_fixed_size 0
  .amdhsa_kernarg_size 88
  .amdhsa_user_sgpr_count 2
  .amdhsa_user_sgpr_kernarg_segment_ptr 1
  .amdhsa_system_sgpr_workgroup_id_x 1
.end_amdhsa_kernel
"""
        return txt

def wg_type(cfg_kw, wg):
    m = cfg_kw.get('map1', Cfg.map1)
    return (wg >> {'A': 5, 'B': 6, 'D': 7}[m]) & 1

def make(**kw):
    cfg = Cfg()
    for k, x in kw.items(): setattr(cfg, k, x)
    return Gen(cfg).build()

if __name__ == '__main__':
    out = sys.argv[1] if len(sys.argv) > 1 else 'recurrent_scan__linear_attn_block__mixer_channel_mlp__prompt.s'
    kw = {}
    for x in sys.argv[2:]:
        k, val = x.split('='); kw[k] = eval(val)
    open(out, 'w').write(make(**kw))
```

```python
import sys, math, struct
from asmlib import *

NAME = 'recurrent_scan__linear_attn_block__mixer_channel_mlp__prompt_kernel'

class Cfg:
    n1 = 11
    diag = False
    ko = 12
    rot2 = (0, 1)
    kb = 2
    pfw = 0
    kvd = -2
    osc = ''
    kh = 5
    map1 = 'D'
    kprot = True
    fs = 7
    psl = 0
    ka = 3
    kvo = 0
    prew = True
    sbar = True
    hsc = 'sc1'
    bsc = 'sc1'
    nh0 = 3
    pe = 2
    pp = 0
    gfirst = False
    staged = (6, 8, 10, 12, 14, 16)
    map2 = 'A'
    opc = 6
    cpw = 11
    ldj = False
    ldd = False
    kz = 4
    xskip = 0
    xalias = 0
    pkty = 1
    pp1 = False
    nbq = 4
    ppr = 1
    xidle = 0
    mo = 0
    kal = 0
    hp = 0
    kp = 9
    ks = 7
    sph = True
    spf = 0
    l1in = True
    l1c = 1
    n10 = 8
    l1d = 0
    kte = False
    fo = 2
    pw = 3
    rf1 = True
    pk0 = 1
    cpi = 3
    xlat = None
    xg = None
    pl = 0
    rpm = 1
    rp2 = 3
    wopf = False
    ramp = 2
    xr = 7
    xm = 7
    xd = 11
    rot1 = (1, 7)
    pfs = (0, 2)
    kx = 9
    late = False
    rfb = True
    ofirst = 4
    onc = 1
    oil = True
    pc1 = 0
    fpd = 2
    cpn = 8
    dst = True
    kve = True
    pkt = False
    cpf = 2
    il1 = (0.75, 3)
    il0 = (0.9, 3)
    prio = 0
    dbgt = False
    light = False

SLOT = 45056
SCR = 3 * SLOT
LDS_TOTAL = 163840
ST = SLOT + 40960
ST_CS = ST + 2048
DSQ = SCR + 20480; DRS = DSQ + 2048; DCS = DRS + 512
B1L = SCR + 28160
KVT = 40960; KVT_C = 2 * SLOT
OEX = SCR; OP = 168
XT = SCR
OT = SCR + 10240
B2L = ST + 3328
RING = [SLOT, SLOT + 20480, 2 * SLOT, 2 * SLOT + 20480, 0, 20480]
EXB = RING[5]
WS_FH = 0x160000; WS_FO = 0x170000; WS_FP = 9216; WS_FS = 10240
WS_TS = 0x10000
WS_RP = 0x20000; WS_CP = 0x48000
WS_KP = 0x80000; KP_STRIDE = 6784; WS_KT = 0x180000
ST_N = ST + 3072; ST_C = ST + 3076
WS_P2 = 0x200000; WS_O2 = 0x500000; WS_H2 = 0x800000
WS_TS2 = 0xE00000
WS_SIZE = 0xF00000
OOB = 0x40000000
P_X, P_W, P_WO, P_W1, P_B1, P_W2, P_B2, P_OUT, P_DBG, P_WS = 4, 6, 8, 12, 14, 16, 18, 20, 22, 24
S_S0, S_COL = 26, 27
R_X, R_W, R_W1, R_MID, R_WS, R_PK, R_OUT, R_BI = 28, 32, 36, 40, 44, 48, 52, 56
S_WID, S_RB, S_HG, S_TY, S_TT, S_N, S_XCD, S_IDX, S_R, S_C = 60, 61, 62, 63, 64, 65, 66, 67, 68, 69
S_T0, S_T1, S_T2, S_T3 = 70, 71, 72, 73
S_KC, S_OA, S_OW, S_OM, S_OH = 74, 75, 76, 77, 78
S_NONCE, S_CNT, S_U, S_DELTA, S_IT = 79, 80, 81, 82, 83
S_MASK = 84
S_DEST = 86
S_PIDX = 97
M_V, M_Z0 = 8, 10
M_Z = (10, 16)
S_RPA, S_CPA, S_M1, S_M0 = 8, 9, 10, 11
S_TS = 98
S_PKO, S_PKS = 100, 101
S_L = S_R
S_K0, S_K1 = 100, 101
VDIAG = 11

LOG2E = 1.4426950408889634
def f2u(x): return struct.unpack('<I', struct.pack('<f', x))[0]
def lit(x): return hex(f2u(x))

def srd(a, r, p, size):
    a(f"s_mov_b32 {s(r)}, {s(p)}")
    a(f"s_and_b32 {s(r+1)}, {s(p+1)}, 0xffff")
    a(f"s_mov_b32 {s(r+2)}, {hex(size)}")
    a(f"s_mov_b32 {s(r+3)}, 0x20000")

def interleave(a, main, fill, last_frac=0.7, first=0):
    n = len(main); m = len(fill); k = 0
    lim = max(1, int(n * last_frac))
    while k < min(first, m): a(fill[k]); k += 1
    for i, x in enumerate(main):
        a(x)
        tgt = first + math.ceil((m - first) * min(i + 1, lim) / lim) if m > first else m
        while k < tgt: a(fill[k]); k += 1
    while k < m: a(fill[k]); k += 1

def pk(op, d, *src):
    ops = []; lo = []; hi = []
    for x in src:
        if isinstance(x, int): assert x % 2 == 0; ops.append(v(x, 2)); lo.append(0); hi.append(1)
        elif isinstance(x, str): ops.append(x); lo.append(0); hi.append(0)
        elif x[0] == 'b': assert x[1] % 2 == 0; ops.append(v(x[1], 2)); lo.append(0); hi.append(0)
        elif x[0] == 's': assert x[1] % 2 == 0; ops.append(s(x[1], 2)); lo.append(0); hi.append(0)
    assert d % 2 == 0
    return f"v_pk_{op}_f32 {v(d,2)}, {', '.join(ops)} op_sel:[{','.join(map(str,lo))}] op_sel_hi:[{','.join(map(str,hi))}]"

def exec_mask(a, m):
    a(f"s_mov_b32 exec_lo, {hex(m & 0xffffffff)}")
    a(f"s_mov_b32 exec_hi, {hex(m >> 32)}")
DIAGMASK = sum(1 << l for l in range(64) if ((l & 15) >> 2) == (l >> 4))

class Gen:
    def __init__(self, cfg):
        self.cfg = cfg
        self.a = Asm()
        self.uid = 0
        self.late_lines = []
    def lab(self, p):
        self.uid += 1; return f"L{p}_{self.uid}"

    def stamp(self, i):
        if not self.cfg.diag: return
        a = self.a
        a("s_waitcnt lgkmcnt(0)")
        a(f"s_mov_b32 m0, {s(S_PIDX)}")
        a("s_nop 0")
        a(f"v_writelane_b32 {v(VDIAG)}, {s(S_TS)}, m0")
        a(f"{'s_memrealtime' if self.cfg.diag == 'rt' else 's_memtime'} {s(S_TS,2)}")
        a(f"s_mov_b32 {s(S_PIDX)}, {i}")

    def dbgt(self, slot):
        if not self.cfg.dbgt: return
        a = self.a
        L = self.lab('dt')
        a(f"s_cmp_lg_u32 {s(S_WID)}, 3")
        a(f"s_cbranch_scc1 {L}")
        a(f"s_cmp_lg_u32 s2, 3")
        a(f"s_cbranch_scc1 {L}")
        a(f"s_memrealtime {s(S_TS,2)}")
        a("s_waitcnt lgkmcnt(0)")
        a(f"v_mov_b32 v120, {s(S_TS)}")
        a(f"s_memtime {s(S_TS,2)}")
        a("s_waitcnt lgkmcnt(0)")
        a(f"v_mov_b32 v121, {s(S_TS)}")
        a(f"v_mov_b32 v122, {8*(slot-1)}")
        a(f"global_store_dwordx2 v122, v[120:121], {s(P_DBG,2)}")
        a.label(L)

    def entry(self):
        a = self.a; cfg = self.cfg
        a(f"s_cmp_ge_u32 s2, 256")
        a(f"s_cbranch_scc1 Lend")
        def kload():
            a(f"s_load_dwordx16 s[4:19], s[0:1], 0")
            a(f"s_load_dwordx4 s[20:23], s[0:1], 64")
            a(f"s_load_dwordx2 s[24:25], s[0:1], 80")
        self.kload = kload
        if cfg.kal == 0: kload()
        else:
            Lk = self.lab('kl')
            a(f"v_cmp_gt_u32 vcc, 256, v0")
            a(f"s_cbranch_vccz {Lk}")
            kload()
            a.label(Lk)
        if cfg.light:
            a(f"s_memrealtime {s(S_TS,2)}")
            a(f"s_memtime {s(S_MASK,2)}")
        if cfg.diag:
            a(f"s_memrealtime {s(S_TS,2)}")
            a(f"s_mov_b32 {s(S_PIDX)}, 0")
            a(f"v_mov_b32 {v(VDIAG)}, 0")
        a(f"v_lshrrev_b32 v2, 6, v0")
        a(f"v_and_b32 v1, 63, v0")
        a(f"v_readfirstlane_b32 {s(S_WID)}, v2")
        a(f"s_and_b32 {s(S_XCD)}, s2, 7")
        a(f"s_lshr_b32 {s(S_IDX)}, s2, 3")
        def field(dst, xs, xm, xl, is_, im):
            a(f"s_bfe_u32 {s(S_T0)}, {s(S_XCD)}, {hex((xm.bit_length() << 16) | xs)}")
            a(f"s_lshl_b32 {s(S_T0)}, {s(S_T0)}, {xl}")
            a(f"s_bfe_u32 {s(S_T1)}, {s(S_IDX)}, {hex((im.bit_length() << 16) | is_)}")
            a(f"s_add_u32 {s(dst)}, {s(S_T0)}, {s(S_T1)}")
        if cfg.map1 == 'A':
            field(S_RB, 1, 3, 2, 0, 3); field(S_HG, 0, 1, 2, 3, 3)
            a(f"s_bfe_u32 {s(S_TY)}, {s(S_IDX)}, 0x10002")
        elif cfg.map1 == 'B':
            field(S_RB, 0, 1, 3, 0, 7); field(S_HG, 1, 3, 1, 4, 1)
            a(f"s_bfe_u32 {s(S_TY)}, {s(S_IDX)}, 0x10003")
        else:
            field(S_RB, 0, 1, 3, 0, 7); field(S_HG, 1, 3, 1, 3, 1)
            a(f"s_bfe_u32 {s(S_TY)}, {s(S_IDX)}, 0x10004")
        a(f"s_lshl_b32 {s(S_COL)}, {s(S_HG)}, 1")
        a(f"s_add_u32 {s(S_COL)}, {s(S_COL)}, {s(S_TY)}")
        a(f"s_mul_i32 {s(S_S0)}, {s(S_RB)}, {cfg.rot1[1]}")
        a(f"s_mul_i32 {s(S_T0)}, {s(S_COL)}, {cfg.rot1[0]}")
        a(f"s_add_u32 {s(S_S0)}, {s(S_S0)}, {s(S_T0)}")
        a(f"s_mul_i32 {s(S_T0)}, {s(S_S0)}, 6554")
        a(f"s_lshr_b32 {s(S_T0)}, {s(S_T0)}, 16")
        a(f"s_mul_i32 {s(S_T0)}, {s(S_T0)}, 10")
        a(f"s_sub_u32 {s(S_S0)}, {s(S_S0)}, {s(S_T0)}")
        a(f"s_cmp_ge_u32 {s(S_WID)}, 4")
        a(f"s_cbranch_scc1 Lcompute")

    def calc_p2map(self):
        a = self.a
        if self.cfg.map2 == 'A':
            a(f"s_lshr_b32 {s(S_T0)}, {s(S_XCD)}, 1")
            a(f"s_lshl_b32 {s(S_T0)}, {s(S_T0)}, 3")
            a(f"s_and_b32 {s(S_T1)}, {s(S_IDX)}, 7")
            a(f"s_add_u32 {s(S_TT)}, {s(S_T0)}, {s(S_T1)}")
            a(f"s_and_b32 {s(S_T0)}, {s(S_XCD)}, 1")
            a(f"s_lshl_b32 {s(S_T0)}, {s(S_T0)}, 2")
            a(f"s_lshr_b32 {s(S_T1)}, {s(S_IDX)}, 3")
            a(f"s_add_u32 {s(S_N)}, {s(S_T0)}, {s(S_T1)}")
        else:
            a(f"s_lshl_b32 {s(S_T0)}, {s(S_XCD)}, 2")
            a(f"s_and_b32 {s(S_T1)}, {s(S_IDX)}, 3")
            a(f"s_add_u32 {s(S_TT)}, {s(S_T0)}, {s(S_T1)}")
            a(f"s_lshr_b32 {s(S_N)}, {s(S_IDX)}, 2")
    def calc_u(self):
        a = self.a
        self.calc_p2map()
        a(f"s_add_u32 {s(S_U)}, {s(S_HG)}, 128")
        a(f"s_cmp_lt_u32 {s(S_RB)}, 4")
        a(f"s_cselect_b32 {s(S_U)}, {s(S_U)}, 255")
        a(f"s_lshl_b32 {s(S_T0)}, {s(S_HG)}, 4")
        a(f"s_add_u32 {s(S_T0)}, {s(S_T0)}, {s(S_RB)}")
        a(f"s_cmp_eq_u32 {s(S_TY)}, {self.cfg.pkty}")
        a(f"s_cselect_b32 {s(S_U)}, {s(S_T0)}, {s(S_U)}")

    def poll_issue(self, vdst, voff, n=1):
        self.a(f"buffer_load_dword{'x2' if n == 2 else ''} {v(vdst, n)}, {v(voff)}, {s(R_WS,4)}, 0 offen sc1")
    def poll_check(self, vdst, voff, nlanes, n=1):
        a = self.a
        L = self.lab('poll'); Ld = self.lab('polld')
        mask = (1 << nlanes) - 1
        a(f"s_mov_b32 {s(S_CNT)}, 0")
        a.label(L)
        a(f"v_cmp_ne_u32 vcc, {s(S_NONCE)}, {v(vdst)}")
        if n == 2:
            a(f"v_cmp_ne_u32 {s(S_MASK,2)}, {s(S_NONCE)}, {v(vdst+1)}")
            a(f"s_or_b64 vcc, vcc, {s(S_MASK,2)}")
        if nlanes < 32:
            a(f"s_and_b32 {s(S_T0)}, vcc_lo, {hex(mask)}")
        else:
            a(f"s_and_b32 {s(S_T0)}, vcc_hi, {hex(mask >> 32)}")
            a(f"s_or_b32 {s(S_T0)}, {s(S_T0)}, vcc_lo")
        a(f"s_cbranch_scc0 {Ld}")
        a(f"s_add_u32 {s(S_CNT)}, {s(S_CNT)}, 1")
        a(f"s_cmp_gt_u32 {s(S_CNT)}, 0x40000")
        a(f"s_cbranch_scc1 {Ld}")
        if self.cfg.psl: a(f"s_sleep {self.cfg.psl}")
        self.poll_issue(vdst, voff, n)
        a("s_waitcnt vmcnt(0)")
        a(f"s_branch {L}")
        a.label(Ld)
    def poll(self, vdst, voff, nlanes, n=1):
        self.poll_issue(vdst, voff, n); self.a("s_waitcnt vmcnt(0)"); self.poll_check(vdst, voff, nlanes, n)
    def only_l(self, l=0):
        L = self.lab('l0')
        self.a(f"s_cmp_lg_u32 {s(S_L)}, {l}")
        self.a(f"s_cbranch_scc1 {L}")
        return L
    def flag_store(self, voff):
        self.a(f"buffer_store_dword v41, {v(voff)}, {s(R_WS,4)}, 0 offen sc1")

    def loader(self):
        a = self.a; cfg = self.cfg
        VO = 12
        V_P2 = 23
        V_FH, V_F2, V_FP, V_FS, V_QK, V_QP, V_QH, V_QO, V_QS = 24, 25, 26, 27, 28, 29, 30, 31, 32
        V_PK = 33
        nb0 = a.nbar
        a(f"s_mov_b32 {s(S_L)}, {s(S_WID)}")
        a(f"s_mov_b32 {s(S_KC)}, {s(S_S0)}")
        if cfg.xg:
            G, mul, ca, cb = cfg.xg
            a(f"s_mul_i32 {s(S_KC)}, {s(S_COL)}, {ca}")
            a(f"s_mul_i32 {s(S_T0)}, {s(S_RB)}, {cb}")
            a(f"s_add_u32 {s(S_KC)}, {s(S_KC)}, {s(S_T0)}")
            a(f"s_and_b32 {s(S_KC)}, {s(S_KC)}, {G - 1}")
            a(f"s_mul_i32 {s(S_KC)}, {s(S_KC)}, {mul}")
        if cfg.prio: a(f"s_setprio {cfg.prio}")
        a(f"v_lshrrev_b32 v2, 3, v1")
        a(f"v_lshrrev_b32 v3, 4, v1")
        a(f"v_and_b32 v4, 7, v1")
        a(f"v_xor_b32 v5, v4, v3")
        a(f"s_lshl_b32 {s(S_T0)}, {s(S_RB)}, 2")
        a(f"s_add_u32 {s(S_T0)}, {s(S_T0)}, {s(S_L)}")
        a(f"s_mul_i32 {s(S_T0)}, {s(S_T0)}, {32*1280}")
        a(f"v_mul_u32_u24 v6, 1280, v2")
        a(f"v_lshl_add_u32 v6, v5, 4, v6")
        a(f"v_add_u32 {v(VO)}, {s(S_T0)}, v6")
        a(f"v_xor_b32 v7, 64, {v(VO)}")
        a(f"v_add_u32 {v(VO+1)}, 10240, v7")
        a(f"v_add_u32 {v(VO+2)}, 20480, {v(VO)}")
        a(f"v_add_u32 {v(VO+3)}, 30720, v7")
        a(f"s_lshl_b32 {s(S_DEST)}, {s(S_L)}, 12")
        for n in range(1, 4): a(f"s_add_u32 {s(S_DEST+n)}, {s(S_DEST)}, {1024*n}")
        a(f"s_lshl_b32 {s(S_OA)}, {s(S_KC)}, 7")
        a("s_waitcnt lgkmcnt(0)")
        if cfg.light: a(f"s_mov_b32 s3, {s(S_MASK)}")
        self.stamp(1)
        self.dbgt(2)
        srd(a, R_X, P_X, 2048 * 1280)
        srds = [R_X]*4 + [R_W]*3 + [R_MID]*2 + [R_W1]*2
        soffs = [S_OA]*4 + [S_OW]*3 + [S_OM]*2 + [S_OH]*2
        def dma(k, n):
            if cfg.xskip and k >= 3 and n >= 11 - cfg.xskip: return
            a(f"s_add_u32 m0, {s(S_DEST+n)}, {(k % 3) * SLOT}")
            a(f"buffer_load_dwordx4 {v(VO+n if n < cfg.xd or k < 2 else 5)}, {s(srds[n],4)}, {s(soffs[n])} offen lds")
        for n in range(4): dma(0, n)
        srd(a, R_W, P_W, 640 * 3840)
        srd(a, R_W1, P_W1, 640 * 3072)
        def wrow(dst, i, valid_check):
            a(f"v_add_u32 v6, {s(S_T1)}, v1")
            if i: a(f"v_add_u32 v6, {64*i}, v6")
            a(f"v_mul_u32_u24 v7, 6554, v6")
            a(f"v_lshrrev_b32 v7, 16, v7")
            a(f"v_mad_i32_i24 v8, v7, -10, v6")
            a(f"v_lshrrev_b32 v9, 1, v7")
            a(f"v_xor_b32 v9, v9, v7")
            a(f"v_and_b32 v9, 4, v9")
            a(f"v_mul_u32_u24 v9, 3, v9")
            a(f"v_xor_b32 v7, v7, v9")
            a(f"v_mul_u32_u24 v7, 3840, v7")
            a(f"v_lshl_add_u32 v7, v8, 4, v7")
            a(f"v_add_u32 {v(dst)}, {s(S_T2)}, v7")
            if valid_check:
                a(f"v_cmp_gt_u32 vcc, 640, v6")
                a(f"v_mov_b32 v9, {hex(OOB)}")
                a(f"v_cndmask_b32 {v(dst)}, v9, {v(dst)}, vcc")
        a(f"s_mul_i32 {s(S_OW)}, {s(S_KC)}, {64*3840}")
        a(f"s_mul_i32 {s(S_OH)}, {s(S_KC)}, {64*3072}")
        a(f"s_mul_i32 {s(S_T3)}, {s(S_HG)}, 384")
        a(f"s_cmp_lg_u32 {s(S_TY)}, 0")
        a(f"s_cbranch_scc1 Lld_setq")
        for i in range(3): a(f"s_mov_b32 {s(R_MID+i)}, {s(R_W+i)}")
        a(f"s_mov_b32 {s(R_MID+3)}, 0x20000")
        a(f"s_mov_b32 {s(S_OM)}, {s(S_OW)}")
        a(f"v_lshrrev_b32 v6, 1, v4")
        a(f"v_xor_b32 v6, v6, v3")
        a(f"v_and_b32 v7, 1, v4")
        a(f"v_lshl_add_u32 v6, v6, 1, v7")
        a(f"v_and_b32 v7, 4, v2")
        a(f"v_add_u32 v7, v7, v2")
        a(f"v_mul_u32_u24 v7, 3072, v7")
        a(f"v_lshl_add_u32 v6, v6, 4, v7")
        a(f"s_mul_i32 {s(S_T0)}, {s(S_L)}, {16*3072}")
        a(f"s_add_u32 {s(S_T0)}, {s(S_T0)}, {s(S_T3)}")
        a(f"v_add_u32 {v(VO+9)}, {s(S_T0)}, v6")
        a(f"v_add_u32 {v(VO+10)}, {4*3072}, {v(VO+9)}")
        a(f"s_lshl_b32 {s(S_T0)}, {s(S_L)}, 11")
        a(f"s_add_u32 {s(S_DEST+9)}, {s(S_T0)}, 36864")
        a(f"s_add_u32 {s(S_DEST+10)}, {s(S_T0)}, {36864+1024}")
        dma(0, 9); dma(0, 10)
        a(f"s_and_b32 {s(S_T1)}, {s(S_L)}, 1")
        a(f"s_mul_i32 {s(S_T1)}, {s(S_T1)}, 320")
        a(f"s_lshr_b32 {s(S_T2)}, {s(S_L)}, 1")
        a(f"s_mul_i32 {s(S_T2)}, {s(S_T2)}, 1280")
        a(f"s_mul_i32 {s(S_T0)}, {s(S_HG)}, 160")
        a(f"s_add_u32 {s(S_T2)}, {s(S_T2)}, {s(S_T0)}")
        a(f"s_add_u32 {s(S_T2)}, {s(S_T2)}, 1280")
        a(f"s_mul_i32 {s(S_T0)}, {s(S_L)}, 5120")
        for i in range(5):
            a(f"s_add_u32 {s(S_DEST+4+i)}, {s(S_T0)}, {16384 + 1024*i}")
            wrow(VO + 4 + i, i, False)
            dma(0, 4 + i)
        a(f"s_branch Lld_setdone")
        a.label('Lld_setq')
        for i in range(3): a(f"s_mov_b32 {s(R_MID+i)}, {s(R_W1+i)}")
        a(f"s_mov_b32 {s(R_MID+3)}, 0x20000")
        a(f"s_mov_b32 {s(S_OM)}, {s(S_OH)}")
        a(f"s_add_u32 {s(S_T3)}, {s(S_T3)}, 128")
        a(f"v_and_b32 v8, 15, v1")
        a(f"v_lshrrev_b32 v6, 1, v8")
        a(f"v_xor_b32 v6, v6, v3")
        a(f"v_and_b32 v7, 1, v8")
        a(f"v_lshl_add_u32 v6, v6, 1, v7")
        a(f"v_mul_u32_u24 v7, 3072, v3")
        a(f"v_lshl_add_u32 v6, v6, 4, v7")
        a(f"v_xor_b32 v7, 128, v6")
        a(f"s_mul_i32 {s(S_T0)}, {s(S_L)}, {16*3072}")
        a(f"s_add_u32 {s(S_T0)}, {s(S_T0)}, {s(S_T3)}")
        a(f"v_add_u32 {v(VO+7)}, {s(S_T0)}, v6")
        a(f"v_add_u32 v7, {s(S_T0)}, v7")
        a(f"v_add_u32 {v(VO+8)}, {8*3072}, v7")
        a(f"v_add_u32 {v(VO+9)}, {4*3072}, {v(VO+7)}")
        a(f"v_add_u32 {v(VO+10)}, {12*3072}, v7")
        a(f"s_lshl_b32 {s(S_T0)}, {s(S_L)}, 12")
        for i in range(4):
            a(f"s_add_u32 {s(S_DEST+7+i)}, {s(S_T0)}, {26624 + 1024*i}")
            dma(0, 7 + i)
        a(f"s_mul_i32 {s(S_T1)}, {s(S_L)}, 192")
        a(f"s_mul_i32 {s(S_T2)}, {s(S_HG)}, 160")
        a(f"s_mul_i32 {s(S_T0)}, {s(S_L)}, 3072")
        for i in range(3):
            a(f"s_add_u32 {s(S_DEST+4+i)}, {s(S_T0)}, {16384 + 1024*i}")
            if i:
                a(f"s_cmp_eq_u32 {s(S_L)}, 3")
                a(f"s_cselect_b32 {s(S_DEST+4+i)}, {43008 + 1024*(i-1)}, {s(S_DEST+4+i)}")
            wrow(VO + 4 + i, i, i > 0)
            dma(0, 4 + i)
        a.label('Lld_setdone')
        self.stamp(40)
        def advance():
            a(f"s_add_u32 {s(S_KC)}, {s(S_KC)}, 1")
            a(f"s_cmp_eq_u32 {s(S_KC)}, 10")
            a(f"s_cselect_b32 {s(S_KC)}, 0, {s(S_KC)}")
            a(f"s_lshl_b32 {s(S_OA)}, {s(S_KC)}, 7")
            a(f"s_mul_i32 {s(S_OW)}, {s(S_KC)}, {64*3840}")
            a(f"s_mul_i32 {s(S_OH)}, {s(S_KC)}, {64*3072}")
            a(f"s_cmp_lg_u32 {s(S_TY)}, 0")
            a(f"s_cselect_b32 {s(S_OM)}, {s(S_OH)}, {s(S_OW)}")
        n1 = cfg.n1

        def idle_setup():
            srd(a, R_WS, P_WS, WS_SIZE)
            self.calc_u()
            a("v_mov_b32 v42, 0")
            a("v_mov_b32 v40, 0")
            L = self.lab('nc')
            a(f"s_or_b32 {s(S_T0)}, {s(S_L)}, s2")
            a(f"s_cbranch_scc1 {L}")
            if cfg.xlat:
                n, ptr, stride = cfg.xlat
                a("s_waitcnt vmcnt(0)")
                a("v_mov_b32 v50, 4096")
                for _ in range(n):
                    a(f"global_load_dword v51, v50, {s(ptr,2)}")
                    a(f"v_add_u32 v50, {stride}, v50")
                    a("s_waitcnt vmcnt(0)")
            a(f"s_load_dword {s(S_T0)}, {s(P_WS,2)}, 0")
            a("s_waitcnt lgkmcnt(0)")
            a(f"s_mul_i32 {s(S_T0)}, {s(S_T0)}, 0x9E3779B1")
            a(f"s_add_u32 {s(S_T0)}, {s(S_T0)}, 0x7F4A7C15")
            a(f"s_cmp_eq_u32 {s(S_T0)}, 0")
            a(f"s_cselect_b32 {s(S_T0)}, 1, {s(S_T0)}")
            a(f"v_mov_b32 v43, {s(S_T0)}")
            a(f"global_store_dword v42, v43, {s(P_DBG,2)} sc1")
            a(f"global_store_dword v42, v43, {s(P_WS,2)} sc1")
            a.label(L)
            a(f"v_add_u32 v0, {self.CT}, v0")
            a(f"v_mov_b32 v100, {hex(OOB)}")
            a(f"v_mov_b32 v101, {hex(OOB)}")
            if cfg.xd < 11: a(f"v_mov_b32 v5, {hex(OOB)}")
            a(f"v_lshlrev_b32 v39, 4, v1")
            a(f"v_lshl_add_u32 v10, v1, 2, {s(S_T3)}")
            srd(a, R_BI, P_B1, 3072)
            a(f"v_mov_b32 v6, {hex(OOB)}")
            a(f"v_cmp_eq_u32 vcc, 0, v1")
            fs = cfg.fs; gs = fs + 5
            assert fs == 7
            a(f"v_cmp_gt_u32 {s(S_MASK,2)}, 32, v1")
            a(f"s_lshl_b32 {s(S_T0)}, {s(S_RB)}, {gs}")
            a(f"s_lshl_b32 {s(S_T1)}, {s(S_HG)}, {fs}")
            a(f"s_add_u32 {s(S_T0)}, {s(S_T0)}, {s(S_T1)}")
            a(f"s_lshl_b32 {s(S_T1)}, {s(S_TY)}, {fs + 3}")
            a(f"s_add_u32 {s(S_T1)}, {s(S_T1)}, {s(S_T0)}")
            a(f"s_add_u32 {s(S_T1)}, {s(S_T1)}, {WS_FH}")
            a(f"v_lshl_add_u32 v7, v1, 2, {s(S_T1)}")
            a(f"v_cndmask_b32 {v(V_FH)}, v6, v7, {s(S_MASK,2)}")
            a(f"s_add_u32 {s(S_T3)}, {s(S_T0)}, {WS_FO}")
            a(f"s_cmp_lg_u32 {s(S_TY)}, 0")
            a(f"s_cselect_b32 {s(S_T3)}, {s(S_T3)}, {hex(OOB)}")
            a(f"v_lshl_add_u32 v7, v1, 2, {s(S_T3)}")
            a(f"v_cndmask_b32 {v(V_F2)}, v6, v7, {s(S_MASK,2)}")
            a(f"s_lshl_b32 {s(S_T0)}, {s(S_RB)}, 7")
            a(f"s_and_b32 {s(S_T1)}, {s(S_U)}, 1")
            a(f"s_lshl_b32 {s(S_T1)}, {s(S_T1)}, 9")
            a(f"s_lshr_b32 {s(S_T2)}, {s(S_U)}, 1")
            a(f"s_lshl_b32 {s(S_T2)}, {s(S_T2)}, 2")
            a(f"s_add_u32 {s(S_T1)}, {s(S_T1)}, {s(S_T2)}")
            a(f"s_lshl_b32 {s(S_T2)}, {s(S_RB)}, 4")
            a(f"s_cmp_eq_u32 {s(S_TY)}, {cfg.pkty}")
            a(f"s_cselect_b32 {s(S_T2)}, 0, {s(S_T2)}")
            a(f"s_add_u32 {s(S_T1)}, {s(S_T1)}, {s(S_T2)}")
            a(f"s_add_u32 {s(S_T1)}, {s(S_T1)}, {WS_FP}")
            a(f"v_mov_b32 v7, {s(S_T1)}")
            a(f"v_cndmask_b32 {v(V_FP)}, v6, v7, vcc")
            a(f"s_add_u32 {s(S_T0)}, {s(S_T0)}, {WS_FS}")
            a(f"s_lshl_b32 {s(S_T1)}, {s(S_COL)}, 7")
            a(f"s_add_u32 {s(S_T1)}, {s(S_T1)}, {WS_FS + 2048}")
            a(f"s_lshl_b32 {s(S_T2)}, {s(S_S0)}, 2")
            a(f"s_add_u32 {s(S_T3)}, {s(S_T0)}, {s(S_T2)}")
            a(f"s_cmp_lt_u32 {s(S_COL)}, 10")
            a(f"s_cselect_b32 {s(S_T3)}, {s(S_T3)}, {hex(OOB)}")
            a(f"v_mov_b32 v7, {s(S_T3)}")
            a(f"v_cndmask_b32 {v(V_FS)}, v6, v7, vcc")
            a(f"s_add_u32 {s(S_T3)}, {s(S_T1)}, {s(S_T2)}")
            a(f"s_cmp_lt_u32 {s(S_RB)}, 10")
            a(f"s_cselect_b32 {s(S_T3)}, {s(S_T3)}, {hex(OOB)}")
            a(f"v_writelane_b32 {v(V_FS)}, {s(S_T3)}, 1")
            a(f"s_sub_u32 {s(S_T1)}, {s(S_T1)}, 40")
            a(f"v_lshl_add_u32 v7, v1, 2, {s(S_T0)}")
            a(f"v_lshl_add_u32 v8, v1, 2, {s(S_T1)}")
            a(f"v_cmp_gt_u32 vcc, 10, v1")
            a(f"v_cndmask_b32 {v(V_QS)}, v8, v7, vcc")
            a(f"s_lshr_b32 {s(S_T1)}, {s(S_N)}, 2")
            a(f"s_lshl_b32 {s(S_T1)}, {s(S_T1)}, 9")
            a(f"s_add_u32 {s(S_T1)}, {s(S_T1)}, {WS_FP}")
            a(f"v_lshl_add_u32 {v(V_QP)}, v1, 3, {s(S_T1)}")
            a(f"s_and_b32 {s(S_T1)}, {s(S_N)}, 3")
            a(f"s_lshl_b32 {s(S_T1)}, {s(S_T1)}, 4")
            a(f"v_add_u32 v7, {s(S_T1)}, {v(V_QP)}")
            a(f"v_cndmask_b32 {v(V_QP)}, v7, {v(V_QP)}, {s(S_MASK,2)}")
            a(f"s_lshr_b32 {s(S_T1)}, {s(S_TT)}, 1")
            a(f"s_lshl_b32 {s(S_T1)}, {s(S_T1)}, {gs}")
            a(f"s_add_u32 {s(S_T1)}, {s(S_T1)}, {WS_FH}")
            a(f"v_min_u32 v9, 7, v1")
            a(f"v_lshl_add_u32 {v(V_QK)}, v9, {fs}, {s(S_T1)}")
            a(f"v_add_u32 {v(V_QH)}, {8 << fs}, {v(V_QK)}")
            a(f"v_add_u32 v33, {16 << fs}, {v(V_QK)}")
            a(f"s_add_u32 {s(S_T1)}, {s(S_T1)}, {WS_FO - WS_FH}")
            a(f"v_lshl_add_u32 {v(V_QO)}, v9, {fs}, {s(S_T1)}")
            a(f"v_and_b32 v6, 15, v1")
            a(f"s_lshl_b32 {s(S_T0)}, {s(S_L)}, 5")
            a(f"v_add_u32 v6, {s(S_T0)}, v6")
            a(f"v_mul_u32_u24 v6, {OP}, v6")
            a(f"v_lshl_add_u32 v6, v3, 3, v6")
            a(f"v_add_u32 v38, {OEX}, v6")
            a(f"s_lshl_b32 {s(S_T0)}, {s(S_RB)}, 3")
            a(f"s_lshl_b32 {s(S_T1)}, {s(S_L)}, 1")
            a(f"s_add_u32 {s(S_T0)}, {s(S_T0)}, {s(S_T1)}")
            a(f"s_lshl_b32 {s(S_T0)}, {s(S_T0)}, 3")
            a(f"s_add_u32 {s(S_T0)}, {s(S_T0)}, {s(S_HG)}")
            a(f"s_mul_i32 {s(S_T0)}, {s(S_T0)}, 2560")
            a(f"s_add_u32 {s(S_PKS)}, {s(S_T0)}, {WS_O2}")
        def if_pack():
            L = self.lab('pk')
            a(f"s_cmp_gt_u32 {s(S_U)}, 135")
            a(f"s_cbranch_scc1 {L}")
            return L
        def p2_setup():
            a(f"s_mul_i32 {s(S_T0)}, {s(S_N)}, {68*5120}")
            a(f"s_and_b32 {s(S_T1)}, {s(S_L)}, 1")
            a(f"s_mul_i32 {s(S_T1)}, {s(S_T1)}, 5120")
            a(f"s_add_u32 {s(S_T0)}, {s(S_T0)}, {s(S_T1)}")
            a(f"s_add_u32 {s(S_T0)}, {s(S_T0)}, {WS_P2}")
            a(f"v_add_u32 {v(V_P2)}, {s(S_T0)}, v39")
            a(f"s_mul_i32 {s(S_DEST)}, {s(S_L)}, 5120")
            a(f"s_lshr_b32 {s(S_T1)}, {s(S_L)}, 1")
            a(f"s_mul_i32 {s(S_OM)}, {s(S_T1)}, {24*5120}")
            a(f"s_mul_i32 {s(S_OH)}, {s(S_T1)}, {10*5120}")
            a(f"s_add_u32 {s(S_OH)}, {s(S_OH)}, {48*5120}")
            self.rot2(S_KC)
        def p2_off(i):
            if i < 12:
                self.chunk_id(S_OA, S_T0, i)
                a(f"s_mul_i32 {s(S_OA)}, {s(S_OA)}, 10240")
                a(f"s_add_u32 {s(S_OA)}, {s(S_OA)}, {s(S_OM)}")
            else:
                a(f"s_add_u32 {s(S_OA)}, {s(S_OH)}, {(i-12)*10240}")
        def p2_chunk(i):
            p2_off(i)
            a(f"s_add_u32 m0, {s(S_DEST)}, {RING[i % 6]}")
            for j in range(4):
                a(f"buffer_load_dwordx4 {v(V_P2)}, {s(R_WS,4)}, {s(S_OA)} offen offset:{1024*j} {cfg.bsc} lds")
            a(f"s_add_u32 m0, {s(S_DEST)}, {RING[i % 6] + 4096}")
            a(f"s_add_u32 {s(S_OA)}, {s(S_OA)}, 4096")
            a(f"buffer_load_dwordx4 {v(V_P2)}, {s(R_WS,4)}, {s(S_OA)} offen {cfg.bsc} lds")
        def sreg(i): return 48 + 20 * cfg.staged.index(i)
        def p2_stage(i):
            p2_off(i)
            for j in range(4):
                a(f"buffer_load_dwordx4 {v(sreg(i)+4*j,4)}, {v(V_P2)}, {s(R_WS,4)}, {s(S_OA)} offen offset:{1024*j} {cfg.bsc}")
            a(f"s_add_u32 {s(S_OA)}, {s(S_OA)}, 4096")
            a(f"buffer_load_dwordx4 {v(sreg(i)+16,4)}, {v(V_P2)}, {s(R_WS,4)}, {s(S_OA)} offen {cfg.bsc}")
        def p2_put(i):
            base = RING[i % 6]
            for j in range(5):
                a(f"ds_write_b128 {v(2 + base // SLOT)}, {v(sreg(i)+4*j,4)} offset:{base % SLOT + 1024*j}")
        def heavy(k):
            if k == 104:
                Lq = self.lab('sq'); Le = self.lab('se')
                a(f"s_cmp_lg_u32 {s(S_TY)}, 0")
                a(f"s_cbranch_scc1 {Lq}")
                self.l1_setup()
                a(f"s_branch {Le}")
                a.label(Lq)
                for n in range(2): self.kvt_addr(n)
                a(f"s_mul_i32 {s(S_T0)}, {s(S_HG)}, {KP_STRIDE}")
                a(f"s_add_u32 {s(S_PKO)}, {s(S_T0)}, {WS_KT}")
                a.label(Le)
            if k == 0:
                L = self.only_l(1)
                a(f"s_mov_b32 m0, {B1L}")
                a(f"buffer_load_dword v10, {s(R_BI,4)}, 0 offen lds")
                a.label(L)
            if k == 100 + cfg.ks + 1:
                a("s_waitcnt lgkmcnt(0)")
                for ch in range(1, 10):
                    a(f"v_add_f32 v44, v44, {v(44+2*ch)}")
                    a(f"v_add_f32 v45, v45, {v(45+2*ch)}")
                a(f"s_and_b32 {s(S_T1)}, {s(S_L)}, 1")
                a(f"s_lshl_b32 {s(S_T1)}, {s(S_T1)}, 6")
                a(f"v_add_u32 v53, {s(S_T1)}, v1")
                a(f"v_lshlrev_b32 v54, 3, v53")
                a(f"v_add_u32 v54, {ST_CS}, v54")
                a(f"v_lshlrev_b32 v53, 2, v53")
                a(f"v_add_u32 v53, {ST}, v53")
                a(f"v_mul_f32 v46, {lit(1/640)}, v44")
                a(f"v_mul_f32 v47, v46, v46")
                a(f"v_mov_b32 v48, {lit(1/640)}")
                a(f"v_fma_f32 v55, v45, v48, -v47")
                a(f"v_max_f32 v55, 0, v55")
                a(f"v_add_f32 v47, {lit(1e-5)}, v55")
                a(f"v_rsq_f32 v48, v47")
                a(f"v_mul_f32 v49, v48, v48")
                a(f"v_fmaak_f32 v49, v49, v55, {lit(1e-5)}")
                a(f"v_rsq_f32 v49, v49")
                a(f"v_mul_f32 v50, v48, v49")
                a(f"v_mul_f32_e64 v51, -v46, v48")
                a(f"v_mul_f32_e64 v52, -v46, v50")
            if k == 8:
                if cfg.ks == 7: heavy(108)
                Lc = self.lab('stc'); Ld = self.lab('std')
                a(f"s_cmp_ge_u32 {s(S_L)}, 2")
                a(f"s_cbranch_scc1 {Lc}")
                a(f"ds_write_b32 v53, v48")
                a(f"ds_write_b32 v53, v51 offset:512")
                a(f"ds_write_b32 v53, v50 offset:1024")
                a(f"ds_write_b32 v53, v52 offset:1536")
                a(f"s_branch {Ld}")
                a.label(Lc)
                a(f"ds_write_b64 v54, v[44:45]")
                a.label(Ld)
                L = self.only_l(0)
                a(f"v_mov_b32 v6, {ST_N}")
                a(f"ds_write2_b32 v6, v41, v42 offset1:1")
                a(f"ds_write_b32 v6, v42 offset:8")
                a.label(L)
                srd(a, R_BI, P_B2, 1280)
                L = self.only_l(3)
                a(f"s_mul_i32 {s(S_T1)}, {s(S_N)}, 160")
                a(f"v_lshlrev_b32 v6, 2, v1")
                a(f"s_mov_b32 m0, {B2L}")
                a(f"buffer_load_dword v6, {s(R_BI,4)}, {s(S_T1)} offen lds")
                a.label(L)
                p2_setup()
                assert cfg.kp == 8 or cfg.pfs[0] == 0
                for c in range(cfg.pfs[0]): p2_chunk(c)
        for k in range(10):
            n1 = cfg.n10 if k == 0 else cfg.n1
            if cfg.pp1 and k > 0:
                assert cfg.n1 == 11
                if k + 1 < 10:
                    advance()
                    for n in range(cfg.nbq): dma(k + 1, n)
                a("s_barrier")
                heavy(k - 1)
                if k + 1 < 10:
                    for n in range(cfg.nbq, 11): dma(k + 1, n)
                wait = 11 if k + 1 < 10 else 5 * cfg.pfs[0]
            elif k + 1 < 10:
                advance()
                for n in range(n1): dma(k + 1, n)
                wait = n1
            else:
                wait = 5 * cfg.pfs[0]
            if k == 0:
                self.stamp(41); idle_setup()
                if cfg.ldj: self.ldj_setup()
                if cfg.ldd: self.pack_setup(True)
                if cfg.kve: heavy(104)
                self.stamp(42)
            if (k == 5 and not cfg.kve) or (k - 1 == cfg.ks + 1 and cfg.ks < 7): heavy(100 + k - 1)
            if cfg.ldj and k == 3: self.ldj_stores()
            a(f"s_waitcnt vmcnt({0 if cfg.ldj and k == cfg.kz else wait})")
            if k == 3:
                L = self.only_l(0)
                a(f"v_readfirstlane_b32 {s(S_NONCE)}, v40")
                Lp = self.lab('np'); Lq = self.lab('nq')
                a(f"s_mov_b32 {s(S_CNT)}, 0")
                a.label(Lp)
                a(f"s_cmp_lg_u32 {s(S_NONCE)}, 0")
                a(f"s_cbranch_scc1 {Lq}")
                a(f"s_add_u32 {s(S_CNT)}, {s(S_CNT)}, 1")
                a(f"s_cmp_gt_u32 {s(S_CNT)}, 0x40000")
                a(f"s_cbranch_scc1 {Lq}")
                a(f"global_load_dword v40, v42, {s(P_DBG,2)} sc1")
                a("s_waitcnt vmcnt(0)")
                a(f"v_readfirstlane_b32 {s(S_NONCE)}, v40")
                a("s_nop 1")
                a(f"s_branch {Lp}")
                a.label(Lq)
                a(f"v_mov_b32 v41, {s(S_NONCE)}")
                a.label(L)
            if k == cfg.ks:
                L = self.only_l(0); self.poll_check(44, V_QS, 20); a.label(L)
            if k == cfg.kp and cfg.pk0 == 1:
                L = self.only_l(0); self.poll_check(64, V_QP, 34, 2); a.label(L)
            if k == 9: a("s_waitcnt lgkmcnt(0)")
            a("s_barrier")
            self.stamp(2 + k)
            if k == 0: self.dbgt(3)
            if k == 4: self.dbgt(4)
            if k == 1 and cfg.prew:
                L = self.only_l(0)
                a(f"buffer_store_dword v42, {v(V_FH)}, {s(R_WS,4)}, 0 offen sc1")
                a(f"buffer_store_dword v42, {v(V_F2)}, {s(R_WS,4)}, 0 offen sc1")
                a(f"s_cmp_eq_u32 {s(S_TY)}, 0")
                a(f"s_cbranch_scc1 {L}")
                a(f"buffer_store_dword v42, {v(V_FH)}, {s(R_WS,4)}, 0 offen offset:1024 sc1")
                a.label(L)
            if k == 2:
                L = self.only_l(0)
                a(f"global_load_dword v40, v42, {s(P_DBG,2)} sc1")
                a.label(L)
            if cfg.ldd and k == cfg.ldd: self.ldj_dma()
            if cfg.cpf == 4 and k == cfg.cpi: self.code_prefetch(160)
            if cfg.ldj:
                if k == 1: self.ldj_dma()
                if k == 2: self.ldj_reads()
                if k == cfg.cpi and cfg.cpf: self.code_prefetch(160)
            if k == (cfg.kz if cfg.ldj else 3):
                L = self.only_l(0); self.flag_store(V_FS); a.label(L)
            if k == (cfg.kz if cfg.ldj else cfg.pk0 + (4 if cfg.pk0 == 1 else 5)):
                L = if_pack(); L2 = self.only_l(0); self.flag_store(V_FP); a.label(L2); a.label(L)
            if k == cfg.ks - 1:
                L = self.only_l(0); self.poll_issue(44, V_QS); a.label(L)
            if k == cfg.kp - 1 and cfg.pk0 == 1:
                L = self.only_l(0); self.poll_issue(64, V_QP, 2); a.label(L)
            if k == cfg.ks:
                a(f"s_cmp_lt_u32 {s(S_L)}, 2")
                a(f"s_cselect_b32 {s(S_T0)}, {s(S_RB)}, {s(S_COL)}")
                a(f"s_mov_b32 {s(S_T1)}, {WS_CP}")
                a(f"s_cselect_b32 {s(S_T1)}, {WS_RP}, {s(S_T1)}")
                a(f"s_mul_i32 {s(S_T0)}, {s(S_T0)}, 10240")
                a(f"s_add_u32 {s(S_T0)}, {s(S_T0)}, {s(S_T1)}")
                a(f"s_and_b32 {s(S_T1)}, {s(S_L)}, 1")
                a(f"s_mul_i32 {s(S_T1)}, {s(S_T1)}, 5120")
                a(f"s_add_u32 {s(S_T0)}, {s(S_T0)}, {s(S_T1)}")
                a(f"s_mul_i32 {s(S_T2)}, {s(S_L)}, 5120")
                a(f"s_add_u32 m0, {s(S_T2)}, {SCR}")
                for j in range(4):
                    a(f"buffer_load_dwordx4 v39, {s(R_WS,4)}, {s(S_T0)} offen offset:{1024*j} sc1 lds")
                a(f"s_add_u32 m0, {s(S_T2)}, {SCR + 4096}")
                a(f"s_add_u32 {s(S_T0)}, {s(S_T0)}, 4096")
                a(f"buffer_load_dwordx4 v39, {s(R_WS,4)}, {s(S_T0)} offen sc1 lds")
            if k == cfg.ks + 1:
                a(f"s_lshr_b32 {s(S_T0)}, {s(S_L)}, 1")
                a(f"s_mul_i32 {s(S_T0)}, {s(S_T0)}, 10240")
                a(f"s_and_b32 {s(S_T1)}, {s(S_L)}, 1")
                a(f"s_lshl_b32 {s(S_T1)}, {s(S_T1)}, 9")
                a(f"s_add_u32 {s(S_T0)}, {s(S_T0)}, {s(S_T1)}")
                a(f"s_add_u32 {s(S_T0)}, {s(S_T0)}, {SCR}")
                a(f"v_lshl_add_u32 v6, v1, 3, {s(S_T0)}")
                for ch in range(10): a(f"ds_read_b64 {v(44+2*ch,2)}, v6 offset:{1024*ch}")
            if k + 1 < 10:
                for n in range(n1, 11): dma(k + 1, n)
            if not cfg.pp1: heavy(k)
            if k == 9:
                for c in range(cfg.pfs[0], sum(cfg.pfs)): p2_chunk(c)
        if cfg.pp1: a("s_barrier")
        if cfg.pk0 != 1:
            assert sum(cfg.pfs) == 0
            L = self.only_l(0); a(f"s_sleep {cfg.fpd}"); self.poll(46, V_QP, 34, 2); a.label(L)
        a("s_waitcnt lgkmcnt(0)")
        a("s_barrier")
        self.stamp(12); self.dbgt(5)
        a(f"s_setprio {cfg.pw}")
        a(f"s_lshr_b32 {s(S_T0)}, {s(S_L)}, 1")
        a(f"s_mul_i32 {s(S_T0)}, {s(S_T0)}, {KVT_C - 4096}")
        a(f"s_lshl_b32 {s(S_T1)}, {s(S_L)}, 11")
        a(f"s_add_u32 {s(S_T0)}, {s(S_T0)}, {s(S_T1)}")
        a(f"s_add_u32 {s(S_T0)}, {s(S_T0)}, {KVT}")
        a(f"v_add_u32 v6, {s(S_T0)}, v39")
        for e in range(4): a(f"v_mov_b32 {v(44+e)}, 0")
        a(f"ds_write_b128 v6, v[44:47]")
        a(f"ds_write_b128 v6, v[44:47] offset:1024")
        for c in range(sum(cfg.pfs), 6 - cfg.pfw): p2_chunk(c)
        if cfg.wopf:
            nsh = 8 if cfg.map2 == 'A' else 4
            per = 102400 // nsh // 4
            a(f"s_and_b32 {s(S_T0)}, {s(S_IDX)}, {nsh - 1}")
            a(f"s_lshl_b32 {s(S_T0)}, {s(S_T0)}, 2")
            a(f"s_add_u32 {s(S_T0)}, {s(S_T0)}, {s(S_L)}")
            a(f"s_mul_i32 {s(S_T0)}, {s(S_T0)}, {per}")
            a(f"s_mul_i32 {s(S_T1)}, {s(S_N)}, {68*5120}")
            a(f"s_add_u32 {s(S_T0)}, {s(S_T0)}, {s(S_T1)}")
            a(f"s_add_u32 {s(S_T0)}, {s(S_T0)}, {WS_P2 + 48*5120}")
            a(f"v_min_u32 v6, {per // 128 - 1}, v1")
            a(f"v_lshlrev_b32 v6, 7, v6")
            a(f"buffer_load_dword v94, v6, {s(R_WS,4)}, {s(S_T0)} offen sc1")
        a(f"v_mov_b32 v6, {ST_N}")
        a(f"ds_read_b32 v41, v6")
        a(f"s_cmp_lg_u32 {s(S_TY)}, 0")
        a(f"s_cbranch_scc1 Lld_eq")
        a("s_barrier")
        self.stamp(14)
        a.label('Lld_eq')
        a("s_waitcnt lgkmcnt(0)")
        def spin(off, n):
            Lr = self.lab('c8r'); Lg = self.lab('c8g')
            a(f"v_mov_b32 v6, {ST_C + off}")
            a(f"s_mov_b32 {s(S_CNT)}, 0")
            a.label(Lr)
            a(f"ds_read_b32 v7, v6")
            a("s_waitcnt lgkmcnt(0)")
            a(f"v_readfirstlane_b32 {s(S_T0)}, v7")
            a(f"s_cmp_ge_u32 {s(S_T0)}, {n}")
            a(f"s_cbranch_scc1 {Lg}")
            a("s_sleep 1")
            a(f"s_add_u32 {s(S_CNT)}, {s(S_CNT)}, 1")
            a(f"s_cmp_lt_u32 {s(S_CNT)}, 0x400000")
            a(f"s_cbranch_scc1 {Lr}")
            a.label(Lg)
        L = self.only_l(0)
        Lk = self.lab('fk'); Lj = self.lab('fj')
        a("s_setprio 3")
        a(f"s_cmp_eq_u32 {s(S_TY)}, 0")
        a(f"s_cbranch_scc1 {Lk}")
        spin(0, 4)
        self.flag_store(V_FH); a("s_waitcnt vmcnt(0)")
        self.stamp(16)
        self.poll_issue(44, V_QH)
        spin(4, 4)
        a(f"buffer_store_dword v41, {v(V_FH)}, {s(R_WS,4)}, 0 offen offset:1024 sc1")
        self.stamp(17)
        a(f"s_branch {Lj}")
        a.label(Lk)
        if cfg.kvd > 0: a(f"s_sleep {cfg.kvd}")
        elif cfg.kvd < 0: spin(4 * (-cfg.kvd - 1), 4)
        self.poll_issue(44, V_QH)
        a.label(Lj)
        for c in range(6 - cfg.pfw, 6): p2_chunk(c)
        a(f"s_waitcnt vmcnt({5 * cfg.pfw})")
        self.poll_check(44, V_QH, 8)
        a(f"s_setprio {cfg.pl}")
        if cfg.pfw:
            L1 = self.lab('pfw')
            a(f"s_branch {L1}")
            a.label(L)
            spin(4, 4)
            for c in range(6 - cfg.pfw, 6): p2_chunk(c)
            a.label(L1)
        else:
            a.label(L)
        self.l1_run(spin)
        a(f"s_setprio {cfg.pl}")
        self.stamp(19)
        self.nb_ld_kv = a.nbar - nb0
        self.nb_ld_q = a.nbar - nb0 - 1
        nb3 = a.nbar
        ka = cfg.ka
        assert cfg.oil and not cfg.pfw and ka >= 2
        ko = 13 if cfg.late else cfg.ko
        def if_q():
            L = self.lab('iq')
            a(f"s_cmp_eq_u32 {s(S_TY)}, 0")
            a(f"s_cbranch_scc1 {L}")
            return L
        def kt_loads():
            for n in range(2): a(f"buffer_load_dwordx4 {v(48+4*n,4)}, {v(100+n)}, {s(R_WS,4)}, {s(S_PKO)} offen sc1")
        def kt_scatter(younger):
            L = if_q(); Lr = self.lab('kr'); Lg = self.lab('kg')
            a(f"s_waitcnt vmcnt({younger})")
            a(f"s_mov_b32 {s(S_CNT)}, 0")
            a.label(Lr)
            a(f"v_cmp_ne_u32 vcc, v50, v41")
            a(f"v_cmp_ne_u32 {s(S_MASK,2)}, v54, v41")
            a(f"s_and_b64 {s(S_MASK,2)}, {s(S_MASK,2)}, {s(M_V,2)}")
            a(f"s_or_b64 vcc, vcc, {s(S_MASK,2)}")
            a(f"s_cbranch_scc0 {Lg}")
            a(f"s_add_u32 {s(S_CNT)}, {s(S_CNT)}, 1")
            a(f"s_cmp_gt_u32 {s(S_CNT)}, 0x40000")
            a(f"s_cbranch_scc1 {Lg}")
            if cfg.psl: a(f"s_sleep {cfg.psl}")
            kt_loads()
            a("s_waitcnt vmcnt(0)")
            a(f"s_branch {Lr}")
            a.label(Lg)
            for n in range(2):
                Lz = self.lab('kz')
                if n:
                    a(f"s_mov_b64 exec, {s(M_V,2)}")
                    a(f"s_cbranch_execz {Lz}")
                a(f"ds_write_b64 {v(96+n)}, {v(48+4*n,2)}")
                a(f"s_mov_b64 exec, {s(M_Z[n],2)}")
                a(f"s_cbranch_execz {Lz}")
                for k in range(3):
                    a(f"v_add_u32 {v(96+n)}, {v(96+n)}, {v(98+n)}")
                    a(f"ds_write_b64 {v(96+n)}, {v(48+4*n,2)}")
                a.label(Lz)
                a("s_mov_b64 exec, -1")
            a("s_waitcnt lgkmcnt(0)")
            a.label(L)
        kl = ka - (2 if cfg.kte else 1)
        def tail(aux):
            self.final_prep()
            a("s_waitcnt vmcnt(0)")
            if aux and cfg.late:
                L = self.only_l(0); self.poll_check(44, V_QO, 8); a.label(L)
            a("s_barrier")
            self.stamp(33)
            a("s_barrier")
            self.stamp(37)
            a("s_barrier")
            self.stamp(38); self.dbgt(8)
        a(f"s_bitcmp1_b32 {s(S_L)}, 0")
        a(f"s_cbranch_scc1 Lring")
        for i in range(13):
            if i == ka and not cfg.kte: kt_scatter(0)
            if i == ka + cfg.onc + cfg.fo: a("s_waitcnt vmcnt(0)")
            for kk, vd, va in ((cfg.kb, 46, 33), (cfg.kh, 45, V_QK), (ko, 44, V_QO)):
                if i == kk:
                    L = self.only_l(0); a("s_waitcnt vmcnt(0)"); self.poll_check(vd, va, 8); a.label(L)
            if i: a("s_barrier")
            self.stamp(20 + i)
            if i == 1:
                L = self.only_l(0)
                a(f"s_cmp_lg_u32 {s(S_TY)}, 0")
                a(f"s_cbranch_scc1 {L}")
                self.flag_store(V_FH)
                a.label(L)
            if i == ka + cfg.onc + cfg.fo:
                L = self.only_l(0); self.flag_store(V_F2); a.label(L)
            if i == ka - 1 and cfg.kte: kt_scatter(0)
            for kk, vd, va in ((cfg.kb, 46, 33), (cfg.kh, 45, V_QK), (ko, 44, V_QO)):
                if i == kk - 1:
                    L = self.only_l(0); self.poll_issue(vd, va); a.label(L)
            if i == kl:
                L = if_q(); kt_loads(); a.label(L)
            if i == ka + cfg.onc:
                L = if_q()
                for t in range(4):
                    for k in range(5): a(f"ds_read_b64 {v(104+12*t+2*k,2)}, v38 offset:{16*OP*t + 32*k}")
                a(f"v_lshlrev_b32 v6, 3, v1")
                for t in range(4):
                    a(f"s_waitcnt lgkmcnt({min(15, 15 - 5*t)})")
                    a(f"buffer_store_dwordx4 {v(104+12*t,4)}, v39, {s(R_WS,4)}, {s(S_PKS)} offen sc1")
                    a(f"buffer_store_dwordx4 {v(108+12*t,4)}, v39, {s(R_WS,4)}, {s(S_PKS)} offen offset:1024 sc1")
                    a(f"buffer_store_dwordx2 {v(112+12*t,2)}, v6, {s(R_WS,4)}, {s(S_PKS)} offen offset:2048 sc1")
                    if t < 3: a(f"s_add_u32 {s(S_PKS)}, {s(S_PKS)}, {8*2560}")
                a.label(L)
            if i == max(ka + cfg.onc + 1 + cfg.fo, cfg.kx):
                a(f"s_mul_i32 {s(S_T0)}, {s(S_TT)}, {64*1280}")
                a(f"s_mul_i32 {s(S_T1)}, {s(S_N)}, 160")
                a(f"s_add_u32 {s(S_T1)}, {s(S_T0)}, {s(S_T1)}")
                a(f"s_mul_i32 {s(S_T2)}, {s(S_L)}, 160")
                a(f"s_mul_i32 {s(S_T3)}, {s(S_L)}, 2560")
                for j in range(5):
                    a(f"v_add_u32 v6, {s(S_T2)}, v1")
                    if j: a(f"v_add_u32 v6, {64*j}, v6")
                    a(f"v_mul_u32_u24 v7, 6554, v6")
                    a(f"v_lshrrev_b32 v7, 16, v7")
                    a(f"v_mul_u32_u24 v7, {1280-160}, v7")
                    a(f"v_lshl_add_u32 v7, v6, 4, v7")
                    a(f"s_add_u32 m0, {s(S_T3)}, {XT + 1024*j}")
                    a(f"buffer_load_dwordx4 v7, {s(R_X,4)}, {s(S_T1)} offen lds")
        tail(True)
        self.loader_final()
        nb_aux = a.nbar - nb3
        a.label('Lring')
        nb3 = a.nbar
        a(f"v_add_u32 {v(V_P2)}, {-5120 & 0xffffffff}, {v(V_P2)}")
        a(f"s_sub_u32 {s(S_DEST)}, {s(S_DEST)}, 5120")
        pend = []
        for i in range(13):
            if i == ka and not cfg.kte: kt_scatter(10)
            if i + 1 in pend:
                k = pend.index(i + 1)
                a(f"s_waitcnt vmcnt({10 * (len(pend) - 1 - k)})"); del pend[:k+1]
            if i: a("s_barrier")
            if i == 0: self.dbgt(6)
            if i == 11: self.dbgt(7)
            if i == kl:
                L = if_q(); kt_loads(); a.label(L)
            if 1 <= i <= 11:
                c = i + 5
                p2_off(c)
                for g0 in range(0, 10, 4):
                    a(f"s_add_u32 m0, {s(S_DEST)}, {RING[c % 6] + 1024*g0}")
                    if g0: a(f"s_add_u32 {s(S_OA)}, {s(S_OA)}, 4096")
                    for j in range(min(4, 10 - g0)):
                        a(f"buffer_load_dwordx4 {v(V_P2)}, {s(R_WS,4)}, {s(S_OA)} offen offset:{1024*j} {cfg.bsc} lds")
                pend.append(c)
            if i == ka - 1 and cfg.kte: kt_scatter(20 if kl >= 1 else 10)
        tail(False)
        assert a.nbar - nb3 == nb_aux
        self.nb_ld_p2 = a.nbar - nb3
        self.loader_final()

    def kvt_addr(self, n):
        a = self.a
        a(f"v_add_u32 v70, {(256*n - self.CT) & 0xffffffff}, v0")
        a(f"v_cmp_le_u32 vcc, 210, v70")
        a(f"v_cndmask_b32 v84, 0, 1, vcc")
        a(f"v_mov_b32 v86, -210")
        a(f"v_mad_i32_i24 v85, v84, v86, v70")
        a(f"v_mul_u32_u24 v86, 3121, v85")
        a(f"v_lshrrev_b32 v86, 16, v86")
        a(f"v_mov_b32 v88, -21")
        a(f"v_mad_i32_i24 v87, v86, v88, v85")
        a(f"v_cmp_le_u32 vcc, 5, v86")
        a(f"v_cndmask_b32 v88, 0, 1, vcc")
        a(f"v_lshlrev_b32 v89, 1, v88")
        a(f"v_subrev_u32 v90, 16, v87")
        a(f"v_lshlrev_b32 v90, 2, v90")
        a(f"v_mad_u32_u24 v90, v88, 3, v90")
        a(f"v_add_u32 v91, 1, v88")
        a(f"v_cmp_eq_u32 {s(S_MASK,2)}, 20, v87")
        a(f"v_cndmask_b32 v90, v90, v91, {s(S_MASK,2)}")
        a(f"v_cmp_gt_u32 vcc, 16, v87")
        a(f"v_cndmask_b32 v90, v90, v87, vcc")
        a(f"v_cndmask_b32 v89, 1, v89, vcc")
        a(f"v_and_b32 v91, 3, v86")
        a(f"v_lshl_add_u32 v90, v91, 4, v90")
        a(f"v_lshlrev_b32 v91, 10, v89")
        a(f"v_lshl_add_u32 v91, v90, 4, v91")
        a(f"v_and_b32 v92, 4, v86")
        a(f"v_lshl_add_u32 v91, v92, 1, v91")
        a(f"v_lshrrev_b32 v92, 1, v89")
        a(f"v_lshlrev_b32 v92, 9, v92")
        a(f"v_lshl_add_u32 v92, v90, 3, v92")
        a(f"v_add_u32 v92, 3072, v92")
        a(f"v_cmp_le_u32 vcc, 8, v86")
        a(f"v_cndmask_b32 v91, v91, v92, vcc")
        a(f"v_cndmask_b32 {v(98+n)}, 64, 32, vcc")
        a(f"v_mul_u32_u24 v84, {KVT_C}, v84")
        a(f"v_add_u32 v91, v84, v91")
        a(f"v_add_u32 {v(96+n)}, {KVT}, v91")
        a(f"v_mov_b32 v86, {hex(OOB)}")
        a(f"v_cmp_gt_u32 vcc, 420, v70")
        a(f"v_lshlrev_b32 v70, 4, v70")
        a(f"v_cndmask_b32 {v(100+n)}, v86, v70, vcc")
        a(f"s_and_b64 {s(M_Z[n],2)}, {s(S_MASK,2)}, vcc")
        if n: a(f"s_mov_b64 {s(M_V,2)}, vcc")

    def l1_setup(self):
        a = self.a
        a(f"v_mov_b32 v5, {hex(OOB)}")
        a(f"v_and_b32 v4, 31, v1")
        a(f"s_lshl_b32 {s(S_T0)}, {s(S_RB)}, 5")
        a(f"v_add_u32 v4, {s(S_T0)}, v4")
        a(f"v_cmp_gt_u32 vcc, 420, v4")
        a(f"v_lshlrev_b32 v4, 4, v4")
        a(f"v_lshrrev_b32 v3, 5, v1")
        a(f"v_mul_u32_u24 v3, {8*KP_STRIDE}, v3")
        a(f"v_add_u32 v3, v3, v4")
        a(f"v_cndmask_b32 v3, v5, v3, vcc")
        a(f"s_mov_b64 {s(M_V,2)}, vcc")
        a(f"v_cmp_gt_u32 vcc, 32, v1")
        a(f"s_and_b64 vcc, vcc, {s(M_V,2)}")
        a(f"v_cndmask_b32 v4, v5, v4, vcc")
    def l1_run(self, spin):
        a = self.a
        Ls = self.lab('l1s'); Lr = self.lab('l1r'); Lg = self.lab('l1g')
        a(f"s_cmp_lg_u32 {s(S_L)}, 2")
        a(f"s_cbranch_scc1 {Ls}")
        a(f"s_cmp_lg_u32 {s(S_TY)}, 0")
        a(f"s_cbranch_scc1 {Ls}")
        a(f"s_cmp_ge_u32 {s(S_RB)}, 14")
        a(f"s_cbranch_scc1 {Ls}")
        a(f"s_mul_i32 {s(S_T1)}, {s(S_HG)}, {KP_STRIDE}")
        a(f"s_lshl_b32 {s(S_T2)}, {s(S_T1)}, 4")
        a(f"s_add_u32 {s(S_T1)}, {s(S_T1)}, {WS_KT}")
        a(f"s_add_u32 {s(S_T2)}, {s(S_T2)}, {WS_KP}")
        for e in range(1, 4): a(f"v_lshrrev_b32 {v(88+e)}, {8*e}, v41")
        a(f"v_mov_b32 v88, v41")
        a(f"v_mov_b32 v92, 0xffffff00")
        if self.cfg.l1d: a(f"s_sleep {self.cfg.l1d}")
        else: spin(4 * self.cfg.l1c, 4)
        a(f"s_mov_b32 {s(S_CNT)}, 0")
        D = 48
        a.label(Lr)
        for k in range(8):
            a(f"s_add_u32 {s(S_T3)}, {s(S_T2)}, {k*KP_STRIDE}")
            a(f"buffer_load_dwordx4 {v(D+4*k,4)}, v3, {s(R_WS,4)}, {s(S_T3)} offen sc1")
        if self.cfg.l1in:
            Lb = self.lab('l1b')
            a(f"s_cmp_lg_u32 {s(S_CNT)}, 0")
            a(f"s_cbranch_scc1 {Lb}")
            a(f"s_waitcnt vmcnt({8 + 5 * self.cfg.pfw})")
            a("s_barrier"); a.nbar -= 1
            a.label(Lb)

        for k in range(8):
            a(f"s_waitcnt vmcnt({7-k})")
            for e in range(4):
                if k == 0: a(f"v_xor_b32 {v(84+e)}, {v(D+e)}, {v(88+e)}")
                else: a(f"v_bitop3_b32 {v(84+e)}, {v(84+e)}, {v(D+4*k+e)}, {v(88+e)} bitop3:0xf6")
            for e in range(4): a(f"v_and_b32 {v(D+4*k+e)}, v92, {v(D+4*k+e)}")
            if k:
                for e in range(4): a(f"v_add_f32 {v(D+e)}, {v(D+e)}, {v(D+4*k+e)}")
        a(f"v_or3_b32 v84, v84, v85, v86")
        a(f"v_or_b32 v84, v84, v87")
        a(f"v_and_b32 v84, 0xff, v84")
        a(f"v_cmp_ne_u32 vcc, 0, v84")
        a(f"s_and_b64 vcc, vcc, {s(M_V,2)}")
        a(f"s_cbranch_scc0 {Lg}")
        a(f"s_add_u32 {s(S_CNT)}, {s(S_CNT)}, 1")
        a(f"s_cmp_lt_u32 {s(S_CNT)}, 0x40000")
        a(f"s_cbranch_scc1 {Lr}")
        a.label(Lg)
        for e in range(4): a(f"v_mov_b32 {v(D+4+e)}, {v(D+e)}")
        for e in range(4): a(f"v_permlane32_swap_b32 {v(D+4+e)}, {v(D+e)}")
        for e in range(4): a(f"v_add_f32 {v(D+e)}, {v(D+e)}, {v(D+4+e)}")
        a(f"v_cvt_pk_bf16_f32 {v(D)}, {v(D)}, {v(D+1)}")
        a(f"v_cvt_pk_bf16_f32 {v(D+1)}, {v(D+2)}, {v(D+3)}")
        a(f"v_mov_b32 {v(D+2)}, v41")
        a(f"v_mov_b32 {v(D+3)}, v41")
        a(f"buffer_store_dwordx4 {v(D,4)}, v4, {s(R_WS,4)}, {s(S_T1)} offen sc1")
        self.stamp(17)
        a(f"s_branch {Ls}x")
        a.label(Ls)
        a(f"s_waitcnt vmcnt({5 * self.cfg.pfw})")
        if self.cfg.l1in: a("s_barrier")
        a.label(Ls + 'x')
        if not self.cfg.l1in: a("s_barrier")

    def rot2(self, dst):
        a = self.a; ra, rb_ = self.cfg.rot2
        sh = 3 if self.cfg.map2 == 'A' else 2
        a(f"s_lshr_b32 {s(S_T1)}, {s(S_IDX)}, {sh}")
        a(f"s_mul_i32 {s(dst)}, {s(S_T1)}, {ra}")
        a(f"s_and_b32 {s(S_T1)}, {s(S_IDX)}, {(1 << sh) - 1}")
        a(f"s_mul_i32 {s(S_T1)}, {s(S_T1)}, {rb_}")
        a(f"s_add_u32 {s(dst)}, {s(dst)}, {s(S_T1)}")
    def chunk_id(self, d, t, i):
        a = self.a
        a(f"s_add_u32 {s(d)}, {s(S_KC)}, {i}")
        a(f"s_and_b32 {s(d)}, {s(d)}, 3")
        a(f"s_mul_i32 {s(d)}, {s(d)}, 3")
        if i < 8: a(f"s_add_u32 {s(d)}, {s(d)}, {1 + i // 4}")

    CT = 512; NTH = 768; NVG = 168
    def loader_final(self):
        self.a(f"s_cmp_ge_u32 {s(S_WID)}, 2")
        self.a(f"s_cbranch_scc1 Lfin")
        self.goto_final()
    def final_prep(self):
        a = self.a
        srd(a, R_OUT, P_OUT, 2048 * 1280)
        a(f"v_mul_u32_u24 v165, 6554, v0")
        a(f"v_lshrrev_b32 v165, 16, v165")
        a(f"v_lshlrev_b32 v164, 3, v165")
        a(f"v_lshl_add_u32 v164, v0, 4, v164")
        a(f"v_add_u32 v164, {OT}, v164")
        a(f"v_mul_u32_u24 v165, {1280-160}, v165")
        a(f"v_lshl_add_u32 v165, v0, 4, v165")
        a(f"s_mul_i32 {s(S_IT)}, {s(S_TT)}, {64*1280}")
        a(f"s_mul_i32 {s(S_T1)}, {s(S_N)}, 160")
        a(f"s_add_u32 {s(S_IT)}, {s(S_IT)}, {s(S_T1)}")
    def out_store(self):
        a = self.a
        a(f"ds_read_b64 v[4:5], v164")
        a(f"ds_read_b64 v[6:7], v164 offset:8")
        a("s_waitcnt lgkmcnt(0)")
        a(f"buffer_store_dwordx4 v[4:7], v165, {s(R_OUT,4)}, {s(S_IT)} offen {self.cfg.osc}")
    def goto_final(self):
        if self.cfg.diag or self.cfg.light: self.a("s_branch Lfinal_store")
        else: self.out_store(); self.a("s_endpgm")
    def final_store(self):
        a = self.a
        a.label('Lfinal_store')
        self.out_store()
        a.label('Lfin')
        if self.cfg.light:
            a(f"s_cmp_lg_u32 {s(S_WID)}, 0")
            a(f"s_cbranch_scc1 Lend")
            a(f"v_mov_b32 v4, {s(S_TS)}")
            a("s_waitcnt vmcnt(0)")
            a(f"s_memrealtime {s(S_TS,2)}")
            a(f"s_memtime s[8:9]")
            a(f"s_lshl_b32 {s(S_T0)}, s2, 4")
            a(f"s_add_u32 {s(S_T0)}, {s(S_T0)}, {WS_TS}")
            a("v_mov_b32 v2, 0")
            a("s_waitcnt lgkmcnt(0)")
            a(f"v_mov_b32 v5, {s(S_TS)}")
            a(f"v_mov_b32 v6, s3")
            a(f"v_mov_b32 v7, s8")
            a(f"buffer_store_dwordx4 v[4:7], v2, {s(R_WS,4)}, {s(S_T0)} offen")
        if self.cfg.diag:
            a("s_waitcnt vmcnt(0)")
            self.stamp(39); self.stamp(62)
            a(f"s_memrealtime {s(S_TS,2)}")
            a("s_waitcnt lgkmcnt(0)")
            a(f"v_writelane_b32 {v(VDIAG)}, {s(S_TS)}, 63")
            a(f"s_mul_i32 {s(S_T0)}, s2, 12")
            a(f"s_add_u32 {s(S_T0)}, {s(S_T0)}, {s(S_WID)}")
            a(f"s_lshl_b32 {s(S_T0)}, {s(S_T0)}, 8")
            a(f"s_add_u32 {s(S_T0)}, {s(S_T0)}, {WS_TS2}")
            a(f"v_lshlrev_b32 v2, 2, v1")
            a(f"buffer_store_dword {v(VDIAG)}, v2, {s(R_WS,4)}, {s(S_T0)} offen")
        a.label('Lend')
        a("s_endpgm")

    ACC = 12; ONES = 68; RS = 72; SQ = 76; CSA = 80; CSB = 84
    XA = 88; XB = 96; YA = 124; YB = 132
    VA = 2
    L15 = 164; G = 165; TOK = 167
    def acc(self, t, i): return self.ACC + (2 * t + i) * 4
    def tiles(self, ty):
        if ty == 0:
            return [(6, 0, 160, 'N'), (6, 32, 160, 'N'), (7, 0, 160, 'N'), (6, 10256, 160, 'N'), (6, 10288, 160, 'N'),
                    (8, 0, 128, 'T'), (9, 0, 128, 'T')]
        return [(6, 0, 160, 'T'), (6, 32, 160, 'T'), (6, 64, 160, 'T'), (7, 0, 256, 'T'), (8, 0, 256, 'T'), (9, 0, 256, 'T'), (10, 0, 256, 'T')]

    def pack_setup(self):
        a = self.a
        a(f"s_cmp_gt_u32 {s(S_U)}, 135")
        a(f"s_cselect_b32 {s(S_T0)}, 0, {s(S_U)}")
        a(f"s_lshr_b32 {s(S_T0)}, {s(S_T0)}, 1")
        a(f"s_cmp_lt_u32 {s(S_T0)}, 48")
        a(f"s_cselect_b32 {s(R_PK)}, {s(P_W2)}, {s(P_WO)}")
        a(f"s_cselect_b32 {s(R_PK+1)}, {s(P_W2+1)}, {s(P_WO+1)}")
        a(f"s_mov_b32 {s(R_PK+2)}, {hex(640*1280)}")
        a(f"s_cselect_b32 {s(R_PK+2)}, {hex(1536*1280)}, {s(R_PK+2)}")
        a(f"s_mov_b32 {s(R_PK+3)}, 0x20000")
        Lm = self.lab('pkm'); Ld = self.lab('pkd')
        a(f"s_cbranch_scc1 {Lm}")
        a(f"s_sub_u32 {s(S_T3)}, {s(S_T0)}, 48")
        a(f"s_mul_i32 {s(S_T1)}, {s(S_T3)}, 52")
        a(f"s_lshr_b32 {s(S_T1)}, {s(S_T1)}, 8")
        a(f"s_mul_i32 {s(S_T2)}, {s(S_T1)}, 5")
        a(f"s_sub_u32 {s(S_T3)}, {s(S_T3)}, {s(S_T2)}")
        a(f"s_mul_i32 {s(S_T1)}, {s(S_T1)}, 160")
        a(f"s_lshl_b32 {s(S_T2)}, {s(S_T3)}, 5")
        a(f"s_cmp_ge_u32 {s(S_T3)}, 2")
        a(f"s_cselect_b32 {s(S_T0)}, 16, 0")
        a(f"s_add_u32 {s(S_T2)}, {s(S_T2)}, {s(S_T0)}")
        a(f"s_cmp_eq_u32 {s(S_T3)}, 4")
        a(f"s_cselect_b32 {s(S_T2)}, 64, {s(S_T2)}")
        a(f"s_cselect_b32 {s(S_T0)}, {64*1280}, 0")
        a(f"s_add_u32 {s(S_T1)}, {s(S_T1)}, {s(S_T2)}")
        a(f"s_branch {Ld}")
        a.label(Lm)
        a(f"s_lshl_b32 {s(S_T1)}, {s(S_T0)}, 5")
        a(f"s_mov_b32 {s(S_T0)}, 0")
        a.label(Ld)
        a(f"s_and_b32 {s(R_PK+1)}, {s(R_PK+1)}, 0xffff")
        a(f"s_mul_i32 {s(S_T1)}, {s(S_T1)}, 1280")
        a(f"s_and_b32 {s(S_T2)}, {s(S_U)}, 1")
        a(f"s_mul_i32 {s(S_T3)}, {s(S_T2)}, 640")
        a(f"s_add_u32 {s(S_PKO)}, {s(S_T1)}, {s(S_T3)}")
        a(f"v_mov_b32 v100, {s(S_T0)}")
        a(f"v_mov_b32 v105, {hex(OOB)}")
        a(f"s_mul_i32 {s(S_T2)}, {s(S_RB)}, 160")
        a(f"s_cmp_eq_u32 {s(S_TY)}, {self.cfg.pkty}")
        a(f"s_cselect_b32 {s(S_T2)}, 0, {s(S_T2)}")
        a(f"s_movk_i32 {s(S_T3)}, 160")
        a(f"s_cselect_b32 {s(S_T3)}, 640, {s(S_T3)}")
        for i in range(3):
            a(f"v_add_u32 v101, {512*i}, v0")
            a(f"v_mul_u32_u24 v102, 1639, v101")
            a(f"v_lshrrev_b32 v102, 16, v102")
            a(f"v_cmp_le_u32 vcc, 16, v102")
            a(f"v_mul_u32_u24 v102, 640, v102")
            a(f"v_cndmask_b32 v103, 0, v100, vcc")
            a(f"v_lshlrev_b32 v101, 4, v101")
            a(f"v_sub_u32 v104, v101, v102")
            a(f"v_add3_u32 v102, v102, v101, v103")
            a(f"v_subrev_u32 v104, {s(S_T2)}, v104")
            a(f"v_cmp_gt_u32 vcc, {s(S_T3)}, v104")
            a(f"v_cndmask_b32 {v(161+i)}, v105, v102, vcc")

    def code_prefetch(self, T):
        a = self.a; cfg = self.cfg
        L = self.lab('cp'); Lpc = self.lab('pc')
        a(f"s_cmp_lg_u32 {s(S_WID)}, {cfg.cpw}")
        a(f"s_cbranch_scc1 {L}")
        a(f"s_getpc_b64 {s(S_T0,2)}")
        a.label(Lpc)
        a(f"s_sub_u32 {s(S_T0)}, {s(S_T0)}, {Lpc}-{NAME}")
        a(f"s_subb_u32 {s(S_T1)}, {s(S_T1)}, 0")
        n = cfg.cpn
        a(f"s_mul_i32 {s(S_T2)}, {s(S_IDX)}, {128 * n}")
        a(f"v_lshlrev_b32 {v(T)}, 7, v1")
        a(f"v_add_u32 {v(T)}, {s(S_T2)}, {v(T)}")
        a(f"v_min_u32 {v(T)}, Lcode_end-4-{NAME}, {v(T)}")
        a(f"v_mov_b32 {v(T+1)}, {s(S_T1)}")
        a(f"v_add_co_u32 {v(T)}, vcc, {s(S_T0)}, {v(T)}")
        a(f"v_addc_co_u32 {v(T+1)}, vcc, 0, {v(T+1)}, vcc")
        exec_mask(a, (1 << n) - 1)
        a(f"global_load_dword v166, {v(T,2)}, off")
        a(f"s_mov_b64 exec, -1")
        a.label(L)

    def scalar_prefetch(self):
        a = self.a
        PA, PB = 52, 54
        a(f"s_mov_b32 {s(S_T3)}, {s(S_S0)}")
        a(f"s_sub_u32 {s(S_T2)}, {s(S_WID)}, 4")
        a(f"s_lshl_b32 {s(S_T2)}, {s(S_T2)}, 3")
        for st in range(self.cfg.spf):
            Lq = self.lab('sq'); Le = self.lab('se')
            if st:
                a(f"s_add_u32 {s(S_T3)}, {s(S_T3)}, 1")
                a(f"s_cmp_eq_u32 {s(S_T3)}, 10")
                a(f"s_cselect_b32 {s(S_T3)}, 0, {s(S_T3)}")
            a(f"s_lshl_b32 {s(S_T0)}, {s(S_T3)}, 6")
            a(f"s_add_u32 {s(S_T0)}, {s(S_T0)}, {s(S_T2)}")
            a(f"s_mul_i32 {s(S_T1)}, {s(S_T0)}, 3840")
            a(f"s_mul_i32 {s(PB)}, {s(S_HG)}, 160")
            a(f"s_add_u32 {s(S_T1)}, {s(S_T1)}, {s(PB)}")
            a(f"s_add_u32 {s(PA)}, {s(P_W)}, {s(S_T1)}")
            a(f"s_addc_u32 {s(PA+1)}, {s(P_W+1)}, 0")
            a(f"s_cmp_lg_u32 {s(S_TY)}, 0")
            a(f"s_cbranch_scc1 {Lq}")
            for r in range(8):
                for o in (1280, 1280 + 156, 2560, 2560 + 156): a(f"s_load_dword s3, {s(PA,2)}, {hex(r*3840 + o)}")
            a(f"s_branch {Le}")
            a.label(Lq)
            a(f"s_mul_i32 {s(S_T1)}, {s(S_T0)}, 3072")
            a(f"s_mul_i32 {s(PB)}, {s(S_HG)}, 384")
            a(f"s_add_u32 {s(S_T1)}, {s(S_T1)}, {s(PB)}")
            a(f"s_add_u32 {s(PB)}, {s(P_W1)}, {s(S_T1)}")
            a(f"s_addc_u32 {s(PB+1)}, {s(P_W1+1)}, 0")
            for r in range(8):
                for o in (0, 156): a(f"s_load_dword s3, {s(PA,2)}, {hex(r*3840 + o)}")
                if self.cfg.sph:
                    for o in (128, 256): a(f"s_load_dword s3, {s(PB,2)}, {hex(r*3072 + o)}")
            a.label(Le)

    def compute_setup(self):
        a = self.a
        a.label('Lcompute')
        if self.cfg.spf:
            a("s_waitcnt lgkmcnt(0)")
            self.scalar_prefetch()
        if self.cfg.cpf == 1: self.code_prefetch(102)
        T = 88
        L15, G, TOK = self.L15, self.G, self.TOK
        a(f"s_sub_u32 {s(S_T0)}, {s(S_WID)}, 4")
        a(f"s_and_b32 {s(S_R)}, {s(S_T0)}, 3")
        a(f"s_lshr_b32 {s(S_C)}, {s(S_T0)}, 2")
        a(f"v_add_u32 v0, {-256 & 0xffffffff}, v0")
        a(f"v_and_b32 {v(L15)}, 15, v1")
        a(f"v_lshrrev_b32 {v(G)}, 4, v1")
        a(f"v_lshrrev_b32 {v(T+2)}, 1, {v(L15)}")
        a(f"v_xor_b32 {v(T+2)}, {v(T+2)}, {v(G)}")
        a(f"v_lshlrev_b32 {v(T+2)}, 4, {v(T+2)}")
        a(f"v_lshl_add_u32 {v(T+2)}, {v(L15)}, 7, {v(T+2)}")
        a(f"s_lshl_b32 {s(S_T0)}, {s(S_R)}, 12")
        a(f"s_lshl_b32 {s(S_T1)}, {s(S_C)}, 11")
        a(f"s_add_u32 {s(S_T0)}, {s(S_T0)}, {s(S_T1)}")
        a(f"v_add_u32 v2, {s(S_T0)}, {v(T+2)}")
        a(f"v_xor_b32 v3, 64, v2")
        a(f"v_xor_b32 v4, 2048, v2")
        a(f"v_xor_b32 v5, 64, v4")
        a(f"s_lshr_b32 {s(S_T0)}, {s(S_T0)}, 5")
        a(f"s_add_u32 {s(S_T0)}, {s(S_T0)}, {ST}")
        a(f"v_lshl_add_u32 {v(TOK)}, {v(L15)}, 2, {s(S_T0)}")
        a(f"v_bfe_u32 {v(T+3)}, v1, 2, 3")
        a(f"v_lshrrev_b32 {v(T+4)}, 5, v1")
        a(f"v_lshl_add_u32 {v(T+4)}, {v(T+4)}, 4, {v(T+3)}")
        a(f"v_and_b32 {v(T+5)}, 3, v1")
        a(f"v_lshlrev_b32 {v(T+6)}, 3, {v(T+5)}")
        a(f"v_mul_u32_u24 v6, 160, {v(T+4)}")
        a(f"s_mul_i32 {s(S_T0)}, {s(S_C)}, 80")
        a(f"s_add_u32 {s(S_T0)}, {s(S_T0)}, 16384")
        a(f"v_add3_u32 v6, v6, {v(T+6)}, {s(S_T0)}")
        for i in range(self.ACC, self.ONES): a(f"v_mov_b32 {v(i)}, 0")
        for i in range(4): a(f"v_mov_b32 {v(self.ONES+i)}, 0x3f803f80")
        if self.cfg.kal: self.kload()
        a(f"s_mov_b32 {s(S_IT)}, 0")
        self.calc_u()
        a("s_waitcnt lgkmcnt(0)")
        self.stamp(1)
        srd(a, R_WS, P_WS, WS_SIZE)
        self.pack_setup()
        self.p2_pre_setup()
        cfg = self.cfg
        a(f"s_mul_i32 {s(S_T0)}, {s(S_RB)}, 10")
        a(f"s_add_u32 {s(S_T0)}, {s(S_T0)}, {s(S_S0)}")
        a(f"s_lshl_b32 {s(S_T0)}, {s(S_T0)}, 10")
        a(f"s_add_u32 {s(S_RPA)}, {s(S_T0)}, {(WS_RP - 2*ST) & 0xffffffff}")
        a(f"s_mul_i32 {s(S_T0)}, {s(S_COL)}, 10")
        a(f"s_add_u32 {s(S_T0)}, {s(S_T0)}, {s(S_S0)}")
        a(f"s_lshl_b32 {s(S_T0)}, {s(S_T0)}, 10")
        a(f"s_mul_i32 {s(S_T1)}, {s(S_C)}, 448")
        a(f"s_add_u32 {s(S_T0)}, {s(S_T0)}, {s(S_T1)}")
        a(f"s_lshl_b32 {s(S_T1)}, {s(S_R)}, 6")
        a(f"s_add_u32 {s(S_T0)}, {s(S_T0)}, {s(S_T1)}")
        a(f"s_add_u32 {s(S_CPA)}, {s(S_T0)}, {WS_CP}")
        a(f"s_min_u32 {s(S_T0)}, {s(S_RB)}, {s(S_COL)}")
        a(f"s_cmp_lt_u32 {s(S_T0)}, 10")
        a(f"s_cselect_b32 {s(S_M1)}, 2, 0")
        a(f"s_cselect_b32 {s(S_M0)}, {6 if cfg.dst else 2}, 0")
        a(f"s_cmp_le_u32 {s(S_U)}, 135")
        a(f"s_cselect_b32 {s(S_T0)}, {hex((0 if cfg.pkt else 1 << cfg.pk0) | (1 << (cfg.pk0 + 2)))}, 0")
        a(f"s_cselect_b32 {s(S_T1)}, {hex((2 if cfg.pkt else 0) | (1 << (cfg.pk0 + 3)))}, 0")
        a(f"s_or_b32 {s(S_M1)}, {s(S_M1)}, {s(S_T0)}")
        a(f"s_or_b32 {s(S_M0)}, {s(S_M0)}, {s(S_T1)}")
        if cfg.cpf == 2:
            a(f"s_cmp_eq_u32 {s(S_WID)}, {cfg.cpw}")
            a(f"s_cselect_b32 {s(S_T0)}, {hex(1 << cfg.cpi)}, 0")
            a(f"s_or_b32 {s(S_M1)}, {s(S_M1)}, {s(S_T0)}")
        if cfg.cpf == 3: self.code_prefetch(102)
        a(f"s_cmp_lg_u32 {s(S_TY)}, 0")
        a(f"s_cbranch_scc1 Lc_q")
        self.h_addr(0, 1)
        a(f"s_lshl_b32 {s(S_T0)}, {s(S_HG)}, 4")
        a(f"s_add_u32 {s(S_T0)}, {s(S_T0)}, {s(S_RB)}")
        a(f"s_mul_i32 {s(S_T0)}, {s(S_T0)}, {KP_STRIDE}")
        a(f"s_add_u32 {s(S_CNT)}, {s(S_T0)}, {WS_KP}")
        a(f"s_mul_i32 {s(S_T0)}, {s(S_R)}, 6720")
        a(f"s_mul_i32 {s(S_T1)}, {s(S_C)}, 3360")
        a(f"s_add_u32 {s(S_T0)}, {s(S_T0)}, {s(S_T1)}")
        a(f"s_add_u32 {s(S_OA)}, {s(S_T0)}, {SCR}")
        a(f"v_cmp_gt_u32 vcc, 2, {v(T+5)}")
        a(f"v_mov_b32 {v(T+7)}, 10224")
        a(f"v_cndmask_b32 {v(T+7)}, {v(T+7)}, 64, vcc")
        a(f"v_add_u32 v7, v6, {v(T+7)}")
        a(f"v_lshrrev_b32 {v(T+7)}, 1, {v(T+3)}")
        a(f"v_lshl_add_u32 {v(T+8)}, {v(T+4)}, 7, {v(T+6)}")
        a(f"v_add_u32 {v(T+8)}, 36864, {v(T+8)}")
        a(f"s_lshl_b32 {s(S_T0)}, {s(S_C)}, 1")
        a(f"v_xor_b32 {v(T+7)}, {s(S_T0)}, {v(T+7)}")
        a(f"v_lshl_add_u32 v8, {v(T+7)}, 5, {v(T+8)}")
        a(f"v_xor_b32 {v(T+7)}, 1, {v(T+7)}")
        a(f"v_lshl_add_u32 v9, {v(T+7)}, 5, {v(T+8)}")
        a(f"s_branch Lp1_0")
        a.label('Lc_q')
        self.h_addr(2, 2)
        a(f"s_mul_i32 {s(S_T0)}, {s(S_HG)}, {KP_STRIDE}")
        a(f"s_add_u32 {s(S_CNT)}, {s(S_T0)}, {WS_KT}")
        a(f"v_lshl_add_u32 {v(T+8)}, {v(T+4)}, 8, {v(T+6)}")
        a(f"v_add_u32 {v(T+8)}, 26624, {v(T+8)}")
        a(f"s_lshl_b32 {s(S_T0)}, {s(S_C)}, 2")
        a(f"v_xor_b32 {v(T+7)}, {s(S_T0)}, {v(T+3)}")
        for i in range(4):
            a(f"v_xor_b32 {v(T+9)}, {i}, {v(T+7)}")
            a(f"v_lshl_add_u32 {v(7+i)}, {v(T+9)}, 5, {v(T+8)}")
        a(f"s_branch Lp1_1")

    def p1_reads(self, ty, st, A, B):
        out = [f"ds_read_b128 {v(A,4)}, {v(self.VA+st)}", f"ds_read_b128 {v(A+4,4)}, {v(self.VA+2+st)}"]
        for t, (ad, ex, pitch, o) in enumerate(self.tiles(ty)):
            for u in range(2):
                if t < self.cfg.xr: out.append(f"ds_read_b64_tr_b16 {v(B+4*t+2*u,2)}, {v(ad)} offset:{(32*st+8*u)*pitch+ex}")
        return out
    def p1_mfmas(self, ty, A, B):
        M = "v_mfma_f32_16x16x32_bf16"
        out = []
        for t, (ad, ex, pitch, o) in enumerate(self.tiles(ty)):
            for i in range(2):
                d = v(self.acc(t, i), 4); x = v(A + 4*i, 4); w = v(B + 4*(t % self.cfg.xalias if self.cfg.xalias else t), 4)
                if t < self.cfg.xm: out.append(f"{M} {d}, {x}, {w}, {d}" if o == 'N' else f"{M} {d}, {w}, {x}, {d}")
        return out

    def duty(self, half, A, B):
        a = self.a
        M = "v_mfma_f32_16x16x32_bf16"
        on = v(self.ONES, 4); x0 = v(A, 4)
        def c(r): return v(r, 4) if half else '0'
        a.label(f"Lduty{half}")
        a(f"{M} {v(self.RS,4)}, {on}, {x0}, {c(self.RS)}")
        a(f"{M} {v(self.SQ,4)}, {x0}, {x0}, {c(self.SQ)}")
        Ld = self.lab('dd')
        labs = [self.lab('dr') for _ in range(4)]
        for r in range(1, 4):
            a(f"s_cmp_eq_u32 {s(S_R)}, {r}")
            a(f"s_cbranch_scc1 {labs[r]}")
        for r in range(4):
            a.label(labs[r])
            a(f"{M} {v(self.CSA,4)}, {on}, {v(B+4*r,4)}, {c(self.CSA)}")
            if r < 3:
                a(f"{M} {v(self.CSB,4)}, {on}, {v(B+4*(r+4),4)}, {c(self.CSB)}")
                a(f"s_branch {Ld}")
        a.label(Ld)
        if half and not self.cfg.dst:
            self.duty_store()
        if self.cfg.hp: a("s_setprio 0")
        a(f"s_cmp_lg_u32 {s(S_TY)}, 0")
        a(f"s_cbranch_scc1 Lret{half}_1")
        a(f"s_branch Lret{half}_0")

    def duty_store(self):
        a = self.a
        T = self.RS + 1
        SQ = self.SQ
        a(f"v_and_b32 v160, 3, v1")
        a(f"v_lshl_add_u32 {v(T+1)}, {v(self.TOK)}, 1, {s(S_RPA)}")
        a(f"v_lshl_add_u32 {v(T+2)}, {v(self.L15)}, 2, {s(S_CPA)}")
        a(f"v_cmp_eq_u32 vcc, 1, v160")
        a(f"v_cndmask_b32 {v(self.RS+1)}, {v(SQ)}, {v(SQ+1)}, vcc")
        a(f"v_cmp_eq_u32 vcc, 2, v160")
        a(f"v_cndmask_b32 {v(self.RS+1)}, {v(self.RS+1)}, {v(SQ+2)}, vcc")
        a(f"v_cmp_eq_u32 vcc, 3, v160")
        a(f"v_cndmask_b32 {v(self.RS+1)}, {v(self.RS+1)}, {v(SQ+3)}, vcc")
        L = self.lab('dn')
        a(f"s_cmp_ge_u32 {s(S_COL)}, 10")
        a(f"s_cbranch_scc1 {L}")
        exec_mask(a, DIAGMASK)
        a(f"buffer_store_dwordx2 {v(self.RS,2)}, {v(T+1)}, {s(R_WS,4)}, 0 offen sc1")
        a.label(L)
        L = self.lab('dn')
        a(f"s_cmp_ge_u32 {s(S_RB)}, 10")
        a(f"s_cbranch_scc1 {L}")
        exec_mask(a, 0xffff)
        a(f"buffer_store_dword {v(self.CSA)}, {v(T+2)}, {s(R_WS,4)}, 0 offen sc1")
        a(f"s_cmp_eq_u32 {s(S_R)}, 3")
        a(f"s_cbranch_scc1 {L}")
        a(f"buffer_store_dword {v(self.CSB)}, {v(T+2)}, {s(R_WS,4)}, 0 offen offset:256 sc1")
        a.label(L)
        a("s_mov_b64 exec, -1")

    def pack_blocks(self):
        a = self.a
        PD = 72
        def ret(h):
            if self.cfg.hp: a("s_setprio 0")
            a(f"s_cmp_lg_u32 {s(S_TY)}, 0")
            a(f"s_cbranch_scc1 Lret{h}_1")
            a(f"s_branch Lret{h}_0")
        cfg = self.cfg; pk0 = cfg.pk0
        a.label('Lx1')
        if cfg.hp: a(f"s_setprio {cfg.hp}")
        L3 = self.lab('p3'); L = self.lab('pa'); Lc = self.lab('pc')
        if cfg.cpf == 2:
            a(f"s_cmp_lg_u32 {s(S_IT)}, {cfg.cpi}")
            a(f"s_cbranch_scc1 {Lc}")
            self.code_prefetch(84)
            a.label(Lc)
        a(f"s_cmp_lg_u32 {s(S_IT)}, {pk0 if not cfg.pkt else 77}")
        a(f"s_cbranch_scc1 {L3}")
        Ln = 'Lduty1' if pk0 == 1 else L
        a(f"s_cmp_gt_u32 {s(S_U)}, 135")
        a(f"s_cbranch_scc1 {Ln}")
        a(f"s_lshl_b32 {s(S_T0)}, {s(S_WID)}, 10")
        for i in range(3):
            if i == 2:
                a(f"s_cmp_lg_u32 {s(S_C)}, 0")
                a(f"s_cbranch_scc1 {Ln}")
            a(f"s_add_u32 m0, {s(S_T0)}, {SCR - 4096 + 8192*i}")
            a(f"buffer_load_dwordx4 {v(161+i)}, {s(R_PK,4)}, {s(S_PKO)} offen lds")
        a(f"s_branch {Ln}")
        a.label(L3)
        a(f"s_cmp_eq_u32 {s(S_IT)}, 1")
        a(f"s_cbranch_scc1 Lduty1")
        a(f"s_cmp_lg_u32 {s(S_IT)}, {pk0 + 2}")
        a(f"s_cbranch_scc1 {L}")
        a(f"s_cmp_gt_u32 {s(S_U)}, 135")
        a(f"s_cbranch_scc1 {L}")
        a(f"v_lshrrev_b32 v160, 2, v1")
        a(f"v_mul_u32_u24 v160, 640, v160")
        a(f"v_and_b32 v161, 3, v1")
        a(f"v_lshl_add_u32 v160, v161, 3, v160")
        a(f"s_mul_i32 {s(S_T0)}, {s(S_R)}, 160")
        a(f"s_mul_i32 {s(S_T1)}, {s(S_C)}, 96")
        a(f"s_add_u32 {s(S_T0)}, {s(S_T0)}, {s(S_T1)}")
        a(f"s_add_u32 {s(S_T0)}, {s(S_T0)}, {SCR}")
        a(f"v_add_u32 v160, {s(S_T0)}, v160")
        for c in range(3):
            a(f"ds_read_b64_tr_b16 {v(PD+4*c,2)}, v160 offset:{32*c}")
            a(f"ds_read_b64_tr_b16 {v(PD+2+4*c,2)}, v160 offset:{32*c + 16*640}")
        a.label(L)
        ret(1)
        a.label('Lx0')
        if cfg.hp: a(f"s_setprio {cfg.hp}")
        a("s_waitcnt lgkmcnt(0)")
        L = self.lab('pb')
        if cfg.pkt:
            Lt = self.lab('pt')
            a(f"s_cmp_lg_u32 {s(S_IT)}, 1")
            a(f"s_cbranch_scc1 {Lt}")
            a(f"s_cmp_gt_u32 {s(S_U)}, 135")
            a(f"s_cbranch_scc1 Lduty0")
            a(f"s_lshl_b32 {s(S_T0)}, {s(S_WID)}, 10")
            for i in range(3):
                if i == 2:
                    a(f"s_cmp_lg_u32 {s(S_C)}, 0")
                    a(f"s_cbranch_scc1 Lduty0")
                a(f"s_add_u32 m0, {s(S_T0)}, {SCR - 4096 + 8192*i}")
                a(f"buffer_load_dwordx4 {v(161+i)}, {s(R_PK,4)}, {s(S_PKO)} offen lds")
            a("s_branch Lduty0")
            a.label(Lt)
        else:
            a(f"s_cmp_eq_u32 {s(S_IT)}, 1")
            a(f"s_cbranch_scc1 Lduty0")
        if cfg.dst:
            Ls = self.lab('ps')
            a(f"s_cmp_lg_u32 {s(S_IT)}, 2")
            a(f"s_cbranch_scc1 {Ls}")
            self.duty_store()
            a(f"s_branch {L}")
            a.label(Ls)
        a(f"s_cmp_gt_u32 {s(S_U)}, 135")
        a(f"s_cbranch_scc1 {L}")
        a(f"s_cmp_eq_u32 {s(S_TY)}, {self.cfg.pkty}")
        a(f"s_cselect_b32 {s(S_T0)}, {s(S_R)}, {s(S_RB)}")
        a(f"s_cmp_lg_u32 {s(S_T0)}, {s(S_R)}")
        a(f"s_cbranch_scc1 {L}")
        a(f"s_and_b32 {s(S_T0)}, {s(S_U)}, 1")
        a(f"s_lshl_b32 {s(S_T0)}, {s(S_T0)}, 2")
        a(f"s_add_u32 {s(S_T0)}, {s(S_T0)}, {s(S_R)}")
        a(f"s_mul_i32 {s(S_T0)}, {s(S_T0)}, 68")
        a(f"s_lshr_b32 {s(S_T1)}, {s(S_U)}, 1")
        a(f"s_add_u32 {s(S_T0)}, {s(S_T0)}, {s(S_T1)}")
        a(f"s_mul_i32 {s(S_T0)}, {s(S_T0)}, 5120")
        a(f"s_mul_i32 {s(S_T1)}, {s(S_C)}, 3072")
        a(f"s_add_u32 {s(S_T0)}, {s(S_T0)}, {s(S_T1)}")
        a(f"s_add_u32 {s(S_T0)}, {s(S_T0)}, {WS_P2}")
        a(f"v_lshlrev_b32 v160, 4, v1")
        for c in range(3):
            if c == 2:
                a(f"s_cmp_lg_u32 {s(S_C)}, 0")
                a(f"s_cbranch_scc1 {L}")
            a(f"buffer_store_dwordx4 {v(PD+4*c,4)}, v160, {s(R_WS,4)}, {s(S_T0)} offen offset:{1024*c} sc1")
        a.label(L)
        ret(0)

    def pp_hooks(self):
        a = self.a; cfg = self.cfg
        M = "v_mfma_f32_16x16x32_bf16"
        on = v(self.ONES, 4); PD = 72
        def ret(h):
            a(f"s_cmp_lg_u32 {s(S_TY)}, 0")
            a(f"s_cbranch_scc1 Lq{h}_1")
            a(f"s_branch Lq{h}_0")
        a.label('Lqd')
        for h, A in enumerate((self.XA, self.YA)):
            x0 = v(A, 4)
            a(f"{M} {v(self.RS,4)}, {on}, {x0}, {v(self.RS,4) if h else 0}")
            a(f"{M} {v(self.SQ,4)}, {x0}, {x0}, {v(self.SQ,4) if h else 0}")
        Ld = self.lab('dd'); labs = [self.lab('dr') for _ in range(4)]
        for r in range(1, 4):
            a(f"s_cmp_eq_u32 {s(S_R)}, {r}")
            a(f"s_cbranch_scc1 {labs[r]}")
        for r in range(4):
            a.label(labs[r])
            for h, B in enumerate((self.XB, self.YB)):
                a(f"{M} {v(self.CSA,4)}, {on}, {v(B+4*r,4)}, {v(self.CSA,4) if h else 0}")
                if r < 3: a(f"{M} {v(self.CSB,4)}, {on}, {v(B+4*(r+4),4)}, {v(self.CSB,4) if h else 0}")
            if r < 3: a(f"s_branch {Ld}")
        a.label(Ld)
        a("s_nop 7")
        ret('d')
        a.label('Lql')
        L2 = self.lab('h2'); L4 = self.lab('h4'); Le = self.lab('he')
        a(f"s_cmp_eq_u32 {s(S_IT)}, 4")
        a(f"s_cbranch_scc1 {L4}")
        self.duty_store()
        a(f"s_cmp_gt_u32 {s(S_U)}, 135")
        a(f"s_cbranch_scc1 {Le}")
        a(f"s_lshl_b32 {s(S_T0)}, {s(S_WID)}, 10")
        for i in range(3):
            if i == 2:
                a(f"s_cmp_lg_u32 {s(S_C)}, 0")
                a(f"s_cbranch_scc1 {Le}")
            a(f"s_add_u32 m0, {s(S_T0)}, {SCR - 4096 + 8192*i}")
            a(f"buffer_load_dwordx4 {v(161+i)}, {s(R_PK,4)}, {s(S_PKO)} offen lds")
        a(f"s_branch {Le}")
        a.label(L4)
        if cfg.cpf == 2: self.code_prefetch(84)
        a(f"s_cmp_gt_u32 {s(S_U)}, 135")
        a(f"s_cbranch_scc1 {Le}")
        a(f"s_cmp_eq_u32 {s(S_TY)}, {self.cfg.pkty}")
        a(f"s_cselect_b32 {s(S_T0)}, {s(S_R)}, {s(S_RB)}")
        a(f"s_cmp_lg_u32 {s(S_T0)}, {s(S_R)}")
        a(f"s_cbranch_scc1 {Le}")
        a(f"v_lshrrev_b32 v160, 2, v1")
        a(f"v_mul_u32_u24 v160, 640, v160")
        a(f"v_and_b32 v161, 3, v1")
        a(f"v_lshl_add_u32 v160, v161, 3, v160")
        a(f"s_mul_i32 {s(S_T0)}, {s(S_R)}, 160")
        a(f"s_mul_i32 {s(S_T1)}, {s(S_C)}, 96")
        a(f"s_add_u32 {s(S_T0)}, {s(S_T0)}, {s(S_T1)}")
        a(f"s_add_u32 {s(S_T0)}, {s(S_T0)}, {SCR}")
        a(f"v_add_u32 v160, {s(S_T0)}, v160")
        for c in range(3):
            a(f"ds_read_b64_tr_b16 {v(PD+4*c,2)}, v160 offset:{32*c}")
            a(f"ds_read_b64_tr_b16 {v(PD+2+4*c,2)}, v160 offset:{32*c + 16*640}")
        a(f"s_and_b32 {s(S_T0)}, {s(S_U)}, 1")
        a(f"s_lshl_b32 {s(S_T0)}, {s(S_T0)}, 2")
        a(f"s_add_u32 {s(S_T0)}, {s(S_T0)}, {s(S_R)}")
        a(f"s_mul_i32 {s(S_T0)}, {s(S_T0)}, 68")
        a(f"s_lshr_b32 {s(S_T1)}, {s(S_U)}, 1")
        a(f"s_add_u32 {s(S_T0)}, {s(S_T0)}, {s(S_T1)}")
        a(f"s_mul_i32 {s(S_T0)}, {s(S_T0)}, 5120")
        a(f"s_mul_i32 {s(S_T1)}, {s(S_C)}, 3072")
        a(f"s_add_u32 {s(S_T0)}, {s(S_T0)}, {s(S_T1)}")
        a(f"s_add_u32 {s(S_T0)}, {s(S_T0)}, {WS_P2}")
        a(f"v_lshlrev_b32 v160, 4, v1")
        a("s_waitcnt lgkmcnt(0)")
        for c in range(3):
            if c == 2:
                a(f"s_cmp_lg_u32 {s(S_C)}, 0")
                a(f"s_cbranch_scc1 {Le}")
            a(f"buffer_store_dwordx4 {v(PD+4*c,4)}, v160, {s(R_WS,4)}, {s(S_T0)} offen offset:{1024*c} sc1")
        a.label(Le)
        ret('l')

    def pp_loop(self, ty):
        a = self.a; cfg = self.cfg
        nad = 8 if ty == 0 else 9
        nb = a.nbar
        rx = self.p1_reads(ty, 0, self.XA, self.XB); ry = self.p1_reads(ty, 1, self.YA, self.YB)
        my = self.p1_mfmas(ty, self.YA, self.YB); mx = self.p1_mfmas(ty, self.XA, self.XB)
        a.label(f"Lp1_{ty}")
        a(f"s_mov_b32 {s(S_DEST)}, {hex(-2*SLOT & 0xffffffff)}")
        a(f"s_mov_b32 {s(S_DEST+1)}, {SLOT}")
        a(f"s_cmp_eq_u32 {s(S_C)}, 0")
        a(f"s_cbranch_scc1 Lqd_{ty}")
        a("s_barrier")
        a(".p2align 3")
        a.label(f"Lqd_{ty}")
        a("s_barrier")
        if cfg.ppr: a("s_setprio 0")
        for x in rx + ry: a(x)
        a(f"s_add_u32 {s(S_IT)}, {s(S_IT)}, 1")
        a(f"s_bitcmp1_b32 {hex((1<<3)|(1<<6)|(1<<9))}, {s(S_IT)}")
        a(f"s_cselect_b32 {s(S_DELTA)}, {s(S_DEST)}, {s(S_DEST+1)}")
        for i in range(nad): a(f"v_add_u32 {v(self.VA+i)}, {s(S_DELTA)}, {v(self.VA+i)}")
        L = self.lab('vw')
        a(f"s_bitcmp0_b32 {hex((1<<3)|(1<<5))}, {s(S_IT)}")
        a(f"s_cbranch_scc1 {L}")
        a("s_waitcnt vmcnt(0)")
        a.label(L)
        a(f"s_bitcmp1_b32 {hex((1<<2)|(1<<4))}, {s(S_IT)}")
        a(f"s_cbranch_scc1 Lql")
        a.label(f"Lql_{ty}")
        if cfg.ppr: a(f"s_setprio {cfg.ppr}")
        a(f"s_cmp_eq_u32 {s(S_IT)}, 10")
        a("s_waitcnt lgkmcnt(0)")
        a("s_barrier")
        for x in mx: a(x)
        a(f"s_cbranch_scc1 Lqx_{ty}")
        for x in my[:-1]: a(x)
        a(f"s_cmp_eq_u32 {s(S_IT)}, 1")
        a(my[-1])
        a(f"s_cbranch_scc1 Lqd")
        a(f"s_branch Lqd_{ty}")
        a.label(f"Lqx_{ty}")
        self.nb_loop = 21
        a.nbar = nb
    def pp_e0(self):
        if not self.cfg.pp1: return
        a = self.a; L = self.lab('e0')
        a(f"s_cmp_lg_u32 {s(S_C)}, 0")
        a(f"s_cbranch_scc1 {L}")
        a("s_barrier"); a.nbar -= 1
        a.label(L)

    def p1_loop(self, ty):
        if self.cfg.pp1: return self.pp_loop(ty)
        a = self.a; cfg = self.cfg
        nad = 8 if ty == 0 else 9
        nb = a.nbar
        rx = self.p1_reads(ty, 0, self.XA, self.XB); ry = self.p1_reads(ty, 1, self.YA, self.YB)
        my = self.p1_mfmas(ty, self.YA, self.YB); mx = self.p1_mfmas(ty, self.XA, self.XB)
        if cfg.mo == 1: my = my[0::2] + my[1::2]
        if cfg.mo == 2:
            for m_ in (my, mx):
                for t in range(1, 7, 2): m_[2*t], m_[2*t+1] = m_[2*t+1], m_[2*t]
        sal = [f"s_add_u32 {s(S_IT)}, {s(S_IT)}, 1",
               f"s_bitcmp1_b32 {hex((1<<3)|(1<<6)|(1<<9))}, {s(S_IT)}",
               f"s_cselect_b32 {s(S_DELTA)}, {s(S_DEST)}, {s(S_DEST+1)}"]
        a.label(f"Lp1_{ty}")
        if cfg.pc1:
            L = self.lab('pr')
            a(f"s_cmp_eq_u32 {s(S_C)}, 0")
            a(f"s_cbranch_scc1 {L}")
            a(f"s_setprio {cfg.pc1}")
            a.label(L)
        a(f"s_mov_b32 {s(S_DEST)}, {hex(-2*SLOT & 0xffffffff)}")
        a(f"s_mov_b32 {s(S_DEST+1)}, {SLOT}")
        a("s_barrier")
        for x in rx: a(x)
        a(f"s_branch Lret1_{ty}")
        a(".p2align 3")
        a.label(f"Lp1h_{ty}")
        a("s_barrier")
        k = 0
        for m, x in enumerate(my):
            a(x)
            for _ in range(cfg.rpm + (1 if m < cfg.rp2 else 0)):
                if k < len(rx): a(rx[k]); k += 1
        while k < len(rx): a(rx[k]); k += 1
        a(f"s_bitcmp1_b32 {s(S_M1)}, {s(S_IT)}")
        a(f"s_cbranch_scc1 Lx1")
        a.label(f"Lret1_{ty}")
        upd = [f"v_add_u32 {v(self.VA+i)}, {s(S_DELTA)}, {v(self.VA+i)}" for i in range(nad)]
        k = 0; u = 0
        for m, x in enumerate(mx):
            if m % 2 == 0:
                t = m // 2
                rem = len(rx) - (2 + 2 * (t + 1))
                if rem >= 0:
                    a(f"s_waitcnt lgkmcnt({min(15, rem + k)})")
            if m == len(mx) - 1: a(f"s_cmp_lt_u32 {s(S_IT)}, 10")
            a(x)
            if m == 0:
                for y in sal: a(y)
            for _ in range(cfg.rpm + (1 if m < cfg.rp2 else 0)):
                t1 = (m + 2) // 2
                rem1 = max(0, len(rx) - (2 + 2 * (t1 + 1)))
                if k < len(ry) and (rem1 + k + 1 <= 15 or rem1 == 0): a(ry[k]); k += 1
            n = 0
            while u < len(upd) and n < 2 and not any(f", {v(self.VA+u)} " in y + " " for y in ry[k:]): a(upd[u]); u += 1; n += 1
            if m == len(mx) - 3:
                L = self.lab('vw')
                a(f"s_bitcmp0_b32 {hex((1<<3)|(1<<(cfg.pk0+2))|(1<<(cfg.pk0+(4 if cfg.pk0 == 1 else 5))))}, {s(S_IT)}")
                a(f"s_cbranch_scc1 {L}")
                a("s_waitcnt vmcnt(0)")
                a.label(L)
                a(f"s_bitcmp1_b32 {s(S_M0)}, {s(S_IT)}")
                a(f"s_cbranch_scc1 Lx0")
                a.label(f"Lret0_{ty}")
        while k < len(ry): a(ry[k]); k += 1
        while u < len(upd): a(upd[u]); u += 1
        a("s_waitcnt lgkmcnt(0)")
        if cfg.xidle: a(f"s_sleep {cfg.xidle}")
        a(f"s_cbranch_scc1 Lp1h_{ty}")
        a("s_barrier")
        self.nb_loop = 11
        a.nbar = nb

    def gelu_tile(self, t, AB, CS, BR, d0, W):
        a = self.a
        B = W; X = W + 4
        a(f"v_lshlrev_b32 {v(B)}, 16, {v(BR)}")
        a(f"v_and_b32 {v(B+1)}, {s(S_K1)}, {v(BR)}")
        a(f"v_lshlrev_b32 {v(B+2)}, 16, {v(BR+1)}")
        a(f"v_and_b32 {v(B+3)}, {s(S_K1)}, {v(BR+1)}")
        ch = [(i, p) for i in range(2) for p in range(2)]
        ac = lambda i, p: self.acc(t, i) + 2 * p
        x = lambda i, p: X + 4 * i + 2 * p
        for i, p in ch: a(pk('fma', x(i,p), ('b', AB+4*i+2), CS+2*p, B+2*p))
        for i, p in ch: a(pk('fma', ac(i,p), ('b', AB+4*i), ac(i,p), x(i,p)))
        for i, p in ch: a(pk('mul', x(i,p), ac(i,p), ac(i,p)))
        for i, p in ch: a(pk('fma', x(i,p), x(i,p), ('s', S_K0), ('b', 166)))
        for i, p in ch: a(pk('mul', x(i,p), x(i,p), ac(i,p)))
        for k in range(8): a(f"v_exp_f32 {v(X+k)}, {v(X+k)}")
        for i, p in ch: a(pk('add', x(i,p), x(i,p), '1.0'))
        for k in range(8): a(f"v_rcp_f32 {v(X+k)}, {v(X+k)}")
        for i, p in ch: a(pk('mul', x(i,p), x(i,p), ac(i,p)))
        for i, p in ch: a(f"v_cvt_pk_bf16_f32 {v(d0(i)+p)}, {v(x(i,p))}, {v(x(i,p)+1)}")
    def gelu_consts(self):
        a = self.a
        c1 = -2 * math.sqrt(2 / math.pi) * LOG2E; c2 = c1 * 0.044715
        a(f"s_mov_b32 {s(S_K0)}, {lit(c2)}")
        a(f"s_mov_b32 {s(S_K1)}, 0xffff0000")
        a(f"v_mov_b32 v166, {lit(c1)}")

    def phi_tile(self, t, fa, fb, fcs, X, EPS, d0):
        a = self.a
        ch = [(i, p) for i in range(2) for p in range(2)]
        ac = lambda i, p: self.acc(t, i) + 2 * p
        x = lambda i, p: X + 4 * i + 2 * p
        for i, p in ch: a(pk('fma', x(i,p), fb(i,p), fcs(i,p), ('b', EPS)))
        for i, p in ch: a(pk('fma', ac(i,p), fa(i,p), ac(i,p), x(i,p)))
        for i, p in ch: a(pk('mul', x(i,p), ac(i,p), ('s', S_K0)))
        for k in range(8): a(f"v_exp_f32 {v(X+k)}, {v(X+k)} clamp")
        for i in range(2):
            for k in range(4): a(f"v_max_f32 {v(X+8+4*i+k)}, {v(EPS)}, {v(self.acc(t,i)+k)}")
        for i, p in ch: a(pk('add', x(i,p), x(i,p), x(i,p)+8))
        for i, p in ch: a(f"v_cvt_pk_bf16_f32 {v(d0(i)+p)}, {v(x(i,p))}, {v(x(i,p)+1)}")

    def h_addr(self, ks0_imm, ks_c_mul):
        a = self.a
        a(f"s_lshl_b32 {s(S_T0)}, {s(S_RB)}, 3")
        a(f"s_lshl_b32 {s(S_T1)}, {s(S_R)}, 1")
        a(f"s_add_u32 {s(S_T0)}, {s(S_T0)}, {s(S_T1)}")
        a(f"s_add_u32 {s(S_T0)}, {s(S_T0)}, {s(S_C)}")
        a(f"s_xor_b32 {s(S_T1)}, {s(S_T0)}, 1")
        a(f"s_mul_i32 {s(S_T2)}, {s(S_HG)}, 6")
        a(f"s_mul_i32 {s(S_T3)}, {s(S_C)}, {ks_c_mul}")
        a(f"s_add_u32 {s(S_T2)}, {s(S_T2)}, {s(S_T3)}")
        a(f"s_add_u32 {s(S_T2)}, {s(S_T2)}, {ks0_imm + WS_H2 // 1024}")
        for k, d in ((S_T0, S_OW), (S_T1, S_OM)):
            a(f"s_mul_i32 {s(k)}, {s(k)}, 48")
            a(f"s_add_u32 {s(k)}, {s(k)}, {s(S_T2)}")
            a(f"s_lshl_b32 {s(d)}, {s(k)}, 10")
    def h_flag(self, vn):
        a = self.a; fs = self.cfg.fs
        a(f"buffer_store_dword {v(vn)}, v10, {s(R_WS,4)}, 0 offen sc1")
    def h_flag_addr(self):
        a = self.a; fs = self.cfg.fs
        a(f"s_lshl_b32 {s(S_T0)}, {s(S_RB)}, 1")
        a(f"s_lshr_b32 {s(S_T1)}, {s(S_R)}, 1")
        a(f"s_add_u32 {s(S_T0)}, {s(S_T0)}, {s(S_T1)}")
        a(f"s_lshl_b32 {s(S_T0)}, {s(S_T0)}, 4")
        a(f"s_add_u32 {s(S_T0)}, {s(S_T0)}, {s(S_COL)}")
        a(f"s_lshl_b32 {s(S_T0)}, {s(S_T0)}, 1")
        a(f"s_and_b32 {s(S_T1)}, {s(S_R)}, 1")
        a(f"s_add_u32 {s(S_T0)}, {s(S_T0)}, {s(S_T1)}")
        a(f"s_lshl_b32 {s(S_T0)}, {s(S_T0)}, 1")
        a(f"s_add_u32 {s(S_T0)}, {s(S_T0)}, {s(S_C)}")
        a(f"s_lshl_b32 {s(S_T0)}, {s(S_T0)}, {fs}")
        a(f"s_add_u32 {s(S_XCD)}, {s(S_T0)}, {WS_FH}")
    def h_poll(self, vn):
        a = self.a; fs = self.cfg.fs
        L = self.lab('hp'); Lr = self.lab('hr')
        a(f"s_cmp_lg_u32 {s(S_WID)}, 11")
        a(f"s_cbranch_scc1 {L}")
        a(f"s_lshl_b32 {s(S_T1)}, {s(S_TT)}, {fs + 6}")
        a(f"s_add_u32 {s(S_T1)}, {s(S_T1)}, {WS_FH}")
        a(f"v_lshlrev_b32 v12, {fs}, v1")
        a(f"s_mov_b32 {s(S_IT)}, 0")
        a.label(Lr)
        a(f"buffer_load_dword v13, v12, {s(R_WS,4)}, {s(S_T1)} offen sc1")
        a("s_waitcnt vmcnt(0)")
        a(f"v_cmp_ne_u32 vcc, v13, {v(vn)}")
        a(f"s_cbranch_vccz {L}")
        if self.cfg.psl: a(f"s_sleep {self.cfg.psl}")
        a(f"s_add_u32 {s(S_IT)}, {s(S_IT)}, 1")
        a(f"s_cmp_lt_u32 {s(S_IT)}, 0x40000")
        a(f"s_cbranch_scc1 {Lr}")
        a.label(L)
    def signal(self):
        a = self.a
        a(f"s_lshl_b32 {s(S_T0)}, {s(S_C)}, 2")
        a(f"s_add_u32 {s(S_T0)}, {s(S_T0)}, {ST_C}")
        a(f"v_mov_b32 v4, {s(S_T0)}")
        a(f"v_mov_b32 v5, 1")
        a("s_mov_b64 exec, 1")
        a("ds_add_u32 v4, v5")
        a("s_mov_b64 exec, -1")
    def h_flag_v(self):
        a = self.a
        a(f"v_mov_b32 v10, {hex(OOB)}")
        a(f"v_writelane_b32 v10, {s(S_XCD)}, 0")
    def h_store(self, p, TMP):
        for i in range(2):
            self.a(f"buffer_store_dwordx4 {v(TMP+p*8+i*4,4)}, v2, {s(R_WS,4)}, {s((S_OW, S_OM)[i])} offen offset:{1024*p} sc1")

    def epi_kv(self):
        a = self.a
        nb = a.nbar
        L15, G, TOK = self.L15, self.G, self.TOK
        self.stamp(2)
        a(f"s_setprio {self.cfg.pe}")
        a(f"s_lshl_b32 {s(S_T0)}, {s(S_R)}, 7")
        a(f"s_lshl_b32 {s(S_T1)}, {s(S_C)}, 6")
        a(f"s_add_u32 {s(S_T0)}, {s(S_T0)}, {s(S_T1)}")
        a(f"s_add_u32 {s(S_T0)}, {s(S_T0)}, {ST}")
        a(f"v_lshl_add_u32 v2, {v(G)}, 4, {s(S_T0)}")
        a(f"v_xor_b32 v3, 64, v2")
        a(f"s_mul_i32 {s(S_T0)}, {s(S_C)}, 448")
        a(f"s_add_u32 {s(S_T0)}, {s(S_T0)}, {ST_CS}")
        a(f"v_lshl_add_u32 v4, {v(L15)}, 2, {s(S_T0)}")
        a(f"v_lshl_add_u32 v5, {v(G)}, 4, {s(S_T0)}")
        a(f"v_xor_b32 v6, 64, {v(TOK)}")
        a(f"s_lshl_b32 {s(S_T0)}, {s(S_C)}, 6")
        a(f"s_add_u32 {s(S_T0)}, {s(S_T0)}, {B1L}")
        a(f"v_lshl_add_u32 v7, {v(G)}, 3, {s(S_T0)}")
        AB = 88; CS = 104; A2 = 114; CH = 80; BR = 72
        rd = [f"ds_read_b128 {v(AB,4)}, v2", f"ds_read_b128 {v(AB+4,4)}, v2 offset:512",
              f"ds_read_b128 {v(AB+8,4)}, v3", f"ds_read_b128 {v(AB+12,4)}, v3 offset:512"]
        rd += [f"ds_read_b32 {v(CS+2*t)}, v4 offset:{64*t}" for t in range(5)]
        rd += [f"ds_read_b32 {v(A2)}, {v(TOK)} offset:1024", f"ds_read_b32 {v(A2+2)}, {v(TOK)} offset:1536",
               f"ds_read_b32 {v(A2+4)}, v6 offset:1024", f"ds_read_b32 {v(A2+6)}, v6 offset:1536"]
        for j in range(2):
            rd += [f"ds_read_b128 {v(CH+4*j,4)}, v5 offset:{64*(5+j)}", f"ds_read_b64 {v(BR+2*j,2)}, v7 offset:{32*j}"]
        a(f"v_mov_b32 v8, {ST_N}")
        rd += [f"ds_read_b32 v79, v8"]
        SA = [105, 107, 109]; SZ = [111, 113, 115]
        ad = [f"v_mul_u32_u24 v9, 336, {v(G)}", f"v_add_u32 v9, {s(S_OA)}, v9", f"v_lshl_add_u32 v10, {v(L15)}, 4, v9",
              f"v_add_u32 {v(SA[0])}, {-128 & 0xffffffff}, v10", f"v_add_u32 {v(SA[1])}, {(4*336 - 128 - 320) & 0xffffffff}, v10",
              f"v_add_u32 {v(SA[2])}, {4*336 - 128}, v10", f"v_cmp_eq_u32 vcc, 0, {v(G)}",
              f"v_cndmask_b32 {v(SA[1])}, {v(SA[1])}, {v(SA[2])}, vcc", f"v_add_u32 {v(SA[2])}, {8*336 - 128 - 320}, v10",
              f"v_cmp_eq_u32 vcc, 0, {v(L15)}"]
        for td in range(3):
            ad += [f"v_add_u32 v10, {4*td*336 + 320}, v9", f"v_cndmask_b32 {v(SZ[td])}, {v(SA[td])}, v10, vcc"]
        mf = self.p1_mfmas(0, self.YA, self.YB)
        if self.cfg.kvo == 2: mf = mf[10:] + mf[:10]
        interleave(a, mf, rd + ad, 1.0, 2)
        self.pp_e0()
        TMP = 124
        def gelu():
            a(f"v_lshlrev_b32 v2, 4, v1")
            self.gelu_consts()
            for j in range(2):
                self.gelu_tile(5 + j, A2, CH + 4*j, BR + 2*j, lambda i: TMP + 4*i + 2*j, 148)
            self.h_store(0, TMP)
        if self.cfg.kvo == 2:
            a("s_setprio 3")
            a("s_waitcnt lgkmcnt(0)")
            gelu()
            a(f"s_setprio {self.cfg.pe}")
        EPS = 76
        a(f"v_mov_b32 {v(EPS)}, {lit(1e-6)}")
        a(f"v_mov_b32 {v(EPS+2)}, {lit(-1e-6)}")
        a(f"s_mov_b32 {s(S_K0)}, {lit(LOG2E)}")
        a("s_waitcnt lgkmcnt(0)")
        self.stamp(3)
        FR = 124; X = 148
        fa = lambda i, p: AB + 8*i + 2*p
        fb = lambda i, p: AB + 8*i + 4 + 2*p
        ch = [(i, p) for i in range(2) for p in range(2)]
        for t in (0, 1):
            self.phi_tile(t, fa, fb, lambda i, p: ('b', CS + 2*t), X, EPS, lambda i: FR + 4*t + 2*i)
        self.phi_tile(2, fa, fb, lambda i, p: ('b', CS + 4), X, EPS, lambda i: FR + 8 + 2*i)
        for i, p in ch: a(pk('add', X+4*i+2*p, self.acc(2,i)+2*p, ('b', EPS+2)))
        for i, p in ch: a(f"v_cvt_pk_bf16_f32 {v(FR+12+2*i+p)}, {v(X+4*i+2*p)}, {v(X+4*i+2*p+1)}")
        for t in (3, 4):
            for i, p in ch: a(pk('mul', X+4*i+2*p, fb(i,p), ('b', CS+2*t)))
            for i, p in ch: a(pk('fma', X+4*i+2*p, fa(i,p), self.acc(t,i)+2*p, X+4*i+2*p))
            for i, p in ch: a(f"v_cvt_pk_bf16_f32 {v(FR+4*(t+1)+2*i+p)}, {v(X+4*i+2*p)}, {v(X+4*i+2*p+1)}")
        a(f"v_cmp_gt_u32 vcc, 8, {v(L15)}")
        for r in range(4): a(f"v_cndmask_b32 {v(FR+12+r)}, {v(FR+12+r)}, {v(self.ONES)}, vcc")
        self.stamp(4)
        pairs = [(0, 0), (0, 1), (1, 0), (1, 1), (1, 2), (2, 0), (2, 1), (2, 2)]
        KVD = 12
        for j, (td, te) in enumerate(pairs):
            a(f"v_mfma_f32_16x16x32_bf16 {v(KVD+4*j,4)}, {v(FR+4*td,4)}, {v(FR+12+4*te,4)}, 0")
        def valid(td, te, l):
            col = l & 15; g = l >> 4; dqg = 4 * td + g
            if dqg > 9: return False
            hh = dqg // 5
            if te == 0:
                if col == 0: return True
                if col < 8: return False
            eg = col - 8 + 16 * te
            return eg // 20 == hh
        tot = 0
        for j, (td, te) in enumerate(pairs):
            m = sum(1 << l for l in range(64) if valid(td, te, l)); tot += bin(m).count('1')
            exec_mask(a, m)
            a(f"ds_write_b128 {v(SZ[td] if te == 0 else SA[td])}, {v(KVD+4*j,4)} offset:{256*te}")
        assert tot == 210
        a("s_mov_b64 exec, -1")
        a(f"v_lshlrev_b32 v3, 4, v0")
        a(f"v_add_u32 v4, {SCR}, v3")
        a(f"v_mov_b32 v5, {hex(OOB)}")
        a(f"v_cmp_gt_u32 vcc, 420, v0")
        a(f"v_cndmask_b32 v3, v5, v3, vcc")
        if self.cfg.kvo == 1: gelu()
        a("s_setprio 3")
        a("s_waitcnt lgkmcnt(0)")
        self.stamp(5)
        a("s_barrier")
        for r in range(4): a(f"ds_read_b128 {v(12+4*r,4)}, v4 offset:{6720*r}")
        for e in range(4): a(f"s_mov_b32 {s(S_T0+e)}, {hex(0x07060500 + e)}")
        a("s_waitcnt lgkmcnt(0)")
        for p in range(2): a(pk('add', 12+2*p, 12+2*p, 16+2*p))
        for p in range(2): a(pk('add', 20+2*p, 20+2*p, 24+2*p))
        for p in range(2): a(pk('add', 12+2*p, 12+2*p, 20+2*p))
        for e in range(4): a(f"v_perm_b32 {v(12+e)}, {v(12+e)}, v79, {s(S_T0+e)}")
        a(f"buffer_store_dwordx4 v[12:15], v3, {s(R_WS,4)}, {s(S_CNT)} offen sc1")
        a(f"s_setprio {self.cfg.pe}")
        self.stamp(7)
        if self.cfg.kvo == 0: gelu()
        a(f"v_lshlrev_b32 v2, 4, v1")
        self.signal()
        self.stamp(9)
        self.nb_c_kv = self.nb_loop + a.nbar - nb + 1
        a.nbar = nb
        a("s_branch Lp2")

    def epi_q(self):
        a = self.a
        nb = a.nbar
        L15, G, TOK = self.L15, self.G, self.TOK
        self.stamp(2)
        a(f"s_setprio {min(3, self.cfg.pe + 1)}")
        a(f"s_mul_i32 {s(S_T0)}, {s(S_C)}, 448")
        a(f"s_add_u32 {s(S_T0)}, {s(S_T0)}, {ST_CS}")
        a(f"v_lshl_add_u32 v5, {v(G)}, 4, {s(S_T0)}")
        a(f"v_xor_b32 v6, 64, {v(TOK)}")
        a(f"s_lshl_b32 {s(S_T0)}, {s(S_C)}, 7")
        a(f"s_add_u32 {s(S_T0)}, {s(S_T0)}, {B1L}")
        a(f"v_lshl_add_u32 v7, {v(G)}, 3, {s(S_T0)}")
        A2 = 68; A1 = 112; BR = 76; CS = 84
        rd = [f"ds_read_b32 {v(A2)}, {v(TOK)} offset:1024", f"ds_read_b32 {v(A2+2)}, {v(TOK)} offset:1536",
              f"ds_read_b32 {v(A2+4)}, v6 offset:1024", f"ds_read_b32 {v(A2+6)}, v6 offset:1536"]
        for j in range(4):
            rd += [f"ds_read_b128 {v(CS+4*(3+j),4)}, v5 offset:{64*(3+j)}", f"ds_read_b64 {v(BR+2*j,2)}, v7 offset:{32*j}"]
        rd += [f"ds_read_b32 {v(A1)}, {v(TOK)}", f"ds_read_b32 {v(A1+2)}, {v(TOK)} offset:512",
               f"ds_read_b32 {v(A1+4)}, v6", f"ds_read_b32 {v(A1+6)}, v6 offset:512"]
        rd += [f"ds_read_b128 {v(CS+4*t,4)}, v5 offset:{64*t}" for t in range(3)]
        mf = self.p1_mfmas(1, self.YA, self.YB)
        mf = mf[6:] + mf[:6]
        interleave(a, mf, rd, 0.8, 2)
        self.pp_e0()
        a(f"v_lshlrev_b32 v2, 4, v1")
        self.gelu_consts()
        a("s_waitcnt lgkmcnt(0)")
        self.stamp(3)
        TMP = 124
        for j in range(4):
            self.gelu_tile(3 + j, A2, CS + 4*(3+j), BR + 2*j, lambda i: TMP + (j >> 1)*8 + 4*i + 2*(j & 1), 140)
            if j & 1: self.h_store(j >> 1, TMP)
        a(f"s_setprio {self.cfg.pe}")
        self.stamp(5)
        a("s_waitcnt vmcnt(0)")
        self.signal()
        self.stamp(8)
        PQ = 152; EPS = 76; X = 112
        a(f"v_mov_b32 {v(EPS)}, {lit(1e-6)}")
        a(f"s_mov_b32 {s(S_K0)}, {lit(LOG2E)}")
        X = 96
        for t in range(3):
            self.phi_tile(t, lambda i, p: ('b', A1+4*i), lambda i, p: ('b', A1+4*i+2), lambda i, p: CS+4*t+2*p, X, EPS,
                          (lambda i: PQ + 4*i + 2*t) if t < 2 else (lambda i: PQ + 8 + 2*i))
        self.stamp(6)
        self.stamp(7)
        a(f"s_mul_i32 {s(S_T1)}, {s(S_C)}, {KVT_C}")
        a(f"s_add_u32 {s(S_T1)}, {s(S_T1)}, {KVT}")
        a(f"v_lshl_add_u32 v140, v1, 4, {s(S_T1)}")
        a(f"v_lshl_add_u32 v141, v1, 3, {s(S_T1)}")
        a(f"s_lshl_b32 {s(S_T1)}, {s(S_R)}, 5")
        a(f"s_lshl_b32 {s(S_T2)}, {s(S_C)}, 4")
        a(f"s_add_u32 {s(S_T1)}, {s(S_T1)}, {s(S_T2)}")
        a(f"v_add_u32 v142, {s(S_T1)}, {v(L15)}")
        a(f"v_xor_b32 v143, 16, v142")
        a(f"s_mul_i32 {s(S_T1)}, {s(S_C)}, 80")
        a(f"s_add_u32 {s(S_T1)}, {s(S_T1)}, {OEX}")
        for i in range(2):
            a(f"v_mul_u32_u24 {v(142+i)}, {OP}, {v(142+i)}")
            a(f"v_add_u32 {v(142+i)}, {s(S_T1)}, {v(142+i)}")
            a(f"v_lshl_add_u32 {v(144+i)}, {v(G)}, 1, {v(142+i)}")
            a(f"v_lshl_add_u32 {v(142+i)}, {v(G)}, 3, {v(142+i)}")
        self.stamp(9)
        self.nb_c_q = self.nb_loop + a.nbar - nb + 1
        a.nbar = nb

    def o_segments(self):
        F = 124; PQ = 152
        U = [[32, 36, 40], [44, 48, 148]]
        s0 = [f"ds_read_b64 {v(F+12,2)}, v141 offset:3072", f"ds_read_b64 {v(F+14,2)}, v141 offset:3584"]
        s0 += [f"ds_read_b128 {v(F+4*k,4)}, v140 offset:{1024*k}" for k in (1, 2, 0)]
        s1 = [f"v_mfma_f32_16x16x16_bf16 {v(U[i][k],4)}, {v(F+12+2*(k-1),2)}, {v(PQ+8+2*i,2)}, 0" for k in (1, 2) for i in range(2)]
        s1 += [f"v_mfma_f32_16x16x32_bf16 {v(U[i][0],4)}, {v(F,4)}, {v(PQ+4*i,4)}, 0" for i in range(2)]
        s1 += [f"v_mfma_f32_16x16x32_bf16 {v(U[i][k],4)}, {v(F+4*k,4)}, {v(PQ+4*i,4)}, {v(U[i][k],4)}" for k in (1, 2) for i in range(2)]
        s2 = []
        for i in range(2): s2 += [f"v_add_f32 {v(U[i][1]+e)}, {lit(1e-6)}, {v(U[i][1]+e)}" for e in (1, 2)]
        for i in range(2): s2 += [f"v_rcp_f32 {v(U[i][1]+e)}, {v(U[i][1]+e)}" for e in (1, 2)]
        tl = []
        for i in range(2):
            u0, u1, u2 = U[i]
            t = [f"v_mul_f32 {v(u0+r)}, {v(u0+r)}, {v(u1+1)}" for r in range(4)]
            t += [f"v_mul_f32 {v(u1)}, {v(u1)}, {v(u1+1)}", f"v_cvt_pk_bf16_f32 {v(u0)}, {v(u0)}, {v(u0+1)}",
                  f"v_cvt_pk_bf16_f32 {v(u0+1)}, {v(u0+2)}, {v(u0+3)}", f"ds_write_b64 {v(142+i)}, {v(u0,2)}"]
            t += [f"v_mul_f32 {v(u2+r)}, {v(u2+r)}, {v(u1+2)}" for r in range(4)]
            t += [f"v_mul_f32 {v(u1+3)}, {v(u1+3)}, {v(u1+2)}", f"v_cvt_pk_bf16_f32 {v(u2)}, {v(u2)}, {v(u2+1)}",
                  f"v_cvt_pk_bf16_f32 {v(u2+1)}, {v(u2+2)}, {v(u2+3)}", f"v_cvt_pk_bf16_f32 {v(u1)}, {v(u1)}, {v(u1+3)}",
                  f"ds_write_b64 {v(142+i)}, {v(u2,2)} offset:40", f"ds_write_b16 {v(144+i)}, {v(u1)} offset:32",
                  f"ds_write_b16_d16_hi {v(144+i)}, {v(u1)} offset:72"]
            tl.append(t)
        return [s0, s1, s2 + tl[0], tl[1]]
    def o_block(self):
        a = self.a; sg = self.o_segments()
        for x in sg[0]: a(x)
        a("s_waitcnt lgkmcnt(0)")
        for g in sg[1:]:
            for x in g: a(x)
        self.stamp(13)

    AM = 12; AS = 32; P2X = 52; P2Y = 72; AR = 92; OR = 124
    def p2_pre_setup(self):
        a = self.a
        a(f"s_lshl_b32 {s(S_T2)}, {s(S_TT)}, 2")
        a(f"s_add_u32 {s(S_T2)}, {s(S_T2)}, {s(S_R)}")
        a(f"s_mul_i32 {s(S_OH)}, {s(S_T2)}, {48*1024}")
        a(f"s_mul_i32 {s(S_T3)}, {s(S_C)}, {24*1024}")
        a(f"s_add_u32 {s(S_OH)}, {s(S_OH)}, {s(S_T3)}")
        a(f"s_add_u32 {s(S_OH)}, {s(S_OH)}, {WS_H2}")
        a(f"s_mul_i32 {s(S_NONCE)}, {s(S_T2)}, {8*2560}")
        a(f"s_mul_i32 {s(S_T3)}, {s(S_C)}, {4*2560}")
        a(f"s_add_u32 {s(S_NONCE)}, {s(S_NONCE)}, {s(S_T3)}")
        a(f"s_add_u32 {s(S_NONCE)}, {s(S_NONCE)}, {WS_O2}")
        self.rot2(S_KC)
    def hload(self, j):
        a = self.a
        if j % 2 == 0:
            self.chunk_id(S_OA, S_T3, j // 2)
            a(f"s_lshl_b32 {s(S_OA)}, {s(S_OA)}, 11")
            a(f"s_add_u32 {s(S_OA)}, {s(S_OA)}, {s(S_OH)}")
        a(f"buffer_load_dwordx4 {v(self.AR+4*(j%8),4)}, v2, {s(R_WS,4)}, {s(S_OA)} offen offset:{1024*(j%2)} {self.cfg.hsc}")
    def p2_pre_loads(self, j0, j1):
        for j in range(j0, j1): self.hload(j)

    def phase2(self):
        a = self.a
        a.label('Lp2')
        a(f"s_cmp_lg_u32 {s(S_C)}, 0")
        a(f"s_cbranch_scc1 Lp2_1")
        for kap in range(2): self.phase2k(kap)

    def phase2k(self, kap):
        a = self.a; cfg = self.cfg
        nb = a.nbar
        a.label(f"Lp2_{kap}")
        AM, AS, XB, YB, AR, OR = self.AM, self.AS, self.P2X, self.P2Y, self.AR, self.OR
        VB = 4
        M = "v_mfma_f32_16x16x32_bf16"
        a(f"v_add_u32 v4, {kap*10240}, v2")
        a(f"v_add_u32 v5, {SLOT + kap*10240}, v2")
        a(f"v_add_u32 v6, {2*SLOT + kap*10240}, v2")
        q = [('A', j) for j in range(cfg.ramp)]
        hn = [cfg.ramp]
        def hload_upto(n, cap):
            while hn[0] < min(n, 24) and cap > 0:
                self.hload(hn[0]); q.append(('A', hn[0])); hn[0] += 1; cap -= 1
        ol = []
        for P in range(2):
            for i5 in range(4):
                ol.append((P, i5 >> 1, f"buffer_load_dwordx4 {v(OR+4*(5*P+i5),4)}, v2, {s(R_WS,4)}, {s(S_T0)} offen offset:{1024*(i5&1)} sc1", 24 + 5*P + i5))
            for hh in range(2):
                ol.append((P, hh, f"buffer_load_dwordx2 {v(OR+4*(5*P+4)+2*hh,2)}, v3, {s(R_WS,4)}, {s(S_T0)} offen offset:2048 sc1", 24 + 5*P + 4))
        def oloads(n):
            for _ in range(n):
                if not ol: return
                P, hh, txt, st = ol.pop(0)
                a(f"s_add_u32 {s(S_T0)}, {s(S_NONCE)}, {(2*P+hh)*2560}")
                a(txt); q.append(('A', st))
        def wait(tag):
            assert not any(o[3] == tag[1] for o in ol)
            idx = [k for k, t in enumerate(q) if t == tag]
            if not idx: return
            n = sum(1 for t in q[idx[-1]+1:] if t[0] != 'S')
            a(f"s_waitcnt vmcnt({n})")
            del q[:idx[-1] + 1]
        def areg(j): return AR + 4 * (j % 8) if j < 24 else OR + 4 * (j - 24)
        def reads(j, B):
            i = j // 2; base = RING[i % 6]; vb = VB + base // SLOT; off = base % SLOT + (j & 1) * 5120
            return [f"ds_read_b128 {v(B+4*c,4)}, {v(vb)} offset:{off + 1024*c}" for c in range(5)]
        def mfmas(j, B):
            ac = AM if j < 24 else AS
            first = j == 24 or (j == 0 and kap == 1)
            return [f"{M} {v(ac+4*c,4)}, {v(B+4*c,4)}, {v(areg(j),4)}, {'0' if first else v(ac+4*c,4)}" for c in range(5)]
        lq = []
        def lds(txt, tag): a(txt); lq.append(tag)
        def lwait(tag):
            idx = [k for k, t in enumerate(lq) if t == tag]
            if not idx: return
            a(f"s_waitcnt lgkmcnt({len(lq) - 1 - idx[-1]})")
            del lq[:idx[-1] + 1]
        own = [0, 1, 2] if kap == 0 else [3, 4]
        give = [c for c in range(5) if c not in own]
        a(f"v_lshlrev_b32 v3, 3, v1")
        a(f"v_mov_b32 v167, 0xffff0000")
        def unpack(d, b):
            return [f"v_lshlrev_b32 {v(d)}, 16, {v(b)}", f"v_and_b32 {v(d+1)}, v167, {v(b)}",
                    f"v_lshlrev_b32 {v(d+2)}, 16, {v(b+1)}", f"v_and_b32 {v(d+3)}, v167, {v(b+1)}"]
        if kap == 0:
            a(f"v_lshlrev_b32 v9, 3, {v(self.G)}")
            a(f"v_add_u32 v9, {B2L}, v9")
            for c in range(5): lds(f"ds_read_b64 {v(AS+2*c,2)}, v9 offset:{32*c}", 'b2')
        if kap == 0:
            lwait('b2')
            for c in range(5):
                for x in unpack(AM + 4*c, AS + 2*c): a(x)
        a(f"s_mul_i32 {s(S_T0)}, {s(S_R)}, 5120")
        a(f"s_add_u32 {s(S_T0)}, {s(S_T0)}, {EXB}")
        a(f"v_add_u32 v7, {s(S_T0)}, v2")
        a(f"s_lshl_b32 {s(S_T0)}, {s(S_R)}, 4")
        a(f"v_add_u32 v8, {s(S_T0)}, {v(self.L15)}")
        a(f"v_mul_u32_u24 v8, 160, v8")
        a(f"v_lshl_add_u32 v8, {v(self.G)}, 3, v8")
        a(f"v_add_u32 v8, {XT}, v8")
        a(f"s_mul_i32 {s(S_T0)}, {s(S_R)}, {16*OP}")
        a(f"s_add_u32 {s(S_T0)}, {s(S_T0)}, {OT}")
        a(f"v_mul_u32_u24 v9, {OP}, {v(self.L15)}")
        a(f"v_lshl_add_u32 v9, {v(self.G)}, 3, v9")
        a(f"v_add_u32 v9, {s(S_T0)}, v9")
        G = AR
        self.final_prep()
        a(f"v_mov_b32 v10, {lit(-LOG2E)}")
        X = G + 20
        sil = []
        for k, c in enumerate(own):
            g = G + 4 * k; x = X + 4 * k; R = range(4)
            sil += [f"v_add_f32 {v(g+r)}, {v(g+r)}, {v(AM+4*c+r)}" for r in R]
            sil += [f"v_mul_f32 {v(x+r)}, v10, {v(g+r)}" for r in R]
            sil += [f"v_exp_f32 {v(x+r)}, {v(x+r)}" for r in R]
            sil += [f"v_add_f32 {v(x+r)}, 1.0, {v(x+r)}" for r in R]
            sil += [f"v_rcp_f32 {v(x+r)}, {v(x+r)}" for r in R]
            sil += [f"v_mul_f32 {v(g+r)}, {v(g+r)}, {v(x+r)}" for r in R]
        XR = G + 12
        for k, c in enumerate(own): sil += unpack(AM + 4 * k, XR + 2 * k)
        if cfg.late:
            prs = [(k, c, p) for k, c in enumerate(own) for p in range(2)]
            sil = [pk('add', G+4*k+2*p, G+4*k+2*p, AM+4*c+2*p) for k, c, p in prs]
            sil += [pk('mul', X+4*k+2*p, G+4*k+2*p, ('b', 10)) for k, c, p in prs]
            sil += [f"v_exp_f32 {v(X+k)}, {v(X+k)}" for k in range(4*len(own))]
            sil += [pk('add', X+4*k+2*p, X+4*k+2*p, '1.0') for k, c, p in prs]
            sil += [f"v_rcp_f32 {v(X+k)}, {v(X+k)}" for k in range(4*len(own))]
            sil += [pk('mul', G+4*k+2*p, G+4*k+2*p, X+4*k+2*p) for k, c, p in prs]
            for k, c in enumerate(own): sil += unpack(AM + 4 * k, XR + 2 * k)
        nsl = 7; per = -(-len(sil) // nsl)
        def take():
            r = sil[:per]; del sil[:per]; return r
        def step(j, extra=(), tag=None):
            B = XB if j % 2 == 0 else YB
            mf = mfmas(j, B); rd = reads(j + 2, B) if j + 2 < 34 else []
            ex = take() if j >= 27 and not cfg.late else list(extra)
            order = give + own if j == 33 else range(5)
            n = 0
            for k, c in enumerate(order):
                a(mf[c])
                if rd: lds(rd[c], j + 2)
                while n < (k + 1) * len(ex) // 5:
                    if ex[n].startswith('ds_'): lds(ex[n], tag)
                    else: a(ex[n])
                    n += 1
            hload_upto(min(j + 9, 8 if j < 2 * cfg.kb - 1 else (16 if j < 2 * cfg.kh - 1 else 24)), 3)
        a(f"s_setprio {cfg.pp}")
        a("s_barrier"); a.nbar -= 1
        self.p2_pre_loads(0, cfg.ramp)
        for x in reads(0, XB): lds(x, 0)
        for x in reads(1, YB): lds(x, 1)
        self.stamp(20)
        def one(j, extra=(), tag=None, pre=None):
            i = j // 2
            if cfg.late:
                if j == 24:
                    for c in give: lds(f"ds_write_b128 v7, {v(AM+4*c,4)} offset:{1024*c}", 'mx')
                    lwait('mx')
                    a("s_barrier"); self.stamp(33)
                    for k, c in enumerate(own):
                        lds(f"ds_read_b128 {v(G+4*k,4)}, v7 offset:{1024*c}", 'g')
                        lds(f"ds_read_b64 {v(XR+2*k,2)}, v8 offset:{32*c}", 'g')
                    oloads(cfg.ofirst)
                    lwait('g')
                    nrest = len(ol); nsil = len(sil)
                    for n, x in enumerate(sil):
                        a(x)
                        if nrest and (n + 1) * nrest // nsil > n * nrest // nsil: oloads(1)
                    sil.clear()
                    self.stamp(34)
            elif j % 2 == 0:
                if i >= cfg.ko: oloads((cfg.opc + 1) // 2)
            else:
                if i >= cfg.ko: oloads(cfg.opc // 2)
            if j == 0:
                a("s_waitcnt vmcnt(0)"); q.clear()
            wait(('A', j))
            lwait(j)
            if j == 27 and not cfg.late: lwait('g')
            if j % 2 == 1 and i <= 11:
                a("s_barrier"); self.stamp(21 + i)
            if j == 26 and not cfg.late:
                lwait('mx')
                a("s_barrier"); self.stamp(33)
                for k, c in enumerate(own):
                    lds(f"ds_read_b128 {v(G+4*k,4)}, v7 offset:{1024*c}", 'g')
                    lds(f"ds_read_b64 {v(XR+2*k,2)}, v8 offset:{32*c}", 'g')
            if pre: lwait(pre)
            if tag == 'of':
                for x in extra: lds(x, tag)
                extra = ()
            step(j, extra, tag)
            if j == 24 and not cfg.late:
                for c in give: lds(f"ds_write_b128 v7, {v(AM+4*c,4)} offset:{1024*c}", 'mx')
        j = 0
        while j < 34:
            if j == 2 * cfg.ka - 1 and cfg.oil:
                import copy
                sg = self.o_segments()
                Lk = f"Lok_{kap}"; Lj = f"Loj_{kap}"
                a(f"s_cmp_eq_u32 {s(S_TY)}, 0")
                a(f"s_cbranch_scc1 {Lk}")
                st = (list(q), list(lq), list(hn), a.nbar)
                ns = 2 * cfg.onc
                if ns == 4:
                    for n in range(4): one(j + n, sg[n], 'of' if n == 0 else 'ox', 'of' if n == 1 else None)
                else:
                    one(j, sg[0], 'of')
                    lwait('of')
                    for x in sg[1]: a(x)
                    one(j + 1, sg[2] + sg[3], 'ox')
                lwait('ox')
                self.stamp(13)
                a.label(Lj)
                q[:], lq[:], hn[:], a.nbar = st[0], st[1], st[2], st[3]
                mark = len(a.lines)
                a.label(Lk)
                for n in range(ns): one(j + n)
                a(f"s_branch {Lj}")
                self.late_lines += a.lines[mark:]; del a.lines[mark:]
                j += ns
                continue
            one(j)
            if j == 2 * cfg.ka - 1:
                a(f"s_cmp_eq_u32 {s(S_TY)}, 0")
                a(f"s_cbranch_scc1 Lobr_{kap}")
                self.o_block()
                a.label(f"Lobr_{kap}")
            j += 1
        assert not ol and not sil
        for c in give: a(f"ds_write_b128 v7, {v(AS+4*c,4)} offset:{1024*c}")
        X = AM
        a("s_waitcnt lgkmcnt(0)")
        a("s_barrier")
        for k, c in enumerate(own): a(f"ds_read_b128 {v(XB+4*k,4)}, v7 offset:{1024*c}")
        a("s_waitcnt lgkmcnt(0)")
        prs = [(k, c, p) for k, c in enumerate(own) for p in range(2)]
        for k, c, p in prs: a(pk('add', XB+4*k+2*p, XB+4*k+2*p, AS+4*c+2*p))
        for k, c, p in prs: a(pk('fma', X+4*k+2*p, XB+4*k+2*p, G+4*k+2*p, X+4*k+2*p))
        for k, c, p in prs: a(f"v_cvt_pk_bf16_f32 {v(XB+2*k+p)}, {v(X+4*k+2*p)}, {v(X+4*k+2*p+1)}")
        for k, c in enumerate(own): a(f"ds_write_b64 v9, {v(XB+2*k,2)} offset:{32*c}")
        a("s_waitcnt lgkmcnt(0)")
        a("s_barrier")
        self.nb_c_p2 = a.nbar - nb
        a.nbar = nb
        if kap == 0: self.goto_final()

    def build(self):
        a = self.a
        self.entry()
        self.loader()
        self.compute_setup()
        if self.cfg.pp1: self.pp_hooks()
        else:
            self.duty(0, self.XA, self.XB)
            self.duty(1, self.YA, self.YB)
            self.pack_blocks()
        self.p1_loop(0); self.epi_kv()
        self.p1_loop(1); self.epi_q()
        self.phase2()
        self.final_store()
        a.lines += self.late_lines
        a.label('Lcode_end')
        assert self.nb_ld_kv == self.nb_c_kv, (self.nb_ld_kv, self.nb_c_kv)
        assert self.nb_ld_q == self.nb_c_q, (self.nb_ld_q, self.nb_c_q)
        assert self.nb_ld_p2 == self.nb_c_p2, (self.nb_ld_p2, self.nb_c_p2)
        body = a.finish()
        head = open('recurrent_scan__linear_attn_block__mixer_channel_mlp__prompt.s.ref').read().split('; Override launch')[0]
        txt = head + f"; @launch grid=(256,1,1) block=({self.NTH},1,1) lds={LDS_TOTAL}\n"
        txt += f'.amdgcn_target "amdgcn-amd-amdhsa--gfx950"\n.text\n.globl {NAME}\n.p2align 8\n.type {NAME},@function\n{NAME}:\n'
        txt += body
        txt += f""".section .rodata,"a"
.p2align 6
.amdhsa_kernel {NAME}
  .amdhsa_next_free_vgpr {self.NVG}
  .amdhsa_next_free_sgpr 102
  .amdhsa_accum_offset {self.NVG}
  .amdhsa_group_segment_fixed_size 0
  .amdhsa_kernarg_size 88
  .amdhsa_user_sgpr_count 2
  .amdhsa_user_sgpr_kernarg_segment_ptr 1
  .amdhsa_system_sgpr_workgroup_id_x 1
.end_amdhsa_kernel
"""
        return txt

def wg_type(cfg_kw, wg):
    m = cfg_kw.get('map1', Cfg.map1)
    return (wg >> {'A': 5, 'B': 6, 'D': 7}[m]) & 1

def make(**kw):
    cfg = Cfg()
    for k, x in kw.items(): setattr(cfg, k, x)
    return Gen(cfg).build()

if __name__ == '__main__':
    out = sys.argv[1] if len(sys.argv) > 1 else 'recurrent_scan__linear_attn_block__mixer_channel_mlp__prompt.s'
    kw = {}
    for x in sys.argv[2:]:
        k, val = x.split('='); kw[k] = eval(val)
    open(out, 'w').write(make(**kw))
```

```python
import sys, math
from gen import *
import gen as G0

class Cfg4(Cfg):
    cpw = 3
    cpn = 10
    cpf = 4
    ldj = False
    two = True
    pc = 0
    cpi = 3
    kh = 4
    tl2 = True
    pkp = 0
    of0 = 4
    rd0 = 2
    ramp = 2
    depth = 8
    opc = 12

class Gen4(Gen):
    CT = 256; NTH = 512; NVG = 256
    ACC = 12; XA = 124; XB = 140; YA = 168; YB = 184
    ONES = 212; RS = (216, 220); SQ = (224, 228); CSD = 232
    L15 = 248; G = 249; C1 = 250; TOK = 251
    PKV = (250, 252, 253, 254, 255)
    PQ = 208
    def acc(self, t, i): return self.ACC + (4 * t + i) * 4

    def loader_final(self):
        a = self.a
        L = self.lab('lf')
        a(f"s_cmp_ge_u32 {s(S_WID)}, 2")
        a(f"s_cbranch_scc1 {L}")
        a(f"ds_read_b64 v[12:13], v162")
        a(f"ds_read_b64 v[14:15], v162 offset:8")
        a("s_waitcnt lgkmcnt(0)")
        a(f"buffer_store_dwordx4 v[12:15], v163, {s(R_OUT,4)}, {s(S_IT)} offen {self.cfg.osc}")
        a.label(L)
        self.goto_final()
    def final_prep(self, d=164, second=True):
        a = self.a
        srd(a, R_OUT, P_OUT, 2048 * 1280)
        for dd, off in ((d, 0), (162, 256)) if second else ((d, 0),):
            a(f"v_add_u32 v12, {off}, v0" if second else f"v_mov_b32 {v(dd)}, v0")
            src = 'v12' if second else v(dd)
            a(f"v_mul_u32_u24 {v(dd+1)}, 6554, {src}")
            a(f"v_lshrrev_b32 {v(dd+1)}, 16, {v(dd+1)}")
            a(f"v_lshlrev_b32 {v(dd)}, 4, {src}")
            a(f"v_mad_u32_u24 {v(self.TF)}, {v(dd+1)}, 8, {v(dd)}")
            a(f"v_mul_u32_u24 {v(dd+1)}, {1280-160}, {v(dd+1)}")
            a(f"v_add_u32 {v(dd+1)}, {v(dd+1)}, {v(dd)}")
            a(f"v_add_u32 {v(dd)}, {OT}, {v(self.TF)}")
        a(f"s_mul_i32 {s(S_IT)}, {s(S_TT)}, {64*1280}")
        a(f"s_mul_i32 {s(S_T1)}, {s(S_N)}, 160")
        a(f"s_add_u32 {s(S_IT)}, {s(S_IT)}, {s(S_T1)}")
    TF = 13
    FD = 164
    def out_store(self):
        a = self.a
        a(f"ds_read_b64 v[4:5], {v(self.FD)}")
        a(f"ds_read_b64 v[6:7], {v(self.FD)} offset:8")
        a("s_waitcnt lgkmcnt(0)")
        a(f"buffer_store_dwordx4 v[4:7], {v(self.FD+1)}, {s(R_OUT,4)}, {s(S_IT)} offen {self.cfg.osc}")

    def pack_setup(self, ld=False):
        a = self.a
        w0 = 0 if ld else 4; PKV = range(134, 139) if ld else self.PKV; PKO = 4 if ld else S_PKO
        a(f"s_cmp_gt_u32 {s(S_U)}, 135")
        a(f"s_cselect_b32 {s(S_T0)}, 0, {s(S_U)}")
        a(f"s_lshr_b32 {s(S_T0)}, {s(S_T0)}, 1")
        a(f"s_cmp_lt_u32 {s(S_T0)}, 48")
        a(f"s_cselect_b32 {s(R_PK)}, {s(P_W2)}, {s(P_WO)}")
        a(f"s_cselect_b32 {s(R_PK+1)}, {s(P_W2+1)}, {s(P_WO+1)}")
        a(f"s_mov_b32 {s(R_PK+2)}, {hex(640*1280)}")
        a(f"s_cselect_b32 {s(R_PK+2)}, {hex(1536*1280)}, {s(R_PK+2)}")
        a(f"s_mov_b32 {s(R_PK+3)}, 0x20000")
        Lm = self.lab('pkm'); Ld = self.lab('pkd')
        a(f"s_cbranch_scc1 {Lm}")
        a(f"s_sub_u32 {s(S_T3)}, {s(S_T0)}, 48")
        a(f"s_mul_i32 {s(S_T1)}, {s(S_T3)}, 52")
        a(f"s_lshr_b32 {s(S_T1)}, {s(S_T1)}, 8")
        a(f"s_mul_i32 {s(S_T2)}, {s(S_T1)}, 5")
        a(f"s_sub_u32 {s(S_T3)}, {s(S_T3)}, {s(S_T2)}")
        a(f"s_mul_i32 {s(S_T1)}, {s(S_T1)}, 160")
        a(f"s_lshl_b32 {s(S_T2)}, {s(S_T3)}, 5")
        a(f"s_cmp_ge_u32 {s(S_T3)}, 2")
        a(f"s_cselect_b32 {s(S_T0)}, 16, 0")
        a(f"s_add_u32 {s(S_T2)}, {s(S_T2)}, {s(S_T0)}")
        a(f"s_cmp_eq_u32 {s(S_T3)}, 4")
        a(f"s_cselect_b32 {s(S_T2)}, 64, {s(S_T2)}")
        a(f"s_cselect_b32 {s(S_T0)}, {64*1280}, 0")
        a(f"s_add_u32 {s(S_T1)}, {s(S_T1)}, {s(S_T2)}")
        a(f"s_branch {Ld}")
        a.label(Lm)
        a(f"s_mul_i32 {s(S_T1)}, {s(S_T0)}, 43")
        a(f"s_lshr_b32 {s(S_T1)}, {s(S_T1)}, 8")
        a(f"s_mul_i32 {s(S_T1)}, {s(S_T1)}, 6")
        a(f"s_sub_u32 {s(S_T1)}, {s(S_T0)}, {s(S_T1)}")
        a(f"s_cmp_eq_u32 {s(S_T1)}, 3")
        a(f"s_cselect_b32 {s(S_T2)}, 1, 0")
        a(f"s_cmp_eq_u32 {s(S_T1)}, 4")
        a(f"s_cselect_b32 {s(S_T2)}, -1, {s(S_T2)}")
        a(f"s_add_u32 {s(S_T0)}, {s(S_T0)}, {s(S_T2)}")
        a(f"s_lshl_b32 {s(S_T1)}, {s(S_T0)}, 5")
        a(f"s_mov_b32 {s(S_T0)}, 0")
        a.label(Ld)
        a(f"s_and_b32 {s(R_PK+1)}, {s(R_PK+1)}, 0xffff")
        a(f"s_cmp_ge_u32 {s(S_WID)}, {w0 + 2}")
        a(f"s_cselect_b32 {s(S_T0)}, {s(S_T0)}, 0")
        a(f"s_lshl_b32 {s(S_T2)}, {s(S_WID)}, 3")
        a(f"s_add_u32 {s(S_T1)}, {s(S_T1)}, {s(S_T2)}")
        a(f"s_sub_u32 {s(S_T1)}, {s(S_T1)}, {8 * w0}")
        a(f"s_mul_i32 {s(S_T1)}, {s(S_T1)}, 1280")
        a(f"s_add_u32 {s(S_T1)}, {s(S_T1)}, {s(S_T0)}")
        a(f"s_and_b32 {s(S_T2)}, {s(S_U)}, 1")
        a(f"s_mul_i32 {s(S_T3)}, {s(S_T2)}, 640")
        a(f"s_add_u32 {s(PKO)}, {s(S_T1)}, {s(S_T3)}")
        a(f"v_mov_b32 v145, {hex(OOB)}")
        a(f"s_mul_i32 {s(S_T2)}, {s(S_RB)}, 160")
        a(f"s_cmp_eq_u32 {s(S_TY)}, {self.cfg.pkty}")
        a(f"s_cselect_b32 {s(S_T2)}, 0, {s(S_T2)}")
        a(f"s_movk_i32 {s(S_T3)}, 160")
        a(f"s_cselect_b32 {s(S_T3)}, 640, {s(S_T3)}")
        for i in range(5):
            a(f"v_add_u32 v141, {64*i}, v1")
            a(f"v_mul_u32_u24 v142, 1639, v141")
            a(f"v_lshrrev_b32 v142, 16, v142")
            a(f"v_mul_u32_u24 v142, 640, v142")
            a(f"v_lshlrev_b32 v141, 4, v141")
            a(f"v_sub_u32 v144, v141, v142")
            a(f"v_add_u32 v142, v142, v141")
            a(f"v_subrev_u32 v144, {s(S_T2)}, v144")
            a(f"v_cmp_gt_u32 vcc, {s(S_T3)}, v144")
            a(f"v_cndmask_b32 {v(PKV[i])}, v145, v142, vcc")

    def ldj_setup(self):
        a = self.a
        self.pack_setup(True)
        a(f"v_lshrrev_b32 v140, 2, v1")
        a(f"v_mul_u32_u24 v140, 640, v140")
        a(f"v_and_b32 v141, 3, v1")
        a(f"v_lshl_add_u32 v140, v141, 3, v140")
        a(f"s_mul_i32 {s(S_T0)}, {s(S_L)}, 160")
        a(f"s_add_u32 {s(S_T0)}, {s(S_T0)}, {SCR}")
        a(f"v_add_u32 v130, {s(S_T0)}, v140")
        a(f"s_and_b32 {s(S_T0)}, {s(S_U)}, 1")
        a(f"s_lshl_b32 {s(S_T0)}, {s(S_T0)}, 2")
        a(f"s_add_u32 {s(S_T0)}, {s(S_T0)}, {s(S_L)}")
        a(f"s_mul_i32 {s(S_T0)}, {s(S_T0)}, 68")
        a(f"s_lshr_b32 {s(S_T1)}, {s(S_U)}, 1")
        a(f"s_add_u32 {s(S_T0)}, {s(S_T0)}, {s(S_T1)}")
        a(f"s_mul_i32 {s(S_T0)}, {s(S_T0)}, 5120")
        a(f"s_add_u32 {s(S_IT)}, {s(S_T0)}, {WS_P2}")
        a(f"s_and_b32 {s(S_T1)}, {s(S_L)}, 1")
        a(f"s_lshl_b32 {s(S_T1)}, {s(S_T1)}, 6")
        a(f"v_add_u32 v140, {s(S_T1)}, v1")
        a(f"v_lshlrev_b32 v133, 3, v140")
        Lc = self.lab('jc'); Ld = self.lab('jd')
        a(f"s_cmp_ge_u32 {s(S_L)}, 2")
        a(f"s_cbranch_scc1 {Lc}")
        a(f"v_lshlrev_b32 v131, 2, v140")
        a(f"v_add_u32 v131, {DRS}, v131")
        a(f"v_lshlrev_b32 v132, 4, v140")
        a(f"v_lshl_add_u32 v132, v141, 2, v132")
        a(f"v_add_u32 v132, {DSQ}, v132")
        a(f"s_mul_i32 {s(S_T0)}, {s(S_RB)}, 10")
        a(f"s_add_u32 {s(S_T0)}, {s(S_T0)}, {WS_RP // 1024}")
        a(f"s_cmp_lt_u32 {s(S_COL)}, 10")
        a(f"s_branch {Ld}")
        a.label(Lc)
        a(f"v_add_u32 v131, {DCS}, v133")
        a(f"v_add_u32 v132, 4, v131")
        a(f"s_mul_i32 {s(S_T0)}, {s(S_COL)}, 10")
        a(f"s_add_u32 {s(S_T0)}, {s(S_T0)}, {WS_CP // 1024}")
        a(f"s_cmp_lt_u32 {s(S_RB)}, 10")
        a.label(Ld)
        a(f"s_cselect_b32 {s(S_T1)}, 0, {hex(OOB)}")
        a(f"v_add_u32 v133, {s(S_T1)}, v133")
        a(f"s_add_u32 {s(S_T0)}, {s(S_T0)}, {s(S_S0)}")
        a(f"s_lshl_b32 {s(S_DELTA)}, {s(S_T0)}, 10")
    def ldj_dma(self):
        a = self.a; L = self.lab('jp')
        a(f"s_cmp_gt_u32 {s(S_U)}, 135")
        a(f"s_cbranch_scc1 {L}")
        a(f"s_mul_i32 {s(S_T0)}, {s(S_L)}, 5120")
        for i in range(5):
            a(f"s_add_u32 m0, {s(S_T0)}, {SCR + 1024*i}")
            a(f"buffer_load_dwordx4 {v(134+i)}, {s(R_PK,4)}, s4 offen lds")
        a.label(L)
    def ldj_reads(self):
        a = self.a; L = self.lab('jr')
        a(f"ds_read_b32 v128, v131")
        a(f"ds_read_b32 v129, v132")
        a(f"s_cmp_gt_u32 {s(S_U)}, 135")
        a(f"s_cbranch_scc1 {L}")
        for c in range(5):
            a(f"ds_read_b64_tr_b16 {v(108+4*c,2)}, v130 offset:{32*c}")
            a(f"ds_read_b64_tr_b16 {v(110+4*c,2)}, v130 offset:{32*c + 16*640}")
        a.label(L)
    def ldj_stores(self):
        a = self.a; L = self.lab('js')
        a("s_waitcnt lgkmcnt(0)")
        a(f"buffer_store_dwordx2 v[128:129], v133, {s(R_WS,4)}, {s(S_DELTA)} offen sc1")
        a(f"s_cmp_gt_u32 {s(S_U)}, 135")
        a(f"s_cbranch_scc1 {L}")
        a(f"s_cmp_eq_u32 {s(S_TY)}, {self.cfg.pkty}")
        a(f"s_cselect_b32 {s(S_T0)}, {s(S_L)}, {s(S_RB)}")
        a(f"s_cmp_lg_u32 {s(S_T0)}, {s(S_L)}")
        a(f"s_cbranch_scc1 {L}")
        a(f"s_add_u32 {s(S_T1)}, {s(S_IT)}, 4096")
        for c in range(4):
            a(f"buffer_store_dwordx4 {v(108+4*c,4)}, v39, {s(R_WS,4)}, {s(S_IT)} offen offset:{1024*c} sc1")
        a(f"buffer_store_dwordx4 v[124:127], v39, {s(R_WS,4)}, {s(S_T1)} offen sc1")
        a.label(L)
    def duty_dump(self):
        a = self.a
        a(f"v_lshlrev_b32 v252, 2, {v(self.TOK)}")
        a(f"v_add_u32 v252, {(DSQ - 4*ST) & 0xffffffff}, v252")
        a(f"v_add_u32 v253, {(DRS - ST) & 0xffffffff}, {v(self.TOK)}")
        a(f"v_lshl_add_u32 v254, {v(self.L15)}, 2, {s(S_CPA)}")
        exec_mask(a, DIAGMASK)
        for i in range(2):
            a(f"ds_write_b128 v252, {v(self.SQ[i],4)} offset:{256*i}")
            a(f"ds_write_b32 v253, {v(self.RS[i])} offset:{64*i}")
        L = self.lab('dn')
        for k in range(4):
            if k == 3:
                a(f"s_cmp_lg_u32 {s(S_R)}, 0")
                a(f"s_cbranch_scc1 {L}")
            a(f"ds_write_b32 v254, {v(self.CSD+4*k)} offset:{64*k}")
        a.label(L)
        a("s_mov_b64 exec, -1")

    def code_prefetch(self, T):
        a = self.a; mark = len(a.lines)
        super().code_prefetch(T)
        a.lines[mark:] = [(k, t.replace('global_load_dword v166', 'global_load_dword v255')) for k, t in a.lines[mark:]]

    def h_addr(self, ks0, dummy=None):
        a = self.a
        a(f"s_lshl_b32 {s(S_T0)}, {s(S_RB)}, 3")
        a(f"s_lshl_b32 {s(S_T1)}, {s(S_R)}, 2")
        a(f"s_add_u32 {s(S_T0)}, {s(S_T0)}, {s(S_T1)}")
        a(f"s_lshl_b32 {s(S_T1)}, {s(S_C)}, 1")
        a(f"s_add_u32 {s(S_T0)}, {s(S_T0)}, {s(S_T1)}")
        a(f"s_xor_b32 {s(S_T1)}, {s(S_T0)}, 2")
        a(f"s_mul_i32 {s(S_T2)}, {s(S_HG)}, 6")
        a(f"s_add_u32 {s(S_T2)}, {s(S_T2)}, {s(S_C)}")
        a(f"s_add_u32 {s(S_T2)}, {s(S_T2)}, {ks0 + WS_H2 // 1024}")
        for k, d in ((S_T0, S_OW), (S_T1, S_OM)):
            a(f"s_mul_i32 {s(k)}, {s(k)}, 48")
            a(f"s_add_u32 {s(k)}, {s(k)}, {s(S_T2)}")
            a(f"s_lshl_b32 {s(d)}, {s(k)}, 10")
    def h_store(self, p, hp, reg):
        a = self.a; b = (S_OW, S_OM)[hp]
        a(f"s_add_u32 {s(S_T0)}, {s(b)}, {48*1024}")
        a(f"buffer_store_dwordx4 {v(reg,4)}, v2, {s(R_WS,4)}, {s(b)} offen offset:{2048*p} sc1")
        a(f"buffer_store_dwordx4 {v(reg+4,4)}, v2, {s(R_WS,4)}, {s(S_T0)} offen offset:{2048*p} sc1")
    def signal(self, which):
        a = self.a
        a(f"v_mov_b32 v4, {ST_C + 4*which}")
        a(f"v_mov_b32 v5, 1")
        a("s_mov_b64 exec, 1")
        a("ds_add_u32 v4, v5")
        a("s_mov_b64 exec, -1")

    def p2_pre_setup(self):
        a = self.a
        a(f"s_lshl_b32 {s(S_T2)}, {s(S_TT)}, 2")
        a(f"s_lshl_b32 {s(S_T3)}, {s(S_R)}, 1")
        a(f"s_add_u32 {s(S_T2)}, {s(S_T2)}, {s(S_T3)}")
        a(f"s_add_u32 {s(S_T2)}, {s(S_T2)}, {s(S_C)}")
        a(f"s_xor_b32 {s(S_T3)}, {s(S_T2)}, 1")
        for src, dh, do in ((S_T2, S_OH, S_NONCE), (S_T3, S_XCD, 3)):
            a(f"s_mul_i32 {s(dh)}, {s(src)}, {48*1024}")
            a(f"s_mul_i32 {s(S_T0)}, {s(S_C)}, {24*1024}")
            a(f"s_add_u32 {s(dh)}, {s(dh)}, {s(S_T0)}")
            a(f"s_add_u32 {s(dh)}, {s(dh)}, {WS_H2}")
            a(f"s_mul_i32 {s(do)}, {s(src)}, {8*2560}")
            a(f"s_mul_i32 {s(S_T0)}, {s(S_C)}, {4*2560}")
            a(f"s_add_u32 {s(do)}, {s(do)}, {s(S_T0)}")
            a(f"s_add_u32 {s(do)}, {s(do)}, {WS_O2}")
        self.rot2(S_KC)

    def compute_setup(self):
        a = self.a; cfg = self.cfg
        a.label('Lcompute')
        T = 124
        L15, G, TOK = self.L15, self.G, self.TOK
        a(f"s_sub_u32 {s(S_T0)}, {s(S_WID)}, 4")
        a(f"s_and_b32 {s(S_R)}, {s(S_T0)}, 1")
        a(f"s_lshr_b32 {s(S_C)}, {s(S_T0)}, 1")
        a(f"v_add_u32 v0, {-256 & 0xffffffff}, v0")
        a(f"v_and_b32 {v(L15)}, 15, v1")
        a(f"v_lshrrev_b32 {v(G)}, 4, v1")
        a(f"v_lshrrev_b32 {v(T+2)}, 1, {v(L15)}")
        a(f"v_xor_b32 {v(T+2)}, {v(T+2)}, {v(G)}")
        a(f"v_lshlrev_b32 {v(T+2)}, 4, {v(T+2)}")
        a(f"v_lshl_add_u32 {v(T+2)}, {v(L15)}, 7, {v(T+2)}")
        a(f"s_lshl_b32 {s(S_T0)}, {s(S_R)}, 13")
        a(f"s_lshl_b32 {s(S_T1)}, {s(S_C)}, 12")
        a(f"s_add_u32 {s(S_T0)}, {s(S_T0)}, {s(S_T1)}")
        a(f"v_add_u32 v2, {s(S_T0)}, {v(T+2)}")
        a(f"v_xor_b32 v3, 64, v2")
        a(f"v_xor_b32 v4, 4096, v2")
        a(f"v_xor_b32 v5, 64, v4")
        a(f"s_lshr_b32 {s(S_T0)}, {s(S_T0)}, 5")
        a(f"s_add_u32 {s(S_T0)}, {s(S_T0)}, {ST}")
        a(f"v_lshl_add_u32 {v(TOK)}, {v(L15)}, 2, {s(S_T0)}")
        a(f"v_bfe_u32 {v(T+3)}, v1, 2, 3")
        a(f"v_lshrrev_b32 {v(T+4)}, 5, v1")
        a(f"v_lshl_add_u32 {v(T+4)}, {v(T+4)}, 4, {v(T+3)}")
        a(f"v_and_b32 {v(T+5)}, 3, v1")
        a(f"v_lshlrev_b32 {v(T+6)}, 3, {v(T+5)}")
        a(f"v_mul_u32_u24 v6, 160, {v(T+4)}")
        a(f"s_mul_i32 {s(S_T0)}, {s(S_C)}, 80")
        a(f"s_add_u32 {s(S_T0)}, {s(S_T0)}, 16384")
        a(f"v_add3_u32 v6, v6, {v(T+6)}, {s(S_T0)}")
        for i in range(self.ACC, self.XA): a(f"v_mov_b32 {v(i)}, 0")
        for i in range(4): a(f"v_mov_b32 {v(self.ONES+i)}, 0x3f803f80")
        a(f"s_mov_b32 {s(S_IT)}, 0")
        self.calc_u()
        a("s_waitcnt lgkmcnt(0)")
        self.stamp(1)
        srd(a, R_WS, P_WS, WS_SIZE)
        if not cfg.ldj and not cfg.ldd: self.pack_setup()
        self.p2_pre_setup()
        a(f"s_mul_i32 {s(S_T0)}, {s(S_RB)}, 10")
        a(f"s_add_u32 {s(S_T0)}, {s(S_T0)}, {s(S_S0)}")
        a(f"s_lshl_b32 {s(S_T0)}, {s(S_T0)}, 10")
        a(f"s_add_u32 {s(S_RPA)}, {s(S_T0)}, {(WS_RP - 2*ST) & 0xffffffff}")
        a(f"s_mul_i32 {s(S_T0)}, {s(S_COL)}, 10")
        a(f"s_add_u32 {s(S_T0)}, {s(S_T0)}, {s(S_S0)}")
        a(f"s_lshl_b32 {s(S_T0)}, {s(S_T0)}, 10")
        a(f"s_mul_i32 {s(S_T1)}, {s(S_C)}, 448")
        a(f"s_add_u32 {s(S_T0)}, {s(S_T0)}, {s(S_T1)}")
        a(f"s_lshl_b32 {s(S_T1)}, {s(S_R)}, 8")
        a(f"s_add_u32 {s(S_T0)}, {s(S_T0)}, {s(S_T1)}")
        a(f"s_add_u32 {s(S_CPA)}, {s(S_T0)}, {WS_CP}")
        a(f"s_min_u32 {s(S_T0)}, {s(S_RB)}, {s(S_COL)}")
        a(f"s_cmp_lt_u32 {s(S_T0)}, 10")
        a(f"s_cselect_b32 {s(S_M1)}, 2, 0")
        a(f"s_cselect_b32 {s(S_M0)}, 6, 0")
        a(f"s_cmp_le_u32 {s(S_U)}, 135")
        a(f"s_cselect_b32 {s(S_T0)}, {8 | (2 if cfg.pkp == 0 and not cfg.ldd else 0)}, 0")
        a(f"s_cselect_b32 {s(S_T1)}, {16 | (0, 2, 4)[cfg.pkp]}, 0")
        a(f"s_or_b32 {s(S_M1)}, {s(S_M1)}, {s(S_T0)}")
        a(f"s_or_b32 {s(S_M0)}, {s(S_M0)}, {s(S_T1)}")
        if cfg.cpf == 2:
            a(f"s_cmp_eq_u32 {s(S_WID)}, {cfg.cpw}")
            a(f"s_cselect_b32 {s(S_T0)}, 8, 0")
            a(f"s_or_b32 {s(S_M1)}, {s(S_M1)}, {s(S_T0)}")
        if cfg.ldj:
            a(f"s_mul_i32 {s(S_T0)}, {s(S_C)}, 448")
            a(f"s_lshl_b32 {s(S_T1)}, {s(S_R)}, 8")
            a(f"s_add_u32 {s(S_T0)}, {s(S_T0)}, {s(S_T1)}")
            a(f"s_add_u32 {s(S_CPA)}, {s(S_T0)}, {DCS}")
            a(f"s_min_u32 {s(S_T0)}, {s(S_RB)}, {s(S_COL)}")
            a(f"s_cmp_lt_u32 {s(S_T0)}, 10")
            a(f"s_cselect_b32 {s(S_M1)}, 2, 0")
            a(f"s_cselect_b32 {s(S_M0)}, 6, 0")
        if cfg.pc: a(f"s_setprio {cfg.pc}")
        if cfg.cpf == 3: self.code_prefetch(140)
        a(f"s_cmp_lg_u32 {s(S_TY)}, 0")
        a(f"s_cbranch_scc1 Lc_q")
        self.h_addr(0)
        a(f"s_lshl_b32 {s(S_T0)}, {s(S_HG)}, 4")
        a(f"s_add_u32 {s(S_T0)}, {s(S_T0)}, {s(S_RB)}")
        a(f"s_mul_i32 {s(S_T0)}, {s(S_T0)}, {KP_STRIDE}")
        a(f"s_add_u32 {s(S_CNT)}, {s(S_T0)}, {WS_KP}")
        a(f"s_mul_i32 {s(S_T0)}, {s(S_R)}, 6720")
        a(f"s_mul_i32 {s(S_T1)}, {s(S_C)}, 3360")
        a(f"s_add_u32 {s(S_T0)}, {s(S_T0)}, {s(S_T1)}")
        a(f"s_add_u32 {s(S_OA)}, {s(S_T0)}, {SCR}")
        a(f"v_cmp_gt_u32 vcc, 2, {v(T+5)}")
        a(f"v_mov_b32 {v(T+7)}, 10224")
        a(f"v_cndmask_b32 {v(T+7)}, {v(T+7)}, 64, vcc")
        a(f"v_add_u32 v7, v6, {v(T+7)}")
        a(f"v_lshrrev_b32 {v(T+7)}, 1, {v(T+3)}")
        a(f"v_lshl_add_u32 {v(T+8)}, {v(T+4)}, 7, {v(T+6)}")
        a(f"v_add_u32 {v(T+8)}, 36864, {v(T+8)}")
        a(f"s_lshl_b32 {s(S_T0)}, {s(S_C)}, 1")
        a(f"v_xor_b32 {v(T+7)}, {s(S_T0)}, {v(T+7)}")
        a(f"v_lshl_add_u32 v8, {v(T+7)}, 5, {v(T+8)}")
        a(f"v_xor_b32 {v(T+7)}, 1, {v(T+7)}")
        a(f"v_lshl_add_u32 v9, {v(T+7)}, 5, {v(T+8)}")
        a(f"s_branch Lp1_0")
        a.label('Lc_q')
        self.h_addr(2)
        a(f"v_lshl_add_u32 {v(T+8)}, {v(T+4)}, 8, {v(T+6)}")
        a(f"v_add_u32 {v(T+8)}, 26624, {v(T+8)}")
        a(f"s_lshl_b32 {s(S_T0)}, {s(S_C)}, 2")
        a(f"v_xor_b32 {v(T+7)}, {s(S_T0)}, {v(T+3)}")
        for i in range(4):
            a(f"v_xor_b32 {v(T+9)}, {i}, {v(T+7)}")
            a(f"v_lshl_add_u32 {v(7+i)}, {v(T+9)}, 5, {v(T+8)}")
        a(f"s_branch Lp1_1")

    def p1_reads(self, ty, st, A, B):
        out = [f"ds_read_b128 {v(A+4*i,4)}, {v(self.VA + st + 2*(i >> 1))} offset:{2048*(i & 1)}" for i in range(4)]
        for t, (ad, ex, pitch, o) in enumerate(self.tiles(ty)):
            for u in range(2):
                out.append(f"ds_read_b64_tr_b16 {v(B+4*t+2*u,2)}, {v(ad)} offset:{(32*st+8*u)*pitch+ex}")
        return out
    def p1_mfmas(self, ty, A, B):
        M = "v_mfma_f32_16x16x32_bf16"; out = []
        for t, (ad, ex, pitch, o) in enumerate(self.tiles(ty)):
            for i in range(4):
                d = v(self.acc(t, i), 4); x = v(A + 4*i, 4); w = v(B + 4*t, 4)
                out.append(f"{M} {d}, {x}, {w}, {d}" if o == 'N' else f"{M} {d}, {w}, {x}, {d}")
        return out
    def duty(self, half, A, B):
        a = self.a
        M = "v_mfma_f32_16x16x32_bf16"; on = v(self.ONES, 4)
        def c(r): return v(r, 4) if half else '0'
        a.label(f"Lduty{half}")
        for i in range(2):
            x = v(A + 4*i, 4)
            a(f"{M} {v(self.RS[i],4)}, {on}, {x}, {c(self.RS[i])}")
            a(f"{M} {v(self.SQ[i],4)}, {x}, {x}, {c(self.SQ[i])}")
        L1 = self.lab('dr'); Ld = self.lab('dd')
        a(f"s_cmp_lg_u32 {s(S_R)}, 0")
        a(f"s_cbranch_scc1 {L1}")
        for k in range(4): a(f"{M} {v(self.CSD+4*k,4)}, {on}, {v(B+4*k,4)}, {c(self.CSD+4*k)}")
        a(f"s_branch {Ld}")
        a.label(L1)
        for k in range(3): a(f"{M} {v(self.CSD+4*k,4)}, {on}, {v(B+4*(4+k),4)}, {c(self.CSD+4*k)}")
        a.label(Ld)
        a(f"s_cmp_lg_u32 {s(S_TY)}, 0")
        a(f"s_cbranch_scc1 Lret{half}_1")
        a(f"s_branch Lret{half}_0")
    def duty_store(self):
        a = self.a
        r0 = self.RS[0]
        a(f"v_and_b32 v252, 3, v1")
        a(f"v_lshl_add_u32 {v(r0+2)}, {v(self.TOK)}, 1, {s(S_RPA)}")
        a(f"v_lshl_add_u32 {v(r0+3)}, {v(self.L15)}, 2, {s(S_CPA)}")
        for e in range(1, 4):
            a(f"v_cmp_eq_u32 vcc, {e}, v252")
            for i in range(2):
                a(f"v_cndmask_b32 {v(self.RS[i]+1)}, {v(self.SQ[i] if e == 1 else self.RS[i]+1)}, {v(self.SQ[i]+e)}, vcc")
        L = self.lab('dn')
        a(f"s_cmp_ge_u32 {s(S_COL)}, 10")
        a(f"s_cbranch_scc1 {L}")
        exec_mask(a, DIAGMASK)
        for i in range(2): a(f"buffer_store_dwordx2 {v(self.RS[i],2)}, {v(r0+2)}, {s(R_WS,4)}, 0 offen offset:{128*i} sc1")
        a.label(L)
        L = self.lab('dn')
        a(f"s_cmp_ge_u32 {s(S_RB)}, 10")
        a(f"s_cbranch_scc1 {L}")
        exec_mask(a, 0xffff)
        for k in range(4):
            if k == 3:
                a(f"s_cmp_lg_u32 {s(S_R)}, 0")
                a(f"s_cbranch_scc1 {L}")
            a(f"buffer_store_dword {v(self.CSD+4*k)}, {v(r0+3)}, {s(R_WS,4)}, 0 offen offset:{64*k} sc1")
        a.label(L)
        a("s_mov_b64 exec, -1")
    def pack_blocks(self):
        a = self.a; cfg = self.cfg
        PD = 216
        def ret(h):
            a(f"s_cmp_lg_u32 {s(S_TY)}, 0")
            a(f"s_cbranch_scc1 Lret{h}_1")
            a(f"s_branch Lret{h}_0")
        if cfg.ldj:
            a.label('Lx0')
            a(f"s_cmp_eq_u32 {s(S_IT)}, 1")
            a(f"s_cbranch_scc1 Lduty0")
            self.duty_dump()
            ret(0)
            return
        a.label('Lx1')
        L3 = self.lab('p3'); L = self.lab('pa')
        a(f"s_cmp_lg_u32 {s(S_IT)}, 1")
        a(f"s_cbranch_scc1 {L3}")
        def pdma():
            Lp = self.lab('pd')
            a(f"s_cmp_gt_u32 {s(S_U)}, 135")
            a(f"s_cbranch_scc1 {Lp}")
            a(f"s_mul_i32 {s(S_T0)}, {s(S_WID)}, 5120")
            for i in range(5):
                a(f"s_add_u32 m0, {s(S_T0)}, {SCR - 4*5120 + 1024*i}")
                a(f"buffer_load_dwordx4 {v(self.PKV[i])}, {s(R_PK,4)}, {s(S_PKO)} offen lds")
            a.label(Lp)
        if cfg.pkp == 0 and not cfg.ldd: pdma()
        a("s_branch Lduty1")
        a.label(L3)
        if cfg.cpf == 2: self.code_prefetch(252)
        a(f"s_cmp_gt_u32 {s(S_U)}, 135")
        a(f"s_cbranch_scc1 {L}")
        a(f"v_lshrrev_b32 v252, 2, v1")
        a(f"v_mul_u32_u24 v252, 640, v252")
        a(f"v_and_b32 v253, 3, v1")
        a(f"v_lshl_add_u32 v252, v253, 3, v252")
        a(f"s_mul_i32 {s(S_T0)}, {s(S_WID)}, 160")
        a(f"s_add_u32 {s(S_T0)}, {s(S_T0)}, {SCR - 640}")
        a(f"v_add_u32 v252, {s(S_T0)}, v252")
        for c in range(5):
            a(f"ds_read_b64_tr_b16 {v(PD+4*c,2)}, v252 offset:{32*c}")
            a(f"ds_read_b64_tr_b16 {v(PD+2+4*c,2)}, v252 offset:{32*c + 16*640}")
        a.label(L)
        ret(1)
        a.label('Lx0')
        a("s_waitcnt lgkmcnt(0)")
        L = self.lab('pb'); Ls = self.lab('ps')
        L1 = self.lab('p1')
        a(f"s_cmp_lg_u32 {s(S_IT)}, 1")
        a(f"s_cbranch_scc1 {L1}")
        if cfg.pkp == 1: pdma()
        a("s_branch Lduty0")
        a.label(L1)
        a(f"s_cmp_lg_u32 {s(S_IT)}, 2")
        a(f"s_cbranch_scc1 {Ls}")
        if cfg.pkp == 2: pdma()
        self.duty_store()
        a(f"s_branch {L}")
        a.label(Ls)
        a(f"s_sub_u32 {s(S_T2)}, {s(S_WID)}, 4")
        a(f"s_cmp_eq_u32 {s(S_TY)}, {cfg.pkty}")
        a(f"s_cselect_b32 {s(S_T0)}, {s(S_T2)}, {s(S_RB)}")
        a(f"s_cmp_lg_u32 {s(S_T0)}, {s(S_T2)}")
        a(f"s_cbranch_scc1 {L}")
        a(f"s_and_b32 {s(S_T0)}, {s(S_U)}, 1")
        a(f"s_lshl_b32 {s(S_T0)}, {s(S_T0)}, 2")
        a(f"s_add_u32 {s(S_T0)}, {s(S_T0)}, {s(S_T2)}")
        a(f"s_mul_i32 {s(S_T0)}, {s(S_T0)}, 68")
        a(f"s_lshr_b32 {s(S_T1)}, {s(S_U)}, 1")
        a(f"s_add_u32 {s(S_T0)}, {s(S_T0)}, {s(S_T1)}")
        a(f"s_mul_i32 {s(S_T0)}, {s(S_T0)}, 5120")
        a(f"s_add_u32 {s(S_T0)}, {s(S_T0)}, {WS_P2}")
        a(f"s_add_u32 {s(S_T1)}, {s(S_T0)}, 4096")
        a(f"v_lshlrev_b32 v252, 4, v1")
        for c in range(4):
            a(f"buffer_store_dwordx4 {v(PD+4*c,4)}, v252, {s(R_WS,4)}, {s(S_T0)} offen offset:{1024*c} sc1")
        a(f"buffer_store_dwordx4 {v(PD+16,4)}, v252, {s(R_WS,4)}, {s(S_T1)} offen sc1")
        a.label(L)
        ret(0)

    def p1_loop(self, ty):
        a = self.a; cfg = self.cfg
        nad = 8 if ty == 0 else 9
        nb = a.nbar
        rx = self.p1_reads(ty, 0, self.XA, self.XB); ry = self.p1_reads(ty, 1, self.YA, self.YB)
        my = self.p1_mfmas(ty, self.YA, self.YB); mx = self.p1_mfmas(ty, self.XA, self.XB)
        sal = [f"s_add_u32 {s(S_IT)}, {s(S_IT)}, 1",
               f"s_bitcmp1_b32 {hex((1<<3)|(1<<6)|(1<<9))}, {s(S_IT)}",
               f"s_cselect_b32 {s(S_DELTA)}, {s(S_DEST)}, {s(S_DEST+1)}"]
        a.label(f"Lp1_{ty}")
        a(f"s_mov_b32 {s(S_DEST)}, {hex(-2*SLOT & 0xffffffff)}")
        a(f"s_mov_b32 {s(S_DEST+1)}, {SLOT}")
        a("s_barrier")
        for x in rx: a(x)
        a("s_waitcnt lgkmcnt(0)")
        a(f"s_branch Lret1_{ty}")
        def copy(chk, last):
            a(".p2align 3")
            a.label(f"Lp1h_{ty}_{chk}")
            a("s_barrier")
            k = 0
            for m, x in enumerate(my):
                a(x)
                if m >= cfg.rd0 and k < len(rx): a(rx[k]); k += 1
                if m == len(my) - 3 and chk:
                    a(f"s_bitcmp1_b32 {s(S_M1)}, {s(S_IT)}")
            assert k == len(rx)
            if chk:
                a(f"s_cbranch_scc1 {'Lduty1' if cfg.ldj else 'Lx1'}")
                a.label(f"Lret1_{ty}")
            upd = [f"v_add_u32 {v(self.VA+i)}, {s(S_DELTA)}, {v(self.VA+i)}" for i in range(nad)]
            k = 0; u = 0; ns = 0
            for m, x in enumerate(mx):
                if m == 0: a(f"s_waitcnt lgkmcnt({cfg.xw})")
                if m == 4 * (7 - cfg.xw // 2) and cfg.xw: a(f"s_waitcnt lgkmcnt({min(15, k)})")
                if m == len(mx) - 1: a(f"s_cmp_lt_u32 {s(S_IT)}, {last}")
                a(x)
                if ns < 3: a(sal[ns]); ns += 1
                if k < len(ry): a(ry[k]); k += 1
                elif u < len(upd):
                    for _ in range(2):
                        if u < len(upd): a(upd[u]); u += 1
                if m == len(mx) - 3 and chk:
                    if not cfg.ldj:
                        L = self.lab('vw')
                        a(f"s_bitcmp0_b32 {hex((1<<3)|(1<<5))}, {s(S_IT)}")
                        a(f"s_cbranch_scc1 {L}")
                        a("s_waitcnt vmcnt(0)")
                        a.label(L)
                    a(f"s_bitcmp1_b32 {s(S_M0)}, {s(S_IT)}")
                    a(f"s_cbranch_scc1 Lx0")
                    a.label(f"Lret0_{ty}")
            assert k == len(ry) and u == len(upd), (k, u)
            a("s_waitcnt lgkmcnt(0)")
            a(f"s_cbranch_scc1 Lp1h_{ty}_{chk}")
        if cfg.two: copy(1, 5); copy(0, 10)
        else: copy(1, 10)
        a("s_barrier")
        self.nb_loop = 11
        a.nbar = nb

    def gelu_tile(self, t, hp, AB, CS, B, d0, X, unpack_from=None):
        a = self.a
        if unpack_from is not None:
            BR = unpack_from
            a(f"v_lshlrev_b32 {v(B)}, 16, {v(BR)}")
            a(f"v_and_b32 {v(B+1)}, {s(S_K1)}, {v(BR)}")
            a(f"v_lshlrev_b32 {v(B+2)}, 16, {v(BR+1)}")
            a(f"v_and_b32 {v(B+3)}, {s(S_K1)}, {v(BR+1)}")
        ch = [(i, p) for i in range(2) for p in range(2)]
        ac = lambda i, p: self.acc(t, 2*hp + i) + 2 * p
        x = lambda i, p: X + 4 * i + 2 * p
        ab = lambda i: AB + 4 * (2*hp + i)
        for i, p in ch: a(pk('fma', x(i,p), ('b', ab(i)+2), CS+2*p, B+2*p))
        for i, p in ch: a(pk('fma', ac(i,p), ('b', ab(i)), ac(i,p), x(i,p)))
        for i, p in ch: a(pk('mul', x(i,p), ac(i,p), ac(i,p)))
        for i, p in ch: a(pk('fma', x(i,p), x(i,p), ('s', S_K0), ('b', self.C1)))
        for i, p in ch: a(pk('mul', x(i,p), x(i,p), ac(i,p)))
        for k in range(8): a(f"v_exp_f32 {v(X+k)}, {v(X+k)}")
        for i, p in ch: a(pk('add', x(i,p), x(i,p), '1.0'))
        for k in range(8): a(f"v_rcp_f32 {v(X+k)}, {v(X+k)}")
        for i, p in ch: a(pk('mul', x(i,p), x(i,p), ac(i,p)))
        for i, p in ch: a(f"v_cvt_pk_bf16_f32 {v(d0(i)+p)}, {v(x(i,p))}, {v(x(i,p)+1)}")
    def gelu_consts(self):
        a = self.a
        c1 = -2 * math.sqrt(2 / math.pi) * LOG2E; c2 = c1 * 0.044715
        a(f"s_mov_b32 {s(S_K0)}, {lit(c2)}")
        a(f"s_mov_b32 {s(S_K1)}, 0xffff0000")
        a(f"v_mov_b32 {v(self.C1)}, {lit(c1)}")
    def phi_tile(self, t, hp, fa, fb, fcs, X, EPS, d0):
        a = self.a
        ch = [(i, p) for i in range(2) for p in range(2)]
        ac = lambda i, p: self.acc(t, 2*hp + i) + 2 * p
        x = lambda i, p: X + 4 * i + 2 * p
        for i, p in ch: a(pk('fma', x(i,p), fb(i,p), fcs(i,p), ('b', EPS)))
        for i, p in ch: a(pk('fma', ac(i,p), fa(i,p), ac(i,p), x(i,p)))
        for i, p in ch: a(pk('mul', x(i,p), ac(i,p), ('s', S_K0)))
        for k in range(8): a(f"v_exp_f32 {v(X+k)}, {v(X+k)} clamp")
        for i in range(2):
            for k in range(4): a(f"v_max_f32 {v(X+8+4*i+k)}, {v(EPS)}, {v(self.acc(t,2*hp+i)+k)}")
        for i, p in ch: a(pk('add', x(i,p), x(i,p), x(i,p)+8))
        for i, p in ch: a(f"v_cvt_pk_bf16_f32 {v(d0(i)+p)}, {v(x(i,p))}, {v(x(i,p)+1)}")
    def tok_reads(self, dst, off_a, off_b):
        rd = []
        for i in range(4):
            ad = v(self.TOK) if i < 2 else 'v6'
            rd += [f"ds_read_b32 {v(dst+4*i)}, {ad} offset:{off_a + 64*(i & 1)}", f"ds_read_b32 {v(dst+4*i+2)}, {ad} offset:{off_b + 64*(i & 1)}"]
        return rd

    def epi_kv(self):
        a = self.a; nb = a.nbar
        L15, G, TOK = self.L15, self.G, self.TOK
        self.stamp(2)
        a(f"s_setprio {self.cfg.pe}")
        a(f"s_lshl_b32 {s(S_T0)}, {s(S_R)}, 8")
        a(f"s_lshl_b32 {s(S_T1)}, {s(S_C)}, 7")
        a(f"s_add_u32 {s(S_T0)}, {s(S_T0)}, {s(S_T1)}")
        a(f"s_add_u32 {s(S_T0)}, {s(S_T0)}, {ST}")
        a(f"v_lshl_add_u32 v2, {v(G)}, 4, {s(S_T0)}")
        a(f"v_xor_b32 v3, 128, v2")
        a(f"s_mul_i32 {s(S_T0)}, {s(S_C)}, 448")
        a(f"s_add_u32 {s(S_T0)}, {s(S_T0)}, {ST_CS}")
        a(f"v_lshl_add_u32 v4, {v(L15)}, 2, {s(S_T0)}")
        a(f"v_lshl_add_u32 v5, {v(G)}, 4, {s(S_T0)}")
        a(f"v_xor_b32 v6, 128, {v(TOK)}")
        a(f"s_lshl_b32 {s(S_T0)}, {s(S_C)}, 6")
        a(f"s_add_u32 {s(S_T0)}, {s(S_T0)}, {B1L}")
        a(f"v_lshl_add_u32 v7, {v(G)}, 3, {s(S_T0)}")
        a(f"v_mov_b32 v8, {ST_N}")
        AB = 124; CH = 124; BR = 132; CS = 216; A2 = 230; EPS = 160; NON = 229
        rd = []
        for i in range(4):
            ad = 'v2' if i < 2 else 'v3'
            rd += [f"ds_read_b128 {v(AB+8*i,4)}, {ad} offset:{64*(i & 1)}", f"ds_read_b128 {v(AB+8*i+4,4)}, {ad} offset:{512 + 64*(i & 1)}"]
            if i == 1: rd += [f"ds_read_b32 {v(CS+2*t)}, v4 offset:{64*t}" for t in range(5)]
        rd += [f"ds_read_b32 {v(NON)}, v8"]
        rd2 = self.tok_reads(A2, 1024, 1536)
        for j in range(2): rd2 += [f"ds_read_b128 {v(CH+4*j,4)}, v5 offset:{64*(5+j)}", f"ds_read_b64 {v(BR+2*j,2)}, v7 offset:{32*j}"]
        SA = [217, 219, 221]; SZ = [223, 225, 227]
        ad = [f"v_mul_u32_u24 v9, 336, {v(G)}", f"v_add_u32 v9, {s(S_OA)}, v9", f"v_lshl_add_u32 v10, {v(L15)}, 4, v9",
              f"v_add_u32 {v(SA[0])}, {-128 & 0xffffffff}, v10", f"v_add_u32 {v(SA[1])}, {(4*336 - 128 - 320) & 0xffffffff}, v10",
              f"v_add_u32 {v(SA[2])}, {4*336 - 128}, v10", f"v_cmp_eq_u32 vcc, 0, {v(G)}",
              f"v_cndmask_b32 {v(SA[1])}, {v(SA[1])}, {v(SA[2])}, vcc", f"v_add_u32 {v(SA[2])}, {8*336 - 128 - 320}, v10",
              f"v_cmp_eq_u32 vcc, 0, {v(L15)}"]
        for td in range(3): ad += [f"v_add_u32 v10, {4*td*336 + 320}, v9", f"v_cndmask_b32 {v(SZ[td])}, {v(SA[td])}, v10, vcc"]
        ad += [f"v_mov_b32 {v(EPS)}, {lit(1e-6)}", f"v_mov_b32 {v(EPS+2)}, {lit(-1e-6)}", f"s_mov_b32 {s(S_K0)}, {lit(LOG2E)}"]
        mf = self.p1_mfmas(0, self.YA, self.YB)
        interleave(a, mf[:20], rd + ad, 1.0, 1)
        a("s_waitcnt lgkmcnt(0)")
        self.stamp(3)
        FQ = [184, 188, 192, 196, 200, 156]; X = 230
        ch = [(i, p) for i in range(2) for p in range(2)]
        pairs = [(0, 0), (0, 1), (1, 0), (1, 1), (1, 2), (2, 0), (2, 1), (2, 2)]
        kvd = lambda j: self.acc(j >> 1, j & 1)
        a(f"v_cmp_gt_u32 {s(S_MASK,2)}, 8, {v(L15)}")
        for hp in range(2):
            fa = lambda i, p: AB + 8*(2*hp+i) + 2*p
            fb = lambda i, p: AB + 8*(2*hp+i) + 4 + 2*p
            for t in range(3):
                self.phi_tile(t, hp, fa, fb, lambda i, p: ('b', CS + 2*t), X, EPS, lambda i: FQ[t] + 2*i)
            for i, p in ch: a(pk('add', X+4*i+2*p, self.acc(2,2*hp+i)+2*p, ('b', EPS+2)))
            for i, p in ch: a(f"v_cvt_pk_bf16_f32 {v(FQ[3]+2*i+p)}, {v(X+4*i+2*p)}, {v(X+4*i+2*p+1)}")
            for t in (3, 4):
                for i, p in ch: a(pk('mul', X+4*i+2*p, fb(i,p), ('b', CS+2*t)))
                for i, p in ch: a(pk('fma', X+4*i+2*p, fa(i,p), self.acc(t,2*hp+i)+2*p, X+4*i+2*p))
                for i, p in ch: a(f"v_cvt_pk_bf16_f32 {v(FQ[t+1]+2*i+p)}, {v(X+4*i+2*p)}, {v(X+4*i+2*p+1)}")
            for r in range(4): a(f"v_cndmask_b32 {v(FQ[3]+r)}, {v(FQ[3]+r)}, {v(self.ONES)}, {s(S_MASK,2)}")
            for j, (td, te) in enumerate(pairs):
                a(f"v_mfma_f32_16x16x32_bf16 {v(kvd(j),4)}, {v(FQ[td],4)}, {v(FQ[3+te],4)}, {v(kvd(j),4) if hp else 0}")
        self.stamp(4)
        def valid(td, te, l):
            col = l & 15; g = l >> 4; dqg = 4 * td + g
            if dqg > 9: return False
            hh = dqg // 5
            if te == 0:
                if col == 0: return True
                if col < 8: return False
            return (col - 8 + 16 * te) // 20 == hh
        a(f"v_lshlrev_b32 v3, 4, v0")
        a(f"v_add_u32 v4, {SCR}, v3")
        a(f"v_mov_b32 v8, {hex(OOB)}")
        a(f"v_add_u32 v9, 4096, v3")
        a(f"v_cmp_gt_u32 vcc, 164, v0")
        a(f"v_cndmask_b32 v9, v8, v9, vcc")
        a(f"v_lshlrev_b32 v2, 4, v1")
        for j, (td, te) in enumerate(pairs):
            exec_mask(a, sum(1 << l for l in range(64) if valid(td, te, l)))
            a(f"ds_write_b128 {v(SZ[td] if te == 0 else SA[td])}, {v(kvd(j),4)} offset:{256*te}")
        a("s_mov_b64 exec, -1")
        for e in range(4): a(f"s_mov_b32 {s(S_T0+e)}, {hex(0x07060500 + e)}")
        a("s_waitcnt lgkmcnt(0)")
        self.stamp(5)
        a("s_barrier")
        for n in range(2):
            for r in range(2): a(f"ds_read_b128 {v(12+8*n+4*r,4)}, v4 offset:{6720*r + 4096*n}")
        for n in range(2):
            a(f"s_waitcnt lgkmcnt({2 - 2*n})")
            for p in range(2): a(pk('add', 12+8*n+2*p, 12+8*n+2*p, 16+8*n+2*p))
            for e in range(4): a(f"v_perm_b32 {v(12+8*n+e)}, {v(12+8*n+e)}, {v(NON)}, {s(S_T0+e)}")
            a(f"buffer_store_dwordx4 {v(12+8*n,4)}, {'v3' if n == 0 else 'v9'}, {s(R_WS,4)}, {s(S_CNT)} offen sc1")
        self.stamp(7)
        self.gelu_consts()
        interleave(a, mf[20:], rd2, 1.0, 4)
        a("s_waitcnt lgkmcnt(0)")
        TMP = 136
        for hp in range(2):
            for j in range(2):
                self.gelu_tile(5 + j, hp, A2, CH + 4*j, 184 + 4*j, lambda i: TMP + 8*hp + 4*i + 2*j, 192, BR + 2*j if hp == 0 else None)
            self.h_store(0, hp, TMP + 8*hp)
            self.signal(hp)
        self.stamp(9)
        self.nb_c_kv = self.nb_loop + a.nbar - nb + 1
        a.nbar = nb
        a("s_branch Lp2")

    def epi_q(self):
        a = self.a; nb = a.nbar
        L15, G, TOK = self.L15, self.G, self.TOK
        self.stamp(2)
        a(f"s_setprio {self.cfg.pe}")
        a(f"s_mul_i32 {s(S_T0)}, {s(S_C)}, 448")
        a(f"s_add_u32 {s(S_T0)}, {s(S_T0)}, {ST_CS}")
        a(f"v_lshl_add_u32 v5, {v(G)}, 4, {s(S_T0)}")
        a(f"v_xor_b32 v6, 128, {v(TOK)}")
        a(f"s_lshl_b32 {s(S_T0)}, {s(S_C)}, 7")
        a(f"s_add_u32 {s(S_T0)}, {s(S_T0)}, {B1L}")
        a(f"v_lshl_add_u32 v7, {v(G)}, 3, {s(S_T0)}")
        CS = 124; BR = 152; A2 = 216; A1 = 232; EPS = 160
        hrd = lambda j: [f"ds_read_b128 {v(CS+4*(3+j),4)}, v5 offset:{64*(3+j)}", f"ds_read_b64 {v(BR+2*j,2)}, v7 offset:{32*j}"]
        rd = self.tok_reads(A2, 1024, 1536) + hrd(0) + hrd(1)
        rd2 = hrd(2) + hrd(3) + self.tok_reads(A1, 0, 512) + [f"ds_read_b128 {v(CS+4*t,4)}, v5 offset:{64*t}" for t in range(3)]
        mf = self.p1_mfmas(1, self.YA, self.YB)
        a(f"v_lshlrev_b32 v2, 4, v1")
        self.gelu_consts()
        interleave(a, mf[12:20], rd, 0.8, 4)
        a("s_waitcnt lgkmcnt(0)")
        self.stamp(3)
        for p in range(2):
            t0 = 3 + 2 * p
            for hp in range(2):
                for j in range(2):
                    self.gelu_tile(t0 + j, hp, A2, CS + 4*(t0 + j), 196 + 4*j, lambda i: self.acc(t0, 2*hp + i) + 2*j, 160, BR + 2*(2*p+j) if hp == 0 else None)
                self.h_store(p, hp, self.acc(t0, 2*hp))
            if p == 0:
                interleave(a, mf[20:] + mf[:12], rd2, 0.8, 2)
                a("s_waitcnt vmcnt(0) lgkmcnt(0)")
                self.signal(0)
                self.stamp(8)
        self.stamp(5)
        PQ = self.PQ
        a(f"v_mov_b32 {v(EPS)}, {lit(1e-6)}")
        a(f"s_mov_b32 {s(S_K0)}, {lit(LOG2E)}")
        n = 0
        for hp in range(2):
            for t in range(3):
                self.phi_tile(t, hp, lambda i, p: ('b', A1+4*(2*hp+i)), lambda i, p: ('b', A1+4*(2*hp+i)+2), lambda i, p: CS+4*t+2*p, 136, EPS,
                              (lambda i: PQ + 4*(2*hp+i) + 2*t) if t < 2 else (lambda i: PQ + 16 + 2*(2*hp+i)))
                n += 1
                if n == self.cfg.nbs:
                    a("s_waitcnt vmcnt(0)")
                    self.signal(1)
                    self.stamp(10)
        self.stamp(6)
        a(f"s_mul_i32 {s(S_T1)}, {s(S_C)}, {KVT_C}")
        a(f"s_add_u32 {s(S_T1)}, {s(S_T1)}, {KVT}")
        a(f"v_lshl_add_u32 v252, v1, 4, {s(S_T1)}")
        a(f"v_lshl_add_u32 v253, v1, 3, {s(S_T1)}")
        a(f"s_lshl_b32 {s(S_T1)}, {s(S_R)}, 6")
        a(f"s_lshl_b32 {s(S_T2)}, {s(S_C)}, 5")
        a(f"s_add_u32 {s(S_T1)}, {s(S_T1)}, {s(S_T2)}")
        a(f"v_add_u32 v204, {s(S_T1)}, {v(L15)}")
        a(f"v_xor_b32 v205, 32, v204")
        a(f"s_mul_i32 {s(S_T1)}, {s(S_C)}, 80")
        a(f"s_add_u32 {s(S_T1)}, {s(S_T1)}, {OEX}")
        for i in range(2):
            a(f"v_mul_u32_u24 {v(204+i)}, {OP}, {v(204+i)}")
            a(f"v_add_u32 {v(204+i)}, {s(S_T1)}, {v(204+i)}")
            a(f"v_lshl_add_u32 {v(206+i)}, {v(G)}, 1, {v(204+i)}")
            a(f"v_lshl_add_u32 {v(204+i)}, {v(G)}, 3, {v(204+i)}")
        self.stamp(9)
        self.nb_c_q = self.nb_loop + a.nbar - nb + 1
        a.nbar = nb

    def o_segments(self):
        F = 232; PQ = self.PQ
        U = [[52, 56, 60], [64, 68, 72], [76, 80, 84], [88, 196, 200]]
        R4 = range(4)
        s0 = [f"ds_read_b64 {v(F+12,2)}, v253 offset:3072", f"ds_read_b64 {v(F+14,2)}, v253 offset:3584"]
        s0 += [f"ds_read_b128 {v(F+4*k,4)}, v252 offset:{1024*k}" for k in (1, 2, 0)]
        s1 = [f"v_mfma_f32_16x16x16_bf16 {v(U[i][k],4)}, {v(F+12+2*(k-1),2)}, {v(PQ+16+2*i,2)}, 0" for k in (1, 2) for i in R4]
        s1 += [f"v_mfma_f32_16x16x32_bf16 {v(U[i][k],4)}, {v(F+4*k,4)}, {v(PQ+4*i,4)}, {v(U[i][k],4)}" for k in (1, 2) for i in R4]
        s1 += [f"v_mfma_f32_16x16x32_bf16 {v(U[i][0],4)}, {v(F,4)}, {v(PQ+4*i,4)}, 0" for i in R4]
        s2 = []
        for i in R4: s2 += [f"v_add_f32 {v(U[i][1]+e)}, {lit(1e-6)}, {v(U[i][1]+e)}" for e in (1, 2)]
        for i in R4: s2 += [f"v_rcp_f32 {v(U[i][1]+e)}, {v(U[i][1]+e)}" for e in (1, 2)]
        for i in R4:
            u0, u1, u2 = U[i]; o = 16 * OP * (i & 1); a8 = v(204 + (i >> 1)); a2 = v(206 + (i >> 1))
            s2 += [f"v_mul_f32 {v(u2+r)}, {v(u2+r)}, {v(u1+2)}" for r in R4]
            s2 += [f"v_mul_f32 {v(u1+3)}, {v(u1+3)}, {v(u1+2)}", f"v_mul_f32 {v(u1)}, {v(u1)}, {v(u1+1)}",
                   f"v_cvt_pk_bf16_f32 {v(u2)}, {v(u2)}, {v(u2+1)}", f"v_cvt_pk_bf16_f32 {v(u2+1)}, {v(u2+2)}, {v(u2+3)}",
                   f"v_cvt_pk_bf16_f32 {v(u1)}, {v(u1)}, {v(u1+3)}", f"ds_write_b64 {a8}, {v(u2,2)} offset:{o + 40}"]
            s2 += [f"v_mul_f32 {v(u0+r)}, {v(u0+r)}, {v(u1+1)}" for r in R4]
            s2 += [f"ds_write_b16 {a2}, {v(u1)} offset:{o + 32}", f"ds_write_b16_d16_hi {a2}, {v(u1)} offset:{o + 72}",
                   f"v_cvt_pk_bf16_f32 {v(u0)}, {v(u0)}, {v(u0+1)}", f"v_cvt_pk_bf16_f32 {v(u0+1)}, {v(u0+2)}, {v(u0+3)}",
                   f"ds_write_b64 {a8}, {v(u0,2)} offset:{o}"]
        return s0, s1, s2

    def phase2(self):
        a = self.a; cfg = self.cfg
        nb = a.nbar
        a.label('Lp2')
        AM, AS, XB, YB, AR, OX = 12, 52, 92, 112, 132, 196
        D = cfg.depth
        M = "v_mfma_f32_16x16x32_bf16"
        a(f"v_lshlrev_b32 v2, 4, v1")
        a(f"v_lshlrev_b32 v3, 3, v1")
        a(f"s_mul_i32 {s(S_T0)}, {s(S_C)}, 10240")
        for k in range(3):
            a(f"v_add_u32 {v(4+k)}, {s(S_T0)}, v2")
            if k < 2: a(f"s_add_u32 {s(S_T0)}, {s(S_T0)}, {SLOT}")
        q = []; hn = [0]; lq = []
        def areg(j, i):
            if j < 24: return AR + 8 * (j % D) + 4 * i
            return (AR + 8 * (j - 24) if j < 32 else OX + 8 * (j - 32)) + 4 * i
        def hload_upto(n, cap):
            while hn[0] < min(n, 24) and cap > 0:
                j = hn[0]
                if j % 2 == 0:
                    self.chunk_id(S_OA, S_T3, j // 2)
                    a(f"s_lshl_b32 {s(S_OA)}, {s(S_OA)}, 11")
                    a(f"s_add_u32 {s(S_OW)}, {s(S_OA)}, {s(S_XCD)}")
                    a(f"s_add_u32 {s(S_OA)}, {s(S_OA)}, {s(S_OH)}")
                for i in range(2):
                    a(f"buffer_load_dwordx4 {v(areg(j, i),4)}, v2, {s(R_WS,4)}, {s((S_OA, S_OW)[i])} offen offset:{1024*(j%2)} {cfg.hsc}")
                    q.append(j)
                hn[0] += 1; cap -= 1
        ol = []
        for P in range(2):
            for i5 in range(5):
                j = 24 + 5 * P + i5
                for i in range(2):
                    b = (S_NONCE, 3)[i]
                    if i5 < 4:
                        ol.append((j, [f"s_add_u32 {s(S_T0)}, {s(b)}, {(2*P + (i5 >> 1))*2560}",
                                       f"buffer_load_dwordx4 {v(areg(j, i),4)}, v2, {s(R_WS,4)}, {s(S_T0)} offen offset:{1024*(i5&1)} sc1"]))
                    else:
                        for hh in range(2):
                            ol.append((j, [f"s_add_u32 {s(S_T0)}, {s(b)}, {(2*P + hh)*2560}",
                                           f"buffer_load_dwordx2 {v(areg(j, i)+2*hh,2)}, v3, {s(R_WS,4)}, {s(S_T0)} offen offset:2048 sc1"]))
        def oloads(n):
            for _ in range(n):
                if not ol: return
                j, t = ol.pop(0)
                for x in t: a(x)
                q.append(j)
        def wait(j):
            assert not any(o[0] == j for o in ol)
            idx = [k for k, t in enumerate(q) if t == j]
            if not idx: return
            a(f"s_waitcnt vmcnt({len(q) - 1 - idx[-1]})"); del q[:idx[-1] + 1]
        def lds(txt, tag): a(txt); lq.append(tag)
        def lwait(tag):
            idx = [k for k, t in enumerate(lq) if t == tag]
            if not idx: return
            a(f"s_waitcnt lgkmcnt({min(15, len(lq) - 1 - idx[-1])})"); del lq[:idx[-1] + 1]
        def reads(j, B):
            i = j // 2; base = RING[i % 6]; vb = 4 + base // SLOT; off = base % SLOT + (j & 1) * 5120
            return [f"ds_read_b128 {v(B+4*c,4)}, {v(vb)} offset:{off + 1024*c}" for c in range(5)]
        def mfma(j, B, c, i):
            ac = (AM if j < 24 else AS) + 20 * i + 4 * c
            first = j == 24 or (j == 0 and i == 1)
            return f"{M} {v(ac,4)}, {v(B+4*c,4)}, {v(areg(j, i),4)}, {'0' if first else v(ac,4)}"
        a(f"v_mov_b32 v255, 0xffff0000")
        def unpack(d, b):
            return [f"v_lshlrev_b32 {v(d)}, 16, {v(b)}", f"v_and_b32 {v(d+1)}, v255, {v(b)}",
                    f"v_lshlrev_b32 {v(d+2)}, 16, {v(b+1)}", f"v_and_b32 {v(d+3)}, v255, {v(b+1)}"]
        a(f"v_lshlrev_b32 v9, 3, {v(self.G)}")
        a(f"v_add_u32 v9, {B2L}, v9")
        for c in range(5): lds(f"ds_read_b64 {v(AS+2*c,2)}, v9 offset:{32*c}", 'b2')
        a(f"s_sub_u32 {s(S_T0)}, {s(S_WID)}, 4")
        a(f"s_xor_b32 {s(S_T1)}, {s(S_T0)}, 2")
        a(f"s_mul_i32 {s(S_T0)}, {s(S_T0)}, 5120")
        a(f"s_mul_i32 {s(S_T1)}, {s(S_T1)}, 5120")
        a(f"s_add_u32 {s(S_T0)}, {s(S_T0)}, {EXB}")
        a(f"s_add_u32 {s(S_T1)}, {s(S_T1)}, {EXB}")
        a(f"v_add_u32 v7, {s(S_T0)}, v2")
        a(f"v_add_u32 v254, {s(S_T1)}, v2")
        a(f"s_lshl_b32 {s(S_T0)}, {s(S_R)}, 5")
        a(f"s_lshl_b32 {s(S_T1)}, {s(S_C)}, 4")
        a(f"s_add_u32 {s(S_T0)}, {s(S_T0)}, {s(S_T1)}")
        a(f"v_add_u32 v10, {s(S_T0)}, {v(self.L15)}")
        a(f"v_mul_u32_u24 v8, 160, v10")
        a(f"v_lshl_add_u32 v8, {v(self.G)}, 3, v8")
        a(f"v_add_u32 v8, {XT}, v8")
        a(f"v_mul_u32_u24 v10, {OP}, v10")
        a(f"v_lshl_add_u32 v10, {v(self.G)}, 3, v10")
        lwait('b2')
        a(f"v_add_u32 v9, {OT}, v10")
        for c in range(5):
            for x in unpack(AM + 4*c, AS + 2*c): a(x)
        self.TF = 10; self.FD = 248
        self.final_prep(248, False)
        a(f"v_mov_b32 v10, {lit(-LOG2E)}")
        Gd = AM + 20; X = 212; XR = 232
        sil = []
        for c in range(5):
            g = Gd + 4 * c; x = X + 4 * c; R = range(4)
            sil += [f"v_add_f32 {v(g+r)}, {v(g+r)}, {v(AM+4*c+r)}" for r in R]
            sil += [f"v_mul_f32 {v(x+r)}, v10, {v(g+r)}" for r in R]
            sil += [f"v_exp_f32 {v(x+r)}, {v(x+r)}" for r in R]
            sil += [f"v_add_f32 {v(x+r)}, 1.0, {v(x+r)}" for r in R]
            sil += [f"v_rcp_f32 {v(x+r)}, {v(x+r)}" for r in R]
            sil += [f"v_mul_f32 {v(g+r)}, {v(g+r)}, {v(x+r)}" for r in R]
            sil += unpack(AM + 4 * c, XR + 2 * c)
        if cfg.tl2:
            prs = [(c, p) for c in range(5) for p in range(2)]
            sil = [pk('add', Gd+4*c+2*p, Gd+4*c+2*p, AM+4*c+2*p) for c, p in prs]
            sil += [pk('mul', X+4*c+2*p, Gd+4*c+2*p, ('b', 10)) for c, p in prs]
            sil += [f"v_exp_f32 {v(X+k)}, {v(X+k)}" for k in range(20)]
            sil += [pk('add', X+4*c+2*p, X+4*c+2*p, '1.0') for c, p in prs]
            sil += [f"v_rcp_f32 {v(X+k)}, {v(X+k)}" for k in range(20)]
            sil += [pk('mul', Gd+4*c+2*p, Gd+4*c+2*p, X+4*c+2*p) for c, p in prs]
            xun = []
            for c in range(5): xun += unpack(AM + 4 * c, XR + 2 * c)
        per = -(-len(sil) // 7)
        def step(j, ex=(), tag=None):
            B = XB if j % 2 == 0 else YB
            rd = reads(j + 2, B) if j + 2 < 34 else []
            if j >= 27 and not cfg.tl2: ex = sil[:per]; del sil[:per]
            if j in (24, 25) and cfg.tl2: ex = xun[10*(j-24):10*(j-23)]
            order = [(c, i) for c in range(5) for i in (0, 1)] if j < 33 else [(c, 1) for c in range(5)] + [(c, 0) for c in range(5)]
            n = 0
            for k, (c, i) in enumerate(order):
                a(mfma(j, B, c, i))
                if rd and i == 1: lds(rd[c], j + 2)
                while n < (k + 1) * len(ex) // 10:
                    if ex[n].startswith('ds_'): lds(ex[n], tag)
                    else: a(ex[n])
                    n += 1
            hload_upto(min(j + 1 + D, 8 if j < 2 * cfg.kb - 1 else (16 if j < 2 * cfg.kh - 1 else 24)), 2)
        def one(j, ex=(), tag=None):
            i = j // 2
            if cfg.tl2:
                if 2 * cfg.ko <= j < 24:
                    oloads(cfg.opc // 2)
                    assert not ol or ol[0][0] - 24 <= j - 16
                if j == 24:
                    oloads(cfg.of0)
                    for c in range(5): lds(f"ds_write_b128 v7, {v(AM+20+4*c,4)} offset:{1024*c}", 'mx')
                    oloads(cfg.of0)
                    lwait('mx')
                    a("s_barrier"); self.stamp(33)
                    for c in range(5): lds(f"ds_read_b128 {v(Gd+4*c,4)}, v254 offset:{1024*c}", 'g')
                    for c in range(5): lds(f"ds_read_b64 {v(XR+2*c,2)}, v8 offset:{32*c}", 'xr')
                    oloads(2)
                    lwait('g')
                    nr = len(ol); nsil = len(sil)
                    for n, x in enumerate(sil):
                        a(x)
                        if (n + 1) * nr // nsil > n * nr // nsil: oloads(1)
                    sil.clear()
                    lwait('xr')
                    self.stamp(34)
            elif i >= cfg.ko: oloads(cfg.opc // 2)
            if j == 0:
                a("s_waitcnt vmcnt(0)"); q.clear()
            wait(j); lwait(j)
            if j == 27 and not cfg.tl2: lwait('g')
            if j % 2 == 1 and i <= 11:
                a("s_barrier"); self.stamp(21 + i)
            if j == 26 and not cfg.tl2:
                lwait('mx')
                a("s_barrier"); self.stamp(33)
                for c in range(5):
                    lds(f"ds_read_b128 {v(Gd+4*c,4)}, v254 offset:{1024*c}", 'g')
                    lds(f"ds_read_b64 {v(XR+2*c,2)}, v8 offset:{32*c}", 'g')
            if tag == 'of':
                for x in ex: lds(x, tag)
                ex = ()
            step(j, ex, tag)
            if j == 24 and not cfg.tl2:
                for c in range(5): lds(f"ds_write_b128 v7, {v(AM+20+4*c,4)} offset:{1024*c}", 'mx')
        a(f"s_setprio {cfg.pp}")
        a("s_barrier"); a.nbar -= 1
        hload_upto(cfg.ramp, 8)
        for x in reads(0, XB): lds(x, 0)
        for x in reads(1, YB): lds(x, 1)
        self.stamp(20)
        assert (cfg.ko == 12 or cfg.tl2) and cfg.onc == 1
        j = 0
        while j < 34:
            if j == 2 * cfg.ka - 1:
                s0, s1, s2 = self.o_segments()
                a(f"s_cmp_eq_u32 {s(S_TY)}, 0")
                a(f"s_cbranch_scc1 Lok")
                st = (list(q), list(lq), list(hn), a.nbar)
                one(j, s0, 'of'); lwait('of')
                for x in s1: a(x)
                one(j + 1, s2, 'ox'); lwait('ox')
                self.stamp(13)
                a.label('Loj')
                q[:], lq[:], hn[:], a.nbar = st
                mark = len(a.lines)
                a.label('Lok')
                one(j); one(j + 1)
                a("s_branch Loj")
                self.late_lines += a.lines[mark:]; del a.lines[mark:]
                j += 2
                continue
            one(j); j += 1
        assert not ol and not sil
        for c in range(5): a(f"ds_write_b128 v7, {v(AS+20+4*c,4)} offset:{1024*c}")
        a("s_waitcnt lgkmcnt(0)")
        a("s_barrier")
        for c in range(5): a(f"ds_read_b128 {v(XB+4*c,4)}, v254 offset:{1024*c}")
        for c in range(5):
            a(f"s_waitcnt lgkmcnt({4})")
            for p in range(2): a(pk('add', XB+4*c+2*p, XB+4*c+2*p, AS+4*c+2*p))
            for p in range(2): a(pk('fma', AM+4*c+2*p, XB+4*c+2*p, Gd+4*c+2*p, AM+4*c+2*p))
            for p in range(2): a(f"v_cvt_pk_bf16_f32 {v(AM+4*c+p)}, {v(AM+4*c+2*p)}, {v(AM+4*c+2*p+1)}")
            a(f"ds_write_b64 v9, {v(AM+4*c,2)} offset:{32*c}")
        a("s_waitcnt lgkmcnt(0)")
        a("s_barrier")
        self.nb_c_p2 = a.nbar - nb
        a.nbar = nb
        if cfg.diag or cfg.light:
            a(f"v_mov_b32 v164, v248"); a(f"v_mov_b32 v165, v249")
            self.FD = 164

Cfg4.xw = 0
Cfg4.nbs = 6
def wg_type(kw, wg): return G0.wg_type(kw, wg)
def make(**kw):
    cfg = Cfg4()
    for k, x in kw.items(): setattr(cfg, k, x)
    return Gen4(cfg).build()

if __name__ == '__main__':
    out = sys.argv[1]
    kw = {}
    for x in sys.argv[2:]:
        k, val = x.split('=', 1); kw[k] = eval(val)
    open(out, 'w').write(make(**kw))
```

```python
import sys, math, struct
from asmlib import *

NAME = 'recurrent_scan__linear_attn_block__mixer_channel_mlp__prompt_kernel'

class Cfg:
    n1 = 11
    diag = False
    ko = 12
    rot2 = (0, 1)
    kb = 2
    pfw = 0
    kvd = -2
    osc = ''
    kh = 5
    map1 = 'D'
    kprot = True
    fs = 7
    psl = 0
    ka = 3
    kvo = 0
    prew = True
    prew2 = False
    pwk = 1
    opre = False
    sbar = True
    hsc = 'sc1'
    bsc = 'sc1'
    nh0 = 3
    pe = 2
    pp = 0
    gfirst = False
    staged = (6, 8, 10, 12, 14, 16)
    map2 = 'A'
    opc = 6
    cpw = 11
    stp = 1
    stg = ()
    KA = (96, 97); KZ = (98, 99); KS = (100, 101); KD = 48
    xs = ''
    hpb = 0
    hpf = 0
    ldj = False
    ldd = False
    kz = 4
    xskip = 0
    xalias = 0
    pkty = 1
    pp1 = False
    nbq = 4
    ppr = 1
    xidle = 0
    mo = 0
    kal = 0
    hp = 0
    kp = 9
    ks = 7
    sph = True
    spf = 0
    l1in = True
    l1c = 1
    n10 = 8
    l1d = 0
    kte = False
    fo = 2
    pw = 3
    rf1 = True
    pk0 = 1
    cpi = 3
    xlat = None
    xg = None
    pl = 0
    rpm = 1
    rp2 = 3
    wopf = False
    ramp = 2
    xr = 7
    xm = 7
    xd = 11
    rot1 = (1, 7)
    pfs = (0, 2)
    kx = 9
    late = False
    rfb = True
    ofirst = 4
    onc = 1
    oil = True
    pc1 = 0
    fpd = 2
    cpn = 8
    dst = True
    kve = True
    pkt = False
    cpf = 2
    il1 = (0.75, 3)
    il0 = (0.9, 3)
    prio = 0
    dbgt = False
    light = False

SLOT = 45056
SCR = 3 * SLOT
LDS_TOTAL = 163840
ST = SLOT + 40960
ST_CS = ST + 2048
DSQ = SCR + 20480; DRS = DSQ + 2048; DCS = DRS + 512
B1L = SCR + 28160
KVT = 40960; KVT_C = 2 * SLOT
OEX = SCR; OP = 168
XT = SCR
OT = SCR + 10240
B2L = ST + 3328
RING = [SLOT, SLOT + 20480, 2 * SLOT, 2 * SLOT + 20480, 0, 20480]
EXB = RING[5]
WS_FH = 0x160000; WS_FO = 0x170000; WS_FP = 9216; WS_FS = 10240
WS_TS = 0x10000
WS_RP = 0x20000; WS_CP = 0x48000
WS_KP = 0x80000; KP_STRIDE = 6784; WS_KT = 0x180000
ST_N = ST + 3072; ST_C = ST + 3076
WS_P2 = 0x200000; WS_O2 = 0x500000; WS_H2 = 0x800000
WS_TS2 = 0xE00000
WS_SIZE = 0xF00000
OOB = 0x40000000
P_X, P_W, P_WO, P_W1, P_B1, P_W2, P_B2, P_OUT, P_DBG, P_WS = 4, 6, 8, 12, 14, 16, 18, 20, 22, 24
S_S0, S_COL = 26, 27
R_X, R_W, R_W1, R_MID, R_WS, R_PK, R_OUT, R_BI = 28, 32, 36, 40, 44, 48, 52, 56
S_WID, S_RB, S_HG, S_TY, S_TT, S_N, S_XCD, S_IDX, S_R, S_C = 60, 61, 62, 63, 64, 65, 66, 67, 68, 69
S_T0, S_T1, S_T2, S_T3 = 70, 71, 72, 73
S_KC, S_OA, S_OW, S_OM, S_OH = 74, 75, 76, 77, 78
S_NONCE, S_CNT, S_U, S_DELTA, S_IT = 79, 80, 81, 82, 83
S_MASK = 84
S_DEST = 86
S_PIDX = 97
M_V, M_Z0 = 8, 10
M_Z = (10, 16)
S_RPA, S_CPA, S_M1, S_M0 = 8, 9, 10, 11
S_TS = 98
S_PKO, S_PKS = 100, 101
S_L = S_R
S_K0, S_K1 = 100, 101
VDIAG = 11

LOG2E = 1.4426950408889634
def f2u(x): return struct.unpack('<I', struct.pack('<f', x))[0]
def lit(x): return hex(f2u(x))

def srd(a, r, p, size):
    a(f"s_mov_b32 {s(r)}, {s(p)}")
    a(f"s_and_b32 {s(r+1)}, {s(p+1)}, 0xffff")
    a(f"s_mov_b32 {s(r+2)}, {hex(size)}")
    a(f"s_mov_b32 {s(r+3)}, 0x20000")

def interleave(a, main, fill, last_frac=0.7, first=0):
    n = len(main); m = len(fill); k = 0
    lim = max(1, int(n * last_frac))
    while k < min(first, m): a(fill[k]); k += 1
    for i, x in enumerate(main):
        a(x)
        tgt = first + math.ceil((m - first) * min(i + 1, lim) / lim) if m > first else m
        while k < tgt: a(fill[k]); k += 1
    while k < m: a(fill[k]); k += 1

def pk(op, d, *src):
    ops = []; lo = []; hi = []
    for x in src:
        if isinstance(x, int): assert x % 2 == 0; ops.append(v(x, 2)); lo.append(0); hi.append(1)
        elif isinstance(x, str): ops.append(x); lo.append(0); hi.append(0)
        elif x[0] == 'b': assert x[1] % 2 == 0; ops.append(v(x[1], 2)); lo.append(0); hi.append(0)
        elif x[0] == 's': assert x[1] % 2 == 0; ops.append(s(x[1], 2)); lo.append(0); hi.append(0)
    assert d % 2 == 0
    return f"v_pk_{op}_f32 {v(d,2)}, {', '.join(ops)} op_sel:[{','.join(map(str,lo))}] op_sel_hi:[{','.join(map(str,hi))}]"

def exec_mask(a, m):
    a(f"s_mov_b32 exec_lo, {hex(m & 0xffffffff)}")
    a(f"s_mov_b32 exec_hi, {hex(m >> 32)}")
DIAGMASK = sum(1 << l for l in range(64) if ((l & 15) >> 2) == (l >> 4))

class Gen:
    def __init__(self, cfg):
        self.cfg = cfg
        self.a = Asm()
        self.uid = 0
        self.late_lines = []
    def lab(self, p):
        self.uid += 1; return f"L{p}_{self.uid}"

    def stamp(self, i):
        if not self.cfg.diag: return
        a = self.a
        a("s_waitcnt lgkmcnt(0)")
        a(f"s_mov_b32 m0, {s(S_PIDX)}")
        a("s_nop 0")
        a(f"v_writelane_b32 {v(VDIAG)}, {s(S_TS)}, m0")
        a(f"{'s_memrealtime' if self.cfg.diag == 'rt' else 's_memtime'} {s(S_TS,2)}")
        a(f"s_mov_b32 {s(S_PIDX)}, {i}")

    def dbgt(self, slot):
        if not self.cfg.dbgt: return
        a = self.a
        L = self.lab('dt')
        a(f"s_cmp_lg_u32 {s(S_WID)}, 3")
        a(f"s_cbranch_scc1 {L}")
        a(f"s_cmp_lg_u32 s2, 3")
        a(f"s_cbranch_scc1 {L}")
        a(f"s_memrealtime {s(S_TS,2)}")
        a("s_waitcnt lgkmcnt(0)")
        a(f"v_mov_b32 v120, {s(S_TS)}")
        a(f"s_memtime {s(S_TS,2)}")
        a("s_waitcnt lgkmcnt(0)")
        a(f"v_mov_b32 v121, {s(S_TS)}")
        a(f"v_mov_b32 v122, {8*(slot-1)}")
        a(f"global_store_dwordx2 v122, v[120:121], {s(P_DBG,2)}")
        a.label(L)

    def entry(self):
        a = self.a; cfg = self.cfg
        a(f"s_cmp_ge_u32 s2, 256")
        a(f"s_cbranch_scc1 Lend")
        def kload():
            a(f"s_load_dwordx16 s[4:19], s[0:1], 0")
            a(f"s_load_dwordx4 s[20:23], s[0:1], 64")
            a(f"s_load_dwordx2 s[24:25], s[0:1], 80")
        self.kload = kload
        if cfg.kal == 0: kload()
        else:
            Lk = self.lab('kl')
            a(f"v_cmp_gt_u32 vcc, 256, v0")
            a(f"s_cbranch_vccz {Lk}")
            kload()
            a.label(Lk)
        if cfg.light:
            a(f"s_memrealtime {s(S_TS,2)}")
            a(f"s_memtime {s(S_MASK,2)}")
        if cfg.diag:
            a(f"s_memrealtime {s(S_TS,2)}")
            a(f"s_mov_b32 {s(S_PIDX)}, 0")
            a(f"v_mov_b32 {v(VDIAG)}, 0")
        a(f"v_lshrrev_b32 v2, 6, v0")
        a(f"v_and_b32 v1, 63, v0")
        a(f"v_readfirstlane_b32 {s(S_WID)}, v2")
        a(f"s_and_b32 {s(S_XCD)}, s2, 7")
        a(f"s_lshr_b32 {s(S_IDX)}, s2, 3")
        def field(dst, xs, xm, xl, is_, im):
            a(f"s_bfe_u32 {s(S_T0)}, {s(S_XCD)}, {hex((xm.bit_length() << 16) | xs)}")
            a(f"s_lshl_b32 {s(S_T0)}, {s(S_T0)}, {xl}")
            a(f"s_bfe_u32 {s(S_T1)}, {s(S_IDX)}, {hex((im.bit_length() << 16) | is_)}")
            a(f"s_add_u32 {s(dst)}, {s(S_T0)}, {s(S_T1)}")
        if cfg.map1 == 'A':
            field(S_RB, 1, 3, 2, 0, 3); field(S_HG, 0, 1, 2, 3, 3)
            a(f"s_bfe_u32 {s(S_TY)}, {s(S_IDX)}, 0x10002")
        elif cfg.map1 == 'B':
            field(S_RB, 0, 1, 3, 0, 7); field(S_HG, 1, 3, 1, 4, 1)
            a(f"s_bfe_u32 {s(S_TY)}, {s(S_IDX)}, 0x10003")
        else:
            field(S_RB, 0, 1, 3, 0, 7); field(S_HG, 1, 3, 1, 3, 1)
            a(f"s_bfe_u32 {s(S_TY)}, {s(S_IDX)}, 0x10004")
        a(f"s_lshl_b32 {s(S_COL)}, {s(S_HG)}, 1")
        a(f"s_add_u32 {s(S_COL)}, {s(S_COL)}, {s(S_TY)}")
        a(f"s_mul_i32 {s(S_S0)}, {s(S_RB)}, {cfg.rot1[1]}")
        a(f"s_mul_i32 {s(S_T0)}, {s(S_COL)}, {cfg.rot1[0]}")
        a(f"s_add_u32 {s(S_S0)}, {s(S_S0)}, {s(S_T0)}")
        a(f"s_mul_i32 {s(S_T0)}, {s(S_S0)}, 6554")
        a(f"s_lshr_b32 {s(S_T0)}, {s(S_T0)}, 16")
        a(f"s_mul_i32 {s(S_T0)}, {s(S_T0)}, 10")
        a(f"s_sub_u32 {s(S_S0)}, {s(S_S0)}, {s(S_T0)}")
        a(f"s_cmp_ge_u32 {s(S_WID)}, 4")
        a(f"s_cbranch_scc1 Lcompute")

    def calc_p2map(self):
        a = self.a
        if self.cfg.map2 == 'A':
            a(f"s_lshr_b32 {s(S_T0)}, {s(S_XCD)}, 1")
            a(f"s_lshl_b32 {s(S_T0)}, {s(S_T0)}, 3")
            a(f"s_and_b32 {s(S_T1)}, {s(S_IDX)}, 7")
            a(f"s_add_u32 {s(S_TT)}, {s(S_T0)}, {s(S_T1)}")
            a(f"s_and_b32 {s(S_T0)}, {s(S_XCD)}, 1")
            a(f"s_lshl_b32 {s(S_T0)}, {s(S_T0)}, 2")
            a(f"s_lshr_b32 {s(S_T1)}, {s(S_IDX)}, 3")
            a(f"s_add_u32 {s(S_N)}, {s(S_T0)}, {s(S_T1)}")
        else:
            a(f"s_lshl_b32 {s(S_T0)}, {s(S_XCD)}, 2")
            a(f"s_and_b32 {s(S_T1)}, {s(S_IDX)}, 3")
            a(f"s_add_u32 {s(S_TT)}, {s(S_T0)}, {s(S_T1)}")
            a(f"s_lshr_b32 {s(S_N)}, {s(S_IDX)}, 2")
    def calc_u(self):
        a = self.a
        self.calc_p2map()
        a(f"s_add_u32 {s(S_U)}, {s(S_HG)}, 128")
        a(f"s_cmp_lt_u32 {s(S_RB)}, 4")
        a(f"s_cselect_b32 {s(S_U)}, {s(S_U)}, 255")
        a(f"s_lshl_b32 {s(S_T0)}, {s(S_HG)}, 4")
        a(f"s_add_u32 {s(S_T0)}, {s(S_T0)}, {s(S_RB)}")
        a(f"s_cmp_eq_u32 {s(S_TY)}, {self.cfg.pkty}")
        a(f"s_cselect_b32 {s(S_U)}, {s(S_T0)}, {s(S_U)}")
        if 'p' in self.cfg.xs: a(f"s_mov_b32 {s(S_U)}, 255")

    def poll_issue(self, vdst, voff, n=1):
        self.a(f"buffer_load_dword{'x2' if n == 2 else ''} {v(vdst, n)}, {v(voff)}, {s(R_WS,4)}, 0 offen sc1")
    def poll_check(self, vdst, voff, nlanes, n=1):
        a = self.a
        names = {29: 'P', 30: 'A', 33: 'B', 28: 'C', 31: 'O', 32: 'S'}
        if names.get(voff, '?') in self.cfg.xs: return
        L = self.lab('poll'); Ld = self.lab('polld')
        mask = (1 << nlanes) - 1
        a(f"s_mov_b32 {s(S_CNT)}, 0")
        a.label(L)
        a(f"v_cmp_ne_u32 vcc, {s(S_NONCE)}, {v(vdst)}")
        if n == 2:
            a(f"v_cmp_ne_u32 {s(S_MASK,2)}, {s(S_NONCE)}, {v(vdst+1)}")
            a(f"s_or_b64 vcc, vcc, {s(S_MASK,2)}")
        if nlanes < 32:
            a(f"s_and_b32 {s(S_T0)}, vcc_lo, {hex(mask)}")
        else:
            a(f"s_and_b32 {s(S_T0)}, vcc_hi, {hex(mask >> 32)}")
            a(f"s_or_b32 {s(S_T0)}, {s(S_T0)}, vcc_lo")
        a(f"s_cbranch_scc0 {Ld}")
        a(f"s_add_u32 {s(S_CNT)}, {s(S_CNT)}, 1")
        a(f"s_cmp_gt_u32 {s(S_CNT)}, 0x40000")
        a(f"s_cbranch_scc1 {Ld}")
        if self.cfg.psl: a(f"s_sleep {self.cfg.psl}")
        self.poll_issue(vdst, voff, n)
        a("s_waitcnt vmcnt(0)")
        a(f"s_branch {L}")
        a.label(Ld)
    def poll(self, vdst, voff, nlanes, n=1):
        self.poll_issue(vdst, voff, n); self.a("s_waitcnt vmcnt(0)"); self.poll_check(vdst, voff, nlanes, n)
    def only_l(self, l=0):
        L = self.lab('l0')
        self.a(f"s_cmp_lg_u32 {s(S_L)}, {l}")
        self.a(f"s_cbranch_scc1 {L}")
        return L
    def flag_store(self, voff):
        self.a(f"buffer_store_dword v41, {v(voff)}, {s(R_WS,4)}, 0 offen sc1")

    def loader(self):
        a = self.a; cfg = self.cfg
        VO = 12
        V_P2 = 23
        V_FH, V_F2, V_FP, V_FS, V_QK, V_QP, V_QH, V_QO, V_QS = 24, 25, 26, 27, 28, 29, 30, 31, 32
        V_PK = 33
        nb0 = a.nbar
        a(f"s_mov_b32 {s(S_L)}, {s(S_WID)}")
        a(f"s_mov_b32 {s(S_KC)}, {s(S_S0)}")
        if cfg.xg:
            G, mul, ca, cb = cfg.xg
            a(f"s_mul_i32 {s(S_KC)}, {s(S_COL)}, {ca}")
            a(f"s_mul_i32 {s(S_T0)}, {s(S_RB)}, {cb}")
            a(f"s_add_u32 {s(S_KC)}, {s(S_KC)}, {s(S_T0)}")
            a(f"s_and_b32 {s(S_KC)}, {s(S_KC)}, {G - 1}")
            a(f"s_mul_i32 {s(S_KC)}, {s(S_KC)}, {mul}")
        if cfg.prio: a(f"s_setprio {cfg.prio}")
        a(f"v_lshrrev_b32 v2, 3, v1")
        a(f"v_lshrrev_b32 v3, 4, v1")
        a(f"v_and_b32 v4, 7, v1")
        a(f"v_xor_b32 v5, v4, v3")
        a(f"s_lshl_b32 {s(S_T0)}, {s(S_RB)}, 2")
        a(f"s_add_u32 {s(S_T0)}, {s(S_T0)}, {s(S_L)}")
        a(f"s_mul_i32 {s(S_T0)}, {s(S_T0)}, {32*1280}")
        a(f"v_mul_u32_u24 v6, 1280, v2")
        a(f"v_lshl_add_u32 v6, v5, 4, v6")
        a(f"v_add_u32 {v(VO)}, {s(S_T0)}, v6")
        a(f"v_xor_b32 v7, 64, {v(VO)}")
        a(f"v_add_u32 {v(VO+1)}, 10240, v7")
        a(f"v_add_u32 {v(VO+2)}, 20480, {v(VO)}")
        a(f"v_add_u32 {v(VO+3)}, 30720, v7")
        a(f"s_lshl_b32 {s(S_DEST)}, {s(S_L)}, 12")
        for n in range(1, 4): a(f"s_add_u32 {s(S_DEST+n)}, {s(S_DEST)}, {1024*n}")
        a(f"s_lshl_b32 {s(S_OA)}, {s(S_KC)}, 7")
        a("s_waitcnt lgkmcnt(0)")
        if cfg.light: a(f"s_mov_b32 s3, {s(S_MASK)}")
        self.stamp(1)
        self.dbgt(2)
        srd(a, R_X, P_X, 2048 * 1280)
        srds = [R_X]*4 + [R_W]*3 + [R_MID]*2 + [R_W1]*2
        soffs = [S_OA]*4 + [S_OW]*3 + [S_OM]*2 + [S_OH]*2
        def dma(k, n):
            if cfg.xskip and k >= 3 and n >= 11 - cfg.xskip: return
            a(f"s_add_u32 m0, {s(S_DEST+n)}, {(k % 3) * SLOT}")
            a(f"buffer_load_dwordx4 {v(VO+n if n < cfg.xd or k < 2 else 5)}, {s(srds[n],4)}, {s(soffs[n])} offen lds")
        for n in range(4): dma(0, n)
        srd(a, R_W, P_W, 640 * 3840)
        srd(a, R_W1, P_W1, 640 * 3072)
        def wrow(dst, i, valid_check):
            a(f"v_add_u32 v6, {s(S_T1)}, v1")
            if i: a(f"v_add_u32 v6, {64*i}, v6")
            a(f"v_mul_u32_u24 v7, 6554, v6")
            a(f"v_lshrrev_b32 v7, 16, v7")
            a(f"v_mad_i32_i24 v8, v7, -10, v6")
            a(f"v_lshrrev_b32 v9, 1, v7")
            a(f"v_xor_b32 v9, v9, v7")
            a(f"v_and_b32 v9, 4, v9")
            a(f"v_mul_u32_u24 v9, 3, v9")
            a(f"v_xor_b32 v7, v7, v9")
            a(f"v_mul_u32_u24 v7, 3840, v7")
            a(f"v_lshl_add_u32 v7, v8, 4, v7")
            a(f"v_add_u32 {v(dst)}, {s(S_T2)}, v7")
            if valid_check:
                a(f"v_cmp_gt_u32 vcc, 640, v6")
                a(f"v_mov_b32 v9, {hex(OOB)}")
                a(f"v_cndmask_b32 {v(dst)}, v9, {v(dst)}, vcc")
        a(f"s_mul_i32 {s(S_OW)}, {s(S_KC)}, {64*3840}")
        a(f"s_mul_i32 {s(S_OH)}, {s(S_KC)}, {64*3072}")
        a(f"s_mul_i32 {s(S_T3)}, {s(S_HG)}, 384")
        a(f"s_cmp_lg_u32 {s(S_TY)}, 0")
        a(f"s_cbranch_scc1 Lld_setq")
        for i in range(3): a(f"s_mov_b32 {s(R_MID+i)}, {s(R_W+i)}")
        a(f"s_mov_b32 {s(R_MID+3)}, 0x20000")
        a(f"s_mov_b32 {s(S_OM)}, {s(S_OW)}")
        a(f"v_lshrrev_b32 v6, 1, v4")
        a(f"v_xor_b32 v6, v6, v3")
        a(f"v_and_b32 v7, 1, v4")
        a(f"v_lshl_add_u32 v6, v6, 1, v7")
        a(f"v_and_b32 v7, 4, v2")
        a(f"v_add_u32 v7, v7, v2")
        a(f"v_mul_u32_u24 v7, 3072, v7")
        a(f"v_lshl_add_u32 v6, v6, 4, v7")
        a(f"s_mul_i32 {s(S_T0)}, {s(S_L)}, {16*3072}")
        a(f"s_add_u32 {s(S_T0)}, {s(S_T0)}, {s(S_T3)}")
        a(f"v_add_u32 {v(VO+9)}, {s(S_T0)}, v6")
        a(f"v_add_u32 {v(VO+10)}, {4*3072}, {v(VO+9)}")
        a(f"s_lshl_b32 {s(S_T0)}, {s(S_L)}, 11")
        a(f"s_add_u32 {s(S_DEST+9)}, {s(S_T0)}, 36864")
        a(f"s_add_u32 {s(S_DEST+10)}, {s(S_T0)}, {36864+1024}")
        dma(0, 9); dma(0, 10)
        a(f"s_and_b32 {s(S_T1)}, {s(S_L)}, 1")
        a(f"s_mul_i32 {s(S_T1)}, {s(S_T1)}, 320")
        a(f"s_lshr_b32 {s(S_T2)}, {s(S_L)}, 1")
        a(f"s_mul_i32 {s(S_T2)}, {s(S_T2)}, 1280")
        a(f"s_mul_i32 {s(S_T0)}, {s(S_HG)}, 160")
        a(f"s_add_u32 {s(S_T2)}, {s(S_T2)}, {s(S_T0)}")
        a(f"s_add_u32 {s(S_T2)}, {s(S_T2)}, 1280")
        a(f"s_mul_i32 {s(S_T0)}, {s(S_L)}, 5120")
        for i in range(5):
            a(f"s_add_u32 {s(S_DEST+4+i)}, {s(S_T0)}, {16384 + 1024*i}")
            wrow(VO + 4 + i, i, False)
            dma(0, 4 + i)
        a(f"s_branch Lld_setdone")
        a.label('Lld_setq')
        for i in range(3): a(f"s_mov_b32 {s(R_MID+i)}, {s(R_W1+i)}")
        a(f"s_mov_b32 {s(R_MID+3)}, 0x20000")
        a(f"s_mov_b32 {s(S_OM)}, {s(S_OH)}")
        a(f"s_add_u32 {s(S_T3)}, {s(S_T3)}, 128")
        a(f"v_and_b32 v8, 15, v1")
        a(f"v_lshrrev_b32 v6, 1, v8")
        a(f"v_xor_b32 v6, v6, v3")
        a(f"v_and_b32 v7, 1, v8")
        a(f"v_lshl_add_u32 v6, v6, 1, v7")
        a(f"v_mul_u32_u24 v7, 3072, v3")
        a(f"v_lshl_add_u32 v6, v6, 4, v7")
        a(f"v_xor_b32 v7, 128, v6")
        a(f"s_mul_i32 {s(S_T0)}, {s(S_L)}, {16*3072}")
        a(f"s_add_u32 {s(S_T0)}, {s(S_T0)}, {s(S_T3)}")
        a(f"v_add_u32 {v(VO+7)}, {s(S_T0)}, v6")
        a(f"v_add_u32 v7, {s(S_T0)}, v7")
        a(f"v_add_u32 {v(VO+8)}, {8*3072}, v7")
        a(f"v_add_u32 {v(VO+9)}, {4*3072}, {v(VO+7)}")
        a(f"v_add_u32 {v(VO+10)}, {12*3072}, v7")
        a(f"s_lshl_b32 {s(S_T0)}, {s(S_L)}, 12")
        for i in range(4):
            a(f"s_add_u32 {s(S_DEST+7+i)}, {s(S_T0)}, {26624 + 1024*i}")
            dma(0, 7 + i)
        a(f"s_mul_i32 {s(S_T1)}, {s(S_L)}, 192")
        a(f"s_mul_i32 {s(S_T2)}, {s(S_HG)}, 160")
        a(f"s_mul_i32 {s(S_T0)}, {s(S_L)}, 3072")
        for i in range(3):
            a(f"s_add_u32 {s(S_DEST+4+i)}, {s(S_T0)}, {16384 + 1024*i}")
            if i:
                a(f"s_cmp_eq_u32 {s(S_L)}, 3")
                a(f"s_cselect_b32 {s(S_DEST+4+i)}, {43008 + 1024*(i-1)}, {s(S_DEST+4+i)}")
            wrow(VO + 4 + i, i, i > 0)
            dma(0, 4 + i)
        a.label('Lld_setdone')
        self.stamp(40)
        def advance():
            a(f"s_add_u32 {s(S_KC)}, {s(S_KC)}, 1")
            a(f"s_cmp_eq_u32 {s(S_KC)}, 10")
            a(f"s_cselect_b32 {s(S_KC)}, 0, {s(S_KC)}")
            a(f"s_lshl_b32 {s(S_OA)}, {s(S_KC)}, 7")
            a(f"s_mul_i32 {s(S_OW)}, {s(S_KC)}, {64*3840}")
            a(f"s_mul_i32 {s(S_OH)}, {s(S_KC)}, {64*3072}")
            a(f"s_cmp_lg_u32 {s(S_TY)}, 0")
            a(f"s_cselect_b32 {s(S_OM)}, {s(S_OH)}, {s(S_OW)}")
        n1 = cfg.n1

        def idle_setup():
            srd(a, R_WS, P_WS, WS_SIZE)
            self.calc_u()
            a("v_mov_b32 v42, 0")
            a("v_mov_b32 v40, 0")
            L = self.lab('nc')
            a(f"s_or_b32 {s(S_T0)}, {s(S_L)}, s2")
            a(f"s_cbranch_scc1 {L}")
            if cfg.xlat:
                n, ptr, stride = cfg.xlat
                a("s_waitcnt vmcnt(0)")
                a("v_mov_b32 v50, 4096")
                for _ in range(n):
                    a(f"global_load_dword v51, v50, {s(ptr,2)}")
                    a(f"v_add_u32 v50, {stride}, v50")
                    a("s_waitcnt vmcnt(0)")
            a(f"s_load_dword {s(S_T0)}, {s(P_WS,2)}, 0")
            a("s_waitcnt lgkmcnt(0)")
            a(f"s_mul_i32 {s(S_T0)}, {s(S_T0)}, 0x9E3779B1")
            a(f"s_add_u32 {s(S_T0)}, {s(S_T0)}, 0x7F4A7C15")
            a(f"s_cmp_eq_u32 {s(S_T0)}, 0")
            a(f"s_cselect_b32 {s(S_T0)}, 1, {s(S_T0)}")
            a(f"v_mov_b32 v43, {s(S_T0)}")
            a(f"global_store_dword v42, v43, {s(P_DBG,2)} sc1")
            a(f"global_store_dword v42, v43, {s(P_WS,2)} sc1")
            a.label(L)
            a(f"v_add_u32 v0, {self.CT}, v0")
            self.oob_init = lambda: [a(f"v_mov_b32 {v(r)}, {hex(OOB)}") for r in cfg.KS]
            if cfg.xd < 11: a(f"v_mov_b32 v5, {hex(OOB)}")
            a(f"v_lshlrev_b32 v39, 4, v1")
            a(f"v_lshl_add_u32 v10, v1, 2, {s(S_T3)}")
            srd(a, R_BI, P_B1, 3072)
            a(f"v_mov_b32 v6, {hex(OOB)}")
            a(f"v_cmp_eq_u32 vcc, 0, v1")
            fs = cfg.fs; gs = fs + 5
            assert fs == 7
            a(f"v_cmp_gt_u32 {s(S_MASK,2)}, 32, v1")
            a(f"s_lshl_b32 {s(S_T0)}, {s(S_RB)}, {gs}")
            a(f"s_lshl_b32 {s(S_T1)}, {s(S_HG)}, {fs}")
            a(f"s_add_u32 {s(S_T0)}, {s(S_T0)}, {s(S_T1)}")
            a(f"s_lshl_b32 {s(S_T1)}, {s(S_TY)}, {fs + 3}")
            a(f"s_add_u32 {s(S_T1)}, {s(S_T1)}, {s(S_T0)}")
            a(f"s_add_u32 {s(S_T1)}, {s(S_T1)}, {WS_FH}")
            a(f"v_lshl_add_u32 v7, v1, 2, {s(S_T1)}")
            a(f"v_cndmask_b32 {v(V_FH)}, v6, v7, {s(S_MASK,2)}")
            a(f"s_add_u32 {s(S_T3)}, {s(S_T0)}, {WS_FO}")
            a(f"s_cmp_lg_u32 {s(S_TY)}, 0")
            a(f"s_cselect_b32 {s(S_T3)}, {s(S_T3)}, {hex(OOB)}")
            a(f"v_lshl_add_u32 v7, v1, 2, {s(S_T3)}")
            a(f"v_cndmask_b32 {v(V_F2)}, v6, v7, {s(S_MASK,2)}")
            a(f"s_lshl_b32 {s(S_T0)}, {s(S_RB)}, 7")
            a(f"s_and_b32 {s(S_T1)}, {s(S_U)}, 1")
            a(f"s_lshl_b32 {s(S_T1)}, {s(S_T1)}, 9")
            a(f"s_lshr_b32 {s(S_T2)}, {s(S_U)}, 1")
            a(f"s_lshl_b32 {s(S_T2)}, {s(S_T2)}, 2")
            a(f"s_add_u32 {s(S_T1)}, {s(S_T1)}, {s(S_T2)}")
            a(f"s_lshl_b32 {s(S_T2)}, {s(S_RB)}, 4")
            a(f"s_cmp_eq_u32 {s(S_TY)}, {cfg.pkty}")
            a(f"s_cselect_b32 {s(S_T2)}, 0, {s(S_T2)}")
            a(f"s_add_u32 {s(S_T1)}, {s(S_T1)}, {s(S_T2)}")
            a(f"s_add_u32 {s(S_T1)}, {s(S_T1)}, {WS_FP}")
            a(f"v_mov_b32 v7, {s(S_T1)}")
            a(f"v_cndmask_b32 {v(V_FP)}, v6, v7, vcc")
            a(f"s_add_u32 {s(S_T0)}, {s(S_T0)}, {WS_FS}")
            a(f"s_lshl_b32 {s(S_T1)}, {s(S_COL)}, 7")
            a(f"s_add_u32 {s(S_T1)}, {s(S_T1)}, {WS_FS + 2048}")
            a(f"s_lshl_b32 {s(S_T2)}, {s(S_S0)}, 2")
            a(f"s_add_u32 {s(S_T3)}, {s(S_T0)}, {s(S_T2)}")
            a(f"s_cmp_lt_u32 {s(S_COL)}, 10")
            a(f"s_cselect_b32 {s(S_T3)}, {s(S_T3)}, {hex(OOB)}")
            a(f"v_mov_b32 v7, {s(S_T3)}")
            a(f"v_cndmask_b32 {v(V_FS)}, v6, v7, vcc")
            a(f"s_add_u32 {s(S_T3)}, {s(S_T1)}, {s(S_T2)}")
            a(f"s_cmp_lt_u32 {s(S_RB)}, 10")
            a(f"s_cselect_b32 {s(S_T3)}, {s(S_T3)}, {hex(OOB)}")
            a(f"v_writelane_b32 {v(V_FS)}, {s(S_T3)}, 1")
            a(f"s_sub_u32 {s(S_T1)}, {s(S_T1)}, 40")
            a(f"v_lshl_add_u32 v7, v1, 2, {s(S_T0)}")
            a(f"v_lshl_add_u32 v8, v1, 2, {s(S_T1)}")
            a(f"v_cmp_gt_u32 vcc, 10, v1")
            a(f"v_cndmask_b32 {v(V_QS)}, v8, v7, vcc")
            a(f"s_lshr_b32 {s(S_T1)}, {s(S_N)}, 2")
            a(f"s_lshl_b32 {s(S_T1)}, {s(S_T1)}, 9")
            a(f"s_add_u32 {s(S_T1)}, {s(S_T1)}, {WS_FP}")
            a(f"v_lshl_add_u32 {v(V_QP)}, v1, 3, {s(S_T1)}")
            a(f"s_and_b32 {s(S_T1)}, {s(S_N)}, 3")
            a(f"s_lshl_b32 {s(S_T1)}, {s(S_T1)}, 4")
            a(f"v_add_u32 v7, {s(S_T1)}, {v(V_QP)}")
            a(f"v_cndmask_b32 {v(V_QP)}, v7, {v(V_QP)}, {s(S_MASK,2)}")
            a(f"s_lshr_b32 {s(S_T1)}, {s(S_TT)}, 1")
            a(f"s_lshl_b32 {s(S_T1)}, {s(S_T1)}, {gs}")
            a(f"s_add_u32 {s(S_T1)}, {s(S_T1)}, {WS_FH}")
            a(f"v_min_u32 v9, 7, v1")
            a(f"v_lshl_add_u32 {v(V_QK)}, v9, {fs}, {s(S_T1)}")
            a(f"v_add_u32 {v(V_QH)}, {8 << fs}, {v(V_QK)}")
            a(f"v_add_u32 v33, {16 << fs}, {v(V_QK)}")
            a(f"s_add_u32 {s(S_T1)}, {s(S_T1)}, {WS_FO - WS_FH}")
            a(f"v_lshl_add_u32 {v(V_QO)}, v9, {fs}, {s(S_T1)}")
            a(f"v_and_b32 v6, 15, v1")
            a(f"s_lshl_b32 {s(S_T0)}, {s(S_L)}, 5")
            a(f"v_add_u32 v6, {s(S_T0)}, v6")
            a(f"v_mul_u32_u24 v6, {OP}, v6")
            a(f"v_lshl_add_u32 v6, v3, 3, v6")
            a(f"v_add_u32 v38, {OEX}, v6")
            a(f"s_lshl_b32 {s(S_T0)}, {s(S_RB)}, 3")
            a(f"s_lshl_b32 {s(S_T1)}, {s(S_L)}, 1")
            a(f"s_add_u32 {s(S_T0)}, {s(S_T0)}, {s(S_T1)}")
            a(f"s_lshl_b32 {s(S_T0)}, {s(S_T0)}, 3")
            a(f"s_add_u32 {s(S_T0)}, {s(S_T0)}, {s(S_HG)}")
            a(f"s_mul_i32 {s(S_T0)}, {s(S_T0)}, 2560")
            a(f"s_add_u32 {s(S_PKS)}, {s(S_T0)}, {WS_O2}")
        def if_pack():
            L = self.lab('pk')
            a(f"s_cmp_gt_u32 {s(S_U)}, 135")
            a(f"s_cbranch_scc1 {L}")
            return L
        def p2_setup():
            a(f"s_mul_i32 {s(S_T0)}, {s(S_N)}, {68*5120}")
            a(f"s_and_b32 {s(S_T1)}, {s(S_L)}, 1")
            a(f"s_mul_i32 {s(S_T1)}, {s(S_T1)}, 5120")
            a(f"s_add_u32 {s(S_T0)}, {s(S_T0)}, {s(S_T1)}")
            a(f"s_add_u32 {s(S_T0)}, {s(S_T0)}, {WS_P2}")
            a(f"v_add_u32 {v(V_P2)}, {s(S_T0)}, v39")
            a(f"s_mul_i32 {s(S_DEST)}, {s(S_L)}, 5120")
            a(f"s_lshr_b32 {s(S_T1)}, {s(S_L)}, 1")
            a(f"s_mul_i32 {s(S_OM)}, {s(S_T1)}, {24*5120}")
            a(f"s_mul_i32 {s(S_OH)}, {s(S_T1)}, {10*5120}")
            a(f"s_add_u32 {s(S_OH)}, {s(S_OH)}, {48*5120}")
            self.rot2(S_KC)
        def p2_off(i):
            if i < 12:
                self.chunk_id(S_OA, S_T0, i)
                a(f"s_mul_i32 {s(S_OA)}, {s(S_OA)}, 10240")
                a(f"s_add_u32 {s(S_OA)}, {s(S_OA)}, {s(S_OM)}")
            else:
                a(f"s_add_u32 {s(S_OA)}, {s(S_OH)}, {(i-12)*10240}")
        def p2_chunk(i):
            p2_off(i)
            a(f"s_add_u32 m0, {s(S_DEST)}, {RING[i % 6]}")
            for j in range(4):
                a(f"buffer_load_dwordx4 {v(V_P2)}, {s(R_WS,4)}, {s(S_OA)} offen offset:{1024*j} {cfg.bsc} lds")
            a(f"s_add_u32 m0, {s(S_DEST)}, {RING[i % 6] + 4096}")
            a(f"s_add_u32 {s(S_OA)}, {s(S_OA)}, 4096")
            a(f"buffer_load_dwordx4 {v(V_P2)}, {s(R_WS,4)}, {s(S_OA)} offen {cfg.bsc} lds")
        def sreg(i): return 48 + 20 * cfg.staged.index(i)
        def p2_stage(i):
            p2_off(i)
            for j in range(4):
                a(f"buffer_load_dwordx4 {v(sreg(i)+4*j,4)}, {v(V_P2)}, {s(R_WS,4)}, {s(S_OA)} offen offset:{1024*j} {cfg.bsc}")
            a(f"s_add_u32 {s(S_OA)}, {s(S_OA)}, 4096")
            a(f"buffer_load_dwordx4 {v(sreg(i)+16,4)}, {v(V_P2)}, {s(R_WS,4)}, {s(S_OA)} offen {cfg.bsc}")
        def p2_put(i):
            base = RING[i % 6]
            for j in range(5):
                a(f"ds_write_b128 {v(2 + base // SLOT)}, {v(sreg(i)+4*j,4)} offset:{base % SLOT + 1024*j}")
        def heavy(k):
            if k == 104:
                Lq = self.lab('sq'); Le = self.lab('se')
                a(f"s_cmp_lg_u32 {s(S_TY)}, 0")
                a(f"s_cbranch_scc1 {Lq}")
                self.l1_setup()
                a(f"s_branch {Le}")
                a.label(Lq)
                for n in range(2): self.kvt_addr(n)
                a(f"s_mul_i32 {s(S_T0)}, {s(S_HG)}, {KP_STRIDE}")
                a(f"s_add_u32 {s(S_PKO)}, {s(S_T0)}, {WS_KT}")
                a.label(Le)
            if k == 0:
                L = self.only_l(1)
                a(f"s_mov_b32 m0, {B1L}")
                a(f"buffer_load_dword v10, {s(R_BI,4)}, 0 offen lds")
                a.label(L)
            if k == 100 + cfg.ks + 1:
                a("s_waitcnt lgkmcnt(0)")
                for ch in range(1, 10):
                    a(f"v_add_f32 v44, v44, {v(44+2*ch)}")
                    a(f"v_add_f32 v45, v45, {v(45+2*ch)}")
                a(f"s_and_b32 {s(S_T1)}, {s(S_L)}, 1")
                a(f"s_lshl_b32 {s(S_T1)}, {s(S_T1)}, 6")
                a(f"v_add_u32 v53, {s(S_T1)}, v1")
                a(f"v_lshlrev_b32 v54, 3, v53")
                a(f"v_add_u32 v54, {ST_CS}, v54")
                a(f"v_lshlrev_b32 v53, 2, v53")
                a(f"v_add_u32 v53, {ST}, v53")
                a(f"v_mul_f32 v46, {lit(1/640)}, v44")
                a(f"v_mul_f32 v47, v46, v46")
                a(f"v_mov_b32 v48, {lit(1/640)}")
                a(f"v_fma_f32 v55, v45, v48, -v47")
                a(f"v_max_f32 v55, 0, v55")
                a(f"v_add_f32 v47, {lit(1e-5)}, v55")
                a(f"v_rsq_f32 v48, v47")
                a(f"v_mul_f32 v49, v48, v48")
                a(f"v_fmaak_f32 v49, v49, v55, {lit(1e-5)}")
                a(f"v_rsq_f32 v49, v49")
                a(f"v_mul_f32 v50, v48, v49")
                a(f"v_mul_f32_e64 v51, -v46, v48")
                a(f"v_mul_f32_e64 v52, -v46, v50")
            if k == 8:
                if cfg.ks == 7: heavy(108)
                Lc = self.lab('stc'); Ld = self.lab('std')
                a(f"s_cmp_ge_u32 {s(S_L)}, 2")
                a(f"s_cbranch_scc1 {Lc}")
                a(f"ds_write_b32 v53, v48")
                a(f"ds_write_b32 v53, v51 offset:512")
                a(f"ds_write_b32 v53, v50 offset:1024")
                a(f"ds_write_b32 v53, v52 offset:1536")
                a(f"s_branch {Ld}")
                a.label(Lc)
                a(f"ds_write_b64 v54, v[44:45]")
                a.label(Ld)
                L = self.only_l(0)
                a(f"v_mov_b32 v6, {ST_N}")
                a(f"ds_write2_b32 v6, v41, v42 offset1:1")
                a(f"ds_write_b32 v6, v42 offset:8")
                a.label(L)
                srd(a, R_BI, P_B2, 1280)
                L = self.only_l(3)
                a(f"s_mul_i32 {s(S_T1)}, {s(S_N)}, 160")
                a(f"v_lshlrev_b32 v6, 2, v1")
                a(f"s_mov_b32 m0, {B2L}")
                a(f"buffer_load_dword v6, {s(R_BI,4)}, {s(S_T1)} offen lds")
                a.label(L)
                p2_setup()
                assert cfg.kp == 8 or cfg.pfs[0] == 0
                for c in range(cfg.pfs[0]): p2_chunk(c)
        for k in range(10):
            n1 = cfg.n10 if k == 0 else cfg.n1
            if cfg.pp1 and k > 0:
                assert cfg.n1 == 11
                if k + 1 < 10:
                    advance()
                    for n in range(cfg.nbq): dma(k + 1, n)
                a("s_barrier")
                heavy(k - 1)
                if k + 1 < 10:
                    for n in range(cfg.nbq, 11): dma(k + 1, n)
                wait = 11 if k + 1 < 10 else 5 * cfg.pfs[0]
            elif k + 1 < 10:
                advance()
                for n in range(n1): dma(k + 1, n)
                wait = n1
            else:
                wait = 5 * cfg.pfs[0]
            if k == 0:
                self.stamp(41); idle_setup()
                self.oob_init()
                if cfg.ldj: self.ldj_setup()
                if cfg.ldd: self.pack_setup(True)
                if cfg.kve: heavy(104)
                self.stamp(42)
            if (k == 5 and not cfg.kve) or (k - 1 == cfg.ks + 1 and cfg.ks < 7): heavy(100 + k - 1)
            if cfg.ldj and k == 3: self.ldj_stores()
            a(f"s_waitcnt vmcnt({0 if cfg.ldj and k == cfg.kz else wait})")
            if k == 3:
                L = self.only_l(0)
                a(f"v_readfirstlane_b32 {s(S_NONCE)}, v40")
                Lp = self.lab('np'); Lq = self.lab('nq')
                a(f"s_mov_b32 {s(S_CNT)}, 0")
                a.label(Lp)
                a(f"s_cmp_lg_u32 {s(S_NONCE)}, 0")
                a(f"s_cbranch_scc1 {Lq}")
                a(f"s_add_u32 {s(S_CNT)}, {s(S_CNT)}, 1")
                a(f"s_cmp_gt_u32 {s(S_CNT)}, 0x40000")
                a(f"s_cbranch_scc1 {Lq}")
                a(f"global_load_dword v40, v42, {s(P_DBG,2)} sc1")
                a("s_waitcnt vmcnt(0)")
                a(f"v_readfirstlane_b32 {s(S_NONCE)}, v40")
                a("s_nop 1")
                a(f"s_branch {Lp}")
                a.label(Lq)
                a(f"v_mov_b32 v41, {s(S_NONCE)}")
                a.label(L)
            if k == cfg.ks:
                L = self.only_l(0); self.poll_check(44, V_QS, 20); a.label(L)
            if k == cfg.kp and cfg.pk0 == 1:
                L = self.only_l(0); self.poll_check(64, V_QP, 34, 2); a.label(L)
            if k == 9: a("s_waitcnt lgkmcnt(0)")
            a("s_barrier")
            self.stamp(2 + k)
            if k == 0: self.dbgt(3)
            if k == 4: self.dbgt(4)
            if k == cfg.pwk and cfg.prew:
                L = self.only_l(0)
                a(f"buffer_store_dword v42, {v(V_FH)}, {s(R_WS,4)}, 0 offen sc1")
                a(f"buffer_store_dword v42, {v(V_F2)}, {s(R_WS,4)}, 0 offen sc1")
                if cfg.prew2:
                    a(f"buffer_store_dword v42, {v(V_FS)}, {s(R_WS,4)}, 0 offen sc1")
                    Lp = if_pack()
                    a(f"buffer_store_dword v42, {v(V_FP)}, {s(R_WS,4)}, 0 offen sc1")
                    a.label(Lp)
                a(f"s_cmp_eq_u32 {s(S_TY)}, 0")
                a(f"s_cbranch_scc1 {L}")
                a(f"buffer_store_dword v42, {v(V_FH)}, {s(R_WS,4)}, 0 offen offset:1024 sc1")
                a.label(L)
            if k == 2:
                L = self.only_l(0)
                a(f"global_load_dword v40, v42, {s(P_DBG,2)} sc1")
                a.label(L)
            if cfg.ldd and k == cfg.ldd: self.ldj_dma()
            if cfg.cpf == 4 and k == cfg.cpi: self.code_prefetch(160)
            if cfg.ldj:
                if k == 1: self.ldj_dma()
                if k == 2: self.ldj_reads()
                if k == cfg.cpi and cfg.cpf: self.code_prefetch(160)
            if k == (cfg.kz if cfg.ldj else 3):
                L = self.only_l(0); self.flag_store(V_FS); a.label(L)
            if k == (cfg.kz if cfg.ldj else cfg.pk0 + (4 if cfg.pk0 == 1 else 5)):
                L = if_pack(); L2 = self.only_l(0); self.flag_store(V_FP); a.label(L2); a.label(L)
            if k == cfg.ks - 1:
                L = self.only_l(0); self.poll_issue(44, V_QS); a.label(L)
            if k == cfg.kp - 1 and cfg.pk0 == 1:
                L = self.only_l(0); self.poll_issue(64, V_QP, 2); a.label(L)
            if k == cfg.ks:
                a(f"s_cmp_lt_u32 {s(S_L)}, 2")
                a(f"s_cselect_b32 {s(S_T0)}, {s(S_RB)}, {s(S_COL)}")
                a(f"s_mov_b32 {s(S_T1)}, {WS_CP}")
                a(f"s_cselect_b32 {s(S_T1)}, {WS_RP}, {s(S_T1)}")
                a(f"s_mul_i32 {s(S_T0)}, {s(S_T0)}, 10240")
                a(f"s_add_u32 {s(S_T0)}, {s(S_T0)}, {s(S_T1)}")
                a(f"s_and_b32 {s(S_T1)}, {s(S_L)}, 1")
                a(f"s_mul_i32 {s(S_T1)}, {s(S_T1)}, 5120")
                a(f"s_add_u32 {s(S_T0)}, {s(S_T0)}, {s(S_T1)}")
                a(f"s_mul_i32 {s(S_T2)}, {s(S_L)}, 5120")
                a(f"s_add_u32 m0, {s(S_T2)}, {SCR}")
                for j in range(4):
                    a(f"buffer_load_dwordx4 v39, {s(R_WS,4)}, {s(S_T0)} offen offset:{1024*j} sc1 lds")
                a(f"s_add_u32 m0, {s(S_T2)}, {SCR + 4096}")
                a(f"s_add_u32 {s(S_T0)}, {s(S_T0)}, 4096")
                a(f"buffer_load_dwordx4 v39, {s(R_WS,4)}, {s(S_T0)} offen sc1 lds")
            if k == cfg.ks + 1:
                a(f"s_lshr_b32 {s(S_T0)}, {s(S_L)}, 1")
                a(f"s_mul_i32 {s(S_T0)}, {s(S_T0)}, 10240")
                a(f"s_and_b32 {s(S_T1)}, {s(S_L)}, 1")
                a(f"s_lshl_b32 {s(S_T1)}, {s(S_T1)}, 9")
                a(f"s_add_u32 {s(S_T0)}, {s(S_T0)}, {s(S_T1)}")
                a(f"s_add_u32 {s(S_T0)}, {s(S_T0)}, {SCR}")
                a(f"v_lshl_add_u32 v6, v1, 3, {s(S_T0)}")
                for ch in range(10): a(f"ds_read_b64 {v(44+2*ch,2)}, v6 offset:{1024*ch}")
            if k + 1 < 10:
                for n in range(n1, 11): dma(k + 1, n)
            if not cfg.pp1: heavy(k)
            if k == 9:
                for c in range(cfg.pfs[0], sum(cfg.pfs)): p2_chunk(c)
        if cfg.pp1: a("s_barrier")
        if cfg.pk0 != 1:
            assert sum(cfg.pfs) == 0
            L = self.only_l(0); a(f"s_sleep {cfg.fpd}"); self.poll(46, V_QP, 34, 2); a.label(L)
        a("s_waitcnt lgkmcnt(0)")
        a("s_barrier")
        self.stamp(12); self.dbgt(5)
        a(f"s_setprio {cfg.pw}")
        a(f"s_lshr_b32 {s(S_T0)}, {s(S_L)}, 1")
        a(f"s_mul_i32 {s(S_T0)}, {s(S_T0)}, {KVT_C - 4096}")
        a(f"s_lshl_b32 {s(S_T1)}, {s(S_L)}, 11")
        a(f"s_add_u32 {s(S_T0)}, {s(S_T0)}, {s(S_T1)}")
        a(f"s_add_u32 {s(S_T0)}, {s(S_T0)}, {KVT}")
        a(f"v_add_u32 v6, {s(S_T0)}, v39")
        for e in range(4): a(f"v_mov_b32 {v(44+e)}, 0")
        a(f"ds_write_b128 v6, v[44:47]")
        a(f"ds_write_b128 v6, v[44:47] offset:1024")
        for c in range(sum(cfg.pfs), 6 - cfg.pfw): p2_chunk(c)
        def stg_reg(c): return 56 + 40 * cfg.stg.index(c)
        def stage_now():
            if cfg.stg:
                L = self.lab('sg')
                a(f"s_bitcmp0_b32 {s(S_L)}, 0")
                a(f"s_cbranch_scc1 {L}")
                a(f"v_add_u32 v5, {-5120 & 0xffffffff}, {v(V_P2)}")
                for c in cfg.stg:
                    p2_off(c)
                    for g0 in range(0, 10, 4):
                        if g0: a(f"s_add_u32 {s(S_OA)}, {s(S_OA)}, 4096")
                        for j in range(min(4, 10 - g0)):
                            a(f"buffer_load_dwordx4 {v(stg_reg(c) + 4*(g0+j),4)}, v5, {s(R_WS,4)}, {s(S_OA)} offen offset:{1024*j} {cfg.bsc}")
                a.label(L)
        if cfg.stp == 0: stage_now()
        if cfg.wopf:
            nsh = 8 if cfg.map2 == 'A' else 4
            per = 102400 // nsh // 4
            a(f"s_and_b32 {s(S_T0)}, {s(S_IDX)}, {nsh - 1}")
            a(f"s_lshl_b32 {s(S_T0)}, {s(S_T0)}, 2")
            a(f"s_add_u32 {s(S_T0)}, {s(S_T0)}, {s(S_L)}")
            a(f"s_mul_i32 {s(S_T0)}, {s(S_T0)}, {per}")
            a(f"s_mul_i32 {s(S_T1)}, {s(S_N)}, {68*5120}")
            a(f"s_add_u32 {s(S_T0)}, {s(S_T0)}, {s(S_T1)}")
            a(f"s_add_u32 {s(S_T0)}, {s(S_T0)}, {WS_P2 + 48*5120}")
            a(f"v_min_u32 v6, {per // 128 - 1}, v1")
            a(f"v_lshlrev_b32 v6, 7, v6")
            a(f"buffer_load_dword v94, v6, {s(R_WS,4)}, {s(S_T0)} offen sc1")
        a(f"v_mov_b32 v6, {ST_N}")
        a(f"ds_read_b32 v41, v6")
        a(f"s_cmp_lg_u32 {s(S_TY)}, 0")
        a(f"s_cbranch_scc1 Lld_eq")
        a("s_barrier")
        self.stamp(14)
        a.label('Lld_eq')
        a("s_waitcnt lgkmcnt(0)")
        def spin(off, n):
            Lr = self.lab('c8r'); Lg = self.lab('c8g')
            a(f"v_mov_b32 v6, {ST_C + off}")
            a(f"s_mov_b32 {s(S_CNT)}, 0")
            a.label(Lr)
            a(f"ds_read_b32 v7, v6")
            a("s_waitcnt lgkmcnt(0)")
            a(f"v_readfirstlane_b32 {s(S_T0)}, v7")
            a(f"s_cmp_ge_u32 {s(S_T0)}, {n}")
            a(f"s_cbranch_scc1 {Lg}")
            a("s_sleep 1")
            a(f"s_add_u32 {s(S_CNT)}, {s(S_CNT)}, 1")
            a(f"s_cmp_lt_u32 {s(S_CNT)}, 0x400000")
            a(f"s_cbranch_scc1 {Lr}")
            a.label(Lg)
        if cfg.stp == 1: stage_now()
        if cfg.stp == 2:
            Lq = self.lab('s2')
            a(f"s_bitcmp0_b32 {s(S_L)}, 0")
            a(f"s_cbranch_scc1 {Lq}")
            spin(0, 4)
            a.label(Lq)
            stage_now()
        L = self.only_l(0)
        Lk = self.lab('fk'); Lj = self.lab('fj')
        a("s_setprio 3")
        a(f"s_cmp_eq_u32 {s(S_TY)}, 0")
        a(f"s_cbranch_scc1 {Lk}")
        spin(0, 4)
        self.flag_store(V_FH); a("s_waitcnt vmcnt(0)")
        self.stamp(16)
        self.poll_issue(44, V_QH)
        spin(4, 4)
        a(f"buffer_store_dword v41, {v(V_FH)}, {s(R_WS,4)}, 0 offen offset:1024 sc1")
        self.stamp(17)
        a(f"s_branch {Lj}")
        a.label(Lk)
        if cfg.kvd > 0: a(f"s_sleep {cfg.kvd}")
        elif cfg.kvd < 0: spin(4 * (-cfg.kvd - 1), 4)
        self.poll_issue(44, V_QH)
        a.label(Lj)
        for c in range(6 - cfg.pfw, 6): p2_chunk(c)
        a(f"s_waitcnt vmcnt({5 * cfg.pfw})")
        self.poll_check(44, V_QH, 8)
        a(f"s_setprio {cfg.pl}")
        if cfg.pfw:
            L1 = self.lab('pfw')
            a(f"s_branch {L1}")
            a.label(L)
            spin(4, 4)
            for c in range(6 - cfg.pfw, 6): p2_chunk(c)
            a.label(L1)
        else:
            a.label(L)
        self.l1_run(spin)
        a(f"s_setprio {cfg.pl}")
        self.stamp(19)
        self.nb_ld_kv = a.nbar - nb0
        self.nb_ld_q = a.nbar - nb0 - 1
        nb3 = a.nbar
        ka = cfg.ka
        assert cfg.oil and not cfg.pfw and ka >= 2
        ko = 13 if cfg.late else cfg.ko
        def if_q():
            L = self.lab('iq')
            a(f"s_cmp_eq_u32 {s(S_TY)}, 0")
            a(f"s_cbranch_scc1 {L}")
            return L
        def kt_loads():
            for n in range(2): a(f"buffer_load_dwordx4 {v(cfg.KD+4*n,4)}, {v(cfg.KS[n])}, {s(R_WS,4)}, {s(S_PKO)} offen sc1")
        def kt_scatter(younger):
            L = if_q(); Lr = self.lab('kr'); Lg = self.lab('kg')
            a(f"s_waitcnt vmcnt({younger})")
            a(f"s_mov_b32 {s(S_CNT)}, 0")
            a.label(Lr)
            a(f"v_cmp_ne_u32 vcc, {v(cfg.KD+2)}, v41")
            a(f"v_cmp_ne_u32 {s(S_MASK,2)}, {v(cfg.KD+6)}, v41")
            a(f"s_and_b64 {s(S_MASK,2)}, {s(S_MASK,2)}, {s(M_V,2)}")
            a(f"s_or_b64 vcc, vcc, {s(S_MASK,2)}")
            if 'K' in cfg.xs: a(f"s_branch {Lg}")
            a(f"s_cbranch_scc0 {Lg}")
            a(f"s_add_u32 {s(S_CNT)}, {s(S_CNT)}, 1")
            a(f"s_cmp_gt_u32 {s(S_CNT)}, 0x40000")
            a(f"s_cbranch_scc1 {Lg}")
            if cfg.psl: a(f"s_sleep {cfg.psl}")
            kt_loads()
            a("s_waitcnt vmcnt(0)")
            a(f"s_branch {Lr}")
            a.label(Lg)
            for n in range(2):
                Lz = self.lab('kz')
                if n:
                    a(f"s_mov_b64 exec, {s(M_V,2)}")
                    a(f"s_cbranch_execz {Lz}")
                a(f"ds_write_b64 {v(cfg.KA[n])}, {v(cfg.KD+4*n,2)}")
                a(f"s_mov_b64 exec, {s(M_Z[n],2)}")
                a(f"s_cbranch_execz {Lz}")
                for k in range(3):
                    a(f"v_add_u32 {v(cfg.KA[n])}, {v(cfg.KA[n])}, {v(cfg.KZ[n])}")
                    a(f"ds_write_b64 {v(cfg.KA[n])}, {v(cfg.KD+4*n,2)}")
                a.label(Lz)
                a("s_mov_b64 exec, -1")
            a("s_waitcnt lgkmcnt(0)")
            a.label(L)
        kl = ka - (2 if cfg.kte else 1)
        def tail(aux):
            self.final_prep()
            a("s_waitcnt vmcnt(0)")
            if aux and cfg.late:
                L = self.only_l(0); self.poll_check(44, V_QO, 8); a.label(L)
            a("s_barrier")
            self.stamp(33)
            a("s_barrier")
            self.stamp(37)
            a("s_barrier")
            self.stamp(38); self.dbgt(8)
        a(f"s_bitcmp1_b32 {s(S_L)}, 0")
        a(f"s_cbranch_scc1 Lring")
        def hpf(ps):
            L = self.only_l(2)
            for p_ in ps:
                self.chunk_id(S_T0, S_T1, p_)
                a(f"s_lshl_b32 {s(S_T0)}, {s(S_T0)}, 11")
                a(f"s_add_u32 {s(S_T0)}, {s(S_T0)}, {s(S_OW)}")
                a(f"buffer_load_dword v94, v95, {s(R_WS,4)}, {s(S_T0)} offen sc1")
            a.label(L)
        if cfg.hpf:
            assert cfg.map2 == 'A' and cfg.rot2[0] == 0
            a(f"s_lshl_b32 {s(S_T0)}, {s(S_TT)}, 2")
            a(f"s_lshr_b32 {s(S_T1)}, {s(S_IDX)}, 3")
            a(f"s_add_u32 {s(S_T0)}, {s(S_T0)}, {s(S_T1)}")
            a(f"s_mul_i32 {s(S_T0)}, {s(S_T0)}, {48*1024}")
            a(f"s_add_u32 {s(S_OW)}, {s(S_T0)}, {WS_H2}")
            a(f"v_bfe_u32 v94, v1, 4, 1")
            a(f"v_mul_u32_u24 v94, 24576, v94")
            a(f"v_and_b32 v95, 15, v1")
            a(f"v_lshl_add_u32 v95, v95, 7, v94")
        for i in range(13):
            if i == ka and not cfg.kte: kt_scatter(0)
            if i == ka + cfg.onc + cfg.fo: a("s_waitcnt vmcnt(0)")
            for kk, vd, va in ((cfg.kb, 46, 33), (cfg.kh, 45, V_QK), (ko, 44, V_QO)):
                if i == kk:
                    L = self.only_l(0); a("s_waitcnt vmcnt(0)"); self.poll_check(vd, va, 8); a.label(L)
            if i: a("s_barrier")
            self.stamp(20 + i)
            if i == 1:
                L = self.only_l(0)
                a(f"s_cmp_lg_u32 {s(S_TY)}, 0")
                a(f"s_cbranch_scc1 {L}")
                self.flag_store(V_FH)
                a.label(L)
            if i == ka + cfg.onc + cfg.fo:
                L = self.only_l(0); self.flag_store(V_F2); a.label(L)
            if cfg.hpf:
                if i == 0: hpf(range(cfg.hpf, 4))
                if i == cfg.kb: hpf(range(4 + cfg.hpb, 8))
                if i == cfg.kh: hpf(range(8, 12))
            if i == ka - 1 and cfg.kte: kt_scatter(0)
            for kk, vd, va in ((cfg.kb, 46, 33), (cfg.kh, 45, V_QK), (ko, 44, V_QO)):
                if i == kk - 1:
                    L = self.only_l(0); self.poll_issue(vd, va); a.label(L)
            if i == kl:
                L = if_q(); kt_loads(); a.label(L)
            if i == ka + cfg.onc:
                L = if_q()
                for t in range(4):
                    for k in range(5): a(f"ds_read_b64 {v(104+12*t+2*k,2)}, v38 offset:{16*OP*t + 32*k}")
                a(f"v_lshlrev_b32 v6, 3, v1")
                for t in range(4):
                    a(f"s_waitcnt lgkmcnt({min(15, 15 - 5*t)})")
                    a(f"buffer_store_dwordx4 {v(104+12*t,4)}, v39, {s(R_WS,4)}, {s(S_PKS)} offen sc1")
                    a(f"buffer_store_dwordx4 {v(108+12*t,4)}, v39, {s(R_WS,4)}, {s(S_PKS)} offen offset:1024 sc1")
                    a(f"buffer_store_dwordx2 {v(112+12*t,2)}, v6, {s(R_WS,4)}, {s(S_PKS)} offen offset:2048 sc1")
                    if t < 3: a(f"s_add_u32 {s(S_PKS)}, {s(S_PKS)}, {8*2560}")
                a.label(L)
            if i == max(ka + cfg.onc + 1 + cfg.fo, cfg.kx) and 'x' not in cfg.xs:
                a(f"s_mul_i32 {s(S_T0)}, {s(S_TT)}, {64*1280}")
                a(f"s_mul_i32 {s(S_T1)}, {s(S_N)}, 160")
                a(f"s_add_u32 {s(S_T1)}, {s(S_T0)}, {s(S_T1)}")
                a(f"s_mul_i32 {s(S_T2)}, {s(S_L)}, 160")
                a(f"s_mul_i32 {s(S_T3)}, {s(S_L)}, 2560")
                for j in range(5):
                    a(f"v_add_u32 v6, {s(S_T2)}, v1")
                    if j: a(f"v_add_u32 v6, {64*j}, v6")
                    a(f"v_mul_u32_u24 v7, 6554, v6")
                    a(f"v_lshrrev_b32 v7, 16, v7")
                    a(f"v_mul_u32_u24 v7, {1280-160}, v7")
                    a(f"v_lshl_add_u32 v7, v6, 4, v7")
                    a(f"s_add_u32 m0, {s(S_T3)}, {XT + 1024*j}")
                    a(f"buffer_load_dwordx4 v7, {s(R_X,4)}, {s(S_T1)} offen lds")
                    if cfg.opre:
                        if j == 0: srd(a, R_OUT, P_OUT, 2048 * 1280)
                        a(f"buffer_load_dwordx4 v[104:107], v7, {s(R_OUT,4)}, {s(S_T1)} offen")
        tail(True)
        self.loader_final()
        nb_aux = a.nbar - nb3
        a.label('Lring')
        nb3 = a.nbar
        a(f"v_add_u32 {v(V_P2)}, {-5120 & 0xffffffff}, {v(V_P2)}")
        a(f"s_sub_u32 {s(S_DEST)}, {s(S_DEST)}, 5120")
        pend = list(cfg.stg)
        for k in range(3):
            a(f"s_add_u32 {s(S_T0)}, {s(S_DEST)}, {k*SLOT}")
            a(f"v_add_u32 {v(2+k)}, {s(S_T0)}, v39")
        for i in range(13):
            if i == ka and not cfg.kte: kt_scatter(0 if ka + 4 in cfg.stg else 10)
            if cfg.stg: a("s_waitcnt lgkmcnt(0)")
            if i + 1 in pend and i + 1 not in cfg.stg:
                k = pend.index(i + 1)
                a(f"s_waitcnt vmcnt({10 * (len(pend) - 1 - k)})"); del pend[:k+1]
            if i: a("s_barrier")
            if i == 0: self.dbgt(6)
            if i == 11: self.dbgt(7)
            if i == kl:
                L = if_q(); kt_loads(); a.label(L)
            if 1 <= i <= 11 and 'r' not in cfg.xs:
                c = i + 5
                if c in cfg.stg:
                    if c in pend:
                        k = pend.index(c)
                        a(f"s_waitcnt vmcnt({10 * (len(pend) - 1 - k)})"); del pend[:k+1]
                    base = RING[c % 6]
                    for j in range(10): a(f"ds_write_b128 {v(2 + base // SLOT)}, {v(stg_reg(c) + 4*j,4)} offset:{base % SLOT + 1024*j}")
                    continue
                p2_off(c)
                for g0 in range(0, 10, 4):
                    a(f"s_add_u32 m0, {s(S_DEST)}, {RING[c % 6] + 1024*g0}")
                    if g0: a(f"s_add_u32 {s(S_OA)}, {s(S_OA)}, 4096")
                    for j in range(min(4, 10 - g0)):
                        a(f"buffer_load_dwordx4 {v(V_P2)}, {s(R_WS,4)}, {s(S_OA)} offen offset:{1024*j} {cfg.bsc} lds")
                pend.append(c)
            if i == ka - 1 and cfg.kte: kt_scatter(20 if kl >= 1 else 10)
        tail(False)
        assert a.nbar - nb3 == nb_aux
        self.nb_ld_p2 = a.nbar - nb3
        self.loader_final()

    def kvt_addr(self, n):
        a = self.a
        a(f"v_add_u32 v70, {(256*n - self.CT) & 0xffffffff}, v0")
        a(f"v_cmp_le_u32 vcc, 210, v70")
        a(f"v_cndmask_b32 v84, 0, 1, vcc")
        a(f"v_mov_b32 v86, -210")
        a(f"v_mad_i32_i24 v85, v84, v86, v70")
        a(f"v_mul_u32_u24 v86, 3121, v85")
        a(f"v_lshrrev_b32 v86, 16, v86")
        a(f"v_mov_b32 v88, -21")
        a(f"v_mad_i32_i24 v87, v86, v88, v85")
        a(f"v_cmp_le_u32 vcc, 5, v86")
        a(f"v_cndmask_b32 v88, 0, 1, vcc")
        a(f"v_lshlrev_b32 v89, 1, v88")
        a(f"v_subrev_u32 v90, 16, v87")
        a(f"v_lshlrev_b32 v90, 2, v90")
        a(f"v_mad_u32_u24 v90, v88, 3, v90")
        a(f"v_add_u32 v91, 1, v88")
        a(f"v_cmp_eq_u32 {s(S_MASK,2)}, 20, v87")
        a(f"v_cndmask_b32 v90, v90, v91, {s(S_MASK,2)}")
        a(f"v_cmp_gt_u32 vcc, 16, v87")
        a(f"v_cndmask_b32 v90, v90, v87, vcc")
        a(f"v_cndmask_b32 v89, 1, v89, vcc")
        a(f"v_and_b32 v91, 3, v86")
        a(f"v_lshl_add_u32 v90, v91, 4, v90")
        a(f"v_lshlrev_b32 v91, 10, v89")
        a(f"v_lshl_add_u32 v91, v90, 4, v91")
        a(f"v_and_b32 v92, 4, v86")
        a(f"v_lshl_add_u32 v91, v92, 1, v91")
        a(f"v_lshrrev_b32 v92, 1, v89")
        a(f"v_lshlrev_b32 v92, 9, v92")
        a(f"v_lshl_add_u32 v92, v90, 3, v92")
        a(f"v_add_u32 v92, 3072, v92")
        a(f"v_cmp_le_u32 vcc, 8, v86")
        a(f"v_cndmask_b32 v91, v91, v92, vcc")
        a(f"v_cndmask_b32 {v(self.cfg.KZ[n])}, 64, 32, vcc")
        a(f"v_mul_u32_u24 v84, {KVT_C}, v84")
        a(f"v_add_u32 v91, v84, v91")
        a(f"v_add_u32 {v(self.cfg.KA[n])}, {KVT}, v91")
        a(f"v_mov_b32 v86, {hex(OOB)}")
        a(f"v_cmp_gt_u32 vcc, 420, v70")
        a(f"v_lshlrev_b32 v70, 4, v70")
        a(f"v_cndmask_b32 {v(self.cfg.KS[n])}, v86, v70, vcc")
        a(f"s_and_b64 {s(M_Z[n],2)}, {s(S_MASK,2)}, vcc")
        if n: a(f"s_mov_b64 {s(M_V,2)}, vcc")

    def l1_setup(self):
        a = self.a
        a(f"v_mov_b32 v5, {hex(OOB)}")
        a(f"v_and_b32 v4, 31, v1")
        a(f"s_lshl_b32 {s(S_T0)}, {s(S_RB)}, 5")
        a(f"v_add_u32 v4, {s(S_T0)}, v4")
        a(f"v_cmp_gt_u32 vcc, 420, v4")
        a(f"v_lshlrev_b32 v4, 4, v4")
        a(f"v_lshrrev_b32 v3, 5, v1")
        a(f"v_mul_u32_u24 v3, {8*KP_STRIDE}, v3")
        a(f"v_add_u32 v3, v3, v4")
        a(f"v_cndmask_b32 v3, v5, v3, vcc")
        a(f"s_mov_b64 {s(M_V,2)}, vcc")
        a(f"v_cmp_gt_u32 vcc, 32, v1")
        a(f"s_and_b64 vcc, vcc, {s(M_V,2)}")
        a(f"v_cndmask_b32 v4, v5, v4, vcc")
    def l1_run(self, spin):
        a = self.a
        Ls = self.lab('l1s'); Lr = self.lab('l1r'); Lg = self.lab('l1g')
        a(f"s_cmp_lg_u32 {s(S_L)}, 2")
        a(f"s_cbranch_scc1 {Ls}")
        a(f"s_cmp_lg_u32 {s(S_TY)}, 0")
        a(f"s_cbranch_scc1 {Ls}")
        a(f"s_cmp_ge_u32 {s(S_RB)}, 14")
        a(f"s_cbranch_scc1 {Ls}")
        a(f"s_mul_i32 {s(S_T1)}, {s(S_HG)}, {KP_STRIDE}")
        a(f"s_lshl_b32 {s(S_T2)}, {s(S_T1)}, 4")
        a(f"s_add_u32 {s(S_T1)}, {s(S_T1)}, {WS_KT}")
        a(f"s_add_u32 {s(S_T2)}, {s(S_T2)}, {WS_KP}")
        for e in range(1, 4): a(f"v_lshrrev_b32 {v(88+e)}, {8*e}, v41")
        a(f"v_mov_b32 v88, v41")
        a(f"v_mov_b32 v92, 0xffffff00")
        if self.cfg.l1d: a(f"s_sleep {self.cfg.l1d}")
        else: spin(4 * self.cfg.l1c, 4)
        a(f"s_mov_b32 {s(S_CNT)}, 0")
        D = 48
        a.label(Lr)
        for k in range(8):
            a(f"s_add_u32 {s(S_T3)}, {s(S_T2)}, {k*KP_STRIDE}")
            a(f"buffer_load_dwordx4 {v(D+4*k,4)}, v3, {s(R_WS,4)}, {s(S_T3)} offen sc1")
        if self.cfg.l1in:
            Lb = self.lab('l1b')
            a(f"s_cmp_lg_u32 {s(S_CNT)}, 0")
            a(f"s_cbranch_scc1 {Lb}")
            a(f"s_waitcnt vmcnt({8 + 5 * self.cfg.pfw})")
            a("s_barrier"); a.nbar -= 1
            a.label(Lb)

        for k in range(8):
            a(f"s_waitcnt vmcnt({7-k})")
            for e in range(4):
                if k == 0: a(f"v_xor_b32 {v(84+e)}, {v(D+e)}, {v(88+e)}")
                else: a(f"v_bitop3_b32 {v(84+e)}, {v(84+e)}, {v(D+4*k+e)}, {v(88+e)} bitop3:0xf6")
            for e in range(4): a(f"v_and_b32 {v(D+4*k+e)}, v92, {v(D+4*k+e)}")
            if k:
                for e in range(4): a(f"v_add_f32 {v(D+e)}, {v(D+e)}, {v(D+4*k+e)}")
        a(f"v_or3_b32 v84, v84, v85, v86")
        a(f"v_or_b32 v84, v84, v87")
        a(f"v_and_b32 v84, 0xff, v84")
        a(f"v_cmp_ne_u32 vcc, 0, v84")
        a(f"s_and_b64 vcc, vcc, {s(M_V,2)}")
        if 'L' in self.cfg.xs: a(f"s_branch {Lg}")
        a(f"s_cbranch_scc0 {Lg}")
        a(f"s_add_u32 {s(S_CNT)}, {s(S_CNT)}, 1")
        a(f"s_cmp_lt_u32 {s(S_CNT)}, 0x40000")
        a(f"s_cbranch_scc1 {Lr}")
        a.label(Lg)
        for e in range(4): a(f"v_mov_b32 {v(D+4+e)}, {v(D+e)}")
        for e in range(4): a(f"v_permlane32_swap_b32 {v(D+4+e)}, {v(D+e)}")
        for e in range(4): a(f"v_add_f32 {v(D+e)}, {v(D+e)}, {v(D+4+e)}")
        a(f"v_cvt_pk_bf16_f32 {v(D)}, {v(D)}, {v(D+1)}")
        a(f"v_cvt_pk_bf16_f32 {v(D+1)}, {v(D+2)}, {v(D+3)}")
        a(f"v_mov_b32 {v(D+2)}, v41")
        a(f"v_mov_b32 {v(D+3)}, v41")
        a(f"buffer_store_dwordx4 {v(D,4)}, v4, {s(R_WS,4)}, {s(S_T1)} offen sc1")
        self.stamp(17)
        a(f"s_branch {Ls}x")
        a.label(Ls)
        if self.cfg.stg:
            Lw = self.lab('sw'); Lv = self.lab('sv')
            a(f"s_bitcmp0_b32 {s(S_L)}, 0")
            a(f"s_cbranch_scc1 {Lw}")
            a(f"s_waitcnt vmcnt({10 * len(self.cfg.stg)})")
            a(f"s_branch {Lv}")
            a.label(Lw)
            a(f"s_waitcnt vmcnt(0)")
            a.label(Lv)
        else: a(f"s_waitcnt vmcnt({5 * self.cfg.pfw})")
        if self.cfg.l1in: a("s_barrier")
        a.label(Ls + 'x')
        if not self.cfg.l1in: a("s_barrier")

    def rot2(self, dst):
        a = self.a; ra, rb_ = self.cfg.rot2
        sh = 3 if self.cfg.map2 == 'A' else 2
        a(f"s_lshr_b32 {s(S_T1)}, {s(S_IDX)}, {sh}")
        a(f"s_mul_i32 {s(dst)}, {s(S_T1)}, {ra}")
        a(f"s_and_b32 {s(S_T1)}, {s(S_IDX)}, {(1 << sh) - 1}")
        a(f"s_mul_i32 {s(S_T1)}, {s(S_T1)}, {rb_}")
        a(f"s_add_u32 {s(dst)}, {s(dst)}, {s(S_T1)}")
    def chunk_id(self, d, t, i):
        a = self.a
        a(f"s_add_u32 {s(d)}, {s(S_KC)}, {i}")
        a(f"s_and_b32 {s(d)}, {s(d)}, 3")
        a(f"s_mul_i32 {s(d)}, {s(d)}, 3")
        if i < 8: a(f"s_add_u32 {s(d)}, {s(d)}, {1 + i // 4}")

    CT = 512; NTH = 768; NVG = 168
    def loader_final(self):
        self.a(f"s_cmp_ge_u32 {s(S_WID)}, 2")
        self.a(f"s_cbranch_scc1 Lfin")
        self.goto_final()
    def final_prep(self):
        a = self.a
        srd(a, R_OUT, P_OUT, 2048 * 1280)
        a(f"v_mul_u32_u24 v165, 6554, v0")
        a(f"v_lshrrev_b32 v165, 16, v165")
        a(f"v_lshlrev_b32 v164, 3, v165")
        a(f"v_lshl_add_u32 v164, v0, 4, v164")
        a(f"v_add_u32 v164, {OT}, v164")
        a(f"v_mul_u32_u24 v165, {1280-160}, v165")
        a(f"v_lshl_add_u32 v165, v0, 4, v165")
        a(f"s_mul_i32 {s(S_IT)}, {s(S_TT)}, {64*1280}")
        a(f"s_mul_i32 {s(S_T1)}, {s(S_N)}, 160")
        a(f"s_add_u32 {s(S_IT)}, {s(S_IT)}, {s(S_T1)}")
    def out_store(self):
        a = self.a
        a(f"ds_read_b64 v[4:5], v164")
        a(f"ds_read_b64 v[6:7], v164 offset:8")
        a("s_waitcnt lgkmcnt(0)")
        a(f"buffer_store_dwordx4 v[4:7], v165, {s(R_OUT,4)}, {s(S_IT)} offen {self.cfg.osc}")
    def goto_final(self):
        if self.cfg.diag or self.cfg.light: self.a("s_branch Lfinal_store")
        else: self.out_store(); self.a("s_endpgm")
    def final_store(self):
        a = self.a
        a.label('Lfinal_store')
        self.out_store()
        a.label('Lfin')
        if self.cfg.light:
            a(f"s_cmp_lg_u32 {s(S_WID)}, 0")
            a(f"s_cbranch_scc1 Lend")
            a(f"v_mov_b32 v4, {s(S_TS)}")
            a("s_waitcnt vmcnt(0)")
            a(f"s_memrealtime {s(S_TS,2)}")
            a(f"s_memtime s[8:9]")
            a(f"s_lshl_b32 {s(S_T0)}, s2, 4")
            a(f"s_add_u32 {s(S_T0)}, {s(S_T0)}, {WS_TS}")
            a("v_mov_b32 v2, 0")
            a("s_waitcnt lgkmcnt(0)")
            a(f"v_mov_b32 v5, {s(S_TS)}")
            a(f"v_mov_b32 v6, s3")
            a(f"v_mov_b32 v7, s8")
            a(f"buffer_store_dwordx4 v[4:7], v2, {s(R_WS,4)}, {s(S_T0)} offen")
        if self.cfg.diag:
            a("s_waitcnt vmcnt(0)")
            self.stamp(39); self.stamp(62)
            a(f"s_memrealtime {s(S_TS,2)}")
            a("s_waitcnt lgkmcnt(0)")
            a(f"v_writelane_b32 {v(VDIAG)}, {s(S_TS)}, 63")
            a(f"s_mul_i32 {s(S_T0)}, s2, 12")
            a(f"s_add_u32 {s(S_T0)}, {s(S_T0)}, {s(S_WID)}")
            a(f"s_lshl_b32 {s(S_T0)}, {s(S_T0)}, 8")
            a(f"s_add_u32 {s(S_T0)}, {s(S_T0)}, {WS_TS2}")
            a(f"v_lshlrev_b32 v2, 2, v1")
            a(f"buffer_store_dword {v(VDIAG)}, v2, {s(R_WS,4)}, {s(S_T0)} offen")
        a.label('Lend')
        a("s_endpgm")

    ACC = 12; ONES = 68; RS = 72; SQ = 76; CSA = 80; CSB = 84
    XA = 88; XB = 96; YA = 124; YB = 132
    VA = 2
    L15 = 164; G = 165; TOK = 167
    def acc(self, t, i): return self.ACC + (2 * t + i) * 4
    def tiles(self, ty):
        if ty == 0:
            return [(6, 0, 160, 'N'), (6, 32, 160, 'N'), (7, 0, 160, 'N'), (6, 10256, 160, 'N'), (6, 10288, 160, 'N'),
                    (8, 0, 128, 'T'), (9, 0, 128, 'T')]
        return [(6, 0, 160, 'T'), (6, 32, 160, 'T'), (6, 64, 160, 'T'), (7, 0, 256, 'T'), (8, 0, 256, 'T'), (9, 0, 256, 'T'), (10, 0, 256, 'T')]

    def pack_setup(self):
        a = self.a
        a(f"s_cmp_gt_u32 {s(S_U)}, 135")
        a(f"s_cselect_b32 {s(S_T0)}, 0, {s(S_U)}")
        a(f"s_lshr_b32 {s(S_T0)}, {s(S_T0)}, 1")
        a(f"s_cmp_lt_u32 {s(S_T0)}, 48")
        a(f"s_cselect_b32 {s(R_PK)}, {s(P_W2)}, {s(P_WO)}")
        a(f"s_cselect_b32 {s(R_PK+1)}, {s(P_W2+1)}, {s(P_WO+1)}")
        a(f"s_mov_b32 {s(R_PK+2)}, {hex(640*1280)}")
        a(f"s_cselect_b32 {s(R_PK+2)}, {hex(1536*1280)}, {s(R_PK+2)}")
        a(f"s_mov_b32 {s(R_PK+3)}, 0x20000")
        Lm = self.lab('pkm'); Ld = self.lab('pkd')
        a(f"s_cbranch_scc1 {Lm}")
        a(f"s_sub_u32 {s(S_T3)}, {s(S_T0)}, 48")
        a(f"s_mul_i32 {s(S_T1)}, {s(S_T3)}, 52")
        a(f"s_lshr_b32 {s(S_T1)}, {s(S_T1)}, 8")
        a(f"s_mul_i32 {s(S_T2)}, {s(S_T1)}, 5")
        a(f"s_sub_u32 {s(S_T3)}, {s(S_T3)}, {s(S_T2)}")
        a(f"s_mul_i32 {s(S_T1)}, {s(S_T1)}, 160")
        a(f"s_lshl_b32 {s(S_T2)}, {s(S_T3)}, 5")
        a(f"s_cmp_ge_u32 {s(S_T3)}, 2")
        a(f"s_cselect_b32 {s(S_T0)}, 16, 0")
        a(f"s_add_u32 {s(S_T2)}, {s(S_T2)}, {s(S_T0)}")
        a(f"s_cmp_eq_u32 {s(S_T3)}, 4")
        a(f"s_cselect_b32 {s(S_T2)}, 64, {s(S_T2)}")
        a(f"s_cselect_b32 {s(S_T0)}, {64*1280}, 0")
        a(f"s_add_u32 {s(S_T1)}, {s(S_T1)}, {s(S_T2)}")
        a(f"s_branch {Ld}")
        a.label(Lm)
        a(f"s_lshl_b32 {s(S_T1)}, {s(S_T0)}, 5")
        a(f"s_mov_b32 {s(S_T0)}, 0")
        a.label(Ld)
        a(f"s_and_b32 {s(R_PK+1)}, {s(R_PK+1)}, 0xffff")
        a(f"s_mul_i32 {s(S_T1)}, {s(S_T1)}, 1280")
        a(f"s_and_b32 {s(S_T2)}, {s(S_U)}, 1")
        a(f"s_mul_i32 {s(S_T3)}, {s(S_T2)}, 640")
        a(f"s_add_u32 {s(S_PKO)}, {s(S_T1)}, {s(S_T3)}")
        a(f"v_mov_b32 v100, {s(S_T0)}")
        a(f"v_mov_b32 v105, {hex(OOB)}")
        a(f"s_mul_i32 {s(S_T2)}, {s(S_RB)}, 160")
        a(f"s_cmp_eq_u32 {s(S_TY)}, {self.cfg.pkty}")
        a(f"s_cselect_b32 {s(S_T2)}, 0, {s(S_T2)}")
        a(f"s_movk_i32 {s(S_T3)}, 160")
        a(f"s_cselect_b32 {s(S_T3)}, 640, {s(S_T3)}")
        for i in range(3):
            a(f"v_add_u32 v101, {512*i}, v0")
            a(f"v_mul_u32_u24 v102, 1639, v101")
            a(f"v_lshrrev_b32 v102, 16, v102")
            a(f"v_cmp_le_u32 vcc, 16, v102")
            a(f"v_mul_u32_u24 v102, 640, v102")
            a(f"v_cndmask_b32 v103, 0, v100, vcc")
            a(f"v_lshlrev_b32 v101, 4, v101")
            a(f"v_sub_u32 v104, v101, v102")
            a(f"v_add3_u32 v102, v102, v101, v103")
            a(f"v_subrev_u32 v104, {s(S_T2)}, v104")
            a(f"v_cmp_gt_u32 vcc, {s(S_T3)}, v104")
            a(f"v_cndmask_b32 {v(161+i)}, v105, v102, vcc")

    def code_prefetch(self, T):
        a = self.a; cfg = self.cfg
        L = self.lab('cp'); Lpc = self.lab('pc')
        a(f"s_cmp_lg_u32 {s(S_WID)}, {cfg.cpw}")
        a(f"s_cbranch_scc1 {L}")
        a(f"s_getpc_b64 {s(S_T0,2)}")
        a.label(Lpc)
        a(f"s_sub_u32 {s(S_T0)}, {s(S_T0)}, {Lpc}-{NAME}")
        a(f"s_subb_u32 {s(S_T1)}, {s(S_T1)}, 0")
        n = cfg.cpn
        a(f"s_mul_i32 {s(S_T2)}, {s(S_IDX)}, {128 * n}")
        a(f"v_lshlrev_b32 {v(T)}, 7, v1")
        a(f"v_add_u32 {v(T)}, {s(S_T2)}, {v(T)}")
        a(f"v_min_u32 {v(T)}, Lcode_end-4-{NAME}, {v(T)}")
        a(f"v_mov_b32 {v(T+1)}, {s(S_T1)}")
        a(f"v_add_co_u32 {v(T)}, vcc, {s(S_T0)}, {v(T)}")
        a(f"v_addc_co_u32 {v(T+1)}, vcc, 0, {v(T+1)}, vcc")
        exec_mask(a, (1 << n) - 1)
        a(f"global_load_dword v166, {v(T,2)}, off")
        a(f"s_mov_b64 exec, -1")
        a.label(L)

    def scalar_prefetch(self):
        a = self.a
        PA, PB = 52, 54
        a(f"s_mov_b32 {s(S_T3)}, {s(S_S0)}")
        a(f"s_sub_u32 {s(S_T2)}, {s(S_WID)}, 4")
        a(f"s_lshl_b32 {s(S_T2)}, {s(S_T2)}, 3")
        for st in range(self.cfg.spf):
            Lq = self.lab('sq'); Le = self.lab('se')
            if st:
                a(f"s_add_u32 {s(S_T3)}, {s(S_T3)}, 1")
                a(f"s_cmp_eq_u32 {s(S_T3)}, 10")
                a(f"s_cselect_b32 {s(S_T3)}, 0, {s(S_T3)}")
            a(f"s_lshl_b32 {s(S_T0)}, {s(S_T3)}, 6")
            a(f"s_add_u32 {s(S_T0)}, {s(S_T0)}, {s(S_T2)}")
            a(f"s_mul_i32 {s(S_T1)}, {s(S_T0)}, 3840")
            a(f"s_mul_i32 {s(PB)}, {s(S_HG)}, 160")
            a(f"s_add_u32 {s(S_T1)}, {s(S_T1)}, {s(PB)}")
            a(f"s_add_u32 {s(PA)}, {s(P_W)}, {s(S_T1)}")
            a(f"s_addc_u32 {s(PA+1)}, {s(P_W+1)}, 0")
            a(f"s_cmp_lg_u32 {s(S_TY)}, 0")
            a(f"s_cbranch_scc1 {Lq}")
            for r in range(8):
                for o in (1280, 1280 + 156, 2560, 2560 + 156): a(f"s_load_dword s3, {s(PA,2)}, {hex(r*3840 + o)}")
            a(f"s_branch {Le}")
            a.label(Lq)
            a(f"s_mul_i32 {s(S_T1)}, {s(S_T0)}, 3072")
            a(f"s_mul_i32 {s(PB)}, {s(S_HG)}, 384")
            a(f"s_add_u32 {s(S_T1)}, {s(S_T1)}, {s(PB)}")
            a(f"s_add_u32 {s(PB)}, {s(P_W1)}, {s(S_T1)}")
            a(f"s_addc_u32 {s(PB+1)}, {s(P_W1+1)}, 0")
            for r in range(8):
                for o in (0, 156): a(f"s_load_dword s3, {s(PA,2)}, {hex(r*3840 + o)}")
                if self.cfg.sph:
                    for o in (128, 256): a(f"s_load_dword s3, {s(PB,2)}, {hex(r*3072 + o)}")
            a.label(Le)

    def compute_setup(self):
        a = self.a
        a.label('Lcompute')
        if self.cfg.spf:
            a("s_waitcnt lgkmcnt(0)")
            self.scalar_prefetch()
        if self.cfg.cpf == 1: self.code_prefetch(102)
        T = 88
        L15, G, TOK = self.L15, self.G, self.TOK
        a(f"s_sub_u32 {s(S_T0)}, {s(S_WID)}, 4")
        a(f"s_and_b32 {s(S_R)}, {s(S_T0)}, 3")
        a(f"s_lshr_b32 {s(S_C)}, {s(S_T0)}, 2")
        a(f"v_add_u32 v0, {-256 & 0xffffffff}, v0")
        a(f"v_and_b32 {v(L15)}, 15, v1")
        a(f"v_lshrrev_b32 {v(G)}, 4, v1")
        a(f"v_lshrrev_b32 {v(T+2)}, 1, {v(L15)}")
        a(f"v_xor_b32 {v(T+2)}, {v(T+2)}, {v(G)}")
        a(f"v_lshlrev_b32 {v(T+2)}, 4, {v(T+2)}")
        a(f"v_lshl_add_u32 {v(T+2)}, {v(L15)}, 7, {v(T+2)}")
        a(f"s_lshl_b32 {s(S_T0)}, {s(S_R)}, 12")
        a(f"s_lshl_b32 {s(S_T1)}, {s(S_C)}, 11")
        a(f"s_add_u32 {s(S_T0)}, {s(S_T0)}, {s(S_T1)}")
        a(f"v_add_u32 v2, {s(S_T0)}, {v(T+2)}")
        a(f"v_xor_b32 v3, 64, v2")
        a(f"v_xor_b32 v4, 2048, v2")
        a(f"v_xor_b32 v5, 64, v4")
        a(f"s_lshr_b32 {s(S_T0)}, {s(S_T0)}, 5")
        a(f"s_add_u32 {s(S_T0)}, {s(S_T0)}, {ST}")
        a(f"v_lshl_add_u32 {v(TOK)}, {v(L15)}, 2, {s(S_T0)}")
        a(f"v_bfe_u32 {v(T+3)}, v1, 2, 3")
        a(f"v_lshrrev_b32 {v(T+4)}, 5, v1")
        a(f"v_lshl_add_u32 {v(T+4)}, {v(T+4)}, 4, {v(T+3)}")
        a(f"v_and_b32 {v(T+5)}, 3, v1")
        a(f"v_lshlrev_b32 {v(T+6)}, 3, {v(T+5)}")
        a(f"v_mul_u32_u24 v6, 160, {v(T+4)}")
        a(f"s_mul_i32 {s(S_T0)}, {s(S_C)}, 80")
        a(f"s_add_u32 {s(S_T0)}, {s(S_T0)}, 16384")
        a(f"v_add3_u32 v6, v6, {v(T+6)}, {s(S_T0)}")
        for i in range(self.ACC, self.ONES): a(f"v_mov_b32 {v(i)}, 0")
        for i in range(4): a(f"v_mov_b32 {v(self.ONES+i)}, 0x3f803f80")
        if self.cfg.kal: self.kload()
        a(f"s_mov_b32 {s(S_IT)}, 0")
        self.calc_u()
        a("s_waitcnt lgkmcnt(0)")
        self.stamp(1)
        srd(a, R_WS, P_WS, WS_SIZE)
        self.pack_setup()
        self.p2_pre_setup()
        cfg = self.cfg
        a(f"s_mul_i32 {s(S_T0)}, {s(S_RB)}, 10")
        a(f"s_add_u32 {s(S_T0)}, {s(S_T0)}, {s(S_S0)}")
        a(f"s_lshl_b32 {s(S_T0)}, {s(S_T0)}, 10")
        a(f"s_add_u32 {s(S_RPA)}, {s(S_T0)}, {(WS_RP - 2*ST) & 0xffffffff}")
        a(f"s_mul_i32 {s(S_T0)}, {s(S_COL)}, 10")
        a(f"s_add_u32 {s(S_T0)}, {s(S_T0)}, {s(S_S0)}")
        a(f"s_lshl_b32 {s(S_T0)}, {s(S_T0)}, 10")
        a(f"s_mul_i32 {s(S_T1)}, {s(S_C)}, 448")
        a(f"s_add_u32 {s(S_T0)}, {s(S_T0)}, {s(S_T1)}")
        a(f"s_lshl_b32 {s(S_T1)}, {s(S_R)}, 6")
        a(f"s_add_u32 {s(S_T0)}, {s(S_T0)}, {s(S_T1)}")
        a(f"s_add_u32 {s(S_CPA)}, {s(S_T0)}, {WS_CP}")
        a(f"s_min_u32 {s(S_T0)}, {s(S_RB)}, {s(S_COL)}")
        a(f"s_cmp_lt_u32 {s(S_T0)}, 10")
        a(f"s_cselect_b32 {s(S_M1)}, 2, 0")
        a(f"s_cselect_b32 {s(S_M0)}, {6 if cfg.dst else 2}, 0")
        a(f"s_cmp_le_u32 {s(S_U)}, 135")
        a(f"s_cselect_b32 {s(S_T0)}, {hex((0 if cfg.pkt else 1 << cfg.pk0) | (1 << (cfg.pk0 + 2)))}, 0")
        a(f"s_cselect_b32 {s(S_T1)}, {hex((2 if cfg.pkt else 0) | (1 << (cfg.pk0 + 3)))}, 0")
        a(f"s_or_b32 {s(S_M1)}, {s(S_M1)}, {s(S_T0)}")
        a(f"s_or_b32 {s(S_M0)}, {s(S_M0)}, {s(S_T1)}")
        if cfg.cpf == 2:
            a(f"s_cmp_eq_u32 {s(S_WID)}, {cfg.cpw}")
            a(f"s_cselect_b32 {s(S_T0)}, {hex(1 << cfg.cpi)}, 0")
            a(f"s_or_b32 {s(S_M1)}, {s(S_M1)}, {s(S_T0)}")
        if cfg.cpf == 3: self.code_prefetch(102)
        a(f"s_cmp_lg_u32 {s(S_TY)}, 0")
        a(f"s_cbranch_scc1 Lc_q")
        self.h_addr(0, 1)
        a(f"s_lshl_b32 {s(S_T0)}, {s(S_HG)}, 4")
        a(f"s_add_u32 {s(S_T0)}, {s(S_T0)}, {s(S_RB)}")
        a(f"s_mul_i32 {s(S_T0)}, {s(S_T0)}, {KP_STRIDE}")
        a(f"s_add_u32 {s(S_CNT)}, {s(S_T0)}, {WS_KP}")
        a(f"s_mul_i32 {s(S_T0)}, {s(S_R)}, 6720")
        a(f"s_mul_i32 {s(S_T1)}, {s(S_C)}, 3360")
        a(f"s_add_u32 {s(S_T0)}, {s(S_T0)}, {s(S_T1)}")
        a(f"s_add_u32 {s(S_OA)}, {s(S_T0)}, {SCR}")
        a(f"v_cmp_gt_u32 vcc, 2, {v(T+5)}")
        a(f"v_mov_b32 {v(T+7)}, 10224")
        a(f"v_cndmask_b32 {v(T+7)}, {v(T+7)}, 64, vcc")
        a(f"v_add_u32 v7, v6, {v(T+7)}")
        a(f"v_lshrrev_b32 {v(T+7)}, 1, {v(T+3)}")
        a(f"v_lshl_add_u32 {v(T+8)}, {v(T+4)}, 7, {v(T+6)}")
        a(f"v_add_u32 {v(T+8)}, 36864, {v(T+8)}")
        a(f"s_lshl_b32 {s(S_T0)}, {s(S_C)}, 1")
        a(f"v_xor_b32 {v(T+7)}, {s(S_T0)}, {v(T+7)}")
        a(f"v_lshl_add_u32 v8, {v(T+7)}, 5, {v(T+8)}")
        a(f"v_xor_b32 {v(T+7)}, 1, {v(T+7)}")
        a(f"v_lshl_add_u32 v9, {v(T+7)}, 5, {v(T+8)}")
        a(f"s_branch Lp1_0")
        a.label('Lc_q')
        self.h_addr(2, 2)
        a(f"s_mul_i32 {s(S_T0)}, {s(S_HG)}, {KP_STRIDE}")
        a(f"s_add_u32 {s(S_CNT)}, {s(S_T0)}, {WS_KT}")
        a(f"v_lshl_add_u32 {v(T+8)}, {v(T+4)}, 8, {v(T+6)}")
        a(f"v_add_u32 {v(T+8)}, 26624, {v(T+8)}")
        a(f"s_lshl_b32 {s(S_T0)}, {s(S_C)}, 2")
        a(f"v_xor_b32 {v(T+7)}, {s(S_T0)}, {v(T+3)}")
        for i in range(4):
            a(f"v_xor_b32 {v(T+9)}, {i}, {v(T+7)}")
            a(f"v_lshl_add_u32 {v(7+i)}, {v(T+9)}, 5, {v(T+8)}")
        a(f"s_branch Lp1_1")

    def p1_reads(self, ty, st, A, B):
        out = [f"ds_read_b128 {v(A,4)}, {v(self.VA+st)}", f"ds_read_b128 {v(A+4,4)}, {v(self.VA+2+st)}"]
        for t, (ad, ex, pitch, o) in enumerate(self.tiles(ty)):
            for u in range(2):
                if t < self.cfg.xr: out.append(f"ds_read_b64_tr_b16 {v(B+4*t+2*u,2)}, {v(ad)} offset:{(32*st+8*u)*pitch+ex}")
        return out
    def p1_mfmas(self, ty, A, B):
        M = "v_mfma_f32_16x16x32_bf16"
        out = []
        for t, (ad, ex, pitch, o) in enumerate(self.tiles(ty)):
            for i in range(2):
                d = v(self.acc(t, i), 4); x = v(A + 4*i, 4); w = v(B + 4*(t % self.cfg.xalias if self.cfg.xalias else t), 4)
                if t < self.cfg.xm: out.append(f"{M} {d}, {x}, {w}, {d}" if o == 'N' else f"{M} {d}, {w}, {x}, {d}")
        return out

    def duty(self, half, A, B):
        a = self.a
        M = "v_mfma_f32_16x16x32_bf16"
        on = v(self.ONES, 4); x0 = v(A, 4)
        def c(r): return v(r, 4) if half else '0'
        a.label(f"Lduty{half}")
        a(f"{M} {v(self.RS,4)}, {on}, {x0}, {c(self.RS)}")
        a(f"{M} {v(self.SQ,4)}, {x0}, {x0}, {c(self.SQ)}")
        Ld = self.lab('dd')
        labs = [self.lab('dr') for _ in range(4)]
        for r in range(1, 4):
            a(f"s_cmp_eq_u32 {s(S_R)}, {r}")
            a(f"s_cbranch_scc1 {labs[r]}")
        for r in range(4):
            a.label(labs[r])
            a(f"{M} {v(self.CSA,4)}, {on}, {v(B+4*r,4)}, {c(self.CSA)}")
            if r < 3:
                a(f"{M} {v(self.CSB,4)}, {on}, {v(B+4*(r+4),4)}, {c(self.CSB)}")
                a(f"s_branch {Ld}")
        a.label(Ld)
        if half and not self.cfg.dst:
            self.duty_store()
        if self.cfg.hp: a("s_setprio 0")
        a(f"s_cmp_lg_u32 {s(S_TY)}, 0")
        a(f"s_cbranch_scc1 Lret{half}_1")
        a(f"s_branch Lret{half}_0")

    def duty_store(self):
        a = self.a
        T = self.RS + 1
        SQ = self.SQ
        a(f"v_and_b32 v160, 3, v1")
        a(f"v_lshl_add_u32 {v(T+1)}, {v(self.TOK)}, 1, {s(S_RPA)}")
        a(f"v_lshl_add_u32 {v(T+2)}, {v(self.L15)}, 2, {s(S_CPA)}")
        a(f"v_cmp_eq_u32 vcc, 1, v160")
        a(f"v_cndmask_b32 {v(self.RS+1)}, {v(SQ)}, {v(SQ+1)}, vcc")
        a(f"v_cmp_eq_u32 vcc, 2, v160")
        a(f"v_cndmask_b32 {v(self.RS+1)}, {v(self.RS+1)}, {v(SQ+2)}, vcc")
        a(f"v_cmp_eq_u32 vcc, 3, v160")
        a(f"v_cndmask_b32 {v(self.RS+1)}, {v(self.RS+1)}, {v(SQ+3)}, vcc")
        L = self.lab('dn')
        a(f"s_cmp_ge_u32 {s(S_COL)}, 10")
        a(f"s_cbranch_scc1 {L}")
        exec_mask(a, DIAGMASK)
        a(f"buffer_store_dwordx2 {v(self.RS,2)}, {v(T+1)}, {s(R_WS,4)}, 0 offen sc1")
        a.label(L)
        L = self.lab('dn')
        a(f"s_cmp_ge_u32 {s(S_RB)}, 10")
        a(f"s_cbranch_scc1 {L}")
        exec_mask(a, 0xffff)
        a(f"buffer_store_dword {v(self.CSA)}, {v(T+2)}, {s(R_WS,4)}, 0 offen sc1")
        a(f"s_cmp_eq_u32 {s(S_R)}, 3")
        a(f"s_cbranch_scc1 {L}")
        a(f"buffer_store_dword {v(self.CSB)}, {v(T+2)}, {s(R_WS,4)}, 0 offen offset:256 sc1")
        a.label(L)
        a("s_mov_b64 exec, -1")

    def pack_blocks(self):
        a = self.a
        PD = 72
        def ret(h):
            if self.cfg.hp: a("s_setprio 0")
            a(f"s_cmp_lg_u32 {s(S_TY)}, 0")
            a(f"s_cbranch_scc1 Lret{h}_1")
            a(f"s_branch Lret{h}_0")
        cfg = self.cfg; pk0 = cfg.pk0
        a.label('Lx1')
        if cfg.hp: a(f"s_setprio {cfg.hp}")
        L3 = self.lab('p3'); L = self.lab('pa'); Lc = self.lab('pc')
        if cfg.cpf == 2:
            a(f"s_cmp_lg_u32 {s(S_IT)}, {cfg.cpi}")
            a(f"s_cbranch_scc1 {Lc}")
            self.code_prefetch(84)
            a.label(Lc)
        a(f"s_cmp_lg_u32 {s(S_IT)}, {pk0 if not cfg.pkt else 77}")
        a(f"s_cbranch_scc1 {L3}")
        Ln = 'Lduty1' if pk0 == 1 else L
        a(f"s_cmp_gt_u32 {s(S_U)}, 135")
        a(f"s_cbranch_scc1 {Ln}")
        a(f"s_lshl_b32 {s(S_T0)}, {s(S_WID)}, 10")
        for i in range(3):
            if i == 2:
                a(f"s_cmp_lg_u32 {s(S_C)}, 0")
                a(f"s_cbranch_scc1 {Ln}")
            a(f"s_add_u32 m0, {s(S_T0)}, {SCR - 4096 + 8192*i}")
            a(f"buffer_load_dwordx4 {v(161+i)}, {s(R_PK,4)}, {s(S_PKO)} offen lds")
        a(f"s_branch {Ln}")
        a.label(L3)
        a(f"s_cmp_eq_u32 {s(S_IT)}, 1")
        a(f"s_cbranch_scc1 Lduty1")
        a(f"s_cmp_lg_u32 {s(S_IT)}, {pk0 + 2}")
        a(f"s_cbranch_scc1 {L}")
        a(f"s_cmp_gt_u32 {s(S_U)}, 135")
        a(f"s_cbranch_scc1 {L}")
        a(f"v_lshrrev_b32 v160, 2, v1")
        a(f"v_mul_u32_u24 v160, 640, v160")
        a(f"v_and_b32 v161, 3, v1")
        a(f"v_lshl_add_u32 v160, v161, 3, v160")
        a(f"s_mul_i32 {s(S_T0)}, {s(S_R)}, 160")
        a(f"s_mul_i32 {s(S_T1)}, {s(S_C)}, 96")
        a(f"s_add_u32 {s(S_T0)}, {s(S_T0)}, {s(S_T1)}")
        a(f"s_add_u32 {s(S_T0)}, {s(S_T0)}, {SCR}")
        a(f"v_add_u32 v160, {s(S_T0)}, v160")
        for c in range(3):
            a(f"ds_read_b64_tr_b16 {v(PD+4*c,2)}, v160 offset:{32*c}")
            a(f"ds_read_b64_tr_b16 {v(PD+2+4*c,2)}, v160 offset:{32*c + 16*640}")
        a.label(L)
        ret(1)
        a.label('Lx0')
        if cfg.hp: a(f"s_setprio {cfg.hp}")
        a("s_waitcnt lgkmcnt(0)")
        L = self.lab('pb')
        if cfg.pkt:
            Lt = self.lab('pt')
            a(f"s_cmp_lg_u32 {s(S_IT)}, 1")
            a(f"s_cbranch_scc1 {Lt}")
            a(f"s_cmp_gt_u32 {s(S_U)}, 135")
            a(f"s_cbranch_scc1 Lduty0")
            a(f"s_lshl_b32 {s(S_T0)}, {s(S_WID)}, 10")
            for i in range(3):
                if i == 2:
                    a(f"s_cmp_lg_u32 {s(S_C)}, 0")
                    a(f"s_cbranch_scc1 Lduty0")
                a(f"s_add_u32 m0, {s(S_T0)}, {SCR - 4096 + 8192*i}")
                a(f"buffer_load_dwordx4 {v(161+i)}, {s(R_PK,4)}, {s(S_PKO)} offen lds")
            a("s_branch Lduty0")
            a.label(Lt)
        else:
            a(f"s_cmp_eq_u32 {s(S_IT)}, 1")
            a(f"s_cbranch_scc1 Lduty0")
        if cfg.dst:
            Ls = self.lab('ps')
            a(f"s_cmp_lg_u32 {s(S_IT)}, 2")
            a(f"s_cbranch_scc1 {Ls}")
            self.duty_store()
            a(f"s_branch {L}")
            a.label(Ls)
        a(f"s_cmp_gt_u32 {s(S_U)}, 135")
        a(f"s_cbranch_scc1 {L}")
        a(f"s_cmp_eq_u32 {s(S_TY)}, {self.cfg.pkty}")
        a(f"s_cselect_b32 {s(S_T0)}, {s(S_R)}, {s(S_RB)}")
        a(f"s_cmp_lg_u32 {s(S_T0)}, {s(S_R)}")
        a(f"s_cbranch_scc1 {L}")
        a(f"s_and_b32 {s(S_T0)}, {s(S_U)}, 1")
        a(f"s_lshl_b32 {s(S_T0)}, {s(S_T0)}, 2")
        a(f"s_add_u32 {s(S_T0)}, {s(S_T0)}, {s(S_R)}")
        a(f"s_mul_i32 {s(S_T0)}, {s(S_T0)}, 68")
        a(f"s_lshr_b32 {s(S_T1)}, {s(S_U)}, 1")
        a(f"s_add_u32 {s(S_T0)}, {s(S_T0)}, {s(S_T1)}")
        a(f"s_mul_i32 {s(S_T0)}, {s(S_T0)}, 5120")
        a(f"s_mul_i32 {s(S_T1)}, {s(S_C)}, 3072")
        a(f"s_add_u32 {s(S_T0)}, {s(S_T0)}, {s(S_T1)}")
        a(f"s_add_u32 {s(S_T0)}, {s(S_T0)}, {WS_P2}")
        a(f"v_lshlrev_b32 v160, 4, v1")
        for c in range(3):
            if c == 2:
                a(f"s_cmp_lg_u32 {s(S_C)}, 0")
                a(f"s_cbranch_scc1 {L}")
            a(f"buffer_store_dwordx4 {v(PD+4*c,4)}, v160, {s(R_WS,4)}, {s(S_T0)} offen offset:{1024*c} sc1")
        a.label(L)
        ret(0)

    def pp_hooks(self):
        a = self.a; cfg = self.cfg
        M = "v_mfma_f32_16x16x32_bf16"
        on = v(self.ONES, 4); PD = 72
        def ret(h):
            a(f"s_cmp_lg_u32 {s(S_TY)}, 0")
            a(f"s_cbranch_scc1 Lq{h}_1")
            a(f"s_branch Lq{h}_0")
        a.label('Lqd')
        for h, A in enumerate((self.XA, self.YA)):
            x0 = v(A, 4)
            a(f"{M} {v(self.RS,4)}, {on}, {x0}, {v(self.RS,4) if h else 0}")
            a(f"{M} {v(self.SQ,4)}, {x0}, {x0}, {v(self.SQ,4) if h else 0}")
        Ld = self.lab('dd'); labs = [self.lab('dr') for _ in range(4)]
        for r in range(1, 4):
            a(f"s_cmp_eq_u32 {s(S_R)}, {r}")
            a(f"s_cbranch_scc1 {labs[r]}")
        for r in range(4):
            a.label(labs[r])
            for h, B in enumerate((self.XB, self.YB)):
                a(f"{M} {v(self.CSA,4)}, {on}, {v(B+4*r,4)}, {v(self.CSA,4) if h else 0}")
                if r < 3: a(f"{M} {v(self.CSB,4)}, {on}, {v(B+4*(r+4),4)}, {v(self.CSB,4) if h else 0}")
            if r < 3: a(f"s_branch {Ld}")
        a.label(Ld)
        a("s_nop 7")
        ret('d')
        a.label('Lql')
        L2 = self.lab('h2'); L4 = self.lab('h4'); Le = self.lab('he')
        a(f"s_cmp_eq_u32 {s(S_IT)}, 4")
        a(f"s_cbranch_scc1 {L4}")
        self.duty_store()
        a(f"s_cmp_gt_u32 {s(S_U)}, 135")
        a(f"s_cbranch_scc1 {Le}")
        a(f"s_lshl_b32 {s(S_T0)}, {s(S_WID)}, 10")
        for i in range(3):
            if i == 2:
                a(f"s_cmp_lg_u32 {s(S_C)}, 0")
                a(f"s_cbranch_scc1 {Le}")
            a(f"s_add_u32 m0, {s(S_T0)}, {SCR - 4096 + 8192*i}")
            a(f"buffer_load_dwordx4 {v(161+i)}, {s(R_PK,4)}, {s(S_PKO)} offen lds")
        a(f"s_branch {Le}")
        a.label(L4)
        if cfg.cpf == 2: self.code_prefetch(84)
        a(f"s_cmp_gt_u32 {s(S_U)}, 135")
        a(f"s_cbranch_scc1 {Le}")
        a(f"s_cmp_eq_u32 {s(S_TY)}, {self.cfg.pkty}")
        a(f"s_cselect_b32 {s(S_T0)}, {s(S_R)}, {s(S_RB)}")
        a(f"s_cmp_lg_u32 {s(S_T0)}, {s(S_R)}")
        a(f"s_cbranch_scc1 {Le}")
        a(f"v_lshrrev_b32 v160, 2, v1")
        a(f"v_mul_u32_u24 v160, 640, v160")
        a(f"v_and_b32 v161, 3, v1")
        a(f"v_lshl_add_u32 v160, v161, 3, v160")
        a(f"s_mul_i32 {s(S_T0)}, {s(S_R)}, 160")
        a(f"s_mul_i32 {s(S_T1)}, {s(S_C)}, 96")
        a(f"s_add_u32 {s(S_T0)}, {s(S_T0)}, {s(S_T1)}")
        a(f"s_add_u32 {s(S_T0)}, {s(S_T0)}, {SCR}")
        a(f"v_add_u32 v160, {s(S_T0)}, v160")
        for c in range(3):
            a(f"ds_read_b64_tr_b16 {v(PD+4*c,2)}, v160 offset:{32*c}")
            a(f"ds_read_b64_tr_b16 {v(PD+2+4*c,2)}, v160 offset:{32*c + 16*640}")
        a(f"s_and_b32 {s(S_T0)}, {s(S_U)}, 1")
        a(f"s_lshl_b32 {s(S_T0)}, {s(S_T0)}, 2")
        a(f"s_add_u32 {s(S_T0)}, {s(S_T0)}, {s(S_R)}")
        a(f"s_mul_i32 {s(S_T0)}, {s(S_T0)}, 68")
        a(f"s_lshr_b32 {s(S_T1)}, {s(S_U)}, 1")
        a(f"s_add_u32 {s(S_T0)}, {s(S_T0)}, {s(S_T1)}")
        a(f"s_mul_i32 {s(S_T0)}, {s(S_T0)}, 5120")
        a(f"s_mul_i32 {s(S_T1)}, {s(S_C)}, 3072")
        a(f"s_add_u32 {s(S_T0)}, {s(S_T0)}, {s(S_T1)}")
        a(f"s_add_u32 {s(S_T0)}, {s(S_T0)}, {WS_P2}")
        a(f"v_lshlrev_b32 v160, 4, v1")
        a("s_waitcnt lgkmcnt(0)")
        for c in range(3):
            if c == 2:
                a(f"s_cmp_lg_u32 {s(S_C)}, 0")
                a(f"s_cbranch_scc1 {Le}")
            a(f"buffer_store_dwordx4 {v(PD+4*c,4)}, v160, {s(R_WS,4)}, {s(S_T0)} offen offset:{1024*c} sc1")
        a.label(Le)
        ret('l')

    def pp_loop(self, ty):
        a = self.a; cfg = self.cfg
        nad = 8 if ty == 0 else 9
        nb = a.nbar
        rx = self.p1_reads(ty, 0, self.XA, self.XB); ry = self.p1_reads(ty, 1, self.YA, self.YB)
        my = self.p1_mfmas(ty, self.YA, self.YB); mx = self.p1_mfmas(ty, self.XA, self.XB)
        a.label(f"Lp1_{ty}")
        a(f"s_mov_b32 {s(S_DEST)}, {hex(-2*SLOT & 0xffffffff)}")
        a(f"s_mov_b32 {s(S_DEST+1)}, {SLOT}")
        a(f"s_cmp_eq_u32 {s(S_C)}, 0")
        a(f"s_cbranch_scc1 Lqd_{ty}")
        a("s_barrier")
        a(".p2align 3")
        a.label(f"Lqd_{ty}")
        a("s_barrier")
        if cfg.ppr: a("s_setprio 0")
        for x in rx + ry: a(x)
        a(f"s_add_u32 {s(S_IT)}, {s(S_IT)}, 1")
        a(f"s_bitcmp1_b32 {hex((1<<3)|(1<<6)|(1<<9))}, {s(S_IT)}")
        a(f"s_cselect_b32 {s(S_DELTA)}, {s(S_DEST)}, {s(S_DEST+1)}")
        for i in range(nad): a(f"v_add_u32 {v(self.VA+i)}, {s(S_DELTA)}, {v(self.VA+i)}")
        L = self.lab('vw')
        a(f"s_bitcmp0_b32 {hex((1<<3)|(1<<5))}, {s(S_IT)}")
        a(f"s_cbranch_scc1 {L}")
        a("s_waitcnt vmcnt(0)")
        a.label(L)
        a(f"s_bitcmp1_b32 {hex((1<<2)|(1<<4))}, {s(S_IT)}")
        a(f"s_cbranch_scc1 Lql")
        a.label(f"Lql_{ty}")
        if cfg.ppr: a(f"s_setprio {cfg.ppr}")
        a(f"s_cmp_eq_u32 {s(S_IT)}, 10")
        a("s_waitcnt lgkmcnt(0)")
        a("s_barrier")
        for x in mx: a(x)
        a(f"s_cbranch_scc1 Lqx_{ty}")
        for x in my[:-1]: a(x)
        a(f"s_cmp_eq_u32 {s(S_IT)}, 1")
        a(my[-1])
        a(f"s_cbranch_scc1 Lqd")
        a(f"s_branch Lqd_{ty}")
        a.label(f"Lqx_{ty}")
        self.nb_loop = 21
        a.nbar = nb
    def pp_e0(self):
        if not self.cfg.pp1: return
        a = self.a; L = self.lab('e0')
        a(f"s_cmp_lg_u32 {s(S_C)}, 0")
        a(f"s_cbranch_scc1 {L}")
        a("s_barrier"); a.nbar -= 1
        a.label(L)

    def p1_loop(self, ty):
        if self.cfg.pp1: return self.pp_loop(ty)
        a = self.a; cfg = self.cfg
        nad = 8 if ty == 0 else 9
        nb = a.nbar
        rx = self.p1_reads(ty, 0, self.XA, self.XB); ry = self.p1_reads(ty, 1, self.YA, self.YB)
        my = self.p1_mfmas(ty, self.YA, self.YB); mx = self.p1_mfmas(ty, self.XA, self.XB)
        if cfg.mo == 1: my = my[0::2] + my[1::2]
        if cfg.mo == 2:
            for m_ in (my, mx):
                for t in range(1, 7, 2): m_[2*t], m_[2*t+1] = m_[2*t+1], m_[2*t]
        sal = [f"s_add_u32 {s(S_IT)}, {s(S_IT)}, 1",
               f"s_bitcmp1_b32 {hex((1<<3)|(1<<6)|(1<<9))}, {s(S_IT)}",
               f"s_cselect_b32 {s(S_DELTA)}, {s(S_DEST)}, {s(S_DEST+1)}"]
        a.label(f"Lp1_{ty}")
        if cfg.pc1:
            L = self.lab('pr')
            a(f"s_cmp_eq_u32 {s(S_C)}, 0")
            a(f"s_cbranch_scc1 {L}")
            a(f"s_setprio {cfg.pc1}")
            a.label(L)
        a(f"s_mov_b32 {s(S_DEST)}, {hex(-2*SLOT & 0xffffffff)}")
        a(f"s_mov_b32 {s(S_DEST+1)}, {SLOT}")
        a("s_barrier")
        for x in rx: a(x)
        a(f"s_branch Lret1_{ty}")
        a(".p2align 3")
        a.label(f"Lp1h_{ty}")
        a("s_barrier")
        k = 0
        for m, x in enumerate(my):
            a(x)
            for _ in range(cfg.rpm + (1 if m < cfg.rp2 else 0)):
                if k < len(rx): a(rx[k]); k += 1
        while k < len(rx): a(rx[k]); k += 1
        a(f"s_bitcmp1_b32 {s(S_M1)}, {s(S_IT)}")
        a(f"s_cbranch_scc1 Lx1")
        a.label(f"Lret1_{ty}")
        upd = [f"v_add_u32 {v(self.VA+i)}, {s(S_DELTA)}, {v(self.VA+i)}" for i in range(nad)]
        k = 0; u = 0
        for m, x in enumerate(mx):
            if m % 2 == 0:
                t = m // 2
                rem = len(rx) - (2 + 2 * (t + 1))
                if rem >= 0:
                    a(f"s_waitcnt lgkmcnt({min(15, rem + k)})")
            if m == len(mx) - 1: a(f"s_cmp_lt_u32 {s(S_IT)}, 10")
            a(x)
            if m == 0:
                for y in sal: a(y)
            for _ in range(cfg.rpm + (1 if m < cfg.rp2 else 0)):
                t1 = (m + 2) // 2
                rem1 = max(0, len(rx) - (2 + 2 * (t1 + 1)))
                if k < len(ry) and (rem1 + k + 1 <= 15 or rem1 == 0): a(ry[k]); k += 1
            n = 0
            while u < len(upd) and n < 2 and not any(f", {v(self.VA+u)} " in y + " " for y in ry[k:]): a(upd[u]); u += 1; n += 1
            if m == len(mx) - 3:
                L = self.lab('vw')
                a(f"s_bitcmp0_b32 {hex((1<<3)|(1<<(cfg.pk0+2))|(1<<(cfg.pk0+(4 if cfg.pk0 == 1 else 5))))}, {s(S_IT)}")
                a(f"s_cbranch_scc1 {L}")
                a("s_waitcnt vmcnt(0)")
                a.label(L)
                a(f"s_bitcmp1_b32 {s(S_M0)}, {s(S_IT)}")
                a(f"s_cbranch_scc1 Lx0")
                a.label(f"Lret0_{ty}")
        while k < len(ry): a(ry[k]); k += 1
        while u < len(upd): a(upd[u]); u += 1
        a("s_waitcnt lgkmcnt(0)")
        if cfg.xidle: a(f"s_sleep {cfg.xidle}")
        a(f"s_cbranch_scc1 Lp1h_{ty}")
        a("s_barrier")
        self.nb_loop = 11
        a.nbar = nb

    def gelu_tile(self, t, AB, CS, BR, d0, W):
        a = self.a
        B = W; X = W + 4
        a(f"v_lshlrev_b32 {v(B)}, 16, {v(BR)}")
        a(f"v_and_b32 {v(B+1)}, {s(S_K1)}, {v(BR)}")
        a(f"v_lshlrev_b32 {v(B+2)}, 16, {v(BR+1)}")
        a(f"v_and_b32 {v(B+3)}, {s(S_K1)}, {v(BR+1)}")
        ch = [(i, p) for i in range(2) for p in range(2)]
        ac = lambda i, p: self.acc(t, i) + 2 * p
        x = lambda i, p: X + 4 * i + 2 * p
        for i, p in ch: a(pk('fma', x(i,p), ('b', AB+4*i+2), CS+2*p, B+2*p))
        for i, p in ch: a(pk('fma', ac(i,p), ('b', AB+4*i), ac(i,p), x(i,p)))
        for i, p in ch: a(pk('mul', x(i,p), ac(i,p), ac(i,p)))
        for i, p in ch: a(pk('fma', x(i,p), x(i,p), ('s', S_K0), ('b', 166)))
        for i, p in ch: a(pk('mul', x(i,p), x(i,p), ac(i,p)))
        for k in range(8): a(f"v_exp_f32 {v(X+k)}, {v(X+k)}")
        for i, p in ch: a(pk('add', x(i,p), x(i,p), '1.0'))
        for k in range(8): a(f"v_rcp_f32 {v(X+k)}, {v(X+k)}")
        for i, p in ch: a(pk('mul', x(i,p), x(i,p), ac(i,p)))
        for i, p in ch: a(f"v_cvt_pk_bf16_f32 {v(d0(i)+p)}, {v(x(i,p))}, {v(x(i,p)+1)}")
    def gelu_consts(self):
        a = self.a
        c1 = -2 * math.sqrt(2 / math.pi) * LOG2E; c2 = c1 * 0.044715
        a(f"s_mov_b32 {s(S_K0)}, {lit(c2)}")
        a(f"s_mov_b32 {s(S_K1)}, 0xffff0000")
        a(f"v_mov_b32 v166, {lit(c1)}")

    def phi_tile(self, t, fa, fb, fcs, X, EPS, d0):
        a = self.a
        ch = [(i, p) for i in range(2) for p in range(2)]
        ac = lambda i, p: self.acc(t, i) + 2 * p
        x = lambda i, p: X + 4 * i + 2 * p
        for i, p in ch: a(pk('fma', x(i,p), fb(i,p), fcs(i,p), ('b', EPS)))
        for i, p in ch: a(pk('fma', ac(i,p), fa(i,p), ac(i,p), x(i,p)))
        for i, p in ch: a(pk('mul', x(i,p), ac(i,p), ('s', S_K0)))
        for k in range(8): a(f"v_exp_f32 {v(X+k)}, {v(X+k)} clamp")
        for i in range(2):
            for k in range(4): a(f"v_max_f32 {v(X+8+4*i+k)}, {v(EPS)}, {v(self.acc(t,i)+k)}")
        for i, p in ch: a(pk('add', x(i,p), x(i,p), x(i,p)+8))
        for i, p in ch: a(f"v_cvt_pk_bf16_f32 {v(d0(i)+p)}, {v(x(i,p))}, {v(x(i,p)+1)}")

    def h_addr(self, ks0_imm, ks_c_mul):
        a = self.a
        a(f"s_lshl_b32 {s(S_T0)}, {s(S_RB)}, 3")
        a(f"s_lshl_b32 {s(S_T1)}, {s(S_R)}, 1")
        a(f"s_add_u32 {s(S_T0)}, {s(S_T0)}, {s(S_T1)}")
        a(f"s_add_u32 {s(S_T0)}, {s(S_T0)}, {s(S_C)}")
        a(f"s_xor_b32 {s(S_T1)}, {s(S_T0)}, 1")
        a(f"s_mul_i32 {s(S_T2)}, {s(S_HG)}, 6")
        a(f"s_mul_i32 {s(S_T3)}, {s(S_C)}, {ks_c_mul}")
        a(f"s_add_u32 {s(S_T2)}, {s(S_T2)}, {s(S_T3)}")
        a(f"s_add_u32 {s(S_T2)}, {s(S_T2)}, {ks0_imm + WS_H2 // 1024}")
        for k, d in ((S_T0, S_OW), (S_T1, S_OM)):
            a(f"s_mul_i32 {s(k)}, {s(k)}, 48")
            a(f"s_add_u32 {s(k)}, {s(k)}, {s(S_T2)}")
            a(f"s_lshl_b32 {s(d)}, {s(k)}, 10")
    def h_flag(self, vn):
        a = self.a; fs = self.cfg.fs
        a(f"buffer_store_dword {v(vn)}, v10, {s(R_WS,4)}, 0 offen sc1")
    def h_flag_addr(self):
        a = self.a; fs = self.cfg.fs
        a(f"s_lshl_b32 {s(S_T0)}, {s(S_RB)}, 1")
        a(f"s_lshr_b32 {s(S_T1)}, {s(S_R)}, 1")
        a(f"s_add_u32 {s(S_T0)}, {s(S_T0)}, {s(S_T1)}")
        a(f"s_lshl_b32 {s(S_T0)}, {s(S_T0)}, 4")
        a(f"s_add_u32 {s(S_T0)}, {s(S_T0)}, {s(S_COL)}")
        a(f"s_lshl_b32 {s(S_T0)}, {s(S_T0)}, 1")
        a(f"s_and_b32 {s(S_T1)}, {s(S_R)}, 1")
        a(f"s_add_u32 {s(S_T0)}, {s(S_T0)}, {s(S_T1)}")
        a(f"s_lshl_b32 {s(S_T0)}, {s(S_T0)}, 1")
        a(f"s_add_u32 {s(S_T0)}, {s(S_T0)}, {s(S_C)}")
        a(f"s_lshl_b32 {s(S_T0)}, {s(S_T0)}, {fs}")
        a(f"s_add_u32 {s(S_XCD)}, {s(S_T0)}, {WS_FH}")
    def h_poll(self, vn):
        a = self.a; fs = self.cfg.fs
        L = self.lab('hp'); Lr = self.lab('hr')
        a(f"s_cmp_lg_u32 {s(S_WID)}, 11")
        a(f"s_cbranch_scc1 {L}")
        a(f"s_lshl_b32 {s(S_T1)}, {s(S_TT)}, {fs + 6}")
        a(f"s_add_u32 {s(S_T1)}, {s(S_T1)}, {WS_FH}")
        a(f"v_lshlrev_b32 v12, {fs}, v1")
        a(f"s_mov_b32 {s(S_IT)}, 0")
        a.label(Lr)
        a(f"buffer_load_dword v13, v12, {s(R_WS,4)}, {s(S_T1)} offen sc1")
        a("s_waitcnt vmcnt(0)")
        a(f"v_cmp_ne_u32 vcc, v13, {v(vn)}")
        a(f"s_cbranch_vccz {L}")
        if self.cfg.psl: a(f"s_sleep {self.cfg.psl}")
        a(f"s_add_u32 {s(S_IT)}, {s(S_IT)}, 1")
        a(f"s_cmp_lt_u32 {s(S_IT)}, 0x40000")
        a(f"s_cbranch_scc1 {Lr}")
        a.label(L)
    def signal(self):
        a = self.a
        a(f"s_lshl_b32 {s(S_T0)}, {s(S_C)}, 2")
        a(f"s_add_u32 {s(S_T0)}, {s(S_T0)}, {ST_C}")
        a(f"v_mov_b32 v4, {s(S_T0)}")
        a(f"v_mov_b32 v5, 1")
        a("s_mov_b64 exec, 1")
        a("ds_add_u32 v4, v5")
        a("s_mov_b64 exec, -1")
    def h_flag_v(self):
        a = self.a
        a(f"v_mov_b32 v10, {hex(OOB)}")
        a(f"v_writelane_b32 v10, {s(S_XCD)}, 0")
    def h_store(self, p, TMP):
        for i in range(2):
            self.a(f"buffer_store_dwordx4 {v(TMP+p*8+i*4,4)}, v2, {s(R_WS,4)}, {s((S_OW, S_OM)[i])} offen offset:{1024*p} sc1")

    def epi_kv(self):
        a = self.a
        nb = a.nbar
        L15, G, TOK = self.L15, self.G, self.TOK
        self.stamp(2)
        a(f"s_setprio {self.cfg.pe}")
        a(f"s_lshl_b32 {s(S_T0)}, {s(S_R)}, 7")
        a(f"s_lshl_b32 {s(S_T1)}, {s(S_C)}, 6")
        a(f"s_add_u32 {s(S_T0)}, {s(S_T0)}, {s(S_T1)}")
        a(f"s_add_u32 {s(S_T0)}, {s(S_T0)}, {ST}")
        a(f"v_lshl_add_u32 v2, {v(G)}, 4, {s(S_T0)}")
        a(f"v_xor_b32 v3, 64, v2")
        a(f"s_mul_i32 {s(S_T0)}, {s(S_C)}, 448")
        a(f"s_add_u32 {s(S_T0)}, {s(S_T0)}, {ST_CS}")
        a(f"v_lshl_add_u32 v4, {v(L15)}, 2, {s(S_T0)}")
        a(f"v_lshl_add_u32 v5, {v(G)}, 4, {s(S_T0)}")
        a(f"v_xor_b32 v6, 64, {v(TOK)}")
        a(f"s_lshl_b32 {s(S_T0)}, {s(S_C)}, 6")
        a(f"s_add_u32 {s(S_T0)}, {s(S_T0)}, {B1L}")
        a(f"v_lshl_add_u32 v7, {v(G)}, 3, {s(S_T0)}")
        AB = 88; CS = 104; A2 = 114; CH = 80; BR = 72
        rd = [f"ds_read_b128 {v(AB,4)}, v2", f"ds_read_b128 {v(AB+4,4)}, v2 offset:512",
              f"ds_read_b128 {v(AB+8,4)}, v3", f"ds_read_b128 {v(AB+12,4)}, v3 offset:512"]
        rd += [f"ds_read_b32 {v(CS+2*t)}, v4 offset:{64*t}" for t in range(5)]
        rd += [f"ds_read_b32 {v(A2)}, {v(TOK)} offset:1024", f"ds_read_b32 {v(A2+2)}, {v(TOK)} offset:1536",
               f"ds_read_b32 {v(A2+4)}, v6 offset:1024", f"ds_read_b32 {v(A2+6)}, v6 offset:1536"]
        for j in range(2):
            rd += [f"ds_read_b128 {v(CH+4*j,4)}, v5 offset:{64*(5+j)}", f"ds_read_b64 {v(BR+2*j,2)}, v7 offset:{32*j}"]
        a(f"v_mov_b32 v8, {ST_N}")
        rd += [f"ds_read_b32 v79, v8"]
        SA = [105, 107, 109]; SZ = [111, 113, 115]
        ad = [f"v_mul_u32_u24 v9, 336, {v(G)}", f"v_add_u32 v9, {s(S_OA)}, v9", f"v_lshl_add_u32 v10, {v(L15)}, 4, v9",
              f"v_add_u32 {v(SA[0])}, {-128 & 0xffffffff}, v10", f"v_add_u32 {v(SA[1])}, {(4*336 - 128 - 320) & 0xffffffff}, v10",
              f"v_add_u32 {v(SA[2])}, {4*336 - 128}, v10", f"v_cmp_eq_u32 vcc, 0, {v(G)}",
              f"v_cndmask_b32 {v(SA[1])}, {v(SA[1])}, {v(SA[2])}, vcc", f"v_add_u32 {v(SA[2])}, {8*336 - 128 - 320}, v10",
              f"v_cmp_eq_u32 vcc, 0, {v(L15)}"]
        for td in range(3):
            ad += [f"v_add_u32 v10, {4*td*336 + 320}, v9", f"v_cndmask_b32 {v(SZ[td])}, {v(SA[td])}, v10, vcc"]
        mf = self.p1_mfmas(0, self.YA, self.YB)
        if self.cfg.kvo == 2: mf = mf[10:] + mf[:10]
        interleave(a, mf, rd + ad, 1.0, 2)
        self.pp_e0()
        TMP = 124
        def gelu():
            a(f"v_lshlrev_b32 v2, 4, v1")
            self.gelu_consts()
            for j in range(2):
                self.gelu_tile(5 + j, A2, CH + 4*j, BR + 2*j, lambda i: TMP + 4*i + 2*j, 148)
            self.h_store(0, TMP)
        if self.cfg.kvo == 2:
            a("s_setprio 3")
            a("s_waitcnt lgkmcnt(0)")
            gelu()
            a(f"s_setprio {self.cfg.pe}")
        EPS = 76
        a(f"v_mov_b32 {v(EPS)}, {lit(1e-6)}")
        a(f"v_mov_b32 {v(EPS+2)}, {lit(-1e-6)}")
        a(f"s_mov_b32 {s(S_K0)}, {lit(LOG2E)}")
        a("s_waitcnt lgkmcnt(0)")
        self.stamp(3)
        FR = 124; X = 148
        fa = lambda i, p: AB + 8*i + 2*p
        fb = lambda i, p: AB + 8*i + 4 + 2*p
        ch = [(i, p) for i in range(2) for p in range(2)]
        for t in (0, 1):
            self.phi_tile(t, fa, fb, lambda i, p: ('b', CS + 2*t), X, EPS, lambda i: FR + 4*t + 2*i)
        self.phi_tile(2, fa, fb, lambda i, p: ('b', CS + 4), X, EPS, lambda i: FR + 8 + 2*i)
        for i, p in ch: a(pk('add', X+4*i+2*p, self.acc(2,i)+2*p, ('b', EPS+2)))
        for i, p in ch: a(f"v_cvt_pk_bf16_f32 {v(FR+12+2*i+p)}, {v(X+4*i+2*p)}, {v(X+4*i+2*p+1)}")
        for t in (3, 4):
            for i, p in ch: a(pk('mul', X+4*i+2*p, fb(i,p), ('b', CS+2*t)))
            for i, p in ch: a(pk('fma', X+4*i+2*p, fa(i,p), self.acc(t,i)+2*p, X+4*i+2*p))
            for i, p in ch: a(f"v_cvt_pk_bf16_f32 {v(FR+4*(t+1)+2*i+p)}, {v(X+4*i+2*p)}, {v(X+4*i+2*p+1)}")
        a(f"v_cmp_gt_u32 vcc, 8, {v(L15)}")
        for r in range(4): a(f"v_cndmask_b32 {v(FR+12+r)}, {v(FR+12+r)}, {v(self.ONES)}, vcc")
        self.stamp(4)
        pairs = [(0, 0), (0, 1), (1, 0), (1, 1), (1, 2), (2, 0), (2, 1), (2, 2)]
        KVD = 12
        for j, (td, te) in enumerate(pairs):
            a(f"v_mfma_f32_16x16x32_bf16 {v(KVD+4*j,4)}, {v(FR+4*td,4)}, {v(FR+12+4*te,4)}, 0")
        def valid(td, te, l):
            col = l & 15; g = l >> 4; dqg = 4 * td + g
            if dqg > 9: return False
            hh = dqg // 5
            if te == 0:
                if col == 0: return True
                if col < 8: return False
            eg = col - 8 + 16 * te
            return eg // 20 == hh
        tot = 0
        for j, (td, te) in enumerate(pairs):
            m = sum(1 << l for l in range(64) if valid(td, te, l)); tot += bin(m).count('1')
            exec_mask(a, m)
            a(f"ds_write_b128 {v(SZ[td] if te == 0 else SA[td])}, {v(KVD+4*j,4)} offset:{256*te}")
        assert tot == 210
        a("s_mov_b64 exec, -1")
        a(f"v_lshlrev_b32 v3, 4, v0")
        a(f"v_add_u32 v4, {SCR}, v3")
        a(f"v_mov_b32 v5, {hex(OOB)}")
        a(f"v_cmp_gt_u32 vcc, 420, v0")
        a(f"v_cndmask_b32 v3, v5, v3, vcc")
        if self.cfg.kvo == 1: gelu()
        a("s_setprio 3")
        a("s_waitcnt lgkmcnt(0)")
        self.stamp(5)
        a("s_barrier")
        for r in range(4): a(f"ds_read_b128 {v(12+4*r,4)}, v4 offset:{6720*r}")
        for e in range(4): a(f"s_mov_b32 {s(S_T0+e)}, {hex(0x07060500 + e)}")
        a("s_waitcnt lgkmcnt(0)")
        for p in range(2): a(pk('add', 12+2*p, 12+2*p, 16+2*p))
        for p in range(2): a(pk('add', 20+2*p, 20+2*p, 24+2*p))
        for p in range(2): a(pk('add', 12+2*p, 12+2*p, 20+2*p))
        for e in range(4): a(f"v_perm_b32 {v(12+e)}, {v(12+e)}, v79, {s(S_T0+e)}")
        a(f"buffer_store_dwordx4 v[12:15], v3, {s(R_WS,4)}, {s(S_CNT)} offen sc1")
        a(f"s_setprio {self.cfg.pe}")
        self.stamp(7)
        if self.cfg.kvo == 0: gelu()
        a(f"v_lshlrev_b32 v2, 4, v1")
        self.signal()
        self.stamp(9)
        self.nb_c_kv = self.nb_loop + a.nbar - nb + 1
        a.nbar = nb
        a("s_branch Lp2")

    def epi_q(self):
        a = self.a
        nb = a.nbar
        L15, G, TOK = self.L15, self.G, self.TOK
        self.stamp(2)
        a(f"s_setprio {min(3, self.cfg.pe + 1)}")
        a(f"s_mul_i32 {s(S_T0)}, {s(S_C)}, 448")
        a(f"s_add_u32 {s(S_T0)}, {s(S_T0)}, {ST_CS}")
        a(f"v_lshl_add_u32 v5, {v(G)}, 4, {s(S_T0)}")
        a(f"v_xor_b32 v6, 64, {v(TOK)}")
        a(f"s_lshl_b32 {s(S_T0)}, {s(S_C)}, 7")
        a(f"s_add_u32 {s(S_T0)}, {s(S_T0)}, {B1L}")
        a(f"v_lshl_add_u32 v7, {v(G)}, 3, {s(S_T0)}")
        A2 = 68; A1 = 112; BR = 76; CS = 84
        rd = [f"ds_read_b32 {v(A2)}, {v(TOK)} offset:1024", f"ds_read_b32 {v(A2+2)}, {v(TOK)} offset:1536",
              f"ds_read_b32 {v(A2+4)}, v6 offset:1024", f"ds_read_b32 {v(A2+6)}, v6 offset:1536"]
        for j in range(4):
            rd += [f"ds_read_b128 {v(CS+4*(3+j),4)}, v5 offset:{64*(3+j)}", f"ds_read_b64 {v(BR+2*j,2)}, v7 offset:{32*j}"]
        rd += [f"ds_read_b32 {v(A1)}, {v(TOK)}", f"ds_read_b32 {v(A1+2)}, {v(TOK)} offset:512",
               f"ds_read_b32 {v(A1+4)}, v6", f"ds_read_b32 {v(A1+6)}, v6 offset:512"]
        rd += [f"ds_read_b128 {v(CS+4*t,4)}, v5 offset:{64*t}" for t in range(3)]
        mf = self.p1_mfmas(1, self.YA, self.YB)
        mf = mf[6:] + mf[:6]
        interleave(a, mf, rd, 0.8, 2)
        self.pp_e0()
        a(f"v_lshlrev_b32 v2, 4, v1")
        self.gelu_consts()
        a("s_waitcnt lgkmcnt(0)")
        self.stamp(3)
        TMP = 124
        for j in range(4):
            self.gelu_tile(3 + j, A2, CS + 4*(3+j), BR + 2*j, lambda i: TMP + (j >> 1)*8 + 4*i + 2*(j & 1), 140)
            if j & 1: self.h_store(j >> 1, TMP)
        a(f"s_setprio {self.cfg.pe}")
        self.stamp(5)
        a("s_waitcnt vmcnt(0)")
        self.signal()
        self.stamp(8)
        PQ = 152; EPS = 76; X = 112
        a(f"v_mov_b32 {v(EPS)}, {lit(1e-6)}")
        a(f"s_mov_b32 {s(S_K0)}, {lit(LOG2E)}")
        X = 96
        for t in range(3):
            self.phi_tile(t, lambda i, p: ('b', A1+4*i), lambda i, p: ('b', A1+4*i+2), lambda i, p: CS+4*t+2*p, X, EPS,
                          (lambda i: PQ + 4*i + 2*t) if t < 2 else (lambda i: PQ + 8 + 2*i))
        self.stamp(6)
        self.stamp(7)
        a(f"s_mul_i32 {s(S_T1)}, {s(S_C)}, {KVT_C}")
        a(f"s_add_u32 {s(S_T1)}, {s(S_T1)}, {KVT}")
        a(f"v_lshl_add_u32 v140, v1, 4, {s(S_T1)}")
        a(f"v_lshl_add_u32 v141, v1, 3, {s(S_T1)}")
        a(f"s_lshl_b32 {s(S_T1)}, {s(S_R)}, 5")
        a(f"s_lshl_b32 {s(S_T2)}, {s(S_C)}, 4")
        a(f"s_add_u32 {s(S_T1)}, {s(S_T1)}, {s(S_T2)}")
        a(f"v_add_u32 v142, {s(S_T1)}, {v(L15)}")
        a(f"v_xor_b32 v143, 16, v142")
        a(f"s_mul_i32 {s(S_T1)}, {s(S_C)}, 80")
        a(f"s_add_u32 {s(S_T1)}, {s(S_T1)}, {OEX}")
        for i in range(2):
            a(f"v_mul_u32_u24 {v(142+i)}, {OP}, {v(142+i)}")
            a(f"v_add_u32 {v(142+i)}, {s(S_T1)}, {v(142+i)}")
            a(f"v_lshl_add_u32 {v(144+i)}, {v(G)}, 1, {v(142+i)}")
            a(f"v_lshl_add_u32 {v(142+i)}, {v(G)}, 3, {v(142+i)}")
        self.stamp(9)
        self.nb_c_q = self.nb_loop + a.nbar - nb + 1
        a.nbar = nb

    def o_segments(self):
        F = 124; PQ = 152
        U = [[32, 36, 40], [44, 48, 148]]
        s0 = [f"ds_read_b64 {v(F+12,2)}, v141 offset:3072", f"ds_read_b64 {v(F+14,2)}, v141 offset:3584"]
        s0 += [f"ds_read_b128 {v(F+4*k,4)}, v140 offset:{1024*k}" for k in (1, 2, 0)]
        s1 = [f"v_mfma_f32_16x16x16_bf16 {v(U[i][k],4)}, {v(F+12+2*(k-1),2)}, {v(PQ+8+2*i,2)}, 0" for k in (1, 2) for i in range(2)]
        s1 += [f"v_mfma_f32_16x16x32_bf16 {v(U[i][0],4)}, {v(F,4)}, {v(PQ+4*i,4)}, 0" for i in range(2)]
        s1 += [f"v_mfma_f32_16x16x32_bf16 {v(U[i][k],4)}, {v(F+4*k,4)}, {v(PQ+4*i,4)}, {v(U[i][k],4)}" for k in (1, 2) for i in range(2)]
        s2 = []
        for i in range(2): s2 += [f"v_add_f32 {v(U[i][1]+e)}, {lit(1e-6)}, {v(U[i][1]+e)}" for e in (1, 2)]
        for i in range(2): s2 += [f"v_rcp_f32 {v(U[i][1]+e)}, {v(U[i][1]+e)}" for e in (1, 2)]
        tl = []
        for i in range(2):
            u0, u1, u2 = U[i]
            t = [f"v_mul_f32 {v(u0+r)}, {v(u0+r)}, {v(u1+1)}" for r in range(4)]
            t += [f"v_mul_f32 {v(u1)}, {v(u1)}, {v(u1+1)}", f"v_cvt_pk_bf16_f32 {v(u0)}, {v(u0)}, {v(u0+1)}",
                  f"v_cvt_pk_bf16_f32 {v(u0+1)}, {v(u0+2)}, {v(u0+3)}", f"ds_write_b64 {v(142+i)}, {v(u0,2)}"]
            t += [f"v_mul_f32 {v(u2+r)}, {v(u2+r)}, {v(u1+2)}" for r in range(4)]
            t += [f"v_mul_f32 {v(u1+3)}, {v(u1+3)}, {v(u1+2)}", f"v_cvt_pk_bf16_f32 {v(u2)}, {v(u2)}, {v(u2+1)}",
                  f"v_cvt_pk_bf16_f32 {v(u2+1)}, {v(u2+2)}, {v(u2+3)}", f"v_cvt_pk_bf16_f32 {v(u1)}, {v(u1)}, {v(u1+3)}",
                  f"ds_write_b64 {v(142+i)}, {v(u2,2)} offset:40", f"ds_write_b16 {v(144+i)}, {v(u1)} offset:32",
                  f"ds_write_b16_d16_hi {v(144+i)}, {v(u1)} offset:72"]
            tl.append(t)
        return [s0, s1, s2 + tl[0], tl[1]]
    def o_block(self):
        a = self.a; sg = self.o_segments()
        for x in sg[0]: a(x)
        a("s_waitcnt lgkmcnt(0)")
        for g in sg[1:]:
            for x in g: a(x)
        self.stamp(13)

    AM = 12; AS = 32; P2X = 52; P2Y = 72; AR = 92; OR = 124
    def p2_pre_setup(self):
        a = self.a
        a(f"s_lshl_b32 {s(S_T2)}, {s(S_TT)}, 2")
        a(f"s_add_u32 {s(S_T2)}, {s(S_T2)}, {s(S_R)}")
        a(f"s_mul_i32 {s(S_OH)}, {s(S_T2)}, {48*1024}")
        a(f"s_mul_i32 {s(S_T3)}, {s(S_C)}, {24*1024}")
        a(f"s_add_u32 {s(S_OH)}, {s(S_OH)}, {s(S_T3)}")
        a(f"s_add_u32 {s(S_OH)}, {s(S_OH)}, {WS_H2}")
        a(f"s_mul_i32 {s(S_NONCE)}, {s(S_T2)}, {8*2560}")
        a(f"s_mul_i32 {s(S_T3)}, {s(S_C)}, {4*2560}")
        a(f"s_add_u32 {s(S_NONCE)}, {s(S_NONCE)}, {s(S_T3)}")
        a(f"s_add_u32 {s(S_NONCE)}, {s(S_NONCE)}, {WS_O2}")
        self.rot2(S_KC)
    def hload(self, j):
        a = self.a
        if j % 2 == 0:
            self.chunk_id(S_OA, S_T3, j // 2)
            a(f"s_lshl_b32 {s(S_OA)}, {s(S_OA)}, 11")
            a(f"s_add_u32 {s(S_OA)}, {s(S_OA)}, {s(S_OH)}")
        a(f"buffer_load_dwordx4 {v(self.AR+4*(j%8),4)}, v2, {s(R_WS,4)}, {s(S_OA)} offen offset:{1024*(j%2)} {self.cfg.hsc}")
    def p2_pre_loads(self, j0, j1):
        for j in range(j0, j1): self.hload(j)

    def phase2(self):
        a = self.a
        a.label('Lp2')
        a(f"s_cmp_lg_u32 {s(S_C)}, 0")
        a(f"s_cbranch_scc1 Lp2_1")
        for kap in range(2): self.phase2k(kap)

    def phase2k(self, kap):
        a = self.a; cfg = self.cfg
        nb = a.nbar
        a.label(f"Lp2_{kap}")
        AM, AS, XB, YB, AR, OR = self.AM, self.AS, self.P2X, self.P2Y, self.AR, self.OR
        VB = 4
        M = "v_mfma_f32_16x16x32_bf16"
        a(f"v_add_u32 v4, {kap*10240}, v2")
        a(f"v_add_u32 v5, {SLOT + kap*10240}, v2")
        a(f"v_add_u32 v6, {2*SLOT + kap*10240}, v2")
        q = [('A', j) for j in range(cfg.ramp)]
        hn = [cfg.ramp]
        def hload_upto(n, cap):
            while hn[0] < min(n, 24) and cap > 0:
                self.hload(hn[0]); q.append(('A', hn[0])); hn[0] += 1; cap -= 1
        ol = []
        for P in range(2):
            for i5 in range(4):
                ol.append((P, i5 >> 1, f"buffer_load_dwordx4 {v(OR+4*(5*P+i5),4)}, v2, {s(R_WS,4)}, {s(S_T0)} offen offset:{1024*(i5&1)} sc1", 24 + 5*P + i5))
            for hh in range(2):
                ol.append((P, hh, f"buffer_load_dwordx2 {v(OR+4*(5*P+4)+2*hh,2)}, v3, {s(R_WS,4)}, {s(S_T0)} offen offset:2048 sc1", 24 + 5*P + 4))
        def oloads(n):
            for _ in range(n):
                if not ol: return
                P, hh, txt, st = ol.pop(0)
                a(f"s_add_u32 {s(S_T0)}, {s(S_NONCE)}, {(2*P+hh)*2560}")
                a(txt); q.append(('A', st))
        def wait(tag):
            assert not any(o[3] == tag[1] for o in ol)
            idx = [k for k, t in enumerate(q) if t == tag]
            if not idx: return
            n = sum(1 for t in q[idx[-1]+1:] if t[0] != 'S')
            a(f"s_waitcnt vmcnt({n})")
            del q[:idx[-1] + 1]
        def areg(j): return AR + 4 * (j % 8) if j < 24 else OR + 4 * (j - 24)
        def reads(j, B):
            i = j // 2; base = RING[i % 6]; vb = VB + base // SLOT; off = base % SLOT + (j & 1) * 5120
            return [f"ds_read_b128 {v(B+4*c,4)}, {v(vb)} offset:{off + 1024*c}" for c in range(5)]
        def mfmas(j, B):
            ac = AM if j < 24 else AS
            first = j == 24 or (j == 0 and kap == 1)
            return [f"{M} {v(ac+4*c,4)}, {v(B+4*c,4)}, {v(areg(j),4)}, {'0' if first else v(ac+4*c,4)}" for c in range(5)]
        lq = []
        def lds(txt, tag): a(txt); lq.append(tag)
        def lwait(tag):
            idx = [k for k, t in enumerate(lq) if t == tag]
            if not idx: return
            a(f"s_waitcnt lgkmcnt({len(lq) - 1 - idx[-1]})")
            del lq[:idx[-1] + 1]
        own = [0, 1, 2] if kap == 0 else [3, 4]
        give = [c for c in range(5) if c not in own]
        a(f"v_lshlrev_b32 v3, 3, v1")
        a(f"v_mov_b32 v167, 0xffff0000")
        def unpack(d, b):
            return [f"v_lshlrev_b32 {v(d)}, 16, {v(b)}", f"v_and_b32 {v(d+1)}, v167, {v(b)}",
                    f"v_lshlrev_b32 {v(d+2)}, 16, {v(b+1)}", f"v_and_b32 {v(d+3)}, v167, {v(b+1)}"]
        if kap == 0:
            a(f"v_lshlrev_b32 v9, 3, {v(self.G)}")
            a(f"v_add_u32 v9, {B2L}, v9")
            for c in range(5): lds(f"ds_read_b64 {v(AS+2*c,2)}, v9 offset:{32*c}", 'b2')
        if kap == 0:
            lwait('b2')
            for c in range(5):
                for x in unpack(AM + 4*c, AS + 2*c): a(x)
        a(f"s_mul_i32 {s(S_T0)}, {s(S_R)}, 5120")
        a(f"s_add_u32 {s(S_T0)}, {s(S_T0)}, {EXB}")
        a(f"v_add_u32 v7, {s(S_T0)}, v2")
        a(f"s_lshl_b32 {s(S_T0)}, {s(S_R)}, 4")
        a(f"v_add_u32 v8, {s(S_T0)}, {v(self.L15)}")
        a(f"v_mul_u32_u24 v8, 160, v8")
        a(f"v_lshl_add_u32 v8, {v(self.G)}, 3, v8")
        a(f"v_add_u32 v8, {XT}, v8")
        a(f"s_mul_i32 {s(S_T0)}, {s(S_R)}, {16*OP}")
        a(f"s_add_u32 {s(S_T0)}, {s(S_T0)}, {OT}")
        a(f"v_mul_u32_u24 v9, {OP}, {v(self.L15)}")
        a(f"v_lshl_add_u32 v9, {v(self.G)}, 3, v9")
        a(f"v_add_u32 v9, {s(S_T0)}, v9")
        G = AR
        self.final_prep()
        a(f"v_mov_b32 v10, {lit(-LOG2E)}")
        X = G + 20
        sil = []
        for k, c in enumerate(own):
            g = G + 4 * k; x = X + 4 * k; R = range(4)
            sil += [f"v_add_f32 {v(g+r)}, {v(g+r)}, {v(AM+4*c+r)}" for r in R]
            sil += [f"v_mul_f32 {v(x+r)}, v10, {v(g+r)}" for r in R]
            sil += [f"v_exp_f32 {v(x+r)}, {v(x+r)}" for r in R]
            sil += [f"v_add_f32 {v(x+r)}, 1.0, {v(x+r)}" for r in R]
            sil += [f"v_rcp_f32 {v(x+r)}, {v(x+r)}" for r in R]
            sil += [f"v_mul_f32 {v(g+r)}, {v(g+r)}, {v(x+r)}" for r in R]
        XR = G + 12
        for k, c in enumerate(own): sil += unpack(AM + 4 * k, XR + 2 * k)
        if cfg.late:
            prs = [(k, c, p) for k, c in enumerate(own) for p in range(2)]
            sil = [pk('add', G+4*k+2*p, G+4*k+2*p, AM+4*c+2*p) for k, c, p in prs]
            sil += [pk('mul', X+4*k+2*p, G+4*k+2*p, ('b', 10)) for k, c, p in prs]
            sil += [f"v_exp_f32 {v(X+k)}, {v(X+k)}" for k in range(4*len(own))]
            sil += [pk('add', X+4*k+2*p, X+4*k+2*p, '1.0') for k, c, p in prs]
            sil += [f"v_rcp_f32 {v(X+k)}, {v(X+k)}" for k in range(4*len(own))]
            sil += [pk('mul', G+4*k+2*p, G+4*k+2*p, X+4*k+2*p) for k, c, p in prs]
            for k, c in enumerate(own): sil += unpack(AM + 4 * k, XR + 2 * k)
        nsl = 7; per = -(-len(sil) // nsl)
        def take():
            r = sil[:per]; del sil[:per]; return r
        def step(j, extra=(), tag=None):
            B = XB if j % 2 == 0 else YB
            mf = mfmas(j, B); rd = reads(j + 2, B) if j + 2 < 34 else []
            ex = take() if j >= 27 and not cfg.late else list(extra)
            order = give + own if j == 33 else range(5)
            n = 0
            for k, c in enumerate(order):
                a(mf[c])
                if rd: lds(rd[c], j + 2)
                while n < (k + 1) * len(ex) // 5:
                    if ex[n].startswith('ds_'): lds(ex[n], tag)
                    else: a(ex[n])
                    n += 1
            hload_upto(min(j + 9, 8 if j < 2 * cfg.kb - 1 else (16 if j < 2 * cfg.kh - 1 else 24)), 3)
        a(f"s_setprio {cfg.pp}")
        a("s_barrier"); a.nbar -= 1
        self.p2_pre_loads(0, cfg.ramp)
        for x in reads(0, XB): lds(x, 0)
        for x in reads(1, YB): lds(x, 1)
        self.stamp(20)
        def one(j, extra=(), tag=None, pre=None):
            i = j // 2
            if cfg.late:
                if j == 24:
                    for c in give: lds(f"ds_write_b128 v7, {v(AM+4*c,4)} offset:{1024*c}", 'mx')
                    lwait('mx')
                    a("s_barrier"); self.stamp(33)
                    for k, c in enumerate(own):
                        lds(f"ds_read_b128 {v(G+4*k,4)}, v7 offset:{1024*c}", 'g')
                        lds(f"ds_read_b64 {v(XR+2*k,2)}, v8 offset:{32*c}", 'g')
                    oloads(cfg.ofirst)
                    lwait('g')
                    nrest = len(ol); nsil = len(sil)
                    for n, x in enumerate(sil):
                        a(x)
                        if nrest and (n + 1) * nrest // nsil > n * nrest // nsil: oloads(1)
                    sil.clear()
                    self.stamp(34)
            elif j % 2 == 0:
                if i >= cfg.ko: oloads((cfg.opc + 1) // 2)
            else:
                if i >= cfg.ko: oloads(cfg.opc // 2)
            if j == 0:
                a("s_waitcnt vmcnt(0)"); q.clear()
            wait(('A', j))
            lwait(j)
            if j == 27 and not cfg.late: lwait('g')
            if j % 2 == 1 and i <= 11:
                a("s_barrier"); self.stamp(21 + i)
            if j == 26 and not cfg.late:
                lwait('mx')
                a("s_barrier"); self.stamp(33)
                for k, c in enumerate(own):
                    lds(f"ds_read_b128 {v(G+4*k,4)}, v7 offset:{1024*c}", 'g')
                    lds(f"ds_read_b64 {v(XR+2*k,2)}, v8 offset:{32*c}", 'g')
            if pre: lwait(pre)
            if tag == 'of':
                for x in extra: lds(x, tag)
                extra = ()
            step(j, extra, tag)
            if j == 24 and not cfg.late:
                for c in give: lds(f"ds_write_b128 v7, {v(AM+4*c,4)} offset:{1024*c}", 'mx')
        j = 0
        while j < 34:
            if j == 2 * cfg.ka - 1 and cfg.oil:
                import copy
                sg = self.o_segments()
                Lk = f"Lok_{kap}"; Lj = f"Loj_{kap}"
                a(f"s_cmp_eq_u32 {s(S_TY)}, 0")
                a(f"s_cbranch_scc1 {Lk}")
                st = (list(q), list(lq), list(hn), a.nbar)
                ns = 2 * cfg.onc
                if ns == 4:
                    for n in range(4): one(j + n, sg[n], 'of' if n == 0 else 'ox', 'of' if n == 1 else None)
                else:
                    one(j, sg[0], 'of')
                    lwait('of')
                    for x in sg[1]: a(x)
                    one(j + 1, sg[2] + sg[3], 'ox')
                lwait('ox')
                self.stamp(13)
                a.label(Lj)
                q[:], lq[:], hn[:], a.nbar = st[0], st[1], st[2], st[3]
                mark = len(a.lines)
                a.label(Lk)
                for n in range(ns): one(j + n)
                a(f"s_branch {Lj}")
                self.late_lines += a.lines[mark:]; del a.lines[mark:]
                j += ns
                continue
            one(j)
            if j == 2 * cfg.ka - 1:
                a(f"s_cmp_eq_u32 {s(S_TY)}, 0")
                a(f"s_cbranch_scc1 Lobr_{kap}")
                self.o_block()
                a.label(f"Lobr_{kap}")
            j += 1
        assert not ol and not sil
        for c in give: a(f"ds_write_b128 v7, {v(AS+4*c,4)} offset:{1024*c}")
        X = AM
        a("s_waitcnt lgkmcnt(0)")
        a("s_barrier")
        for k, c in enumerate(own): a(f"ds_read_b128 {v(XB+4*k,4)}, v7 offset:{1024*c}")
        a("s_waitcnt lgkmcnt(0)")
        prs = [(k, c, p) for k, c in enumerate(own) for p in range(2)]
        for k, c, p in prs: a(pk('add', XB+4*k+2*p, XB+4*k+2*p, AS+4*c+2*p))
        for k, c, p in prs: a(pk('fma', X+4*k+2*p, XB+4*k+2*p, G+4*k+2*p, X+4*k+2*p))
        for k, c, p in prs: a(f"v_cvt_pk_bf16_f32 {v(XB+2*k+p)}, {v(X+4*k+2*p)}, {v(X+4*k+2*p+1)}")
        for k, c in enumerate(own): a(f"ds_write_b64 v9, {v(XB+2*k,2)} offset:{32*c}")
        a("s_waitcnt lgkmcnt(0)")
        a("s_barrier")
        self.nb_c_p2 = a.nbar - nb
        a.nbar = nb
        if kap == 0: self.goto_final()

    def build(self):
        a = self.a
        self.entry()
        self.loader()
        self.compute_setup()
        if self.cfg.pp1: self.pp_hooks()
        else:
            self.duty(0, self.XA, self.XB)
            self.duty(1, self.YA, self.YB)
            self.pack_blocks()
        self.p1_loop(0); self.epi_kv()
        self.p1_loop(1); self.epi_q()
        self.phase2()
        self.final_store()
        a.lines += self.late_lines
        a.label('Lcode_end')
        assert self.nb_ld_kv == self.nb_c_kv, (self.nb_ld_kv, self.nb_c_kv)
        assert self.nb_ld_q == self.nb_c_q, (self.nb_ld_q, self.nb_c_q)
        assert self.nb_ld_p2 == self.nb_c_p2, (self.nb_ld_p2, self.nb_c_p2)
        body = a.finish()
        head = open('recurrent_scan__linear_attn_block__mixer_channel_mlp__prompt.s.ref').read().split('; Override launch')[0]
        txt = head + f"; @launch grid=(256,1,1) block=({self.NTH},1,1) lds={LDS_TOTAL}\n"
        txt += f'.amdgcn_target "amdgcn-amd-amdhsa--gfx950"\n.text\n.globl {NAME}\n.p2align 8\n.type {NAME},@function\n{NAME}:\n'
        txt += body
        txt += f""".section .rodata,"a"
.p2align 6
.amdhsa_kernel {NAME}
  .amdhsa_next_free_vgpr {self.NVG}
  .amdhsa_next_free_sgpr 102
  .amdhsa_accum_offset {self.NVG}
  .amdhsa_group_segment_fixed_size 0
  .amdhsa_kernarg_size 88
  .amdhsa_user_sgpr_count 2
  .amdhsa_user_sgpr_kernarg_segment_ptr 1
  .amdhsa_system_sgpr_workgroup_id_x 1
.end_amdhsa_kernel
"""
        return txt

def wg_type(cfg_kw, wg):
    m = cfg_kw.get('map1', Cfg.map1)
    return (wg >> {'A': 5, 'B': 6, 'D': 7}[m]) & 1

def make(**kw):
    cfg = Cfg()
    for k, x in kw.items(): setattr(cfg, k, x)
    return Gen(cfg).build()

if __name__ == '__main__':
    out = sys.argv[1] if len(sys.argv) > 1 else 'recurrent_scan__linear_attn_block__mixer_channel_mlp__prompt.s'
    kw = {}
    for x in sys.argv[2:]:
        k, val = x.split('='); kw[k] = eval(val)
    open(out, 'w').write(make(**kw))
```

```python
import sys, math
from gen import *
import gen as G0

class Cfg4(Cfg):
    cpw = 3
    cpn = 10
    pre = True
    spr = True
    ols = 14
    n10 = 5
    pw = 0
    KA = (34, 35); KZ = (36, 37); KS = (8, 9); KD = 48
    cpf = 4
    ldj = False
    two = True
    pc = 0
    cpi = 3
    kh = 4
    tl2 = True
    pkp = 0
    of0 = 1
    rd0 = 2
    ramp = 2
    depth = 8
    opc = 8

class Gen4(Gen):
    CT = 256; NTH = 512; NVG = 256
    ACC = 12; XA = 124; XB = 140; YA = 168; YB = 184
    ONES = 212; RS = (216, 220); SQ = (224, 228); CSD = 232
    L15 = 248; G = 249; C1 = 250; TOK = 251
    PKV = (250, 252, 253, 254, 255)
    PQ = 208
    def acc(self, t, i): return self.ACC + (4 * t + i) * 4

    def loader_final(self):
        a = self.a
        L = self.lab('lf')
        a(f"s_cmp_ge_u32 {s(S_WID)}, 2")
        a(f"s_cbranch_scc1 {L}")
        a(f"ds_read_b64 v[12:13], v162")
        a(f"ds_read_b64 v[14:15], v162 offset:8")
        a("s_waitcnt lgkmcnt(0)")
        a(f"buffer_store_dwordx4 v[12:15], v163, {s(R_OUT,4)}, {s(S_IT)} offen {self.cfg.osc}")
        a.label(L)
        self.goto_final()
    def final_prep(self, d=164, second=True):
        a = self.a
        srd(a, R_OUT, P_OUT, 2048 * 1280)
        for dd, off in ((d, 0), (162, 256)) if second else ((d, 0),):
            a(f"v_add_u32 v12, {off}, v0" if second else f"v_mov_b32 {v(dd)}, v0")
            src = 'v12' if second else v(dd)
            a(f"v_mul_u32_u24 {v(dd+1)}, 6554, {src}")
            a(f"v_lshrrev_b32 {v(dd+1)}, 16, {v(dd+1)}")
            a(f"v_lshlrev_b32 {v(dd)}, 4, {src}")
            a(f"v_mad_u32_u24 {v(self.TF)}, {v(dd+1)}, 8, {v(dd)}")
            a(f"v_mul_u32_u24 {v(dd+1)}, {1280-160}, {v(dd+1)}")
            a(f"v_add_u32 {v(dd+1)}, {v(dd+1)}, {v(dd)}")
            a(f"v_add_u32 {v(dd)}, {OT}, {v(self.TF)}")
        a(f"s_mul_i32 {s(S_IT)}, {s(S_TT)}, {64*1280}")
        a(f"s_mul_i32 {s(S_T1)}, {s(S_N)}, 160")
        a(f"s_add_u32 {s(S_IT)}, {s(S_IT)}, {s(S_T1)}")
    TF = 13
    FD = 164
    def out_store(self):
        a = self.a
        a(f"ds_read_b64 v[4:5], {v(self.FD)}")
        a(f"ds_read_b64 v[6:7], {v(self.FD)} offset:8")
        a("s_waitcnt lgkmcnt(0)")
        a(f"buffer_store_dwordx4 v[4:7], {v(self.FD+1)}, {s(R_OUT,4)}, {s(S_IT)} offen {self.cfg.osc}")

    def pack_setup(self, ld=False):
        a = self.a
        w0 = 0 if ld else 4; PKV = range(134, 139) if ld else self.PKV; PKO = 4 if ld else S_PKO
        a(f"s_cmp_gt_u32 {s(S_U)}, 135")
        a(f"s_cselect_b32 {s(S_T0)}, 0, {s(S_U)}")
        a(f"s_lshr_b32 {s(S_T0)}, {s(S_T0)}, 1")
        a(f"s_cmp_lt_u32 {s(S_T0)}, 48")
        a(f"s_cselect_b32 {s(R_PK)}, {s(P_W2)}, {s(P_WO)}")
        a(f"s_cselect_b32 {s(R_PK+1)}, {s(P_W2+1)}, {s(P_WO+1)}")
        a(f"s_mov_b32 {s(R_PK+2)}, {hex(640*1280)}")
        a(f"s_cselect_b32 {s(R_PK+2)}, {hex(1536*1280)}, {s(R_PK+2)}")
        a(f"s_mov_b32 {s(R_PK+3)}, 0x20000")
        Lm = self.lab('pkm'); Ld = self.lab('pkd')
        a(f"s_cbranch_scc1 {Lm}")
        a(f"s_sub_u32 {s(S_T3)}, {s(S_T0)}, 48")
        a(f"s_mul_i32 {s(S_T1)}, {s(S_T3)}, 52")
        a(f"s_lshr_b32 {s(S_T1)}, {s(S_T1)}, 8")
        a(f"s_mul_i32 {s(S_T2)}, {s(S_T1)}, 5")
        a(f"s_sub_u32 {s(S_T3)}, {s(S_T3)}, {s(S_T2)}")
        a(f"s_mul_i32 {s(S_T1)}, {s(S_T1)}, 160")
        a(f"s_lshl_b32 {s(S_T2)}, {s(S_T3)}, 5")
        a(f"s_cmp_ge_u32 {s(S_T3)}, 2")
        a(f"s_cselect_b32 {s(S_T0)}, 16, 0")
        a(f"s_add_u32 {s(S_T2)}, {s(S_T2)}, {s(S_T0)}")
        a(f"s_cmp_eq_u32 {s(S_T3)}, 4")
        a(f"s_cselect_b32 {s(S_T2)}, 64, {s(S_T2)}")
        a(f"s_cselect_b32 {s(S_T0)}, {64*1280}, 0")
        a(f"s_add_u32 {s(S_T1)}, {s(S_T1)}, {s(S_T2)}")
        a(f"s_branch {Ld}")
        a.label(Lm)
        a(f"s_mul_i32 {s(S_T1)}, {s(S_T0)}, 43")
        a(f"s_lshr_b32 {s(S_T1)}, {s(S_T1)}, 8")
        a(f"s_mul_i32 {s(S_T1)}, {s(S_T1)}, 6")
        a(f"s_sub_u32 {s(S_T1)}, {s(S_T0)}, {s(S_T1)}")
        a(f"s_cmp_eq_u32 {s(S_T1)}, 3")
        a(f"s_cselect_b32 {s(S_T2)}, 1, 0")
        a(f"s_cmp_eq_u32 {s(S_T1)}, 4")
        a(f"s_cselect_b32 {s(S_T2)}, -1, {s(S_T2)}")
        a(f"s_add_u32 {s(S_T0)}, {s(S_T0)}, {s(S_T2)}")
        a(f"s_lshl_b32 {s(S_T1)}, {s(S_T0)}, 5")
        a(f"s_mov_b32 {s(S_T0)}, 0")
        a.label(Ld)
        a(f"s_and_b32 {s(R_PK+1)}, {s(R_PK+1)}, 0xffff")
        a(f"s_cmp_ge_u32 {s(S_WID)}, {w0 + 2}")
        a(f"s_cselect_b32 {s(S_T0)}, {s(S_T0)}, 0")
        a(f"s_lshl_b32 {s(S_T2)}, {s(S_WID)}, 3")
        a(f"s_add_u32 {s(S_T1)}, {s(S_T1)}, {s(S_T2)}")
        a(f"s_sub_u32 {s(S_T1)}, {s(S_T1)}, {8 * w0}")
        a(f"s_mul_i32 {s(S_T1)}, {s(S_T1)}, 1280")
        a(f"s_add_u32 {s(S_T1)}, {s(S_T1)}, {s(S_T0)}")
        a(f"s_and_b32 {s(S_T2)}, {s(S_U)}, 1")
        a(f"s_mul_i32 {s(S_T3)}, {s(S_T2)}, 640")
        a(f"s_add_u32 {s(PKO)}, {s(S_T1)}, {s(S_T3)}")
        a(f"v_mov_b32 v145, {hex(OOB)}")
        a(f"s_mul_i32 {s(S_T2)}, {s(S_RB)}, 160")
        a(f"s_cmp_eq_u32 {s(S_TY)}, {self.cfg.pkty}")
        a(f"s_cselect_b32 {s(S_T2)}, 0, {s(S_T2)}")
        a(f"s_movk_i32 {s(S_T3)}, 160")
        a(f"s_cselect_b32 {s(S_T3)}, 640, {s(S_T3)}")
        for i in range(5):
            a(f"v_add_u32 v141, {64*i}, v1")
            a(f"v_mul_u32_u24 v142, 1639, v141")
            a(f"v_lshrrev_b32 v142, 16, v142")
            a(f"v_mul_u32_u24 v142, 640, v142")
            a(f"v_lshlrev_b32 v141, 4, v141")
            a(f"v_sub_u32 v144, v141, v142")
            a(f"v_add_u32 v142, v142, v141")
            a(f"v_subrev_u32 v144, {s(S_T2)}, v144")
            a(f"v_cmp_gt_u32 vcc, {s(S_T3)}, v144")
            a(f"v_cndmask_b32 {v(PKV[i])}, v145, v142, vcc")

    def ldj_setup(self):
        a = self.a
        self.pack_setup(True)
        a(f"v_lshrrev_b32 v140, 2, v1")
        a(f"v_mul_u32_u24 v140, 640, v140")
        a(f"v_and_b32 v141, 3, v1")
        a(f"v_lshl_add_u32 v140, v141, 3, v140")
        a(f"s_mul_i32 {s(S_T0)}, {s(S_L)}, 160")
        a(f"s_add_u32 {s(S_T0)}, {s(S_T0)}, {SCR}")
        a(f"v_add_u32 v130, {s(S_T0)}, v140")
        a(f"s_and_b32 {s(S_T0)}, {s(S_U)}, 1")
        a(f"s_lshl_b32 {s(S_T0)}, {s(S_T0)}, 2")
        a(f"s_add_u32 {s(S_T0)}, {s(S_T0)}, {s(S_L)}")
        a(f"s_mul_i32 {s(S_T0)}, {s(S_T0)}, 68")
        a(f"s_lshr_b32 {s(S_T1)}, {s(S_U)}, 1")
        a(f"s_add_u32 {s(S_T0)}, {s(S_T0)}, {s(S_T1)}")
        a(f"s_mul_i32 {s(S_T0)}, {s(S_T0)}, 5120")
        a(f"s_add_u32 {s(S_IT)}, {s(S_T0)}, {WS_P2}")
        a(f"s_and_b32 {s(S_T1)}, {s(S_L)}, 1")
        a(f"s_lshl_b32 {s(S_T1)}, {s(S_T1)}, 6")
        a(f"v_add_u32 v140, {s(S_T1)}, v1")
        a(f"v_lshlrev_b32 v133, 3, v140")
        Lc = self.lab('jc'); Ld = self.lab('jd')
        a(f"s_cmp_ge_u32 {s(S_L)}, 2")
        a(f"s_cbranch_scc1 {Lc}")
        a(f"v_lshlrev_b32 v131, 2, v140")
        a(f"v_add_u32 v131, {DRS}, v131")
        a(f"v_lshlrev_b32 v132, 4, v140")
        a(f"v_lshl_add_u32 v132, v141, 2, v132")
        a(f"v_add_u32 v132, {DSQ}, v132")
        a(f"s_mul_i32 {s(S_T0)}, {s(S_RB)}, 10")
        a(f"s_add_u32 {s(S_T0)}, {s(S_T0)}, {WS_RP // 1024}")
        a(f"s_cmp_lt_u32 {s(S_COL)}, 10")
        a(f"s_branch {Ld}")
        a.label(Lc)
        a(f"v_add_u32 v131, {DCS}, v133")
        a(f"v_add_u32 v132, 4, v131")
        a(f"s_mul_i32 {s(S_T0)}, {s(S_COL)}, 10")
        a(f"s_add_u32 {s(S_T0)}, {s(S_T0)}, {WS_CP // 1024}")
        a(f"s_cmp_lt_u32 {s(S_RB)}, 10")
        a.label(Ld)
        a(f"s_cselect_b32 {s(S_T1)}, 0, {hex(OOB)}")
        a(f"v_add_u32 v133, {s(S_T1)}, v133")
        a(f"s_add_u32 {s(S_T0)}, {s(S_T0)}, {s(S_S0)}")
        a(f"s_lshl_b32 {s(S_DELTA)}, {s(S_T0)}, 10")
    def ldj_dma(self):
        a = self.a; L = self.lab('jp')
        a(f"s_cmp_gt_u32 {s(S_U)}, 135")
        a(f"s_cbranch_scc1 {L}")
        a(f"s_mul_i32 {s(S_T0)}, {s(S_L)}, 5120")
        for i in range(5):
            a(f"s_add_u32 m0, {s(S_T0)}, {SCR + 1024*i}")
            a(f"buffer_load_dwordx4 {v(134+i)}, {s(R_PK,4)}, s4 offen lds")
        a.label(L)
    def ldj_reads(self):
        a = self.a; L = self.lab('jr')
        a(f"ds_read_b32 v128, v131")
        a(f"ds_read_b32 v129, v132")
        a(f"s_cmp_gt_u32 {s(S_U)}, 135")
        a(f"s_cbranch_scc1 {L}")
        for c in range(5):
            a(f"ds_read_b64_tr_b16 {v(108+4*c,2)}, v130 offset:{32*c}")
            a(f"ds_read_b64_tr_b16 {v(110+4*c,2)}, v130 offset:{32*c + 16*640}")
        a.label(L)
    def ldj_stores(self):
        a = self.a; L = self.lab('js')
        a("s_waitcnt lgkmcnt(0)")
        a(f"buffer_store_dwordx2 v[128:129], v133, {s(R_WS,4)}, {s(S_DELTA)} offen sc1")
        a(f"s_cmp_gt_u32 {s(S_U)}, 135")
        a(f"s_cbranch_scc1 {L}")
        a(f"s_cmp_eq_u32 {s(S_TY)}, {self.cfg.pkty}")
        a(f"s_cselect_b32 {s(S_T0)}, {s(S_L)}, {s(S_RB)}")
        a(f"s_cmp_lg_u32 {s(S_T0)}, {s(S_L)}")
        a(f"s_cbranch_scc1 {L}")
        a(f"s_add_u32 {s(S_T1)}, {s(S_IT)}, 4096")
        for c in range(4):
            a(f"buffer_store_dwordx4 {v(108+4*c,4)}, v39, {s(R_WS,4)}, {s(S_IT)} offen offset:{1024*c} sc1")
        a(f"buffer_store_dwordx4 v[124:127], v39, {s(R_WS,4)}, {s(S_T1)} offen sc1")
        a.label(L)
    def duty_dump(self):
        a = self.a
        a(f"v_lshlrev_b32 v252, 2, {v(self.TOK)}")
        a(f"v_add_u32 v252, {(DSQ - 4*ST) & 0xffffffff}, v252")
        a(f"v_add_u32 v253, {(DRS - ST) & 0xffffffff}, {v(self.TOK)}")
        a(f"v_lshl_add_u32 v254, {v(self.L15)}, 2, {s(S_CPA)}")
        exec_mask(a, DIAGMASK)
        for i in range(2):
            a(f"ds_write_b128 v252, {v(self.SQ[i],4)} offset:{256*i}")
            a(f"ds_write_b32 v253, {v(self.RS[i])} offset:{64*i}")
        L = self.lab('dn')
        for k in range(4):
            if k == 3:
                a(f"s_cmp_lg_u32 {s(S_R)}, 0")
                a(f"s_cbranch_scc1 {L}")
            a(f"ds_write_b32 v254, {v(self.CSD+4*k)} offset:{64*k}")
        a.label(L)
        a("s_mov_b64 exec, -1")

    def code_prefetch(self, T):
        a = self.a; mark = len(a.lines)
        super().code_prefetch(T)
        a.lines[mark:] = [(k, t.replace('global_load_dword v166', 'global_load_dword v255')) for k, t in a.lines[mark:]]

    def h_addr(self, ks0, dummy=None):
        a = self.a
        a(f"s_lshl_b32 {s(S_T0)}, {s(S_RB)}, 3")
        a(f"s_lshl_b32 {s(S_T1)}, {s(S_R)}, 2")
        a(f"s_add_u32 {s(S_T0)}, {s(S_T0)}, {s(S_T1)}")
        a(f"s_lshl_b32 {s(S_T1)}, {s(S_C)}, 1")
        a(f"s_add_u32 {s(S_T0)}, {s(S_T0)}, {s(S_T1)}")
        a(f"s_xor_b32 {s(S_T1)}, {s(S_T0)}, 2")
        a(f"s_mul_i32 {s(S_T2)}, {s(S_HG)}, 6")
        a(f"s_add_u32 {s(S_T2)}, {s(S_T2)}, {s(S_C)}")
        a(f"s_add_u32 {s(S_T2)}, {s(S_T2)}, {ks0 + WS_H2 // 1024}")
        for k, d in ((S_T0, S_OW), (S_T1, S_OM)):
            a(f"s_mul_i32 {s(k)}, {s(k)}, 48")
            a(f"s_add_u32 {s(k)}, {s(k)}, {s(S_T2)}")
            a(f"s_lshl_b32 {s(d)}, {s(k)}, 10")
    def h_store(self, p, hp, reg):
        a = self.a; b = (S_OW, S_OM)[hp]
        a(f"s_add_u32 {s(S_T0)}, {s(b)}, {48*1024}")
        a(f"buffer_store_dwordx4 {v(reg,4)}, v2, {s(R_WS,4)}, {s(b)} offen offset:{2048*p} sc1")
        a(f"buffer_store_dwordx4 {v(reg+4,4)}, v2, {s(R_WS,4)}, {s(S_T0)} offen offset:{2048*p} sc1")
    def signal(self, which):
        a = self.a
        a(f"v_mov_b32 v4, {ST_C + 4*which}")
        a(f"v_mov_b32 v5, 1")
        a("s_mov_b64 exec, 1")
        a("ds_add_u32 v4, v5")
        a("s_mov_b64 exec, -1")

    def p2_pre_setup(self):
        a = self.a
        a(f"s_lshl_b32 {s(S_T2)}, {s(S_TT)}, 2")
        a(f"s_lshl_b32 {s(S_T3)}, {s(S_R)}, 1")
        a(f"s_add_u32 {s(S_T2)}, {s(S_T2)}, {s(S_T3)}")
        a(f"s_add_u32 {s(S_T2)}, {s(S_T2)}, {s(S_C)}")
        a(f"s_xor_b32 {s(S_T3)}, {s(S_T2)}, 1")
        for src, dh, do in ((S_T2, S_OH, S_NONCE), (S_T3, S_XCD, 3)):
            a(f"s_mul_i32 {s(dh)}, {s(src)}, {48*1024}")
            a(f"s_mul_i32 {s(S_T0)}, {s(S_C)}, {24*1024}")
            a(f"s_add_u32 {s(dh)}, {s(dh)}, {s(S_T0)}")
            a(f"s_add_u32 {s(dh)}, {s(dh)}, {WS_H2}")
            a(f"s_mul_i32 {s(do)}, {s(src)}, {8*2560}")
            a(f"s_mul_i32 {s(S_T0)}, {s(S_C)}, {4*2560}")
            a(f"s_add_u32 {s(do)}, {s(do)}, {s(S_T0)}")
            a(f"s_add_u32 {s(do)}, {s(do)}, {WS_O2}")
        self.rot2(S_KC)

    def compute_setup(self):
        a = self.a; cfg = self.cfg
        a.label('Lcompute')
        T = 124
        L15, G, TOK = self.L15, self.G, self.TOK
        a(f"s_sub_u32 {s(S_T0)}, {s(S_WID)}, 4")
        a(f"s_and_b32 {s(S_R)}, {s(S_T0)}, 1")
        a(f"s_lshr_b32 {s(S_C)}, {s(S_T0)}, 1")
        a(f"v_add_u32 v0, {-256 & 0xffffffff}, v0")
        a(f"v_and_b32 {v(L15)}, 15, v1")
        a(f"v_lshrrev_b32 {v(G)}, 4, v1")
        a(f"v_lshrrev_b32 {v(T+2)}, 1, {v(L15)}")
        a(f"v_xor_b32 {v(T+2)}, {v(T+2)}, {v(G)}")
        a(f"v_lshlrev_b32 {v(T+2)}, 4, {v(T+2)}")
        a(f"v_lshl_add_u32 {v(T+2)}, {v(L15)}, 7, {v(T+2)}")
        a(f"s_lshl_b32 {s(S_T0)}, {s(S_R)}, 13")
        a(f"s_lshl_b32 {s(S_T1)}, {s(S_C)}, 12")
        a(f"s_add_u32 {s(S_T0)}, {s(S_T0)}, {s(S_T1)}")
        a(f"v_add_u32 v2, {s(S_T0)}, {v(T+2)}")
        a(f"v_xor_b32 v3, 64, v2")
        a(f"v_xor_b32 v4, 4096, v2")
        a(f"v_xor_b32 v5, 64, v4")
        a(f"s_lshr_b32 {s(S_T0)}, {s(S_T0)}, 5")
        a(f"s_add_u32 {s(S_T0)}, {s(S_T0)}, {ST}")
        a(f"v_lshl_add_u32 {v(TOK)}, {v(L15)}, 2, {s(S_T0)}")
        a(f"v_bfe_u32 {v(T+3)}, v1, 2, 3")
        a(f"v_lshrrev_b32 {v(T+4)}, 5, v1")
        a(f"v_lshl_add_u32 {v(T+4)}, {v(T+4)}, 4, {v(T+3)}")
        a(f"v_and_b32 {v(T+5)}, 3, v1")
        a(f"v_lshlrev_b32 {v(T+6)}, 3, {v(T+5)}")
        a(f"v_mul_u32_u24 v6, 160, {v(T+4)}")
        a(f"s_mul_i32 {s(S_T0)}, {s(S_C)}, 80")
        a(f"s_add_u32 {s(S_T0)}, {s(S_T0)}, 16384")
        a(f"v_add3_u32 v6, v6, {v(T+6)}, {s(S_T0)}")
        for i in range(self.ACC, self.XA): a(f"v_mov_b32 {v(i)}, 0")
        for i in range(4): a(f"v_mov_b32 {v(self.ONES+i)}, 0x3f803f80")
        a(f"s_mov_b32 {s(S_IT)}, 0")
        self.calc_u()
        a("s_waitcnt lgkmcnt(0)")
        self.stamp(1)
        srd(a, R_WS, P_WS, WS_SIZE)
        if not cfg.ldj and not cfg.ldd: self.pack_setup()
        self.p2_pre_setup()
        a(f"s_mul_i32 {s(S_T0)}, {s(S_RB)}, 10")
        a(f"s_add_u32 {s(S_T0)}, {s(S_T0)}, {s(S_S0)}")
        a(f"s_lshl_b32 {s(S_T0)}, {s(S_T0)}, 10")
        a(f"s_add_u32 {s(S_RPA)}, {s(S_T0)}, {(WS_RP - 2*ST) & 0xffffffff}")
        a(f"s_mul_i32 {s(S_T0)}, {s(S_COL)}, 10")
        a(f"s_add_u32 {s(S_T0)}, {s(S_T0)}, {s(S_S0)}")
        a(f"s_lshl_b32 {s(S_T0)}, {s(S_T0)}, 10")
        a(f"s_mul_i32 {s(S_T1)}, {s(S_C)}, 448")
        a(f"s_add_u32 {s(S_T0)}, {s(S_T0)}, {s(S_T1)}")
        a(f"s_lshl_b32 {s(S_T1)}, {s(S_R)}, 8")
        a(f"s_add_u32 {s(S_T0)}, {s(S_T0)}, {s(S_T1)}")
        a(f"s_add_u32 {s(S_CPA)}, {s(S_T0)}, {WS_CP}")
        a(f"s_min_u32 {s(S_T0)}, {s(S_RB)}, {s(S_COL)}")
        a(f"s_cmp_lt_u32 {s(S_T0)}, 10")
        a(f"s_cselect_b32 {s(S_M1)}, 2, 0")
        a(f"s_cselect_b32 {s(S_M0)}, 6, 0")
        if 'd' in cfg.xs:
            a(f"s_mov_b32 {s(S_M1)}, 0"); a(f"s_mov_b32 {s(S_M0)}, 0")
        a(f"s_cmp_le_u32 {s(S_U)}, 135")
        a(f"s_cselect_b32 {s(S_T0)}, {8 | (2 if cfg.pkp == 0 and not cfg.ldd else 0)}, 0")
        a(f"s_cselect_b32 {s(S_T1)}, {16 | (0, 2, 4)[cfg.pkp]}, 0")
        a(f"s_or_b32 {s(S_M1)}, {s(S_M1)}, {s(S_T0)}")
        a(f"s_or_b32 {s(S_M0)}, {s(S_M0)}, {s(S_T1)}")
        if cfg.cpf == 2:
            a(f"s_cmp_eq_u32 {s(S_WID)}, {cfg.cpw}")
            a(f"s_cselect_b32 {s(S_T0)}, 8, 0")
            a(f"s_or_b32 {s(S_M1)}, {s(S_M1)}, {s(S_T0)}")
        if cfg.ldj:
            a(f"s_mul_i32 {s(S_T0)}, {s(S_C)}, 448")
            a(f"s_lshl_b32 {s(S_T1)}, {s(S_R)}, 8")
            a(f"s_add_u32 {s(S_T0)}, {s(S_T0)}, {s(S_T1)}")
            a(f"s_add_u32 {s(S_CPA)}, {s(S_T0)}, {DCS}")
            a(f"s_min_u32 {s(S_T0)}, {s(S_RB)}, {s(S_COL)}")
            a(f"s_cmp_lt_u32 {s(S_T0)}, 10")
            a(f"s_cselect_b32 {s(S_M1)}, 2, 0")
            a(f"s_cselect_b32 {s(S_M0)}, 6, 0")
        if cfg.pc: a(f"s_setprio {cfg.pc}")
        if cfg.cpf == 3: self.code_prefetch(140)
        a(f"s_cmp_lg_u32 {s(S_TY)}, 0")
        a(f"s_cbranch_scc1 Lc_q")
        self.h_addr(0)
        a(f"s_lshl_b32 {s(S_T0)}, {s(S_HG)}, 4")
        a(f"s_add_u32 {s(S_T0)}, {s(S_T0)}, {s(S_RB)}")
        a(f"s_mul_i32 {s(S_T0)}, {s(S_T0)}, {KP_STRIDE}")
        a(f"s_add_u32 {s(S_CNT)}, {s(S_T0)}, {WS_KP}")
        a(f"s_mul_i32 {s(S_T0)}, {s(S_R)}, 6720")
        a(f"s_mul_i32 {s(S_T1)}, {s(S_C)}, 3360")
        a(f"s_add_u32 {s(S_T0)}, {s(S_T0)}, {s(S_T1)}")
        a(f"s_add_u32 {s(S_OA)}, {s(S_T0)}, {SCR}")
        a(f"v_cmp_gt_u32 vcc, 2, {v(T+5)}")
        a(f"v_mov_b32 {v(T+7)}, 10224")
        a(f"v_cndmask_b32 {v(T+7)}, {v(T+7)}, 64, vcc")
        a(f"v_add_u32 v7, v6, {v(T+7)}")
        a(f"v_lshrrev_b32 {v(T+7)}, 1, {v(T+3)}")
        a(f"v_lshl_add_u32 {v(T+8)}, {v(T+4)}, 7, {v(T+6)}")
        a(f"v_add_u32 {v(T+8)}, 36864, {v(T+8)}")
        a(f"s_lshl_b32 {s(S_T0)}, {s(S_C)}, 1")
        a(f"v_xor_b32 {v(T+7)}, {s(S_T0)}, {v(T+7)}")
        a(f"v_lshl_add_u32 v8, {v(T+7)}, 5, {v(T+8)}")
        a(f"v_xor_b32 {v(T+7)}, 1, {v(T+7)}")
        a(f"v_lshl_add_u32 v9, {v(T+7)}, 5, {v(T+8)}")
        a(f"s_branch Lp1_0")
        a.label('Lc_q')
        self.h_addr(2)
        a(f"v_lshl_add_u32 {v(T+8)}, {v(T+4)}, 8, {v(T+6)}")
        a(f"v_add_u32 {v(T+8)}, 26624, {v(T+8)}")
        a(f"s_lshl_b32 {s(S_T0)}, {s(S_C)}, 2")
        a(f"v_xor_b32 {v(T+7)}, {s(S_T0)}, {v(T+3)}")
        for i in range(4):
            a(f"v_xor_b32 {v(T+9)}, {i}, {v(T+7)}")
            a(f"v_lshl_add_u32 {v(7+i)}, {v(T+9)}, 5, {v(T+8)}")
        a(f"s_branch Lp1_1")

    def p1_reads(self, ty, st, A, B):
        out = [f"ds_read_b128 {v(A+4*i,4)}, {v(self.VA + st + 2*(i >> 1))} offset:{2048*(i & 1)}" for i in range(4)]
        for t, (ad, ex, pitch, o) in enumerate(self.tiles(ty)):
            for u in range(2):
                out.append(f"ds_read_b64_tr_b16 {v(B+4*t+2*u,2)}, {v(ad)} offset:{(32*st+8*u)*pitch+ex}")
        return out
    def p1_mfmas(self, ty, A, B):
        M = "v_mfma_f32_16x16x32_bf16"; out = []
        for t, (ad, ex, pitch, o) in enumerate(self.tiles(ty)):
            for i in range(4):
                d = v(self.acc(t, i), 4); x = v(A + 4*i, 4); w = v(B + 4*t, 4)
                out.append(f"{M} {d}, {x}, {w}, {d}" if o == 'N' else f"{M} {d}, {w}, {x}, {d}")
        return out
    def duty(self, half, A, B):
        a = self.a
        M = "v_mfma_f32_16x16x32_bf16"; on = v(self.ONES, 4)
        def c(r): return v(r, 4) if half else '0'
        a.label(f"Lduty{half}")
        for i in range(2):
            x = v(A + 4*i, 4)
            a(f"{M} {v(self.RS[i],4)}, {on}, {x}, {c(self.RS[i])}")
            a(f"{M} {v(self.SQ[i],4)}, {x}, {x}, {c(self.SQ[i])}")
        L1 = self.lab('dr'); Ld = self.lab('dd')
        a(f"s_cmp_lg_u32 {s(S_R)}, 0")
        a(f"s_cbranch_scc1 {L1}")
        for k in range(4): a(f"{M} {v(self.CSD+4*k,4)}, {on}, {v(B+4*k,4)}, {c(self.CSD+4*k)}")
        a(f"s_branch {Ld}")
        a.label(L1)
        for k in range(3): a(f"{M} {v(self.CSD+4*k,4)}, {on}, {v(B+4*(4+k),4)}, {c(self.CSD+4*k)}")
        a.label(Ld)
        a(f"s_cmp_lg_u32 {s(S_TY)}, 0")
        a(f"s_cbranch_scc1 Lret{half}_1")
        a(f"s_branch Lret{half}_0")
    def duty_store(self):
        a = self.a
        r0 = self.RS[0]
        a(f"v_and_b32 v252, 3, v1")
        a(f"v_lshl_add_u32 {v(r0+2)}, {v(self.TOK)}, 1, {s(S_RPA)}")
        a(f"v_lshl_add_u32 {v(r0+3)}, {v(self.L15)}, 2, {s(S_CPA)}")
        for e in range(1, 4):
            a(f"v_cmp_eq_u32 vcc, {e}, v252")
            for i in range(2):
                a(f"v_cndmask_b32 {v(self.RS[i]+1)}, {v(self.SQ[i] if e == 1 else self.RS[i]+1)}, {v(self.SQ[i]+e)}, vcc")
        L = self.lab('dn')
        a(f"s_cmp_ge_u32 {s(S_COL)}, 10")
        a(f"s_cbranch_scc1 {L}")
        exec_mask(a, DIAGMASK)
        for i in range(2): a(f"buffer_store_dwordx2 {v(self.RS[i],2)}, {v(r0+2)}, {s(R_WS,4)}, 0 offen offset:{128*i} sc1")
        a.label(L)
        L = self.lab('dn')
        a(f"s_cmp_ge_u32 {s(S_RB)}, 10")
        a(f"s_cbranch_scc1 {L}")
        exec_mask(a, 0xffff)
        for k in range(4):
            if k == 3:
                a(f"s_cmp_lg_u32 {s(S_R)}, 0")
                a(f"s_cbranch_scc1 {L}")
            a(f"buffer_store_dword {v(self.CSD+4*k)}, {v(r0+3)}, {s(R_WS,4)}, 0 offen offset:{64*k} sc1")
        a.label(L)
        a("s_mov_b64 exec, -1")
    def pack_blocks(self):
        a = self.a; cfg = self.cfg
        PD = 216
        def ret(h):
            a(f"s_cmp_lg_u32 {s(S_TY)}, 0")
            a(f"s_cbranch_scc1 Lret{h}_1")
            a(f"s_branch Lret{h}_0")
        if cfg.ldj:
            a.label('Lx0')
            a(f"s_cmp_eq_u32 {s(S_IT)}, 1")
            a(f"s_cbranch_scc1 Lduty0")
            self.duty_dump()
            ret(0)
            return
        a.label('Lx1')
        L3 = self.lab('p3'); L = self.lab('pa')
        a(f"s_cmp_lg_u32 {s(S_IT)}, 1")
        a(f"s_cbranch_scc1 {L3}")
        def pdma():
            Lp = self.lab('pd')
            a(f"s_cmp_gt_u32 {s(S_U)}, 135")
            a(f"s_cbranch_scc1 {Lp}")
            a(f"s_mul_i32 {s(S_T0)}, {s(S_WID)}, 5120")
            for i in range(5):
                a(f"s_add_u32 m0, {s(S_T0)}, {SCR - 4*5120 + 1024*i}")
                a(f"buffer_load_dwordx4 {v(self.PKV[i])}, {s(R_PK,4)}, {s(S_PKO)} offen lds")
            a.label(Lp)
        if cfg.pkp == 0 and not cfg.ldd: pdma()
        a("s_branch Lduty1")
        a.label(L3)
        if cfg.cpf == 2: self.code_prefetch(252)
        a(f"s_cmp_gt_u32 {s(S_U)}, 135")
        a(f"s_cbranch_scc1 {L}")
        a(f"v_lshrrev_b32 v252, 2, v1")
        a(f"v_mul_u32_u24 v252, 640, v252")
        a(f"v_and_b32 v253, 3, v1")
        a(f"v_lshl_add_u32 v252, v253, 3, v252")
        a(f"s_mul_i32 {s(S_T0)}, {s(S_WID)}, 160")
        a(f"s_add_u32 {s(S_T0)}, {s(S_T0)}, {SCR - 640}")
        a(f"v_add_u32 v252, {s(S_T0)}, v252")
        for c in range(5):
            a(f"ds_read_b64_tr_b16 {v(PD+4*c,2)}, v252 offset:{32*c}")
            a(f"ds_read_b64_tr_b16 {v(PD+2+4*c,2)}, v252 offset:{32*c + 16*640}")
        a.label(L)
        ret(1)
        a.label('Lx0')
        a("s_waitcnt lgkmcnt(0)")
        L = self.lab('pb'); Ls = self.lab('ps')
        L1 = self.lab('p1')
        a(f"s_cmp_lg_u32 {s(S_IT)}, 1")
        a(f"s_cbranch_scc1 {L1}")
        if cfg.pkp == 1: pdma()
        a("s_branch Lduty0")
        a.label(L1)
        a(f"s_cmp_lg_u32 {s(S_IT)}, 2")
        a(f"s_cbranch_scc1 {Ls}")
        if cfg.pkp == 2: pdma()
        self.duty_store()
        a(f"s_branch {L}")
        a.label(Ls)
        a(f"s_sub_u32 {s(S_T2)}, {s(S_WID)}, 4")
        a(f"s_cmp_eq_u32 {s(S_TY)}, {cfg.pkty}")
        a(f"s_cselect_b32 {s(S_T0)}, {s(S_T2)}, {s(S_RB)}")
        a(f"s_cmp_lg_u32 {s(S_T0)}, {s(S_T2)}")
        a(f"s_cbranch_scc1 {L}")
        a(f"s_and_b32 {s(S_T0)}, {s(S_U)}, 1")
        a(f"s_lshl_b32 {s(S_T0)}, {s(S_T0)}, 2")
        a(f"s_add_u32 {s(S_T0)}, {s(S_T0)}, {s(S_T2)}")
        a(f"s_mul_i32 {s(S_T0)}, {s(S_T0)}, 68")
        a(f"s_lshr_b32 {s(S_T1)}, {s(S_U)}, 1")
        a(f"s_add_u32 {s(S_T0)}, {s(S_T0)}, {s(S_T1)}")
        a(f"s_mul_i32 {s(S_T0)}, {s(S_T0)}, 5120")
        a(f"s_add_u32 {s(S_T0)}, {s(S_T0)}, {WS_P2}")
        a(f"s_add_u32 {s(S_T1)}, {s(S_T0)}, 4096")
        a(f"v_lshlrev_b32 v252, 4, v1")
        for c in range(4):
            a(f"buffer_store_dwordx4 {v(PD+4*c,4)}, v252, {s(R_WS,4)}, {s(S_T0)} offen offset:{1024*c} sc1")
        a(f"buffer_store_dwordx4 {v(PD+16,4)}, v252, {s(R_WS,4)}, {s(S_T1)} offen sc1")
        a.label(L)
        ret(0)

    def p1_loop(self, ty):
        a = self.a; cfg = self.cfg
        nad = 8 if ty == 0 else 9
        nb = a.nbar
        rx = self.p1_reads(ty, 0, self.XA, self.XB); ry = self.p1_reads(ty, 1, self.YA, self.YB)
        my = self.p1_mfmas(ty, self.YA, self.YB); mx = self.p1_mfmas(ty, self.XA, self.XB)
        sal = [f"s_add_u32 {s(S_IT)}, {s(S_IT)}, 1",
               f"s_bitcmp1_b32 {hex((1<<3)|(1<<6)|(1<<9))}, {s(S_IT)}",
               f"s_cselect_b32 {s(S_DELTA)}, {s(S_DEST)}, {s(S_DEST+1)}"]
        a.label(f"Lp1_{ty}")
        a(f"s_mov_b32 {s(S_DEST)}, {hex(-2*SLOT & 0xffffffff)}")
        a(f"s_mov_b32 {s(S_DEST+1)}, {SLOT}")
        a("s_barrier")
        for x in rx: a(x)
        a("s_waitcnt lgkmcnt(0)")
        a(f"s_branch Lret1_{ty}")
        def copy(chk, last):
            a(".p2align 3")
            a.label(f"Lp1h_{ty}_{chk}")
            a("s_barrier")
            k = 0
            for m, x in enumerate(my):
                a(x)
                if m >= cfg.rd0 and k < len(rx): a(rx[k]); k += 1
                if m == len(my) - 3 and chk:
                    a(f"s_bitcmp1_b32 {s(S_M1)}, {s(S_IT)}")
            assert k == len(rx)
            if chk:
                a(f"s_cbranch_scc1 {'Lduty1' if cfg.ldj else 'Lx1'}")
                a.label(f"Lret1_{ty}")
            upd = [f"v_add_u32 {v(self.VA+i)}, {s(S_DELTA)}, {v(self.VA+i)}" for i in range(nad)]
            k = 0; u = 0; ns = 0
            for m, x in enumerate(mx):
                if m == 0: a(f"s_waitcnt lgkmcnt({cfg.xw})")
                if m == 4 * (7 - cfg.xw // 2) and cfg.xw: a(f"s_waitcnt lgkmcnt({min(15, k)})")
                if m == len(mx) - 1: a(f"s_cmp_lt_u32 {s(S_IT)}, {last}")
                a(x)
                if ns < 3: a(sal[ns]); ns += 1
                if k < len(ry): a(ry[k]); k += 1
                elif u < len(upd):
                    for _ in range(2):
                        if u < len(upd): a(upd[u]); u += 1
                if m == len(mx) - 3 and chk:
                    if not cfg.ldj:
                        L = self.lab('vw')
                        a(f"s_bitcmp0_b32 {hex((1<<3)|(1<<5))}, {s(S_IT)}")
                        a(f"s_cbranch_scc1 {L}")
                        a("s_waitcnt vmcnt(0)")
                        a.label(L)
                    a(f"s_bitcmp1_b32 {s(S_M0)}, {s(S_IT)}")
                    a(f"s_cbranch_scc1 Lx0")
                    a.label(f"Lret0_{ty}")
            assert k == len(ry) and u == len(upd), (k, u)
            a("s_waitcnt lgkmcnt(0)")
            a(f"s_cbranch_scc1 Lp1h_{ty}_{chk}")
        if cfg.two: copy(1, 5); copy(0, 10)
        else: copy(1, 10)
        a("s_barrier")
        self.nb_loop = 11
        a.nbar = nb

    def gelu_tile(self, t, hp, AB, CS, B, d0, X, unpack_from=None):
        a = self.a
        if unpack_from is not None:
            BR = unpack_from
            a(f"v_lshlrev_b32 {v(B)}, 16, {v(BR)}")
            a(f"v_and_b32 {v(B+1)}, {s(S_K1)}, {v(BR)}")
            a(f"v_lshlrev_b32 {v(B+2)}, 16, {v(BR+1)}")
            a(f"v_and_b32 {v(B+3)}, {s(S_K1)}, {v(BR+1)}")
        ch = [(i, p) for i in range(2) for p in range(2)]
        ac = lambda i, p: self.acc(t, 2*hp + i) + 2 * p
        x = lambda i, p: X + 4 * i + 2 * p
        ab = lambda i: AB + 4 * (2*hp + i)
        if 'g' in self.cfg.xs: return
        for i, p in ch: a(pk('fma', x(i,p), ('b', ab(i)+2), CS+2*p, B+2*p))
        for i, p in ch: a(pk('fma', ac(i,p), ('b', ab(i)), ac(i,p), x(i,p)))
        for i, p in ch: a(pk('mul', x(i,p), ac(i,p), ac(i,p)))
        for i, p in ch: a(pk('fma', x(i,p), x(i,p), ('s', S_K0), ('b', self.C1)))
        for i, p in ch: a(pk('mul', x(i,p), x(i,p), ac(i,p)))
        for k in range(8): a(f"v_exp_f32 {v(X+k)}, {v(X+k)}")
        for i, p in ch: a(pk('add', x(i,p), x(i,p), '1.0'))
        for k in range(8): a(f"v_rcp_f32 {v(X+k)}, {v(X+k)}")
        for i, p in ch: a(pk('mul', x(i,p), x(i,p), ac(i,p)))
        for i, p in ch: a(f"v_cvt_pk_bf16_f32 {v(d0(i)+p)}, {v(x(i,p))}, {v(x(i,p)+1)}")
    def gelu_consts(self):
        a = self.a
        c1 = -2 * math.sqrt(2 / math.pi) * LOG2E; c2 = c1 * 0.044715
        a(f"s_mov_b32 {s(S_K0)}, {lit(c2)}")
        a(f"s_mov_b32 {s(S_K1)}, 0xffff0000")
        a(f"v_mov_b32 {v(self.C1)}, {lit(c1)}")
    def phi_tile(self, t, hp, fa, fb, fcs, X, EPS, d0):
        a = self.a
        ch = [(i, p) for i in range(2) for p in range(2)]
        ac = lambda i, p: self.acc(t, 2*hp + i) + 2 * p
        x = lambda i, p: X + 4 * i + 2 * p
        if 'f' in self.cfg.xs: return
        for i, p in ch: a(pk('fma', x(i,p), fb(i,p), fcs(i,p), ('b', EPS)))
        for i, p in ch: a(pk('fma', ac(i,p), fa(i,p), ac(i,p), x(i,p)))
        for i, p in ch: a(pk('mul', x(i,p), ac(i,p), ('s', S_K0)))
        for k in range(8): a(f"v_exp_f32 {v(X+k)}, {v(X+k)} clamp")
        for i in range(2):
            for k in range(4): a(f"v_max_f32 {v(X+8+4*i+k)}, {v(EPS)}, {v(self.acc(t,2*hp+i)+k)}")
        for i, p in ch: a(pk('add', x(i,p), x(i,p), x(i,p)+8))
        for i, p in ch: a(f"v_cvt_pk_bf16_f32 {v(d0(i)+p)}, {v(x(i,p))}, {v(x(i,p)+1)}")
    def tok_reads(self, dst, off_a, off_b):
        rd = []
        for i in range(4):
            ad = v(self.TOK) if i < 2 else 'v6'
            rd += [f"ds_read_b32 {v(dst+4*i)}, {ad} offset:{off_a + 64*(i & 1)}", f"ds_read_b32 {v(dst+4*i+2)}, {ad} offset:{off_b + 64*(i & 1)}"]
        return rd

    def epi_kv(self):
        a = self.a; nb = a.nbar
        L15, G, TOK = self.L15, self.G, self.TOK
        self.stamp(2)
        a(f"s_setprio {self.cfg.pe}")
        a(f"s_lshl_b32 {s(S_T0)}, {s(S_R)}, 8")
        a(f"s_lshl_b32 {s(S_T1)}, {s(S_C)}, 7")
        a(f"s_add_u32 {s(S_T0)}, {s(S_T0)}, {s(S_T1)}")
        a(f"s_add_u32 {s(S_T0)}, {s(S_T0)}, {ST}")
        a(f"v_lshl_add_u32 v2, {v(G)}, 4, {s(S_T0)}")
        a(f"v_xor_b32 v3, 128, v2")
        a(f"s_mul_i32 {s(S_T0)}, {s(S_C)}, 448")
        a(f"s_add_u32 {s(S_T0)}, {s(S_T0)}, {ST_CS}")
        a(f"v_lshl_add_u32 v4, {v(L15)}, 2, {s(S_T0)}")
        a(f"v_lshl_add_u32 v5, {v(G)}, 4, {s(S_T0)}")
        a(f"v_xor_b32 v6, 128, {v(TOK)}")
        a(f"s_lshl_b32 {s(S_T0)}, {s(S_C)}, 6")
        a(f"s_add_u32 {s(S_T0)}, {s(S_T0)}, {B1L}")
        a(f"v_lshl_add_u32 v7, {v(G)}, 3, {s(S_T0)}")
        a(f"v_mov_b32 v8, {ST_N}")
        AB = 124; CH = 124; BR = 132; CS = 216; A2 = 230; EPS = 160; NON = 229
        rd = []
        for i in range(4):
            ad = 'v2' if i < 2 else 'v3'
            rd += [f"ds_read_b128 {v(AB+8*i,4)}, {ad} offset:{64*(i & 1)}", f"ds_read_b128 {v(AB+8*i+4,4)}, {ad} offset:{512 + 64*(i & 1)}"]
            if i == 1: rd += [f"ds_read_b32 {v(CS+2*t)}, v4 offset:{64*t}" for t in range(5)]
        rd += [f"ds_read_b32 {v(NON)}, v8"]
        rd2 = self.tok_reads(A2, 1024, 1536)
        for j in range(2): rd2 += [f"ds_read_b128 {v(CH+4*j,4)}, v5 offset:{64*(5+j)}", f"ds_read_b64 {v(BR+2*j,2)}, v7 offset:{32*j}"]
        SA = [217, 219, 221]; SZ = [223, 225, 227]
        ad = [f"v_mul_u32_u24 v9, 336, {v(G)}", f"v_add_u32 v9, {s(S_OA)}, v9", f"v_lshl_add_u32 v10, {v(L15)}, 4, v9",
              f"v_add_u32 {v(SA[0])}, {-128 & 0xffffffff}, v10", f"v_add_u32 {v(SA[1])}, {(4*336 - 128 - 320) & 0xffffffff}, v10",
              f"v_add_u32 {v(SA[2])}, {4*336 - 128}, v10", f"v_cmp_eq_u32 vcc, 0, {v(G)}",
              f"v_cndmask_b32 {v(SA[1])}, {v(SA[1])}, {v(SA[2])}, vcc", f"v_add_u32 {v(SA[2])}, {8*336 - 128 - 320}, v10",
              f"v_cmp_eq_u32 vcc, 0, {v(L15)}"]
        for td in range(3): ad += [f"v_add_u32 v10, {4*td*336 + 320}, v9", f"v_cndmask_b32 {v(SZ[td])}, {v(SA[td])}, v10, vcc"]
        ad += [f"v_mov_b32 {v(EPS)}, {lit(1e-6)}", f"v_mov_b32 {v(EPS+2)}, {lit(-1e-6)}", f"s_mov_b32 {s(S_K0)}, {lit(LOG2E)}"]
        mf = self.p1_mfmas(0, self.YA, self.YB)
        interleave(a, mf[:20], rd + ad, 1.0, 1)
        a("s_waitcnt lgkmcnt(0)")
        self.stamp(3)
        FQ = [184, 188, 192, 196, 200, 156]; X = 230
        ch = [(i, p) for i in range(2) for p in range(2)]
        pairs = [(0, 0), (0, 1), (1, 0), (1, 1), (1, 2), (2, 0), (2, 1), (2, 2)]
        kvd = lambda j: self.acc(j >> 1, j & 1)
        a(f"v_cmp_gt_u32 {s(S_MASK,2)}, 8, {v(L15)}")
        for hp in range(2):
            fa = lambda i, p: AB + 8*(2*hp+i) + 2*p
            fb = lambda i, p: AB + 8*(2*hp+i) + 4 + 2*p
            for t in range(3):
                self.phi_tile(t, hp, fa, fb, lambda i, p: ('b', CS + 2*t), X, EPS, lambda i: FQ[t] + 2*i)
            for i, p in ch: a(pk('add', X+4*i+2*p, self.acc(2,2*hp+i)+2*p, ('b', EPS+2)))
            for i, p in ch: a(f"v_cvt_pk_bf16_f32 {v(FQ[3]+2*i+p)}, {v(X+4*i+2*p)}, {v(X+4*i+2*p+1)}")
            for t in (3, 4):
                for i, p in ch: a(pk('mul', X+4*i+2*p, fb(i,p), ('b', CS+2*t)))
                for i, p in ch: a(pk('fma', X+4*i+2*p, fa(i,p), self.acc(t,2*hp+i)+2*p, X+4*i+2*p))
                for i, p in ch: a(f"v_cvt_pk_bf16_f32 {v(FQ[t+1]+2*i+p)}, {v(X+4*i+2*p)}, {v(X+4*i+2*p+1)}")
            for r in range(4): a(f"v_cndmask_b32 {v(FQ[3]+r)}, {v(FQ[3]+r)}, {v(self.ONES)}, {s(S_MASK,2)}")
            for j, (td, te) in enumerate(pairs):
                a(f"v_mfma_f32_16x16x32_bf16 {v(kvd(j),4)}, {v(FQ[td],4)}, {v(FQ[3+te],4)}, {v(kvd(j),4) if hp else 0}")
        self.stamp(4)
        def valid(td, te, l):
            col = l & 15; g = l >> 4; dqg = 4 * td + g
            if dqg > 9: return False
            hh = dqg // 5
            if te == 0:
                if col == 0: return True
                if col < 8: return False
            return (col - 8 + 16 * te) // 20 == hh
        a(f"v_lshlrev_b32 v3, 4, v0")
        a(f"v_add_u32 v4, {SCR}, v3")
        a(f"v_mov_b32 v8, {hex(OOB)}")
        a(f"v_add_u32 v9, 4096, v3")
        a(f"v_cmp_gt_u32 vcc, 164, v0")
        a(f"v_cndmask_b32 v9, v8, v9, vcc")
        a(f"v_lshlrev_b32 v2, 4, v1")
        for j, (td, te) in enumerate(pairs):
            exec_mask(a, sum(1 << l for l in range(64) if valid(td, te, l)))
            a(f"ds_write_b128 {v(SZ[td] if te == 0 else SA[td])}, {v(kvd(j),4)} offset:{256*te}")
        a("s_mov_b64 exec, -1")
        for e in range(4): a(f"s_mov_b32 {s(S_T0+e)}, {hex(0x07060500 + e)}")
        a("s_waitcnt lgkmcnt(0)")
        self.stamp(5)
        a("s_barrier")
        for n in range(2):
            for r in range(2): a(f"ds_read_b128 {v(12+8*n+4*r,4)}, v4 offset:{6720*r + 4096*n}")
        for n in range(2):
            a(f"s_waitcnt lgkmcnt({2 - 2*n})")
            for p in range(2): a(pk('add', 12+8*n+2*p, 12+8*n+2*p, 16+8*n+2*p))
            for e in range(4): a(f"v_perm_b32 {v(12+8*n+e)}, {v(12+8*n+e)}, {v(NON)}, {s(S_T0+e)}")
            a(f"buffer_store_dwordx4 {v(12+8*n,4)}, {'v3' if n == 0 else 'v9'}, {s(R_WS,4)}, {s(S_CNT)} offen sc1")
        self.stamp(7)
        self.gelu_consts()
        interleave(a, mf[20:], rd2, 1.0, 4)
        a("s_waitcnt lgkmcnt(0)")
        TMP = 136
        for hp in range(2):
            for j in range(2):
                self.gelu_tile(5 + j, hp, A2, CH + 4*j, 184 + 4*j, lambda i: TMP + 8*hp + 4*i + 2*j, 192, BR + 2*j if hp == 0 else None)
            self.h_store(0, hp, TMP + 8*hp)
            self.signal(hp)
        self.stamp(9)
        self.nb_c_kv = self.nb_loop + a.nbar - nb + 1
        a.nbar = nb
        a("s_branch Lp2")

    def epi_q(self):
        a = self.a; nb = a.nbar
        L15, G, TOK = self.L15, self.G, self.TOK
        self.stamp(2)
        a(f"s_setprio {self.cfg.pe}")
        a(f"s_mul_i32 {s(S_T0)}, {s(S_C)}, 448")
        a(f"s_add_u32 {s(S_T0)}, {s(S_T0)}, {ST_CS}")
        a(f"v_lshl_add_u32 v5, {v(G)}, 4, {s(S_T0)}")
        a(f"v_xor_b32 v6, 128, {v(TOK)}")
        a(f"s_lshl_b32 {s(S_T0)}, {s(S_C)}, 7")
        a(f"s_add_u32 {s(S_T0)}, {s(S_T0)}, {B1L}")
        a(f"v_lshl_add_u32 v7, {v(G)}, 3, {s(S_T0)}")
        CS = 124; BR = 152; A2 = 216; A1 = 232; EPS = 160
        hrd = lambda j: [f"ds_read_b128 {v(CS+4*(3+j),4)}, v5 offset:{64*(3+j)}", f"ds_read_b64 {v(BR+2*j,2)}, v7 offset:{32*j}"]
        rd = self.tok_reads(A2, 1024, 1536) + hrd(0) + hrd(1)
        rd2 = hrd(2) + hrd(3) + self.tok_reads(A1, 0, 512) + [f"ds_read_b128 {v(CS+4*t,4)}, v5 offset:{64*t}" for t in range(3)]
        mf = self.p1_mfmas(1, self.YA, self.YB)
        a(f"v_lshlrev_b32 v2, 4, v1")
        self.gelu_consts()
        interleave(a, mf[12:20], rd, 0.8, 4)
        a("s_waitcnt lgkmcnt(0)")
        self.stamp(3)
        for p in range(2):
            t0 = 3 + 2 * p
            for hp in range(2):
                for j in range(2):
                    self.gelu_tile(t0 + j, hp, A2, CS + 4*(t0 + j), 196 + 4*j, lambda i: self.acc(t0, 2*hp + i) + 2*j, 160, BR + 2*(2*p+j) if hp == 0 else None)
                self.h_store(p, hp, self.acc(t0, 2*hp))
            if p == 0:
                interleave(a, mf[20:] + mf[:12], rd2, 0.8, 2)
                a("s_waitcnt vmcnt(0) lgkmcnt(0)")
                self.signal(0)
                self.stamp(8)
        self.stamp(5)
        PQ = self.PQ
        a(f"v_mov_b32 {v(EPS)}, {lit(1e-6)}")
        a(f"s_mov_b32 {s(S_K0)}, {lit(LOG2E)}")
        n = 0
        for hp in range(2):
            for t in range(3):
                if not self.cfg.xphi: self.phi_tile(t, hp, lambda i, p: ('b', A1+4*(2*hp+i)), lambda i, p: ('b', A1+4*(2*hp+i)+2), lambda i, p: CS+4*t+2*p, 136, EPS,
                              (lambda i: PQ + 4*(2*hp+i) + 2*t) if t < 2 else (lambda i: PQ + 16 + 2*(2*hp+i)))
                n += 1
                if n == self.cfg.nbs:
                    a("s_waitcnt vmcnt(0)")
                    self.signal(1)
                    self.stamp(10)
        self.stamp(6)
        a(f"s_mul_i32 {s(S_T1)}, {s(S_C)}, {KVT_C}")
        a(f"s_add_u32 {s(S_T1)}, {s(S_T1)}, {KVT}")
        a(f"v_lshl_add_u32 v252, v1, 4, {s(S_T1)}")
        a(f"v_lshl_add_u32 v253, v1, 3, {s(S_T1)}")
        a(f"s_lshl_b32 {s(S_T1)}, {s(S_R)}, 6")
        a(f"s_lshl_b32 {s(S_T2)}, {s(S_C)}, 5")
        a(f"s_add_u32 {s(S_T1)}, {s(S_T1)}, {s(S_T2)}")
        a(f"v_add_u32 v204, {s(S_T1)}, {v(L15)}")
        a(f"v_xor_b32 v205, 32, v204")
        a(f"s_mul_i32 {s(S_T1)}, {s(S_C)}, 80")
        a(f"s_add_u32 {s(S_T1)}, {s(S_T1)}, {OEX}")
        for i in range(2):
            a(f"v_mul_u32_u24 {v(204+i)}, {OP}, {v(204+i)}")
            a(f"v_add_u32 {v(204+i)}, {s(S_T1)}, {v(204+i)}")
            a(f"v_lshl_add_u32 {v(206+i)}, {v(G)}, 1, {v(204+i)}")
            a(f"v_lshl_add_u32 {v(204+i)}, {v(G)}, 3, {v(204+i)}")
        self.stamp(9)
        self.nb_c_q = self.nb_loop + a.nbar - nb + 1
        a.nbar = nb

    def o_segments(self):
        F = 232; PQ = self.PQ
        U = [[52, 56, 60], [64, 68, 72], [76, 80, 84], [88, 196, 200]]
        R4 = range(4)
        s0 = [f"ds_read_b64 {v(F+12,2)}, v253 offset:3072", f"ds_read_b64 {v(F+14,2)}, v253 offset:3584"]
        s0 += [f"ds_read_b128 {v(F+4*k,4)}, v252 offset:{1024*k}" for k in (1, 2, 0)]
        s1 = [f"v_mfma_f32_16x16x16_bf16 {v(U[i][k],4)}, {v(F+12+2*(k-1),2)}, {v(PQ+16+2*i,2)}, 0" for k in (1, 2) for i in R4]
        s1 += [f"v_mfma_f32_16x16x32_bf16 {v(U[i][k],4)}, {v(F+4*k,4)}, {v(PQ+4*i,4)}, {v(U[i][k],4)}" for k in (1, 2) for i in R4]
        s1 += [f"v_mfma_f32_16x16x32_bf16 {v(U[i][0],4)}, {v(F,4)}, {v(PQ+4*i,4)}, 0" for i in R4]
        s2 = []
        for i in R4: s2 += [f"v_add_f32 {v(U[i][1]+e)}, {lit(1e-6)}, {v(U[i][1]+e)}" for e in (1, 2)]
        for i in R4: s2 += [f"v_rcp_f32 {v(U[i][1]+e)}, {v(U[i][1]+e)}" for e in (1, 2)]
        for i in R4:
            u0, u1, u2 = U[i]; o = 16 * OP * (i & 1); a8 = v(204 + (i >> 1)); a2 = v(206 + (i >> 1))
            s2 += [f"v_mul_f32 {v(u2+r)}, {v(u2+r)}, {v(u1+2)}" for r in R4]
            s2 += [f"v_mul_f32 {v(u1+3)}, {v(u1+3)}, {v(u1+2)}", f"v_mul_f32 {v(u1)}, {v(u1)}, {v(u1+1)}",
                   f"v_cvt_pk_bf16_f32 {v(u2)}, {v(u2)}, {v(u2+1)}", f"v_cvt_pk_bf16_f32 {v(u2+1)}, {v(u2+2)}, {v(u2+3)}",
                   f"v_cvt_pk_bf16_f32 {v(u1)}, {v(u1)}, {v(u1+3)}", f"ds_write_b64 {a8}, {v(u2,2)} offset:{o + 40}"]
            s2 += [f"v_mul_f32 {v(u0+r)}, {v(u0+r)}, {v(u1+1)}" for r in R4]
            s2 += [f"ds_write_b16 {a2}, {v(u1)} offset:{o + 32}", f"ds_write_b16_d16_hi {a2}, {v(u1)} offset:{o + 72}",
                   f"v_cvt_pk_bf16_f32 {v(u0)}, {v(u0)}, {v(u0+1)}", f"v_cvt_pk_bf16_f32 {v(u0+1)}, {v(u0+2)}, {v(u0+3)}",
                   f"ds_write_b64 {a8}, {v(u0,2)} offset:{o}"]
        return s0, s1, s2

    def phase2(self):
        a = self.a; cfg = self.cfg
        nb = a.nbar
        a.label('Lp2')
        AM, AS, XB, YB, AR, OX = 12, 52, 92, 112, 132, 196
        D = cfg.depth
        M = "v_mfma_f32_16x16x32_bf16"
        a(f"v_lshlrev_b32 v2, 4, v1")
        a(f"v_lshlrev_b32 v3, 3, v1")
        a(f"s_mul_i32 {s(S_T0)}, {s(S_C)}, 10240")
        for k in range(3):
            a(f"v_add_u32 {v(4+k)}, {s(S_T0)}, v2")
            if k < 2: a(f"s_add_u32 {s(S_T0)}, {s(S_T0)}, {SLOT}")
        if cfg.pre:
            for p_ in range(12):
                self.chunk_id(28 + p_, S_T3, p_)
                a(f"s_lshl_b32 {s(28+p_)}, {s(28+p_)}, 11")
                a(f"s_add_u32 {s(28+p_)}, {s(28+p_)}, {s(S_OH)}")
            for p_ in range(4):
                a(f"s_add_u32 {s(40+p_)}, {s(S_NONCE)}, {p_*2560}")
                a(f"s_add_u32 {s(12+p_)}, s3, {p_*2560}")
            a(f"s_sub_u32 {s(S_T0)}, {s(S_XCD)}, {s(S_OH)}")
            a(f"s_max_i32 {s(S_T2)}, {s(S_T0)}, 0")
            a(f"v_add_u32 v251, {s(S_T2)}, v2")
            a(f"s_sub_u32 {s(S_T2)}, {s(S_T2)}, {s(S_T0)}")
            a(f"v_add_u32 v250, {s(S_T2)}, v2")
            for p_ in range(12): a(f"s_sub_u32 {s(28+p_)}, {s(28+p_)}, {s(S_T2)}")
        q = []; hn = [0]; lq = []
        def areg(j, i):
            if j < 24: return AR + 8 * (j % D) + 4 * i
            return (AR + 8 * (j - 24) if j < 32 else OX + 8 * (j - 32)) + 4 * i
        def hlist(n, cap):
            out = []
            while hn[0] < min(n, 24) and cap > 0:
                j = hn[0]; pre = []
                if cfg.pre:
                    for i in range(2):
                        out.append((j, [f"buffer_load_dwordx4 {v(areg(j, i),4)}, {v(250+i)}, {s(R_WS,4)}, {s(28 + j//2)} offen offset:{1024*(j%2)} {cfg.hsc}"]))
                    hn[0] += 1; cap -= 1
                    continue
                if j % 2 == 0:
                    mark = len(a.lines)
                    self.chunk_id(S_OA, S_T3, j // 2)
                    a(f"s_lshl_b32 {s(S_OA)}, {s(S_OA)}, 11")
                    a(f"s_add_u32 {s(S_OW)}, {s(S_OA)}, {s(S_XCD)}")
                    a(f"s_add_u32 {s(S_OA)}, {s(S_OA)}, {s(S_OH)}")
                    pre = [t for _, t in a.lines[mark:]]; del a.lines[mark:]
                for i in range(2):
                    out.append((j, pre + [f"buffer_load_dwordx4 {v(areg(j, i),4)}, v2, {s(R_WS,4)}, {s((S_OA, S_OW)[i])} offen offset:{1024*(j%2)} {cfg.hsc}"]))
                    pre = []
                hn[0] += 1; cap -= 1
            return out
        def hload_upto(n, cap):
            if cfg.pre:
                for j, t in hlist(n, cap):
                    a(t[0]); q.append(j)
                return
            while hn[0] < min(n, 24) and cap > 0:
                j = hn[0]
                if j % 2 == 0:
                    self.chunk_id(S_OA, S_T3, j // 2)
                    a(f"s_lshl_b32 {s(S_OA)}, {s(S_OA)}, 11")
                    a(f"s_add_u32 {s(S_OW)}, {s(S_OA)}, {s(S_XCD)}")
                    a(f"s_add_u32 {s(S_OA)}, {s(S_OA)}, {s(S_OH)}")
                for i in range(2):
                    if 'h' in cfg.xs and j >= 2: continue
                    a(f"buffer_load_dwordx4 {v(areg(j, i),4)}, v2, {s(R_WS,4)}, {s((S_OA, S_OW)[i])} offen offset:{1024*(j%2)} {cfg.hsc}")
                    q.append(j)
                hn[0] += 1; cap -= 1
        ol = []
        for P in range(2):
            for i5 in range(5):
                j = 24 + 5 * P + i5
                for i in range(2):
                    b = (S_NONCE, 3)[i]
                    if cfg.pre:
                        b0 = (40, 12)[i] + 2 * P
                        if i5 < 4: ol.append((j, [f"buffer_load_dwordx4 {v(areg(j, i),4)}, v2, {s(R_WS,4)}, {s(b0 + (i5 >> 1))} offen offset:{1024*(i5&1)} sc1"]))
                        else:
                            for hh in range(2): ol.append((j, [f"buffer_load_dwordx2 {v(areg(j, i)+2*hh,2)}, v3, {s(R_WS,4)}, {s(b0 + hh)} offen offset:2048 sc1"]))
                    elif i5 < 4:
                        ol.append((j, [f"s_add_u32 {s(S_T0)}, {s(b)}, {(2*P + (i5 >> 1))*2560}",
                                       f"buffer_load_dwordx4 {v(areg(j, i),4)}, v2, {s(R_WS,4)}, {s(S_T0)} offen offset:{1024*(i5&1)} sc1"]))
                    else:
                        for hh in range(2):
                            ol.append((j, [f"s_add_u32 {s(S_T0)}, {s(b)}, {(2*P + hh)*2560}",
                                           f"buffer_load_dwordx2 {v(areg(j, i)+2*hh,2)}, v3, {s(R_WS,4)}, {s(S_T0)} offen offset:2048 sc1"]))
        def oloads(n):
            for _ in range(n):
                if not ol: return
                j, t = ol.pop(0)
                if 'o' in cfg.xs: continue
                for x in t: a(x)
                q.append(j)
        def wait(j):
            assert not any(o[0] == j for o in ol)
            idx = [k for k, t in enumerate(q) if t == j]
            if not idx: return
            a(f"s_waitcnt vmcnt({len(q) - 1 - idx[-1]})"); del q[:idx[-1] + 1]
        def lds(txt, tag): a(txt); lq.append(tag)
        def lwait(tag):
            idx = [k for k, t in enumerate(lq) if t == tag]
            if not idx: return
            a(f"s_waitcnt lgkmcnt({min(15, len(lq) - 1 - idx[-1])})"); del lq[:idx[-1] + 1]
        def reads(j, B):
            i = j // 2; base = RING[i % 6]; vb = 4 + base // SLOT; off = base % SLOT + (j & 1) * 5120
            return [f"ds_read_b128 {v(B+4*c,4)}, {v(vb)} offset:{off + 1024*c}" for c in range(5)]
        def mfma(j, B, c, i):
            ac = (AM if j < 24 else AS) + 20 * i + 4 * c
            first = j == 24 or (j == 0 and i == 1)
            return f"{M} {v(ac,4)}, {v(B+4*c,4)}, {v(areg(j, i),4)}, {'0' if first else v(ac,4)}"
        a(f"v_mov_b32 v255, 0xffff0000")
        def unpack(d, b):
            return [f"v_lshlrev_b32 {v(d)}, 16, {v(b)}", f"v_and_b32 {v(d+1)}, v255, {v(b)}",
                    f"v_lshlrev_b32 {v(d+2)}, 16, {v(b+1)}", f"v_and_b32 {v(d+3)}, v255, {v(b+1)}"]
        a(f"v_lshlrev_b32 v9, 3, {v(self.G)}")
        a(f"v_add_u32 v9, {B2L}, v9")
        for c in range(5): lds(f"ds_read_b64 {v(AS+2*c,2)}, v9 offset:{32*c}", 'b2')
        a(f"s_sub_u32 {s(S_T0)}, {s(S_WID)}, 4")
        a(f"s_xor_b32 {s(S_T1)}, {s(S_T0)}, 2")
        a(f"s_mul_i32 {s(S_T0)}, {s(S_T0)}, 5120")
        a(f"s_mul_i32 {s(S_T1)}, {s(S_T1)}, 5120")
        a(f"s_add_u32 {s(S_T0)}, {s(S_T0)}, {EXB}")
        a(f"s_add_u32 {s(S_T1)}, {s(S_T1)}, {EXB}")
        a(f"v_add_u32 v7, {s(S_T0)}, v2")
        a(f"v_add_u32 v254, {s(S_T1)}, v2")
        a(f"s_lshl_b32 {s(S_T0)}, {s(S_R)}, 5")
        a(f"s_lshl_b32 {s(S_T1)}, {s(S_C)}, 4")
        a(f"s_add_u32 {s(S_T0)}, {s(S_T0)}, {s(S_T1)}")
        a(f"v_add_u32 v10, {s(S_T0)}, {v(self.L15)}")
        a(f"v_mul_u32_u24 v8, 160, v10")
        a(f"v_lshl_add_u32 v8, {v(self.G)}, 3, v8")
        a(f"v_add_u32 v8, {XT}, v8")
        a(f"v_mul_u32_u24 v10, {OP}, v10")
        a(f"v_lshl_add_u32 v10, {v(self.G)}, 3, v10")
        lwait('b2')
        a(f"v_add_u32 v9, {OT}, v10")
        for c in range(5):
            for x in unpack(AM + 4*c, AS + 2*c): a(x)
        self.TF = 10; self.FD = 248
        self.final_prep(248, False)
        a(f"v_mov_b32 v10, {lit(-LOG2E)}")
        Gd = AM + 20; X = 212; XR = 232
        sil = []
        for c in range(5):
            g = Gd + 4 * c; x = X + 4 * c; R = range(4)
            sil += [f"v_add_f32 {v(g+r)}, {v(g+r)}, {v(AM+4*c+r)}" for r in R]
            sil += [f"v_mul_f32 {v(x+r)}, v10, {v(g+r)}" for r in R]
            sil += [f"v_exp_f32 {v(x+r)}, {v(x+r)}" for r in R]
            sil += [f"v_add_f32 {v(x+r)}, 1.0, {v(x+r)}" for r in R]
            sil += [f"v_rcp_f32 {v(x+r)}, {v(x+r)}" for r in R]
            sil += [f"v_mul_f32 {v(g+r)}, {v(g+r)}, {v(x+r)}" for r in R]
            sil += unpack(AM + 4 * c, XR + 2 * c)
        if cfg.tl2:
            prs = [(c, p) for c in range(5) for p in range(2)]
            sil = [pk('add', Gd+4*c+2*p, Gd+4*c+2*p, AM+4*c+2*p) for c, p in prs]
            sil += [pk('mul', X+4*c+2*p, Gd+4*c+2*p, ('b', 10)) for c, p in prs]
            sil += [f"v_exp_f32 {v(X+k)}, {v(X+k)}" for k in range(20)]
            sil += [pk('add', X+4*c+2*p, X+4*c+2*p, '1.0') for c, p in prs]
            sil += [f"v_rcp_f32 {v(X+k)}, {v(X+k)}" for k in range(20)]
            sil += [pk('mul', Gd+4*c+2*p, Gd+4*c+2*p, X+4*c+2*p) for c, p in prs]
            xun = []
            for c in range(5): xun += unpack(AM + 4 * c, XR + 2 * c)
        per = -(-len(sil) // 7)
        def step(j, ex=(), tag=None):
            B = XB if j % 2 == 0 else YB
            rd = reads(j + 2, B) if j + 2 < 34 else []
            if j >= 27 and not cfg.tl2: ex = sil[:per]; del sil[:per]
            if j in (24, 25) and cfg.tl2: ex = xun[10*(j-24):10*(j-23)]
            order = [(c, i) for c in range(5) for i in (0, 1)] if j < 33 else [(c, 1) for c in range(5)] + [(c, 0) for c in range(5)]
            n = 0
            gate = 8 if j < 2 * cfg.kb - 1 else (16 if j < 2 * cfg.kh - 1 else 24)
            vm = []
            if cfg.spr:
                vm = hlist(min(j + D, gate), 2)
                if j >= 24:
                    vm = ol[:cfg.opc // 4]; del ol[:cfg.opc // 4]
            nv = 0
            for k, (c, i) in enumerate(order):
                a(mfma(j, B, c, i))
                if rd and i == 1: lds(rd[c], j + 2)
                while nv < len(vm) and nv * 10 <= k * len(vm):
                    for x in vm[nv][1]: a(x)
                    q.append(vm[nv][0]); nv += 1
                while n < (k + 1) * len(ex) // 10:
                    if ex[n].startswith('ds_'): lds(ex[n], tag)
                    else: a(ex[n])
                    n += 1
            if not cfg.spr: hload_upto(min(j + 1 + D, gate), 2)
        def one(j, ex=(), tag=None):
            i = j // 2
            if cfg.tl2:
                if 2 * cfg.ko <= j < 24:
                    oloads(cfg.opc // 2)
                    assert not ol or ol[0][0] - 24 <= j - 16
                if j == 24:
                    oloads(cfg.of0)
                    for c in range(5): lds(f"ds_write_b128 v7, {v(AM+20+4*c,4)} offset:{1024*c}", 'mx')
                    oloads(cfg.of0)
                    lwait('mx')
                    a("s_barrier"); self.stamp(33)
                    for c in range(5): lds(f"ds_read_b128 {v(Gd+4*c,4)}, v254 offset:{1024*c}", 'g')
                    for c in range(5): lds(f"ds_read_b64 {v(XR+2*c,2)}, v8 offset:{32*c}", 'xr')
                    oloads(1 if cfg.spr else 2)
                    lwait('g')
                    if 's' in cfg.xs: del sil[4:]
                    nr = len(ol); nsil = len(sil)
                    if cfg.spr: nr = max(0, cfg.ols - (24 - len(ol)))
                    for n, x in enumerate(sil):
                        a(x)
                        oloads((n + 1) * nr // nsil - n * nr // nsil)
                    sil.clear()
                    lwait('xr')
                    self.stamp(34)
            elif i >= cfg.ko: oloads(cfg.opc // 2)
            if j == 0:
                a("s_waitcnt vmcnt(0)"); q.clear()
            mark = len(a.lines)
            wait(j); lwait(j)
            if len(a.lines) == mark + 2:
                t = a.lines[mark][1] + ' ' + a.lines[mark+1][1].split()[1]
                del a.lines[mark:]; a(t)
            if j == 27 and not cfg.tl2: lwait('g')
            if j % 2 == 1 and i <= 11:
                a("s_barrier"); self.stamp(21 + i)
            if j == 26 and not cfg.tl2:
                lwait('mx')
                a("s_barrier"); self.stamp(33)
                for c in range(5):
                    lds(f"ds_read_b128 {v(Gd+4*c,4)}, v254 offset:{1024*c}", 'g')
                    lds(f"ds_read_b64 {v(XR+2*c,2)}, v8 offset:{32*c}", 'g')
            if tag == 'of':
                for x in ex: lds(x, tag)
                ex = ()
            step(j, ex, tag)
            if j == 24 and not cfg.tl2:
                for c in range(5): lds(f"ds_write_b128 v7, {v(AM+20+4*c,4)} offset:{1024*c}", 'mx')
        a(f"s_setprio {cfg.pp}")
        a("s_barrier"); a.nbar -= 1
        hload_upto(cfg.ramp, 8)
        for x in reads(0, XB): lds(x, 0)
        for x in reads(1, YB): lds(x, 1)
        self.stamp(20)
        assert (cfg.ko == 12 or cfg.tl2) and cfg.onc == 1
        j = 0
        while j < 34:
            if j == 2 * cfg.ka - 1:
                s0, s1, s2 = self.o_segments()
                if 'j' in cfg.xs: s1 = []; s2 = []
                a(f"s_cmp_eq_u32 {s(S_TY)}, 0")
                a(f"s_cbranch_scc1 Lok")
                st = (list(q), list(lq), list(hn), a.nbar)
                one(j, s0, 'of'); lwait('of')
                for x in s1: a(x)
                one(j + 1, s2, 'ox'); lwait('ox')
                self.stamp(13)
                a.label('Loj')
                q[:], lq[:], hn[:], a.nbar = st
                mark = len(a.lines)
                a.label('Lok')
                one(j); one(j + 1)
                a("s_branch Loj")
                self.late_lines += a.lines[mark:]; del a.lines[mark:]
                j += 2
                continue
            one(j); j += 1
        assert not ol and not sil
        for c in range(5): a(f"ds_write_b128 v7, {v(AS+20+4*c,4)} offset:{1024*c}")
        a("s_waitcnt lgkmcnt(0)")
        a("s_barrier")
        for c in range(5): a(f"ds_read_b128 {v(XB+4*c,4)}, v254 offset:{1024*c}")
        for c in range(5):
            a(f"s_waitcnt lgkmcnt({4})")
            for p in range(2): a(pk('add', XB+4*c+2*p, XB+4*c+2*p, AS+4*c+2*p))
            for p in range(2): a(pk('fma', AM+4*c+2*p, XB+4*c+2*p, Gd+4*c+2*p, AM+4*c+2*p))
            for p in range(2): a(f"v_cvt_pk_bf16_f32 {v(AM+4*c+p)}, {v(AM+4*c+2*p)}, {v(AM+4*c+2*p+1)}")
            a(f"ds_write_b64 v9, {v(AM+4*c,2)} offset:{32*c}")
        a("s_waitcnt lgkmcnt(0)")
        a("s_barrier")
        self.nb_c_p2 = a.nbar - nb
        a.nbar = nb
        if cfg.diag or cfg.light:
            a(f"v_mov_b32 v164, v248"); a(f"v_mov_b32 v165, v249")
            self.FD = 164

Cfg4.xw = 0
Cfg4.xphi = False
Cfg4.nbs = 6
def wg_type(kw, wg): return G0.wg_type(kw, wg)
def make(**kw):
    cfg = Cfg4()
    for k, x in kw.items(): setattr(cfg, k, x)
    return Gen4(cfg).build()

if __name__ == '__main__':
    out = sys.argv[1]
    kw = {}
    for x in sys.argv[2:]:
        k, val = x.split('=', 1); kw[k] = eval(val)
    open(out, 'w').write(make(**kw))
```
